```python
import torch

def _softmax(x, axis=-1):
    return torch.softmax(x, dim=axis)
def _gelu(x):
    return torch.nn.functional.gelu(x, approximate="tanh")
def _silu(x):
    return torch.nn.functional.silu(x)
def _sigmoid(x):
    return torch.sigmoid(x)
def _layernorm(x, axis=-1, eps=1e-5):
    m = x.mean(dim=axis, keepdim=True)
    v = x.var(dim=axis, keepdim=True, unbiased=False)
    return (x - m) / torch.sqrt(v + eps)
def _scatter_add(tgt, idx, src, axis=0):
    return tgt.clone().index_add_(axis, idx, src)
def _segment_sum(src, seg, n):
    out = torch.zeros((n,) + src.shape[1:], dtype=src.dtype)
    return out.index_add_(0, seg, src)
def _pad(x, pw):
    flat = tuple(v for pair in reversed(pw) for v in pair)
    return torch.nn.functional.pad(x, flat)

kernel_name = 'parallel_sum__ssm_conv_s5__glu_gated_swiglu__prompt'

def setup_inputs():

    _w = (lambda a: (lambda t: t.to(torch.bfloat16) if t.is_floating_point() else t)(torch.as_tensor(a)))
    def _A_setup():
        B, S, D = 1, 2048, 640
        P = D
        Lambda_re = -0.5 * (lambda _x: torch.exp(torch.as_tensor(_x)))((lambda *s: torch.randn(*s, dtype=torch.bfloat16) * 0.2)(P))
        Lambda_im = (lambda *s: torch.randn(*s, dtype=torch.bfloat16) * 0.8)(P) * 1.0
        B_re = (lambda *s: torch.randn(*s, dtype=torch.bfloat16) * 0.2)(P, D) * (D ** -0.5)
        B_im = (lambda *s: torch.randn(*s, dtype=torch.bfloat16) * 0.2)(P, D) * (D ** -0.5)
        C_re = (lambda *s: torch.randn(*s, dtype=torch.bfloat16) * 0.2)(D, P) * (P ** -0.5)
        C_im = (lambda *s: torch.randn(*s, dtype=torch.bfloat16) * 0.2)(D, P) * (P ** -0.5)
        log_dt = (lambda *s: torch.randn(*s, dtype=torch.bfloat16) * 0.2)(P) * 0.3 - 2.0
        Dskip = (lambda *s: torch.randn(*s, dtype=torch.bfloat16) * 0.05)(D)
        return {
            "x": _w((lambda *s: torch.randn(*s, dtype=torch.bfloat16) * 0.05)(B, S, D)),
            "Lambda_re": _w(Lambda_re),
            "Lambda_im": _w(Lambda_im),
            "B_re": _w(B_re),
            "B_im": _w(B_im),
            "C_re": _w(C_re),
            "C_im": _w(C_im),
            "log_dt": _w(log_dt),
            "Dskip": _w(Dskip),
        }
    _A_in = _A_setup()

    def _B_setup():
        B, S, D, F = 1, 2048, 640, 1536
        return {
            "x": _w((lambda *s: torch.randn(*s, dtype=torch.bfloat16) * 0.05)(B, S, D)),
            "w1": _w((lambda *s: torch.randn(*s, dtype=torch.bfloat16) * 0.4)(D, F) * (2.0 / D) ** 0.5),
            "w3": _w((lambda *s: torch.randn(*s, dtype=torch.bfloat16) * 0.4)(D, F) * (2.0 / D) ** 0.5),
            "w2": _w((lambda *s: torch.randn(*s, dtype=torch.bfloat16) * 0.4)(F, D) * (2.0 / F) ** 0.5),
        }
    _B_in = _B_setup()

    return {
        "A_x": _A_in["x"],
        "A_Lambda_re": _A_in["Lambda_re"],
        "A_Lambda_im": _A_in["Lambda_im"],
        "A_B_re": _A_in["B_re"],
        "A_B_im": _A_in["B_im"],
        "A_C_re": _A_in["C_re"],
        "A_C_im": _A_in["C_im"],
        "A_log_dt": _A_in["log_dt"],
        "A_Dskip": _A_in["Dskip"],
        "B_x": _B_in["x"],
        "B_w1": _B_in["w1"],
        "B_w3": _B_in["w3"],
        "B_w2": _B_in["w2"],
    }

def reference(A_x, A_Lambda_re, A_Lambda_im, A_B_re, A_B_im, A_C_re, A_C_im, A_log_dt, A_Dskip, B_x, B_w1, B_w3, B_w2):
    def _A_ref(x, Lambda_re, Lambda_im, B_re, B_im, C_re, C_im, log_dt, Dskip):
        Bsz, L, H = x.shape
        Lam = Lambda_re + 1j * Lambda_im
        Bmat = B_re + 1j * B_im
        Cmat = C_re + 1j * C_im
        dt = torch.exp(log_dt)
        Lam_bar = torch.exp(dt * Lam)
        B_bar = ((Lam_bar - 1.0) / Lam)[:, None] * Bmat
        Bu = torch.einsum("bld,pd->blp", x + 0j, B_bar)
        h = torch.zeros_like(Bu[:, 0, :])
        hs = []
        for t in range(L):
            h = Lam_bar[None, :] * h + Bu[:, t, :]
            hs.append(h)
        hseq = torch.stack(hs, 1)
        y = 2.0 * torch.einsum("blp,dp->bld", hseq, Cmat).real + x * Dskip[None, None, :]
        return y

    def _B_ref(x, w1, w3, w2):
        gate = torch.einsum("bsd,df->bsf", x, w1)
        up = torch.einsum("bsd,df->bsf", x, w3)
        h = _silu(gate) * up
        out = torch.einsum("bsf,fd->bsd", h, w2)
        return out

    x = A_x
    xn = _layernorm(x, axis=-1)
    return x + _A_ref(xn, A_Lambda_re, A_Lambda_im, A_B_re, A_B_im, A_C_re, A_C_im, A_log_dt, A_Dskip) + _B_ref(xn, B_w1, B_w3, B_w2)
```

```python
import re

REG_RE = re.compile(r'(?<![\w.])([vas])(?:\[(\d+):(\d+)\]|(\d+))(?![\w])')

def regs_of(tok):
    out = []
    for m in REG_RE.finditer(tok):
        k = m.group(1)
        if m.group(2) is not None:
            out += [(k, i) for i in range(int(m.group(2)), int(m.group(3)) + 1)]
        else:
            out.append((k, int(m.group(4))))
    if re.search(r'\bvcc\b', tok): out += [('x', 'vcc')]
    if re.search(r'\bexec\b', tok): out += [('x', 'exec')]
    if re.search(r'\bm0\b', tok): out += [('x', 'm0')]
    return out

TRANS = ('v_exp_f32', 'v_log_f32', 'v_rcp_f32', 'v_rsq_f32', 'v_sqrt_f32', 'v_sin_f32', 'v_cos_f32')
RMW = ('v_fmac_f32', 'v_dot2c_f32_bf16', 'v_fmac_f32_dpp', 'v_writelane_b32', 'v_fmac_f32_e32', 'v_add_f32_dpp_rmw')

class I:
    __slots__ = ('text', 'op', 'kind', 'defs', 'uses', 'tag', 'dpp', 'passes', 'srcc', 'ab', 'wide', 'raw')
    def __init__(self, text, tag=None):
        self.text = text.strip(); self.tag = tag; self.raw = False
        t = self.text.split(';')[0].strip()
        parts = t.split(None, 1)
        self.op = op = parts[0]
        rest = parts[1] if len(parts) > 1 else ''
        ops = [o.strip() for o in re.split(r',(?![^\[]*\])', rest)] if rest else []
        self.dpp = ('quad_perm' in t or 'row_' in t or 'wave_' in t)
        self.passes = 0; self.srcc = set(); self.ab = set(); self.wide = False
        defs, uses = [], []
        if op.endswith(':'):
            self.kind = 'label'
        elif op.startswith('v_mfma'):
            self.kind = 'mfma'
            defs = regs_of(ops[0]); uses = regs_of(ops[1]) + regs_of(ops[2]) + regs_of(ops[3])
            self.srcc = set(regs_of(ops[3])); self.ab = set(regs_of(ops[1]) + regs_of(ops[2]))
            self.passes = 8 if '32x32x16' in op else 4
        elif op.startswith('v_'):
            self.kind = 'trans' if op.replace('_e32', '').replace('_e64', '') in TRANS else 'valu'
            defs = regs_of(ops[0])
            k = 1
            if op.startswith(('v_add_co', 'v_sub_co', 'v_addc_co', 'v_subb_co', 'v_div_scale', 'v_mad_u64')):
                defs += regs_of(ops[1]); k = 2
            for o in ops[k:]: uses += regs_of(o)
            base = op.replace('_e32', '').replace('_e64', '').replace('_dpp', '')
            if base in RMW or op.startswith('v_permlane'):
                uses += regs_of(ops[0])
            if op.startswith('v_permlane') and 'swap' in op:
                defs += regs_of(ops[1])
            if op.startswith('v_cmpx'): defs += [('x', 'exec')]
            if op.startswith('v_cndmask') and len(ops) == 3: uses += [('x', 'vcc')]
            if self.dpp and ('row_shr' in t or 'row_shl' in t or 'bcast' in t) : uses += regs_of(ops[0])
        elif op.startswith('ds_read') or op.startswith('ds_bpermute') or op.startswith('ds_swizzle'):
            self.kind = 'ds'
            defs = regs_of(ops[0])
            for o in ops[1:]: uses += regs_of(o)
        elif op.startswith('ds_'):
            self.kind = 'ds'
            for o in ops: uses += regs_of(o)
        elif op.startswith('buffer_load') or op.startswith('global_load'):
            self.kind = 'vm'
            if re.search(r'\blds\b', t) or '_lds_' in op:
                for o in ops: uses += regs_of(o)
                uses += [('x', 'm0')]
            else:
                defs = regs_of(ops[0])
                for o in ops[1:]: uses += regs_of(o)
        elif op.startswith('buffer_store') or op.startswith('global_store') or op.startswith('buffer_atomic') or op.startswith('global_atomic'):
            self.kind = 'vm'
            for o in ops: uses += regs_of(o)
            self.wide = ('x4' in op or 'x3' in op)
            if 'atomic' in op and re.search(r'\bsc0\b', t): defs = regs_of(ops[0])
        elif op.startswith('buffer_') :
            self.kind = 'vm'
        elif op.startswith('s_load') or op.startswith('s_buffer_load') or op in ('s_memtime', 's_memrealtime'):
            self.kind = 'smem'
            defs = regs_of(ops[0])
            for o in ops[1:]: uses += regs_of(o)
        elif op in ('s_waitcnt', 's_barrier', 's_nop', 's_endpgm', 's_setprio', 's_sleep') or op.startswith('s_branch') or op.startswith('s_cbranch'):
            self.kind = 'ctl'
            if 'vcc' in op: uses = [('x', 'vcc')]
            if 'exec' in op: uses = [('x', 'exec')]
        elif op.startswith('s_cmp') or op.startswith('s_bitcmp'):
            self.kind = 'salu'
            for o in ops: uses += regs_of(o)
        elif op.startswith('s_'):
            self.kind = 'salu'
            defs = regs_of(ops[0])
            for o in ops[1:]: uses += regs_of(o)
            if 'saveexec' in op: defs += [('x', 'exec')]; uses += [('x', 'exec')]
        elif op.startswith('.'):
            self.kind = 'dir'
        else:
            raise ValueError('unknown instr: ' + text)
        self.defs = set(defs); self.uses = set(uses)

class Marker:
    def __init__(self, what, arg=None): self.what = what; self.arg = arg

class Prog:
    def __init__(self):
        self.items = []
    def e(self, text, tag=None):
        for line in text.split('\n'):
            if line.strip(): self.items.append(I(line, tag))
    def add(self, it): self.items.append(it)
    def extend(self, its): self.items += its
    def wait_vm(self, tag): self.items.append(Marker('vm', tag))
    def wait_lgkm(self, tag): self.items.append(Marker('lgkm', tag))
    def wait_all(self): self.items.append(Marker('all'))
    def forget(self): self.items.append(Marker('forget'))

    def finalize(self, stats=None):
        out = []
        vm = []
        lg = []
        nwait = nnop = 0
        def emit_wait(vmn=None, lgn=None):
            nonlocal vm, lg, nwait
            s = 's_waitcnt'
            if vmn is not None:
                vmn = min(vmn, 63); s += f' vmcnt({vmn})'; vm = vm[len(vm) - vmn:] if vmn else []
            if lgn is not None:
                if any(x.kind == 'smem' for x in lg): lgn = 0
                lgn = min(lgn, 15); s += f' lgkmcnt({lgn})'; lg = lg[len(lg) - lgn:] if lgn else []
            out.append(I(s)); nwait += 1
        def dist_back(pred, maxd):
            d = 0
            for x in reversed(out):
                if x.kind in ('label', 'dir'): continue
                if pred(x): return d
                d += (int(x.text.split()[1]) + 1) if x.op == 's_nop' else 1
                if d >= maxd: return None
            return None
        for it in self.items:
            if isinstance(it, Marker):
                if it.what == 'vm':
                    tags = it.arg if isinstance(it.arg, (list, tuple, set)) else [it.arg]
                    idx = [i for i, x in enumerate(vm) if x.tag in tags]
                    if idx: emit_wait(vmn=len(vm) - 1 - idx[-1])
                elif it.what == 'lgkm':
                    tags = it.arg if isinstance(it.arg, (list, tuple, set)) else [it.arg]
                    idx = [i for i, x in enumerate(lg) if x.tag in tags]
                    if idx: emit_wait(lgn=len(lg) - 1 - idx[-1])
                elif it.what == 'all':
                    emit_wait(0, 0)
                elif it.what == 'forget':
                    vm = []; lg = []
                continue
            x = it
            if x.kind in ('label', 'dir'):
                out.append(x); continue
            if x.op == 's_waitcnt':
                m = re.search(r'vmcnt\((\d+)\)', x.text)
                if m:
                    n = int(m.group(1)); vm = vm[len(vm) - n:] if n and n < len(vm) else (vm if n else [])
                m = re.search(r'lgkmcnt\((\d+)\)', x.text)
                if m:
                    n = int(m.group(1)); lg = lg[len(lg) - n:] if n and n < len(lg) else (lg if n else [])
                out.append(x); continue
            touch = x.uses | x.defs
            vi = [i for i, y in enumerate(vm) if y.defs & touch]
            li = [i for i, y in enumerate(lg) if y.defs & touch]
            if vi or li:
                emit_wait(len(vm) - 1 - vi[-1] if vi else None, len(lg) - 1 - li[-1] if li else None)
            need = 0
            def req(pred, n):
                nonlocal need
                d = dist_back(pred, n)
                if d is not None: need = max(need, n - d)
            vuses = {r for r in x.uses if r[0] in 'va'}
            vdefs = {r for r in x.defs if r[0] in 'va'}
            suses = {r for r in x.uses if r[0] == 's' or r == ('x', 'vcc')}
            isvalu = lambda y: y.kind in ('valu', 'trans')
            if x.kind == 'mfma':
                req(lambda y: isvalu(y) and (y.defs & x.uses), 2)
                req(lambda y: isvalu(y) and ('x', 'exec') in y.defs, 4)
                for p, n in ((8, 12), (4, 8)):
                    req(lambda y: y.kind == 'mfma' and y.passes == p and (y.defs & x.ab), n)
                for p, n in ((8, 10), (4, 6)):
                    req(lambda y: y.kind == 'mfma' and y.passes == p and (y.defs & x.srcc) and not (y.defs == x.srcc and y.passes == x.passes), n)
                    req(lambda y: y.kind == 'mfma' and y.passes == p and (y.defs & x.defs) and not (y.defs == x.srcc), n + 2)
            else:
                if vuses or vdefs:
                    for p, n in ((8, 12), (4, 8)):
                        req(lambda y: y.kind == 'mfma' and y.passes == p and (y.defs & (vuses | vdefs)), n)
                if x.kind in ('valu', 'trans', 'ds', 'vm') and vdefs:
                    for p, n in ((8, 7), (4, 3)):
                        req(lambda y: y.kind == 'mfma' and y.passes == p and (y.srcc & vdefs), n)
            if x.kind in ('valu', 'trans'):
                if x.kind == 'valu' or True:
                    req(lambda y: y.kind == 'trans' and (y.defs & x.uses), 1)
                if x.dpp:
                    req(lambda y: isvalu(y) and (y.defs & vuses), 2)
                    req(lambda y: isvalu(y) and ('x', 'exec') in y.defs, 5)
                if x.op.startswith(('v_readfirstlane', 'v_readlane')):
                    req(lambda y: isvalu(y) and (y.defs & vuses), 1)
                if x.op.startswith(('v_readlane', 'v_writelane')):
                    req(lambda y: isvalu(y) and (y.defs & suses), 4)
                if x.op.startswith('v_permlane'):
                    req(lambda y: isvalu(y) and (y.defs & vuses), 2)
                if suses:
                    req(lambda y: isvalu(y) and (y.defs & suses), 2)
                if x.op.startswith('v_div_fmas'):
                    req(lambda y: isvalu(y) and ('x', 'vcc') in y.defs, 4)
                if vdefs:
                    req(lambda y: y.kind == 'vm' and y.wide and (y.uses & vdefs), 2)
            if x.kind in ('ds', 'vm') and vdefs:
                req(lambda y: y.kind == 'vm' and y.wide and (y.uses & vdefs), 1)
            if x.kind == 'vm':
                req(lambda y: isvalu(y) and (y.defs & {r for r in x.uses if r[0] == 's'}), 5)
                if ('x', 'm0') in x.uses:
                    req(lambda y: y.kind == 'salu' and ('x', 'm0') in y.defs, 1)
            if x.kind in ('salu', 'smem', 'ctl'):
                su = {r for r in x.uses if r[0] == 's' or r == ('x', 'vcc')}
                if su: req(lambda y: isvalu(y) and (y.defs & su), 4)
            while need > 0:
                n = min(need, 16)
                out.append(I(f's_nop {n-1}')); nnop += 1; need -= n
            out.append(x)
            if x.kind == 'vm': vm.append(x)
            elif x.kind in ('ds', 'smem'): lg.append(x)
        if stats is not None:
            stats['n'] = len([x for x in out if x.kind not in ('label', 'dir')]); stats['waits'] = nwait; stats['nops'] = nnop
        return '\n'.join(('' if x.kind == 'label' else '  ') + x.text for x in out)
```

```python
NAME = "parallel_sum__ssm_conv_s5__glu_gated_swiglu__prompt"
def kd(name, vgpr=256, sgpr=102, accum=None):
    if accum is None: accum = min(256, (vgpr + 3) // 4 * 4)
    return f""".p2align 6
.amdhsa_kernel {name}
  .amdhsa_next_free_vgpr {vgpr}
  .amdhsa_next_free_sgpr {sgpr}
  .amdhsa_accum_offset {accum}
  .amdhsa_group_segment_fixed_size 0
  .amdhsa_kernarg_size 128
  .amdhsa_user_sgpr_count 2
  .amdhsa_user_sgpr_kernarg_segment_ptr 1
  .amdhsa_system_sgpr_workgroup_id_x 1
.end_amdhsa_kernel
"""
def wrap(kernels):
    s = ""
    for (name, grid, block, lds, body, vgpr, accum) in kernels:
        s += f"; @launch kernel={name} grid=({grid},1,1) block=({block},1,1) lds={lds}\n"
    s += '.amdgcn_target "amdgcn-amd-amdhsa--gfx950"\n.text\n'
    seen = set()
    for (name, grid, block, lds, body, vgpr, accum) in kernels:
        if name in seen: continue
        seen.add(name)
        s += f".globl {name}\n.p2align 8\n.type {name},@function\n{name}:\n{body}\n s_endpgm\n"
    s += '.section .rodata,"a"\n'
    seen = set()
    for (name, grid, block, lds, body, vgpr, accum) in kernels:
        if name in seen: continue
        seen.add(name)
        s += kd(name, vgpr, 102, accum)
    return s
```

```python
import sys, math
from asmgen import Prog, I, Marker
from common import wrap

H_OFF = 0
W2S_OFF = 32 * 88 * 4096
ST_OFF = W2S_OFF + 8 * 88 * 5120
AGG_OFF = ST_OFF + 16384
WS_USED = AGG_OFF + 8 * 10240
LOG2E = 0x3fb8aa3b
NLOG2E = 0xbfb8aa3b
INV2PI = 0x3e22f983
OOB = 0x7f000000

def f2u(x):
    import struct
    return struct.unpack('<I', struct.pack('<f', x))[0]

S_X, S_W1, S_W3, S_B, S_WS, S_J0, S_J1, S_DBG, S_AG = 4, 8, 12, 16, 20, 24, 28, 32, 36
sMT, sSL, sW, sI, sT0, sT1, sT2, sT3 = 40, 41, 42, 43, 44, 45, 46, 47
sXR = 48
sMASK, sONES = 52, 53
sLB = 54
sD0, sD1 = 55, 56
sH = 57
sLBS = 58
sBT = 59
P_X, P_LRE, P_LIM, P_BRE, P_BIM, P_CRE, P_CIM, P_LDT, P_D, P_BX, P_W1, P_W3, P_W2, P_OUT, P_DBG, P_WS = [64 + 2 * i for i in range(16)]
sNL2E = 96
sG0, sG1, sG2 = 97, 98, 99
sFM = 100
sST = 101

def srd(p, d, ptr, nrec, add=0):
    if add == 0:
        p.e(f"s_mov_b32 s{d}, s{ptr}\ns_mov_b32 s{d+1}, s{ptr+1}")
    elif isinstance(add, str):
        p.e(f"s_add_u32 s{d}, s{ptr}, {add}\ns_addc_u32 s{d+1}, s{ptr+1}, 0")
    elif add > 0:
        p.e(f"s_add_u32 s{d}, s{ptr}, {add}\ns_addc_u32 s{d+1}, s{ptr+1}, 0")
    else:
        p.e(f"s_sub_u32 s{d}, s{ptr}, {-add}\ns_subb_u32 s{d+1}, s{ptr+1}, 0")
    p.e(f"s_mov_b32 s{d+2}, {nrec}\ns_mov_b32 s{d+3}, 0x20000")

def S(d): return f"s[{d}:{d+3}]"
def V(a, n): return f"v[{a}:{a+n-1}]" if n > 1 else f"v{a}"
def A(a, n): return f"a[{a}:{a+n-1}]" if n > 1 else f"a{a}"
QP = "quad_perm:[1,0,3,2] row_mask:0xf bank_mask:0xf"

vL = 1
vSW = 2
vSR = 4
vD = 8
vDS = 10
vBR = 11
vR = 15
vNM = 19
vT = 23
vTMP = 27
ACC1 = 32
RAW = 96
XF = 0
BF = 160

STG = 0
X_RING, X_NSLOT, X_SLOT = 16384, 9, 16384
Y_TBL, Y_AG, Y_RING, Y_NSLOT, Y_SLOT = 16384, 24576, 32768, 6, 20480

def k1_setup(p):
    p.e("s_cmp_ge_u32 s2, 256\ns_cbranch_scc1 K1_end")
    p.e("s_load_dwordx16 s[64:79], s[0:1], 0\ns_load_dwordx16 s[80:95], s[0:1], 64")
    p.e(f"v_and_b32 v{vL}, 63, v0\nv_lshrrev_b32 v{vTMP}, 6, v0")
    p.e(f"v_readfirstlane_b32 s{sW}, v{vTMP}")
    p.e(f"s_and_b32 s{sT0}, s2, 7\ns_lshr_b32 s{sT1}, s2, 3")
    p.e(f"s_and_b32 s{sMT}, s{sT0}, 1\ns_lshl_b32 s{sMT}, s{sMT}, 3\ns_and_b32 s{sT2}, s{sT1}, 7\ns_add_u32 s{sMT}, s{sMT}, s{sT2}")
    p.e(f"s_lshr_b32 s{sSL}, s{sT0}, 1\ns_lshl_b32 s{sSL}, s{sSL}, 2\ns_lshr_b32 s{sT2}, s{sT1}, 3\ns_add_u32 s{sSL}, s{sSL}, s{sT2}")
    p.e(f"s_lshr_b32 s{sI}, s{sSL}, 1")
    p.e(f"s_mov_b32 s{sMASK}, 0xffff0000\ns_mov_b32 s{sONES}, 0x3f803f80\ns_mov_b32 s{sNL2E}, {NLOG2E}")
    p.e(f"s_lshl_b32 s{sT0}, s{sMT}, 7\ns_lshl_b32 s{sT1}, s{sW}, 5\ns_add_u32 s{sT0}, s{sT0}, s{sT1}")
    p.e(f"s_lshl_b32 s{sST}, s{sT0}, 3\ns_add_u32 s{sST}, s{sST}, {ST_OFF}")
    p.e(f"s_mul_i32 s{sXR}, s{sT0}, 1280")
    for i in range(1, 4): p.e(f"s_add_u32 s{sXR+i}, s{sXR}, {8*1280*i}")
    p.e(f"s_lshl_b32 s{sLB}, s{sW}, 12\ns_mul_i32 s{sLBS}, s{sW}, 5120")
    p.e(f"s_lshl_b32 s{sT0}, s{sMT}, 1\ns_lshr_b32 s{sT1}, s{sW}, 1\ns_add_u32 s{sT0}, s{sT0}, s{sT1}\ns_mul_i32 s{sH}, s{sT0}, {88*4096}")
    p.e(f"s_and_b32 s{sT1}, s{sW}, 1\ns_lshl_b32 s{sT1}, s{sT1}, 11\ns_add_u32 s{sH}, s{sH}, s{sT1}")
    t0, t1, t2, t3 = vTMP, vTMP + 1, vTMP + 2, vTMP + 3
    p.e(f"v_lshrrev_b32 v{t0}, 3, v{vL}\nv_and_b32 v{t1}, 7, v{vL}")
    p.e(f"v_mul_u32_u24 v{vT}, 1280, v{t0}\nv_lshl_add_u32 v{vT}, v{t1}, 4, v{vT}")
    p.e("s_waitcnt lgkmcnt(0)")
    srd(p, S_X, P_X, 2048 * 1280)
    srd(p, S_WS, P_WS, WS_USED)

def k1_xloads(p):
    for kb in range(10):
        for i in range(4):
            p.e(f"buffer_load_dwordx4 {V(RAW+16*kb+4*i,4)}, v{vT}, {S(S_X)}, s{sXR+i} offen offset:{kb*128}", tag=('x', kb))

def k1_addr_common(p):
    t0, t1, t2, t3 = vTMP, vTMP + 1, vTMP + 2, vTMP + 3
    p.e(f"v_lshrrev_b32 v{t2}, 4, v{vL}\nv_xor_b32 v{t2}, v{t1}, v{t2}\nv_lshlrev_b32 v{t2}, 4, v{t2}")
    p.e(f"v_lshl_add_u32 v{t2}, v{t0}, 7, v{t2}\nv_add_u32 v{vSW}, s{sLB}, v{t2}\nv_xor_b32 v{vSW+1}, 64, v{vSW}")
    p.e(f"v_bfe_u32 v{t2}, v{vL}, 2, 1\nv_lshlrev_b32 v{t2}, 4, v{t2}\nv_bfe_u32 v{t3}, v{vL}, 3, 2\nv_lshl_add_u32 v{t2}, v{t3}, 2, v{t2}")
    p.e(f"v_and_b32 v{t3}, 3, v{vL}\nv_add_u32 v{t2}, v{t2}, v{t3}")
    p.e(f"v_bfe_u32 v{t3}, v{t2}, 1, 3\nv_lshrrev_b32 v{vSR}, 5, v{vL}\nv_xor_b32 v{t3}, v{t3}, v{vSR}\nv_lshlrev_b32 v{t3}, 4, v{t3}")
    p.e(f"v_lshl_add_u32 v{t3}, v{t2}, 7, v{t3}\nv_add_u32 v{vSR}, s{sLB}, v{t3}")
    for s in range(1, 4): p.e(f"v_xor_b32 v{vSR+s}, {32*s}, v{vSR}")
    p.e(f"v_bfe_u32 v{t2}, v{vL}, 4, 1\nv_lshlrev_b32 v{t2}, 1, v{t2}\nv_xor_b32 v{t2}, v{t1}, v{t2}\nv_lshlrev_b32 v{t2}, 4, v{t2}")
    p.e(f"v_mul_u32_u24 v{t3}, 3072, v{t0}\nv_add_u32 v{vD}, v{t2}, v{t3}\nv_xor_b32 v{vD+1}, 64, v{vD}")
    srd(p, S_W1, P_W1, 640 * 3072)
    srd(p, S_W3, P_W3, 640 * 3072 + 1024, -1024)

def tr_addrs(p, base):
    t0, t1, t2, t3 = vTMP, vTMP + 1, vTMP + 2, vTMP + 3
    p.e(f"v_bfe_u32 v{t0}, v{vL}, 4, 1\nv_lshrrev_b32 v{t1}, 5, v{vL}\nv_lshlrev_b32 v{t1}, 11, v{t1}\nv_lshl_add_u32 v{t1}, v{t0}, 10, v{t1}")
    p.e(f"v_bfe_u32 v{t2}, v{vL}, 2, 2\nv_lshl_add_u32 v{t1}, v{t2}, 7, v{t1}\nv_and_b32 v{t3}, 3, v{vL}\nv_lshl_add_u32 v{t1}, v{t3}, 3, v{t1}")
    p.e(f"v_bfe_u32 v{t2}, v{vL}, 3, 1\nv_lshl_add_u32 v{t2}, v{t0}, 1, v{t2}\nv_lshl_add_u32 v{t1}, v{t2}, 5, v{t1}")
    p.e(f"v_add_u32 v{vT}, {base}, v{t1}")
    for tau in range(1, 4): p.e(f"v_xor_b32 v{vT+tau}, {32*tau}, v{vT}")

def ffn_dma(p, ldsbase, G_expr_init, kb, tag):
    p.e(f"s_add_u32 m0, s{sLB}, {ldsbase}")
    p.e(f"buffer_load_dwordx4 v{vD}, {S(S_W1)}, s{sD0} offen lds", tag=tag)
    p.e(f"buffer_load_dwordx4 v{vD+1}, {S(S_W3)}, s{sD0} offen offset:1024 lds", tag=tag)
    p.e(f"buffer_load_dwordx4 v{vD}, {S(S_W1)}, s{sD1} offen offset:2048 lds", tag=tag)
    p.e(f"buffer_load_dwordx4 v{vD+1}, {S(S_W3)}, s{sD1} offen offset:3072 lds", tag=tag)

def ffn_dma_init(p, sG):
    p.e(f"s_mul_i32 s{sD0}, s{sW}, {16*3072}\ns_lshl_b32 s{sT3}, s{sG}, 7\ns_add_u32 s{sD0}, s{sD0}, s{sT3}\ns_add_u32 s{sD1}, s{sD0}, {8*3072-2048}")

def ffn_dma_adv(p, delta):
    if delta >= 0:
        p.e(f"s_add_u32 s{sD0}, s{sD0}, {delta}\ns_add_u32 s{sD1}, s{sD1}, {delta}")
    else:
        p.e(f"s_sub_u32 s{sD0}, s{sD0}, {-delta}\ns_sub_u32 s{sD1}, s{sD1}, {-delta}")

def stats_kb(p, kb, accS, accQ):
    for d in range(4):
        for i in range(4):
            r = RAW + 16 * kb + 4 * i + d
            p.e(f"v_dot2c_f32_bf16 v{accS+i}, s{sONES}, v{r}\nv_dot2c_f32_bf16 v{accQ+i}, v{r}, v{r}")

def bf16r(p, v, tmp=None):
    p.e(f"v_cvt_pk_bf16_f32 v{v}, v{v}, v{v}\nv_and_b32 v{v}, s{sMASK}, v{v}")

def stats_final(p, accS, accQ):
    p.e("s_nop 2")
    for perm in ("quad_perm:[1,0,3,2]", "quad_perm:[2,3,0,1]", "row_half_mirror"):
        for r in list(range(accS, accS + 4)) + list(range(accQ, accQ + 4)):
            p.e(f"v_add_f32_dpp v{r}, v{r}, v{r} {perm} row_mask:0xf bank_mask:0xf")
    inv = f2u(1.0 / 640)
    for i in range(4): p.e(f"v_mul_f32 v{accS+i}, {inv}, v{accS+i}\nv_mul_f32 v{accQ+i}, {inv}, v{accQ+i}")
    for i in range(4): p.e(f"v_fma_f32 v{accQ+i}, -v{accS+i}, v{accS+i}, v{accQ+i}")
    for i in range(4): p.e(f"v_max_f32 v{accQ+i}, 0, v{accQ+i}")
    for i in range(4): bf16r(p, accS + i)
    for i in range(4): bf16r(p, accQ + i)
    for i in range(4): p.e(f"v_add_f32 v{accQ+i}, {f2u(1e-5)}, v{accQ+i}")
    for i in range(4): bf16r(p, accQ + i)
    for i in range(4): p.e(f"v_sqrt_f32 v{accQ+i}, v{accQ+i}")
    for i in range(4): bf16r(p, accQ + i)
    for i in range(4): p.e(f"v_rcp_f32 v{vR+i}, v{accQ+i}")
    for i in range(4): p.e(f"v_mul_f32 v{vNM+i}, v{accS+i}, v{vR+i}")
    for i in range(4): p.e(f"v_sub_f32 v{vNM+i}, 0, v{vNM+i}")

def stats_store(p):
    t0, t1, t2 = vTMP, vTMP + 1, vTMP + 2
    p.e(f"s_cmp_eq_u32 s{sSL}, 0\ns_cselect_b32 s{sT0}, 0, 64")
    p.e(f"v_and_b32 v{t0}, 7, v{vL}\nv_cmp_eq_u32 vcc, s{sT0}, v{t0}\nv_mov_b32 v{t1}, {OOB}\nv_cndmask_b32 v{t0}, v{t1}, v{vL}, vcc")
    for i in range(4):
        a = t1 + 2 * (i & 1)
        p.e(f"v_mov_b32 v{a}, v{vR+i}\nv_mov_b32 v{a+1}, v{vNM+i}")
        p.e(f"buffer_store_dwordx2 {V(a,2)}, v{t0}, {S(S_WS)}, s{sST} offen offset:{64*i}", tag='st')
        p.e("s_nop 1")

def norm_kb(kb):
    p = Prog()
    t = vTMP
    for i in range(4):
        for d in range(4):
            r = RAW + 16 * kb + 4 * i + d
            a, b = t + 2 * (d & 1), t + 2 * (d & 1) + 1
            p.e(f"v_lshlrev_b32 v{a}, 16, v{r}\nv_and_b32 v{b}, s{sMASK}, v{r}")
            p.e(f"v_fma_f32 v{a}, v{a}, v{vR+i}, v{vNM+i}\nv_fma_f32 v{b}, v{b}, v{vR+i}, v{vNM+i}")
            p.e(f"v_cvt_pk_bf16_f32 v{r}, v{a}, v{b}")
        p.e(f"ds_write_b128 v{vSW+(i&1)}, {V(RAW+16*kb+4*i,4)} offset:{1024*i}")
    for s in range(4):
        p.e(f"ds_read_b128 {A(XF+16*kb+4*s,4)}, v{vSR+s}")
    return p.items

def ffn_epi(acc, tmp, soff_expr, imm, vH):
    p = Prog()
    for r in range(8): p.e(f"v_mul_f32 v{tmp+r}, s{sNL2E}, v{acc+r}")
    for r in range(8): p.e(f"v_exp_f32 v{tmp+r}, v{tmp+r}")
    for r in range(8): p.e(f"v_mul_f32 v{acc+r}, v{acc+r}, v{acc+8+r}")
    for r in range(8): p.e(f"v_add_f32 v{tmp+r}, 1.0, v{tmp+r}")
    for r in range(8): p.e(f"v_rcp_f32 v{tmp+r}, v{tmp+r}")
    for r in range(8): p.e(f"v_mul_f32 v{acc+r}, v{acc+r}, v{tmp+r}")
    for r in range(4): p.e(f"v_cvt_pk_bf16_f32 v{acc+8+r}, v{acc+2*r}, v{acc+2*r+1}")
    p.e(soff_expr)
    p.e(f"buffer_store_dwordx4 {V(acc+8,4)}, v{vH}, {S(S_WS)}, s{sT2} offen offset:{imm}", tag='h')
    return p.items

def vH_addr(p, vH):
    t2, t3 = vTMP + 2, vTMP + 3
    p.e(f"v_bfe_u32 v{t2}, v{vL}, 2, 1\nv_lshlrev_b32 v{t2}, 10, v{t2}\nv_bfe_u32 v{t3}, v{vL}, 3, 3\nv_lshl_add_u32 v{t2}, v{t3}, 6, v{t2}")
    p.e(f"v_and_b32 v{t3}, 3, v{vL}\nv_lshl_add_u32 v{vH}, v{t3}, 4, v{t2}")

def ffn_kstep(s, kstep, ldsoff, acc, buf, first):
    rd, mf = Prog(), Prog()
    for tau in range(4):
        b = BF + buf * 20 + 4 * tau
        for t in range(2):
            rd.e(f"ds_read_b64_tr_b16 {A(b+2*t,2)}, v{vT+tau} offset:{ldsoff + s*4096 + t*512}")
        c = "0" if first else V(acc + 16 * tau, 16)
        mf.e(f"v_mfma_f32_32x32x16_bf16 {V(acc+16*tau,16)}, {A(b,4)}, {A(XF+4*kstep,4)}, {c}")
    return rd.items, mf.items

def k1_X(p, opt):
    t0, t1, t2, t3 = vTMP, vTMP + 1, vTMP + 2, vTMP + 3
    p.e(f"s_lshl_b32 s{sT0}, s{sI}, 4\ns_add_u32 s{sT0}, s{sT0}, s{sMT}\ns_lshl_b32 s{sT0}, s{sT0}, 2\ns_add_u32 s{sT0}, s{sT0}, s{sW}")
    p.e(f"s_min_u32 s{sT0}, s{sT0}, 479")
    p.e(f"s_mul_i32 s{sT1}, s{sT0}, 6554\ns_lshr_b32 s{sT1}, s{sT1}, 16\ns_mul_i32 s{sT2}, s{sT1}, 10\ns_sub_u32 s{sT0}, s{sT0}, s{sT2}")
    srd(p, S_J0, P_W2, 1536 * 1280)
    p.e(f"v_lshrrev_b32 v{t2}, 4, v{vL}\nv_lshlrev_b32 v{t2}, 1, v{t2}\nv_xor_b32 v{t2}, v{t1}, v{t2}\nv_lshlrev_b32 v{t2}, 4, v{t2}")
    p.e(f"v_mul_u32_u24 v{t3}, 1280, v{t0}\nv_add_u32 v{vBR}, v{t2}, v{t3}")
    p.e(f"s_mul_i32 s{sT2}, s{sT1}, {32*1280}\ns_lshl_b32 s{sT3}, s{sT0}, 7\ns_add_u32 s{sT2}, s{sT2}, s{sT3}")
    p.e(f"s_mov_b32 m0, s{sLB}")
    for i in range(4):
        p.e(f"buffer_load_dwordx4 v{vBR}, {S(S_J0)}, s{sT2} offen offset:{1024*i} lds", tag='job')
        if i < 3: p.e(f"s_add_u32 s{sT2}, s{sT2}, {8*1280-1024}")
    p.e(f"s_mov_b32 s{sG0}, s{sT0}\ns_mov_b32 s{sG1}, s{sT1}")
    k1_xloads(p)
    k1_addr_common(p)
    p.e(f"s_mul_i32 s{sG2}, s{sI}, 3")
    ffn_dma_init(p, sG2)
    def dma(j):
        q = Prog()
        ffn_dma(q, X_RING + (j % X_NSLOT) * X_SLOT, None, j % 10, ('slot', j))
        ffn_dma_adv(q, 64 * 3072 if j != 9 else (128 - 9 * 64 * 3072))
        return q.items
    for j in range(4): p.extend(dma(j))
    p.e(f"v_bfe_u32 v{t0}, v{vL}, 2, 3\nv_lshrrev_b32 v{t1}, 5, v{vL}\nv_lshl_add_u32 v{t1}, v{t1}, 4, v{t0}")
    p.e(f"v_lshrrev_b32 v{t0}, 1, v{t0}\nv_lshlrev_b32 v{t0}, 5, v{t0}\nv_lshl_add_u32 v{t0}, v{t1}, 7, v{t0}\nv_and_b32 v{t1}, 3, v{vL}")
    p.e(f"v_lshl_add_u32 v{t0}, v{t1}, 3, v{t0}\nv_add_u32 v{t0}, s{sLB}, v{t0}\nv_lshlrev_b32 v{t2}, 4, v{vL}")
    p.wait_vm('job')
    for tau in range(4):
        p.e(f"v_xor_b32 v{t1}, {32*tau}, v{t0}")
        for t in range(2):
            p.e(f"ds_read_b64_tr_b16 {A(BF+4*tau+2*t,2)}, v{t1} offset:{1024*t}")
    for tau in range(4):
        p.e(f"s_lshl_b32 s{sT0}, s{sG0}, 2\ns_add_u32 s{sT0}, s{sT0}, {tau}\ns_mul_i32 s{sT1}, s{sT0}, 52\ns_lshr_b32 s{sT1}, s{sT1}, 8")
        p.e(f"s_mul_i32 s{sT2}, s{sT1}, 435\ns_add_u32 s{sT0}, s{sT0}, s{sT2}\ns_mul_i32 s{sT2}, s{sG1}, 5\ns_add_u32 s{sT0}, s{sT0}, s{sT2}")
        p.e(f"s_lshl_b32 s{sT0}, s{sT0}, 10\ns_add_u32 s{sT0}, s{sT0}, {W2S_OFF + 200*1024}")
        p.e(f"buffer_store_dwordx4 {A(BF+4*tau,4)}, v{t2}, {S(S_WS)}, s{sT0} offen", tag='jobst')
    accS, accQ = ACC1, ACC1 + 4
    for i in range(8): p.e(f"v_mov_b32 v{ACC1+i}, 0")
    for kb in range(10):
        stats_kb(p, kb, accS, accQ)
        if 4 + kb < X_NSLOT: p.extend(dma(4 + kb))
    stats_final(p, accS, accQ)
    stats_store(p)
    vH = vBR
    vH_addr(p, vH)
    cur = [X_RING]
    tr_addrs(p, X_RING)
    p.extend(norm_kb(0))
    ACC2 = 112
    TMP = 176
    for j in range(20):
        kb = j % 10
        acc = ACC1 if j < 10 else ACC2
        p.wait_vm(('slot', j))
        p.e("s_barrier")
        if j >= 1 and j - 1 + X_NSLOT < 20: p.extend(dma(j - 1 + X_NSLOT))
        base = X_RING + (j % X_NSLOT) * X_SLOT
        if base < cur[0] or base + X_SLOT - cur[0] > 65536:
            for tau in range(4): p.e(f"v_add_u32 v{vT+tau}, {(base - cur[0]) & 0xffffffff}, v{vT+tau}")
            cur[0] = base
        for s in range(4):
            rd, mf = ffn_kstep(s, 4 * kb + s, base - cur[0], acc, s & 1, kb == 0 and s == 0)
            p.extend(rd); p.extend(mf)
        if j < 9: p.extend(norm_kb(j + 1))
        if kb == 9:
            for tau in range(4):
                g = j // 10
                so = f"s_lshl_b32 s{sT2}, s{sG2}, 13\ns_add_u32 s{sT2}, s{sT2}, s{sH}\ns_add_u32 s{sT2}, s{sT2}, {(40 + 2*g + (tau>>1))*4096}"
                p.extend(ffn_epi(acc + 16 * tau, TMP, so, (tau & 1) * 512, vH))

def k1_Y(p, opt):
    t0, t1, t2, t3 = vTMP, vTMP + 1, vTMP + 2, vTMP + 3
    p.e(f"s_lshl_b32 s{sT0}, s{sI}, 4\ns_add_u32 s{sT0}, s{sT0}, s{sMT}\ns_lshl_b32 s{sT0}, s{sT0}, 2\ns_add_u32 s{sT0}, s{sT0}, s{sW}")
    p.e(f"s_min_u32 s{sT0}, s{sT0}, 399")
    p.e(f"s_mul_i32 s{sT1}, s{sT0}, 6554\ns_lshr_b32 s{sT1}, s{sT1}, 16\ns_mul_i32 s{sT2}, s{sT1}, 10\ns_sub_u32 s{sT0}, s{sT0}, s{sT2}")
    srd(p, S_J0, P_CRE, 640 * 1280)
    srd(p, S_J1, P_CIM, 640 * 1280 + 2048, -2048)
    p.e(f"v_lshrrev_b32 v{t2}, 4, v{vL}\nv_xor_b32 v{t2}, v{t1}, v{t2}\nv_lshlrev_b32 v{t2}, 4, v{t2}")
    p.e(f"v_mul_u32_u24 v{t3}, 1280, v{t0}\nv_add_u32 v{vBR}, v{t2}, v{t3}\nv_xor_b32 v{vBR+1}, 64, v{vBR}")
    p.e(f"s_mul_i32 s{sT2}, s{sT1}, {16*1280}\ns_lshl_b32 s{sT3}, s{sT0}, 7\ns_add_u32 s{sT2}, s{sT2}, s{sT3}\ns_add_u32 s{sT3}, s{sT2}, {8*1280-1024}")
    p.e(f"s_mov_b32 m0, s{sLB}")
    p.e(f"buffer_load_dwordx4 v{vBR}, {S(S_J0)}, s{sT2} offen lds", tag='job')
    p.e(f"buffer_load_dwordx4 v{vBR+1}, {S(S_J0)}, s{sT3} offen offset:1024 lds", tag='job')
    p.e(f"buffer_load_dwordx4 v{vBR}, {S(S_J1)}, s{sT2} offen offset:2048 lds", tag='job')
    p.e(f"buffer_load_dwordx4 v{vBR+1}, {S(S_J1)}, s{sT3} offen offset:3072 lds", tag='job')
    p.e(f"s_mov_b32 s{sG0}, s{sT0}\ns_mov_b32 s{sG1}, s{sT1}")
    L = ACC1 + 8
    p.e(f"v_lshrrev_b32 v{L}, 5, v0\nv_lshlrev_b32 v{L}, 4, v{L}\nv_bfe_u32 v{L+1}, v0, 1, 4\nv_add_u32 v{L}, v{L}, v{L+1}")
    p.e(f"s_mul_i32 s{sT0}, s{sI}, 80\nv_add_u32 v{L}, s{sT0}, v{L}\nv_lshlrev_b32 v{L}, 1, v{L}")
    srd(p, S_AG, P_LRE, 1280)
    p.e(f"buffer_load_ushort v{L+1}, v{L}, {S(S_AG)}, 0 offen", tag='tbl')
    srd(p, S_DBG, P_LIM, 1280)
    p.e(f"buffer_load_ushort v{L+2}, v{L}, {S(S_DBG)}, 0 offen", tag='tbl')
    srd(p, S_B, P_LDT, 1280)
    p.e(f"buffer_load_ushort v{L+3}, v{L}, {S(S_B)}, 0 offen", tag='tbl')
    k1_xloads(p)
    k1_addr_common(p)
    p.e(f"s_cmp_ge_u32 s{sW}, 2\ns_cselect_b32 s{S_B}, s{P_BIM}, s{P_BRE}\ns_cselect_b32 s{S_B+1}, s{P_BIM+1}, s{P_BRE+1}")
    p.e(f"s_mov_b32 s{S_B+2}, {640*1280}\ns_mov_b32 s{S_B+3}, 0x20000")
    p.e(f"s_and_b32 s{sT0}, s{sW}, 1\ns_lshl_b32 s{sT1}, s{sT0}, 2\ns_lshr_b32 s{sT2}, s{sW}, 1\ns_xor_b32 s{sT1}, s{sT1}, s{sT2}")
    p.e(f"v_lshrrev_b32 v{t2}, 4, v{vL}\nv_xor_b32 v{t2}, s{sT1}, v{t2}\nv_xor_b32 v{t2}, v{t1}, v{t2}\nv_lshlrev_b32 v{t2}, 4, v{t2}")
    p.e(f"v_mul_u32_u24 v{t3}, 1280, v{t0}\nv_add_u32 v{vDS}, v{t2}, v{t3}")
    p.e(f"s_mul_i32 s{sT1}, s{sI}, 80\ns_lshl_b32 s{sT0}, s{sT0}, 3\ns_add_u32 s{sT0}, s{sT0}, s{sT1}\ns_mul_i32 s{sBT}, s{sT0}, 1280")
    for t in range(1, 4): p.e(f"s_add_u32 s{sBT+t}, s{sBT}, {t*(20480-1024)}")
    p.e(f"s_add_u32 s{sBT+4}, s{sBT}, {4*20480}")
    p.e(f"s_mul_i32 s{sG2}, s{sI}, 3\ns_add_u32 s{sG2}, s{sG2}, 2")
    ffn_dma_init(p, sG2)
    def dma(j):
        q = Prog()
        base = Y_RING + (j % Y_NSLOT) * Y_SLOT
        if j < 10:
            q.e(f"s_add_u32 m0, s{sLBS}, {base}")
            for t in range(4):
                q.e(f"buffer_load_dwordx4 v{vDS}, {S(S_B)}, s{sBT+t} offen offset:{1024*t} lds", tag=('slot', j))
            q.e(f"s_add_u32 m0, s{sLBS}, {base + 4096}")
            q.e(f"buffer_load_dwordx4 v{vDS}, {S(S_B)}, s{sBT+4} offen lds", tag=('slot', j))
            q.e(f"v_add_u32 v{vDS}, 128, v{vDS}")
        else:
            ffn_dma(q, base, None, j - 10, ('slot', j))
            ffn_dma_adv(q, 64 * 3072)
        return q.items
    for j in range(3): p.extend(dma(j))
    p.e(f"v_bfe_u32 v{t0}, v{vL}, 1, 3\nv_bfe_u32 v{t1}, v{vL}, 4, 1\nv_xor_b32 v{t0}, v{t0}, v{t1}\nv_lshlrev_b32 v{t0}, 4, v{t0}")
    p.e(f"v_and_b32 v{t1}, 15, v{vL}\nv_lshl_add_u32 v{t0}, v{t1}, 7, v{t0}\nv_lshrrev_b32 v{t1}, 5, v{vL}\nv_lshl_add_u32 v{t0}, v{t1}, 11, v{t0}")
    p.e(f"v_add_u32 v{t0}, s{sLB}, v{t0}\nv_lshlrev_b32 v{t2}, 4, v{vL}")
    p.wait_vm('job')
    for s in range(4):
        p.e(f"v_xor_b32 v{t1}, {32*s}, v{t0}\nds_read_b128 {A(BF+4*s,4)}, v{t1}")
    p.e(f"s_mul_i32 s{sT1}, s{sG1}, 52\ns_lshr_b32 s{sT1}, s{sT1}, 8\ns_mul_i32 s{sT1}, s{sT1}, 435\ns_add_u32 s{sT1}, s{sT1}, s{sG1}")
    p.e(f"s_mul_i32 s{sT2}, s{sG0}, 20\ns_add_u32 s{sT1}, s{sT1}, s{sT2}\ns_lshl_b32 s{sT1}, s{sT1}, 10\ns_add_u32 s{sT1}, s{sT1}, {W2S_OFF}")
    for s in range(4):
        p.e(f"buffer_store_dwordx4 {A(BF+4*s,4)}, v{t2}, {S(S_WS)}, s{sT1} offen", tag='jobst')
        if s < 3: p.e(f"s_add_u32 s{sT1}, s{sT1}, 5120")
    lr, li, ld = L + 1, L + 2, L + 3
    a2, rev, sg = L + 4, L + 5, L + 6
    O = L + 8
    u = L + 16
    p.e(f"v_lshlrev_b32 v{lr}, 16, v{lr}\nv_lshlrev_b32 v{li}, 16, v{li}\nv_lshlrev_b32 v{ld}, 16, v{ld}")
    p.e(f"v_mul_f32 v{ld}, {LOG2E}, v{ld}\nv_exp_f32 v{ld}, v{ld}")
    bf16r(p, ld)
    p.e(f"v_mul_f32 v{a2}, v{ld}, v{lr}\nv_mul_f32 v{a2}, {LOG2E}, v{a2}\nv_mul_f32 v{rev}, v{ld}, v{li}\nv_mul_f32 v{rev}, {INV2PI}, v{rev}")
    p.e(f"v_and_b32 v{sg}, 1, v0\nv_cvt_f32_u32 v{sg}, v{sg}\nv_fma_f32 v{sg}, v{sg}, 2.0, -1.0")
    for (k, o) in ((1, 0), (16, 4), (128, 6)):
        p.e(f"v_mul_f32 v{u}, {f2u(float(k))}, v{a2}\nv_exp_f32 v{u}, v{u}\nv_mul_f32 v{u+1}, {f2u(float(k))}, v{rev}\nv_fract_f32 v{u+1}, v{u+1}")
        p.e(f"v_cos_f32 v{u+2}, v{u+1}\nv_sin_f32 v{u+3}, v{u+1}\nv_mul_f32 v{O+o}, v{u}, v{u+2}\nv_mul_f32 v{O+o+1}, v{u}, v{u+3}")
        if k == 1:
            p.e(f"v_add_f32 v{u}, -1.0, v{O}\nv_mul_f32 v{u+1}, v{lr}, v{lr}\nv_fmac_f32 v{u+1}, v{li}, v{li}\nv_rcp_f32 v{u+1}, v{u+1}")
            p.e(f"v_mul_f32 v{u+2}, v{u}, v{lr}\nv_fmac_f32 v{u+2}, v{O+1}, v{li}\nv_mul_f32 v{u+3}, v{O+1}, v{lr}\nv_fma_f32 v{u+3}, -v{u}, v{li}, v{u+3}")
            p.e(f"v_mul_f32 v{u+1}, -2.0, v{u+1}\nv_mul_f32 v{u+2}, v{u+2}, v{u+1}\nv_mul_f32 v{O+2}, v{u+2}, v{sg}\nv_mul_f32 v{O+3}, v{u+3}, v{u+1}")
        p.e(f"v_mul_f32 v{O+o+1}, v{O+o+1}, v{sg}")
    p.e(f"v_lshlrev_b32 v{u}, 5, v0")
    p.e(f"ds_write_b128 v{u}, {V(O,4)} offset:{Y_TBL}\nds_write_b128 v{u}, {V(O+4,4)} offset:{Y_TBL+16}")
    accS, accQ = ACC1, ACC1 + 4
    for i in range(8): p.e(f"v_mov_b32 v{ACC1+i}, 0")
    for kb in range(10):
        stats_kb(p, kb, accS, accQ)
        if 3 + kb < Y_NSLOT: p.extend(dma(3 + kb))
    stats_final(p, accS, accQ)
    p.e(f"v_and_b32 v{t0}, 1, v{vL}\nv_bfe_u32 v{t1}, v{vL}, 1, 4\nv_lshl_add_u32 v{t1}, v{t0}, 4, v{t1}")
    p.e(f"v_bfe_u32 v{t2}, v{t1}, 1, 3\nv_xor_b32 v{t2}, v{t2}, v{t0}\nv_lshrrev_b32 v{t3}, 5, v{vL}\nv_xor_b32 v{t2}, v{t2}, v{t3}\nv_lshlrev_b32 v{t2}, 4, v{t2}")
    p.e(f"v_and_b32 v{t3}, 7, v{t1}\nv_lshl_add_u32 v{t2}, v{t3}, 7, v{t2}\nv_lshrrev_b32 v{t3}, 3, v{t1}\nv_mul_u32_u24 v{t3}, 5120, v{t3}")
    p.e(f"v_add_u32 v{t2}, v{t2}, v{t3}\nv_add_u32 v{vBR}, {Y_RING}, v{t2}")
    for s in range(1, 4): p.e(f"v_xor_b32 v{vBR+s}, {32*s}, v{vBR}")
    curB = [Y_RING]
    curT = [Y_RING + (10 % Y_NSLOT) * Y_SLOT]
    tr_addrs(p, curT[0])
    p.extend(norm_kb(0))
    ACC2 = 112
    TMP = 176
    C0 = 184
    G0 = 204
    E0 = 216
    LM = 224
    LBK = 228
    vAG, vE, vH, vFL, vHS, vSTW, vSTR = 244, 245, 246, 247, 248, 249, 250
    PK = 228
    def sync(j):
        p.wait_vm(('slot', j))
        p.e("s_barrier")
        if j >= 1 and j - 1 + Y_NSLOT < 20: p.extend(dma(j - 1 + Y_NSLOT))
    for j in range(10):
        sync(j)
        base = Y_RING + (j % Y_NSLOT) * Y_SLOT
        if base < curB[0] or base + Y_SLOT - curB[0] > 65536:
            for s in range(4): p.e(f"v_add_u32 v{vBR+s}, {(base - curB[0]) & 0xffffffff}, v{vBR+s}")
            curB[0] = base
        for s in range(4):
            for t in range(5):
                p.e(f"ds_read_b128 {A(BF+(s&1)*20+4*t,4)}, v{vBR+s} offset:{base - curB[0] + 1024*t}")
            for t in range(5):
                c = "0" if (j == 0 and s == 0) else V(ACC1 + 16 * t, 16)
                p.e(f"v_mfma_f32_32x32x16_bf16 {V(ACC1+16*t,16)}, {A(XF+16*j+4*s,4)}, {A(BF+(s&1)*20+4*t,4)}, {c}")
        if j < 9: p.extend(norm_kb(j + 1))
    q = p
    q.e(f"v_and_b32 v{t0}, 31, v{vL}\nv_lshlrev_b32 v{t0}, 5, v{t0}\nv_lshrrev_b32 v{t1}, 5, v0\nv_lshl_add_u32 v{vAG}, v{t1}, 2, v{t0}")
    q.e(f"v_lshlrev_b32 v{vE}, 5, v0")
    for t in range(5): q.e(f"ds_read_b128 {V(C0+4*t,4)}, v{t0} offset:{Y_TBL + 1024*t}")
    q.e(f"ds_read_b128 {V(LM,4)}, v{vE} offset:{Y_TBL+16}")
    for tt in range(1, 16):
        for t in range(5):
            g = (ACC1 + 16 * t) if tt == 1 else (G0 + 2 * t + (tt & 1))
            q.e(f"v_fma_f32 v{G0+2*t+((tt+1)&1)}, v{C0+4*t}, v{g}, v{ACC1+16*t+tt}")
        for t in range(5):
            g = (ACC1 + 16 * t) if tt == 1 else (G0 + 2 * t + (tt & 1))
            q.e(f"v_fmac_f32_dpp v{G0+2*t+((tt+1)&1)}, v{g}, v{C0+4*t+1} {QP}")
    for t in range(5): q.e(f"ds_write_b32 v{vAG}, v{G0+2*t} offset:{Y_AG + 1024*t}", tag='agw')
    q.wait_lgkm('agw')
    def ffn_slot(j):
        base = Y_RING + (j % Y_NSLOT) * Y_SLOT
        if base < curT[0] or base + 16384 - curT[0] > 65536:
            for tau in range(4): p.e(f"v_add_u32 v{vT+tau}, {(base - curT[0]) & 0xffffffff}, v{vT+tau}")
            curT[0] = base
        for s in range(4):
            rd, mf = ffn_kstep(s, 4 * (j - 10) + s, base - curT[0], ACC2, s & 1, j == 10 and s == 0)
            p.extend(rd); p.extend(mf)
    sync(10)
    q.e(f"ds_read_b128 {V(E0,4)}, v{vE} offset:{Y_AG}\nds_read_b128 {V(E0+4,4)}, v{vE} offset:{Y_AG+16}")
    for sg_ in range(1, 8):
        g = E0 if sg_ == 1 else (G0 + (sg_ & 1))
        q.e(f"v_fma_f32 v{G0+((sg_+1)&1)}, v{LM}, v{g}, v{E0+sg_}\nv_fmac_f32_dpp v{G0+((sg_+1)&1)}, v{g}, v{LM+1} {QP}")
    srd(q, S_AG, P_WS, 10240, AGG_OFF)
    q.e(f"s_mul_i32 s{sT0}, s{sI}, 10240\ns_add_u32 s{S_AG}, s{S_AG}, s{sT0}\ns_addc_u32 s{S_AG+1}, s{S_AG+1}, 0")
    srd(q, S_DBG, P_DBG, 256)
    q.e(f"v_lshlrev_b32 v{vFL}, 2, v0\nv_mov_b32 v{t1}, {OOB}\nv_cmp_gt_u32 vcc, 160, v0\nv_cndmask_b32 v{t0}, v{t1}, v{vFL}, vcc")
    q.e(f"s_sub_u32 s{sT0}, 15, s{sMT}\ns_mul_i32 s{sT0}, s{sT0}, 640")
    q.e(f"buffer_store_dword v{G0}, v{t0}, {S(S_AG)}, s{sT0} offen sc1", tag='T')
    q.e(f"s_add_u32 s{sG0}, s{sT0}, 640\ns_add_u32 s{sG1}, s{sG0}, 3840\ns_add_u32 s{sT3}, s{sG1}, 3840")
    ffn_slot(10)
    p.wait_vm('T')
    sync(11)
    q.e(f"v_cmp_eq_u32 vcc, 0, v0\nv_cndmask_b32 v{t0}, v{t1}, v0, vcc\ns_lshl_b32 s{sFM}, 1, s{sMT}\nv_mov_b32 v{t2}, s{sFM}\ns_lshl_b32 s{sT0}, s{sI}, 2")
    q.e(f"buffer_atomic_add v{t2}, v{t0}, {S(S_DBG)}, s{sT0} offen sc1", tag='flag')
    q.e(f"s_sub_u32 s{sFM}, s{sFM}, 1")
    for j in range(11, 16):
        if j > 11: sync(j)
        ffn_slot(j)
    q.wait_all()
    q.e(f"v_mov_b32 v{t0}, 0\ns_mov_b32 s{sT2}, 0x40000")
    q.e("K1_poll:")
    q.e(f"buffer_load_dword v{t1}, v{t0}, {S(S_DBG)}, s{sT0} offen sc1\ns_waitcnt vmcnt(0)")
    q.e(f"v_readfirstlane_b32 s{sT1}, v{t1}\ns_and_b32 s{sT1}, s{sT1}, s{sFM}\ns_cmp_eq_u32 s{sT1}, s{sFM}\ns_cbranch_scc1 K1_polled\ns_sleep 2\ns_sub_u32 s{sT2}, s{sT2}, 1\ns_cmp_lg_u32 s{sT2}, 0\ns_cbranch_scc1 K1_poll")
    q.e("K1_polled:")
    for i in range(15):
        so = (sG0, sG1, sT3)[i // 6]
        q.e(f"buffer_load_dword v{LBK+i}, v{vFL}, {S(S_AG)}, s{so} offen offset:{(i%6)*640} sc1", tag='lbk')
    for k, i in enumerate(range(13, -1, -1)):
        g = (LBK + 14) if k == 0 else (G0 + (k & 1))
        q.e(f"v_fma_f32 v{G0+((k+1)&1)}, v{LM+2}, v{g}, v{LBK+i}\nv_fmac_f32_dpp v{G0+((k+1)&1)}, v{g}, v{LM+3} {QP}")
    q.e(f"v_mov_b32 v{LBK}, v{G0}")
    for sg_ in range(7):
        q.e(f"v_fma_f32 v{LBK+sg_+1}, v{LM}, v{LBK+sg_}, v{E0+sg_}\nv_fmac_f32_dpp v{LBK+sg_+1}, v{LBK+sg_}, v{LM+1} {QP}")
    q.e(f"ds_write_b128 v{vE}, {V(LBK,4)} offset:{Y_AG}\nds_write_b128 v{vE}, {V(LBK+4,4)} offset:{Y_AG+16}", tag='pw')
    q.wait_lgkm('pw')
    sync(16)
    for t in range(5): q.e(f"ds_read_b32 v{G0+t}, v{vAG} offset:{Y_AG + 1024*t}")
    for tt in range(16):
        for t in range(5):
            g = (G0 + t) if tt == 0 else (ACC1 + 16 * t + tt - 1)
            q.e(f"v_fmac_f32 v{ACC1+16*t+tt}, v{C0+4*t}, v{g}")
        for t in range(5):
            g = (G0 + t) if tt == 0 else (ACC1 + 16 * t + tt - 1)
            q.e(f"v_fmac_f32_dpp v{ACC1+16*t+tt}, v{g}, v{C0+4*t+1} {QP}")
    q.e(f"v_and_b32 v{t0}, 1, v{vL}\nv_bfe_u32 v{t1}, v{vL}, 1, 4\nv_lshl_add_u32 v{t1}, v{t0}, 4, v{t1}\nv_lshlrev_b32 v{t1}, 6, v{t1}")
    q.e(f"v_lshrrev_b32 v{t0}, 5, v{vL}\nv_lshl_add_u32 v{t1}, v{t0}, 5, v{t1}\nv_add_u32 v{vSTW}, s{sLB}, v{t1}")
    q.e(f"v_lshrrev_b32 v{t0}, 4, v{vL}\nv_lshlrev_b32 v{t0}, 9, v{t0}\nv_bfe_u32 v{t1}, v{vL}, 2, 2\nv_lshl_add_u32 v{t0}, v{t1}, 6, v{t0}")
    q.e(f"v_and_b32 v{t1}, 3, v{vL}\nv_lshl_add_u32 v{t0}, v{t1}, 3, v{t0}\nv_add_u32 v{vSTR}, s{sLB}, v{t0}\nv_lshlrev_b32 v{vHS}, 4, v{vL}")
    for t in range(5):
        R = ACC1 + 16 * t
        for h2 in range(2):
            for k in range(8): q.e(f"v_mul_f32 v{TMP+k}, v{C0+4*t+2}, v{R+8*h2+k}")
            for k in range(8): q.e(f"v_fmac_f32_dpp v{TMP+k}, v{R+8*h2+k}, v{C0+4*t+3} {QP}")
            for k in range(4): q.e(f"v_cvt_pk_bf16_f32 v{PK+4*h2+k}, v{TMP+2*k}, v{TMP+2*k+1}")
            q.e(f"ds_write_b128 v{vSTW}, {V(PK+4*h2,4)} offset:{(t&1)*2048 + 16*h2}")
        for rt in range(2):
            for tq in range(2):
                q.e(f"ds_read_b64_tr_b16 {V(PK+8+4*rt+2*tq,2)}, v{vSTR} offset:{(t&1)*2048 + rt*32 + tq*256}")
        q.e(f"s_mul_i32 s{sT2}, s{sI}, {5*4096}\ns_add_u32 s{sT2}, s{sT2}, s{sH}\ns_add_u32 s{sT2}, s{sT2}, {t*4096}")
        for rt in range(2):
            q.e(f"buffer_store_dwordx4 {V(PK+8+4*rt,4)}, v{vHS}, {S(S_WS)}, s{sT2} offen offset:{rt*1024}", tag='h')
    vH_addr(p, vH)
    for j in range(16, 20):
        if j > 16: sync(j)
        ffn_slot(j)
    for tau in range(4):
        so = f"s_lshl_b32 s{sT2}, s{sG2}, 13\ns_add_u32 s{sT2}, s{sT2}, s{sH}\ns_add_u32 s{sT2}, s{sT2}, {(40 + (tau>>1))*4096}"
        p.extend(ffn_epi(ACC2 + 16 * tau, TMP, so, (tau & 1) * 512, vH))

def gen_k1(opt):
    p = Prog()
    k1_setup(p)
    p.e(f"s_bitcmp1_b32 s{sSL}, 0\ns_cbranch_scc1 K1_Y")
    head = p.finalize()
    st = {}
    px = Prog(); k1_X(px, opt); px.e("s_endpgm")
    bx = px.finalize(st); print("X:", st, file=sys.stderr)
    py = Prog(); py.e("K1_Y:"); k1_Y(py, opt)
    by = py.finalize(st); print("Y:", st, file=sys.stderr)
    return head + "\n" + bx + "\n" + by + "\nK1_end:"

def gen_k2(opt):
    p = Prog()
    NB = opt.get('nb', 6)
    p.e("s_cmp_ge_u32 s2, 256\ns_cbranch_scc1 K2_end")
    p.e("s_load_dwordx2 s[64:65], s[0:1], 0\ns_load_dwordx2 s[66:67], s[0:1], 64\ns_load_dwordx2 s[68:69], s[0:1], 104\ns_load_dwordx2 s[70:71], s[0:1], 120")
    p.e("v_and_b32 v1, 63, v0\nv_lshrrev_b32 v2, 6, v0\nv_lshlrev_b32 v3, 4, v1")
    p.e("v_readfirstlane_b32 s42, v2")
    p.e("s_and_b32 s44, s2, 1\ns_lshl_b32 s40, s44, 4\ns_and_b32 s44, s2, 2\ns_lshl_b32 s44, s44, 2\ns_add_u32 s40, s40, s44")
    p.e("s_bfe_u32 s44, s2, 0x30003\ns_add_u32 s40, s40, s44")
    p.e("s_and_b32 s41, s2, 4\ns_lshr_b32 s44, s2, 6\ns_add_u32 s41, s41, s44")
    p.e("s_mul_i32 s44, s42, 22\ns_mul_i32 s45, s40, 88\ns_add_u32 s45, s45, s44\ns_lshl_b32 s45, s45, 12")
    p.e(f"s_mul_i32 s46, s41, 88\ns_add_u32 s46, s46, s44\ns_mul_i32 s46, s46, 5120\ns_add_u32 s46, s46, {W2S_OFF}\ns_add_u32 s47, s46, 4096")
    p.e("s_waitcnt lgkmcnt(0)")
    srd(p, 20, 70, WS_USED)
    def loads(k):
        b = (k % NB) * 36
        for rt in range(4):
            p.e(f"buffer_load_dwordx4 {A(b+4*rt,4)}, v3, s[20:23], s45 offen offset:{1024*rt}")
        for ct in range(4):
            p.e(f"buffer_load_dwordx4 {A(b+16+4*ct,4)}, v3, s[20:23], s46 offen offset:{1024*ct}")
        p.e(f"buffer_load_dwordx4 {A(b+32,4)}, v3, s[20:23], s47 offen")
        p.e("s_add_u32 s45, s45, 4096\ns_add_u32 s46, s46, 5120\ns_add_u32 s47, s47, 5120")
    for k in range(NB - 1): loads(k)
    srd(p, 4, 64, 2048 * 1280)
    srd(p, 8, 66, 1280)
    srd(p, 12, 68, 2048 * 2560)
    EX, ED, ES, EO, EL = 110, 120, 130, 140, 145
    p.e("s_mov_b32 s48, 3277\ns_lshl_b32 s49, s40, 6\ns_mul_i32 s50, s41, 160")
    p.e(f"s_mul_i32 s51, s49, 1280\ns_add_u32 s51, s51, s50\ns_lshl_b32 s52, s49, 3\ns_add_u32 s52, s52, {ST_OFF}\ns_lshl_b32 s53, s51, 1")
    ACC = 16
    def epi_loads():
        for u in range(5):
            p.e(f"v_add_u32 v4, {256*u}, v0\nv_mul_lo_u32 v5, v4, s48\nv_lshrrev_b32 v5, 16, v5\nv_mul_u32_u24 v6, 20, v5\nv_sub_u32 v6, v4, v6")
            p.e(f"v_lshlrev_b32 v7, 3, v6\nv_mul_u32_u24 v8, 1280, v5\nv_add_u32 v8, v8, v7\nv_lshlrev_b32 v9, 3, v5")
            p.e(f"buffer_load_dwordx2 {V(EX+2*u,2)}, v8, s[4:7], s51 offen")
            p.e(f"buffer_load_dwordx2 {V(ED+2*u,2)}, v7, s[8:11], s50 offen")
            p.e(f"buffer_load_dwordx2 {V(ES+2*u,2)}, v9, s[20:23], s52 offen")
            p.e(f"v_lshlrev_b32 v{EO+u}, 1, v8\nv_mul_u32_u24 v{EL+u}, 336, v5\nv_lshl_add_u32 v{EL+u}, v6, 4, v{EL+u}")
    for k in range(22):
        if k + NB - 1 < 22: loads(k + NB - 1)
        if k == 22 - NB + 1: epi_loads()
        b = (k % NB) * 36
        for rt in range(4):
            for ct in range(5):
                d = ACC + 4 * (5 * rt + ct)
                c = "0" if k == 0 else V(d, 4)
                p.e(f"v_mfma_f32_16x16x32_bf16 {V(d,4)}, {A(b+16+4*ct,4)}, {A(b+4*rt,4)}, {c}")
    p.e("v_and_b32 v4, 15, v1\nv_mul_u32_u24 v4, 336, v4\nv_lshrrev_b32 v5, 4, v1\nv_lshl_add_u32 v4, v5, 4, v4\ns_mul_i32 s44, s42, 21504\nv_add_u32 v4, s44, v4")
    for rt in range(4):
        for ct in range(5):
            p.e(f"ds_write_b128 v4, {V(ACC+4*(5*rt+ct),4)} offset:{rt*16*336 + ct*64}", tag='pw')
    p.wait_lgkm('pw')
    p.e("s_barrier\ns_mov_b32 s52, 0xffff0000")
    for u in range(5):
        for w in range(4):
            p.e(f"ds_read_b128 {V(ACC+16*u+4*w,4)}, v{EL+u} offset:{w*21504}")
    for u in range(5):
        R = ACC + 16 * u
        for i in range(4): p.e(f"v_add_f32 v{R+i}, v{R+i}, v{R+4+i}\nv_add_f32 v{R+8+i}, v{R+8+i}, v{R+12+i}")
        for i in range(4): p.e(f"v_add_f32 v{R+i}, v{R+i}, v{R+8+i}")
        p.e(f"v_lshlrev_b32 v4, 16, v{EX+2*u}\nv_and_b32 v5, s52, v{EX+2*u}\nv_lshlrev_b32 v6, 16, v{EX+2*u+1}\nv_and_b32 v7, s52, v{EX+2*u+1}")
        p.e(f"v_lshlrev_b32 v8, 16, v{ED+2*u}\nv_and_b32 v9, s52, v{ED+2*u}\nv_lshlrev_b32 v10, 16, v{ED+2*u+1}\nv_and_b32 v11, s52, v{ED+2*u+1}")
        for i in range(4): p.e(f"v_fma_f32 v{12+i}, v{4+i}, v{ES+2*u}, v{ES+2*u+1}")
        p.e("v_cvt_pk_bf16_f32 v12, v12, v13\nv_cvt_pk_bf16_f32 v14, v14, v15")
        p.e("v_and_b32 v13, s52, v12\nv_lshlrev_b32 v12, 16, v12\nv_and_b32 v15, s52, v14\nv_lshlrev_b32 v14, 16, v14")
        for i in range(4): p.e(f"v_mul_f32 v{12+i}, v{12+i}, v{8+i}")
        p.e("v_cvt_pk_bf16_f32 v12, v12, v13\nv_cvt_pk_bf16_f32 v14, v14, v15")
        p.e("v_and_b32 v13, s52, v12\nv_lshlrev_b32 v12, 16, v12\nv_and_b32 v15, s52, v14\nv_lshlrev_b32 v14, 16, v14")
        for i in range(4): p.e(f"v_add_f32 v{R+i}, v{R+i}, v{12+i}")
        for i in range(4): p.e(f"v_add_f32 v{R+i}, v{R+i}, v{4+i}")
        p.e(f"buffer_store_dwordx4 {V(R,4)}, v{EO+u}, s[12:15], s53 offen")
    st = {}
    body = p.finalize(st); print("K2:", st, file=sys.stderr)
    return body + "\nK2_end:"

HEADER = open('parallel_sum__ssm_conv_s5__glu_gated_swiglu__prompt.s.ref').read().split('; Override launch')[0]

def build(opt):
    ks = [("k1_kernel", 256, 256, 163840, gen_k1(opt), 512, 256),
          ("k2_kernel", 256, 256, 86016, gen_k2(opt), 512, 256)]
    for i in range(opt.get('empties', 0)):
        ks.append(("e_kernel", 256, 256, 0, "", 8, 8))
    return HEADER + wrap(ks)

if __name__ == '__main__':
    out = sys.argv[1]
    opt = {}
    for a in sys.argv[2:]:
        k, v = a.split('='); opt[k] = int(v)
    open(out, 'w').write(build(opt))
```

```python
import re

REG_RE = re.compile(r'(?<![\w.])([vas])(?:\[(\d+):(\d+)\]|(\d+))(?![\w])')

def regs_of(tok):
    out = []
    for m in REG_RE.finditer(tok):
        k = m.group(1)
        if m.group(2) is not None:
            out += [(k, i) for i in range(int(m.group(2)), int(m.group(3)) + 1)]
        else:
            out.append((k, int(m.group(4))))
    if re.search(r'\bvcc\b', tok): out += [('x', 'vcc')]
    if re.search(r'\bexec\b', tok): out += [('x', 'exec')]
    if re.search(r'\bm0\b', tok): out += [('x', 'm0')]
    return out

TRANS = ('v_exp_f32', 'v_log_f32', 'v_rcp_f32', 'v_rsq_f32', 'v_sqrt_f32', 'v_sin_f32', 'v_cos_f32')
RMW = ('v_fmac_f32', 'v_dot2c_f32_bf16', 'v_fmac_f32_dpp', 'v_writelane_b32', 'v_fmac_f32_e32', 'v_add_f32_dpp_rmw')

class I:
    __slots__ = ('text', 'op', 'kind', 'defs', 'uses', 'tag', 'dpp', 'passes', 'srcc', 'ab', 'wide', 'raw', 'dsrc')
    def __init__(self, text, tag=None):
        self.text = text.strip(); self.tag = tag; self.raw = False
        t = self.text.split(';')[0].strip()
        parts = t.split(None, 1)
        self.op = op = parts[0]
        rest = parts[1] if len(parts) > 1 else ''
        ops = [o.strip() for o in re.split(r',(?![^\[]*\])', rest)] if rest else []
        self.dpp = ('quad_perm' in t or 'row_' in t or 'wave_' in t)
        self.passes = 0; self.srcc = set(); self.ab = set(); self.wide = False
        defs, uses = [], []
        if op.endswith(':'):
            self.kind = 'label'
        elif op.startswith('v_mfma'):
            self.kind = 'mfma'
            defs = regs_of(ops[0]); uses = regs_of(ops[1]) + regs_of(ops[2]) + regs_of(ops[3])
            self.srcc = set(regs_of(ops[3])); self.ab = set(regs_of(ops[1]) + regs_of(ops[2]))
            self.passes = 8 if '32x32x16' in op else 4
        elif op.startswith('v_'):
            self.kind = 'trans' if op.replace('_e32', '').replace('_e64', '') in TRANS else 'valu'
            defs = regs_of(ops[0])
            k = 1
            if op.startswith(('v_add_co', 'v_sub_co', 'v_addc_co', 'v_subb_co', 'v_div_scale', 'v_mad_u64')):
                defs += regs_of(ops[1]); k = 2
            for o in ops[k:]: uses += regs_of(o)
            base = op.replace('_e32', '').replace('_e64', '').replace('_dpp', '')
            if base in RMW or op.startswith('v_permlane'):
                uses += regs_of(ops[0])
            if op.startswith('v_permlane') and 'swap' in op:
                defs += regs_of(ops[1])
            if op.startswith('v_cmpx'): defs += [('x', 'exec')]
            if op.startswith('v_cndmask') and len(ops) == 3: uses += [('x', 'vcc')]
            if self.dpp and ('row_shr' in t or 'row_shl' in t or 'bcast' in t) : uses += regs_of(ops[0])
        elif op.startswith('ds_read') or op.startswith('ds_bpermute') or op.startswith('ds_swizzle'):
            self.kind = 'ds'
            defs = regs_of(ops[0])
            for o in ops[1:]: uses += regs_of(o)
        elif op.startswith('ds_'):
            self.kind = 'ds'
            for o in ops: uses += regs_of(o)
        elif op.startswith('buffer_load') or op.startswith('global_load'):
            self.kind = 'vm'
            if re.search(r'\blds\b', t) or '_lds_' in op:
                for o in ops: uses += regs_of(o)
                uses += [('x', 'm0')]
            else:
                defs = regs_of(ops[0])
                for o in ops[1:]: uses += regs_of(o)
        elif op.startswith('buffer_store') or op.startswith('global_store') or op.startswith('buffer_atomic') or op.startswith('global_atomic'):
            self.kind = 'vm'
            for o in ops: uses += regs_of(o)
            self.wide = ('x4' in op or 'x3' in op)
            if 'atomic' in op and re.search(r'\bsc0\b', t): defs = regs_of(ops[0])
        elif op.startswith('buffer_') :
            self.kind = 'vm'
        elif op.startswith('s_load') or op.startswith('s_buffer_load') or op in ('s_memtime', 's_memrealtime'):
            self.kind = 'smem'
            defs = regs_of(ops[0])
            for o in ops[1:]: uses += regs_of(o)
        elif op in ('s_waitcnt', 's_barrier', 's_nop', 's_endpgm', 's_setprio', 's_sleep') or op.startswith('s_branch') or op.startswith('s_cbranch'):
            self.kind = 'ctl'
            if 'vcc' in op: uses = [('x', 'vcc')]
            if 'exec' in op: uses = [('x', 'exec')]
        elif op.startswith('s_cmp') or op.startswith('s_bitcmp'):
            self.kind = 'salu'
            for o in ops: uses += regs_of(o)
        elif op.startswith('s_'):
            self.kind = 'salu'
            defs = regs_of(ops[0])
            for o in ops[1:]: uses += regs_of(o)
            if 'saveexec' in op: defs += [('x', 'exec')]; uses += [('x', 'exec')]
        elif op.startswith('.'):
            self.kind = 'dir'
        else:
            raise ValueError('unknown instr: ' + text)
        self.defs = set(defs); self.uses = set(uses)
        self.dsrc = set(regs_of(ops[1])) if (self.dpp and len(ops) > 1) else set()

class Marker:
    def __init__(self, what, arg=None): self.what = what; self.arg = arg

class Prog:
    lgk_guard = 10
    def __init__(self):
        self.items = []
    def e(self, text, tag=None):
        for line in text.split('\n'):
            if line.strip(): self.items.append(I(line, tag))
    def add(self, it): self.items.append(it)
    def extend(self, its): self.items += its
    def wait_vm(self, tag): self.items.append(Marker('vm', tag))
    def wait_lgkm(self, tag): self.items.append(Marker('lgkm', tag))
    def wait_all(self): self.items.append(Marker('all'))
    def forget(self): self.items.append(Marker('forget'))

    def finalize(self, stats=None):
        out = []
        vm = []
        lg = []
        nwait = nnop = 0
        def emit_wait(vmn=None, lgn=None):
            nonlocal vm, lg, nwait
            s = 's_waitcnt'
            if vmn is not None:
                vmn = min(vmn, 62); s += f' vmcnt({vmn})'; vm = vm[len(vm) - vmn:] if vmn else []
            if lgn is not None:
                if any(x.kind == 'smem' for x in lg): lgn = 0
                lgn = min(lgn, 14); s += f' lgkmcnt({lgn})'; lg = lg[len(lg) - lgn:] if lgn else []
            out.append(I(s)); nwait += 1
        def dist_back(pred, maxd):
            d = 0
            for x in reversed(out):
                if x.kind in ('label', 'dir'): continue
                if pred(x): return d
                d += (int(x.text.split()[1]) + 1) if x.op == 's_nop' else 1
                if d >= maxd: return None
            return None
        for it in self.items:
            if isinstance(it, Marker):
                if it.what == 'vm':
                    tags = it.arg if isinstance(it.arg, (list, set)) else [it.arg]
                    idx = [i for i, x in enumerate(vm) if x.tag in tags]
                    if idx: emit_wait(vmn=len(vm) - 1 - idx[-1])
                elif it.what == 'lgkm':
                    tags = it.arg if isinstance(it.arg, (list, set)) else [it.arg]
                    idx = [i for i, x in enumerate(lg) if x.tag in tags]
                    if idx: emit_wait(lgn=len(lg) - 1 - idx[-1])
                elif it.what == 'all':
                    emit_wait(0, 0)
                elif it.what == 'assume_vm':
                    vm = list(it.arg) + vm
                elif it.what == 'forget':
                    vm = []; lg = []
                continue
            x = it
            if x.kind in ('label', 'dir'):
                out.append(x); continue
            if x.op == 's_waitcnt':
                m = re.search(r'vmcnt\((\d+)\)', x.text)
                if m:
                    n = int(m.group(1)); vm = vm[len(vm) - n:] if n and n < len(vm) else (vm if n else [])
                m = re.search(r'lgkmcnt\((\d+)\)', x.text)
                if m:
                    n = int(m.group(1)); lg = lg[len(lg) - n:] if n and n < len(lg) else (lg if n else [])
                out.append(x); continue
            touch = x.uses | x.defs
            vi = [i for i, y in enumerate(vm) if y.defs & touch]
            li = [i for i, y in enumerate(lg) if y.defs & touch]
            if vi or li:
                emit_wait(len(vm) - 1 - vi[-1] if vi else None, len(lg) - 1 - li[-1] if li else None)
            if x.kind in ('ds', 'smem') and len(lg) >= 15: emit_wait(lgn=self.lgk_guard)
            if x.kind == 'vm' and len(vm) >= 63: emit_wait(vmn=59)
            need = 0
            def req(pred, n):
                nonlocal need
                d = dist_back(pred, n)
                if d is not None: need = max(need, n - d)
            vuses = {r for r in x.uses if r[0] in 'va'}
            vdefs = {r for r in x.defs if r[0] in 'va'}
            suses = {r for r in x.uses if r[0] == 's' or r == ('x', 'vcc')}
            isvalu = lambda y: y.kind in ('valu', 'trans')
            if x.kind == 'mfma':
                req(lambda y: isvalu(y) and (y.defs & x.uses), 2)
                req(lambda y: isvalu(y) and ('x', 'exec') in y.defs, 4)
                for p, n in ((8, 12), (4, 8)):
                    req(lambda y: y.kind == 'mfma' and y.passes == p and (y.defs & x.ab), n)
                for p, n in ((8, 10), (4, 6)):
                    req(lambda y: y.kind == 'mfma' and y.passes == p and (y.defs & x.srcc) and not (y.defs == x.srcc and y.passes == x.passes), n)
                    req(lambda y: y.kind == 'mfma' and y.passes == p and (y.defs & x.defs) and not (y.defs == x.srcc), n + 2)
            else:
                if vuses or vdefs:
                    for p, n in ((8, 12), (4, 8)):
                        req(lambda y: y.kind == 'mfma' and y.passes == p and (y.defs & (vuses | vdefs)), n)
                if x.kind in ('valu', 'trans', 'ds', 'vm') and vdefs:
                    for p, n in ((8, 7), (4, 3)):
                        req(lambda y: y.kind == 'mfma' and y.passes == p and (y.srcc & vdefs), n)
            if x.kind in ('valu', 'trans'):
                if x.kind == 'valu' or True:
                    req(lambda y: y.kind == 'trans' and (y.defs & x.uses), 1)
                if x.dpp:
                    req(lambda y: isvalu(y) and (y.defs & x.dsrc), 2)
                    req(lambda y: isvalu(y) and ('x', 'exec') in y.defs, 5)
                if x.op.startswith(('v_readfirstlane', 'v_readlane')):
                    req(lambda y: isvalu(y) and (y.defs & vuses), 1)
                if x.op.startswith(('v_readlane', 'v_writelane')):
                    req(lambda y: isvalu(y) and (y.defs & suses), 4)
                if x.op.startswith('v_permlane'):
                    req(lambda y: isvalu(y) and (y.defs & vuses), 2)
                if suses:
                    req(lambda y: isvalu(y) and (y.defs & suses), 2)
                if x.op.startswith('v_div_fmas'):
                    req(lambda y: isvalu(y) and ('x', 'vcc') in y.defs, 4)
                if vdefs:
                    req(lambda y: y.kind == 'vm' and y.wide and (y.uses & vdefs), 2)
            if x.kind in ('ds', 'vm') and vdefs:
                req(lambda y: y.kind == 'vm' and y.wide and (y.uses & vdefs), 1)
            if x.kind == 'vm':
                req(lambda y: isvalu(y) and (y.defs & {r for r in x.uses if r[0] == 's'}), 5)
                if ('x', 'm0') in x.uses:
                    req(lambda y: y.kind == 'salu' and ('x', 'm0') in y.defs, 1)
            if x.kind in ('salu', 'smem', 'ctl'):
                su = {r for r in x.uses if r[0] == 's' or r == ('x', 'vcc')}
                if su: req(lambda y: isvalu(y) and (y.defs & su), 4)
            while need > 0:
                n = min(need, 16)
                out.append(I(f's_nop {n-1}')); nnop += 1; need -= n
            out.append(x)
            if x.kind == 'vm': vm.append(x)
            elif x.kind in ('ds', 'smem'): lg.append(x)
        if stats is not None:
            stats['n'] = len([x for x in out if x.kind not in ('label', 'dir')]); stats['waits'] = nwait; stats['nops'] = nnop
        return '\n'.join(('' if x.kind == 'label' else '  ') + x.text for x in out)
```

```python
from asmgen import I, Marker, Prog
class Gate:
    def __init__(self, k): self.k = k
class Deadline:
    def __init__(self, k): self.k = k

class Group:
    def __init__(self, its): self.its = its
def autogroup(side):
    out = []; i = 0
    rd = lambda x: isinstance(x, I) and x.op.startswith(('s_cselect', 's_addc', 's_subb', 's_cbranch_scc'))
    while i < len(side):
        x = side[i]
        if isinstance(x, I) and x.kind == 'salu' and i + 1 < len(side) and rd(side[i + 1]):
            j = i + 1
            while j < len(side) and rd(side[j]): j += 1
            out.append(Group(side[i:j])); i = j
        elif isinstance(x, I) and x.op.startswith('s_cbranch'):
            assert side[i + 1].kind == 'label'
            out.append(Group(side[i:i + 2])); i += 2
        elif isinstance(x, I) and ('x', 'm0') in x.defs:
            j = i + 1
            while not (isinstance(side[j], I) and side[j].kind == 'vm'): j += 1
            out.append(Group(side[i:j + 1])); i = j + 1
        else:
            out.append(x); i += 1
    return out
def cost(it):
    if isinstance(it, Group): return sum(cost(x) for x in it.its)
    if isinstance(it, (Gate, Deadline)): return 0
    if isinstance(it, Marker): return 0.5
    if it.kind == 'trans': return 2
    if it.kind in ('label', 'dir'): return 0
    return 1

def weave(p, steps, side, base_rate=0.0, tail_flush=True):
    side = autogroup(list(side))
    def put(it):
        if isinstance(it, Group): p.extend(it.its)
        else: p.add(it)
    ngap = [len(s['mf']) for s in steps]
    pos = 0
    credit = 0.0
    def flush_until_deadline(k):
        nonlocal pos
        last = -1
        for i in range(pos, len(side)):
            if isinstance(side[i], Deadline) and side[i].k <= k: last = i
        while pos <= last:
            it = side[pos]; pos += 1
            if isinstance(it, Gate):
                assert it.k <= k, f"gate {it.k} before deadline {k}"
            if not isinstance(it, (Gate, Deadline)): put(it)
    for si, s in enumerate(steps):
        flush_until_deadline(si)
        p.extend(s.get('pre', []))
        for gi, m in enumerate(s['mf']):
            p.add(m)
            p.extend(s['rd'][gi] if gi < len(s.get('rd', [])) else [])
            rate = base_rate
            acc = 0.0
            gaps_left = lambda k: (ngap[si] - gi) + sum(ngap[si + 1:k])
            blocked_at = None
            for i in range(pos, len(side)):
                it = side[i]
                if isinstance(it, Deadline):
                    g = gaps_left(min(it.k, len(steps)))
                    if g > 0: rate = max(rate, acc / g)
                acc += cost(it)
            g = gaps_left(len(steps))
            rate = max(rate, min(acc / g, 1e9) if tail_flush == 'even' else 0)
            credit = min(credit + rate, rate + 2)
            while pos < len(side) and credit >= 0.5:
                it = side[pos]
                if isinstance(it, Gate):
                    if it.k > si: credit = 0; break
                    pos += 1; continue
                if isinstance(it, Deadline): pos += 1; continue
                put(it); credit -= cost(it); pos += 1
    rest = [it for it in side[pos:] if not isinstance(it, (Gate, Deadline))]
    if tail_flush:
        for it in rest: put(it)
        return []
    return rest
```

```python
import sys, struct
from asmgen import Prog, I, Marker
from sched import weave, Gate, Deadline
from common import kd

NAME = "parallel_sum__ssm_conv_s5__glu_gated_swiglu__prompt"
H_OFF = 0
W2S_OFF = 32 * 88 * 4096
ST_OFF = W2S_OFF + 8 * 88 * 5120
AGG_OFF = ST_OFF + 32768
CS_OFF = AGG_OFF + 8 * 32 * 1280
HF_OFF = CS_OFF + 32 * 12800
WF_OFF = HF_OFF + 256 * 64
WS_USED = WF_OFF + 512
TS_OFF = 16 << 20
LOG2E, NLOG2E, INV2PI, OOB = 0x3fb8aa3b, 0xbfb8aa3b, 0x3e22f983, 0x7f000000
def f2u(x): return struct.unpack('<I', struct.pack('<f', x))[0]

S_X, S_W1, S_W3, S_B, S_WS, S_J0, S_J1, S_DBG, S_AG = 4, 8, 12, 16, 20, 24, 28, 32, 36
sMT, sSL, sW, sI, sT0, sT1, sT2, sT3 = 40, 41, 42, 43, 44, 45, 46, 47
sXR = 48
sMASK, sFL, sLB, sD0, sD1, sH, sLBS, sBT = 52, 53, 54, 55, 56, 57, 58, 59
P_X, P_LRE, P_LIM, P_BRE, P_BIM, P_CRE, P_CIM, P_LDT, P_D, P_BX, P_W1, P_W3, P_W2, P_OUT, P_DBG, P_WS = [64 + 2 * i for i in range(16)]
sKX, sKB, sDB, sROT, sU0, sU1 = 96, 97, 98, 99, 100, 101
sSP = 3
sU2, sU3 = 82, 83
sN = 92

def S(d): return f"s[{d}:{d+3}]"
def V(a, n=1): return f"v[{a}:{a+n-1}]" if n > 1 else f"v{a}"
def A(a, n=1): return f"a[{a}:{a+n-1}]" if n > 1 else f"a{a}"
QP = "quad_perm:[1,0,3,2] row_mask:0xf bank_mask:0xf"
def items(f, *a):
    q = Prog(); f(q, *a); return q.items
def code(text, tag=None):
    q = Prog(); q.e(text, tag); return q.items

def srd(p, d, ptr, nrec, add=0):
    if add == 0: p.e(f"s_mov_b32 s{d}, s{ptr}\ns_mov_b32 s{d+1}, s{ptr+1}")
    elif add > 0: p.e(f"s_add_u32 s{d}, s{ptr}, {add}\ns_addc_u32 s{d+1}, s{ptr+1}, 0")
    else: p.e(f"s_sub_u32 s{d}, s{ptr}, {-add}\ns_subb_u32 s{d+1}, s{ptr+1}, 0")
    p.e(f"s_mov_b32 s{d+2}, {nrec}\ns_mov_b32 s{d+3}, 0x20000")

class Stamper:
    def __init__(self, on): self.on = on; self.n = 0
    def it(self, real=False):
        if not self.on: return []
        n = self.n; self.n += 1
        return code(f"{'s_memrealtime' if real else 's_memtime'} s[0:1]\ns_waitcnt lgkmcnt(0)\nv_writelane_b32 v215, s0, {n}")
    def __call__(self, p, real=False): p.extend(self.it(real))
    def dump(self, p):
        if not self.on: return
        p.wait_all()
        srd(p, 4, P_WS, TS_OFF + (1 << 20))
        p.e(f"v_lshlrev_b32 v3, 2, v1\ns_lshl_b32 s3, s2, 2\ns_add_u32 s3, s3, s{sW}\ns_lshl_b32 s3, s3, 8\ns_add_u32 s3, s3, {TS_OFF}")
        p.e("buffer_store_dword v215, v3, s[4:7], s3 offen")

class LazyStamp:
    def __init__(self, ts): self.ts = ts
def resolve(steps):
    for st in steps:
        out = []
        for it in st['pre']:
            out += it.ts.it() if isinstance(it, LazyStamp) else [it]
        st['pre'] = out
vL = 1
vXD, vXC = 2, 4
vSR = 6
vD, vDS, vDC = 10, 12, 13
vBR, vT, vTW, vH = 14, 18, 22, 23
vONE, vEX = 24, 28
vTMP = 32
ACC1, ACC2, CSA, TMP = 40, 120, 184, 200
vFZ, vPA, vPV, vPT, vC1, vC2, vL16, vZ = 208, 209, 39, 211, 212, 213, 38, 210
RT = 216
C0 = 232
XF, BF, EXTW, CSF = 0, 160, 220, 240
t0, t1, t2, t3, t4, t5 = range(vTMP, vTMP + 6)

XS = 0
X_JOB, X_RING, X_NS, X_SLOT = 49152, 65536, 6, 16384
Y_TBL, Y_RING, Y_NS, Y_SLOT = 49152, 57344, 5, 20480
EXT_L = XS + 16384
AG_L = XS
HT_L = XS + 32768

class Ctx:
    def __init__(self, typ, opt):
        self.typ = typ; self.opt = opt; self.slow = []; self.npoll = 0
        self.ts = Stamper(opt.get('ts'))

def bf16r(p, v): p.e(f"v_cvt_pk_bf16_f32 v{v}, v{v}, v{v}\nv_and_b32 v{v}, s{sMASK}, v{v}")

def retry(c, loads, check):
    k = c.npoll; c.npoll += 1
    L = f"{c.typ}_poll{k}"
    q = Prog()
    q.e(f"{L}_slow:\ns_mov_b32 s{sSP}, 0x40000\n{L}_lp:\ns_sleep 2")
    q.e(loads + "\ns_waitcnt vmcnt(0)\n" + check)
    q.e(f"s_cbranch_vccz {L}_ret\ns_sub_u32 s{sSP}, s{sSP}, 1\ns_cmp_lg_u32 s{sSP}, 0\ns_cbranch_scc1 {L}_lp\ns_branch {L}_ret")
    c.slow.append(q.finalize())
    return code(check + f"\ns_cbranch_vccnz {L}_slow\n{L}_ret:")
def tagcheck(regs):
    t = f"v_xor_b32 v{vPV}, s{sN}, v{regs[0]}\n"
    for r in regs[1:]: t += f"v_bitop3_b32 v{vPV}, v{vPV}, v{r}, s{sN} bitop3:0xf6\n"
    return t + f"v_cmp_ne_u32 vcc, 0, v{vPV}"
NONCE_LD = lambda: f"buffer_load_dword v{vPT}, v{vZ}, {S(S_DBG)}, 0 offen sc1"
def nonce_get(c):
    return retry(c, NONCE_LD(), f"v_cmp_eq_u32 vcc, 0, v{vPT}") + code(f"v_readfirstlane_b32 s{sN}, v{vPT}")
def flag(soff):
    return code(f"buffer_store_dword v{vPT}, v{vFZ}, {S(S_WS)}, {soff} offen sc1", 'flag')

def nextkb(s, unit):
    return f"s_add_u32 s{s}, s{s}, {unit}\ns_cmp_eq_u32 s{s}, {10*unit}\ns_cselect_b32 s{s}, 0, s{s}"

def setup(p, opt):
    p.e("s_cmp_ge_u32 s2, 256\ns_cbranch_scc1 K_end")
    p.e("s_load_dwordx16 s[64:79], s[0:1], 0\ns_load_dwordx16 s[80:95], s[0:1], 64")
    p.e(f"v_and_b32 v{vL}, 63, v0\nv_lshrrev_b32 v{t0}, 6, v0\nv_lshlrev_b32 v{vL16}, 4, v{vL}")
    p.e(f"v_readfirstlane_b32 s{sW}, v{t0}")
    p.e(f"s_and_b32 s{sMT}, s2, 3\ns_lshl_b32 s{sMT}, s{sMT}, 2\ns_bfe_u32 s{sT0}, s2, 0x20003\ns_add_u32 s{sMT}, s{sMT}, s{sT0}")
    p.e(f"s_and_b32 s{sSL}, s2, 4\ns_lshl_b32 s{sSL}, s{sSL}, 1\ns_lshr_b32 s{sT0}, s2, 5\ns_add_u32 s{sSL}, s{sSL}, s{sT0}\ns_lshr_b32 s{sI}, s{sSL}, 1")
    p.e(f"s_add_u32 s{sROT}, s{sMT}, s{sT0}\ns_cmp_ge_u32 s{sROT}, 10\ns_cselect_b32 s{sT1}, 10, 0\ns_sub_u32 s{sROT}, s{sROT}, s{sT1}")
    p.e(f"s_cmp_ge_u32 s{sROT}, 10\ns_cselect_b32 s{sT1}, 10, 0\ns_sub_u32 s{sROT}, s{sROT}, s{sT1}")
    p.e(f"s_lshl_b32 s{sKX}, s{sROT}, 7\ns_mov_b32 s{sKB}, s{sROT}\ns_mov_b32 s{sMASK}, 0xffff0000")
    p.e(f"s_lshl_b32 s{sFL}, s{sMT}, 4\ns_add_u32 s{sFL}, s{sFL}, s{sSL}\ns_lshl_b32 s{sFL}, s{sFL}, 6\ns_add_u32 s{sFL}, s{sFL}, {HF_OFF}")
    p.e(f"s_lshl_b32 s{sT0}, s{sMT}, 7\ns_lshl_b32 s{sT1}, s{sW}, 5\ns_add_u32 s{sT1}, s{sT0}, s{sT1}\ns_mul_i32 s{sXR}, s{sT1}, 1280")
    for i in range(1, 4): p.e(f"s_add_u32 s{sXR+i}, s{sXR}, {(8*1280-1024)*i}")
    p.e(f"s_lshl_b32 s{sLB}, s{sW}, 12")
    p.e(f"s_lshl_b32 s{sT1}, s{sSL}, 3\ns_add_u32 s{sT0}, s{sT0}, s{sT1}\ns_lshl_b32 s{sT1}, s{sW}, 1\ns_add_u32 s{sT0}, s{sT0}, s{sT1}")
    p.e(f"s_mul_i32 s{sU0}, s{sT0}, 1280\ns_lshl_b32 s{sU1}, s{sT0}, 4\ns_add_u32 s{sU1}, s{sU1}, {ST_OFF}")
    p.e(f"v_lshrrev_b32 v{t0}, 3, v{vL}\nv_and_b32 v{t1}, 7, v{vL}")
    p.e(f"v_lshrrev_b32 v{t2}, 5, v{vL}\nv_mul_u32_u24 v{t2}, 1280, v{t2}\nv_and_b32 v{t3}, 31, v{vL}\nv_lshl_add_u32 v{t4}, v{t3}, 3, v{t2}")
    p.e(f"v_lshrrev_b32 v{t2}, 4, v{vL}\nv_xor_b32 v{t2}, v{t1}, v{t2}\nv_lshlrev_b32 v{t2}, 4, v{t2}\nv_mul_u32_u24 v{t3}, 1280, v{t0}")
    p.e(f"v_add_u32 v{vXD}, v{t2}, v{t3}\nv_xor_b32 v{vXD+1}, 64, v{vXD}")
    p.e(f"v_mov_b32 v{vZ}, 0\nv_mov_b32 v{t2}, {OOB}\nv_cmp_eq_u32 vcc, 0, v0\nv_cndmask_b32 v{vFZ}, v{t2}, v0, vcc")
    p.e("s_cmp_lg_u32 s2, 0\ns_cbranch_scc1 K_nz\ns_memrealtime s[4:5]\nK_nz:")
    p.e("s_waitcnt lgkmcnt(0)")
    srd(p, S_DBG, P_DBG, 256)
    p.e(f"s_cmp_lg_u32 s2, 0\ns_cbranch_scc1 K_nz2\ns_or_b32 s4, s4, 1\nv_mov_b32 v{vPT}, s4\nbuffer_store_dword v{vPT}, v{vFZ}, {S(S_DBG)}, 0 offen sc1\ns_waitcnt vmcnt(0)\nK_nz2:")
    p.forget()
    srd(p, S_X, P_X, 2048 * 1280)
    for i in range(5):
        p.e(f"buffer_load_dwordx2 {V(TMP-16+2*i,2)}, v{t4}, {S(S_X)}, s{sU0} offen offset:{256*i}", tag='sx')

def x_dma(j):
    q = Prog()
    q.wait_lgkm(('xr', j - 3))
    q.e(f"v_add_u32 v{vXC}, s{sKX}, v{vXD}\nv_add_u32 v{vXC+1}, s{sKX}, v{vXD+1}\ns_add_u32 m0, s{sLB}, {XS + (j % 3) * 16384}")
    for i in range(4):
        q.e(f"buffer_load_dwordx4 v{vXC+(i&1)}, {S(S_X)}, s{sXR+i} offen offset:{1024*i} lds", tag=('x', j))
    q.e(nextkb(sKX, 128))
    return q.items
def x_read(j):
    q = Prog(); q.wait_vm(('x', j))
    for s in range(4): q.e(f"ds_read_b128 {A(XF+16*j+4*s,4)}, v{vSR+s} offset:{(j % 3) * 16384}", ('xr', j))
    return q.items

def ffn_dma(base, j):
    q = Prog()
    q.e(f"s_mul_i32 s{sD0}, s{sKB}, {64*3072}\ns_add_u32 s{sD0}, s{sD0}, s{sDB}\ns_add_u32 s{sD1}, s{sD0}, {8*3072-2048}\ns_add_u32 m0, s{sLB}, {base}")
    q.e(f"buffer_load_dwordx4 v{vD}, {S(S_W1)}, s{sD0} offen lds", tag=('slot', j))
    q.e(f"buffer_load_dwordx4 v{vD+1}, {S(S_W3)}, s{sD0} offen offset:1024 lds", tag=('slot', j))
    q.e(f"buffer_load_dwordx4 v{vD}, {S(S_W1)}, s{sD1} offen offset:2048 lds", tag=('slot', j))
    q.e(f"buffer_load_dwordx4 v{vD+1}, {S(S_W3)}, s{sD1} offen offset:3072 lds", tag=('slot', j))
    q.e(nextkb(sKB, 1))
    return q.items
def ssm_dma(base, j):
    q = Prog()
    q.e(f"s_lshl_b32 s{sD0}, s{sKB}, 7\nv_add_u32 v{vDC}, s{sD0}, v{vDS}\ns_add_u32 m0, s{sLBS}, {base}")
    for t in range(4):
        q.e(f"buffer_load_dwordx4 v{vDC}, {S(S_B)}, s{sBT+t} offen offset:{1024*t} lds", tag=('slot', j))
    q.e(f"s_add_u32 m0, s{sLBS}, {base + 4096}")
    q.e(f"buffer_load_dwordx4 v{vDC}, {S(S_B)}, s{sBT+4} offen lds", tag=('slot', j))
    q.e(nextkb(sKB, 1))
    return q.items

def ffn_dma_addr(p):
    p.e(f"v_bfe_u32 v{t2}, v{vL}, 4, 1\nv_lshlrev_b32 v{t2}, 1, v{t2}\nv_xor_b32 v{t2}, v{t1}, v{t2}\nv_lshlrev_b32 v{t2}, 4, v{t2}")
    p.e(f"v_mul_u32_u24 v{t3}, 3072, v{t0}\nv_add_u32 v{vD}, v{t2}, v{t3}\nv_xor_b32 v{vD+1}, 64, v{vD}")
    srd(p, S_W1, P_W1, 640 * 3072)
    srd(p, S_W3, P_W3, 640 * 3072 + 1024, -1024)

def common_addr(p):
    p.e(f"v_bfe_u32 v{t2}, v{vL}, 2, 1\nv_lshlrev_b32 v{t2}, 4, v{t2}\nv_bfe_u32 v{t3}, v{vL}, 3, 2\nv_lshl_add_u32 v{t2}, v{t3}, 2, v{t2}")
    p.e(f"v_and_b32 v{t3}, 3, v{vL}\nv_add_u32 v{t2}, v{t2}, v{t3}\nv_lshlrev_b32 v{vC1}, 4, v{t2}")
    p.e(f"v_bfe_u32 v{t3}, v{t2}, 1, 3\nv_lshrrev_b32 v{vSR}, 5, v{vL}\nv_xor_b32 v{t3}, v{t3}, v{vSR}\nv_lshlrev_b32 v{t3}, 4, v{t3}")
    p.e(f"v_lshl_add_u32 v{t3}, v{t2}, 7, v{t3}\nv_add_u32 v{vSR}, s{sLB}, v{t3}")
    for s in range(1, 4): p.e(f"v_xor_b32 v{vSR+s}, {32*s}, v{vSR}")
    p.e(f"v_bfe_u32 v{t2}, v{vL}, 2, 1\nv_lshlrev_b32 v{t2}, 10, v{t2}\nv_bfe_u32 v{t3}, v{vL}, 3, 3\nv_lshl_add_u32 v{t2}, v{t3}, 6, v{t2}")
    p.e(f"v_and_b32 v{t3}, 3, v{vL}\nv_lshl_add_u32 v{vH}, v{t3}, 4, v{t2}")
    for i in range(4): p.e(f"v_mov_b32 v{vONE+i}, 0x3f803f80")
    srd(p, S_WS, P_WS, WS_USED)
    p.e(f"s_lshl_b32 s{sT0}, s{sMT}, 1\ns_lshr_b32 s{sT1}, s{sW}, 1\ns_add_u32 s{sT0}, s{sT0}, s{sT1}\ns_mul_i32 s{sT0}, s{sT0}, 88")
    p.e(f"s_lshr_b32 s{sT1}, s{sI}, 1\ns_mul_i32 s{sT1}, s{sT1}, 22\ns_add_u32 s{sT0}, s{sT0}, s{sT1}\ns_lshl_b32 s{sH}, s{sT0}, 12")
    p.e(f"s_and_b32 s{sT1}, s{sW}, 1\ns_lshl_b32 s{sT1}, s{sT1}, 11\ns_add_u32 s{sH}, s{sH}, s{sT1}")

def tr_addrs(p, base):
    p.e(f"v_bfe_u32 v{t0}, v{vL}, 4, 1\nv_lshrrev_b32 v{t1}, 5, v{vL}\nv_lshlrev_b32 v{t1}, 11, v{t1}\nv_lshl_add_u32 v{t1}, v{t0}, 10, v{t1}")
    p.e(f"v_bfe_u32 v{t2}, v{vL}, 2, 2\nv_lshl_add_u32 v{t1}, v{t2}, 7, v{t1}\nv_and_b32 v{t3}, 3, v{vL}\nv_lshl_add_u32 v{t1}, v{t3}, 3, v{t1}")
    p.e(f"v_bfe_u32 v{t2}, v{vL}, 3, 1\nv_lshl_add_u32 v{t2}, v{t0}, 1, v{t2}\nv_lshl_add_u32 v{t1}, v{t2}, 5, v{t1}")
    p.e(f"v_add_u32 v{vT}, {base}, v{t1}")
    for tau in range(1, 4): p.e(f"v_xor_b32 v{vT+tau}, {32*tau}, v{vT}")

def stats_job(p):
    R = TMP - 16; aQ, aS = TMP, TMP + 1
    p.e(f"v_mov_b32 v{aS}, 0\nv_mov_b32 v{aQ}, 0")
    for d in range(10):
        p.e(f"v_dot2c_f32_bf16 v{aS}, v{vONE}, v{R+d}\nv_dot2c_f32_bf16 v{aQ}, v{R+d}, v{R+d}")
    p.e("s_nop 2")
    for perm in ("quad_perm:[1,0,3,2] row_mask:0xf", "quad_perm:[2,3,0,1] row_mask:0xf", "row_half_mirror row_mask:0xf", "row_mirror row_mask:0xf", "row_bcast:15 row_mask:0xa"):
        for r in (aS, aQ): p.e(f"v_add_f32_dpp v{r}, v{r}, v{r} {perm} bank_mask:0xf")
    inv = f2u(1.0 / 640)
    p.e(f"v_mul_f32 v{aS}, {inv}, v{aS}\nv_mul_f32 v{aQ}, {inv}, v{aQ}\nv_fma_f32 v{aQ}, -v{aS}, v{aS}, v{aQ}\nv_max_f32 v{aQ}, 0, v{aQ}")
    p.e(f"v_sub_f32 v{aS}, 0, v{aS}\nv_cvt_pk_bf16_f32 v{aS}, v{aS}, v{aS}")
    bf16r(p, aQ)
    p.e(f"v_add_f32 v{aQ}, {f2u(1e-5)}, v{aQ}")
    bf16r(p, aQ)
    p.e(f"v_sqrt_f32 v{aQ}, v{aQ}")
    bf16r(p, aQ)
    p.e(f"v_rcp_f32 v{aQ}, v{aQ}")
    p.e(f"v_and_b32 v{R}, 31, v{vL}\nv_cmp_eq_u32 vcc, 16, v{R}\nv_lshrrev_b32 v{R}, 1, v{vL}\nv_and_b32 v{R}, 16, v{R}\nv_mov_b32 v{R+1}, {OOB}\nv_cndmask_b32 v{R}, v{R+1}, v{R}, vcc")
    p.e(f"v_mov_b32 v{aQ+2}, s{sN}\nv_mov_b32 v{aQ+3}, s{sN}")
    p.e(f"buffer_store_dwordx4 {V(aQ,4)}, v{R}, {S(S_WS)}, s{sU1} offen sc1", tag='pub')

def cs_store_addr(q, gidexpr):
    q.e(gidexpr)
    q.e(f"s_mul_i32 s{sU3}, s{sT0}, 12800\ns_add_u32 s{sU3}, s{sU3}, {CS_OFF}\ns_mul_i32 s{sT0}, s{sROT}, 1280\ns_add_u32 s{sU2}, s{sU3}, s{sT0}")
    q.e(f"s_lshl_b32 s{sT0}, s{sW}, 8\ns_add_u32 s{sU2}, s{sU2}, s{sT0}\ns_add_u32 s{sU3}, s{sU3}, s{sT0}")
    q.e(f"s_cmp_lt_u32 s{sMT}, 10\ns_cselect_b32 s{sT0}, 32, 0\nv_cmp_gt_u32 vcc, s{sT0}, v{vL}\nv_lshlrev_b32 v{t4}, 3, v{vL}\nv_mov_b32 v{t5}, {OOB}\nv_cndmask_b32 v{t4}, v{t5}, v{t4}, vcc")

def cs_produce_ffn(acc, gidexpr):
    q = Prog()
    q.e(f"s_lshl_b32 s{sT0}, s{sW}, 5\nv_xor_b32 v{vTW}, s{sT0}, v{vT}")
    for s in range(4):
        for t in range(2):
            q.e(f"ds_read_b64_tr_b16 {A(CSF+4*s+2*t,2)}, v{vTW} offset:{s*4096 + t*512}")
    cs_store_addr(q, gidexpr)
    for s in range(4):
        q.e(f"v_mfma_f32_32x32x16_bf16 {V(acc,16)}, {V(vONE,4)}, {A(CSF+4*s,4)}, {'0' if s == 0 else V(acc,16)}")
    st = code(f"v_mov_b32 v{acc+1}, s{sN}\nbuffer_store_dwordx2 {V(acc,2)}, v{t4}, {S(S_WS)}, s{sU2} offen sc1", 'pub')
    return q.items, st

def cs_consume(c, ntile, R0):
    q = Prog()
    q.e(f"v_lshrrev_b32 v{vPA}, 5, v{vL}\nv_mul_u32_u24 v{vPA}, 6400, v{vPA}\nv_and_b32 v{t5}, 31, v{vL}\nv_lshl_add_u32 v{vPA}, v{t5}, 3, v{vPA}")
    q.e(f"s_add_u32 s{sU2}, s{sU3}, 3840")
    rounds = [(R0, 0)]
    ld = ""
    for i in range(5): ld += f"buffer_load_dwordx2 {V(R0+2*i,2)}, v{vPA}, {S(S_WS)}, s{sU3 if i < 3 else sU2} offen offset:{1280*(i%3)} sc1\n"
    if ntile == 5:
        q.e(f"s_lshl_b32 s{sT0}, s{sW}, 8\ns_sub_u32 s{sT0}, 1024, s{sT0}\nv_add_u32 v{vTW}, s{sT0}, v{vPA}")
        for i in range(5): ld += f"buffer_load_dwordx2 {V(R0+10+2*i,2)}, v{vTW}, {S(S_WS)}, s{sU3 if i < 3 else sU2} offen offset:{1280*(i%3)} sc1\n"
        rounds.append((R0 + 10, 1))
    q.e(ld)
    a = q.items
    q = Prog()
    q.extend(retry(c, ld, tagcheck([R0 + 1 + 2 * i for i in range(5 * len(rounds))])))
    q.e(f"v_cmp_gt_u32 vcc, 32, v{vL}")
    for (R, which) in rounds:
        q.e(f"v_add_f32 v{R}, v{R}, v{R+2}\nv_add_f32 v{R+4}, v{R+4}, v{R+6}\nv_add_f32 v{R}, v{R}, v{R+8}\nv_add_f32 v{R}, v{R}, v{R+4}")
        q.e(f"v_mov_b32 v{R+1}, v{R}\nv_mov_b32 v{R+6}, 0\nv_mov_b32 v{R+7}, 0\nv_permlane32_swap_b32 v{R}, v{R+1}\nv_add_f32 v{R}, v{R}, v{R+1}\nv_cndmask_b32 v{R}, 0, v{R}, vcc")
        q.e(f"v_cvt_pk_bf16_f32 v{R+1}, v{R}, v{R}\nv_and_b32 v{R+1}, s{sMASK}, v{R+1}\nv_sub_f32 v{R}, v{R}, v{R+1}")
        q.e(f"v_cvt_pk_bf16_f32 v{R+4}, v{R+1}, v{R}\nv_and_b32 v{R+2}, s{sMASK}, v{R+4}\nv_sub_f32 v{R}, v{R}, v{R+2}")
        q.e(f"v_cvt_pk_bf16_f32 v{R+5}, v{R}, 0")
        if which == 0:
            q.e(f"s_lshr_b32 s{sT0}, s{sLB}, 2\nv_add_u32 v{t5}, s{sT0}, v{vL16}")
            q.e(f"ds_write_b128 v{t5}, {V(R+4,4)} offset:{EXT_L}", tag='ext')
        else:
            q.e(f"ds_write_b128 v{vL16}, {V(R+4,4)} offset:{EXT_L + 4096}", tag='ext')
    q.wait_lgkm('ext')
    return a, q.items
def ext_read(ntile):
    return code("\n".join(f"ds_read_b128 {A(EXTW+4*t,4)}, v{vL16} offset:{EXT_L + 1024*t}" for t in range(ntile)))

def stats_consume(c):
    q = Prog()
    q.e(f"s_lshl_b32 s{sT0}, s{sMT}, 11\ns_lshl_b32 s{sT1}, s{sW}, 9\ns_add_u32 s{sT0}, s{sT0}, s{sT1}\ns_add_u32 s{sU0}, s{sT0}, {ST_OFF}")
    ld = f"buffer_load_dwordx4 {V(vEX,4)}, v{vC1}, {S(S_WS)}, s{sU0} offen sc1"
    q.e(ld)
    a = q.items
    q = Prog()
    q.extend(retry(c, ld, tagcheck([vEX + 2, vEX + 3])))
    if c.typ == 'Y':
        q.e(f"s_lshl_b32 s{sT0}, s{sW}, 7\ns_add_u32 s{sT0}, s{sT0}, 159744")
        q.e(f"v_lshrrev_b32 v{t3}, 2, v{vC1}\nv_add_u32 v{t3}, s{sT0}, v{t3}\nds_write_b32 v{t3}, v{vEX}")
        q.e(f"v_lshrrev_b32 v{t2}, 5, v{vL}\nv_lshlrev_b32 v{t2}, 6, v{t2}\nv_add_u32 v{t2}, s{sT0}, v{t2}")
        for i in range(4): q.e(f"ds_read_b128 {V(RT+4*i,4)}, v{t2} offset:{16*i}")
    q.e(f"v_mul_f32 v{vC1}, {NLOG2E}, v{vEX}\nv_rcp_f32 v{vC2}, v{vEX}\nv_mov_b32 v{vEX}, v{vEX+1}\nv_mov_b32 v{vEX+2}, v{vEX+1}\nv_mov_b32 v{vEX+3}, v{vEX+1}")
    q.e(f"v_mul_f32 v{vC2}, v{vC2}, v{vC2}")
    return a, q.items

def ffn_epi(acc, pos, imm):
    p = Prog(); tmp = TMP
    for r in range(8): p.e(f"v_mul_f32 v{tmp+r}, v{vC1}, v{acc+r}")
    for r in range(8): p.e(f"v_exp_f32 v{tmp+r}, v{tmp+r}\nv_mul_f32 v{acc+r}, v{acc+r}, v{acc+8+r}")
    for r in range(8): p.e(f"v_fma_f32 v{tmp+r}, v{tmp+r}, v{vC2}, v{vC2}")
    for r in range(8): p.e(f"v_rcp_f32 v{tmp+r}, v{tmp+r}")
    p.e(f"s_add_u32 s{sT2}, s{sH}, {pos*4096}")
    for r in range(8): p.e(f"v_mul_f32 v{acc+r}, v{acc+r}, v{tmp+r}")
    for r in range(4): p.e(f"v_cvt_pk_bf16_f32 v{acc+8+r}, v{acc+2*r}, v{acc+2*r+1}")
    p.e(f"buffer_store_dwordx4 {V(acc+8,4)}, v{vH}, {S(S_WS)}, s{sT2} offen offset:{imm} sc1", tag='h')
    return p.items

class Ring:
    def __init__(self, reg, n, cur): self.reg = reg; self.n = n; self.cur = cur
    def off(self, base, span, out):
        if base < self.cur or base + span - self.cur > 65536:
            out += code("\n".join(f"v_add_u32 v{self.reg+i}, {(base - self.cur) & 0xffffffff}, v{self.reg+i}" for i in range(self.n)))
            self.cur = base
        return base - self.cur

def build_steps(c, kinds, slot_base, dma, NS, rT, rB, pre_extra):
    steps = []
    reads = []
    for n in range(80):
        j, s = divmod(n, 4); buf = BF + (n % 3) * 20
        base = slot_base(j)
        rd = []
        if kinds[j] == 'F':
            acc = ACC1 if (j < 10) else ACC2
            mf = []
            for tau in range(4):
                o = []
                off = rT.off(base, 16384, o)
                o += code("\n".join(f"ds_read_b64_tr_b16 {A(buf+4*tau+2*t,2)}, v{vT+tau} offset:{off + s*4096 + t*512}" for t in range(2)), ('rd', n))
                rd.append(o)
                cc = "0" if n % 40 == 0 else V(acc + 16 * tau, 16)
                mf += code(f"v_mfma_f32_32x32x16_bf16 {V(acc+16*tau,16)}, {A(buf+4*tau,4)}, {A(XF+4*(n%40),4)}, {cc}")
        else:
            mf = []
            for t in range(5):
                o = []
                off = rB.off(base, 20480, o)
                o += code(f"ds_read_b128 {A(buf+4*t,4)}, v{vBR+s} offset:{off + 1024*t}", ('rd', n))
                rd.append(o)
                cc = "0" if n == 0 else V(ACC1 + 16 * t, 16)
                mf += code(f"v_mfma_f32_32x32x16_bf16 {V(ACC1+16*t,16)}, {A(XF+4*n,4)}, {A(buf+4*t,4)}, {cc}")
        reads.append(rd)
        steps.append(dict(pre=[], mf=mf, rd=[[] for _ in mf]))
    for n in range(80):
        st = steps[n]; j, s = divmod(n, 4)
        if c.opt.get('ts') == 2 and s == 0: st['pre'] += [LazyStamp(c.ts)]
        st['pre'] += [Marker('lgkm', ('rd', n))]
        if s == 2 and j + 1 < 20:
            st['pre'] += pre_extra.get(('sync', j + 1), []) + [Marker('vm', ('slot', j + 1))] + code("s_barrier") + pre_extra.get(('post', j + 1), [])
        if n + 2 < 80:
            src = reads[n + 2]; g = len(st['mf'])
            st['rd'][min(len(src), g) - 1] += [Marker('lgkm', ('rd', n + 1))]
            for i, o in enumerate(src): st['rd'][min(i, g - 1)] += o
        if s == 2 and j >= 1 and j - 1 + NS < 20:
            spread(steps, n, dma(j - 1 + NS))
        if s == 1 and j + 1 < 10:
            st['rd'][0] += x_read(j + 1)
        if s == 3 and j + 4 < 10:
            spread(steps, n, x_dma(j + 4))
    return steps, reads[0], reads[1]

def spread(steps, n, its):
    groups, cur = [], []
    for it in its:
        cur.append(it)
        if isinstance(it, I) and it.kind == 'vm': groups.append(cur); cur = []
    if cur: groups[-1] += cur
    g = 0
    for grp in groups:
        if g >= len(steps[n]['mf']): n += 1; g = 0
        steps[n]['rd'][g] += grp; g += 1

def flat(rd): return [x for o in rd for x in o]

def jobA(c):
    q = Prog()
    q.e(f"s_lshl_b32 s{sT0}, s{sI}, 4\ns_add_u32 s{sT0}, s{sT0}, s{sMT}\ns_lshl_b32 s{sT0}, s{sT0}, 2\ns_add_u32 s{sBT+4}, s{sT0}, s{sW}")
    q.e(f"s_min_u32 s{sT0}, s{sBT+4}, 479\ns_mul_i32 s{sBT+1}, s{sT0}, 6554\ns_lshr_b32 s{sBT+1}, s{sBT+1}, 16\ns_mul_i32 s{sT2}, s{sBT+1}, 10\ns_sub_u32 s{sBT}, s{sT0}, s{sT2}")
    srd(q, S_J0, P_W2, 1536 * 1280)
    q.e(f"v_lshrrev_b32 v{t0}, 3, v{vL}\nv_and_b32 v{t1}, 7, v{vL}\nv_lshrrev_b32 v{t2}, 4, v{vL}\nv_lshlrev_b32 v{t2}, 1, v{t2}\nv_xor_b32 v{t2}, v{t1}, v{t2}\nv_lshlrev_b32 v{t2}, 4, v{t2}")
    q.e(f"v_mul_u32_u24 v{t3}, 1280, v{t0}\nv_add_u32 v{vBR}, v{t2}, v{t3}")
    q.e(f"s_mul_i32 s{sT2}, s{sBT+1}, {32*1280}\ns_lshl_b32 s{sT3}, s{sBT}, 7\ns_add_u32 s{sT2}, s{sT2}, s{sT3}")
    a = q.items
    q = Prog()
    for i in range(4):
        q.e(f"s_add_u32 m0, s{sLB}, {X_JOB}")
        q.e(f"buffer_load_dwordx4 v{vBR}, {S(S_J0)}, s{sT2} offen offset:{1024*i} lds", tag='job')
        if i < 3: q.e(f"s_add_u32 s{sT2}, s{sT2}, {8*1280-1024}")
    b = q.items
    q = Prog()
    q.e(f"v_bfe_u32 v{t0}, v{vL}, 2, 3\nv_lshrrev_b32 v{t1}, 5, v{vL}\nv_lshl_add_u32 v{t1}, v{t1}, 4, v{t0}")
    q.e(f"v_lshrrev_b32 v{t0}, 1, v{t0}\nv_lshlrev_b32 v{t0}, 5, v{t0}\nv_lshl_add_u32 v{t0}, v{t1}, 7, v{t0}\nv_and_b32 v{t1}, 3, v{vL}")
    q.e(f"v_lshl_add_u32 v{t0}, v{t1}, 3, v{t0}\nv_add_u32 v{vBR}, s{sLB}, v{t0}")
    for tau in range(1, 4): q.e(f"v_xor_b32 v{vBR+tau}, {32*tau}, v{vBR}")
    k = sBT + 1
    q.e(f"s_mul_i32 s{sT0}, s{k}, 43\ns_lshr_b32 s{sT0}, s{sT0}, 9\ns_mul_i32 s{sT1}, s{sT0}, 12\ns_sub_u32 s{sT1}, s{k}, s{sT1}\ns_mul_i32 s{sT0}, s{sT0}, 22")
    q.e(f"s_cmp_ge_u32 s{sT1}, 6\ns_cselect_b32 s{sT2}, 1, 0\ns_cselect_b32 s{sT3}, 6, 0\ns_sub_u32 s{sT1}, s{sT1}, s{sT3}")
    q.e(f"s_add_u32 s{sT0}, s{sT0}, s{sT1}\ns_lshl_b32 s{sT3}, s{sT2}, 2\ns_lshl_b32 s{sT2}, s{sT2}, 1\ns_add_u32 s{sT2}, s{sT2}, 4")
    q.e(f"s_cmp_lt_u32 s{sT1}, 4\ns_cselect_b32 s{sT2}, s{sT3}, s{sT2}\ns_add_u32 s{sT0}, s{sT0}, s{sT2}\ns_mul_i32 s{sBT+2}, s{sT0}, 5")
    q.wait_vm('job')
    for tau in range(4):
        for t in range(2): q.e(f"ds_read_b64_tr_b16 {V(CSA+4*tau+2*t,2)}, v{vBR+tau} offset:{X_JOB + 1024*t}", 'jobrd')
    for tau in range(4):
        q.e(f"s_lshl_b32 s{sT0}, s{sBT}, 2\ns_add_u32 s{sT0}, s{sT0}, {tau}\ns_mul_i32 s{sT1}, s{sT0}, 52\ns_lshr_b32 s{sT1}, s{sT1}, 8")
        q.e(f"s_mul_i32 s{sT2}, s{sT1}, 435\ns_add_u32 s{sT0}, s{sT0}, s{sT2}\ns_add_u32 s{sT0}, s{sT0}, s{sBT+2}")
        q.e(f"s_lshl_b32 s{sT0}, s{sT0}, 10\ns_add_u32 s{sT0}, s{sT0}, {W2S_OFF}")
        q.e(f"buffer_store_dwordx4 {V(CSA+4*tau,4)}, v{vL16}, {S(S_WS)}, s{sT0} offen sc1", tag='pub')
    return a, b, q.items
def jobB(c):
    q = Prog()
    q.e(f"s_min_u32 s{sT0}, s{sBT+4}, 399\ns_mul_i32 s{sBT+1}, s{sT0}, 6554\ns_lshr_b32 s{sBT+1}, s{sBT+1}, 16\ns_mul_i32 s{sT2}, s{sBT+1}, 10\ns_sub_u32 s{sBT}, s{sT0}, s{sT2}")
    srd(q, S_J1, P_CRE, 640 * 1280)
    srd(q, S_AG, P_CIM, 640 * 1280 + 2048, -2048)
    q.e(f"s_mul_i32 s{sBT+2}, s{sBT+1}, {16*1280}\ns_lshl_b32 s{sT3}, s{sBT}, 7\ns_add_u32 s{sBT+2}, s{sBT+2}, s{sT3}\ns_add_u32 s{sBT+3}, s{sBT+2}, {8*1280-1024}")
    a = q.items
    q = Prog()
    for i, (sr, so) in enumerate(((S_J1, sBT + 2), (S_J1, sBT + 3), (S_AG, sBT + 2), (S_AG, sBT + 3))):
        q.e(f"s_add_u32 m0, s{sLB}, {X_JOB}")
        q.e(f"buffer_load_dwordx4 v{vXD+(i&1)}, {S(sr)}, s{so} offen offset:{1024*i} lds", tag='job')
    b = q.items
    q = Prog()
    q.e(f"v_bfe_u32 v{t0}, v{vL}, 1, 3\nv_bfe_u32 v{t1}, v{vL}, 4, 1\nv_xor_b32 v{t0}, v{t0}, v{t1}\nv_lshlrev_b32 v{t0}, 4, v{t0}")
    q.e(f"v_and_b32 v{t1}, 15, v{vL}\nv_lshl_add_u32 v{t0}, v{t1}, 7, v{t0}\nv_lshrrev_b32 v{t1}, 5, v{vL}\nv_lshl_add_u32 v{t0}, v{t1}, 11, v{t0}")
    q.e(f"v_add_u32 v{vBR}, s{sLB}, v{t0}")
    for s in range(1, 4): q.e(f"v_xor_b32 v{vBR+s}, {32*s}, v{vBR}")
    q.e(f"s_mul_i32 s{sT1}, s{sBT+1}, 52\ns_lshr_b32 s{sT1}, s{sT1}, 8\ns_mul_i32 s{sT1}, s{sT1}, 435\ns_add_u32 s{sBT+2}, s{sT1}, s{sBT+1}")
    q.wait_vm('job')
    for s in range(4): q.e(f"ds_read_b128 {V(CSA+4*s,4)}, v{vBR+s} offset:{X_JOB}")
    for s in range(4):
        q.e(f"s_lshl_b32 s{sT0}, s{sBT}, 2\ns_add_u32 s{sT0}, s{sT0}, {s}\ns_mul_i32 s{sT1}, s{sT0}, 26\ns_lshr_b32 s{sT1}, s{sT1}, 8\ns_mul_i32 s{sT1}, s{sT1}, 12")
        q.e(f"s_add_u32 s{sT0}, s{sT0}, s{sT1}\ns_mul_i32 s{sT0}, s{sT0}, 5\ns_add_u32 s{sT0}, s{sT0}, s{sBT+2}\ns_lshl_b32 s{sT0}, s{sT0}, 10\ns_add_u32 s{sT0}, s{sT0}, {W2S_OFF + 60*1024}")
        q.e(f"buffer_store_dwordx4 {V(CSA+4*s,4)}, v{vL16}, {S(S_WS)}, s{sT0} offen sc1", tag='pub')
    return a, b, q.items

def ext_mfma(acc, n, ffn):
    if ffn: return code("\n".join(f"v_mfma_f32_32x32x16_bf16 {V(acc+16*t,16)}, {A(EXTW+4*t,4)}, {V(vEX,4)}, {V(acc+16*t,16)}" for t in range(n)))
    return code("\n".join(f"v_mfma_f32_32x32x16_bf16 {V(acc+16*t,16)}, {V(vEX,4)}, {A(EXTW+4*t,4)}, {V(acc+16*t,16)}" for t in range(n)))

def k1_X(p, c):
    ts = c.ts; o = c.opt
    sb = lambda j: X_RING + (j % X_NS) * X_SLOT
    def dma(j):
        pre = code(f"s_add_u32 s{sDB}, s{sDB}, 128") if j == 10 else []
        return pre + ffn_dma(sb(j), j)
    p.extend(x_dma(0))
    ffn_dma_addr(p)
    p.e(f"s_mul_i32 s{sDB}, s{sW}, {16*3072}\ns_mul_i32 s{sT0}, s{sI}, 384\ns_add_u32 s{sDB}, s{sDB}, s{sT0}")
    p.extend(dma(0)); p.extend(x_dma(1)); p.extend(dma(1))
    common_addr(p)
    p.e(f"s_and_b32 s{sT0}, s{sI}, 1\ns_lshl_b32 s{sT0}, s{sT0}, 14\ns_add_u32 s{sH}, s{sH}, s{sT0}")
    tr_addrs(p, X_RING)
    a1, a2, a3 = jobA(c); b1, b2, b3 = jobB(c)
    p.e(NONCE_LD())
    p.extend(x_dma(2)); p.extend(dma(2))
    ts(p)
    rT = Ring(vT, 4, X_RING)
    pubw = [Marker('vm', 'pub')]
    pre_extra = {('sync', 11): pubw, ('post', 11): flag(f"s{sBT+3}")}
    steps, r0, r1 = build_steps(c, 'F' * 20, sb, dma, X_NS, rT, None, pre_extra)
    p.extend(x_read(0))
    p.wait_vm(('slot', 0)); p.e("s_barrier")
    p.extend(flat(r0)); p.extend(flat(r1))
    ts(p)
    spread(steps, 0, x_dma(3)); spread(steps, 1, dma(3)); spread(steps, 4, dma(4)); spread(steps, 5, dma(5))
    spread(steps, 12, a2); spread(steps, 24, [Marker('lgkm', 'jobrd')] + b2)
    cs1, cs1s = cs_produce_ffn(ACC2, f"s_mul_i32 s{sT0}, s{sI}, 3")
    sl, su = stats_consume(c); cl, cu = cs_consume(c, 4, ACC2)
    side = cs1 + [Deadline(4)] + nonce_get(c) + cs1s + items(stats_job) + [Deadline(9)] + a1 + [Deadline(12), Gate(20)] + a3 + b1 + [Deadline(24)]
    side += [Gate(o.get('g1', 25))] + sl + cl + [Gate(31)] + b3 + code(f"s_lshl_b32 s{sT0}, s{sMT}, 5\ns_lshl_b32 s{sT1}, s{sI}, 2\ns_add_u32 s{sT0}, s{sT0}, s{sT1}\ns_add_u32 s{sBT+3}, s{sT0}, {WF_OFF}")
    side += [Gate(34)] + su + cu + [Deadline(38), Gate(38)] + ext_read(4) + [Deadline(39)]
    steps[39]['mf'] += ext_mfma(ACC1, 4, True); steps[39]['rd'] += [[], [], [], []]
    steps[40]['pre'] = ([] if o.get('ts') == 2 else [LazyStamp(ts)]) + steps[40]['pre']
    cs2, cs2s = cs_produce_ffn(CSA, f"s_mul_i32 s{sT0}, s{sI}, 3\ns_add_u32 s{sT0}, s{sT0}, 1")
    cl, cu = cs_consume(c, 4, CSA)
    side += [Gate(40)] + cs2 + [Deadline(43), Gate(43)] + cs2s + [Deadline(45)]
    for tau in range(3): side += ffn_epi(ACC1 + 16 * tau, tau >> 1, (tau & 1) * 512)
    side += [Deadline(62), Gate(62)] + cl + ffn_epi(ACC1 + 48, 1, 512) + [Deadline(70), Gate(70)] + cu + [Deadline(74), Gate(74)] + ext_read(4) + [Deadline(78)]
    steps[79]['mf'] += ext_mfma(ACC2, 4, True); steps[79]['rd'] += [[], [], [], []]
    resolve(steps)
    weave(p, steps, side)
    ts(p)
    for tau in range(4): p.extend(ffn_epi(ACC2 + 16 * tau, 2 + (tau >> 1), (tau & 1) * 512))
    ts(p)

def k1_Y(p, c):
    ts = c.ts; o = c.opt
    sb = lambda j: Y_RING + (j % Y_NS) * Y_SLOT
    dma = lambda j: ssm_dma(sb(j), j) if j < 10 else ffn_dma(sb(j), j)
    p.extend(x_dma(0))
    p.e(f"s_cmp_ge_u32 s{sW}, 2\ns_cselect_b32 s{S_B}, s{P_BIM}, s{P_BRE}\ns_cselect_b32 s{S_B+1}, s{P_BIM+1}, s{P_BRE+1}")
    p.e(f"s_mov_b32 s{S_B+2}, {640*1280}\ns_mov_b32 s{S_B+3}, 0x20000\ns_mul_i32 s{sLBS}, s{sW}, 5120")
    p.e(f"s_and_b32 s{sT0}, s{sW}, 1\ns_lshl_b32 s{sT1}, s{sT0}, 2\ns_lshr_b32 s{sT2}, s{sW}, 1\ns_xor_b32 s{sT1}, s{sT1}, s{sT2}")
    p.e(f"s_lshl_b32 s{sT1}, s{sT1}, 4\nv_xor_b32 v{vDS}, s{sT1}, v{vXD}")
    p.e(f"s_mul_i32 s{sT1}, s{sI}, 80\ns_lshl_b32 s{sT0}, s{sT0}, 3\ns_add_u32 s{sT0}, s{sT0}, s{sT1}\ns_mul_i32 s{sBT}, s{sT0}, 1280")
    for t in range(1, 4): p.e(f"s_add_u32 s{sBT+t}, s{sBT}, {t*(20480-1024)}")
    p.e(f"s_add_u32 s{sBT+4}, s{sBT}, {4*20480}")
    p.extend(dma(0))
    L = ACC2 + 16
    p.e(f"v_lshrrev_b32 v{L}, 5, v0\nv_lshlrev_b32 v{L}, 4, v{L}\nv_bfe_u32 v{L+1}, v0, 1, 4\nv_add_u32 v{L}, v{L}, v{L+1}")
    p.e(f"v_add_u32 v{L}, s{sT1}, v{L}\nv_lshlrev_b32 v{L}, 1, v{L}")
    for k, (sr, ptr) in enumerate(((S_J0, P_LRE), (S_J1, P_LIM), (S_AG, P_LDT))):
        srd(p, sr, ptr, 1280)
        p.e(f"buffer_load_ushort v{L+1+k}, v{L}, {S(sr)}, 0 offen", tag='tbl')
    p.extend(x_dma(1)); p.extend(dma(1))
    ffn_dma_addr(p)
    p.e(f"s_mul_i32 s{sDB}, s{sW}, {16*3072}\ns_mul_i32 s{sT0}, s{sI}, 384\ns_add_u32 s{sDB}, s{sDB}, s{sT0}\ns_add_u32 s{sDB}, s{sDB}, 256")
    common_addr(p)
    p.e(f"v_and_b32 v{t0}, 1, v{vL}\nv_bfe_u32 v{t1}, v{vL}, 1, 4\nv_lshl_add_u32 v{t1}, v{t0}, 4, v{t1}")
    p.e(f"v_bfe_u32 v{t2}, v{t1}, 1, 3\nv_xor_b32 v{t2}, v{t2}, v{t0}\nv_lshrrev_b32 v{t3}, 5, v{vL}\nv_xor_b32 v{t2}, v{t2}, v{t3}\nv_lshlrev_b32 v{t2}, 4, v{t2}")
    p.e(f"v_and_b32 v{t3}, 7, v{t1}\nv_lshl_add_u32 v{t2}, v{t3}, 7, v{t2}\nv_lshrrev_b32 v{t3}, 3, v{t1}\nv_mul_u32_u24 v{t3}, 5120, v{t3}")
    p.e(f"v_add_u32 v{t2}, v{t2}, v{t3}\nv_add_u32 v{vBR}, {Y_RING}, v{t2}")
    for s in range(1, 4): p.e(f"v_xor_b32 v{vBR+s}, {32*s}, v{vBR}")
    tr_addrs(p, sb(10))
    vE, vAG, vFL, vSTW, vSTR = 252, 253, 254, vXD, vXD + 1
    p.e(f"v_lshlrev_b32 v{vE}, 5, v0")
    srd(p, S_AG, P_WS, 32 * 1280, AGG_OFF)
    p.e(f"s_mul_i32 s{sT0}, s{sI}, {32*1280}\ns_add_u32 s{S_AG}, s{S_AG}, s{sT0}\ns_addc_u32 s{S_AG+1}, s{S_AG+1}, 0")
    p.e(f"v_subrev_u32 v{t0}, 160, v0\nv_min_u32 v{t0}, v{t0}, v0\nv_lshlrev_b32 v{vFL}, 3, v{t0}\nv_mov_b32 v{t1}, {OOB}\nv_cmp_gt_u32 vcc, 160, v0\nv_cndmask_b32 v255, v{t1}, v{vFL}, vcc")
    p.e(NONCE_LD())
    p.extend(x_dma(2)); p.extend(dma(2))
    ts(p)
    q = Prog()
    lr, li, ld, a2, rev, sg, O, u = L + 1, L + 2, L + 3, L + 4, L + 5, L + 6, L + 8, L + 16
    q.e(f"v_lshlrev_b32 v{lr}, 16, v{lr}\nv_lshlrev_b32 v{li}, 16, v{li}\nv_lshlrev_b32 v{ld}, 16, v{ld}")
    q.e(f"v_mul_f32 v{ld}, {LOG2E}, v{ld}\nv_exp_f32 v{ld}, v{ld}")
    bf16r(q, ld)
    q.e(f"v_mul_f32 v{a2}, v{ld}, v{lr}\nv_mul_f32 v{a2}, {LOG2E}, v{a2}\nv_mul_f32 v{rev}, v{ld}, v{li}\nv_mul_f32 v{rev}, {INV2PI}, v{rev}")
    q.e(f"v_and_b32 v{sg}, 1, v0\nv_cvt_f32_u32 v{sg}, v{sg}\nv_fma_f32 v{sg}, v{sg}, 2.0, -1.0")
    for (k, oo) in ((1, 0), (16, 4), (128, 6)):
        q.e(f"v_mul_f32 v{u}, {f2u(float(k))}, v{a2}\nv_exp_f32 v{u}, v{u}\nv_mul_f32 v{u+1}, {f2u(float(k))}, v{rev}\nv_fract_f32 v{u+1}, v{u+1}")
        q.e(f"v_cos_f32 v{u+2}, v{u+1}\nv_sin_f32 v{u+3}, v{u+1}\nv_mul_f32 v{O+oo}, v{u}, v{u+2}\nv_mul_f32 v{O+oo+1}, v{u}, v{u+3}")
        if k == 1:
            q.e(f"v_add_f32 v{u}, -1.0, v{O}\nv_mul_f32 v{u+1}, v{lr}, v{lr}\nv_fmac_f32 v{u+1}, v{li}, v{li}\nv_rcp_f32 v{u+1}, v{u+1}")
            q.e(f"v_mul_f32 v{u+2}, v{u}, v{lr}\nv_fmac_f32 v{u+2}, v{O+1}, v{li}\nv_mul_f32 v{u+3}, v{O+1}, v{lr}\nv_fma_f32 v{u+3}, -v{u}, v{li}, v{u+3}")
            q.e(f"v_mul_f32 v{u+1}, -2.0, v{u+1}\nv_mul_f32 v{u+2}, v{u+2}, v{u+1}\nv_mul_f32 v{O+2}, v{u+2}, v{sg}\nv_mul_f32 v{O+3}, v{u+3}, v{u+1}")
        q.e(f"v_mul_f32 v{O+oo+1}, v{O+oo+1}, v{sg}")
    q.e(f"ds_write_b128 v{vE}, {V(O,4)} offset:{Y_TBL}\nds_write_b128 v{vE}, {V(O+4,4)} offset:{Y_TBL+16}")
    table = q.items
    rT = Ring(vT, 4, sb(10)); rB = Ring(vBR, 4, Y_RING)
    steps, r0, r1 = build_steps(c, 'S' * 10 + 'F' * 10, sb, dma, Y_NS, rT, rB, {})
    p.extend(x_read(0))
    p.wait_vm(('slot', 0)); p.e("s_barrier")
    p.extend(flat(r0)); p.extend(flat(r1))
    ts(p)
    spread(steps, 0, x_dma(3)); spread(steps, 1, dma(3)); spread(steps, 4, dma(4))
    q = Prog()
    q.e(f"s_lshl_b32 s{sT0}, s{sW}, 10")
    for s in range(4): q.e(f"v_add_u32 v{t0+s}, s{sT0}, v{vBR+s}\nds_read_b128 {A(CSF+4*s,4)}, v{t0+s}")
    for s in range(4): q.e(f"ds_read_b128 {A(EXTW+4*s,4)}, v{vBR+s} offset:4096")
    cs_store_addr(q, f"s_add_u32 s{sT0}, s{sI}, 24")
    CB = ACC2 + 48
    for s in range(4): q.e(f"v_mfma_f32_32x32x16_bf16 {V(CB,16)}, {V(vONE,4)}, {A(CSF+4*s,4)}, {'0' if s == 0 else V(CB,16)}")
    for s in range(4): q.e(f"v_mfma_f32_32x32x16_bf16 {V(ACC2,16)}, {V(vONE,4)}, {A(EXTW+4*s,4)}, {'0' if s == 0 else V(ACC2,16)}")
    cs1 = q.items
    cs1s = code(f"v_mov_b32 v{CB+1}, s{sN}\nv_mov_b32 v{ACC2+1}, s{sN}\nbuffer_store_dwordx2 {V(CB,2)}, v{t4}, {S(S_WS)}, s{sU2} offen sc1\ns_lshl_b32 s{sT0}, s{sW}, 8\ns_sub_u32 s{sT0}, s{sU2}, s{sT0}\n"
                f"buffer_store_dwordx2 {V(ACC2,2)}, v{t4}, {S(S_WS)}, s{sT0} offen offset:1024 sc1\n"
                f"v_mov_b32 v{vZ}, 0\ns_add_u32 s{sT0}, s{sMT}, 16\ns_mul_i32 s{sT0}, s{sT0}, 1280\n"
                f"buffer_store_dwordx2 {V(vZ,2)}, v255, {S(S_AG)}, s{sT0} offen sc1", 'pub')
    sl, su = stats_consume(c); cl, cu = cs_consume(c, 5, ACC2)
    side = cs1 + [Deadline(4)] + nonce_get(c) + cs1s + items(stats_job) + [Deadline(9)] + table + [Deadline(22)]
    side += [Gate(o.get('g1', 25))] + sl + cl + [Gate(32)] + su + cu + [Deadline(38), Gate(38)] + ext_read(5) + [Deadline(39)]
    q = Prog()
    q.e(f"v_and_b32 v{t0}, 31, v{vL}\nv_lshlrev_b32 v{t0}, 5, v{t0}\nv_lshrrev_b32 v{t1}, 5, v0\nv_lshl_add_u32 v{vAG}, v{t1}, 2, v{t0}")
    for t in range(5): q.e(f"ds_read_b128 {V(C0+4*t,4)}, v{t0} offset:{Y_TBL + 1024*t}")
    side += q.items + [Deadline(40)]
    steps[39]['mf'] += ext_mfma(ACC1, 5, False); steps[39]['rd'] += [[], [], [], [], []]
    steps[40]['pre'] = ([] if o.get('ts') == 2 else [LazyStamp(ts)]) + steps[40]['pre']
    AS = o.get('async', 13)
    PS = o.get('psync', 18)
    cs2, cs2s = cs_produce_ffn(CSA, f"s_mul_i32 s{sT0}, s{sI}, 3\ns_add_u32 s{sT0}, s{sT0}, 2")
    side += [Gate(40)] + cs2 + [Deadline(43)]
    q = Prog()
    for t in range(5):
        for tt in range(16): q.e(f"v_mul_f32 v{ACC1+16*t+tt}, v{RT+tt}, v{ACC1+16*t+tt}")
    side += q.items + cs2s
    LM, E0, GA = RT, RT + 4, RT + 12
    q = Prog()
    q.e(f"ds_read_b128 {V(LM,4)}, v{vE} offset:{Y_TBL+16}")
    for tt in range(1, 16):
        for t in range(5):
            g = (ACC1 + 16 * t) if tt == 1 else (TMP - 10 + 2 * t + (tt & 1))
            q.e(f"v_fma_f32 v{TMP-10+2*t+((tt+1)&1)}, v{C0+4*t}, v{g}, v{ACC1+16*t+tt}")
        for t in range(5):
            g = (ACC1 + 16 * t) if tt == 1 else (TMP - 10 + 2 * t + (tt & 1))
            q.e(f"v_fmac_f32_dpp v{TMP-10+2*t+((tt+1)&1)}, v{g}, v{C0+4*t+1} {QP}")
    for t in range(5): q.e(f"ds_write_b32 v{vAG}, v{TMP-10+2*t} offset:{AG_L + 1024*t}", tag='agw')
    q.wait_lgkm('agw')
    side += q.items + [Deadline(4 * (AS - 1) + 2), Gate(4 * (AS - 1) + 2)]
    q = Prog()
    q.e(f"ds_read_b128 {V(E0,4)}, v{vE} offset:{AG_L}\nds_read_b128 {V(E0+4,4)}, v{vE} offset:{AG_L+16}")
    q.e(f"s_sub_u32 s{sBT}, 15, s{sMT}\ns_mul_i32 s{sBT}, s{sBT}, 1280")
    for i in range(5): q.e(f"s_add_u32 s{S_J0+i}, s{sBT}, {1280 + 3840*i}")
    for k in range(1, 8):
        g = E0 if k == 1 else (GA + (k & 1))
        q.e(f"v_fma_f32 v{GA+((k+1)&1)}, v{LM}, v{g}, v{E0+k}\nv_fmac_f32_dpp v{GA+((k+1)&1)}, v{g}, v{LM+1} {QP}")
    q.e(f"v_mov_b32 v{GA+1}, s{sN}\nbuffer_store_dwordx2 {V(GA,2)}, v255, {S(S_AG)}, s{sBT} offen sc1", tag='pub')
    q.e(f"v_and_b32 v{t0}, 1, v{vL}\nv_bfe_u32 v{t1}, v{vL}, 1, 4\nv_lshl_add_u32 v{t1}, v{t0}, 4, v{t1}\nv_lshlrev_b32 v{t1}, 6, v{t1}")
    q.e(f"v_lshrrev_b32 v{t0}, 5, v{vL}\nv_lshl_add_u32 v{t1}, v{t0}, 5, v{t1}\nv_add_u32 v{vSTW}, s{sLB}, v{t1}")
    q.e(f"v_lshrrev_b32 v{t0}, 4, v{vL}\nv_lshlrev_b32 v{t0}, 9, v{t0}\nv_bfe_u32 v{t1}, v{vL}, 2, 2\nv_lshl_add_u32 v{t0}, v{t1}, 6, v{t0}")
    q.e(f"v_and_b32 v{t1}, 3, v{vL}\nv_lshl_add_u32 v{t0}, v{t1}, 3, v{t0}\nv_add_u32 v{vSTR}, s{sLB}, v{t0}")
    q.e(f"s_and_b32 s{sT0}, s{sI}, 1\ns_mul_i32 s{sBT+4}, s{sT0}, {5*4096}\ns_add_u32 s{sBT+4}, s{sBT+4}, s{sH}\ns_lshl_b32 s{sT0}, s{sT0}, 13\ns_add_u32 s{sH}, s{sH}, s{sT0}")
    side += q.items
    cl, cu = cs_consume(c, 4, CSA)
    LB = 184 - 0
    side += cl + [Gate(o.get('g2', 58))] + cu
    LBK = TMP - 16
    ldl = "\n".join(f"buffer_load_dwordx2 {A(2*i,2)}, v{vFL}, {S(S_AG)}, s{S_J0+i//3} offen offset:{(i%3)*1280} sc1" for i in range(15))
    chk = "\n".join(f"v_accvgpr_read_b32 v{CSA+i}, a{2*i+1}" for i in range(15)) + "\n" + tagcheck([CSA + i for i in range(15)])
    side += [Gate(o.get('g3', 60))] + code(ldl) + [Gate(o.get('g4', 66))] + retry(c, ldl, chk)
    q = Prog()
    LBK = CSA
    for i in range(15): q.e(f"v_accvgpr_read_b32 v{LBK+i}, a{2*i}")
    for k, i in enumerate(range(13, -1, -1)):
        g = (LBK + 14) if k == 0 else (LBK + i + 1)
        q.e(f"v_fmac_f32 v{LBK+i}, v{LM+2}, v{g}\nv_fmac_f32_dpp v{LBK+i}, v{g}, v{LM+3} {QP}")
    for k in range(7):
        q.e(f"v_fma_f32 v{LBK+k+1}, v{LM}, v{LBK+k}, v{E0+k}\nv_fmac_f32_dpp v{LBK+k+1}, v{LBK+k}, v{LM+1} {QP}")
    q.e(f"ds_write_b128 v{vE}, {V(LBK,4)} offset:{AG_L}\nds_write_b128 v{vE}, {V(LBK+4,4)} offset:{AG_L+16}", tag='pw')
    q.wait_lgkm('pw')
    side += q.items + [Deadline(4 * (PS - 1) + 2), Gate(4 * (PS - 1) + 2)] + ext_read(4) + [Deadline(79)]
    q = Prog()
    CY = RT + 4
    for t in range(5): q.e(f"ds_read_b32 v{CY+t}, v{vAG} offset:{AG_L + 1024*t}")
    for tt in range(16):
        for t in range(5):
            g = (CY + t) if tt == 0 else (ACC1 + 16 * t + tt - 1)
            q.e(f"v_fmac_f32 v{ACC1+16*t+tt}, v{C0+4*t}, v{g}")
        for t in range(5):
            g = (CY + t) if tt == 0 else (ACC1 + 16 * t + tt - 1)
            q.e(f"v_fmac_f32_dpp v{ACC1+16*t+tt}, v{g}, v{C0+4*t+1} {QP}")
    for t in range(5):
        R = ACC1 + 16 * t
        for h2 in range(2):
            for k in range(8): q.e(f"v_mul_f32 v{TMP+k}, v{C0+4*t+2}, v{R+8*h2+k}")
            for k in range(8): q.e(f"v_fmac_f32_dpp v{TMP+k}, v{R+8*h2+k}, v{C0+4*t+3} {QP}")
            for k in range(4): q.e(f"v_cvt_pk_bf16_f32 v{R+4*h2+k}, v{TMP+2*k}, v{TMP+2*k+1}")
        for h2 in range(2):
            q.e(f"ds_write_b128 v{vSTW}, {V(R+4*h2,4)} offset:{HT_L + (t&1)*2048 + 16*h2}")
        for rt in range(2):
            for tq in range(2):
                q.e(f"ds_read_b64_tr_b16 {V(R+8+4*rt+2*tq,2)}, v{vSTR} offset:{HT_L + (t&1)*2048 + rt*32 + tq*256}")
        if t > 0:
            q.e(f"s_add_u32 s{sT2}, s{sBT+4}, {(12+t-1)*4096}")
            for rt in range(2): q.e(f"buffer_store_dwordx4 {V(R-16+8+4*rt,4)}, v{vL16}, {S(S_WS)}, s{sT2} offen offset:{rt*1024} sc1", tag='h')
    lastst = code(f"s_add_u32 s{sT2}, s{sBT+4}, {(12+4)*4096}\n" + "\n".join(
        f"buffer_store_dwordx4 {V(ACC1+64+8+4*rt,4)}, v{vL16}, {S(S_WS)}, s{sT2} offen offset:{rt*1024} sc1" for rt in range(2)), 'h')
    side += q.items
    steps[79]['mf'] += ext_mfma(ACC2, 4, True); steps[79]['rd'] += [[], [], [], []]
    resolve(steps)
    weave(p, steps, side, base_rate=o.get('yrate', 4))
    ts(p)
    p.extend(ffn_epi(ACC2, 8, 0)); p.extend(lastst)
    for tau in range(1, 4): p.extend(ffn_epi(ACC2 + 16 * tau, 8 + (tau >> 1), (tau & 1) * 512))
    ts(p)

def k2(p, c):
    ts = c.ts
    NRES, NA = 12, (5 if ts.on else 6)
    ACC, AB = 40, 120
    sA, sBq, sB2 = sD0, sD1, sDB
    p.e(f"s_mul_i32 s{sT0}, s{sW}, 22\ns_and_b32 s{sU0}, s{sSL}, 7\ns_mul_i32 s{sBq}, s{sU0}, 88\ns_add_u32 s{sBq}, s{sBq}, s{sT0}\ns_mul_i32 s{sBq}, s{sBq}, 5120")
    p.e(f"s_add_u32 s{sBq}, s{sBq}, {W2S_OFF}\ns_add_u32 s{sB2}, s{sBq}, 4096")
    p.e(f"s_lshr_b32 s{sU1}, s{sSL}, 3\ns_lshl_b32 s{sT1}, s{sMT}, 1\ns_add_u32 s{sU1}, s{sU1}, s{sT1}\ns_mul_i32 s{sA}, s{sU1}, 88\ns_add_u32 s{sA}, s{sA}, s{sT0}\ns_lshl_b32 s{sA}, s{sA}, 12")
    def bload(k):
        b = (k % NRES) * 20
        for ct in range(4): p.e(f"buffer_load_dwordx4 {A(b+4*ct,4)}, v{vL16}, {S(S_WS)}, s{sBq} offen offset:{1024*ct} sc1")
        p.e(f"buffer_load_dwordx4 {A(b+16,4)}, v{vL16}, {S(S_WS)}, s{sB2} offen sc1")
        p.e(f"s_add_u32 s{sBq}, s{sBq}, 5120\ns_add_u32 s{sB2}, s{sB2}, 5120")
    def aload(k):
        b = AB + (k % NA) * 16
        for rt in range(4): p.e(f"buffer_load_dwordx4 {V(b+4*rt,4)}, v{vL16}, {S(S_WS)}, s{sA} offen offset:{1024*rt} sc1")
        p.e(f"s_add_u32 s{sA}, s{sA}, 4096")
    p.e(f"v_lshlrev_b32 v16, 3, v{vL}\ns_mov_b32 s{sT2}, {WF_OFF}")
    ld = f"buffer_load_dwordx2 v[18:19], v16, {S(S_WS)}, s{sT2} offen sc1"
    p.e(ld); p.extend(retry(c, ld, tagcheck([18, 19])))
    for k in range(6): bload(k)
    p.wait_vm('h'); p.e("s_barrier"); p.extend(flag(f"s{sFL}"))
    ts(p)
    p.e(f"s_lshl_b32 s{sT2}, s{sMT}, 10\ns_lshl_b32 s{sT3}, s{sW}, 8\ns_add_u32 s{sT3}, s{sT3}, s{sT2}\ns_add_u32 s{sT3}, s{sT3}, {HF_OFF}\nv_and_b32 v16, 1, v{vL}\nv_lshlrev_b32 v16, 7, v16")
    ldx = f"buffer_load_dword v18, v16, {S(S_WS)}, s{sT3} offen sc1"
    ldy = f"buffer_load_dword v19, v16, {S(S_WS)}, s{sT3} offen offset:64 sc1"
    p.e(ldx)
    for k in range(6, 8): bload(k)
    p.extend(retry(c, ldx, tagcheck([18])))
    ts(p)
    for k in range(NA - 1): aload(k)
    for k in range(8, 10): bload(k)
    srd(p, S_W1, P_D, 1280)
    srd(p, S_W3, P_OUT, 2048 * 2560)
    EX, ED, ES, EO, EL = 216, 226, 236, 246, 251
    p.e(f"s_mov_b32 s48, 3277\ns_lshl_b32 s49, s{sU1}, 6\ns_mul_i32 s50, s{sU0}, 160")
    p.e(f"s_mul_i32 s51, s49, 1280\ns_add_u32 s51, s51, s50\ns_lshl_b32 s59, s49, 4\ns_add_u32 s59, s59, {ST_OFF}\ns_lshl_b32 s61, s51, 1")
    def epi_loads():
        for u in range(5):
            p.e(f"v_add_u32 v4, {256*u}, v0\nv_mul_lo_u32 v5, v4, s48\nv_lshrrev_b32 v5, 16, v5\nv_mul_u32_u24 v6, 20, v5\nv_sub_u32 v6, v4, v6")
            p.e(f"v_lshlrev_b32 v7, 3, v6\nv_mul_u32_u24 v8, 1280, v5\nv_add_u32 v8, v8, v7\nv_lshlrev_b32 v9, 4, v5")
            p.e(f"buffer_load_dwordx2 {V(EX+2*u,2)}, v8, {S(S_X)}, s51 offen")
            p.e(f"buffer_load_dwordx2 {V(ED+2*u,2)}, v7, {S(S_W1)}, s50 offen")
            p.e(f"buffer_load_dwordx2 {V(ES+2*u,2)}, v9, {S(S_WS)}, s59 offen sc1")
            p.e(f"v_lshlrev_b32 v{EO+u}, 1, v8\nv_mul_u32_u24 v{EL+u}, 336, v5\nv_lshl_add_u32 v{EL+u}, v6, 4, v{EL+u}")
    M = f"s{sMASK}"
    def epi_pre(u):
        p.e(f"v_lshlrev_b32 v4, 16, v{EX+2*u}\nv_and_b32 v5, {M}, v{EX+2*u}\nv_lshlrev_b32 v6, 16, v{EX+2*u+1}\nv_and_b32 v7, {M}, v{EX+2*u+1}")
        p.e(f"v_lshlrev_b32 v8, 16, v{ED+2*u}\nv_and_b32 v9, {M}, v{ED+2*u}\nv_lshlrev_b32 v10, 16, v{ED+2*u+1}\nv_and_b32 v11, {M}, v{ED+2*u+1}")
        p.e(f"v_and_b32 v{ES+2*u+1}, {M}, v{ES+2*u+1}\nv_mul_f32 v{ES+2*u+1}, v{ES+2*u+1}, v{ES+2*u}")
        for i in range(4): p.e(f"v_fma_f32 v{12+i}, v{4+i}, v{ES+2*u}, v{ES+2*u+1}")
        p.e("v_cvt_pk_bf16_f32 v12, v12, v13\nv_cvt_pk_bf16_f32 v14, v14, v15")
        p.e(f"v_and_b32 v13, {M}, v12\nv_lshlrev_b32 v12, 16, v12\nv_and_b32 v15, {M}, v14\nv_lshlrev_b32 v14, 16, v14")
        for i in range(4): p.e(f"v_mul_f32 v{12+i}, v{12+i}, v{8+i}")
        p.e("v_cvt_pk_bf16_f32 v12, v12, v13\nv_cvt_pk_bf16_f32 v14, v14, v15")
        p.e(f"v_and_b32 v13, {M}, v12\nv_lshlrev_b32 v12, 16, v12\nv_and_b32 v15, {M}, v14\nv_lshlrev_b32 v14, 16, v14")
        for i in range(4): p.e(f"v_add_f32 v{20+4*u+i}, v{4+i}, v{12+i}")
    for k in range(22):
        if k + NA - 1 == 7: p.e(ldy)
        if k + NA - 1 == 8:
            p.extend(retry(c, ldy, tagcheck([19])))
            ts(p)
        if k + NA - 1 < 22: aload(k + NA - 1)
        if k < 2: bload(10 + k)
        elif k + NRES - 2 < 22: bload(k + NRES - 2)
        if k == 12: epi_loads()
        if 17 <= k < 22: epi_pre(k - 17)
        a = AB + (k % NA) * 16; b = (k % NRES) * 20
        for rt in range(4):
            for ct in range(5):
                d = ACC + 4 * (5 * rt + ct)
                p.e(f"v_mfma_f32_16x16x32_bf16 {V(d,4)}, {A(b+4*ct,4)}, {V(a+4*rt,4)}, {'0' if k == 0 else V(d,4)}")
    ts(p)
    p.e(f"v_and_b32 v4, 15, v1\nv_mul_u32_u24 v4, 336, v4\nv_lshrrev_b32 v5, 4, v1\nv_lshl_add_u32 v4, v5, 4, v4\ns_mul_i32 s44, s{sW}, 21504\nv_add_u32 v4, s44, v4")
    for rt in range(4):
        for ct in range(5):
            p.e(f"ds_write_b128 v4, {V(ACC+4*(5*rt+ct),4)} offset:{rt*16*336 + ct*64}", tag='pw')
    p.wait_lgkm('pw')
    p.e("s_barrier")
    for u in range(5):
        for w in range(4): p.e(f"ds_read_b128 {V(AB+16*u+4*w,4)}, v{EL+u} offset:{w*21504}")
    for u in range(5):
        R = AB + 16 * u
        for i in range(4): p.e(f"v_add_f32 v{R+i}, v{R+i}, v{R+4+i}\nv_add_f32 v{R+8+i}, v{R+8+i}, v{R+12+i}")
        for i in range(4): p.e(f"v_add_f32 v{R+i}, v{R+i}, v{20+4*u+i}")
        for i in range(4): p.e(f"v_add_f32 v{R+i}, v{R+i}, v{R+8+i}")
        p.e(f"buffer_store_dwordx4 {V(R,4)}, v{EO+u}, {S(S_W3)}, s61 offen")
    ts(p)

HEADER = open('parallel_sum__ssm_conv_s5__glu_gated_swiglu__prompt.s.ref').read().split('; Override launch')[0]

def build(opt):
    ph = Prog(); setup(ph, opt)
    ph.e(f"s_bitcmp1_b32 s{sSL}, 0\ns_cbranch_scc1 K_Y")
    body = ph.finalize() + "\n"
    sx = [it for it in ph.items if isinstance(it, I) and it.tag == 'sx']
    for typ, fn in (('X', k1_X), ('Y', k1_Y)):
        c = Ctx(typ, opt)
        p = Prog()
        if typ == 'Y': p.e("K_Y:")
        p.add(Marker('assume_vm', sx))
        if c.ts.on: p.e('v_mov_b32 v215, 0')
        c.ts(p, True); c.ts(p)
        fn(p, c)
        k2(p, c)
        if c.ts.on:
            p.wait_all(); c.ts(p, True); c.ts.dump(p)
        p.e("s_endpgm")
        st = {}
        body += p.finalize(st) + "\n" + "\n".join(c.slow) + "\n"
        print(typ, st, file=sys.stderr)
    body += "K_end:\n  s_endpgm\n"
    k = NAME + "_kernel"
    s = HEADER + "; @launch grid=(256,1,1) block=(256,1,1) lds=163840\n"
    s += f'.amdgcn_target "amdgcn-amd-amdhsa--gfx950"\n.text\n.globl {k}\n.p2align 8\n.type {k},@function\n{k}:\n{body}'
    s += '.section .rodata,"a"\n' + kd(k, 512, 102, 256)
    return s

if __name__ == '__main__':
    opt = {}
    for a in sys.argv[2:]:
        k, v = a.split('='); opt[k] = int(v)
    open(sys.argv[1], 'w').write(build(opt))
```

```python
from asmgen import I, Marker, Prog
class Gate:
    def __init__(self, k): self.k = k
class Deadline:
    def __init__(self, k): self.k = k

class Group:
    def __init__(self, its): self.its = its
def autogroup(side):
    out = []; i = 0
    rd = lambda x: isinstance(x, I) and x.op.startswith(('s_cselect', 's_addc', 's_subb', 's_cbranch_scc'))
    while i < len(side):
        x = side[i]
        if isinstance(x, I) and x.kind == 'salu' and i + 1 < len(side) and rd(side[i + 1]):
            j = i + 1
            while j < len(side) and rd(side[j]): j += 1
            if side[j - 1].op.startswith('s_cbranch'): j += 1
            out.append(Group(side[i:j])); i = j
        elif isinstance(x, I) and x.op.startswith('s_cbranch'):
            assert side[i + 1].kind == 'label'
            out.append(Group(side[i:i + 2])); i += 2
        elif isinstance(x, I) and ('x', 'm0') in x.defs:
            j = i + 1
            while not (isinstance(side[j], I) and side[j].kind == 'vm'): j += 1
            out.append(Group(side[i:j + 1])); i = j + 1
        else:
            out.append(x); i += 1
    return out
def cost(it):
    if isinstance(it, Group): return sum(cost(x) for x in it.its)
    if isinstance(it, (Gate, Deadline)): return 0
    if isinstance(it, Marker): return 0.5
    if it.kind == 'trans': return 2
    if it.kind in ('label', 'dir'): return 0
    return 1

class Fifo:
    def __init__(self, items, base_rate=0.0, rate_after=None):
        self.side = autogroup(list(items)); self.pos = 0; self.credit = 0.0; self.base = base_rate; self.after = rate_after

def weave(p, steps, side, base_rate=0.0, tail_flush=True, rate_after=None, extra=()):
    fifos = [Fifo(x) for x in extra] + [Fifo(side, base_rate, rate_after)]
    def put(it):
        if isinstance(it, Group): p.extend(it.its)
        else: p.add(it)
    ngap = [len(s['mf']) for s in steps]
    def flush_until_deadline(f, k):
        last = -1
        for i in range(f.pos, len(f.side)):
            if isinstance(f.side[i], Deadline) and f.side[i].k <= k: last = i
        while f.pos <= last:
            it = f.side[f.pos]; f.pos += 1
            if isinstance(it, Gate): assert it.k < k or (it.k == k and f.pos > last), f"gate {it.k} before deadline {k}"
            if not isinstance(it, (Gate, Deadline)): put(it)
    for si, s in enumerate(steps):
        for f in fifos: flush_until_deadline(f, si)
        p.extend(s.get('pre', []))
        for gi, m in enumerate(s['mf']):
            p.add(m)
            p.extend(s['rd'][gi] if gi < len(s.get('rd', [])) else [])
            isvm = lambda x: any(isinstance(y, I) and y.kind == 'vm' for y in (x.its if isinstance(x, Group) else [x]))
            hasvm = any(isvm(x) for x in (s['rd'][gi] if gi < len(s.get('rd', [])) else []))
            for f in fifos:
                rate = f.base if (f.after is None or si < f.after[0]) else f.after[1]
                acc = 0.0
                start = si
                for i in range(f.pos, len(f.side)):
                    it = f.side[i]
                    if isinstance(it, Gate) and it.k > si: break
                    if isinstance(it, Deadline):
                        g = (ngap[si] - gi) + sum(ngap[si + 1:min(it.k, len(steps))])
                        if g > 0: rate = max(rate, acc / g)
                    acc += cost(it)
                f.credit = min(f.credit + rate, rate + 2)
                while f.pos < len(f.side) and f.credit >= 0.5:
                    it = f.side[f.pos]
                    if isinstance(it, Gate):
                        if it.k > si: f.credit = 0; break
                        f.pos += 1; continue
                    if isinstance(it, Deadline): f.pos += 1; continue
                    if isvm(it):
                        if hasvm: break
                        hasvm = True
                    put(it); f.credit -= cost(it); f.pos += 1
    for f in fifos[:-1]:
        assert all(isinstance(it, (Gate, Deadline)) for it in f.side[f.pos:]), "extra fifo not drained"
    f = fifos[-1]
    rest = [it for it in f.side[f.pos:] if not isinstance(it, (Gate, Deadline))]
    if tail_flush:
        for it in rest: put(it)
        return []
    return [x for it in rest for x in (it.its if isinstance(it, Group) else [it])]
```

```python
import sys, struct
from asmgen import Prog, I, Marker
from sched import weave, Gate, Deadline, Group, autogroup
from common import kd

NAME = "parallel_sum__ssm_conv_s5__glu_gated_swiglu__prompt"
H_OFF = 0
W2S_OFF = 32 * 88 * 4096
ST_OFF = W2S_OFF + 8 * 88 * 5120
AGG_OFF = ST_OFF + 32768
CS_OFF = AGG_OFF + 8 * 32 * 1280
HF_OFF = CS_OFF + 32 * 12800
WF_OFF = HF_OFF + 256 * 128
PX_OFF = WF_OFF + 128 * 128
WS_USED = PX_OFF + 256 * 7 * 4096
TS_OFF = 24 << 20
LOG2E, NLOG2E, INV2PI, OOB = 0x3fb8aa3b, 0xbfb8aa3b, 0x3e22f983, 0x7f000000
def f2u(x): return struct.unpack('<I', struct.pack('<f', x))[0]

S_X, S_W1, S_W3, S_B, S_WS, S_J0, S_J1, S_DBG, S_AG = 4, 8, 12, 16, 20, 24, 28, 32, 36
sMT, sSL, sW, sI, sT0, sT1, sT2, sT3 = 40, 41, 42, 43, 44, 45, 46, 47
sXR = 48
sMASK, sFL, sLB, sD0, sD1, sH, sLBS, sBT = 52, 53, 54, 55, 56, 57, 58, 59
P_X, P_LRE, P_LIM, P_BRE, P_BIM, P_CRE, P_CIM, P_LDT, P_D, P_BX, P_W1, P_W3, P_W2, P_OUT, P_DBG, P_WS = [64 + 2 * i for i in range(16)]
sKX, sKB, sDB, sROT, sU0, sU1 = 96, 97, 98, 99, 100, 101
sSP = 89
sU2, sU3 = 82, 83
sN = 92

OPT = {}
def NT(k): return ' nt' if OPT.get(k) else ''
def S(d): return f"s[{d}:{d+3}]"
def V(a, n=1): return f"v[{a}:{a+n-1}]" if n > 1 else f"v{a}"
def A(a, n=1): return f"a[{a}:{a+n-1}]" if n > 1 else f"a{a}"
QP = "quad_perm:[1,0,3,2] row_mask:0xf bank_mask:0xf"
def items(f, *a):
    q = Prog(); f(q, *a); return q.items
def code(text, tag=None):
    q = Prog(); q.e(text, tag); return q.items

def srd(p, d, ptr, nrec, add=0):
    if add == 0: p.e(f"s_mov_b32 s{d}, s{ptr}\ns_mov_b32 s{d+1}, s{ptr+1}")
    elif add > 0: p.e(f"s_add_u32 s{d}, s{ptr}, {add}\ns_addc_u32 s{d+1}, s{ptr+1}, 0")
    else: p.e(f"s_sub_u32 s{d}, s{ptr}, {-add}\ns_subb_u32 s{d+1}, s{ptr+1}, 0")
    p.e(f"s_mov_b32 s{d+2}, {nrec}\ns_mov_b32 s{d+3}, 0x20000")

class Stamper:
    def __init__(self, on): self.on = on; self.n = 0
    def it(self, real=False):
        if not self.on: return []
        if OPT.get('rt') == 1: real = True
        if OPT.get('rt') == 2:
            n = self.n; self.n += 2
            return code(f"s_memrealtime s[0:1]\ns_memtime s[2:3]\ns_waitcnt lgkmcnt(0)\nv_writelane_b32 v251, s0, {n}\nv_writelane_b32 v251, s2, {n+1}")
        n = self.n; self.n += 1
        return code(f"{'s_memrealtime' if real else 's_memtime'} s[0:1]\ns_waitcnt lgkmcnt(0)\nv_writelane_b32 v251, s0, {n}")
    def __call__(self, p, real=False): p.extend(self.it(real))
    def dump(self, p):
        if not self.on: return
        p.wait_all()
        srd(p, 4, P_WS, TS_OFF + (1 << 20))
        p.e(f"v_lshlrev_b32 v3, 2, v1\ns_lshl_b32 s3, s93, 2\ns_add_u32 s3, s3, s{sW}\ns_lshl_b32 s3, s3, 8\ns_add_u32 s3, s3, {TS_OFF}")
        p.e("buffer_store_dword v251, v3, s[4:7], s3 offen")

class LazyStamp:
    def __init__(self, ts): self.ts = ts
def resolve(steps):
    for st in steps:
        out = []
        for it in st['pre']:
            out += it.ts.it() if isinstance(it, LazyStamp) else [it]
        st['pre'] = out
vL = 1
vXD, vXC = 2, 4
vSR = 6
vD, vDS, vDC = 10, 12, 13
vBR, vT, vTW, vH = 14, 18, 22, 23
vONE, vEX = 24, 28
vTMP = 32
ACC1, ACC2, CSA, TMP = 40, 120, 184, 200
vFZ, vPA, vPV, vPT, vC1, vC2, vL16, vZ = 208, 209, 39, 211, 212, 213, 38, 210
RT = 216
C0 = 232
XF, BF, EXTW, CSF = 0, 160, 220, 240
t0, t1, t2, t3, t4, t5 = range(vTMP, vTMP + 6)

XS = 0
X_JOB, X_RING, X_NS, X_SLOT = 49152, 81920, 5, 16384
Y_TBL, Y_RING, Y_NS, Y_SLOT = 49152, 57344, 5, 20480
EXT_L = XS + 16384
AG_L = XS
HT2_L = 0

class Ctx:
    def __init__(self, typ, opt):
        self.typ = typ; self.opt = opt; self.slow = []; self.npoll = 0
        self.ts = Stamper(opt.get('ts'))

def bf16r(p, v): p.e(f"v_cvt_pk_bf16_f32 v{v}, v{v}, v{v}\nv_and_b32 v{v}, s{sMASK}, v{v}")

def retry(c, loads, check):
    k = c.npoll; c.npoll += 1
    L = f"{c.typ}_poll{k}"
    q = Prog()
    q.e(f"{L}_slow:\ns_mov_b32 s{sSP}, 0x40000\n{L}_lp:\ns_sleep {OPT.get('sleep', 4)}")
    q.e(loads + "\ns_waitcnt vmcnt(0)\n" + check)
    q.e(f"s_cbranch_vccz {L}_ret\ns_sub_u32 s{sSP}, s{sSP}, 1\ns_cmp_lg_u32 s{sSP}, 0\ns_cbranch_scc1 {L}_lp\ns_branch {L}_ret")
    c.slow.append(q.finalize())
    if OPT.get('nospin') and 'v211' not in check: return code(check + f"\n{L}_ret:")
    return code(check + f"\ns_cbranch_vccnz {L}_slow\n{L}_ret:")
def retry2(c, loads, regs, tmp, sp):
    k = c.npoll; c.npoll += 1
    L = f"{c.typ}_poll{k}"
    chk = f"v_xor_b32 v{tmp}, s{sN}, v{regs[0]}\n" + "".join(f"v_bitop3_b32 v{tmp}, v{tmp}, v{r}, s{sN} bitop3:0xf6\n" for r in regs[1:]) + f"v_cmp_ne_u32 s[{sp}:{sp+1}], 0, v{tmp}\ns_cmp_lg_u64 s[{sp}:{sp+1}], 0"
    q = Prog()
    q.e(f"{L}_slow:\ns_mov_b32 s{sSP}, 0x40000\n{L}_lp:\ns_sleep {OPT.get('sleep', 4)}")
    q.e(loads + "\ns_waitcnt vmcnt(0)\n" + chk)
    q.e(f"s_cbranch_scc0 {L}_ret\ns_sub_u32 s{sSP}, s{sSP}, 1\ns_cmp_lg_u32 s{sSP}, 0\ns_cbranch_scc1 {L}_lp\ns_branch {L}_ret")
    c.slow.append(q.finalize())
    if OPT.get('nospin'): return code(chk + f"\n{L}_ret:")
    return code(chk + f"\ns_cbranch_scc1 {L}_slow\n{L}_ret:")
def tagcheck(regs):
    t = f"v_xor_b32 v{vPV}, s{sN}, v{regs[0]}\n"
    for r in regs[1:]: t += f"v_bitop3_b32 v{vPV}, v{vPV}, v{r}, s{sN} bitop3:0xf6\n"
    return t + f"v_cmp_ne_u32 vcc, 0, v{vPV}"
NONCE_LD = lambda: f"buffer_load_dword v{vPT}, v{vZ}, {S(S_DBG)}, 0 offen sc1"
def nonce_get(c):
    return retry(c, NONCE_LD(), f"v_cmp_eq_u32 vcc, 0, v{vPT}") + code(f"v_readfirstlane_b32 s{sN}, v{vPT}")
def flag(soff):
    return code(f"buffer_store_dword v{vPT}, v{vFZ}, {S(S_WS)}, {soff} offen sc1", 'flag')

def nextkb(s, unit):
    return f"s_add_u32 s{s}, s{s}, {unit}\ns_cmp_eq_u32 s{s}, {10*unit}\ns_cselect_b32 s{s}, 0, s{s}"

def setup(p, opt):
    p.e("s_cmp_ge_u32 s2, 256\ns_cbranch_scc1 K_end")
    p.e("s_load_dwordx16 s[64:79], s[0:1], 0\ns_load_dwordx16 s[80:95], s[0:1], 64")
    p.e(f"v_and_b32 v{vL}, 63, v0\nv_lshrrev_b32 v{t0}, 6, v0\nv_lshlrev_b32 v{vL16}, 4, v{vL}")
    p.e(f"v_readfirstlane_b32 s{sW}, v{t0}")
    p.e(f"s_and_b32 s{sMT}, s2, 3\ns_lshl_b32 s{sMT}, s{sMT}, 2\ns_bfe_u32 s{sT0}, s2, 0x20003\ns_add_u32 s{sMT}, s{sMT}, s{sT0}")
    p.e(f"s_and_b32 s{sSL}, s2, 4\ns_lshl_b32 s{sSL}, s{sSL}, 1\ns_lshr_b32 s{sT0}, s2, 5\ns_add_u32 s{sSL}, s{sSL}, s{sT0}\ns_lshr_b32 s{sI}, s{sSL}, 1")
    p.e(f"s_add_u32 s{sROT}, s{sMT}, s{sT0}\ns_cmp_ge_u32 s{sROT}, 10\ns_cselect_b32 s{sT1}, 10, 0\ns_sub_u32 s{sROT}, s{sROT}, s{sT1}")
    p.e(f"s_cmp_ge_u32 s{sROT}, 10\ns_cselect_b32 s{sT1}, 10, 0\ns_sub_u32 s{sROT}, s{sROT}, s{sT1}")
    p.e(f"s_lshl_b32 s{sKX}, s{sROT}, 7\ns_mov_b32 s{sKB}, s{sROT}\ns_mov_b32 s{sMASK}, 0xffff0000")
    p.e(f"s_lshl_b32 s{sFL}, s{sMT}, 4\ns_add_u32 s{sFL}, s{sFL}, s{sSL}\ns_lshl_b32 s{sFL}, s{sFL}, 7\ns_add_u32 s{sFL}, s{sFL}, {HF_OFF}")
    p.e(f"s_lshl_b32 s{sT0}, s{sMT}, 7\ns_lshl_b32 s{sT1}, s{sW}, 5\ns_add_u32 s{sT1}, s{sT0}, s{sT1}\ns_mul_i32 s{sXR}, s{sT1}, 1280")
    for i in range(1, 4): p.e(f"s_add_u32 s{sXR+i}, s{sXR}, {(8*1280-1024)*i}")
    p.e(f"s_lshl_b32 s{sLB}, s{sW}, 12")
    p.e(f"s_lshl_b32 s{sT1}, s{sSL}, 3\ns_add_u32 s{sT0}, s{sT0}, s{sT1}\ns_lshl_b32 s{sT1}, s{sW}, 1\ns_add_u32 s{sT0}, s{sT0}, s{sT1}")
    p.e(f"s_mul_i32 s{sU0}, s{sT0}, 1280\ns_lshl_b32 s{sU1}, s{sT0}, 4\ns_add_u32 s{sU1}, s{sU1}, {ST_OFF}")
    p.e(f"v_lshrrev_b32 v{t0}, 3, v{vL}\nv_and_b32 v{t1}, 7, v{vL}")
    p.e(f"v_lshrrev_b32 v{t2}, 5, v{vL}\nv_mul_u32_u24 v{t2}, 1280, v{t2}\nv_and_b32 v{t3}, 31, v{vL}\nv_lshl_add_u32 v{t4}, v{t3}, 3, v{t2}")
    p.e(f"v_lshrrev_b32 v{t2}, 4, v{vL}\nv_xor_b32 v{t2}, v{t1}, v{t2}\nv_lshlrev_b32 v{t2}, 4, v{t2}\nv_mul_u32_u24 v{t3}, 1280, v{t0}")
    p.e(f"v_add_u32 v{vXD}, v{t2}, v{t3}\nv_xor_b32 v{vXD+1}, 64, v{vXD}")
    p.e(f"v_mov_b32 v{vZ}, 0\nv_mov_b32 v{t2}, {OOB}\nv_cmp_eq_u32 vcc, 0, v0\nv_cndmask_b32 v{vFZ}, v{t2}, v0, vcc")
    p.e("s_cmp_lg_u32 s2, 0\ns_cbranch_scc1 K_nz\ns_memrealtime s[4:5]\nK_nz:")
    p.e("s_waitcnt lgkmcnt(0)")
    srd(p, S_DBG, P_DBG, 256)
    p.e(f"s_cmp_lg_u32 s2, 0\ns_cbranch_scc1 K_nz2\ns_or_b32 s4, s4, 1\nv_mov_b32 v{vPT}, s4\nbuffer_store_dword v{vPT}, v{vFZ}, {S(S_DBG)}, 0 offen sc1\ns_waitcnt vmcnt(0)\nK_nz2:")
    p.forget()
    srd(p, S_X, P_X, 2048 * 1280)
    if opt.get('cpf', 1):
        p.e(f"s_getpc_b64 s[24:25]\nK_pc:\ns_bitcmp1_b32 s{sSL}, 0\ns_cselect_b32 s26, K_Y-K_pc, 0\ns_add_u32 s24, s24, s26\ns_addc_u32 s25, s25, 0\ns_mov_b32 s26, CODE_BYTES\ns_mov_b32 s27, 0x20000")
        p.e(f"s_and_b32 s28, s{sMT}, {opt.get('cpfm', 3)}\ns_cmp_eq_u32 s28, 0\ns_cselect_b32 s28, 0, {OOB}\nv_lshlrev_b32 v{t5}, 7, v0\nv_add_u32 v{t5}, s28, v{t5}")
        p.e(f"buffer_load_dword v{t3}, v{t5}, s[24:27], 0 offen", tag='sx')
    for i in range(5):
        p.e(f"buffer_load_dwordx2 {V(RT+2*i,2)}, v{t4}, {S(S_X)}, s{sU0} offen offset:{256*i}", tag='sx')

def x_dma(j):
    q = Prog()
    q.wait_lgkm(('xr', j - 3))
    q.e(f"v_add_u32 v{vXC}, s{sKX}, v{vXD}\nv_add_u32 v{vXC+1}, s{sKX}, v{vXD+1}\ns_add_u32 m0, s{sLB}, {XS + (j % 3) * 16384}")
    for i in range(4):
        q.e(f"buffer_load_dwordx4 v{vXC+(i&1)}, {S(S_X)}, s{sXR+i} offen offset:{1024*i}{NT('ntx')} lds", tag=('x', j))
    q.e(nextkb(sKX, 128))
    return q.items
def x_read(j):
    q = Prog(); q.wait_vm(('x', j))
    for s in range(4): q.e(f"ds_read_b128 {A(XF+16*j+4*s,4)}, v{vSR+s} offset:{(j % 3) * 16384}", ('xr', j))
    return q.items

def ffn_dma(base, j):
    q = Prog()
    q.e(f"s_mul_i32 s{sD0}, s{sKB}, {64*3072}\ns_add_u32 s{sD0}, s{sD0}, s{sDB}\ns_add_u32 s{sD1}, s{sD0}, {8*3072-2048}\ns_add_u32 m0, s{sLB}, {base}")
    q.e(f"buffer_load_dwordx4 v{vD}, {S(S_W1)}, s{sD0} offen{NT('ntw')} lds", tag=('slot', j))
    q.e(f"buffer_load_dwordx4 v{vD+1}, {S(S_W3)}, s{sD0} offen offset:1024{NT('ntw')} lds", tag=('slot', j))
    q.e(f"buffer_load_dwordx4 v{vD}, {S(S_W1)}, s{sD1} offen offset:2048{NT('ntw')} lds", tag=('slot', j))
    q.e(f"buffer_load_dwordx4 v{vD+1}, {S(S_W3)}, s{sD1} offen offset:3072{NT('ntw')} lds", tag=('slot', j))
    q.e(nextkb(sKB, 1))
    return q.items
def ssm_dma(base, j):
    q = Prog()
    q.e(f"s_lshl_b32 s{sD0}, s{sKB}, 7\nv_add_u32 v{vDC}, s{sD0}, v{vDS}\ns_add_u32 m0, s{sLBS}, {base}")
    for t in range(4):
        q.e(f"buffer_load_dwordx4 v{vDC}, {S(S_B)}, s{sBT+t} offen offset:{1024*t}{NT('ntw')} lds", tag=('slot', j))
    q.e(f"s_add_u32 m0, s{sLBS}, {base + 4096}")
    q.e(f"buffer_load_dwordx4 v{vDC}, {S(S_B)}, s{sBT+4} offen{NT('ntw')} lds", tag=('slot', j))
    q.e(nextkb(sKB, 1))
    return q.items

def ffn_dma_addr(p):
    p.e(f"v_bfe_u32 v{t2}, v{vL}, 4, 1\nv_lshlrev_b32 v{t2}, 1, v{t2}\nv_xor_b32 v{t2}, v{t1}, v{t2}\nv_lshlrev_b32 v{t2}, 4, v{t2}")
    p.e(f"v_mul_u32_u24 v{t3}, 3072, v{t0}\nv_add_u32 v{vD}, v{t2}, v{t3}\nv_xor_b32 v{vD+1}, 64, v{vD}")
    srd(p, S_W1, P_W1, 640 * 3072)
    srd(p, S_W3, P_W3, 640 * 3072 + 1024, -1024)

def common_addr(p):
    p.e(f"v_bfe_u32 v{t2}, v{vL}, 2, 1\nv_lshlrev_b32 v{t2}, 4, v{t2}\nv_bfe_u32 v{t3}, v{vL}, 3, 2\nv_lshl_add_u32 v{t2}, v{t3}, 2, v{t2}")
    p.e(f"v_and_b32 v{t3}, 3, v{vL}\nv_add_u32 v{t2}, v{t2}, v{t3}\nv_lshlrev_b32 v{vC1}, 4, v{t2}")
    p.e(f"v_bfe_u32 v{t3}, v{t2}, 1, 3\nv_lshrrev_b32 v{vSR}, 5, v{vL}\nv_xor_b32 v{t3}, v{t3}, v{vSR}\nv_lshlrev_b32 v{t3}, 4, v{t3}")
    p.e(f"v_lshl_add_u32 v{t3}, v{t2}, 7, v{t3}\nv_add_u32 v{vSR}, s{sLB}, v{t3}")
    for s in range(1, 4): p.e(f"v_xor_b32 v{vSR+s}, {32*s}, v{vSR}")
    p.e(f"v_bfe_u32 v{t2}, v{vL}, 2, 1\nv_lshlrev_b32 v{t2}, 10, v{t2}\nv_bfe_u32 v{t3}, v{vL}, 3, 3\nv_lshl_add_u32 v{t2}, v{t3}, 6, v{t2}")
    p.e(f"v_and_b32 v{t3}, 3, v{vL}\nv_lshl_add_u32 v{vH}, v{t3}, 4, v{t2}")
    for i in range(4): p.e(f"v_mov_b32 v{vONE+i}, 0x3f803f80")
    srd(p, S_WS, P_WS, WS_USED)
    p.e(f"s_lshl_b32 s{sT0}, s{sMT}, 1\ns_lshr_b32 s{sT1}, s{sW}, 1\ns_add_u32 s{sT0}, s{sT0}, s{sT1}\ns_mul_i32 s{sT0}, s{sT0}, 88")
    p.e(f"s_mul_i32 s{sT1}, s{sI}, 11\ns_add_u32 s{sT0}, s{sT0}, s{sT1}\ns_lshl_b32 s{sH}, s{sT0}, 12")
    p.e(f"s_and_b32 s{sT1}, s{sW}, 1\ns_lshl_b32 s{sT1}, s{sT1}, 11\ns_add_u32 s{sH}, s{sH}, s{sT1}")

def tr_addrs(p, base):
    p.e(f"v_bfe_u32 v{t0}, v{vL}, 4, 1\nv_lshrrev_b32 v{t1}, 5, v{vL}\nv_lshlrev_b32 v{t1}, 11, v{t1}\nv_lshl_add_u32 v{t1}, v{t0}, 10, v{t1}")
    p.e(f"v_bfe_u32 v{t2}, v{vL}, 2, 2\nv_lshl_add_u32 v{t1}, v{t2}, 7, v{t1}\nv_and_b32 v{t3}, 3, v{vL}\nv_lshl_add_u32 v{t1}, v{t3}, 3, v{t1}")
    p.e(f"v_bfe_u32 v{t2}, v{vL}, 3, 1\nv_lshl_add_u32 v{t2}, v{t0}, 1, v{t2}\nv_lshl_add_u32 v{t1}, v{t2}, 5, v{t1}")
    p.e(f"v_add_u32 v{vT}, {base}, v{t1}")
    for tau in range(1, 4): p.e(f"v_xor_b32 v{vT+tau}, {32*tau}, v{vT}")

def touch():
    q = Prog()
    q.e(f"v_lshlrev_b32 v{vPA}, 19, v{vL}\nv_min_u32 v{vPA}, {WS_USED - 4}, v{vPA}\nbuffer_load_dword v250, v{vPA}, {S(S_WS)}, 0 offen")
    q.e(f"v_min_u32 v{vPA}, {2048*2560 - 4}, v{vPA}\nglobal_load_dword v250, v{vPA}, s[{P_OUT}:{P_OUT+1}]")
    return q.items

def stats_job(p):
    R = RT; aQ, aS = TMP, TMP + 1
    p.e(f"v_mov_b32 v{aS}, 0\nv_mov_b32 v{aQ}, 0")
    for d in range(10):
        p.e(f"v_dot2c_f32_bf16 v{aS}, v{vONE}, v{R+d}\nv_dot2c_f32_bf16 v{aQ}, v{R+d}, v{R+d}")
    p.e("s_nop 2")
    for perm in ("quad_perm:[1,0,3,2] row_mask:0xf", "quad_perm:[2,3,0,1] row_mask:0xf", "row_half_mirror row_mask:0xf", "row_mirror row_mask:0xf", "row_bcast:15 row_mask:0xa"):
        for r in (aS, aQ): p.e(f"v_add_f32_dpp v{r}, v{r}, v{r} {perm} bank_mask:0xf")
    inv = f2u(1.0 / 640)
    p.e(f"v_mul_f32 v{aS}, {inv}, v{aS}\nv_mul_f32 v{aQ}, {inv}, v{aQ}\nv_fma_f32 v{aQ}, -v{aS}, v{aS}, v{aQ}\nv_max_f32 v{aQ}, 0, v{aQ}")
    p.e(f"v_sub_f32 v{aS}, 0, v{aS}\nv_cvt_pk_bf16_f32 v{aS}, v{aS}, v{aS}")
    bf16r(p, aQ)
    p.e(f"v_add_f32 v{aQ}, {f2u(1e-5)}, v{aQ}")
    bf16r(p, aQ)
    p.e(f"v_sqrt_f32 v{aQ}, v{aQ}")
    bf16r(p, aQ)
    p.e(f"v_rcp_f32 v{aQ}, v{aQ}")
    p.e(f"v_and_b32 v{R}, 31, v{vL}\nv_cmp_eq_u32 vcc, 16, v{R}\nv_lshrrev_b32 v{R}, 1, v{vL}\nv_and_b32 v{R}, 16, v{R}\nv_mov_b32 v{R+1}, {OOB}\nv_cndmask_b32 v{R}, v{R+1}, v{R}, vcc")
def stats_store():
    return code(f"v_mov_b32 v{TMP+2}, s{sN}\nv_mov_b32 v{TMP+3}, s{sN}\nbuffer_store_dwordx4 {V(TMP,4)}, v{RT}, {S(S_WS)}, s{sU1} offen sc1", 'pub')

def cs_store_addr(q, gidexpr):
    q.e(gidexpr)
    q.e(f"s_mul_i32 s{sU3}, s{sT0}, 12800\ns_add_u32 s{sU3}, s{sU3}, {CS_OFF}\ns_mul_i32 s{sT0}, s{sROT}, 1280\ns_add_u32 s{sU2}, s{sU3}, s{sT0}")
    q.e(f"s_lshl_b32 s{sT0}, s{sW}, 8\ns_add_u32 s{sU2}, s{sU2}, s{sT0}\ns_add_u32 s{sU3}, s{sU3}, s{sT0}")
    q.e(f"s_cmp_lt_u32 s{sMT}, 10\ns_cselect_b32 s{sT0}, 32, 0\nv_cmp_gt_u32 vcc, s{sT0}, v{vL}\nv_lshlrev_b32 v{t4}, 3, v{vL}\nv_mov_b32 v{t5}, {OOB}\nv_cndmask_b32 v{t4}, v{t5}, v{t4}, vcc")

def cs_produce_ffn(acc, gidexpr):
    q = Prog()
    q.e(f"s_lshl_b32 s{sT0}, s{sW}, 5\nv_xor_b32 v{vTW}, s{sT0}, v{vT}")
    for s in range(4):
        for t in range(2):
            q.e(f"ds_read_b64_tr_b16 {A(CSF+4*s+2*t,2)}, v{vTW} offset:{s*4096 + t*512}")
    cs_store_addr(q, gidexpr)
    for s in range(4):
        q.e(f"v_mfma_f32_32x32x16_bf16 {V(acc,16)}, {V(vONE,4)}, {A(CSF+4*s,4)}, {'0' if s == 0 else V(acc,16)}")
    st = code(f"v_mov_b32 v{acc+1}, s{sN}\nbuffer_store_dwordx2 {V(acc,2)}, v{t4}, {S(S_WS)}, s{sU2} offen sc1", 'pub')
    return q.items, st

def cs_consume(c, ntile, R0):
    q = Prog()
    q.e(f"v_lshrrev_b32 v{vPA}, 5, v{vL}\nv_mul_u32_u24 v{vPA}, 6400, v{vPA}\nv_and_b32 v{t5}, 31, v{vL}\nv_lshl_add_u32 v{vPA}, v{t5}, 3, v{vPA}")
    q.e(f"s_add_u32 s{sU2}, s{sU3}, 3840")
    rounds = [(R0, 0)]
    ld = ""
    for i in range(5): ld += f"buffer_load_dwordx2 {V(R0+2*i,2)}, v{vPA}, {S(S_WS)}, s{sU3 if i < 3 else sU2} offen offset:{1280*(i%3)} sc1\n"
    if ntile == 5:
        q.e(f"s_lshl_b32 s86, s{sW}, 8\ns_sub_u32 s86, 1024, s86\nv_add_u32 v{vTW}, s86, v{vPA}")
        for i in range(5): ld += f"buffer_load_dwordx2 {V(R0+10+2*i,2)}, v{vTW}, {S(S_WS)}, s{sU3 if i < 3 else sU2} offen offset:{1280*(i%3)} sc1\n"
        rounds.append((R0 + 10, 1))
    q.e(ld)
    a = q.items
    q = Prog()
    q.extend(retry(c, ld, tagcheck([R0 + 1 + 2 * i for i in range(5 * len(rounds))])))
    q.e(f"v_cmp_gt_u32 vcc, 32, v{vL}")
    for (R, which) in rounds:
        q.e(f"v_add_f32 v{R}, v{R}, v{R+2}\nv_add_f32 v{R+4}, v{R+4}, v{R+6}\nv_add_f32 v{R}, v{R}, v{R+8}\nv_add_f32 v{R}, v{R}, v{R+4}")
        q.e(f"v_mov_b32 v{R+1}, v{R}\nv_mov_b32 v{R+6}, 0\nv_mov_b32 v{R+7}, 0\nv_permlane32_swap_b32 v{R}, v{R+1}\nv_add_f32 v{R}, v{R}, v{R+1}\nv_cndmask_b32 v{R}, 0, v{R}, vcc")
        q.e(f"v_cvt_pk_bf16_f32 v{R+1}, v{R}, v{R}\nv_and_b32 v{R+1}, s{sMASK}, v{R+1}\nv_sub_f32 v{R}, v{R}, v{R+1}")
        q.e(f"v_cvt_pk_bf16_f32 v{R+4}, v{R+1}, v{R}\nv_and_b32 v{R+2}, s{sMASK}, v{R+4}\nv_sub_f32 v{R}, v{R}, v{R+2}")
        q.e(f"v_cvt_pk_bf16_f32 v{R+5}, v{R}, 0")
        if which == 0:
            q.e(f"s_lshr_b32 s{sT0}, s{sLB}, 2\nv_add_u32 v{t5}, s{sT0}, v{vL16}")
            q.e(f"ds_write_b128 v{t5}, {V(R+4,4)} offset:{EXT_L}", tag='ext')
        else:
            q.e(f"ds_write_b128 v{vL16}, {V(R+4,4)} offset:{EXT_L + 4096}", tag='ext')
    q.wait_lgkm('ext')
    return a, q.items
def ext_read(ntile):
    return code("\n".join(f"ds_read_b128 {A(EXTW+4*t,4)}, v{vL16} offset:{EXT_L + 1024*t}" for t in range(ntile)))

def stats_consume(c):
    q = Prog()
    q.e(f"s_lshl_b32 s87, s{sMT}, 11\ns_lshl_b32 s86, s{sW}, 9\ns_add_u32 s87, s87, s86\ns_add_u32 s{sU0}, s87, {ST_OFF}")
    ld = f"buffer_load_dwordx4 {V(vEX,4)}, v{vC1}, {S(S_WS)}, s{sU0} offen sc1"
    q.e(ld)
    a = q.items
    q = Prog()
    q.extend(retry(c, ld, tagcheck([vEX + 2, vEX + 3])))
    if c.typ == 'Y':
        q.e(f"s_lshl_b32 s{sT0}, s{sW}, 7\ns_add_u32 s{sT0}, s{sT0}, 159744")
        q.e(f"v_lshrrev_b32 v{t3}, 2, v{vC1}\nv_add_u32 v{t3}, s{sT0}, v{t3}\nds_write_b32 v{t3}, v{vEX}")
        q.e(f"v_lshrrev_b32 v{t2}, 5, v{vL}\nv_lshlrev_b32 v{t2}, 6, v{t2}\nv_add_u32 v{t2}, s{sT0}, v{t2}")
        for i in range(4): q.e(f"ds_read_b128 {V(RT+4*i,4)}, v{t2} offset:{16*i}")
    q.e(f"v_mul_f32 v{vC1}, {NLOG2E}, v{vEX}\nv_rcp_f32 v{vC2}, v{vEX}\nv_mov_b32 v{vEX}, v{vEX+1}\nv_mov_b32 v{vEX+2}, v{vEX+1}\nv_mov_b32 v{vEX+3}, v{vEX+1}")
    q.e(f"v_mul_f32 v{vC2}, v{vC2}, v{vC2}")
    return a, q.items

def ffn_epi(acc, pos, imm):
    p = Prog(); tmp = TMP
    for r in range(8): p.e(f"v_mul_f32 v{tmp+r}, v{vC1}, v{acc+r}")
    for r in range(8): p.e(f"v_exp_f32 v{tmp+r}, v{tmp+r}\nv_mul_f32 v{acc+r}, v{acc+r}, v{acc+8+r}")
    for r in range(8): p.e(f"v_fma_f32 v{tmp+r}, v{tmp+r}, v{vC2}, v{vC2}")
    for r in range(8): p.e(f"v_rcp_f32 v{tmp+r}, v{tmp+r}")
    p.e(f"s_add_u32 s{sT2}, s{sH}, {pos*4096}")
    for r in range(8): p.e(f"v_mul_f32 v{acc+r}, v{acc+r}, v{tmp+r}")
    for r in range(4): p.e(f"v_cvt_pk_bf16_f32 v{acc+8+r}, v{acc+2*r}, v{acc+2*r+1}")
    p.e(f"buffer_store_dwordx4 {V(acc+8,4)}, v{vH}, {S(S_WS)}, s{sT2} offen offset:{imm} sc1", tag='h')
    if OPT.get('dual'): p.e(f"buffer_store_dwordx4 {V(acc+8,4)}, v{vH}, {S(S_WS)}, s{sT2} offen offset:{imm}", tag='h')
    return p.items

class Ring:
    def __init__(self, reg, n, cur): self.reg = reg; self.n = n; self.cur = cur
    def off(self, base, span, out):
        if base < self.cur or base + span - self.cur > 65536:
            out += code("\n".join(f"v_add_u32 v{self.reg+i}, {(base - self.cur) & 0xffffffff}, v{self.reg+i}" for i in range(self.n)))
            self.cur = base
        return base - self.cur

def build_steps(c, kinds, slot_base, dma, NS, rT, rB, pre_extra, late):
    steps = []
    TMB = OPT.get('tmb', 3); TM0 = 80 - 4 * TMB
    reads = []
    for n in range(80):
        j, s = divmod(n, 4); buf = BF + (n % 3) * 20 if kinds[j] == 'S' else (160, 180, 196)[n % 3]
        base = slot_base(j)
        rd = []
        if kinds[j] == 'F':
            acc = ACC1 if (j < 10) else ACC2
            mf = []
            for e in range(4):
                tau, jj, ss = e, j, s
                if n >= TM0: tau, jj, ss = (n - TM0) // TMB, 20 - TMB + (n - TM0) % TMB, e
                o = []
                off = rT.off(slot_base(jj), 16384, o)
                o += code("\n".join(f"ds_read_b64_tr_b16 {A(buf+4*e+2*t,2)}, v{vT+tau} offset:{off + ss*4096 + t*512}" for t in range(2)), ('rd', n))
                rd.append(o)
                cc = "0" if n % 40 == 0 else V(acc + 16 * tau, 16)
                mf += code(f"v_mfma_f32_32x32x16_bf16 {V(acc+16*tau,16)}, {A(buf+4*e,4)}, {A(XF+4*((4*jj+ss)%40),4)}, {cc}")
        else:
            mf = []
            for t in range(5):
                o = []
                off = rB.off(base, 20480, o)
                o += code(f"ds_read_b128 {A(buf+4*t,4)}, v{vBR+s} offset:{off + 1024*t}", ('rd', n))
                rd.append(o)
                cc = "0" if n == 0 else V(ACC1 + 16 * t, 16)
                mf += code(f"v_mfma_f32_32x32x16_bf16 {V(ACC1+16*t,16)}, {A(XF+4*n,4)}, {A(buf+4*t,4)}, {cc}")
        reads.append(rd)
        steps.append(dict(pre=[], mf=mf, rd=[[] for _ in mf]))
    for n in range(80):
        st = steps[n]; j, s = divmod(n, 4)
        if c.opt.get('st0') is not None: st['pre'] += code(f'.set STEPMARK{c.typ}{n}, 0')
        if c.opt.get('ts') == 2 and s == 0: st['pre'] += [LazyStamp(c.ts)]
        st['pre'] += [Marker('lgkm', ('rd', n))]
        syncs = [j + 1] if (s == 2 and j + 1 <= 20 - TMB) else []
        if n == TM0 - 1: syncs = list(range(21 - TMB, 20))
        if syncs:
            sy = [x for k in syncs for x in pre_extra.get(('sync', k), []) + [Marker('vm', ('slot', k))]] + code("s_barrier") + [x for k in syncs for x in pre_extra.get(('post', k), [])]
            st['rd'][0] += sy
        if n + 2 < 80:
            src = reads[n + 2]; g = len(st['mf'])
            st['rd'][min(len(src), g) - 1] += [Marker('lgkm', ('rd', n + 1))]
            for i, o in enumerate(src): st['rd'][min(i, g - 1)] += o
        if s == 1 and j + 1 < 10:
            st['rd'][0] += x_read(j + 1)
    for tau in range(4):
        st = steps[TM0 + TMB * tau + TMB - 1]
        st['mf'] += code(f"v_mfma_f32_32x32x16_bf16 {V(ACC2+16*tau,16)}, {A(EXTW+4*tau,4)}, {V(vEX,4)}, {V(ACC2+16*tau,16)}"); st['rd'] += [[]]
    c.TM0, c.TMB = TM0, TMB
    va = VmAlloc(steps); c.va = va
    LR, LX = OPT.get('leadr', 7), OPT.get('leadx', 5)
    va.place(0, dma(3), by=10 - LR); va.place(0, x_dma(3), by=9 - LX)
    va.place(3, x_dma(4), by=13 - LX); va.place(3, dma(4), by=14 - LR)
    for j in range(1, 20):
        if j - 1 + NS < 20: va.place(4 * j + 2, dma(j - 1 + NS), by=4 * (j - 2 + NS) + 2 - LR)
        if j + 4 < 10: va.place(4 * j + 3, x_dma(j + 4), by=4 * (j + 3) + 1 - LX)
        for its in late.get(j, []): va.place(4 * j + 3, its)
    if OPT.get('vlog'): print(va.log, file=sys.stderr)
    return steps, reads[0], reads[1]

class VmAlloc:
    def __init__(self, steps):
        self.steps = steps; self.used = set(); self.dma_next = 0; self.log = []; self.b_next = 0; self.iv = []
        self.gaps = [(n, g) for n, st in enumerate(steps) for g in range(len(st['mf']))]
        self.first = {}
        for i, (n, g) in enumerate(self.gaps): self.first.setdefault(n, i)
    def place(self, n, its, dma=True, stride=None, by=None):
        stride = stride or OPT.get('vstride', 2)
        groups, cur = [], []
        for it in its:
            cur.append(it)
            if isinstance(it, I) and it.kind == 'vm': groups.append(cur); cur = []
        if cur: groups[-1] += cur
        i0 = self.first[n]
        if dma == 'b': i0 = max(i0, self.b_next)
        elif dma is True: i0 = max(i0, self.dma_next)
        inside = (lambda i: any(a < i < b for a, b in self.iv)) if dma == 'l' else (lambda i: False)
        if dma == 'l': i0 = max(i0, self.b_next)
        for st_ in range(stride, 0, -1):
            i = i0; pos = []; used = set(self.used)
            for grp in groups:
                while inside(i) or any((i + d) in used for d in range(-st_ + 1, st_)): i += 1
                pos.append(i); used.add(i)
            if by is None or i < self.first[max(by, 0)] or st_ == 1: break
        if i >= len(self.gaps): return False
        for grp, k in zip(groups, pos):
            a, b = self.gaps[k]
            self.steps[a]['rd'][b] += grp; self.used.add(k)
        self.log.append((n, by, self.gaps[pos[0]], self.gaps[pos[-1]]))
        if dma in ('b', 'l'): self.b_next = i + 1
        elif dma: self.dma_next = i + 1; self.iv.append((pos[0], pos[-1]))
        return True

def flat(rd): return [x for o in rd for x in o]

sJW, sJ0, sJ1, sJ2, sJ3, sJ4 = 16, 17, 18, 19, sLBS, sBT
def lam_consts(q, L, pows, coef):
    lr, li, ld, a2, rev, O, u = L + 1, L + 2, L + 3, L + 4, L + 5, L + 8, L + 16
    q.e(f"v_lshlrev_b32 v{lr}, 16, v{lr}\nv_lshlrev_b32 v{li}, 16, v{li}\nv_lshlrev_b32 v{ld}, 16, v{ld}")
    q.e(f"v_mul_f32 v{ld}, {LOG2E}, v{ld}\nv_exp_f32 v{ld}, v{ld}")
    bf16r(q, ld)
    q.e(f"v_mul_f32 v{a2}, v{ld}, v{lr}\nv_mul_f32 v{rev}, v{ld}, v{li}\nv_mul_f32 v{a2}, {LOG2E}, v{a2}\nv_mul_f32 v{rev}, {INV2PI}, v{rev}")
    for n, k in enumerate(pows):
        if k != 1: q.e(f"v_mul_f32 v{u}, {f2u(float(k))}, v{a2}\nv_mul_f32 v{u+1}, {f2u(float(k))}, v{rev}\nv_exp_f32 v{u}, v{u}\nv_fract_f32 v{u+1}, v{u+1}")
        else: q.e(f"v_exp_f32 v{u}, v{a2}\nv_fract_f32 v{u+1}, v{rev}")
        q.e(f"v_cos_f32 v{u+2}, v{u+1}\nv_sin_f32 v{u+3}, v{u+1}\nv_mul_f32 v{O+2*n}, v{u}, v{u+2}\nv_mul_f32 v{O+2*n+1}, v{u}, v{u+3}")
    if coef:
        q.e(f"v_add_f32 v{u}, -1.0, v{O}\nv_mul_f32 v{u+1}, v{lr}, v{lr}\nv_fmac_f32 v{u+1}, v{li}, v{li}\nv_rcp_f32 v{u+1}, v{u+1}")
        q.e(f"v_mul_f32 v{u+2}, v{u}, v{lr}\nv_fmac_f32 v{u+2}, v{O+1}, v{li}\nv_mul_f32 v{u+3}, v{O+1}, v{lr}\nv_fma_f32 v{u+3}, -v{u}, v{li}, v{u+3}")
        q.e(f"v_add_f32 v{u+1}, v{u+1}, v{u+1}\nv_mul_f32 v{L+4}, v{u+2}, v{u+1}\nv_mul_f32 v{L+5}, v{u+3}, v{u+1}")

def jobs(c):
    JL = ACC2 + 32
    q = Prog()
    q.e(f"s_lshl_b32 s{sT0}, s{sI}, 4\ns_add_u32 s{sT0}, s{sT0}, s{sMT}\ns_lshl_b32 s{sT0}, s{sT0}, 2\ns_add_u32 s{sJW}, s{sT0}, s{sW}\ns_lshl_b32 s{sJ3}, s{sW}, 13")
    q.e(f"s_min_u32 s{sT0}, s{sJW}, 479\ns_mul_i32 s{sJ1}, s{sT0}, 6554\ns_lshr_b32 s{sJ1}, s{sJ1}, 16\ns_mul_i32 s{sT2}, s{sJ1}, 10\ns_sub_u32 s{sJ0}, s{sT0}, s{sT2}")
    srd(q, S_J0, P_W2, 1536 * 1280)
    q.e(f"v_lshrrev_b32 v{t0}, 3, v{vL}\nv_and_b32 v{t1}, 7, v{vL}\nv_lshrrev_b32 v{t2}, 4, v{vL}\nv_lshlrev_b32 v{t2}, 1, v{t2}\nv_xor_b32 v{t2}, v{t1}, v{t2}\nv_lshlrev_b32 v{t2}, 4, v{t2}")
    q.e(f"v_mul_u32_u24 v{t3}, 1280, v{t0}\nv_add_u32 v{vBR}, v{t2}, v{t3}")
    q.e(f"s_mul_i32 s{sBT+1}, s{sJ1}, {32*1280}\ns_lshl_b32 s{sT3}, s{sJ0}, 7\ns_add_u32 s{sBT+1}, s{sBT+1}, s{sT3}")
    q.e(f"s_min_u32 s{sT0}, s{sJW}, 399\ns_mul_i32 s{sJ2}, s{sT0}, 6554\ns_lshr_b32 s{sJ2}, s{sJ2}, 16\ns_mul_i32 s{sT2}, s{sJ2}, 10\ns_sub_u32 s{sJW}, s{sT0}, s{sT2}")
    srd(q, S_J1, P_CRE, 640 * 1280)
    srd(q, S_AG, P_CIM, 640 * 1280 + 2048, -2048)
    q.e(f"s_mul_i32 s{sBT+2}, s{sJ2}, {16*1280}\ns_lshl_b32 s{sT3}, s{sJW}, 7\ns_add_u32 s{sBT+2}, s{sBT+2}, s{sT3}\ns_add_u32 s{sBT+3}, s{sBT+2}, {8*1280-1024}")
    q.e(f"v_lshlrev_b32 v{JL}, 1, v{vL}\nv_add_u32 v{JL}, s{sT3}, v{JL}")
    for k, ptr in enumerate((P_LRE, P_LIM, P_LDT)):
        q.e(f"global_load_ushort v{JL+1+k}, v{JL}, s[{ptr}:{ptr+1}]", tag='tbl')
    a = q.items
    q = Prog()
    q.e(f"s_add_u32 m0, s{sJ3}, {X_JOB}")
    for i in range(4):
        q.e(f"buffer_load_dwordx4 v{vBR}, {S(S_J0)}, s{sBT+1} offen offset:{1024*i}{NT('ntj')} lds", tag='jobA')
        if i < 3: q.e(f"s_add_u32 s{sBT+1}, s{sBT+1}, {8*1280-1024}")
    da = q.items
    q = Prog()
    q.e(f"s_add_u32 m0, s{sJ3}, {X_JOB + 4096}")
    for i, (sr, so) in enumerate(((S_J1, sBT + 2), (S_J1, sBT + 3), (S_AG, sBT + 2), (S_AG, sBT + 3))):
        q.e(f"buffer_load_dwordx4 v{vXD+(i&1)}, {S(sr)}, s{so} offen offset:{1024*i}{NT('ntj')} lds", tag='jobB')
    db = q.items
    q = Prog()
    q.e(f"v_bfe_u32 v{t0}, v{vL}, 2, 3\nv_lshrrev_b32 v{t1}, 5, v{vL}\nv_lshl_add_u32 v{t1}, v{t1}, 4, v{t0}")
    q.e(f"v_lshrrev_b32 v{t0}, 1, v{t0}\nv_lshlrev_b32 v{t0}, 5, v{t0}\nv_lshl_add_u32 v{t0}, v{t1}, 7, v{t0}\nv_and_b32 v{t1}, 3, v{vL}")
    q.e(f"v_lshl_add_u32 v{t0}, v{t1}, 3, v{t0}\nv_add_u32 v{vBR}, s{sJ3}, v{t0}")
    for tau in range(1, 4): q.e(f"v_xor_b32 v{vBR+tau}, {32*tau}, v{vBR}")
    q.e(f"s_mul_i32 s{sT0}, s{sJ1}, 43\ns_lshr_b32 s{sT0}, s{sT0}, 8\ns_mul_i32 s{sT0}, s{sT0}, 5\ns_add_u32 s{sT0}, s{sT0}, s{sJ1}\ns_mul_i32 s{sJ1}, s{sT0}, 5")
    q.wait_vm('jobA')
    for tau in range(4):
        for t in range(2): q.e(f"ds_read_b64_tr_b16 {V(CSA+4*tau+2*t,2)}, v{vBR+tau} offset:{X_JOB + 1024*t}")
    for tau in range(4):
        q.e(f"s_lshl_b32 s{sT0}, s{sJ0}, 2\ns_add_u32 s{sT0}, s{sT0}, {tau}\ns_mul_i32 s{sT1}, s{sT0}, 52\ns_lshr_b32 s{sT1}, s{sT1}, 8")
        q.e(f"s_mul_i32 s{sT2}, s{sT1}, 435\ns_add_u32 s{sT0}, s{sT0}, s{sT2}\ns_add_u32 s{sT0}, s{sT0}, s{sJ1}")
        q.e(f"s_lshl_b32 s{sT0}, s{sT0}, 10\ns_add_u32 s{sT0}, s{sT0}, {W2S_OFF}")
        q.e(f"buffer_store_dwordx4 {V(CSA+4*tau,4)}, v{vL16}, {S(S_WS)}, s{sT0} offen sc1", tag='pub')
    pa = q.items
    q = Prog()
    lam_consts(q, JL, [1], True)
    q.e(f"v_sub_f32 v{JL+5}, 0, v{JL+5}\nv_sub_f32 v{JL+6}, 0, v{JL+4}\nv_lshlrev_b32 v{t0}, 2, v{vL}\nv_add_u32 v{t0}, s{sJ3}, v{t0}")
    for k in range(3): q.e(f"ds_write_b32 v{t0}, v{JL+4+k} offset:{X_JOB + 256*k}")
    q.e(f"v_bfe_u32 v{t0}, v{vL}, 1, 3\nv_bfe_u32 v{t1}, v{vL}, 4, 1\nv_xor_b32 v{t0}, v{t0}, v{t1}\nv_lshlrev_b32 v{t0}, 4, v{t0}")
    q.e(f"v_and_b32 v{t2}, 15, v{vL}\nv_lshl_add_u32 v{t0}, v{t2}, 7, v{t0}\nv_add_u32 v{vBR}, s{sJ3}, v{t0}")
    for s in range(1, 4): q.e(f"v_xor_b32 v{vBR+s}, {32*s}, v{vBR}")
    q.e(f"v_lshrrev_b32 v{t2}, 5, v{vL}\nv_lshlrev_b32 v{t2}, 8, v{t2}\nv_lshl_add_u32 v{t2}, v{t1}, 5, v{t2}\nv_add_u32 v{vTW}, s{sJ3}, v{t2}")
    q.e(f"s_mul_i32 s{sT1}, s{sJ2}, 52\ns_lshr_b32 s{sT1}, s{sT1}, 8\ns_mul_i32 s{sT1}, s{sT1}, 435\ns_add_u32 s{sJ2}, s{sT1}, s{sJ2}")
    q.wait_vm('jobB')
    CR, CI, AL, BE, U = ACC2 + 16, ACC2 + 20, ACC2 + 32, ACC2 + 40, ACC2 + 24
    def rd(s):
        o = 24 * (s & 1) if False else 0
        q.e(f"ds_read_b128 {V(CR,4)}, v{vBR+s} offset:{X_JOB + 4096}\nds_read_b128 {V(CI,4)}, v{vBR+s} offset:{X_JOB + 4096 + 2048}")
        for h in range(2):
            q.e(f"ds_read_b128 {V(AL+4*h,4)}, v{vTW} offset:{X_JOB + 64*s + 16*h}\nds_read_b128 {V(BE+4*h,4)}, v{vTW} offset:{X_JOB + 256 + 64*s + 16*h}")
    for s in range(4):
        rd(s)
        q.e(f"s_lshl_b32 s{sT0}, s{sJW}, 2\ns_add_u32 s{sT0}, s{sT0}, {s}\ns_mul_i32 s{sT1}, s{sT0}, 52\ns_lshr_b32 s{sT1}, s{sT1}, 8\ns_mul_i32 s{sT1}, s{sT1}, 6")
        q.e(f"s_add_u32 s{sT0}, s{sT0}, s{sT1}\ns_mul_i32 s{sT0}, s{sT0}, 5\ns_add_u32 s{sT0}, s{sT0}, s{sJ2}\ns_lshl_b32 s{sT0}, s{sT0}, 10\ns_add_u32 s{sT0}, s{sT0}, {W2S_OFF + 30*1024}")
        for d in range(4):
            q.e(f"v_lshlrev_b32 v{U}, 16, v{CR+d}\nv_and_b32 v{U+1}, s{sMASK}, v{CR+d}\nv_lshlrev_b32 v{U+2}, 16, v{CI+d}\nv_and_b32 v{U+3}, s{sMASK}, v{CI+d}")
            q.e(f"v_mul_f32 v{U}, v{AL+2*d}, v{U}\nv_mul_f32 v{U+1}, v{AL+2*d+1}, v{U+1}\nv_fmac_f32 v{U}, v{BE+2*d}, v{U+2}\nv_fmac_f32 v{U+1}, v{BE+2*d+1}, v{U+3}")
            q.e(f"v_cvt_pk_bf16_f32 v{CSA+4*s+d}, v{U}, v{U+1}")
        q.e(f"buffer_store_dwordx4 {V(CSA+4*s,4)}, v{vL16}, {S(S_WS)}, s{sT0} offen sc1", tag='pub')
    q.e(f"s_lshl_b32 s{sT0}, s{sMT}, 7\ns_lshl_b32 s{sT1}, s{sI}, 11\ns_add_u32 s{sT0}, s{sT0}, s{sT1}\ns_add_u32 s{sBT+3}, s{sT0}, {WF_OFF}")
    return a, da, db, pa, q.items

def ext_mfma(acc, n, ffn):
    if ffn: return code("\n".join(f"v_mfma_f32_32x32x16_bf16 {V(acc+16*t,16)}, {A(EXTW+4*t,4)}, {V(vEX,4)}, {V(acc+16*t,16)}" for t in range(n)))
    return code("\n".join(f"v_mfma_f32_32x32x16_bf16 {V(acc+16*t,16)}, {V(vEX,4)}, {A(EXTW+4*t,4)}, {V(acc+16*t,16)}" for t in range(n)))

sBQ, sAO, sAP, sBC, sBD = 66, 67, 68, 64, 65
TAB = [70, 71, 72, 73, 74, 75, 76, 77, 78, 79, 84]
def k2_setup(c):
    q = Prog()
    ld = f"buffer_load_dword v249, v248, {S(S_WS)}, s69 offen sc1"
    a_, b_, c_ = 248, 249, 250
    q.e(f"s_lshr_b32 s86, s{sSL}, 3\ns_lshl_b32 s85, s86, 2\ns_add_u32 s85, s85, s{sW}\ns_and_b32 s87, s{sSL}, 7\ns_mul_i32 s87, s87, 5\ns_mov_b32 s69, {WF_OFF}")
    q.e(f"s_mul_i32 s88, s85, 6\ns_mul_i32 s85, s85, 5\ns_sub_u32 s84, s87, 6")
    q.e(f"v_min_u32 v{c_}, 21, v{vL}\nv_cmp_gt_u32 s[64:65], 12, v{c_}\nv_mov_b32 v{a_}, s84\nv_mov_b32 v{b_}, s88\nv_cndmask_b32 v{a_}, v{a_}, v{b_}, s[64:65]")
    q.e(f"v_mov_b32 v{b_}, s85\nv_mov_b32 v243, s87\nv_cndmask_b32 v{b_}, v{b_}, v243, s[64:65]\nv_lshrrev_b32 v243, 1, v{c_}\nv_add_u32 v{a_}, v{a_}, v243")
    q.e(f"v_and_b32 v{c_}, 1, v{c_}\nv_lshl_add_u32 v{b_}, v{c_}, 2, v{b_}\nv_lshrrev_b32 v{b_}, 2, v{b_}\nv_mad_u32_u24 v{a_}, v{a_}, 10, v{b_}\nv_lshrrev_b32 v{a_}, 2, v{a_}\nv_lshlrev_b32 v{a_}, 7, v{a_}")
    q.e(f"s_lshr_b32 s86, s{sSL}, 3\ns_lshl_b32 s85, s86, 2\ns_add_u32 s85, s85, s{sW}\ns_mul_i32 s85, s85, 11")
    q.e(f"s_and_b32 s87, s{sSL}, 7\ns_mul_i32 s87, s87, 88\ns_add_u32 s87, s87, s85\ns_mul_i32 s{sBQ}, s87, 5120\ns_add_u32 s{sBQ}, s{sBQ}, {W2S_OFF}")
    q.e(f"s_lshl_b32 s87, s{sMT}, 1\ns_add_u32 s88, s87, s86\ns_mul_i32 s88, s88, 88\ns_add_u32 s88, s88, s85\ns_lshl_b32 s{sAO}, s88, 12")
    q.e(f"s_xor_b32 s86, s86, 1\ns_add_u32 s88, s87, s86\ns_mul_i32 s88, s88, 88\ns_add_u32 s88, s88, s85\ns_lshl_b32 s{sAP}, s88, 12")
    q.e(f"s_and_b32 s85, s{sMT}, {3 if OPT.get('rot', 1) else 0}\ns_mov_b32 s{TAB[0]}, 0\ns_lshl_b32 s85, s85, 13\ns_add_u32 s{TAB[4]}, s85, {4*4096}")
    for i in range(1, 4): q.e(f"s_add_u32 s{TAB[i]}, s{TAB[i-1]}, 4096\ns_and_b32 s{TAB[i]}, s{TAB[i]}, {3*4096}")
    for i in range(5, 11): q.e(f"s_add_u32 s{TAB[i]}, s{TAB[i-1]}, 4096\ns_cmp_eq_u32 s{TAB[i]}, {11*4096}\ns_cselect_b32 s{TAB[i]}, {4*4096}, s{TAB[i]}")
    q.e(f"s_mov_b32 s85, s{sBQ}\ns_lshl_b32 s88, s{sW}, 10")
    return q.items, code(ld), retry2(c, ld, [249], 250, 86)
BH = [4 * f for f in range(28)] + [176, 212, 216] + [240, 244, 248, 252] + [112 + 4 * k for k in range(12)] + [160, 164, 168, 172, 180, 184, 188, 192]
def baddr(f):
    i, ct = divmod(f, 5)
    t = ""
    if ct == 0: t += f"s_lshr_b32 s{sBC}, s{TAB[i]}, 2\ns_add_u32 s{sBC}, s{sBC}, s{TAB[i]}\ns_add_u32 s{sBC}, s{sBC}, s{sBQ}\n"
    else: t += f"s_add_u32 s{sBC}, s{sBC}, 1024\n"
    return t
def bpre(f):
    return code(baddr(f) + f"buffer_load_dwordx4 {A(BH[f],4)}, v{vL16}, {S(S_WS)}, s{sBC} offen sc1", 'bpre')
def bstage(f, lds):
    return code(f"s_add_u32 m0, s88, {lds}\n" + baddr(f) + f"buffer_load_dwordx4 v{vL16}, {S(S_WS)}, s{sBC} offen sc1 lds", 'bst')
def add_bpre(c, first, stage):
    free = lambda f: 41 + f if f < 28 else 46
    f = 0
    order = list(range(35))
    while f < 35:
        if not c.va.place(max(first, free(f)), bpre(f), dma='b'): return f
        f += 1
    return f
def add_stage(c, first, stage):
    c.staged = []
    for k, (lds, e) in enumerate(stage):
        f = 35 + k
        if f >= 55: break
        i, ct = divmod(f, 5)
        t = f"s_add_u32 m0, s88, {lds}\ns_lshr_b32 s{sBD}, s{TAB[i]}, 2\ns_add_u32 s{sBD}, s{sBD}, s{TAB[i]}\ns_add_u32 s{sBD}, s{sBD}, s85\n"
        if ct: t += f"s_add_u32 s{sBD}, s{sBD}, {1024*ct}\n"
        t += f"buffer_load_dwordx4 v{vL16}, {S(S_WS)}, s{sBD} offen sc1 lds"
        if not c.va.place(max(first, e), code(t, 'bst'), dma='l'): break
        c.staged.append((f, lds))
    c.va.b_next = 0
def unstage(c):
    q = Prog()
    q.e(f"v_add_u32 v{vPA}, s88, v{vL16}\nv_add_u32 v{vTW}, 65536, v{vPA}\nv_add_u32 v{vEX}, 131072, v{vPA}")
    q.wait_vm('bst')
    for f, lds in c.staged:
        q.e(f"ds_read_b128 {A(BH[f],4)}, v{(vPA, vTW, vEX)[lds >> 16]} offset:{lds & 65535}")
    return q.items
def brest(c):
    out = []
    done = set(range(c.nb)) | {f for f, _ in c.staged}
    for f in range(55):
        if f in done: continue
        i, ct = divmod(f, 5)
        t = f"s_lshr_b32 s{sBC}, s{TAB[i]}, 2\ns_add_u32 s{sBC}, s{sBC}, s{TAB[i]}\ns_add_u32 s{sBC}, s{sBC}, s{sBQ}\n"
        if ct: t += f"s_add_u32 s{sBC}, s{sBC}, {1024*ct}\n"
        out.append(Group(code(t + f"buffer_load_dwordx4 {A(BH[f],4)}, v{vL16}, {S(S_WS)}, s{sBC} offen sc1", 'bpre')))
    if OPT.get('vlog'): print(c.typ, "direct", c.nb, "staged", len(c.staged), "rest", len(out), file=sys.stderr)
    return out

def k1_X(p, c):
    ts = c.ts; o = c.opt
    sb = lambda j: X_RING + (j % X_NS) * X_SLOT
    def dma(j):
        pre = code(f"s_add_u32 s{sDB}, s{sDB}, 128") if j == 10 else []
        return pre + ffn_dma(sb(j), j)
    JP = o.get('jp', 0)
    ja, jda, jdb, jpa, jpb = jobs(c)
    if JP:
        ffn_dma_addr(p)
        p.extend(ja); p.extend(jda); p.extend(jdb)
    p.extend(x_dma(0))
    if not JP: ffn_dma_addr(p)
    p.e(f"s_mul_i32 s{sDB}, s{sW}, {16*3072}\ns_mul_i32 s{sT0}, s{sI}, 384\ns_add_u32 s{sDB}, s{sDB}, s{sT0}")
    p.extend(dma(0))
    common_addr(p)
    tr_addrs(p, X_RING)
    if JP:
        p.e(NONCE_LD())
        p.extend(jpa)
        p.extend(x_dma(1)); p.extend(dma(1))
        p.extend(jpb)
    else:
        p.extend(x_dma(1)); p.extend(dma(1))
        p.extend(ja)
        if o.get('je', 1): p.extend(jda); p.extend(jdb)
        stats_job(p)
        p.e(NONCE_LD())
    ts(p)
    rT = Ring(vT, 4, X_RING)
    WS_ = o.get('wsync', 6)
    F1 = o.get('f1', 18)
    pre_extra = {('sync', WS_): [Marker('vm', 'pub')], ('post', WS_): flag(f"s{sBT+3}"), ('sync', F1): [Marker('vm', 'h')],
                 ('post', F1): code(f"buffer_store_dword v{vPT}, v{vFZ}, {S(S_WS)}, s{sFL} offen offset:4 sc1", 'flag')}
    JA = o.get('ja', 1); JB = o.get('jb', 1)
    steps, r0, r1 = build_steps(c, 'F' * 20, sb, dma, X_NS, rT, None, pre_extra, {} if (JP or o.get('je', 1)) else ({JA: [jda], JB: [jdb]} if JA != JB else {JA: [jda, jdb]}))
    p.extend(x_dma(2)); p.extend(dma(2))
    p.extend(x_read(0))
    p.wait_vm(('slot', 0)); p.e("s_barrier")
    p.extend(flat(r0)); p.extend(flat(r1))
    ts(p)
    cs1, cs1s = cs_produce_ffn(ACC2, f"s_mul_i32 s{sT0}, s{sI}, 3")
    sl, su = stats_consume(c); cl, cu = cs_consume(c, 4, ACC2)
    ks_, kl, kc = k2_setup(c)
    CD = o.get('cd', 6)
    side = cs1[:10] + [Deadline(5)] + nonce_get(c) + stats_store() + cs1[10:] + [Deadline(CD), Gate(CD)] + cs1s + [Deadline(CD + 1)]
    if not JP: side += [Gate(o.get('jga', 7))] + jpa + [Gate(o.get('jgb', 9))] + jpb + [Deadline(o.get('jd', 18))]
    G1_ = o.get('g1', 22)
    ex1 = ([Gate(o.get('tg', 12))] + touch() + [Deadline(o.get('tg', 12) + 2)] if o.get('touch', 0) else []) + [Gate(10)] + ks_ + [Deadline(G1_), Gate(G1_)] + sl + cl + [Deadline(G1_ + 7)]
    side += [Gate(o.get('gu', 31))] + su + cu + [Deadline(38), Gate(38)] + ext_read(4) + [Deadline(39)]
    steps[39]['mf'] += ext_mfma(ACC1, 4, True); steps[39]['rd'] += [[], [], [], []]
    steps[40]['pre'] = ([] if o.get('ts') == 2 else [LazyStamp(ts)]) + steps[40]['pre']
    cs2, cs2s = cs_produce_ffn(CSA, f"s_mul_i32 s{sT0}, s{sI}, 3\ns_add_u32 s{sT0}, s{sT0}, 1")
    cl, cu = cs_consume(c, 4, CSA)
    BF0 = o.get('bf0', 45)
    side += [Gate(40)] + cs2 + [Deadline(45), Gate(45)] + cs2s + ffn_epi(ACC1, 0, 0)
    for tau in range(1, 3): side += ffn_epi(ACC1 + 16 * tau, tau >> 1, (tau & 1) * 512)
    TM0, TMB = c.TM0, c.TMB
    ex2 = [Gate(o.get('g2l', 54))] + cl + [Deadline(o.get('g2l', 54) + 3)]
    side += ffn_epi(ACC1 + 48, 1, 512) + [Deadline(61), Gate(61)] + cu + [Deadline(TM0 - 2), Gate(TM0 - 2)] + ext_read(4) + k2_flags(c) + [Deadline(TM0 + 1)]
    for tau in range(3): side += [Gate(TM0 + TMB * (tau + 1))] + code("s_nop 1") + ffn_epi(ACC2 + 16 * tau, 2 + (tau >> 1), (tau & 1) * 512) + [Deadline(TM0 + TMB * (tau + 2))]
    add_stage(c, BF0, [(4096 * k, 42) for k in range(4)] + [(32768 + 4096 * k, 42) for k in range(12)])
    c.nb = add_bpre(c, BF0, None)
    resolve(steps)
    weave(p, steps, side, base_rate=o.get('xrate', 2), extra=[ex1 + [Gate(BF0 - 7)] + kl + [Deadline(BF0 - 6), Gate(BF0 - 1)] + kc + [Deadline(BF0)] + ex2])
    ts(p)
    p.extend(mk(c, 80) + ffn_epi(ACC2 + 48, 3, 512) + mk(c, 81) + unstage(c))
    ts(p)

def k1_Y(p, c):
    ts = c.ts; o = c.opt
    sb = lambda j: Y_RING + (j % Y_NS) * Y_SLOT
    dma = lambda j: ssm_dma(sb(j), j) if j < 10 else ffn_dma(sb(j), j)
    p.extend(x_dma(0))
    p.e(f"s_cmp_ge_u32 s{sW}, 2\ns_cselect_b32 s{S_B}, s{P_BIM}, s{P_BRE}\ns_cselect_b32 s{S_B+1}, s{P_BIM+1}, s{P_BRE+1}")
    p.e(f"s_mov_b32 s{S_B+2}, {640*1280}\ns_mov_b32 s{S_B+3}, 0x20000\ns_mul_i32 s{sLBS}, s{sW}, 5120")
    p.e(f"s_and_b32 s{sT0}, s{sW}, 1\ns_lshl_b32 s{sT1}, s{sT0}, 2\ns_lshr_b32 s{sT2}, s{sW}, 1\ns_xor_b32 s{sT1}, s{sT1}, s{sT2}")
    p.e(f"s_lshl_b32 s{sT1}, s{sT1}, 4\nv_xor_b32 v{vDS}, s{sT1}, v{vXD}")
    p.e(f"s_mul_i32 s{sT1}, s{sI}, 80\ns_lshl_b32 s{sT0}, s{sT0}, 3\ns_add_u32 s{sT0}, s{sT0}, s{sT1}\ns_mul_i32 s{sBT}, s{sT0}, 1280")
    for t in range(1, 4): p.e(f"s_add_u32 s{sBT+t}, s{sBT}, {t*(20480-1024)}")
    p.e(f"s_add_u32 s{sBT+4}, s{sBT}, {4*20480}")
    p.extend(dma(0))
    L = ACC2 + 16
    p.e(f"v_lshrrev_b32 v{L}, 5, v0\nv_lshlrev_b32 v{L}, 4, v{L}\nv_bfe_u32 v{L+1}, v0, 1, 4\nv_add_u32 v{L}, v{L}, v{L+1}")
    p.e(f"v_add_u32 v{L}, s{sT1}, v{L}\nv_min_u32 v{L}, 639, v{L}\nv_lshlrev_b32 v{L}, 1, v{L}")
    for k, ptr in enumerate((P_LRE, P_LIM, P_LDT)):
        p.e(f"global_load_ushort v{L+1+k}, v{L}, s[{ptr}:{ptr+1}]", tag='tbl')
    ffn_dma_addr(p)
    p.e(f"s_mul_i32 s{sDB}, s{sW}, {16*3072}\ns_mul_i32 s{sT0}, s{sI}, 384\ns_add_u32 s{sDB}, s{sDB}, s{sT0}\ns_add_u32 s{sDB}, s{sDB}, 256")
    common_addr(p)
    p.e(f"v_and_b32 v{t0}, 1, v{vL}\nv_bfe_u32 v{t1}, v{vL}, 1, 4\nv_lshl_add_u32 v{t1}, v{t0}, 4, v{t1}")
    p.e(f"v_bfe_u32 v{t2}, v{t1}, 1, 3\nv_xor_b32 v{t2}, v{t2}, v{t0}\nv_lshrrev_b32 v{t3}, 5, v{vL}\nv_xor_b32 v{t2}, v{t2}, v{t3}\nv_lshlrev_b32 v{t2}, 4, v{t2}")
    p.e(f"v_and_b32 v{t3}, 7, v{t1}\nv_lshl_add_u32 v{t2}, v{t3}, 7, v{t2}\nv_lshrrev_b32 v{t3}, 3, v{t1}\nv_mul_u32_u24 v{t3}, 5120, v{t3}")
    p.e(f"v_add_u32 v{t2}, v{t2}, v{t3}\nv_add_u32 v{vBR}, {Y_RING}, v{t2}")
    for s in range(1, 4): p.e(f"v_xor_b32 v{vBR+s}, {32*s}, v{vBR}")
    tr_addrs(p, sb(10))
    p.extend(x_dma(1)); p.extend(dma(1))
    vE, vAG, vFL, vSTW, vSTR, vE2 = 252, 253, 254, vXD, vXD + 1, 242
    p.e(f"v_lshlrev_b32 v{vE}, 5, v0\nv_mul_u32_u24 v{vE2}, 48, v0")
    srd(p, S_AG, P_WS, 32 * 1280, AGG_OFF)
    p.e(f"s_mul_i32 s{sT0}, s{sI}, {32*1280}\ns_add_u32 s{S_AG}, s{S_AG}, s{sT0}\ns_addc_u32 s{S_AG+1}, s{S_AG+1}, 0")
    p.e(f"v_subrev_u32 v{t0}, 160, v0\nv_min_u32 v{t0}, v{t0}, v0\nv_lshlrev_b32 v{vFL}, 3, v{t0}\nv_mov_b32 v{t1}, {OOB}\nv_cmp_gt_u32 vcc, 160, v0\nv_cndmask_b32 v255, v{t1}, v{vFL}, vcc")
    ts(p)
    q = Prog()
    lam_consts(q, L, [1, 16, 128], False)
    O = L + 8
    q.e(f"v_and_b32 v{L}, 1, v0\nv_lshlrev_b32 v{L}, 31, v{L}\nv_xor_b32 v{L}, 0x80000000, v{L}")
    for n in range(3): q.e(f"v_xor_b32 v{O+2*n+1}, v{L}, v{O+2*n+1}")
    q.e(f"ds_write_b64 v{vE}, {V(O,2)} offset:{Y_TBL}\nds_write_b128 v{vE}, {V(O+2,4)} offset:{Y_TBL+16}")
    table = q.items
    stats_job(p); p.extend(table)
    p.e(NONCE_LD())
    rT = Ring(vT, 4, sb(10)); rB = Ring(vBR, 4, Y_RING)
    steps, r0, r1 = build_steps(c, 'S' * 10 + 'F' * 10, sb, dma, Y_NS, rT, rB, {}, {})
    p.extend(x_dma(2)); p.extend(dma(2))
    p.extend(x_read(0))
    p.wait_vm(('slot', 0)); p.e("s_barrier")
    p.extend(flat(r0)); p.extend(flat(r1))
    ts(p)
    q = Prog()
    q.e(f"s_lshl_b32 s{sT0}, s{sW}, 10")
    for s in range(4): q.e(f"v_add_u32 v{t0+s}, s{sT0}, v{vBR+s}\nds_read_b128 {A(CSF+4*s,4)}, v{t0+s}")
    for s in range(4): q.e(f"ds_read_b128 {A(EXTW+4*s,4)}, v{vBR+s} offset:4096")
    cs_store_addr(q, f"s_add_u32 s{sT0}, s{sI}, 24")
    CB = ACC2 + 48
    for s in range(4): q.e(f"v_mfma_f32_32x32x16_bf16 {V(CB,16)}, {V(vONE,4)}, {A(CSF+4*s,4)}, {'0' if s == 0 else V(CB,16)}")
    for s in range(4): q.e(f"v_mfma_f32_32x32x16_bf16 {V(ACC2,16)}, {V(vONE,4)}, {A(EXTW+4*s,4)}, {'0' if s == 0 else V(ACC2,16)}")
    cs1 = q.items
    cs1s = code(f"v_mov_b32 v{CB+1}, s{sN}\nv_mov_b32 v{ACC2+1}, s{sN}\nbuffer_store_dwordx2 {V(CB,2)}, v{t4}, {S(S_WS)}, s{sU2} offen sc1\ns_lshl_b32 s{sT0}, s{sW}, 8\ns_sub_u32 s{sT0}, s{sU2}, s{sT0}\n"
                f"buffer_store_dwordx2 {V(ACC2,2)}, v{t4}, {S(S_WS)}, s{sT0} offen offset:1024 sc1\n"
                f"s_add_u32 s{sT0}, s{sMT}, 16\ns_mul_i32 s{sT0}, s{sT0}, 1280\n"
                f"buffer_store_dwordx2 {V(vZ,2)}, v255, {S(S_AG)}, s{sT0} offen sc1", 'pub')
    sl, su = stats_consume(c); cl, cu = cs_consume(c, 5, ACC2)
    ks_, kl, kc = k2_setup(c)
    side = cs1[:13] + [Deadline(5)] + nonce_get(c) + stats_store() + cs1[13:] + [Deadline(9), Gate(9)] + cs1s + [Deadline(11)]
    G1_ = o.get('g1', 22)
    ex1 = ([Gate(o.get('tg', 12))] + touch() + [Deadline(o.get('tg', 12) + 2)] if o.get('touch', 0) else []) + [Gate(10)] + ks_ + [Deadline(G1_), Gate(G1_)] + sl + cl + [Deadline(G1_ + 7)]
    side += [Gate(o.get('gu', 31))] + su + cu + [Deadline(38), Gate(38)] + ext_read(5) + [Deadline(39)]
    q = Prog()
    q.e(f"v_and_b32 v{t0}, 31, v{vL}\nv_mul_u32_u24 v{t2}, 48, v{t0}\nv_lshlrev_b32 v{t0}, 5, v{t0}\nv_lshrrev_b32 v{t1}, 5, v0\nv_lshl_add_u32 v{vAG}, v{t1}, 2, v{t2}")
    for t in range(5): q.e(f"ds_read_b64 {V(C0+2*t,2)}, v{t0} offset:{Y_TBL + 1024*t}")
    side += q.items + [Deadline(40)]
    steps[39]['mf'] += ext_mfma(ACC1, 5, False); steps[39]['rd'] += [[], [], [], [], []]
    steps[40]['pre'] = ([] if o.get('ts') == 2 else [LazyStamp(ts)]) + steps[40]['pre']
    AS = o.get('async', 12)
    BF0 = o.get('bf0y', 49)
    cs2, cs2s = cs_produce_ffn(CSA, f"s_mul_i32 s{sT0}, s{sI}, 3\ns_add_u32 s{sT0}, s{sT0}, 2")
    side += [Gate(40)] + cs2[:10]
    LM, E0, GA, G1 = 244, RT + 4, RT + 12, TMP - 2
    q = Prog()
    def scale(tt):
        for t in range(5): q.e(f"v_mul_f32 v{ACC1+16*t+tt}, v{RT+tt}, v{ACC1+16*t+tt}")
    q.extend(cs2[10:])
    q.add(Deadline(45))
    scale(0); scale(1)
    q.extend(cs2s)
    q.e(f"ds_read_b128 {V(LM,4)}, v{vE} offset:{Y_TBL+16}")
    for tt in range(1, 16):
        for t in range(5):
            g = (ACC1 + 16 * t) if tt == 1 else (G1 + 2 * t + (tt & 1))
            q.e(f"v_fma_f32 v{G1+2*t+((tt+1)&1)}, v{C0+2*t}, v{g}, v{ACC1+16*t+tt}")
        if tt < 15: scale(tt + 1)
        for t in range(5):
            g = (ACC1 + 16 * t) if tt == 1 else (G1 + 2 * t + (tt & 1))
            q.e(f"v_fmac_f32_dpp v{G1+2*t+((tt+1)&1)}, v{g}, v{C0+2*t+1} {QP}")
    for t in range(5): q.e(f"ds_write_b32 v{vAG}, v{G1+2*t} offset:{AG_L + 16 + 1536*t}", tag='agw')
    q.wait_lgkm('agw')
    side += q.items + [Deadline(4 * (AS - 1) + 2), Gate(4 * (AS - 1) + 2)]
    q = Prog()
    q.e(f"ds_read_b128 {V(E0,4)}, v{vE2} offset:{AG_L+16}\nds_read_b128 {V(E0+4,4)}, v{vE2} offset:{AG_L+32}")
    q.e(f"s_sub_u32 s{sBT}, 15, s{sMT}\ns_mul_i32 s{sBT}, s{sBT}, 1280")
    fill = code("\n".join(f"s_add_u32 s{S_J0+i}, s{sBT}, {1280 + 3840*i}" for i in range(5)) + f"\ns_add_u32 s{sBT+4}, s{sH}, {6*4096}\ns_nop 0")
    for k in range(1, 8):
        g = E0 if k == 1 else (GA + (k & 1))
        q.e(f"v_fma_f32 v{GA+((k+1)&1)}, v{LM}, v{g}, v{E0+k}"); q.add(fill[k - 1])
        q.e(f"v_fmac_f32_dpp v{GA+((k+1)&1)}, v{g}, v{LM+1} {QP}")
    q.e(f"v_mov_b32 v{GA+1}, s{sN}\nbuffer_store_dwordx2 {V(GA,2)}, v255, {S(S_AG)}, s{sBT} offen sc1", tag='pub')
    side += q.items + [Deadline(4 * (AS - 1) + 4)]
    q = Prog()
    q.e(f"v_and_b32 v{t0}, 1, v{vL}\nv_bfe_u32 v{t1}, v{vL}, 1, 4\nv_lshl_add_u32 v{t1}, v{t0}, 4, v{t1}\nv_lshlrev_b32 v{t1}, 6, v{t1}")
    q.e(f"v_lshrrev_b32 v{t0}, 5, v{vL}\nv_lshl_add_u32 v{t1}, v{t0}, 5, v{t1}\ns_mul_i32 s{sT0}, s{sW}, 10240\ns_add_u32 s{sT0}, s{sT0}, 98304\nv_add_u32 v{vSTW}, s{sT0}, v{t1}")
    q.e(f"v_lshrrev_b32 v{t0}, 4, v{vL}\nv_lshlrev_b32 v{t0}, 9, v{t0}\nv_bfe_u32 v{t1}, v{vL}, 2, 2\nv_lshl_add_u32 v{t0}, v{t1}, 6, v{t0}")
    q.e(f"v_and_b32 v{t1}, 3, v{vL}\nv_lshl_add_u32 v{t0}, v{t1}, 3, v{t0}\nv_add_u32 v{vSTR}, s{sT0}, v{t0}")
    cl, cu = cs_consume(c, 4, CSA)
    TM0, TMB = c.TM0, c.TMB
    ex2 = [Gate(o.get('g2l', 54))] + cl + [Deadline(o.get('g2l', 54) + 3)]
    side += q.items + [Gate(o.get('g2', 61))] + cu
    LP = [CSA + 2 * i for i in range(8)] + [4, 6, 8, 10, 12, 14, 16]
    ldl = "\n".join(f"buffer_load_dwordx2 {V(LP[i],2)}, v{vFL}, {S(S_AG)}, s{S_J0+i//3} offen offset:{(i%3)*1280} sc1" for i in range(15))
    side += [Deadline(TM0 - 2), Gate(TM0 - 2)] + ext_read(4) + k2_flags(c) + code(ldl) + [Deadline(TM0 + TMB)]
    for tau in range(3): side += [Gate(TM0 + TMB * (tau + 1))] + code("s_nop 1") + ffn_epi(ACC2 + 16 * tau, 4 + (tau >> 1), (tau & 1) * 512) + [Deadline(TM0 + TMB * (tau + 2))]
    q = Prog()
    q.extend(retry(c, ldl, tagcheck([r + 1 for r in LP])))
    for i in range(13, -1, -1):
        q.e(f"v_fmac_f32 v{LP[i]}, v{LM+2}, v{LP[i+1]}\nv_fmac_f32_dpp v{LP[i]}, v{LP[i+1]}, v{LM+3} {QP}")
    q.e(f"ds_write_b32 v{vE2}, v{LP[0]} offset:{AG_L+12}", tag='pw')
    for k in range(7):
        g = LP[0] if k == 0 else E0 + k - 1
        q.e(f"v_fmac_f32 v{E0+k}, v{LM}, v{g}\nv_fmac_f32_dpp v{E0+k}, v{g}, v{LM+1} {QP}")
    q.e(f"ds_write_b128 v{vE2}, {V(E0,4)} offset:{AG_L+16}\nds_write_b128 v{vE2}, {V(E0+4,4)} offset:{AG_L+32}", tag='pw')
    gch = q.items
    q = Prog()
    CY = [216, 217, 218, 219, 228]
    for t in range(5): q.e(f"ds_read_b32 v{CY[t]}, v{vAG} offset:{AG_L + 12 + 1536*t}")
    def pk(k):
        for t in range(5): q.e(f"v_cvt_pk_bf16_f32 v{ACC1+16*t+k}, v{ACC1+16*t+2*k}, v{ACC1+16*t+2*k+1}")
    for tt in range(16):
        for t in range(5):
            g = CY[t] if tt == 0 else (ACC1 + 16 * t + tt - 1)
            q.e(f"v_fmac_f32 v{ACC1+16*t+tt}, v{C0+2*t}, v{g}")
        for t in range(5):
            g = CY[t] if tt == 0 else (ACC1 + 16 * t + tt - 1)
            q.e(f"v_fmac_f32_dpp v{ACC1+16*t+tt}, v{g}, v{C0+2*t+1} {QP}")
        if tt >= 2 and tt % 2 == 0: pk(tt // 2 - 1)
        if tt == 10:
            for t in range(5): q.e(f"ds_write_b128 v{vSTW}, {V(ACC1+16*t,4)} offset:{HT2_L + t*2048}")
    pk(7)
    def st(t):
        R = ACC1 + 16 * t
        q.e(f"s_add_u32 s{sT2}, s85, {t*4096}")
        for rt in range(2): q.e(f"buffer_store_dwordx4 {V(R+8+4*rt,4)}, v{vL16}, {S(S_WS)}, s{sT2} offen offset:{rt*1024} sc1", tag='h')
    for t in range(5):
        R = ACC1 + 16 * t
        q.e(f"ds_write_b128 v{vSTW}, {V(R+4,4)} offset:{HT2_L + t*2048 + 16}")
        for rt in range(2):
            for tq in range(2): q.e(f"ds_read_b64_tr_b16 {V(R+8+4*rt+2*tq,2)}, v{vSTR} offset:{HT2_L + t*2048 + rt*32 + tq*256}")
        if t > 1: st(t - 2)
    st(3); st(4)
    late = q.items
    add_stage(c, BF0, [(24576 + 4096 * k, 46) for k in range(8)] + [(12288, 46), (159744, 46)] + [(Y_RING + 20480 * k + 16384, 46) for k in range(5)])
    c.nb = add_bpre(c, BF0, None)
    resolve(steps)
    weave(p, steps, side, base_rate=o.get('yrate', 3),
                 extra=[ex1 + [Gate(BF0 - 7)] + kl + [Deadline(BF0 - 6), Gate(BF0 - 1)] + kc + [Deadline(BF0)] + ex2])
    ts(p)
    p.e(f"s_mov_b32 s85, s{sBT+4}")
    p.extend(unstage(c))
    tail = mk(c, 80) + code(c.ldx1) + merge(autogroup(gch), ffn_epi(ACC2 + 48, 5, 512)) + mk(c, 81) + [Marker('lgkm', 'pw')] + code("s_barrier")
    tail += merge(brest(c), late[:60]) + mk(c, 82) + c.chkx1 + merge(c.aload(0) + c.aload(1), late[60:140]) + code(c.ldx) + late[140:210] + mk(c, 83) + late[210:]
    p.extend(tail)
    ts(p)

def mk(c, n): return code(f'.set STEPMARK{c.typ}{n}, 0') if c.opt.get('st0') is not None else []
def merge(a, b):
    out = []; k = 0
    for i, it in enumerate(b):
        out.append(it)
        while k < len(a) and k * len(b) <= i * len(a) * 1.15:
            out += a[k].its if isinstance(a[k], Group) else [a[k]]; k += 1
    for x in a[k:]: out += x.its if isinstance(x, Group) else [x]
    return out

vKW, vKF, vKN = 36, 37, 35
HOMES = [(A, 220), (A, 196), (V, 200), (V, 18)]
def home(u): return HOMES[u % 4] if u < 12 else (A, [0, 16, 32, 48, 64, 220, 196, 0, 16, 32][u - 12])
EARLIEST = {12: 8, 13: 8, 14: 8, 15: 8, 16: 8, 17: 9, 18: 10, 19: 13, 20: 15, 21: 15}
def k2_flags(c):
    q = Prog()
    q.e(f"s_and_b32 s87, s{sSL}, 8\ns_lshl_b32 s86, s{sW}, 1\ns_add_u32 s87, s87, s86\ns_lshl_b32 s86, s{sMT}, 4\ns_add_u32 s87, s87, s86")
    q.e(f"s_lshl_b32 s87, s87, 7\ns_add_u32 s87, s87, {HF_OFF}\nv_mov_b32 v248, 0")
    c.ldx = f"buffer_load_dword v249, v248, {S(S_WS)}, s87 offen sc1"
    c.ldy = f"buffer_load_dword v250, v248, {S(S_WS)}, s87 offen offset:128 sc1"
    c.chkx = retry(c, c.ldx, tagcheck([249]))
    c.ldx1 = f"buffer_load_dword v250, v248, {S(S_WS)}, s87 offen offset:4 sc1"
    if c.typ == 'Y': c.chkx1 = retry(c, c.ldx1, tagcheck([250]))
    c.seq = [('o', 0), ('o', 1), ('p', 0), ('p', 1), ('o', 2), ('o', 3), ('p', 2), ('p', 3)] + [('p', i) for i in range(4, 11)] + [('o', i) for i in range(4, 11)]
    def aload(u):
        kind, i = c.seq[u]; R, b = home(u); s_ = sAP if kind == 'p' else sAO
        return code(f"s_add_u32 s{sBD}, s{s_}, s{TAB[i]}\n" + "\n".join(f"buffer_load_dwordx4 {R(b+4*rt,4)}, v{vL16}, {S(S_WS)}, s{sBD} offen offset:{1024*rt} sc1" for rt in range(4)))
    c.aload = aload
    return q.items

def k2(p, c):
    ts = c.ts; o = c.opt
    AP, AO = 40, 120
    seq = c.seq; aload = c.aload; ldy = c.ldy
    isY = c.typ == 'Y'
    mark = lambda n: p.e(f'.set STEPMARK{c.typ}{n}, 0') if o.get('st0') is not None else None
    fl = code(f"buffer_store_dword v{vKN}, v{vKF}, {S(S_WS)}, s{sFL} offen sc1", 'flag')
    p.e(f"v_mov_b32 v{vKN}, v{vPT}\nv_mov_b32 v{vKF}, v{vFZ}")
    q = Prog()
    srd(q, S_W1, P_D, 1280)
    srd(q, S_W3, P_OUT, 2048 * 2560)
    q.e(f"s_and_b32 s{sU0}, s{sSL}, 7\ns_lshr_b32 s{sU1}, s{sSL}, 3\ns_lshl_b32 s{sT1}, s{sMT}, 1\ns_add_u32 s{sU1}, s{sU1}, s{sT1}")
    q.e(f"s_mov_b32 s48, 3277\ns_lshl_b32 s49, s{sU1}, 6\ns_mul_i32 s50, s{sU0}, 160")
    q.e(f"s_mul_i32 s51, s49, 1280\ns_add_u32 s51, s51, s50\ns_lshl_b32 s59, s49, 4\ns_add_u32 s59, s59, {ST_OFF}\ns_lshl_b32 s61, s51, 1")
    q.e(f"s_lshl_b32 s{sT0}, s{sU1}, 3\ns_add_u32 s{sT0}, s{sT0}, s{sU0}\ns_mul_i32 s62, s{sT0}, 28672\ns_add_u32 s62, s62, {PX_OFF}")
    q.e(f"s_xor_b32 s{sT0}, s{sT0}, 8\ns_mul_i32 s63, s{sT0}, 28672\ns_add_u32 s63, s63, {PX_OFF}")
    q.e(f"v_lshlrev_b32 v17, 4, v0")
    q.e(f"v_and_b32 v4, 15, v1\nv_mul_u32_u24 v4, 336, v4\nv_lshrrev_b32 v5, 4, v1\nv_lshl_add_u32 v4, v5, 4, v4\ns_mul_i32 s44, s{sW}, 21504\nv_add_u32 v{vKW}, s44, v4")
    EL, EO = 6, 11
    EX, ED, ES = 216, 226, 236
    for u in range(5):
        q.e(f"v_add_u32 v4, {256*u}, v0\nv_mul_lo_u32 v5, v4, s48\nv_lshrrev_b32 v5, 16, v5\nv_lshlrev_b32 v4, 4, v4\nv_lshl_add_u32 v{EL+u}, v5, 4, v4")
        q.e(f"v_mul_u32_u24 v2, 320, v5\nv_sub_u32 v4, v4, v2\nv_lshrrev_b32 v4, 1, v4\nv_lshl_add_u32 v2, v2, 2, v4\nv_lshlrev_b32 v5, 4, v5")
        q.e(f"buffer_load_dwordx2 {V(EX+2*u,2)}, v2, {S(S_X)}, s51 offen\nbuffer_load_dwordx2 {V(ED+2*u,2)}, v4, {S(S_W1)}, s50 offen\nbuffer_load_dwordx2 {V(ES+2*u,2)}, v5, {S(S_WS)}, s59 offen sc1")
        q.e(f"v_lshlrev_b32 v{EO+u}, 1, v2")
    ksetup = q.items
    if not isY:
        p.extend(ksetup)
        p.extend(mk(c, 82))
        p.wait_vm('h'); p.e("s_barrier"); p.extend(fl)
        p.extend(merge(brest(c), []))
        p.e(c.ldx)
        p.extend(mk(c, 83))
        ts(p)
        p.extend(c.chkx)
        for u in range(3): p.extend(aload(u))
    else:
        p.extend(aload(2))
    ts(p)
    steps = []
    for u, (kind, i) in enumerate(seq):
        R, a = home(u); acc = AP if kind == 'p' else AO
        mf = []
        for rt in range(4):
            for ct in range(5):
                d = acc + 4 * (5 * rt + ct)
                mf += code(f"v_mfma_f32_16x16x32_bf16 {V(d,4)}, {A(BH[5*i+ct],4)}, {R(a+4*rt,4)}, {'0' if i == 0 else V(d,4)}")
        steps.append(dict(pre=[], mf=mf, rd=[[] for _ in mf]))
    CU = o.get('cuy', 6) if isY else o.get('cux', 5)
    C2 = o.get('c2', 2)
    nxt = 3
    for u in range(22):
        lim = u + 3 if u < 8 else min(21, nxt + 1)
        while lim >= 12 and EARLIEST[lim] > u: lim -= 1
        if isY and u < C2: lim = min(lim, 3)
        if u < CU: lim = min(lim, 7)
        if isY and u == C2: steps[u]['pre'] += c.chkx
        if u == CU: steps[u]['pre'] += retry(c, ldy, tagcheck([250])) + [LazyStamp(ts)]
        if u == CU - 1: steps[u]['rd'][o.get('lyg', 10)] += code(ldy)
        vs = list(range(nxt, lim + 1)); nxt = max(nxt, lim + 1)
        g = 0; st_ = 4 if len(vs) < 2 else max(1, 20 // (4 * len(vs)))
        for v in vs:
            its = aload(v)
            steps[u]['rd'][g] += [its[0]]
            for k in range(4): steps[u]['rd'][g] += [its[k + 1]]; g += st_
        if o.get('vlog'): print(c.typ, u, vs, file=sys.stderr)
    def wr(acc, rt):
        return code("\n".join(f"ds_write_b128 v{vKW}, {V(acc+4*(5*rt+ct),4)} offset:{rt*16*336 + ct*64}" for ct in range(5)), 'pw')
    side = []
    if isY:
        side += ksetup + [Deadline(6)]
        steps[o.get('fu', 3)]['rd'][o.get('fg', 4)] += [Marker('vm', 'h')] + code("s_barrier") + fl
    M = f"s{sMASK}"
    q = Prog()
    PT = list(range(18, 34)) + [246, 247, 248, 249]
    X0 = 200
    for u in range(5):
        q.e(f"v_lshlrev_b32 v{X0}, 16, v{EX+2*u}\nv_and_b32 v{X0+1}, {M}, v{EX+2*u}\nv_lshlrev_b32 v{X0+2}, 16, v{EX+2*u+1}\nv_and_b32 v{X0+3}, {M}, v{EX+2*u+1}")
        q.e(f"v_lshlrev_b32 v{X0+4}, 16, v{ED+2*u}\nv_and_b32 v{X0+5}, {M}, v{ED+2*u}\nv_lshlrev_b32 v{X0+6}, 16, v{ED+2*u+1}\nv_and_b32 v{X0+7}, {M}, v{ED+2*u+1}")
        q.e(f"v_and_b32 v{ES+2*u+1}, {M}, v{ES+2*u+1}\nv_mul_f32 v{ES+2*u+1}, v{ES+2*u+1}, v{ES+2*u}")
        Y0 = X0 + 8
        for i in range(4): q.e(f"v_fma_f32 v{Y0+i}, v{X0+i}, v{ES+2*u}, v{ES+2*u+1}")
        q.e(f"v_cvt_pk_bf16_f32 v{Y0}, v{Y0}, v{Y0+1}\nv_cvt_pk_bf16_f32 v{Y0+2}, v{Y0+2}, v{Y0+3}")
        q.e(f"v_and_b32 v{Y0+1}, {M}, v{Y0}\nv_lshlrev_b32 v{Y0}, 16, v{Y0}\nv_and_b32 v{Y0+3}, {M}, v{Y0+2}\nv_lshlrev_b32 v{Y0+2}, 16, v{Y0+2}")
        for i in range(4): q.e(f"v_mul_f32 v{Y0+i}, v{Y0+i}, v{X0+4+i}")
        q.e(f"v_cvt_pk_bf16_f32 v{Y0}, v{Y0}, v{Y0+1}\nv_cvt_pk_bf16_f32 v{Y0+2}, v{Y0+2}, v{Y0+3}")
        q.e(f"v_and_b32 v{Y0+1}, {M}, v{Y0}\nv_lshlrev_b32 v{Y0}, 16, v{Y0}\nv_and_b32 v{Y0+3}, {M}, v{Y0+2}\nv_lshlrev_b32 v{Y0+2}, 16, v{Y0+2}")
        for i in range(4): q.e(f"v_add_f32 v{PT[4*u+i]}, v{X0+i}, v{Y0+i}")
    pre = q.items
    def fuse(u, acc):
        a, b = steps[u], steps[u + 1]
        mf = []; rd = []
        for rt in range(4):
            mf += a['mf'][5 * rt:5 * rt + 5] + b['mf'][5 * rt:5 * rt + 5]
        rd = a['rd'] + b['rd']
        for rt in range(3):
            w = wr(acc, rt)
            for k in range(5): rd[10 * (rt + 1) + 3 + k] += [w[k]]
        a['mf'], a['rd'] = mf[:20], rd[:20]; b['mf'], b['rd'] = mf[20:], rd[20:]
    fuse(13, AP); fuse(20, AO)
    w = wr(AP, 3)
    for k in range(5): steps[15]['rd'][3 + k] += [w[k]]
    steps[15]['rd'][12] += [Marker('lgkm', 'pw')] + code("s_barrier")
    q = Prog()
    GR = AP + 48
    gi = lambda f: GR + 4 * (f // 3) + f % 3
    sent = [0]
    def send(upto):
        while sent[0] < 7 and 3 * sent[0] + 2 < upto or (upto == 20 and sent[0] < 7):
            g = sent[0]; sent[0] += 1
            q.e(f"v_mov_b32 v{GR+4*g+3}, s{sN}\nbuffer_store_dwordx4 {V(GR+4*g,4)}, v17, {S(S_WS)}, s63 offen sc1\ns_add_u32 s63, s63, 4096")
    def red(u):
        T = AP + 16 * (u % 3)
        for i in range(4): q.e(f"v_add_f32 v{T+i}, v{T+i}, v{T+4+i}\nv_add_f32 v{T+8+i}, v{T+8+i}, v{T+12+i}")
        for i in range(4): q.e(f"v_add_f32 v{gi(4*u+i)}, v{T+i}, v{T+8+i}")
        send(4 * u + 4)
    for u in range(5):
        T = AP + 16 * (u % 3)
        for w in range(4): q.e(f"ds_read_b128 {V(T+4*w,4)}, v{EL+u} offset:{w*21504}")
        if u >= 2: red(u - 2)
    red(3); red(4)
    RG = AP
    ldp = "\n".join(f"buffer_load_dwordx4 {V(RG+4*g,4)}, v17, {S(S_WS)}, s{70+g} offen sc1" for g in range(7))
    if o.get('cp2', 1):
        L = f"{c.typ}_cp2"
        steps[o.get('cp2u', 7)]['rd'][17] += code(f"s_getpc_b64 s[90:91]\n{L}:\nv_lshlrev_b32 v4, 7, v0\nv_min_u32 v4, {c.typ}_end-{L}, v4\nglobal_load_dword v250, v4, s[90:91]")
    side += [Gate(12)] + pre[:75] + [Deadline(15), Gate(16)] + q.items + [Deadline(o.get('rd', 18))] + pre[75:] + code("\n".join(f"s_add_u32 s{70+g}, s62, {4096*g}" for g in range(7))) + [Deadline(20)]
    side += [Gate(o.get('lpu', 20))] + code(ldp)
    steps[20]['rd'][0] += code("s_barrier")
    if o.get('st0') is not None:
        for u, st in enumerate(steps): st['pre'] = code(f'.set STEPMARK{c.typ}{84+u}, 0') + st['pre']
    resolve(steps)
    weave(p, steps, side, base_rate=1)
    ts(p); mark(106)
    p.extend(wr(AO, 3))
    p.wait_lgkm('pw')
    p.e("s_barrier")
    mark(107)
    for u in range(5):
        for w in range(4): p.e(f"ds_read_b128 {V(AO+16*u+4*w,4)}, v{EL+u} offset:{w*21504}")
        if u == 2:
            p.extend(retry(c, ldp, tagcheck([RG + 4 * g + 3 for g in range(7)])))
            for f in range(20): p.e(f"v_add_f32 v{PT[f]}, v{PT[f]}, v{RG + 4*(f//3) + f%3}")
    mark(108)
    for u in range(5):
        R = AO + 16 * u
        for i in range(4): p.e(f"v_add_f32 v{R+i}, v{R+i}, v{R+4+i}\nv_add_f32 v{R+8+i}, v{R+8+i}, v{R+12+i}")
        for i in range(4): p.e(f"v_add_f32 v{R+i}, v{R+i}, v{PT[4*u+i]}")
        for i in range(4): p.e(f"v_add_f32 v{R+i}, v{R+i}, v{R+8+i}")
        p.e(f"buffer_store_dwordx4 {V(R,4)}, v{EO+u}, {S(S_W3)}, s61 offen{NT('nto')}")
    mark(109)
    if o.get('st0') is not None: p.e("s_waitcnt vmcnt(0)"); mark(110); p.e("s_nop 15\ns_nop 15\ns_nop 15"); mark(111)
    ts(p)

HEADER = open('parallel_sum__ssm_conv_s5__glu_gated_swiglu__prompt.s.ref').read().split('; Override launch')[0]

def profile(txt, typ):
    out = []; k = 2; sites = []; nm = 0
    lo = OPT.get('prof0', 0)
    for l in txt.split('\n'):
        if 'mfma' in l: nm += 1
        if 's_memrealtime' in l and k > 2: k = 100
        hit = ('vmcnt' in l or 's_barrier' in l or 's_cbranch_vccnz' in l or '_slow' in l) and nm >= lo and k < 62
        if OPT['prof'] == 2: hit = ('buffer_' in l or 'global_' in l) and nm >= lo and k < 62
        if hit and '_slow' in l:
            out.append("  s_memtime s[0:1]"); out.append(l); pend = True; sites.append((k, nm, l.strip())); continue
        if OPT['prof'] == 1 and l.endswith('_ret:') and out[-2].startswith("  s_memtime s[0:1]"):
            out.append(l); out.append(f"  s_memtime s[2:3]\n  s_waitcnt lgkmcnt(0)\n  s_sub_u32 s2, s2, s0\n  s_or_b32 s2, s2, 1\n  v_writelane_b32 v251, s2, {k}"); k += 1; continue
        if hit:
            out.append(f"  s_memtime s[0:1]\n{l}\n  s_memtime s[2:3]\n  s_waitcnt lgkmcnt(0)\n  s_sub_u32 s2, s2, s0\n  s_or_b32 s2, s2, 1\n  v_writelane_b32 v251, s2, {k}")
            sites.append((k, nm, l.strip())); k += 1
        else: out.append(l)
    print(typ, "sites:", [(b, ('D' if ' lds' in c else 'S' if 'store' in c else 'L') if 'buffer' in c or 'global' in c else c.replace('s_waitcnt ', '').replace('s_cbranch_', '')) for a, b, c in sites], file=sys.stderr)
    return '\n'.join(out)

def build(opt):
    OPT.update(opt)
    ph = Prog(); setup(ph, opt)
    ph.e(f"s_bitcmp1_b32 s{sSL}, 0\ns_cbranch_scc1 K_Y")
    body = ph.finalize() + "\n"
    sx = [it for it in ph.items if isinstance(it, I) and it.tag == 'sx']
    for typ, fn in (('X', k1_X), ('Y', k1_Y)):
        c = Ctx(typ, opt)
        p = Prog()
        if typ == 'Y': p.e("K_Y:")
        p.add(Marker('assume_vm', sx))
        if c.ts.on: p.e('v_mov_b32 v251, 0\ns_mov_b32 s93, s2')
        c.ts(p, True); c.ts(p)
        if opt.get('prof') or opt.get('st0') is not None: c.ts.on = False
        fn(p, c)
        k2(p, c)
        if opt.get('prof') or opt.get('st0') is not None: c.ts.on = True; c.ts.n = 63
        if c.ts.on:
            p.wait_all(); c.ts(p, True); c.ts.dump(p)
        p.e(f"{typ}_end:\ns_endpgm")
        st = {}
        txt = p.finalize(st)
        if opt.get('prof'): txt = profile(txt, typ)
        if opt.get('st0') is not None:
            out = []
            for l in txt.split('\n'):
                if 'STEPMARK' in l:
                    k = int(l.split(',')[0].split(typ)[-1]) - opt['st0']
                    if 0 <= k <= 60:
                        a = 2 * (k & 1)
                        if k > 0: out.append(f"  v_writelane_b32 v251, s{2-a}, {k}")
                        if k < 60: out.append(f"  s_memtime s[{a}:{a+1}]")
                else: out.append(l)
            txt = '\n'.join(out)
        body += txt + "\n" + "\n".join(c.slow) + "\n"
        print(typ, st, file=sys.stderr)
    body += "K_end:\n  s_endpgm\n.set CODE_BYTES, K_end-K_Y\n"
    k = NAME + "_kernel"
    if opt.get('plain'): body = body.replace(' sc1', '')
    if opt.get('plainst'): body = '\n'.join(l.replace(' sc1', '') if 'buffer_store' in l else l for l in body.split('\n'))
    s = HEADER + "; @launch grid=(256,1,1) block=(256,1,1) lds=163840\n"
    s += f'.amdgcn_target "amdgcn-amd-amdhsa--gfx950"\n.text\n.globl {k}\n.p2align 8\n.type {k},@function\n{k}:\n{body}'
    s += '.section .rodata,"a"\n' + kd(k, 512, 102, 256)
    return s

if __name__ == '__main__':
    opt = {}
    for a in sys.argv[2:]:
        k, v = a.split('='); opt[k] = int(v)
    open(sys.argv[1], 'w').write(build(opt))
```

```python
import sys, struct
from asmgen import Prog, I, Marker
from sched import weave, Gate, Deadline, Group, autogroup
from common import kd

NAME = "parallel_sum__ssm_conv_s5__glu_gated_swiglu__prompt"
H_OFF = 0
W2S_OFF = 32 * 88 * 4096
ST_OFF = W2S_OFF + 8 * 88 * 5120
AGG_OFF = ST_OFF + 32768
CS_OFF = AGG_OFF + 8 * 32 * 1280
HF_OFF = CS_OFF + 32 * 12800
WF_OFF = HF_OFF + 256 * 128
PX_OFF = WF_OFF + 128 * 128
WS_USED = PX_OFF + 256 * 7 * 4096
TS_OFF = 24 << 20
LOG2E, NLOG2E, INV2PI, OOB = 0x3fb8aa3b, 0xbfb8aa3b, 0x3e22f983, 0x7f000000
def f2u(x): return struct.unpack('<I', struct.pack('<f', x))[0]

S_X, S_W1, S_W3, S_B, S_WS, S_J0, S_J1, S_DBG, S_AG = 4, 8, 12, 16, 20, 24, 28, 32, 36
sMT, sSL, sW, sI, sT0, sT1, sT2, sT3 = 40, 41, 42, 43, 44, 45, 46, 47
sXR = 48
sMASK, sFL, sLB, sD0, sD1, sH, sLBS, sBT = 52, 53, 54, 55, 56, 57, 58, 59
P_X, P_LRE, P_LIM, P_BRE, P_BIM, P_CRE, P_CIM, P_LDT, P_D, P_BX, P_W1, P_W3, P_W2, P_OUT, P_DBG, P_WS = [64 + 2 * i for i in range(16)]
sKX, sKB, sDB, sROT, sU0, sU1 = 96, 97, 98, 99, 100, 101
sSP = 89
sU2, sU3 = 82, 83
sN = 92

OPT = {}
def NT(k): return ' nt' if OPT.get(k) else ''
def S(d): return f"s[{d}:{d+3}]"
def V(a, n=1): return f"v[{a}:{a+n-1}]" if n > 1 else f"v{a}"
def A(a, n=1): return f"a[{a}:{a+n-1}]" if n > 1 else f"a{a}"
QP = "quad_perm:[1,0,3,2] row_mask:0xf bank_mask:0xf"
def items(f, *a):
    q = Prog(); f(q, *a); return q.items
def code(text, tag=None):
    q = Prog(); q.e(text, tag); return q.items

def srd(p, d, ptr, nrec, add=0):
    if add == 0: p.e(f"s_mov_b32 s{d}, s{ptr}\ns_mov_b32 s{d+1}, s{ptr+1}")
    elif add > 0: p.e(f"s_add_u32 s{d}, s{ptr}, {add}\ns_addc_u32 s{d+1}, s{ptr+1}, 0")
    else: p.e(f"s_sub_u32 s{d}, s{ptr}, {-add}\ns_subb_u32 s{d+1}, s{ptr+1}, 0")
    p.e(f"s_mov_b32 s{d+2}, {nrec}\ns_mov_b32 s{d+3}, 0x20000")

class Stamper:
    def __init__(self, on): self.on = on; self.n = 0
    def it(self, real=False):
        if not self.on: return []
        if OPT.get('rt') == 1: real = True
        if OPT.get('rt') == 2:
            n = self.n; self.n += 2
            return code(f"s_memrealtime s[0:1]\ns_memtime s[2:3]\ns_waitcnt lgkmcnt(0)\nv_writelane_b32 v251, s0, {n}\nv_writelane_b32 v251, s2, {n+1}")
        n = self.n; self.n += 1
        return code(f"{'s_memrealtime' if real else 's_memtime'} s[0:1]\ns_waitcnt lgkmcnt(0)\nv_writelane_b32 v251, s0, {n}")
    def __call__(self, p, real=False): p.extend(self.it(real))
    def dump(self, p):
        if not self.on: return
        p.wait_all()
        if OPT.get('dbgout'):
            p.e(f"s_lshl_b32 s3, s93, 2\ns_add_u32 s3, s3, s{sW}\ns_cmp_eq_u32 s3, {4*OPT['dbgout']}\ns_cselect_b32 s3, 4, {OOB}")
            p.e(f"v_readlane_b32 s0, v251, 0\nv_subrev_u32 v251, s0, v251\nv_lshlrev_b32 v3, 2, v1\nv_add_u32 v3, s3, v3\nbuffer_store_dword v251, v3, {S(S_DBG)}, 0 offen")
            return
        srd(p, 4, P_WS, TS_OFF + (1 << 20))
        p.e(f"v_lshlrev_b32 v3, 2, v1\ns_lshl_b32 s3, s93, 2\ns_add_u32 s3, s3, s{sW}\ns_lshl_b32 s3, s3, 8\ns_add_u32 s3, s3, {TS_OFF}")
        p.e("buffer_store_dword v251, v3, s[4:7], s3 offen")

class LazyStamp:
    def __init__(self, ts): self.ts = ts
def resolve(steps):
    for st in steps:
        out = []
        for it in st['pre']:
            out += it.ts.it() if isinstance(it, LazyStamp) else [it]
        st['pre'] = out
vL = 1
vXD, vXC = 2, 4
vSR = 6
vD, vDS, vDC = 10, 12, 13
vBR, vT, vTW, vH = 14, 18, 22, 23
vONE, vEX = 24, 28
vTMP = 32
ACC1, ACC2, CSA, TMP = 40, 120, 184, 200
vFZ, vPA, vPV, vPT, vC1, vC2, vL16, vZ = 208, 209, 39, 211, 212, 213, 38, 210
RT = 216
C0 = 232
XF, BF, EXTW, CSF = 0, 160, 220, 240
t0, t1, t2, t3, t4, t5 = range(vTMP, vTMP + 6)

XS = 0
X_JOB, X_RING, X_NS, X_SLOT = 49152, 81920, 5, 16384
Y_TBL, Y_RING, Y_NS, Y_SLOT = 49152, 57344, 5, 20480
EXT_L = XS + 16384
AG_L = XS
HT2_L = 0

class Ctx:
    def __init__(self, typ, opt):
        self.typ = typ; self.opt = opt; self.slow = []; self.npoll = 0
        self.ts = Stamper(opt.get('ts'))

def bf16r(p, v): p.e(f"v_cvt_pk_bf16_f32 v{v}, v{v}, v{v}\nv_and_b32 v{v}, s{sMASK}, v{v}")

def retry(c, loads, check):
    k = c.npoll; c.npoll += 1
    L = f"{c.typ}_poll{k}"
    q = Prog()
    q.e(f"{L}_slow:\ns_mov_b32 s{sSP}, 0x40000\n{L}_lp:\ns_sleep {OPT.get('sleep', 4)}")
    q.e(loads + "\ns_waitcnt vmcnt(0)\n" + check)
    q.e(f"s_cbranch_vccz {L}_ret\ns_sub_u32 s{sSP}, s{sSP}, 1\ns_cmp_lg_u32 s{sSP}, 0\ns_cbranch_scc1 {L}_lp\ns_branch {L}_ret")
    c.slow.append(q.finalize())
    if OPT.get('nospin') and 'v211' not in check: return code(check + f"\n{L}_ret:")
    return code(check + f"\ns_cbranch_vccnz {L}_slow\n{L}_ret:")
def retry2(c, loads, regs, tmp, sp):
    k = c.npoll; c.npoll += 1
    L = f"{c.typ}_poll{k}"
    chk = f"v_xor_b32 v{tmp}, s{sN}, v{regs[0]}\n" + "".join(f"v_bitop3_b32 v{tmp}, v{tmp}, v{r}, s{sN} bitop3:0xf6\n" for r in regs[1:]) + f"v_cmp_ne_u32 s[{sp}:{sp+1}], 0, v{tmp}\ns_cmp_lg_u64 s[{sp}:{sp+1}], 0"
    q = Prog()
    q.e(f"{L}_slow:\ns_mov_b32 s{sSP}, 0x40000\n{L}_lp:\ns_sleep {OPT.get('sleep', 4)}")
    q.e(loads + "\ns_waitcnt vmcnt(0)\n" + chk)
    q.e(f"s_cbranch_scc0 {L}_ret\ns_sub_u32 s{sSP}, s{sSP}, 1\ns_cmp_lg_u32 s{sSP}, 0\ns_cbranch_scc1 {L}_lp\ns_branch {L}_ret")
    c.slow.append(q.finalize())
    if OPT.get('nospin'): return code(chk + f"\n{L}_ret:")
    return code(chk + f"\ns_cbranch_scc1 {L}_slow\n{L}_ret:")
def tagcheck(regs):
    t = f"v_xor_b32 v{vPV}, s{sN}, v{regs[0]}\n"
    for r in regs[1:]: t += f"v_bitop3_b32 v{vPV}, v{vPV}, v{r}, s{sN} bitop3:0xf6\n"
    return t + f"v_cmp_ne_u32 vcc, 0, v{vPV}"
NONCE_LD = lambda: f"buffer_load_dword v{vPT}, v{vZ}, {S(S_DBG)}, 0 offen sc1"
def nonce_get(c):
    return retry(c, NONCE_LD(), f"v_cmp_eq_u32 vcc, 0, v{vPT}") + code(f"v_readfirstlane_b32 s{sN}, v{vPT}")
def flag(soff):
    return code(f"buffer_store_dword v{vPT}, v{vFZ}, {S(S_WS)}, {soff} offen sc1", 'flag')

def nextkb(s, unit):
    return f"s_add_u32 s{s}, s{s}, {unit}\ns_cmp_eq_u32 s{s}, {10*unit}\ns_cselect_b32 s{s}, 0, s{s}"

def setup(p, opt):
    p.e("s_cmp_ge_u32 s2, 256\ns_cbranch_scc1 K_end")
    p.e("s_load_dwordx16 s[64:79], s[0:1], 0\ns_load_dwordx16 s[80:95], s[0:1], 64")
    p.e(f"v_and_b32 v{vL}, 63, v0\nv_lshrrev_b32 v{t0}, 6, v0\nv_lshlrev_b32 v{vL16}, 4, v{vL}")
    p.e(f"v_readfirstlane_b32 s{sW}, v{t0}")
    p.e(f"s_and_b32 s{sMT}, s2, 3\ns_lshl_b32 s{sMT}, s{sMT}, 2\ns_bfe_u32 s{sT0}, s2, 0x20003\ns_add_u32 s{sMT}, s{sMT}, s{sT0}")
    p.e(f"s_and_b32 s{sSL}, s2, 4\ns_lshl_b32 s{sSL}, s{sSL}, 1\ns_lshr_b32 s{sT0}, s2, 5\ns_add_u32 s{sSL}, s{sSL}, s{sT0}\ns_lshr_b32 s{sI}, s{sSL}, 1")
    p.e(f"s_add_u32 s{sROT}, s{sMT}, s{sT0}\ns_cmp_ge_u32 s{sROT}, 10\ns_cselect_b32 s{sT1}, 10, 0\ns_sub_u32 s{sROT}, s{sROT}, s{sT1}")
    p.e(f"s_cmp_ge_u32 s{sROT}, 10\ns_cselect_b32 s{sT1}, 10, 0\ns_sub_u32 s{sROT}, s{sROT}, s{sT1}")
    p.e(f"s_lshl_b32 s{sKX}, s{sROT}, 7\ns_mov_b32 s{sKB}, s{sROT}\ns_mov_b32 s{sMASK}, 0xffff0000")
    p.e(f"s_lshl_b32 s{sFL}, s{sMT}, 4\ns_add_u32 s{sFL}, s{sFL}, s{sSL}\ns_lshl_b32 s{sFL}, s{sFL}, 7\ns_add_u32 s{sFL}, s{sFL}, {HF_OFF}")
    p.e(f"s_lshl_b32 s{sT0}, s{sMT}, 7\ns_lshl_b32 s{sT1}, s{sW}, 5\ns_add_u32 s{sT1}, s{sT0}, s{sT1}\ns_mul_i32 s{sXR}, s{sT1}, 1280")
    for i in range(1, 4): p.e(f"s_add_u32 s{sXR+i}, s{sXR}, {(8*1280-1024)*i}")
    p.e(f"s_lshl_b32 s{sLB}, s{sW}, 12")
    p.e(f"s_lshl_b32 s{sT1}, s{sSL}, 3\ns_add_u32 s{sT0}, s{sT0}, s{sT1}\ns_lshl_b32 s{sT1}, s{sW}, 1\ns_add_u32 s{sT0}, s{sT0}, s{sT1}")
    p.e(f"s_mul_i32 s{sU0}, s{sT0}, 1280\ns_lshl_b32 s{sU1}, s{sT0}, 4\ns_add_u32 s{sU1}, s{sU1}, {ST_OFF}")
    p.e(f"v_lshrrev_b32 v{t0}, 3, v{vL}\nv_and_b32 v{t1}, 7, v{vL}")
    p.e(f"v_lshrrev_b32 v{t2}, 5, v{vL}\nv_mul_u32_u24 v{t2}, 1280, v{t2}\nv_and_b32 v{t3}, 31, v{vL}\nv_lshl_add_u32 v{t4}, v{t3}, 3, v{t2}")
    p.e(f"v_lshrrev_b32 v{t2}, 4, v{vL}\nv_xor_b32 v{t2}, v{t1}, v{t2}\nv_lshlrev_b32 v{t2}, 4, v{t2}\nv_mul_u32_u24 v{t3}, 1280, v{t0}")
    p.e(f"v_add_u32 v{vXD}, v{t2}, v{t3}\nv_xor_b32 v{vXD+1}, 64, v{vXD}")
    p.e(f"v_mov_b32 v{vZ}, 0\nv_mov_b32 v{t2}, {OOB}\nv_cmp_eq_u32 vcc, 0, v0\nv_cndmask_b32 v{vFZ}, v{t2}, v0, vcc")
    p.e("s_cmp_lg_u32 s2, 0\ns_cbranch_scc1 K_nz\ns_memrealtime s[4:5]\nK_nz:")
    p.e("s_waitcnt lgkmcnt(0)")
    srd(p, S_DBG, P_DBG, 256)
    p.e(f"s_cmp_lg_u32 s2, 0\ns_cbranch_scc1 K_nz2\ns_or_b32 s4, s4, 1\nv_mov_b32 v{vPT}, s4\nbuffer_store_dword v{vPT}, v{vFZ}, {S(S_DBG)}, 0 offen sc1\ns_waitcnt vmcnt(0)\nK_nz2:")
    p.forget()
    srd(p, S_X, P_X, 2048 * 1280)
    if opt.get('cpf', 1):
        p.e(f"s_getpc_b64 s[24:25]\nK_pc:\ns_bitcmp1_b32 s{sSL}, 0\ns_cselect_b32 s26, K_Y-K_pc, 0\ns_add_u32 s24, s24, s26\ns_addc_u32 s25, s25, 0\ns_mov_b32 s26, CODE_BYTES\ns_mov_b32 s27, 0x20000")
        p.e(f"s_and_b32 s28, s{sMT}, {opt.get('cpfm', 3)}\ns_cmp_eq_u32 s28, 0\ns_cselect_b32 s28, 0, {OOB}\nv_lshlrev_b32 v{t5}, 7, v0\nv_add_u32 v{t5}, s28, v{t5}")
        p.e(f"buffer_load_dword v{t3}, v{t5}, s[24:27], 0 offen", tag='sx')
    for i in range(5):
        p.e(f"buffer_load_dwordx2 {V(RT+2*i,2)}, v{t4}, {S(S_X)}, s{sU0} offen offset:{256*i}", tag='sx')

def x_dma(j):
    q = Prog()
    q.wait_lgkm(('xr', j - 3))
    q.e(f"v_add_u32 v{vXC}, s{sKX}, v{vXD}\nv_add_u32 v{vXC+1}, s{sKX}, v{vXD+1}\ns_add_u32 m0, s{sLB}, {XS + (j % 3) * 16384}")
    for i in range(4):
        q.e(f"buffer_load_dwordx4 v{vXC+(i&1)}, {S(S_X)}, s{sXR+i} offen offset:{1024*i}{NT('ntx')} lds", tag=('x', j))
    q.e(nextkb(sKX, 128))
    return q.items
def x_read(j):
    q = Prog(); q.wait_vm(('x', j))
    for s in range(4): q.e(f"ds_read_b128 {A(XF+16*j+4*s,4)}, v{vSR+s} offset:{(j % 3) * 16384}", ('xr', j))
    return q.items

def ffn_dma(base, j):
    q = Prog()
    q.e(f"s_mul_i32 s{sD0}, s{sKB}, {64*3072}\ns_add_u32 s{sD0}, s{sD0}, s{sDB}\ns_add_u32 s{sD1}, s{sD0}, {8*3072-2048}\ns_add_u32 m0, s{sLB}, {base}")
    q.e(f"buffer_load_dwordx4 v{vD}, {S(S_W1)}, s{sD0} offen{NT('ntw')} lds", tag=('slot', j))
    q.e(f"buffer_load_dwordx4 v{vD+1}, {S(S_W3)}, s{sD0} offen offset:1024{NT('ntw')} lds", tag=('slot', j))
    q.e(f"buffer_load_dwordx4 v{vD}, {S(S_W1)}, s{sD1} offen offset:2048{NT('ntw')} lds", tag=('slot', j))
    q.e(f"buffer_load_dwordx4 v{vD+1}, {S(S_W3)}, s{sD1} offen offset:3072{NT('ntw')} lds", tag=('slot', j))
    q.e(nextkb(sKB, 1))
    return q.items
def ssm_dma(base, j):
    q = Prog()
    q.e(f"s_lshl_b32 s{sD0}, s{sKB}, 7\nv_add_u32 v{vDC}, s{sD0}, v{vDS}\ns_add_u32 m0, s{sLBS}, {base}")
    for t in range(4):
        q.e(f"buffer_load_dwordx4 v{vDC}, {S(S_B)}, s{sBT+t} offen offset:{1024*t}{NT('ntw')} lds", tag=('slot', j))
    q.e(f"s_add_u32 m0, s{sLBS}, {base + 4096}")
    q.e(f"buffer_load_dwordx4 v{vDC}, {S(S_B)}, s{sBT+4} offen{NT('ntw')} lds", tag=('slot', j))
    q.e(nextkb(sKB, 1))
    return q.items

def ffn_dma_addr(p):
    p.e(f"v_bfe_u32 v{t2}, v{vL}, 4, 1\nv_lshlrev_b32 v{t2}, 1, v{t2}\nv_xor_b32 v{t2}, v{t1}, v{t2}\nv_lshlrev_b32 v{t2}, 4, v{t2}")
    p.e(f"v_mul_u32_u24 v{t3}, 3072, v{t0}\nv_add_u32 v{vD}, v{t2}, v{t3}\nv_xor_b32 v{vD+1}, 64, v{vD}")
    srd(p, S_W1, P_W1, 640 * 3072)
    srd(p, S_W3, P_W3, 640 * 3072 + 1024, -1024)

def common_addr(p):
    p.e(f"v_bfe_u32 v{t2}, v{vL}, 2, 1\nv_lshlrev_b32 v{t2}, 4, v{t2}\nv_bfe_u32 v{t3}, v{vL}, 3, 2\nv_lshl_add_u32 v{t2}, v{t3}, 2, v{t2}")
    p.e(f"v_and_b32 v{t3}, 3, v{vL}\nv_add_u32 v{t2}, v{t2}, v{t3}\nv_lshlrev_b32 v{vC1}, 4, v{t2}")
    p.e(f"v_bfe_u32 v{t3}, v{t2}, 1, 3\nv_lshrrev_b32 v{vSR}, 5, v{vL}\nv_xor_b32 v{t3}, v{t3}, v{vSR}\nv_lshlrev_b32 v{t3}, 4, v{t3}")
    p.e(f"v_lshl_add_u32 v{t3}, v{t2}, 7, v{t3}\nv_add_u32 v{vSR}, s{sLB}, v{t3}")
    for s in range(1, 4): p.e(f"v_xor_b32 v{vSR+s}, {32*s}, v{vSR}")
    p.e(f"v_bfe_u32 v{t2}, v{vL}, 2, 1\nv_lshlrev_b32 v{t2}, 10, v{t2}\nv_bfe_u32 v{t3}, v{vL}, 3, 3\nv_lshl_add_u32 v{t2}, v{t3}, 6, v{t2}")
    p.e(f"v_and_b32 v{t3}, 3, v{vL}\nv_lshl_add_u32 v{vH}, v{t3}, 4, v{t2}")
    for i in range(4): p.e(f"v_mov_b32 v{vONE+i}, 0x3f803f80")
    srd(p, S_WS, P_WS, WS_USED)
    p.e(f"s_lshl_b32 s{sT0}, s{sMT}, 1\ns_lshr_b32 s{sT1}, s{sW}, 1\ns_add_u32 s{sT0}, s{sT0}, s{sT1}\ns_mul_i32 s{sT0}, s{sT0}, 88")
    p.e(f"s_mul_i32 s{sT1}, s{sI}, 11\ns_add_u32 s{sT0}, s{sT0}, s{sT1}\ns_lshl_b32 s{sH}, s{sT0}, 12")
    p.e(f"s_and_b32 s{sT1}, s{sW}, 1\ns_lshl_b32 s{sT1}, s{sT1}, 11\ns_add_u32 s{sH}, s{sH}, s{sT1}")

def tr_addrs(p, base):
    p.e(f"v_bfe_u32 v{t0}, v{vL}, 4, 1\nv_lshrrev_b32 v{t1}, 5, v{vL}\nv_lshlrev_b32 v{t1}, 11, v{t1}\nv_lshl_add_u32 v{t1}, v{t0}, 10, v{t1}")
    p.e(f"v_bfe_u32 v{t2}, v{vL}, 2, 2\nv_lshl_add_u32 v{t1}, v{t2}, 7, v{t1}\nv_and_b32 v{t3}, 3, v{vL}\nv_lshl_add_u32 v{t1}, v{t3}, 3, v{t1}")
    p.e(f"v_bfe_u32 v{t2}, v{vL}, 3, 1\nv_lshl_add_u32 v{t2}, v{t0}, 1, v{t2}\nv_lshl_add_u32 v{t1}, v{t2}, 5, v{t1}")
    p.e(f"v_add_u32 v{vT}, {base}, v{t1}")
    for tau in range(1, 4): p.e(f"v_xor_b32 v{vT+tau}, {32*tau}, v{vT}")

def touch():
    q = Prog()
    q.e(f"v_lshlrev_b32 v{vPA}, 19, v{vL}\nv_min_u32 v{vPA}, {WS_USED - 4}, v{vPA}\nbuffer_load_dword v250, v{vPA}, {S(S_WS)}, 0 offen")
    q.e(f"v_min_u32 v{vPA}, {2048*2560 - 4}, v{vPA}\nglobal_load_dword v250, v{vPA}, s[{P_OUT}:{P_OUT+1}]")
    return q.items

def stats_job(p):
    R = RT; aQ, aS = TMP, TMP + 1
    p.e(f"v_mov_b32 v{aS}, 0\nv_mov_b32 v{aQ}, 0")
    for d in range(10):
        p.e(f"v_dot2c_f32_bf16 v{aS}, v{vONE}, v{R+d}\nv_dot2c_f32_bf16 v{aQ}, v{R+d}, v{R+d}")
    p.e("s_nop 2")
    for perm in ("quad_perm:[1,0,3,2] row_mask:0xf", "quad_perm:[2,3,0,1] row_mask:0xf", "row_half_mirror row_mask:0xf", "row_mirror row_mask:0xf", "row_bcast:15 row_mask:0xa"):
        for r in (aS, aQ): p.e(f"v_add_f32_dpp v{r}, v{r}, v{r} {perm} bank_mask:0xf")
    inv = f2u(1.0 / 640)
    p.e(f"v_mul_f32 v{aS}, {inv}, v{aS}\nv_mul_f32 v{aQ}, {inv}, v{aQ}\nv_fma_f32 v{aQ}, -v{aS}, v{aS}, v{aQ}\nv_max_f32 v{aQ}, 0, v{aQ}")
    p.e(f"v_sub_f32 v{aS}, 0, v{aS}\nv_cvt_pk_bf16_f32 v{aS}, v{aS}, v{aS}")
    bf16r(p, aQ)
    p.e(f"v_add_f32 v{aQ}, {f2u(1e-5)}, v{aQ}")
    bf16r(p, aQ)
    p.e(f"v_sqrt_f32 v{aQ}, v{aQ}")
    bf16r(p, aQ)
    p.e(f"v_rcp_f32 v{aQ}, v{aQ}")
    p.e(f"v_and_b32 v{R}, 31, v{vL}\nv_cmp_eq_u32 vcc, 16, v{R}\nv_lshrrev_b32 v{R}, 1, v{vL}\nv_and_b32 v{R}, 16, v{R}\nv_mov_b32 v{R+1}, {OOB}\nv_cndmask_b32 v{R}, v{R+1}, v{R}, vcc")
def stats_store():
    return code(f"v_mov_b32 v{TMP+2}, s{sN}\nv_mov_b32 v{TMP+3}, s{sN}\nbuffer_store_dwordx4 {V(TMP,4)}, v{RT}, {S(S_WS)}, s{sU1} offen sc1", 'pub')

def cs_store_addr(q, gidexpr):
    q.e(gidexpr)
    q.e(f"s_mul_i32 s{sU3}, s{sT0}, 12800\ns_add_u32 s{sU3}, s{sU3}, {CS_OFF}\ns_mul_i32 s{sT0}, s{sROT}, 1280\ns_add_u32 s{sU2}, s{sU3}, s{sT0}")
    q.e(f"s_lshl_b32 s{sT0}, s{sW}, 8\ns_add_u32 s{sU2}, s{sU2}, s{sT0}\ns_add_u32 s{sU3}, s{sU3}, s{sT0}")
    q.e(f"s_cmp_lt_u32 s{sMT}, 10\ns_cselect_b32 s{sT0}, 32, 0\nv_cmp_gt_u32 vcc, s{sT0}, v{vL}\nv_lshlrev_b32 v{t4}, 3, v{vL}\nv_mov_b32 v{t5}, {OOB}\nv_cndmask_b32 v{t4}, v{t5}, v{t4}, vcc")

def cs_produce_ffn(acc, gidexpr):
    q = Prog()
    q.e(f"s_lshl_b32 s{sT0}, s{sW}, 5\nv_xor_b32 v{vTW}, s{sT0}, v{vT}")
    for s in range(4):
        for t in range(2):
            q.e(f"ds_read_b64_tr_b16 {A(CSF+4*s+2*t,2)}, v{vTW} offset:{s*4096 + t*512}")
    cs_store_addr(q, gidexpr)
    for s in range(4):
        q.e(f"v_mfma_f32_32x32x16_bf16 {V(acc,16)}, {V(vONE,4)}, {A(CSF+4*s,4)}, {'0' if s == 0 else V(acc,16)}")
    st = code(f"v_mov_b32 v{acc+1}, s{sN}\nbuffer_store_dwordx2 {V(acc,2)}, v{t4}, {S(S_WS)}, s{sU2} offen sc1", 'pub')
    return q.items, st

def cs_consume(c, ntile, R0):
    q = Prog()
    q.e(f"v_lshrrev_b32 v{vPA}, 5, v{vL}\nv_mul_u32_u24 v{vPA}, 6400, v{vPA}\nv_and_b32 v{t5}, 31, v{vL}\nv_lshl_add_u32 v{vPA}, v{t5}, 3, v{vPA}")
    q.e(f"s_add_u32 s{sU2}, s{sU3}, 3840")
    rounds = [(R0, 0)]
    ld = ""
    for i in range(5): ld += f"buffer_load_dwordx2 {V(R0+2*i,2)}, v{vPA}, {S(S_WS)}, s{sU3 if i < 3 else sU2} offen offset:{1280*(i%3)} sc1\n"
    if ntile == 5:
        q.e(f"s_lshl_b32 s86, s{sW}, 8\ns_sub_u32 s86, 1024, s86\nv_add_u32 v{vTW}, s86, v{vPA}")
        for i in range(5): ld += f"buffer_load_dwordx2 {V(R0+10+2*i,2)}, v{vTW}, {S(S_WS)}, s{sU3 if i < 3 else sU2} offen offset:{1280*(i%3)} sc1\n"
        rounds.append((R0 + 10, 1))
    q.e(ld)
    a = q.items
    q = Prog()
    q.extend(retry(c, ld, tagcheck([R0 + 1 + 2 * i for i in range(5 * len(rounds))])))
    q.e(f"v_cmp_gt_u32 vcc, 32, v{vL}")
    for (R, which) in rounds:
        q.e(f"v_add_f32 v{R}, v{R}, v{R+2}\nv_add_f32 v{R+4}, v{R+4}, v{R+6}\nv_add_f32 v{R}, v{R}, v{R+8}\nv_add_f32 v{R}, v{R}, v{R+4}")
        q.e(f"v_mov_b32 v{R+1}, v{R}\nv_mov_b32 v{R+6}, 0\nv_mov_b32 v{R+7}, 0\nv_permlane32_swap_b32 v{R}, v{R+1}\nv_add_f32 v{R}, v{R}, v{R+1}\nv_cndmask_b32 v{R}, 0, v{R}, vcc")
        q.e(f"v_cvt_pk_bf16_f32 v{R+1}, v{R}, v{R}\nv_and_b32 v{R+1}, s{sMASK}, v{R+1}\nv_sub_f32 v{R}, v{R}, v{R+1}")
        q.e(f"v_cvt_pk_bf16_f32 v{R+4}, v{R+1}, v{R}\nv_and_b32 v{R+2}, s{sMASK}, v{R+4}\nv_sub_f32 v{R}, v{R}, v{R+2}")
        q.e(f"v_cvt_pk_bf16_f32 v{R+5}, v{R}, 0")
        if which == 0:
            q.e(f"s_lshr_b32 s{sT0}, s{sLB}, 2\nv_add_u32 v{t5}, s{sT0}, v{vL16}")
            q.e(f"ds_write_b128 v{t5}, {V(R+4,4)} offset:{EXT_L}", tag='ext')
        else:
            q.e(f"ds_write_b128 v{vL16}, {V(R+4,4)} offset:{EXT_L + 4096}", tag='ext')
    q.wait_lgkm('ext')
    return a, q.items
def ext_read(ntile):
    return code("\n".join(f"ds_read_b128 {A(EXTW+4*t,4)}, v{vL16} offset:{EXT_L + 1024*t}" for t in range(ntile)))

def stats_consume(c):
    q = Prog()
    q.e(f"s_lshl_b32 s87, s{sMT}, 11\ns_lshl_b32 s86, s{sW}, 9\ns_add_u32 s87, s87, s86\ns_add_u32 s{sU0}, s87, {ST_OFF}")
    ld = f"buffer_load_dwordx4 {V(vEX,4)}, v{vC1}, {S(S_WS)}, s{sU0} offen sc1"
    q.e(ld)
    a = q.items
    q = Prog()
    q.extend(retry(c, ld, tagcheck([vEX + 2, vEX + 3])))
    if c.typ == 'Y':
        q.e(f"s_lshl_b32 s{sT0}, s{sW}, 7\ns_add_u32 s{sT0}, s{sT0}, 159744")
        q.e(f"v_lshrrev_b32 v{t3}, 2, v{vC1}\nv_add_u32 v{t3}, s{sT0}, v{t3}\nds_write_b32 v{t3}, v{vEX}")
        q.e(f"v_lshrrev_b32 v{t2}, 5, v{vL}\nv_lshlrev_b32 v{t2}, 6, v{t2}\nv_add_u32 v{t2}, s{sT0}, v{t2}")
        for i in range(4): q.e(f"ds_read_b128 {V(RT+4*i,4)}, v{t2} offset:{16*i}")
    q.e(f"v_mul_f32 v{vC1}, {NLOG2E}, v{vEX}\nv_rcp_f32 v{vC2}, v{vEX}\nv_mov_b32 v{vEX}, v{vEX+1}\nv_mov_b32 v{vEX+2}, v{vEX+1}\nv_mov_b32 v{vEX+3}, v{vEX+1}")
    q.e(f"v_mul_f32 v{vC2}, v{vC2}, v{vC2}")
    return a, q.items

def ffn_epi(acc, pos, imm):
    p = Prog(); tmp = TMP
    for r in range(8): p.e(f"v_mul_f32 v{tmp+r}, v{vC1}, v{acc+r}")
    for r in range(8): p.e(f"v_exp_f32 v{tmp+r}, v{tmp+r}\nv_mul_f32 v{acc+r}, v{acc+r}, v{acc+8+r}")
    for r in range(8): p.e(f"v_fma_f32 v{tmp+r}, v{tmp+r}, v{vC2}, v{vC2}")
    for r in range(8): p.e(f"v_rcp_f32 v{tmp+r}, v{tmp+r}")
    p.e(f"s_add_u32 s{sT2}, s{sH}, {pos*4096}")
    for r in range(8): p.e(f"v_mul_f32 v{acc+r}, v{acc+r}, v{tmp+r}")
    for r in range(4): p.e(f"v_cvt_pk_bf16_f32 v{acc+8+r}, v{acc+2*r}, v{acc+2*r+1}")
    p.e(f"buffer_store_dwordx4 {V(acc+8,4)}, v{vH}, {S(S_WS)}, s{sT2} offen offset:{imm} sc1", tag='h')
    if OPT.get('dual'): p.e(f"buffer_store_dwordx4 {V(acc+8,4)}, v{vH}, {S(S_WS)}, s{sT2} offen offset:{imm}", tag='h')
    return p.items

class Ring:
    def __init__(self, reg, n, cur): self.reg = reg; self.n = n; self.cur = cur
    def off(self, base, span, out):
        if base < self.cur or base + span - self.cur > 65536:
            out += code("\n".join(f"v_add_u32 v{self.reg+i}, {(base - self.cur) & 0xffffffff}, v{self.reg+i}" for i in range(self.n)))
            self.cur = base
        return base - self.cur

def build_steps(c, kinds, slot_base, dma, NS, rT, rB, pre_extra, late):
    steps = []
    TMB = OPT.get('tmb', 3); TM0 = 80 - 4 * TMB
    reads = []
    for n in range(80):
        j, s = divmod(n, 4); buf = BF + (n % 3) * 20 if kinds[j] == 'S' else (160, 180, 196)[n % 3]
        base = slot_base(j)
        rd = []
        if kinds[j] == 'F':
            acc = ACC1 if (j < 10) else ACC2
            mf = []
            for e in range(4):
                tau, jj, ss = e, j, s
                if n >= TM0: tau, jj, ss = (n - TM0) // TMB, 20 - TMB + (n - TM0) % TMB, e
                o = []
                off = rT.off(slot_base(jj), 16384, o)
                o += code("\n".join(f"ds_read_b64_tr_b16 {A(buf+4*e+2*t,2)}, v{vT+tau} offset:{off + ss*4096 + t*512}" for t in range(2)), ('rd', n))
                rd.append(o)
                cc = "0" if n % 40 == 0 else V(acc + 16 * tau, 16)
                mf += code(f"v_mfma_f32_32x32x16_bf16 {V(acc+16*tau,16)}, {A(buf+4*e,4)}, {A(XF+4*((4*jj+ss)%40),4)}, {cc}")
        else:
            mf = []
            for t in range(5):
                o = []
                off = rB.off(base, 20480, o)
                o += code(f"ds_read_b128 {A(buf+4*t,4)}, v{vBR+s} offset:{off + 1024*t}", ('rd', n))
                rd.append(o)
                cc = "0" if n == 0 else V(ACC1 + 16 * t, 16)
                mf += code(f"v_mfma_f32_32x32x16_bf16 {V(ACC1+16*t,16)}, {A(XF+4*n,4)}, {A(buf+4*t,4)}, {cc}")
        reads.append(rd)
        steps.append(dict(pre=[], mf=mf, rd=[[] for _ in mf]))
    for n in range(80):
        st = steps[n]; j, s = divmod(n, 4)
        if c.opt.get('st0') is not None: st['pre'] += code(f'.set STEPMARK{c.typ}{n}, 0')
        if c.opt.get('ts') == 2 and s == 0: st['pre'] += [LazyStamp(c.ts)]
        st['pre'] += [Marker('lgkm', ('rd', n))]
        syncs = [j + 1] if (s == 2 and j + 1 <= 20 - TMB) else []
        if n == TM0 - 1: syncs = list(range(21 - TMB, 20))
        if syncs:
            sy = [x for k in syncs for x in pre_extra.get(('sync', k), []) + [Marker('vm', ('slot', k))]] + code("s_barrier") + [x for k in syncs for x in pre_extra.get(('post', k), [])]
            st['rd'][0] += sy
        if n + 2 < 80:
            src = reads[n + 2]; g = len(st['mf'])
            st['rd'][min(len(src), g) - 1] += [Marker('lgkm', ('rd', n + 1))]
            for i, o in enumerate(src): st['rd'][min(i, g - 1)] += o
        if s == 1 and j + 1 < 10:
            st['rd'][0] += x_read(j + 1)
    for tau in range(4):
        st = steps[TM0 + TMB * tau + TMB - 1]
        st['mf'] += code(f"v_mfma_f32_32x32x16_bf16 {V(ACC2+16*tau,16)}, {A(EXTW+4*tau,4)}, {V(vEX,4)}, {V(ACC2+16*tau,16)}"); st['rd'] += [[]]
    c.TM0, c.TMB = TM0, TMB
    va = VmAlloc(steps); c.va = va
    LR, LX = OPT.get('leadr', 7), OPT.get('leadx', 5)
    va.place(0, dma(3), by=10 - LR); va.place(0, x_dma(3), by=9 - LX)
    va.place(3, x_dma(4), by=13 - LX); va.place(3, dma(4), by=14 - LR)
    for j in range(1, 20):
        if j - 1 + NS < 20: va.place(4 * j + 2, dma(j - 1 + NS), by=4 * (j - 2 + NS) + 2 - LR)
        if j + 4 < 10: va.place(4 * j + 3, x_dma(j + 4), by=4 * (j + 3) + 1 - LX)
        for its in late.get(j, []): va.place(4 * j + 3, its)
    if OPT.get('vlog'): print(va.log, file=sys.stderr)
    return steps, reads[0], reads[1]

class VmAlloc:
    def __init__(self, steps):
        self.steps = steps; self.used = set(); self.dma_next = 0; self.log = []; self.b_next = 0; self.iv = []
        self.gaps = [(n, g) for n, st in enumerate(steps) for g in range(len(st['mf']))]
        self.first = {}
        for i, (n, g) in enumerate(self.gaps): self.first.setdefault(n, i)
    def place(self, n, its, dma=True, stride=None, by=None):
        stride = stride or OPT.get('vstride', 2)
        groups, cur = [], []
        for it in its:
            cur.append(it)
            if isinstance(it, I) and it.kind == 'vm': groups.append(cur); cur = []
        if cur: groups[-1] += cur
        i0 = self.first[n]
        if dma == 'b': i0 = max(i0, self.b_next)
        elif dma is True: i0 = max(i0, self.dma_next)
        inside = (lambda i: any(a < i < b for a, b in self.iv)) if dma == 'l' else (lambda i: False)
        if dma == 'l': i0 = max(i0, self.b_next)
        for st_ in range(stride, 0, -1):
            i = i0; pos = []; used = set(self.used)
            for grp in groups:
                while inside(i) or any((i + d) in used for d in range(-st_ + 1, st_)): i += 1
                pos.append(i); used.add(i)
            if by is None or i < self.first[max(by, 0)] or st_ == 1: break
        if i >= len(self.gaps): return False
        for grp, k in zip(groups, pos):
            a, b = self.gaps[k]
            self.steps[a]['rd'][b] += grp; self.used.add(k)
        self.log.append((n, by, self.gaps[pos[0]], self.gaps[pos[-1]]))
        if dma in ('b', 'l'): self.b_next = i + 1
        elif dma: self.dma_next = i + 1; self.iv.append((pos[0], pos[-1]))
        return True

def flat(rd): return [x for o in rd for x in o]

sJW, sJ0, sJ1, sJ2, sJ3, sJ4 = 16, 17, 18, 19, sLBS, sBT
def lam_consts(q, L, pows, coef):
    lr, li, ld, a2, rev, O, u = L + 1, L + 2, L + 3, L + 4, L + 5, L + 8, L + 16
    q.e(f"v_lshlrev_b32 v{lr}, 16, v{lr}\nv_lshlrev_b32 v{li}, 16, v{li}\nv_lshlrev_b32 v{ld}, 16, v{ld}")
    q.e(f"v_mul_f32 v{ld}, {LOG2E}, v{ld}\nv_exp_f32 v{ld}, v{ld}")
    bf16r(q, ld)
    q.e(f"v_mul_f32 v{a2}, v{ld}, v{lr}\nv_mul_f32 v{rev}, v{ld}, v{li}\nv_mul_f32 v{a2}, {LOG2E}, v{a2}\nv_mul_f32 v{rev}, {INV2PI}, v{rev}")
    for n, k in enumerate(pows):
        if k != 1: q.e(f"v_mul_f32 v{u}, {f2u(float(k))}, v{a2}\nv_mul_f32 v{u+1}, {f2u(float(k))}, v{rev}\nv_exp_f32 v{u}, v{u}\nv_fract_f32 v{u+1}, v{u+1}")
        else: q.e(f"v_exp_f32 v{u}, v{a2}\nv_fract_f32 v{u+1}, v{rev}")
        q.e(f"v_cos_f32 v{u+2}, v{u+1}\nv_sin_f32 v{u+3}, v{u+1}\nv_mul_f32 v{O+2*n}, v{u}, v{u+2}\nv_mul_f32 v{O+2*n+1}, v{u}, v{u+3}")
    if coef:
        q.e(f"v_add_f32 v{u}, -1.0, v{O}\nv_mul_f32 v{u+1}, v{lr}, v{lr}\nv_fmac_f32 v{u+1}, v{li}, v{li}\nv_rcp_f32 v{u+1}, v{u+1}")
        q.e(f"v_mul_f32 v{u+2}, v{u}, v{lr}\nv_fmac_f32 v{u+2}, v{O+1}, v{li}\nv_mul_f32 v{u+3}, v{O+1}, v{lr}\nv_fma_f32 v{u+3}, -v{u}, v{li}, v{u+3}")
        q.e(f"v_add_f32 v{u+1}, v{u+1}, v{u+1}\nv_mul_f32 v{L+4}, v{u+2}, v{u+1}\nv_mul_f32 v{L+5}, v{u+3}, v{u+1}")

def jobs(c):
    JL = ACC2 + 32
    q = Prog()
    q.e(f"s_lshl_b32 s{sT0}, s{sI}, 4\ns_add_u32 s{sT0}, s{sT0}, s{sMT}\ns_lshl_b32 s{sT0}, s{sT0}, 2\ns_add_u32 s{sJW}, s{sT0}, s{sW}\ns_lshl_b32 s{sJ3}, s{sW}, 13")
    q.e(f"s_min_u32 s{sT0}, s{sJW}, 479\ns_mul_i32 s{sJ1}, s{sT0}, 6554\ns_lshr_b32 s{sJ1}, s{sJ1}, 16\ns_mul_i32 s{sT2}, s{sJ1}, 10\ns_sub_u32 s{sJ0}, s{sT0}, s{sT2}")
    srd(q, S_J0, P_W2, 1536 * 1280)
    q.e(f"v_lshrrev_b32 v{t0}, 3, v{vL}\nv_and_b32 v{t1}, 7, v{vL}\nv_lshrrev_b32 v{t2}, 4, v{vL}\nv_lshlrev_b32 v{t2}, 1, v{t2}\nv_xor_b32 v{t2}, v{t1}, v{t2}\nv_lshlrev_b32 v{t2}, 4, v{t2}")
    q.e(f"v_mul_u32_u24 v{t3}, 1280, v{t0}\nv_add_u32 v{vBR}, v{t2}, v{t3}")
    q.e(f"s_mul_i32 s{sBT+1}, s{sJ1}, {32*1280}\ns_lshl_b32 s{sT3}, s{sJ0}, 7\ns_add_u32 s{sBT+1}, s{sBT+1}, s{sT3}")
    q.e(f"s_min_u32 s{sT0}, s{sJW}, 399\ns_mul_i32 s{sJ2}, s{sT0}, 6554\ns_lshr_b32 s{sJ2}, s{sJ2}, 16\ns_mul_i32 s{sT2}, s{sJ2}, 10\ns_sub_u32 s{sJW}, s{sT0}, s{sT2}")
    srd(q, S_J1, P_CRE, 640 * 1280)
    srd(q, S_AG, P_CIM, 640 * 1280 + 2048, -2048)
    q.e(f"s_mul_i32 s{sBT+2}, s{sJ2}, {16*1280}\ns_lshl_b32 s{sT3}, s{sJW}, 7\ns_add_u32 s{sBT+2}, s{sBT+2}, s{sT3}\ns_add_u32 s{sBT+3}, s{sBT+2}, {8*1280-1024}")
    q.e(f"v_lshlrev_b32 v{JL}, 1, v{vL}\nv_add_u32 v{JL}, s{sT3}, v{JL}")
    for k, ptr in enumerate((P_LRE, P_LIM, P_LDT)):
        q.e(f"global_load_ushort v{JL+1+k}, v{JL}, s[{ptr}:{ptr+1}]", tag='tbl')
    a = q.items
    q = Prog()
    q.e(f"s_add_u32 m0, s{sJ3}, {X_JOB}")
    for i in range(4):
        q.e(f"buffer_load_dwordx4 v{vBR}, {S(S_J0)}, s{sBT+1} offen offset:{1024*i}{NT('ntj')} lds", tag='jobA')
        if i < 3: q.e(f"s_add_u32 s{sBT+1}, s{sBT+1}, {8*1280-1024}")
    da = q.items
    q = Prog()
    q.e(f"s_add_u32 m0, s{sJ3}, {X_JOB + 4096}")
    for i, (sr, so) in enumerate(((S_J1, sBT + 2), (S_J1, sBT + 3), (S_AG, sBT + 2), (S_AG, sBT + 3))):
        q.e(f"buffer_load_dwordx4 v{vXD+(i&1)}, {S(sr)}, s{so} offen offset:{1024*i}{NT('ntj')} lds", tag='jobB')
    db = q.items
    q = Prog()
    q.e(f"v_bfe_u32 v{t0}, v{vL}, 2, 3\nv_lshrrev_b32 v{t1}, 5, v{vL}\nv_lshl_add_u32 v{t1}, v{t1}, 4, v{t0}")
    q.e(f"v_lshrrev_b32 v{t0}, 1, v{t0}\nv_lshlrev_b32 v{t0}, 5, v{t0}\nv_lshl_add_u32 v{t0}, v{t1}, 7, v{t0}\nv_and_b32 v{t1}, 3, v{vL}")
    q.e(f"v_lshl_add_u32 v{t0}, v{t1}, 3, v{t0}\nv_add_u32 v{vBR}, s{sJ3}, v{t0}")
    for tau in range(1, 4): q.e(f"v_xor_b32 v{vBR+tau}, {32*tau}, v{vBR}")
    q.e(f"s_mul_i32 s{sT0}, s{sJ1}, 43\ns_lshr_b32 s{sT0}, s{sT0}, 8\ns_mul_i32 s{sT0}, s{sT0}, 5\ns_add_u32 s{sT0}, s{sT0}, s{sJ1}\ns_mul_i32 s{sJ1}, s{sT0}, 5")
    q.wait_vm('jobA')
    for tau in range(4):
        for t in range(2): q.e(f"ds_read_b64_tr_b16 {V(CSA+4*tau+2*t,2)}, v{vBR+tau} offset:{X_JOB + 1024*t}")
    for tau in range(4):
        q.e(f"s_lshl_b32 s{sT0}, s{sJ0}, 2\ns_add_u32 s{sT0}, s{sT0}, {tau}\ns_mul_i32 s{sT1}, s{sT0}, 52\ns_lshr_b32 s{sT1}, s{sT1}, 8")
        q.e(f"s_mul_i32 s{sT2}, s{sT1}, 435\ns_add_u32 s{sT0}, s{sT0}, s{sT2}\ns_add_u32 s{sT0}, s{sT0}, s{sJ1}")
        q.e(f"s_lshl_b32 s{sT0}, s{sT0}, 10\ns_add_u32 s{sT0}, s{sT0}, {W2S_OFF}")
        q.e(f"buffer_store_dwordx4 {V(CSA+4*tau,4)}, v{vL16}, {S(S_WS)}, s{sT0} offen sc1", tag='pub')
    pa = q.items
    q = Prog()
    lam_consts(q, JL, [1], True)
    q.e(f"v_sub_f32 v{JL+5}, 0, v{JL+5}\nv_sub_f32 v{JL+6}, 0, v{JL+4}\nv_lshlrev_b32 v{t0}, 2, v{vL}\nv_add_u32 v{t0}, s{sJ3}, v{t0}")
    for k in range(3): q.e(f"ds_write_b32 v{t0}, v{JL+4+k} offset:{X_JOB + 256*k}")
    q.e(f"v_bfe_u32 v{t0}, v{vL}, 1, 3\nv_bfe_u32 v{t1}, v{vL}, 4, 1\nv_xor_b32 v{t0}, v{t0}, v{t1}\nv_lshlrev_b32 v{t0}, 4, v{t0}")
    q.e(f"v_and_b32 v{t2}, 15, v{vL}\nv_lshl_add_u32 v{t0}, v{t2}, 7, v{t0}\nv_add_u32 v{vBR}, s{sJ3}, v{t0}")
    for s in range(1, 4): q.e(f"v_xor_b32 v{vBR+s}, {32*s}, v{vBR}")
    q.e(f"v_lshrrev_b32 v{t2}, 5, v{vL}\nv_lshlrev_b32 v{t2}, 8, v{t2}\nv_lshl_add_u32 v{t2}, v{t1}, 5, v{t2}\nv_add_u32 v{vTW}, s{sJ3}, v{t2}")
    q.e(f"s_mul_i32 s{sT1}, s{sJ2}, 52\ns_lshr_b32 s{sT1}, s{sT1}, 8\ns_mul_i32 s{sT1}, s{sT1}, 435\ns_add_u32 s{sJ2}, s{sT1}, s{sJ2}")
    q.wait_vm('jobB')
    CR, CI, AL, BE, U = ACC2 + 16, ACC2 + 20, ACC2 + 32, ACC2 + 40, ACC2 + 24
    def rd(s):
        o = 24 * (s & 1) if False else 0
        q.e(f"ds_read_b128 {V(CR,4)}, v{vBR+s} offset:{X_JOB + 4096}\nds_read_b128 {V(CI,4)}, v{vBR+s} offset:{X_JOB + 4096 + 2048}")
        for h in range(2):
            q.e(f"ds_read_b128 {V(AL+4*h,4)}, v{vTW} offset:{X_JOB + 64*s + 16*h}\nds_read_b128 {V(BE+4*h,4)}, v{vTW} offset:{X_JOB + 256 + 64*s + 16*h}")
    for s in range(4):
        rd(s)
        q.e(f"s_lshl_b32 s{sT0}, s{sJW}, 2\ns_add_u32 s{sT0}, s{sT0}, {s}\ns_mul_i32 s{sT1}, s{sT0}, 52\ns_lshr_b32 s{sT1}, s{sT1}, 8\ns_mul_i32 s{sT1}, s{sT1}, 6")
        q.e(f"s_add_u32 s{sT0}, s{sT0}, s{sT1}\ns_mul_i32 s{sT0}, s{sT0}, 5\ns_add_u32 s{sT0}, s{sT0}, s{sJ2}\ns_lshl_b32 s{sT0}, s{sT0}, 10\ns_add_u32 s{sT0}, s{sT0}, {W2S_OFF + 30*1024}")
        for d in range(4):
            q.e(f"v_lshlrev_b32 v{U}, 16, v{CR+d}\nv_and_b32 v{U+1}, s{sMASK}, v{CR+d}\nv_lshlrev_b32 v{U+2}, 16, v{CI+d}\nv_and_b32 v{U+3}, s{sMASK}, v{CI+d}")
            q.e(f"v_mul_f32 v{U}, v{AL+2*d}, v{U}\nv_mul_f32 v{U+1}, v{AL+2*d+1}, v{U+1}\nv_fmac_f32 v{U}, v{BE+2*d}, v{U+2}\nv_fmac_f32 v{U+1}, v{BE+2*d+1}, v{U+3}")
            q.e(f"v_cvt_pk_bf16_f32 v{CSA+4*s+d}, v{U}, v{U+1}")
        q.e(f"buffer_store_dwordx4 {V(CSA+4*s,4)}, v{vL16}, {S(S_WS)}, s{sT0} offen sc1", tag='pub')
    q.e(f"s_lshl_b32 s{sT0}, s{sMT}, 7\ns_lshl_b32 s{sT1}, s{sI}, 11\ns_add_u32 s{sT0}, s{sT0}, s{sT1}\ns_add_u32 s{sBT+3}, s{sT0}, {WF_OFF}")
    return a, da, db, pa, q.items

def ext_mfma(acc, n, ffn):
    if ffn: return code("\n".join(f"v_mfma_f32_32x32x16_bf16 {V(acc+16*t,16)}, {A(EXTW+4*t,4)}, {V(vEX,4)}, {V(acc+16*t,16)}" for t in range(n)))
    return code("\n".join(f"v_mfma_f32_32x32x16_bf16 {V(acc+16*t,16)}, {V(vEX,4)}, {A(EXTW+4*t,4)}, {V(acc+16*t,16)}" for t in range(n)))

sBQ, sAO, sAP, sBC, sBD = 66, 67, 68, 64, 65
TAB = [70, 71, 72, 73, 74, 75, 76, 77, 78, 79, 84]
def k2_setup(c):
    q = Prog()
    ld = f"buffer_load_dword v249, v248, {S(S_WS)}, s69 offen sc1"
    a_, b_, c_ = 248, 249, 250
    q.e(f"s_lshr_b32 s86, s{sSL}, 3\ns_lshl_b32 s85, s86, 2\ns_add_u32 s85, s85, s{sW}\ns_and_b32 s87, s{sSL}, 7\ns_mul_i32 s87, s87, 5\ns_mov_b32 s69, {WF_OFF}")
    q.e(f"s_mul_i32 s88, s85, 6\ns_mul_i32 s85, s85, 5\ns_sub_u32 s84, s87, 6")
    q.e(f"v_min_u32 v{c_}, 21, v{vL}\nv_cmp_gt_u32 s[64:65], 12, v{c_}\nv_mov_b32 v{a_}, s84\nv_mov_b32 v{b_}, s88\nv_cndmask_b32 v{a_}, v{a_}, v{b_}, s[64:65]")
    q.e(f"v_mov_b32 v{b_}, s85\nv_mov_b32 v243, s87\nv_cndmask_b32 v{b_}, v{b_}, v243, s[64:65]\nv_lshrrev_b32 v243, 1, v{c_}\nv_add_u32 v{a_}, v{a_}, v243")
    q.e(f"v_and_b32 v{c_}, 1, v{c_}\nv_lshl_add_u32 v{b_}, v{c_}, 2, v{b_}\nv_lshrrev_b32 v{b_}, 2, v{b_}\nv_mad_u32_u24 v{a_}, v{a_}, 10, v{b_}\nv_lshrrev_b32 v{a_}, 2, v{a_}\nv_lshlrev_b32 v{a_}, 7, v{a_}")
    q.e(f"s_lshr_b32 s86, s{sSL}, 3\ns_lshl_b32 s85, s86, 2\ns_add_u32 s85, s85, s{sW}\ns_mul_i32 s85, s85, 11")
    q.e(f"s_and_b32 s87, s{sSL}, 7\ns_mul_i32 s87, s87, 88\ns_add_u32 s87, s87, s85\ns_mul_i32 s{sBQ}, s87, 5120\ns_add_u32 s{sBQ}, s{sBQ}, {W2S_OFF}")
    q.e(f"s_lshl_b32 s87, s{sMT}, 1\ns_add_u32 s88, s87, s86\ns_mul_i32 s88, s88, 88\ns_add_u32 s88, s88, s85\ns_lshl_b32 s{sAO}, s88, 12")
    q.e(f"s_xor_b32 s86, s86, 1\ns_add_u32 s88, s87, s86\ns_mul_i32 s88, s88, 88\ns_add_u32 s88, s88, s85\ns_lshl_b32 s{sAP}, s88, 12")
    q.e(f"s_and_b32 s85, s{sMT}, {3 if OPT.get('rot', 1) else 0}\ns_mov_b32 s{TAB[0]}, 0\ns_lshl_b32 s85, s85, 13\ns_add_u32 s{TAB[4]}, s85, {4*4096}")
    for i in range(1, 4): q.e(f"s_add_u32 s{TAB[i]}, s{TAB[i-1]}, 4096\ns_and_b32 s{TAB[i]}, s{TAB[i]}, {3*4096}")
    for i in range(5, 11): q.e(f"s_add_u32 s{TAB[i]}, s{TAB[i-1]}, 4096\ns_cmp_eq_u32 s{TAB[i]}, {11*4096}\ns_cselect_b32 s{TAB[i]}, {4*4096}, s{TAB[i]}")
    q.e(f"s_mov_b32 s85, s{sBQ}\ns_lshl_b32 s88, s{sW}, 10")
    return q.items, code(ld), retry2(c, ld, [249], 250, 86)
BH = [4 * f for f in range(28)] + [176, 212, 216] + [240, 244, 248, 252] + [112 + 4 * k for k in range(12)] + [160, 164, 168, 172, 180, 184, 188, 192]
def baddr(f):
    i, ct = divmod(f, 5)
    t = ""
    if ct == 0: t += f"s_lshr_b32 s{sBC}, s{TAB[i]}, 2\ns_add_u32 s{sBC}, s{sBC}, s{TAB[i]}\ns_add_u32 s{sBC}, s{sBC}, s{sBQ}\n"
    else: t += f"s_add_u32 s{sBC}, s{sBC}, 1024\n"
    return t
def bpre(f):
    return code(baddr(f) + f"buffer_load_dwordx4 {A(BH[f],4)}, v{vL16}, {S(S_WS)}, s{sBC} offen sc1", 'bpre')
def bstage(f, lds):
    return code(f"s_add_u32 m0, s88, {lds}\n" + baddr(f) + f"buffer_load_dwordx4 v{vL16}, {S(S_WS)}, s{sBC} offen sc1 lds", 'bst')
def add_bpre(c, first, stage):
    free = lambda f: 41 + f if f < 28 else 46
    f = 0
    order = list(range(35))
    while f < 35:
        if not c.va.place(max(first, free(f)), bpre(f), dma='b'): return f
        f += 1
    return f
def add_stage(c, first, stage):
    c.staged = []
    for k, (lds, e) in enumerate(stage):
        f = 35 + k
        if f >= 55: break
        i, ct = divmod(f, 5)
        t = f"s_add_u32 m0, s88, {lds}\ns_lshr_b32 s{sBD}, s{TAB[i]}, 2\ns_add_u32 s{sBD}, s{sBD}, s{TAB[i]}\ns_add_u32 s{sBD}, s{sBD}, s85\n"
        if ct: t += f"s_add_u32 s{sBD}, s{sBD}, {1024*ct}\n"
        t += f"buffer_load_dwordx4 v{vL16}, {S(S_WS)}, s{sBD} offen sc1 lds"
        if not c.va.place(max(first, e), code(t, 'bst'), dma='l'): break
        c.staged.append((f, lds))
    c.va.b_next = 0
def unstage(c):
    q = Prog()
    q.e(f"v_add_u32 v{vPA}, s88, v{vL16}\nv_add_u32 v{vTW}, 65536, v{vPA}\nv_add_u32 v{vEX}, 131072, v{vPA}")
    q.wait_vm('bst')
    for f, lds in c.staged:
        q.e(f"ds_read_b128 {A(BH[f],4)}, v{(vPA, vTW, vEX)[lds >> 16]} offset:{lds & 65535}")
    return q.items
def brest(c):
    out = []
    done = set(range(c.nb)) | {f for f, _ in c.staged}
    for f in range(55):
        if f in done: continue
        i, ct = divmod(f, 5)
        t = f"s_lshr_b32 s{sBC}, s{TAB[i]}, 2\ns_add_u32 s{sBC}, s{sBC}, s{TAB[i]}\ns_add_u32 s{sBC}, s{sBC}, s{sBQ}\n"
        if ct: t += f"s_add_u32 s{sBC}, s{sBC}, {1024*ct}\n"
        out.append(Group(code(t + f"buffer_load_dwordx4 {A(BH[f],4)}, v{vL16}, {S(S_WS)}, s{sBC} offen sc1", 'bpre')))
    if OPT.get('vlog'): print(c.typ, "direct", c.nb, "staged", len(c.staged), "rest", len(out), file=sys.stderr)
    return out

def k1_X(p, c):
    ts = c.ts; o = c.opt
    sb = lambda j: X_RING + (j % X_NS) * X_SLOT
    def dma(j):
        pre = code(f"s_add_u32 s{sDB}, s{sDB}, 128") if j == 10 else []
        return pre + ffn_dma(sb(j), j)
    JP = o.get('jp', 0)
    ja, jda, jdb, jpa, jpb = jobs(c)
    if JP:
        ffn_dma_addr(p)
        p.extend(ja); p.extend(jda); p.extend(jdb)
    p.extend(x_dma(0))
    if not JP: ffn_dma_addr(p)
    p.e(f"s_mul_i32 s{sDB}, s{sW}, {16*3072}\ns_mul_i32 s{sT0}, s{sI}, 384\ns_add_u32 s{sDB}, s{sDB}, s{sT0}")
    p.extend(dma(0))
    common_addr(p)
    tr_addrs(p, X_RING)
    if JP:
        p.e(NONCE_LD())
        p.extend(jpa)
        p.extend(x_dma(1)); p.extend(dma(1))
        p.extend(jpb)
    else:
        p.extend(x_dma(1)); p.extend(dma(1))
        p.extend(ja)
        if o.get('je', 1): p.extend(jda); p.extend(jdb)
        stats_job(p)
        p.e(NONCE_LD())
    ts(p)
    rT = Ring(vT, 4, X_RING)
    WS_ = o.get('wsync', 6)
    F1 = o.get('f1', 18)
    pre_extra = {('sync', WS_): [Marker('vm', 'pub')], ('post', WS_): flag(f"s{sBT+3}"), ('sync', F1): [Marker('vm', 'h')],
                 ('post', F1): code(f"buffer_store_dword v{vPT}, v{vFZ}, {S(S_WS)}, s{sFL} offen offset:4 sc1", 'flag')}
    JA = o.get('ja', 1); JB = o.get('jb', 1)
    steps, r0, r1 = build_steps(c, 'F' * 20, sb, dma, X_NS, rT, None, pre_extra, {} if (JP or o.get('je', 1)) else ({JA: [jda], JB: [jdb]} if JA != JB else {JA: [jda, jdb]}))
    p.extend(x_dma(2)); p.extend(dma(2))
    p.extend(x_read(0))
    p.wait_vm(('slot', 0)); p.e("s_barrier")
    p.extend(flat(r0)); p.extend(flat(r1))
    ts(p)
    cs1, cs1s = cs_produce_ffn(ACC2, f"s_mul_i32 s{sT0}, s{sI}, 3")
    sl, su = stats_consume(c); cl, cu = cs_consume(c, 4, ACC2)
    ks_, kl, kc = k2_setup(c)
    CD = o.get('cd', 6)
    side = cs1[:10] + [Deadline(5)] + nonce_get(c) + stats_store() + cs1[10:] + [Deadline(CD), Gate(CD)] + cs1s + [Deadline(CD + 1)]
    if not JP: side += [Gate(o.get('jga', 7))] + jpa + [Gate(o.get('jgb', 9))] + jpb + [Deadline(o.get('jd', 18))]
    G1_ = o.get('g1', 22)
    ex1 = ([Gate(o.get('tg', 12))] + touch() + [Deadline(o.get('tg', 12) + 2)] if o.get('touch', 0) else []) + [Gate(10)] + ks_ + [Deadline(G1_), Gate(G1_)] + sl + cl + [Deadline(G1_ + 7)]
    side += [Gate(o.get('gu', 31))] + su + cu + [Deadline(38), Gate(38)] + ext_read(4) + [Deadline(39)]
    steps[39]['mf'] += ext_mfma(ACC1, 4, True); steps[39]['rd'] += [[], [], [], []]
    steps[40]['pre'] = ([] if o.get('ts') == 2 else [LazyStamp(ts)]) + steps[40]['pre']
    cs2, cs2s = cs_produce_ffn(CSA, f"s_mul_i32 s{sT0}, s{sI}, 3\ns_add_u32 s{sT0}, s{sT0}, 1")
    cl, cu = cs_consume(c, 4, CSA)
    BF0 = o.get('bf0', 45)
    side += [Gate(40)] + cs2 + [Deadline(45), Gate(45)] + cs2s + ffn_epi(ACC1, 0, 0)
    for tau in range(1, 3): side += ffn_epi(ACC1 + 16 * tau, tau >> 1, (tau & 1) * 512)
    TM0, TMB = c.TM0, c.TMB
    ex2 = [Gate(o.get('g2l', 54))] + cl + [Deadline(o.get('g2l', 54) + 3)]
    side += ffn_epi(ACC1 + 48, 1, 512) + [Deadline(61), Gate(61)] + cu + [Deadline(TM0 - 2), Gate(TM0 - 2)] + ext_read(4) + k2_flags(c) + [Deadline(TM0 + 1)]
    for tau in range(3): side += [Gate(TM0 + TMB * (tau + 1))] + code("s_nop 1") + ffn_epi(ACC2 + 16 * tau, 2 + (tau >> 1), (tau & 1) * 512) + [Deadline(TM0 + TMB * (tau + 2))]
    add_stage(c, BF0, [(4096 * k, 42) for k in range(4)] + [(32768 + 4096 * k, 42) for k in range(12)])
    c.nb = add_bpre(c, BF0, None)
    resolve(steps)
    weave(p, steps, side, base_rate=o.get('xrate', 2), extra=[ex1 + [Gate(BF0 - 7)] + kl + [Deadline(BF0 - 6), Gate(BF0 - 1)] + kc + [Deadline(BF0)] + ex2])
    ts(p)
    p.extend(mk(c, 80) + ffn_epi(ACC2 + 48, 3, 512) + mk(c, 81) + unstage(c))
    ts(p)

def k1_Y(p, c):
    ts = c.ts; o = c.opt
    sb = lambda j: Y_RING + (j % Y_NS) * Y_SLOT
    dma = lambda j: ssm_dma(sb(j), j) if j < 10 else ffn_dma(sb(j), j)
    p.extend(x_dma(0))
    p.e(f"s_cmp_ge_u32 s{sW}, 2\ns_cselect_b32 s{S_B}, s{P_BIM}, s{P_BRE}\ns_cselect_b32 s{S_B+1}, s{P_BIM+1}, s{P_BRE+1}")
    p.e(f"s_mov_b32 s{S_B+2}, {640*1280}\ns_mov_b32 s{S_B+3}, 0x20000\ns_mul_i32 s{sLBS}, s{sW}, 5120")
    p.e(f"s_and_b32 s{sT0}, s{sW}, 1\ns_lshl_b32 s{sT1}, s{sT0}, 2\ns_lshr_b32 s{sT2}, s{sW}, 1\ns_xor_b32 s{sT1}, s{sT1}, s{sT2}")
    p.e(f"s_lshl_b32 s{sT1}, s{sT1}, 4\nv_xor_b32 v{vDS}, s{sT1}, v{vXD}")
    p.e(f"s_mul_i32 s{sT1}, s{sI}, 80\ns_lshl_b32 s{sT0}, s{sT0}, 3\ns_add_u32 s{sT0}, s{sT0}, s{sT1}\ns_mul_i32 s{sBT}, s{sT0}, 1280")
    for t in range(1, 4): p.e(f"s_add_u32 s{sBT+t}, s{sBT}, {t*(20480-1024)}")
    p.e(f"s_add_u32 s{sBT+4}, s{sBT}, {4*20480}")
    p.extend(dma(0))
    L = ACC2 + 16
    p.e(f"v_lshrrev_b32 v{L}, 5, v0\nv_lshlrev_b32 v{L}, 4, v{L}\nv_bfe_u32 v{L+1}, v0, 1, 4\nv_add_u32 v{L}, v{L}, v{L+1}")
    p.e(f"v_add_u32 v{L}, s{sT1}, v{L}\nv_min_u32 v{L}, 639, v{L}\nv_lshlrev_b32 v{L}, 1, v{L}")
    for k, ptr in enumerate((P_LRE, P_LIM, P_LDT)):
        p.e(f"global_load_ushort v{L+1+k}, v{L}, s[{ptr}:{ptr+1}]", tag='tbl')
    ffn_dma_addr(p)
    p.e(f"s_mul_i32 s{sDB}, s{sW}, {16*3072}\ns_mul_i32 s{sT0}, s{sI}, 384\ns_add_u32 s{sDB}, s{sDB}, s{sT0}\ns_add_u32 s{sDB}, s{sDB}, 256")
    common_addr(p)
    p.e(f"v_and_b32 v{t0}, 1, v{vL}\nv_bfe_u32 v{t1}, v{vL}, 1, 4\nv_lshl_add_u32 v{t1}, v{t0}, 4, v{t1}")
    p.e(f"v_bfe_u32 v{t2}, v{t1}, 1, 3\nv_xor_b32 v{t2}, v{t2}, v{t0}\nv_lshrrev_b32 v{t3}, 5, v{vL}\nv_xor_b32 v{t2}, v{t2}, v{t3}\nv_lshlrev_b32 v{t2}, 4, v{t2}")
    p.e(f"v_and_b32 v{t3}, 7, v{t1}\nv_lshl_add_u32 v{t2}, v{t3}, 7, v{t2}\nv_lshrrev_b32 v{t3}, 3, v{t1}\nv_mul_u32_u24 v{t3}, 5120, v{t3}")
    p.e(f"v_add_u32 v{t2}, v{t2}, v{t3}\nv_add_u32 v{vBR}, {Y_RING}, v{t2}")
    for s in range(1, 4): p.e(f"v_xor_b32 v{vBR+s}, {32*s}, v{vBR}")
    tr_addrs(p, sb(10))
    p.extend(x_dma(1)); p.extend(dma(1))
    vE, vAG, vFL, vSTW, vSTR, vE2 = 252, 253, 254, vXD, vXD + 1, 242
    p.e(f"v_lshlrev_b32 v{vE}, 5, v0\nv_mul_u32_u24 v{vE2}, 48, v0")
    srd(p, S_AG, P_WS, 32 * 1280, AGG_OFF)
    p.e(f"s_mul_i32 s{sT0}, s{sI}, {32*1280}\ns_add_u32 s{S_AG}, s{S_AG}, s{sT0}\ns_addc_u32 s{S_AG+1}, s{S_AG+1}, 0")
    p.e(f"v_subrev_u32 v{t0}, 160, v0\nv_min_u32 v{t0}, v{t0}, v0\nv_lshlrev_b32 v{vFL}, 3, v{t0}\nv_mov_b32 v{t1}, {OOB}\nv_cmp_gt_u32 vcc, 160, v0\nv_cndmask_b32 v255, v{t1}, v{vFL}, vcc")
    ts(p)
    q = Prog()
    lam_consts(q, L, [1, 16, 128], False)
    O = L + 8
    q.e(f"v_and_b32 v{L}, 1, v0\nv_lshlrev_b32 v{L}, 31, v{L}\nv_xor_b32 v{L}, 0x80000000, v{L}")
    for n in range(3): q.e(f"v_xor_b32 v{O+2*n+1}, v{L}, v{O+2*n+1}")
    q.e(f"ds_write_b64 v{vE}, {V(O,2)} offset:{Y_TBL}\nds_write_b128 v{vE}, {V(O+2,4)} offset:{Y_TBL+16}")
    table = q.items
    stats_job(p); p.extend(table)
    p.e(NONCE_LD())
    rT = Ring(vT, 4, sb(10)); rB = Ring(vBR, 4, Y_RING)
    steps, r0, r1 = build_steps(c, 'S' * 10 + 'F' * 10, sb, dma, Y_NS, rT, rB, {}, {})
    p.extend(x_dma(2)); p.extend(dma(2))
    p.extend(x_read(0))
    p.wait_vm(('slot', 0)); p.e("s_barrier")
    p.extend(flat(r0)); p.extend(flat(r1))
    ts(p)
    q = Prog()
    q.e(f"s_lshl_b32 s{sT0}, s{sW}, 10")
    for s in range(4): q.e(f"v_add_u32 v{t0+s}, s{sT0}, v{vBR+s}\nds_read_b128 {A(CSF+4*s,4)}, v{t0+s}")
    for s in range(4): q.e(f"ds_read_b128 {A(EXTW+4*s,4)}, v{vBR+s} offset:4096")
    cs_store_addr(q, f"s_add_u32 s{sT0}, s{sI}, 24")
    CB = ACC2 + 48
    for s in range(4): q.e(f"v_mfma_f32_32x32x16_bf16 {V(CB,16)}, {V(vONE,4)}, {A(CSF+4*s,4)}, {'0' if s == 0 else V(CB,16)}")
    for s in range(4): q.e(f"v_mfma_f32_32x32x16_bf16 {V(ACC2,16)}, {V(vONE,4)}, {A(EXTW+4*s,4)}, {'0' if s == 0 else V(ACC2,16)}")
    cs1 = q.items
    cs1s = code(f"v_mov_b32 v{CB+1}, s{sN}\nv_mov_b32 v{ACC2+1}, s{sN}\nbuffer_store_dwordx2 {V(CB,2)}, v{t4}, {S(S_WS)}, s{sU2} offen sc1\ns_lshl_b32 s{sT0}, s{sW}, 8\ns_sub_u32 s{sT0}, s{sU2}, s{sT0}\n"
                f"buffer_store_dwordx2 {V(ACC2,2)}, v{t4}, {S(S_WS)}, s{sT0} offen offset:1024 sc1\n"
                f"s_add_u32 s{sT0}, s{sMT}, 16\ns_mul_i32 s{sT0}, s{sT0}, 1280\n"
                f"buffer_store_dwordx2 {V(vZ,2)}, v255, {S(S_AG)}, s{sT0} offen sc1", 'pub')
    sl, su = stats_consume(c); cl, cu = cs_consume(c, 5, ACC2)
    ks_, kl, kc = k2_setup(c)
    side = cs1[:13] + [Deadline(5)] + nonce_get(c) + stats_store() + cs1[13:] + [Deadline(9), Gate(9)] + cs1s + [Deadline(11)]
    G1_ = o.get('g1', 22)
    ex1 = ([Gate(o.get('tg', 12))] + touch() + [Deadline(o.get('tg', 12) + 2)] if o.get('touch', 0) else []) + [Gate(10)] + ks_ + [Deadline(G1_), Gate(G1_)] + sl + cl + [Deadline(G1_ + 7)]
    side += [Gate(o.get('gu', 31))] + su + cu + [Deadline(38), Gate(38)] + ext_read(5) + [Deadline(39)]
    q = Prog()
    q.e(f"v_and_b32 v{t0}, 31, v{vL}\nv_mul_u32_u24 v{t2}, 48, v{t0}\nv_lshlrev_b32 v{t0}, 5, v{t0}\nv_lshrrev_b32 v{t1}, 5, v0\nv_lshl_add_u32 v{vAG}, v{t1}, 2, v{t2}")
    for t in range(5): q.e(f"ds_read_b64 {V(C0+2*t,2)}, v{t0} offset:{Y_TBL + 1024*t}")
    side += q.items + [Deadline(40)]
    steps[39]['mf'] += ext_mfma(ACC1, 5, False); steps[39]['rd'] += [[], [], [], [], []]
    steps[40]['pre'] = ([] if o.get('ts') == 2 else [LazyStamp(ts)]) + steps[40]['pre']
    AS = o.get('async', 12)
    BF0 = o.get('bf0y', 49)
    cs2, cs2s = cs_produce_ffn(CSA, f"s_mul_i32 s{sT0}, s{sI}, 3\ns_add_u32 s{sT0}, s{sT0}, 2")
    side += [Gate(40)] + cs2[:10]
    LM, E0, GA, G1 = 244, RT + 4, RT + 12, TMP - 2
    q = Prog()
    def scale(tt):
        for t in range(5): q.e(f"v_mul_f32 v{ACC1+16*t+tt}, v{RT+tt}, v{ACC1+16*t+tt}")
    q.extend(cs2[10:])
    q.add(Deadline(45))
    scale(0); scale(1)
    q.extend(cs2s)
    q.e(f"ds_read_b128 {V(LM,4)}, v{vE} offset:{Y_TBL+16}")
    for tt in range(1, 16):
        for t in range(5):
            g = (ACC1 + 16 * t) if tt == 1 else (G1 + 2 * t + (tt & 1))
            q.e(f"v_fma_f32 v{G1+2*t+((tt+1)&1)}, v{C0+2*t}, v{g}, v{ACC1+16*t+tt}")
        if tt < 15: scale(tt + 1)
        for t in range(5):
            g = (ACC1 + 16 * t) if tt == 1 else (G1 + 2 * t + (tt & 1))
            q.e(f"v_fmac_f32_dpp v{G1+2*t+((tt+1)&1)}, v{g}, v{C0+2*t+1} {QP}")
    for t in range(5): q.e(f"ds_write_b32 v{vAG}, v{G1+2*t} offset:{AG_L + 16 + 1536*t}", tag='agw')
    q.wait_lgkm('agw')
    side += q.items + [Deadline(4 * (AS - 1) + 2), Gate(4 * (AS - 1) + 2)]
    q = Prog()
    q.e(f"ds_read_b128 {V(E0,4)}, v{vE2} offset:{AG_L+16}\nds_read_b128 {V(E0+4,4)}, v{vE2} offset:{AG_L+32}")
    q.e(f"s_sub_u32 s{sBT}, 15, s{sMT}\ns_mul_i32 s{sBT}, s{sBT}, 1280")
    fill = code("\n".join(f"s_add_u32 s{S_J0+i}, s{sBT}, {1280 + 3840*i}" for i in range(5)) + f"\ns_add_u32 s{sBT+4}, s{sH}, {6*4096}\ns_nop 0")
    for k in range(1, 8):
        g = E0 if k == 1 else (GA + (k & 1))
        q.e(f"v_fma_f32 v{GA+((k+1)&1)}, v{LM}, v{g}, v{E0+k}"); q.add(fill[k - 1])
        q.e(f"v_fmac_f32_dpp v{GA+((k+1)&1)}, v{g}, v{LM+1} {QP}")
    q.e(f"v_mov_b32 v{GA+1}, s{sN}\nbuffer_store_dwordx2 {V(GA,2)}, v255, {S(S_AG)}, s{sBT} offen sc1", tag='pub')
    side += q.items + [Deadline(4 * (AS - 1) + 4)]
    q = Prog()
    q.e(f"v_and_b32 v{t0}, 1, v{vL}\nv_bfe_u32 v{t1}, v{vL}, 1, 4\nv_lshl_add_u32 v{t1}, v{t0}, 4, v{t1}\nv_lshlrev_b32 v{t1}, 6, v{t1}")
    q.e(f"v_lshrrev_b32 v{t0}, 5, v{vL}\nv_lshl_add_u32 v{t1}, v{t0}, 5, v{t1}\ns_mul_i32 s{sT0}, s{sW}, 10240\ns_add_u32 s{sT0}, s{sT0}, 98304\nv_add_u32 v{vSTW}, s{sT0}, v{t1}")
    q.e(f"v_lshrrev_b32 v{t0}, 4, v{vL}\nv_lshlrev_b32 v{t0}, 9, v{t0}\nv_bfe_u32 v{t1}, v{vL}, 2, 2\nv_lshl_add_u32 v{t0}, v{t1}, 6, v{t0}")
    q.e(f"v_and_b32 v{t1}, 3, v{vL}\nv_lshl_add_u32 v{t0}, v{t1}, 3, v{t0}\nv_add_u32 v{vSTR}, s{sT0}, v{t0}")
    cl, cu = cs_consume(c, 4, CSA)
    TM0, TMB = c.TM0, c.TMB
    ex2 = [Gate(o.get('g2l', 54))] + cl + [Deadline(o.get('g2l', 54) + 3)]
    side += q.items + [Gate(o.get('g2', 61))] + cu
    LP = [CSA + 2 * i for i in range(8)] + [4, 6, 8, 10, 12, 14, 16]
    ldl = "\n".join(f"buffer_load_dwordx2 {V(LP[i],2)}, v{vFL}, {S(S_AG)}, s{S_J0+i//3} offen offset:{(i%3)*1280} sc1" for i in range(15))
    side += [Deadline(TM0 - 2), Gate(TM0 - 2)] + ext_read(4) + k2_flags(c) + code(ldl) + [Deadline(TM0 + TMB)]
    for tau in range(3): side += [Gate(TM0 + TMB * (tau + 1))] + code("s_nop 1") + ffn_epi(ACC2 + 16 * tau, 4 + (tau >> 1), (tau & 1) * 512) + [Deadline(TM0 + TMB * (tau + 2))]
    q = Prog()
    q.extend(retry(c, ldl, tagcheck([r + 1 for r in LP])))
    for i in range(13, -1, -1):
        q.e(f"v_fmac_f32 v{LP[i]}, v{LM+2}, v{LP[i+1]}\nv_fmac_f32_dpp v{LP[i]}, v{LP[i+1]}, v{LM+3} {QP}")
    q.e(f"ds_write_b32 v{vE2}, v{LP[0]} offset:{AG_L+12}", tag='pw')
    for k in range(7):
        g = LP[0] if k == 0 else E0 + k - 1
        q.e(f"v_fmac_f32 v{E0+k}, v{LM}, v{g}\nv_fmac_f32_dpp v{E0+k}, v{g}, v{LM+1} {QP}")
    q.e(f"ds_write_b128 v{vE2}, {V(E0,4)} offset:{AG_L+16}\nds_write_b128 v{vE2}, {V(E0+4,4)} offset:{AG_L+32}", tag='pw')
    gch = q.items
    q = Prog()
    CY = [216, 217, 218, 219, 228]
    for t in range(5): q.e(f"ds_read_b32 v{CY[t]}, v{vAG} offset:{AG_L + 12 + 1536*t}")
    def pk(k):
        for t in range(5): q.e(f"v_cvt_pk_bf16_f32 v{ACC1+16*t+k}, v{ACC1+16*t+2*k}, v{ACC1+16*t+2*k+1}")
    for tt in range(16):
        for t in range(5):
            g = CY[t] if tt == 0 else (ACC1 + 16 * t + tt - 1)
            q.e(f"v_fmac_f32 v{ACC1+16*t+tt}, v{C0+2*t}, v{g}")
        for t in range(5):
            g = CY[t] if tt == 0 else (ACC1 + 16 * t + tt - 1)
            q.e(f"v_fmac_f32_dpp v{ACC1+16*t+tt}, v{g}, v{C0+2*t+1} {QP}")
        if tt >= 2 and tt % 2 == 0: pk(tt // 2 - 1)
        if tt == 10:
            for t in range(5): q.e(f"ds_write_b128 v{vSTW}, {V(ACC1+16*t,4)} offset:{HT2_L + t*2048}")
    pk(7)
    def st(t):
        R = ACC1 + 16 * t
        q.e(f"s_add_u32 s{sT2}, s85, {t*4096}")
        for rt in range(2): q.e(f"buffer_store_dwordx4 {V(R+8+4*rt,4)}, v{vL16}, {S(S_WS)}, s{sT2} offen offset:{rt*1024} sc1", tag='h')
    for t in range(5):
        R = ACC1 + 16 * t
        q.e(f"ds_write_b128 v{vSTW}, {V(R+4,4)} offset:{HT2_L + t*2048 + 16}")
        for rt in range(2):
            for tq in range(2): q.e(f"ds_read_b64_tr_b16 {V(R+8+4*rt+2*tq,2)}, v{vSTR} offset:{HT2_L + t*2048 + rt*32 + tq*256}")
        if t > 1: st(t - 2)
    st(3); st(4)
    late = q.items
    add_stage(c, BF0, [(24576 + 4096 * k, 46) for k in range(8)] + [(12288, 46), (159744, 46)] + [(Y_RING + 20480 * k + 16384, 46) for k in range(5)])
    c.nb = add_bpre(c, BF0, None)
    resolve(steps)
    weave(p, steps, side, base_rate=o.get('yrate', 3),
                 extra=[ex1 + [Gate(BF0 - 7)] + kl + [Deadline(BF0 - 6), Gate(BF0 - 1)] + kc + [Deadline(BF0)] + ex2])
    ts(p)
    p.e(f"s_mov_b32 s85, s{sBT+4}")
    p.extend(unstage(c))
    tail = mk(c, 80) + code(c.ldx1) + merge(autogroup(gch), ffn_epi(ACC2 + 48, 5, 512)) + mk(c, 81) + [Marker('lgkm', 'pw')] + code("s_barrier")
    tail += merge(brest(c), late[:60]) + mk(c, 82) + c.chkx1 + merge(c.aload(0) + c.aload(1), late[60:140]) + code(c.ldx) + late[140:210] + mk(c, 83) + late[210:]
    p.extend(tail)
    ts(p)

def mk(c, n): return code(f'.set STEPMARK{c.typ}{n}, 0') if c.opt.get('st0') is not None else []
def merge(a, b):
    out = []; k = 0
    for i, it in enumerate(b):
        out.append(it)
        while k < len(a) and k * len(b) <= i * len(a) * 1.15:
            out += a[k].its if isinstance(a[k], Group) else [a[k]]; k += 1
    for x in a[k:]: out += x.its if isinstance(x, Group) else [x]
    return out

vKW, vKF, vKN = 36, 37, 35
HOMES = [(A, 220), (A, 196), (V, 200), (V, 18)]
def home(u): return HOMES[u % 4] if u < 12 else (A, [0, 16, 32, 48, 64, 220, 196, 0, 16, 32][u - 12])
EARLIEST = {12: 8, 13: 8, 14: 8, 15: 8, 16: 8, 17: 9, 18: 10, 19: 13, 20: 15, 21: 15}
def k2_flags(c):
    q = Prog()
    q.e(f"s_and_b32 s87, s{sSL}, 8\ns_lshl_b32 s86, s{sW}, 1\ns_add_u32 s87, s87, s86\ns_lshl_b32 s86, s{sMT}, 4\ns_add_u32 s87, s87, s86")
    q.e(f"s_lshl_b32 s87, s87, 7\ns_add_u32 s87, s87, {HF_OFF}\nv_mov_b32 v248, 0")
    c.ldx = f"buffer_load_dword v249, v248, {S(S_WS)}, s87 offen sc1"
    c.ldy = f"buffer_load_dword v250, v248, {S(S_WS)}, s87 offen offset:128 sc1"
    c.chkx = retry(c, c.ldx, tagcheck([249]))
    c.ldx1 = f"buffer_load_dword v250, v248, {S(S_WS)}, s87 offen offset:4 sc1"
    if c.typ == 'Y': c.chkx1 = retry(c, c.ldx1, tagcheck([250]))
    c.seq = [('o', 0), ('o', 1), ('p', 0), ('p', 1), ('o', 2), ('o', 3), ('p', 2), ('p', 3)] + [('p', i) for i in range(4, 11)] + [('o', i) for i in range(4, 11)]
    def aload(u):
        kind, i = c.seq[u]; R, b = home(u); s_ = sAP if kind == 'p' else sAO
        return code(f"s_add_u32 s{sBD}, s{s_}, s{TAB[i]}\n" + "\n".join(f"buffer_load_dwordx4 {R(b+4*rt,4)}, v{vL16}, {S(S_WS)}, s{sBD} offen offset:{1024*rt} sc1" for rt in range(4)))
    c.aload = aload
    return q.items

def k2(p, c):
    ts = c.ts; o = c.opt
    AP, AO = 40, 120
    seq = c.seq; aload = c.aload; ldy = c.ldy
    isY = c.typ == 'Y'
    mark = lambda n: p.e(f'.set STEPMARK{c.typ}{n}, 0') if o.get('st0') is not None else None
    fl = code(f"buffer_store_dword v{vKN}, v{vKF}, {S(S_WS)}, s{sFL} offen sc1", 'flag')
    p.e(f"v_mov_b32 v{vKN}, v{vPT}\nv_mov_b32 v{vKF}, v{vFZ}")
    q = Prog()
    srd(q, S_W1, P_D, 1280)
    srd(q, S_W3, P_OUT, 2048 * 2560)
    q.e(f"s_and_b32 s{sU0}, s{sSL}, 7\ns_lshr_b32 s{sU1}, s{sSL}, 3\ns_lshl_b32 s{sT1}, s{sMT}, 1\ns_add_u32 s{sU1}, s{sU1}, s{sT1}")
    q.e(f"s_mov_b32 s48, 3277\ns_lshl_b32 s49, s{sU1}, 6\ns_mul_i32 s50, s{sU0}, 160")
    q.e(f"s_mul_i32 s51, s49, 1280\ns_add_u32 s51, s51, s50\ns_lshl_b32 s59, s49, 4\ns_add_u32 s59, s59, {ST_OFF}\ns_lshl_b32 s61, s51, 1")
    q.e(f"s_lshl_b32 s{sT0}, s{sU1}, 3\ns_add_u32 s{sT0}, s{sT0}, s{sU0}\ns_mul_i32 s62, s{sT0}, 28672\ns_add_u32 s62, s62, {PX_OFF}")
    q.e(f"s_xor_b32 s{sT0}, s{sT0}, 8\ns_mul_i32 s63, s{sT0}, 28672\ns_add_u32 s63, s63, {PX_OFF}")
    q.e(f"v_lshlrev_b32 v17, 4, v0")
    q.e(f"v_and_b32 v4, 15, v1\nv_mul_u32_u24 v4, 336, v4\nv_lshrrev_b32 v5, 4, v1\nv_lshl_add_u32 v4, v5, 4, v4\ns_mul_i32 s44, s{sW}, 21504\nv_add_u32 v{vKW}, s44, v4")
    EL, EO = 6, 11
    EX, ED, ES = 216, 226, 236
    for u in range(5):
        q.e(f"v_add_u32 v4, {256*u}, v0\nv_mul_lo_u32 v5, v4, s48\nv_lshrrev_b32 v5, 16, v5\nv_lshlrev_b32 v4, 4, v4\nv_lshl_add_u32 v{EL+u}, v5, 4, v4")
        q.e(f"v_mul_u32_u24 v2, 320, v5\nv_sub_u32 v4, v4, v2\nv_lshrrev_b32 v4, 1, v4\nv_lshl_add_u32 v2, v2, 2, v4\nv_lshlrev_b32 v5, 4, v5")
        q.e(f"buffer_load_dwordx2 {V(EX+2*u,2)}, v2, {S(S_X)}, s51 offen\nbuffer_load_dwordx2 {V(ED+2*u,2)}, v4, {S(S_W1)}, s50 offen\nbuffer_load_dwordx2 {V(ES+2*u,2)}, v5, {S(S_WS)}, s59 offen sc1")
        q.e(f"v_lshlrev_b32 v{EO+u}, 1, v2")
    ksetup = q.items
    if not isY:
        p.extend(ksetup)
        p.extend(mk(c, 82))
        p.wait_vm('h'); p.e("s_barrier"); p.extend(fl)
        p.extend(merge(brest(c), []))
        p.e(c.ldx)
        p.extend(mk(c, 83))
        ts(p)
        p.extend(c.chkx)
        for u in range(3): p.extend(aload(u))
    else:
        p.extend(aload(2))
    ts(p)
    steps = []
    for u, (kind, i) in enumerate(seq):
        R, a = home(u); acc = AP if kind == 'p' else AO
        mf = []
        for rt in range(4):
            for ct in range(5):
                d = acc + 4 * (5 * rt + ct)
                mf += code(f"v_mfma_f32_16x16x32_bf16 {V(d,4)}, {A(BH[5*i+ct],4)}, {R(a+4*rt,4)}, {'0' if i == 0 else V(d,4)}")
        steps.append(dict(pre=[], mf=mf, rd=[[] for _ in mf]))
    CU = o.get('cuy', 6) if isY else o.get('cux', 5)
    C2 = o.get('c2', 2)
    nxt = 3
    for u in range(22):
        lim = u + 3 if u < 8 else min(21, nxt + 1)
        while lim >= 12 and EARLIEST[lim] > u: lim -= 1
        if isY and u < C2: lim = min(lim, 3)
        if u < CU: lim = min(lim, 7)
        if isY and u == C2: steps[u]['pre'] += c.chkx
        if u == CU: steps[u]['pre'] += retry(c, ldy, tagcheck([250])) + [LazyStamp(ts)]
        if u == CU - 1: steps[u]['rd'][o.get('lyg', 10)] += code(ldy)
        vs = list(range(nxt, lim + 1)); nxt = max(nxt, lim + 1)
        g = 0; st_ = 4 if len(vs) < 2 else max(1, 20 // (4 * len(vs)))
        for v in vs:
            its = aload(v)
            steps[u]['rd'][g] += [its[0]]
            for k in range(4): steps[u]['rd'][g] += [its[k + 1]]; g += st_
        if o.get('vlog'): print(c.typ, u, vs, file=sys.stderr)
    def wr(acc, rt):
        return code("\n".join(f"ds_write_b128 v{vKW}, {V(acc+4*(5*rt+ct),4)} offset:{rt*16*336 + ct*64}" for ct in range(5)), 'pw')
    side = []
    if isY:
        side += ksetup + [Deadline(6)]
        steps[o.get('fu', 3)]['rd'][o.get('fg', 4)] += [Marker('vm', 'h')] + code("s_barrier") + fl
    M = f"s{sMASK}"
    q = Prog()
    PT = list(range(18, 34)) + [246, 247, 248, 249]
    X0 = 200
    for u in range(5):
        q.e(f"v_lshlrev_b32 v{X0}, 16, v{EX+2*u}\nv_and_b32 v{X0+1}, {M}, v{EX+2*u}\nv_lshlrev_b32 v{X0+2}, 16, v{EX+2*u+1}\nv_and_b32 v{X0+3}, {M}, v{EX+2*u+1}")
        q.e(f"v_lshlrev_b32 v{X0+4}, 16, v{ED+2*u}\nv_and_b32 v{X0+5}, {M}, v{ED+2*u}\nv_lshlrev_b32 v{X0+6}, 16, v{ED+2*u+1}\nv_and_b32 v{X0+7}, {M}, v{ED+2*u+1}")
        q.e(f"v_and_b32 v{ES+2*u+1}, {M}, v{ES+2*u+1}\nv_mul_f32 v{ES+2*u+1}, v{ES+2*u+1}, v{ES+2*u}")
        Y0 = X0 + 8
        for i in range(4): q.e(f"v_fma_f32 v{Y0+i}, v{X0+i}, v{ES+2*u}, v{ES+2*u+1}")
        q.e(f"v_cvt_pk_bf16_f32 v{Y0}, v{Y0}, v{Y0+1}\nv_cvt_pk_bf16_f32 v{Y0+2}, v{Y0+2}, v{Y0+3}")
        q.e(f"v_and_b32 v{Y0+1}, {M}, v{Y0}\nv_lshlrev_b32 v{Y0}, 16, v{Y0}\nv_and_b32 v{Y0+3}, {M}, v{Y0+2}\nv_lshlrev_b32 v{Y0+2}, 16, v{Y0+2}")
        for i in range(4): q.e(f"v_mul_f32 v{Y0+i}, v{Y0+i}, v{X0+4+i}")
        q.e(f"v_cvt_pk_bf16_f32 v{Y0}, v{Y0}, v{Y0+1}\nv_cvt_pk_bf16_f32 v{Y0+2}, v{Y0+2}, v{Y0+3}")
        q.e(f"v_and_b32 v{Y0+1}, {M}, v{Y0}\nv_lshlrev_b32 v{Y0}, 16, v{Y0}\nv_and_b32 v{Y0+3}, {M}, v{Y0+2}\nv_lshlrev_b32 v{Y0+2}, 16, v{Y0+2}")
        for i in range(4): q.e(f"v_add_f32 v{PT[4*u+i]}, v{X0+i}, v{Y0+i}")
    pre = q.items
    def fuse(u, acc):
        a, b = steps[u], steps[u + 1]
        mf = []; rd = []
        for rt in range(4):
            mf += a['mf'][5 * rt:5 * rt + 5] + b['mf'][5 * rt:5 * rt + 5]
        rd = a['rd'] + b['rd']
        for rt in range(3):
            w = wr(acc, rt)
            for k in range(5): rd[10 * (rt + 1) + 3 + k] += [w[k]]
        a['mf'], a['rd'] = mf[:20], rd[:20]; b['mf'], b['rd'] = mf[20:], rd[20:]
    fuse(13, AP); fuse(20, AO)
    w = wr(AP, 3)
    for k in range(5): steps[15]['rd'][3 + k] += [w[k]]
    steps[15]['rd'][12] += [Marker('lgkm', 'pw')] + code("s_barrier")
    q = Prog()
    GR = AP + 48
    gi = lambda f: GR + 4 * (f // 3) + f % 3
    sent = [0]
    def send(upto):
        while sent[0] < 7 and 3 * sent[0] + 2 < upto or (upto == 20 and sent[0] < 7):
            g = sent[0]; sent[0] += 1
            q.e(f"v_mov_b32 v{GR+4*g+3}, s{sN}\nbuffer_store_dwordx4 {V(GR+4*g,4)}, v17, {S(S_WS)}, s63 offen sc1\ns_add_u32 s63, s63, 4096")
    def red(u):
        T = AP + 16 * (u % 3)
        for i in range(4): q.e(f"v_add_f32 v{T+i}, v{T+i}, v{T+4+i}\nv_add_f32 v{T+8+i}, v{T+8+i}, v{T+12+i}")
        for i in range(4): q.e(f"v_add_f32 v{gi(4*u+i)}, v{T+i}, v{T+8+i}")
        send(4 * u + 4)
    for u in range(5):
        T = AP + 16 * (u % 3)
        for w in range(4): q.e(f"ds_read_b128 {V(T+4*w,4)}, v{EL+u} offset:{w*21504}")
        if u >= 2: red(u - 2)
    red(3); red(4)
    RG = AP
    ldp = "\n".join(f"buffer_load_dwordx4 {V(RG+4*g,4)}, v17, {S(S_WS)}, s{70+g} offen sc1" for g in range(7))
    if o.get('cp2', 1):
        L = f"{c.typ}_cp2"
        steps[o.get('cp2u', 7)]['rd'][17] += code(f"s_getpc_b64 s[90:91]\n{L}:\nv_lshlrev_b32 v4, 7, v0\nv_min_u32 v4, {c.typ}_end-{L}, v4\nglobal_load_dword v250, v4, s[90:91]")
    side += [Gate(12)] + pre[:75] + [Deadline(15), Gate(16)] + q.items + [Deadline(o.get('rd', 18))] + pre[75:] + code("\n".join(f"s_add_u32 s{70+g}, s62, {4096*g}" for g in range(7))) + [Deadline(20)]
    side += [Gate(o.get('lpu', 20))] + code(ldp)
    steps[20]['rd'][0] += code("s_barrier")
    if o.get('st0') is not None:
        for u, st in enumerate(steps): st['pre'] = code(f'.set STEPMARK{c.typ}{84+u}, 0') + st['pre']
    resolve(steps)
    weave(p, steps, side, base_rate=1)
    ts(p); mark(106)
    p.extend(wr(AO, 3))
    p.wait_lgkm('pw')
    p.e("s_barrier")
    mark(107)
    for u in range(5):
        for w in range(4): p.e(f"ds_read_b128 {V(AO+16*u+4*w,4)}, v{EL+u} offset:{w*21504}")
        if u == 2:
            p.extend(retry(c, ldp, tagcheck([RG + 4 * g + 3 for g in range(7)])))
            for f in range(20): p.e(f"v_add_f32 v{PT[f]}, v{PT[f]}, v{RG + 4*(f//3) + f%3}")
    mark(108)
    for u in range(5):
        R = AO + 16 * u
        for i in range(4): p.e(f"v_add_f32 v{R+i}, v{R+i}, v{R+4+i}\nv_add_f32 v{R+8+i}, v{R+8+i}, v{R+12+i}")
        for i in range(4): p.e(f"v_add_f32 v{R+i}, v{R+i}, v{PT[4*u+i]}")
        for i in range(4): p.e(f"v_add_f32 v{R+i}, v{R+i}, v{R+8+i}")
        p.e(f"buffer_store_dwordx4 {V(R,4)}, v{EO+u}, {S(S_W3)}, s61 offen{NT('nto')}")
    mark(109)
    if o.get('st0') is not None: p.e("s_waitcnt vmcnt(0)"); mark(110); p.e("s_nop 15\ns_nop 15\ns_nop 15"); mark(111)
    ts(p)

HEADER = open('parallel_sum__ssm_conv_s5__glu_gated_swiglu__prompt.s.ref').read().split('; Override launch')[0]

def profile(txt, typ):
    out = []; k = 2; sites = []; nm = 0
    lo = OPT.get('prof0', 0)
    for l in txt.split('\n'):
        if 'mfma' in l: nm += 1
        if 's_memrealtime' in l and k > 2: k = 100
        hit = ('vmcnt' in l or 's_barrier' in l or 's_cbranch_vccnz' in l or '_slow' in l) and nm >= lo and k < 62
        if OPT['prof'] == 2: hit = ('buffer_' in l or 'global_' in l) and nm >= lo and k < 62
        if hit and '_slow' in l:
            out.append("  s_memtime s[0:1]"); out.append(l); pend = True; sites.append((k, nm, l.strip())); continue
        if OPT['prof'] == 1 and l.endswith('_ret:') and out[-2].startswith("  s_memtime s[0:1]"):
            out.append(l); out.append(f"  s_memtime s[2:3]\n  s_waitcnt lgkmcnt(0)\n  s_sub_u32 s2, s2, s0\n  s_or_b32 s2, s2, 1\n  v_writelane_b32 v251, s2, {k}"); k += 1; continue
        if hit:
            out.append(f"  s_memtime s[0:1]\n{l}\n  s_memtime s[2:3]\n  s_waitcnt lgkmcnt(0)\n  s_sub_u32 s2, s2, s0\n  s_or_b32 s2, s2, 1\n  v_writelane_b32 v251, s2, {k}")
            sites.append((k, nm, l.strip())); k += 1
        else: out.append(l)
    print(typ, "sites:", [(b, ('D' if ' lds' in c else 'S' if 'store' in c else 'L') if 'buffer' in c or 'global' in c else c.replace('s_waitcnt ', '').replace('s_cbranch_', '')) for a, b, c in sites], file=sys.stderr)
    return '\n'.join(out)

def build(opt):
    OPT.update(opt)
    ph = Prog(); setup(ph, opt)
    ph.e(f"s_bitcmp1_b32 s{sSL}, 0\ns_cbranch_scc1 K_Y")
    body = ph.finalize() + "\n"
    sx = [it for it in ph.items if isinstance(it, I) and it.tag == 'sx']
    for typ, fn in (('X', k1_X), ('Y', k1_Y)):
        c = Ctx(typ, opt)
        p = Prog()
        if typ == 'Y': p.e("K_Y:")
        p.add(Marker('assume_vm', sx))
        if c.ts.on: p.e('v_mov_b32 v251, 0\ns_mov_b32 s93, s2')
        c.ts(p, True); c.ts(p)
        if opt.get('prof') or opt.get('st0') is not None: c.ts.on = False
        fn(p, c)
        k2(p, c)
        if opt.get('prof') or opt.get('st0') is not None: c.ts.on = True; c.ts.n = 63
        if c.ts.on:
            p.wait_all(); c.ts(p, True); c.ts.dump(p)
        p.e(f"{typ}_end:\ns_endpgm")
        st = {}
        txt = p.finalize(st)
        if opt.get('prof'): txt = profile(txt, typ)
        if opt.get('st0') is not None:
            out = []
            for l in txt.split('\n'):
                if 'STEPMARK' in l:
                    k = int(l.split(',')[0].split(typ)[-1]) - opt['st0']
                    if 0 <= k <= 60:
                        a = 2 * (k & 1)
                        if k > 0: out.append(f"  v_writelane_b32 v251, s{2-a}, {k}")
                        if k < 60: out.append(f"  s_memtime s[{a}:{a+1}]")
                else: out.append(l)
            txt = '\n'.join(out)
        body += txt + "\n" + "\n".join(c.slow) + "\n"
        print(typ, st, file=sys.stderr)
    body += "K_end:\n  s_endpgm\n.set CODE_BYTES, K_end-K_Y\n"
    k = NAME + "_kernel"
    if opt.get('plain'): body = body.replace(' sc1', '')
    if opt.get('plainst'): body = '\n'.join(l.replace(' sc1', '') if 'buffer_store' in l else l for l in body.split('\n'))
    s = HEADER + "; @launch grid=(256,1,1) block=(256,1,1) lds=163840\n"
    s += f'.amdgcn_target "amdgcn-amd-amdhsa--gfx950"\n.text\n.globl {k}\n.p2align 8\n.type {k},@function\n{k}:\n{body}'
    s += '.section .rodata,"a"\n' + kd(k, 512, 102, 256)
    return s

if __name__ == '__main__':
    opt = {}
    for a in sys.argv[2:]:
        k, v = a.split('='); opt[k] = int(v)
    open(sys.argv[1], 'w').write(build(opt))
```

```python
import sys, struct
from asmgen import Prog, I, Marker
from sched import weave, Gate, Deadline, Group, autogroup
from common import kd

NAME = "parallel_sum__ssm_conv_s5__glu_gated_swiglu__prompt"
H_OFF = 0
W2S_OFF = 32 * 88 * 4096
ST_OFF = W2S_OFF + 8 * 88 * 5120
AGG_OFF = ST_OFF + 32768
CS_OFF = AGG_OFF + 8 * 32 * 1280
HF_OFF = CS_OFF + 32 * 12800
WF_OFF = HF_OFF + 256 * 128
PX_OFF = WF_OFF + 128 * 128
WS_USED = PX_OFF + 256 * 7 * 4096
TS_OFF = 24 << 20
LOG2E, NLOG2E, INV2PI, OOB = 0x3fb8aa3b, 0xbfb8aa3b, 0x3e22f983, 0x7f000000
def f2u(x): return struct.unpack('<I', struct.pack('<f', x))[0]

S_X, S_W1, S_W3, S_B, S_WS, S_J0, S_J1, S_DBG, S_AG = 4, 8, 12, 16, 20, 24, 28, 32, 36
sMT, sSL, sW, sI, sT0, sT1, sT2, sT3 = 40, 41, 42, 43, 44, 45, 46, 47
sXR = 48
sMASK, sFL, sLB, sD0, sD1, sH, sLBS, sBT = 52, 53, 54, 55, 56, 57, 58, 59
P_X, P_LRE, P_LIM, P_BRE, P_BIM, P_CRE, P_CIM, P_LDT, P_D, P_BX, P_W1, P_W3, P_W2, P_OUT, P_DBG, P_WS = [64 + 2 * i for i in range(16)]
sKX, sKB, sDB, sROT, sU0, sU1 = 96, 97, 98, 99, 100, 101
sSP = 89
sU2, sU3 = 82, 83
sN = 92

OPT = {}
def NT(k): return ' nt' if OPT.get(k) else ''
def S(d): return f"s[{d}:{d+3}]"
def V(a, n=1): return f"v[{a}:{a+n-1}]" if n > 1 else f"v{a}"
def A(a, n=1): return f"a[{a}:{a+n-1}]" if n > 1 else f"a{a}"
QP = "quad_perm:[1,0,3,2] row_mask:0xf bank_mask:0xf"
def items(f, *a):
    q = Prog(); f(q, *a); return q.items
def code(text, tag=None):
    q = Prog(); q.e(text, tag); return q.items

def srd(p, d, ptr, nrec, add=0):
    if add == 0: p.e(f"s_mov_b32 s{d}, s{ptr}\ns_mov_b32 s{d+1}, s{ptr+1}")
    elif add > 0: p.e(f"s_add_u32 s{d}, s{ptr}, {add}\ns_addc_u32 s{d+1}, s{ptr+1}, 0")
    else: p.e(f"s_sub_u32 s{d}, s{ptr}, {-add}\ns_subb_u32 s{d+1}, s{ptr+1}, 0")
    p.e(f"s_mov_b32 s{d+2}, {nrec}\ns_mov_b32 s{d+3}, 0x20000")

class Stamper:
    def __init__(self, on): self.on = on; self.n = 0
    def it(self, real=False):
        if not self.on: return []
        if OPT.get('rt') == 1: real = True
        if OPT.get('rt') == 2:
            n = self.n; self.n += 2
            return code(f"s_memrealtime s[0:1]\ns_memtime s[2:3]\ns_waitcnt lgkmcnt(0)\nv_writelane_b32 v251, s0, {n}\nv_writelane_b32 v251, s2, {n+1}")
        n = self.n; self.n += 1
        return code(f"{'s_memrealtime' if real else 's_memtime'} s[0:1]\ns_waitcnt lgkmcnt(0)\nv_writelane_b32 v251, s0, {n}")
    def __call__(self, p, real=False): p.extend(self.it(real))
    def dump(self, p):
        if not self.on: return
        p.wait_all()
        p.e(f"s_lshr_b32 s93, s{sMT}, 2\ns_lshr_b32 s3, s{sSL}, 3\ns_lshl_b32 s3, s3, 2\ns_add_u32 s93, s93, s3\ns_and_b32 s3, s{sMT}, 3\ns_lshl_b32 s3, s3, 3\ns_add_u32 s93, s93, s3\ns_and_b32 s3, s{sSL}, 7\ns_lshl_b32 s3, s3, 5\ns_add_u32 s93, s93, s3")
        if OPT.get('dbgout'):
            p.e(f"s_lshl_b32 s3, s93, 2\ns_add_u32 s3, s3, s{sW}\ns_cmp_eq_u32 s3, {4*OPT['dbgout']}\ns_cselect_b32 s3, 4, {OOB}")
            p.e(f"v_readlane_b32 s0, v251, 0\nv_subrev_u32 v251, s0, v251\nv_lshlrev_b32 v3, 2, v1\nv_add_u32 v3, s3, v3\nbuffer_store_dword v251, v3, {S(S_DBG)}, 0 offen")
            return
        srd(p, 4, P_WS, TS_OFF + (1 << 20))
        p.e(f"v_lshlrev_b32 v3, 2, v1\ns_lshl_b32 s3, s93, 2\ns_add_u32 s3, s3, s{sW}\ns_lshl_b32 s3, s3, 8\ns_add_u32 s3, s3, {TS_OFF}")
        p.e("buffer_store_dword v251, v3, s[4:7], s3 offen")

class LazyStamp:
    def __init__(self, ts): self.ts = ts
def resolve(steps):
    for st in steps:
        out = []
        for it in st['pre']:
            out += it.ts.it() if isinstance(it, LazyStamp) else [it]
        st['pre'] = out
vL = 1
vXD, vXC = 2, 4
vSR = 6
vD, vDS, vDC = 10, 12, 13
vBR, vT, vTW, vH = 14, 18, 22, 23
vONE, vEX = 24, 28
vTMP = 32
ACC1, ACC2, CSA, TMP = 40, 120, 184, 200
vFZ, vPA, vPV, vPT, vC1, vC2, vL16, vZ = 208, 209, 39, 211, 212, 213, 38, 210
RT = 216
C0 = 232
XF, BF, EXTW, CSF = 0, 160, 220, 240
t0, t1, t2, t3, t4, t5 = range(vTMP, vTMP + 6)

XS = 0
X_JOB, X_RING, X_NS, X_SLOT = 49152, 81920, 5, 16384
Y_TBL, Y_RING, Y_NS, Y_SLOT = 49152, 57344, 5, 20480
EXT_L = XS + 16384
AG_L = XS
HT2_L = 0

class Ctx:
    def __init__(self, typ, opt):
        self.typ = typ; self.opt = opt; self.slow = []; self.npoll = 0
        self.ts = Stamper(opt.get('ts'))

def bf16r(p, v): p.e(f"v_cvt_pk_bf16_f32 v{v}, v{v}, v{v}\nv_and_b32 v{v}, s{sMASK}, v{v}")

def retry(c, loads, check):
    k = c.npoll; c.npoll += 1
    L = f"{c.typ}_poll{k}"
    q = Prog()
    q.e(f"{L}_slow:\ns_mov_b32 s{sSP}, 0x40000\n{L}_lp:\ns_sleep {OPT.get('sleep', 1)}")
    q.e(loads + "\ns_waitcnt vmcnt(0)\n" + check)
    q.e(f"s_cbranch_vccz {L}_ret\ns_sub_u32 s{sSP}, s{sSP}, 1\ns_cmp_lg_u32 s{sSP}, 0\ns_cbranch_scc1 {L}_lp\ns_branch {L}_ret")
    c.slow.append(q.finalize())
    if OPT.get('nospin') and 'v211' not in check: return code(check + f"\n{L}_ret:")
    return code(check + f"\ns_cbranch_vccnz {L}_slow\n{L}_ret:")
def retry2(c, loads, regs, tmp, sp):
    k = c.npoll; c.npoll += 1
    L = f"{c.typ}_poll{k}"
    chk = f"v_xor_b32 v{tmp}, s{sN}, v{regs[0]}\n" + "".join(f"v_bitop3_b32 v{tmp}, v{tmp}, v{r}, s{sN} bitop3:0xf6\n" for r in regs[1:]) + f"v_cmp_ne_u32 s[{sp}:{sp+1}], 0, v{tmp}\ns_cmp_lg_u64 s[{sp}:{sp+1}], 0"
    q = Prog()
    q.e(f"{L}_slow:\ns_mov_b32 s{sSP}, 0x40000\n{L}_lp:\ns_sleep {OPT.get('sleep', 1)}")
    q.e(loads + "\ns_waitcnt vmcnt(0)\n" + chk)
    q.e(f"s_cbranch_scc0 {L}_ret\ns_sub_u32 s{sSP}, s{sSP}, 1\ns_cmp_lg_u32 s{sSP}, 0\ns_cbranch_scc1 {L}_lp\ns_branch {L}_ret")
    c.slow.append(q.finalize())
    if OPT.get('nospin'): return code(chk + f"\n{L}_ret:")
    return code(chk + f"\ns_cbranch_scc1 {L}_slow\n{L}_ret:")
def tagcheck(regs):
    t = f"v_xor_b32 v{vPV}, s{sN}, v{regs[0]}\n"
    for r in regs[1:]: t += f"v_bitop3_b32 v{vPV}, v{vPV}, v{r}, s{sN} bitop3:0xf6\n"
    return t + f"v_cmp_ne_u32 vcc, 0, v{vPV}"
NONCE_LD = lambda: f"buffer_load_dword v{vPT}, v{vZ}, {S(S_DBG)}, 0 offen sc1"
def nonce_get(c):
    return retry(c, NONCE_LD(), f"v_cmp_eq_u32 vcc, 0, v{vPT}") + code(f"v_readfirstlane_b32 s{sN}, v{vPT}")
def flag(soff):
    return code(f"buffer_store_dword v{vPT}, v{vFZ}, {S(S_WS)}, {soff} offen sc1", 'flag')

def nextkb(s, unit):
    return f"s_add_u32 s{s}, s{s}, {unit}\ns_cmp_eq_u32 s{s}, {10*unit}\ns_cselect_b32 s{s}, 0, s{s}"

def setup(p, opt):
    p.e("s_cmp_ge_u32 s2, 256\ns_cbranch_scc1 K_end")
    p.e("s_load_dwordx16 s[64:79], s[0:1], 0\ns_load_dwordx16 s[80:95], s[0:1], 64")
    p.e(f"v_and_b32 v{vL}, 63, v0\nv_lshrrev_b32 v{t0}, 6, v0\nv_lshlrev_b32 v{vL16}, 4, v{vL}")
    p.e(f"v_readfirstlane_b32 s{sW}, v{t0}")
    p.e(f"s_and_b32 s{sMT}, s2, 3\ns_lshl_b32 s{sMT}, s{sMT}, 2\ns_bfe_u32 s{sT0}, s2, 0x20003\ns_add_u32 s{sMT}, s{sMT}, s{sT0}")
    p.e(f"s_and_b32 s{sSL}, s2, 4\ns_lshl_b32 s{sSL}, s{sSL}, 1\ns_lshr_b32 s{sT0}, s2, 5\ns_add_u32 s{sSL}, s{sSL}, s{sT0}\ns_lshr_b32 s{sI}, s{sSL}, 1")
    if opt.get('cpf', 1):
        p.e(f"s_getpc_b64 s[4:5]\nK_pc:\ns_mov_b32 s6, K_X-K_pc\ns_bitcmp1_b32 s{sSL}, 0\ns_cselect_b32 s6, K_Y-K_pc, s6\ns_and_b32 s7, s{sI}, 3\ns_lshl_b32 s7, s7, 2\ns_and_b32 s8, s{sMT}, 3\ns_add_u32 s7, s7, s8")
        p.e(f"s_lshl_b32 s7, s7, 11\ns_add_u32 s6, s6, s7\nv_lshrrev_b32 v{t5}, 4, v0\nv_lshlrev_b32 v{t5}, 7, v{t5}\nv_add_u32 v{t5}, s6, v{t5}\nv_min_u32 v{t5}, K_end-K_pc, v{t5}\nglobal_load_dword v250, v{t5}, s[4:5]", tag='cpf')
    p.e(f"s_mul_i32 s{sROT}, s{sMT}, {opt.get('rm', 3)}\ns_mul_i32 s{sT0}, s{sT0}, {opt.get('rs', 1)}\ns_add_u32 s{sROT}, s{sROT}, s{sT0}\ns_mul_i32 s{sT1}, s{sROT}, 205\ns_lshr_b32 s{sT1}, s{sT1}, 11\ns_mul_i32 s{sT1}, s{sT1}, 10\ns_sub_u32 s{sROT}, s{sROT}, s{sT1}")
    p.e(f"s_lshl_b32 s{sKX}, s{sROT}, 7\ns_mov_b32 s{sKB}, s{sROT}\ns_mov_b32 s{sMASK}, 0xffff0000")
    p.e(f"s_lshl_b32 s{sFL}, s{sMT}, 4\ns_add_u32 s{sFL}, s{sFL}, s{sSL}\ns_lshl_b32 s{sFL}, s{sFL}, 7\ns_add_u32 s{sFL}, s{sFL}, {HF_OFF}")
    p.e(f"s_lshl_b32 s{sT0}, s{sMT}, 7\ns_lshl_b32 s{sT1}, s{sW}, 5\ns_add_u32 s{sT1}, s{sT0}, s{sT1}\ns_mul_i32 s{sXR}, s{sT1}, 1280")
    for i in range(1, 4): p.e(f"s_add_u32 s{sXR+i}, s{sXR}, {(8*1280-1024)*i}")
    p.e(f"s_lshl_b32 s{sLB}, s{sW}, 12")
    p.e(f"s_lshl_b32 s{sT1}, s{sSL}, 3\ns_add_u32 s{sT0}, s{sT0}, s{sT1}\ns_lshl_b32 s{sT1}, s{sW}, 1\ns_add_u32 s{sT0}, s{sT0}, s{sT1}")
    p.e(f"s_mul_i32 s{sU0}, s{sT0}, 1280\ns_lshl_b32 s{sU1}, s{sT0}, 4\ns_add_u32 s{sU1}, s{sU1}, {ST_OFF}")
    p.e(f"v_lshrrev_b32 v{t0}, 3, v{vL}\nv_and_b32 v{t1}, 7, v{vL}")
    p.e(f"v_lshrrev_b32 v{t2}, 5, v{vL}\nv_mul_u32_u24 v{t2}, 1280, v{t2}\nv_and_b32 v{t3}, 31, v{vL}\nv_lshl_add_u32 v{t4}, v{t3}, 3, v{t2}")
    p.e(f"v_lshrrev_b32 v{t2}, 4, v{vL}\nv_xor_b32 v{t2}, v{t1}, v{t2}\nv_lshlrev_b32 v{t2}, 4, v{t2}\nv_mul_u32_u24 v{t3}, 1280, v{t0}")
    p.e(f"v_add_u32 v{vXD}, v{t2}, v{t3}\nv_xor_b32 v{vXD+1}, 64, v{vXD}")
    p.e(f"v_mov_b32 v{vZ}, 0\nv_mov_b32 v{t2}, {OOB}\nv_cmp_eq_u32 vcc, 0, v0\nv_cndmask_b32 v{vFZ}, v{t2}, v0, vcc")
    p.e(f"s_cmp_eq_u32 s2, 0\ns_cselect_b32 s{sT0}, 0, {OOB}\nv_or_b32 v{vPA}, s{sT0}, v{vFZ}")

def first_loads(p, b0):
    x0 = x_dma(0)
    k1 = [i for i, it in enumerate(x0) if isinstance(it, I) and it.kind == 'vm']
    k2 = [i for i, it in enumerate(b0) if isinstance(it, I) and it.kind == 'vm']
    m0x = [it for it in x0 if isinstance(it, I) and ('x', 'm0') in it.defs][0]
    m0b = [it for it in b0 if isinstance(it, I) and ('x', 'm0') in it.defs][0]
    p.extend(x0[:k1[0] + 1]); p.extend(b0[:k2[1] + 1])
    p.add(I(m0x.text)); p.extend(x0[k1[0] + 1:])
    p.add(I(m0b.text)); p.extend(b0[k2[1] + 1:])
    srd(p, S_DBG, P_DBG, 256)
    p.e(f"s_or_b32 s{sT3}, s2, 1\nv_mov_b32 v{vPT}, s{sT3}\nbuffer_store_dword v{vPT}, v{vPA}, {S(S_DBG)}, 0 offen sc1")

def early_loads(p, typ):
    for i in range(5):
        p.e(f"buffer_load_dwordx2 {V(RT+2*i,2)}, v{t4}, {S(S_X)}, s{sU0} offen offset:{256*i}", tag='sx')
def code_prefetch(p, typ):
    if OPT.get('cpf', 1) == 2:
        p.e(f"s_getpc_b64 s[24:25]\n{typ}_pc:\nv_lshlrev_b32 v{t5}, 7, v0\nv_min_u32 v{t5}, {typ}_end-{typ}_pc, v{t5}\nglobal_load_dword v250, v{t5}, s[24:25]")

CPN = [0]
def code_ahead(typ, dst, tmp, sp, skip=2048, lines=32):
    L = f"{typ}_ca{CPN[0]}"; CPN[0] += 1
    return [Group(code(f"s_getpc_b64 s[{sp}:{sp+1}]\n{L}:\nv_lshrrev_b32 v{tmp}, {6 - (lines.bit_length() - 1)}, v0\nv_lshlrev_b32 v{tmp}, 7, v{tmp}\nv_add_u32 v{tmp}, {skip}, v{tmp}\n"
                f"v_min_u32 v{tmp}, {typ}_end-{L}, v{tmp}\nglobal_load_dword v{dst}, v{tmp}, s[{sp}:{sp+1}]"))]

def x_dma(j):
    q = Prog()
    q.wait_lgkm(('xr', j - 3))
    q.e(f"v_add_u32 v{vXC}, s{sKX}, v{vXD}\nv_add_u32 v{vXC+1}, s{sKX}, v{vXD+1}\ns_add_u32 m0, s{sLB}, {XS + (j % 3) * 16384}")
    for i in range(4):
        q.e(f"buffer_load_dwordx4 v{vXC+(i&1)}, {S(S_X)}, s{sXR+i} offen offset:{1024*i}{NT('ntx')} lds", tag=('x', j))
    q.e(nextkb(sKX, 128))
    return q.items
def x_read(j):
    q = Prog(); q.wait_vm(('x', j))
    for s in range(4): q.e(f"ds_read_b128 {A(XF+16*j+4*s,4)}, v{vSR+s} offset:{(j % 3) * 16384}", ('xr', j))
    return q.items

def ffn_dma(base, j):
    q = Prog()
    q.e(f"s_mul_i32 s{sD0}, s{sKB}, {64*3072}\ns_add_u32 s{sD0}, s{sD0}, s{sDB}\ns_add_u32 s{sD1}, s{sD0}, {8*3072-2048}\ns_add_u32 m0, s{sLB}, {base}")
    q.e(f"buffer_load_dwordx4 v{vD}, {S(S_W1)}, s{sD0} offen{NT('ntw')} lds", tag=('slot', j))
    q.e(f"buffer_load_dwordx4 v{vD+1}, {S(S_W3)}, s{sD0} offen offset:1024{NT('ntw')} lds", tag=('slot', j))
    q.e(f"buffer_load_dwordx4 v{vD}, {S(S_W1)}, s{sD1} offen offset:2048{NT('ntw')} lds", tag=('slot', j))
    q.e(f"buffer_load_dwordx4 v{vD+1}, {S(S_W3)}, s{sD1} offen offset:3072{NT('ntw')} lds", tag=('slot', j))
    q.e(nextkb(sKB, 1))
    return q.items
def ssm_dma(base, j):
    q = Prog()
    q.e(f"s_lshl_b32 s{sD0}, s{sKB}, 7\nv_add_u32 v{vDC}, s{sD0}, v{vDS}\ns_add_u32 m0, s{sLBS}, {base}")
    for t in range(4):
        q.e(f"buffer_load_dwordx4 v{vDC}, {S(S_B)}, s{sBT+t} offen offset:{1024*t}{NT('ntw')} lds", tag=('slot', j))
    q.e(f"s_add_u32 m0, s{sLBS}, {base + 4096}")
    q.e(f"buffer_load_dwordx4 v{vDC}, {S(S_B)}, s{sBT+4} offen{NT('ntw')} lds", tag=('slot', j))
    q.e(nextkb(sKB, 1))
    return q.items

def ffn_dma_addr(p):
    p.e(f"v_bfe_u32 v{t2}, v{vL}, 4, 1\nv_lshlrev_b32 v{t2}, 1, v{t2}\nv_xor_b32 v{t2}, v{t1}, v{t2}\nv_lshlrev_b32 v{t2}, 4, v{t2}")
    p.e(f"v_mul_u32_u24 v{t3}, 3072, v{t0}\nv_add_u32 v{vD}, v{t2}, v{t3}\nv_xor_b32 v{vD+1}, 64, v{vD}")
def ffn_srd(p):
    srd(p, S_W1, P_W1, 640 * 3072)
    srd(p, S_W3, P_W3, 640 * 3072 + 1024, -1024)

def common_addr(p):
    p.e(f"v_bfe_u32 v{t2}, v{vL}, 2, 1\nv_lshlrev_b32 v{t2}, 4, v{t2}\nv_bfe_u32 v{t3}, v{vL}, 3, 2\nv_lshl_add_u32 v{t2}, v{t3}, 2, v{t2}")
    p.e(f"v_and_b32 v{t3}, 3, v{vL}\nv_add_u32 v{t2}, v{t2}, v{t3}\nv_lshlrev_b32 v{vC1}, 4, v{t2}")
    p.e(f"v_bfe_u32 v{t3}, v{t2}, 1, 3\nv_lshrrev_b32 v{vSR}, 5, v{vL}\nv_xor_b32 v{t3}, v{t3}, v{vSR}\nv_lshlrev_b32 v{t3}, 4, v{t3}")
    p.e(f"v_lshl_add_u32 v{t3}, v{t2}, 7, v{t3}\nv_add_u32 v{vSR}, s{sLB}, v{t3}")
    for s in range(1, 4): p.e(f"v_xor_b32 v{vSR+s}, {32*s}, v{vSR}")
    p.e(f"v_bfe_u32 v{t2}, v{vL}, 2, 1\nv_lshlrev_b32 v{t2}, 10, v{t2}\nv_bfe_u32 v{t3}, v{vL}, 3, 3\nv_lshl_add_u32 v{t2}, v{t3}, 6, v{t2}")
    p.e(f"v_and_b32 v{t3}, 3, v{vL}\nv_lshl_add_u32 v{vH}, v{t3}, 4, v{t2}")
    for i in range(4): p.e(f"v_mov_b32 v{vONE+i}, 0x3f803f80")
    srd(p, S_WS, P_WS, WS_USED)
    p.e(f"s_lshl_b32 s{sT0}, s{sMT}, 1\ns_lshr_b32 s{sT1}, s{sW}, 1\ns_add_u32 s{sT0}, s{sT0}, s{sT1}\ns_mul_i32 s{sT0}, s{sT0}, 88")
    p.e(f"s_mul_i32 s{sT1}, s{sI}, 11\ns_add_u32 s{sT0}, s{sT0}, s{sT1}\ns_lshl_b32 s{sH}, s{sT0}, 12")
    p.e(f"s_and_b32 s{sT1}, s{sW}, 1\ns_lshl_b32 s{sT1}, s{sT1}, 11\ns_add_u32 s{sH}, s{sH}, s{sT1}")

def tr_addrs(p, base):
    p.e(f"v_bfe_u32 v{t0}, v{vL}, 4, 1\nv_lshrrev_b32 v{t1}, 5, v{vL}\nv_lshlrev_b32 v{t1}, 11, v{t1}\nv_lshl_add_u32 v{t1}, v{t0}, 10, v{t1}")
    p.e(f"v_bfe_u32 v{t2}, v{vL}, 2, 2\nv_lshl_add_u32 v{t1}, v{t2}, 7, v{t1}\nv_and_b32 v{t3}, 3, v{vL}\nv_lshl_add_u32 v{t1}, v{t3}, 3, v{t1}")
    p.e(f"v_bfe_u32 v{t2}, v{vL}, 3, 1\nv_lshl_add_u32 v{t2}, v{t0}, 1, v{t2}\nv_lshl_add_u32 v{t1}, v{t2}, 5, v{t1}")
    p.e(f"v_add_u32 v{vT}, {base}, v{t1}")
    for tau in range(1, 4): p.e(f"v_xor_b32 v{vT+tau}, {32*tau}, v{vT}")

def touch():
    q = Prog()
    q.e(f"v_lshlrev_b32 v{vPA}, 19, v{vL}\nv_min_u32 v{vPA}, {WS_USED - 4}, v{vPA}\nbuffer_load_dword v250, v{vPA}, {S(S_WS)}, 0 offen")
    q.e(f"v_min_u32 v{vPA}, {2048*2560 - 4}, v{vPA}\nglobal_load_dword v250, v{vPA}, s[{P_OUT}:{P_OUT+1}]")
    return q.items

def stats_job(p):
    R = RT; aQ, aS = TMP, TMP + 1
    p.e(f"v_mov_b32 v{aS}, 0\nv_mov_b32 v{aQ}, 0")
    for d in range(10):
        p.e(f"v_dot2c_f32_bf16 v{aS}, v{vONE}, v{R+d}\nv_dot2c_f32_bf16 v{aQ}, v{R+d}, v{R+d}")
    p.e("s_nop 2")
    for perm in ("quad_perm:[1,0,3,2] row_mask:0xf", "quad_perm:[2,3,0,1] row_mask:0xf", "row_half_mirror row_mask:0xf", "row_mirror row_mask:0xf", "row_bcast:15 row_mask:0xa"):
        for r in (aS, aQ): p.e(f"v_add_f32_dpp v{r}, v{r}, v{r} {perm} bank_mask:0xf")
    inv = f2u(1.0 / 640)
    p.e(f"v_mul_f32 v{aS}, {inv}, v{aS}\nv_mul_f32 v{aQ}, {inv}, v{aQ}\nv_fma_f32 v{aQ}, -v{aS}, v{aS}, v{aQ}\nv_max_f32 v{aQ}, 0, v{aQ}")
    p.e(f"v_sub_f32 v{aS}, 0, v{aS}\nv_cvt_pk_bf16_f32 v{aS}, v{aS}, v{aS}")
    bf16r(p, aQ)
    p.e(f"v_add_f32 v{aQ}, {f2u(1e-5)}, v{aQ}")
    bf16r(p, aQ)
    p.e(f"v_sqrt_f32 v{aQ}, v{aQ}")
    bf16r(p, aQ)
    p.e(f"v_rcp_f32 v{aQ}, v{aQ}")
    p.e(f"v_and_b32 v{R}, 31, v{vL}\nv_cmp_eq_u32 vcc, 16, v{R}\nv_lshrrev_b32 v{R}, 1, v{vL}\nv_and_b32 v{R}, 16, v{R}\nv_mov_b32 v{R+1}, {OOB}\nv_cndmask_b32 v{R}, v{R+1}, v{R}, vcc")
def stats_store():
    return code(f"v_mov_b32 v{TMP+2}, s{sN}\nv_mov_b32 v{TMP+3}, s{sN}\nbuffer_store_dwordx4 {V(TMP,4)}, v{RT}, {S(S_WS)}, s{sU1} offen sc1", 'pub')

def cs_store_addr(q, gidexpr):
    q.e(gidexpr)
    q.e(f"s_mul_i32 s{sU3}, s{sT0}, 12800\ns_add_u32 s{sU3}, s{sU3}, {CS_OFF}\ns_mul_i32 s{sT0}, s{sROT}, 1280\ns_add_u32 s{sU2}, s{sU3}, s{sT0}")
    q.e(f"s_lshl_b32 s{sT0}, s{sW}, 8\ns_add_u32 s{sU2}, s{sU2}, s{sT0}\ns_add_u32 s{sU3}, s{sU3}, s{sT0}")
    q.e(f"s_cmp_lt_u32 s{sMT}, 10\ns_cselect_b32 s{sT0}, 32, 0\nv_cmp_gt_u32 vcc, s{sT0}, v{vL}\nv_lshlrev_b32 v{t4}, 3, v{vL}\nv_mov_b32 v{t5}, {OOB}\nv_cndmask_b32 v{t4}, v{t5}, v{t4}, vcc")

def cs_produce_ffn(acc, gidexpr):
    q = Prog()
    q.e(f"s_lshl_b32 s{sT0}, s{sW}, 5\nv_xor_b32 v{vTW}, s{sT0}, v{vT}")
    for s in range(4):
        for t in range(2):
            q.e(f"ds_read_b64_tr_b16 {A(CSF+4*s+2*t,2)}, v{vTW} offset:{s*4096 + t*512}")
    cs_store_addr(q, gidexpr)
    for s in range(4):
        q.e(f"v_mfma_f32_32x32x16_bf16 {V(acc,16)}, {V(vONE,4)}, {A(CSF+4*s,4)}, {'0' if s == 0 else V(acc,16)}")
    st = code(f"v_mov_b32 v{acc+1}, s{sN}\nbuffer_store_dwordx2 {V(acc,2)}, v{t4}, {S(S_WS)}, s{sU2} offen sc1", 'pub')
    return q.items, st

def cs_consume(c, ntile, R0):
    q = Prog()
    q.e(f"v_lshrrev_b32 v{vPA}, 5, v{vL}\nv_mul_u32_u24 v{vPA}, 6400, v{vPA}\nv_and_b32 v{t5}, 31, v{vL}\nv_lshl_add_u32 v{vPA}, v{t5}, 3, v{vPA}")
    q.e(f"s_add_u32 s{sU2}, s{sU3}, 3840")
    rounds = [(R0, 0)]
    ld = ""
    for i in range(5): ld += f"buffer_load_dwordx2 {V(R0+2*i,2)}, v{vPA}, {S(S_WS)}, s{sU3 if i < 3 else sU2} offen offset:{1280*(i%3)} sc1\n"
    if ntile == 5:
        q.e(f"s_lshl_b32 s86, s{sW}, 8\ns_sub_u32 s86, 1024, s86\nv_add_u32 v{vTW}, s86, v{vPA}")
        for i in range(5): ld += f"buffer_load_dwordx2 {V(R0+10+2*i,2)}, v{vTW}, {S(S_WS)}, s{sU3 if i < 3 else sU2} offen offset:{1280*(i%3)} sc1\n"
        rounds.append((R0 + 10, 1))
    a = (q.items, code(ld))
    q = Prog()
    q.extend(retry(c, ld, tagcheck([R0 + 1 + 2 * i for i in range(5 * len(rounds))])))
    q.e(f"v_cmp_gt_u32 vcc, 32, v{vL}")
    for (R, which) in rounds:
        q.e(f"v_add_f32 v{R}, v{R}, v{R+2}\nv_add_f32 v{R+4}, v{R+4}, v{R+6}\nv_add_f32 v{R}, v{R}, v{R+8}\nv_add_f32 v{R}, v{R}, v{R+4}")
        q.e(f"v_mov_b32 v{R+1}, v{R}\nv_mov_b32 v{R+6}, 0\nv_mov_b32 v{R+7}, 0\nv_permlane32_swap_b32 v{R}, v{R+1}\nv_add_f32 v{R}, v{R}, v{R+1}\nv_cndmask_b32 v{R}, 0, v{R}, vcc")
        q.e(f"v_cvt_pk_bf16_f32 v{R+1}, v{R}, v{R}\nv_and_b32 v{R+1}, s{sMASK}, v{R+1}\nv_sub_f32 v{R}, v{R}, v{R+1}")
        q.e(f"v_cvt_pk_bf16_f32 v{R+4}, v{R+1}, v{R}\nv_and_b32 v{R+2}, s{sMASK}, v{R+4}\nv_sub_f32 v{R}, v{R}, v{R+2}")
        q.e(f"v_cvt_pk_bf16_f32 v{R+5}, v{R}, 0")
        if which == 0:
            q.e(f"s_lshr_b32 s86, s{sLB}, 2\nv_add_u32 v{t5}, s86, v{vL16}")
            q.e(f"ds_write_b128 v{t5}, {V(R+4,4)} offset:{EXT_L}", tag='ext')
        else:
            q.e(f"ds_write_b128 v{vL16}, {V(R+4,4)} offset:{EXT_L + 4096}", tag='ext')
    return a, q.items
def ext_read(ntile):
    return code("\n".join(f"ds_read_b128 {A(EXTW+4*t,4)}, v{vL16} offset:{EXT_L + 1024*t}" for t in range(ntile)))

def stats_consume(c):
    q = Prog()
    q.e(f"s_lshl_b32 s87, s{sMT}, 11\ns_lshl_b32 s86, s{sW}, 9\ns_add_u32 s87, s87, s86\ns_add_u32 s{sU0}, s87, {ST_OFF}")
    ld = f"buffer_load_dwordx4 {V(vEX,4)}, v{vC1}, {S(S_WS)}, s{sU0} offen sc1"
    q.e(ld)
    a = q.items
    q = Prog()
    q.extend(retry(c, ld, tagcheck([vEX + 2, vEX + 3])))
    if c.typ == 'Y':
        q.e(f"s_lshl_b32 s{sT0}, s{sW}, 7\ns_add_u32 s{sT0}, s{sT0}, 159744")
        q.e(f"v_lshrrev_b32 v{t3}, 2, v{vC1}\nv_add_u32 v{t3}, s{sT0}, v{t3}\nds_write_b32 v{t3}, v{vEX}")
        q.e(f"v_lshrrev_b32 v{t2}, 5, v{vL}\nv_lshlrev_b32 v{t2}, 6, v{t2}\nv_add_u32 v{t2}, s{sT0}, v{t2}")
        for i in range(4): q.e(f"ds_read_b128 {V(RT+4*i,4)}, v{t2} offset:{16*i}")
    q.e(f"v_mul_f32 v{vC1}, {NLOG2E}, v{vEX}\nv_rcp_f32 v{vC2}, v{vEX}\nv_mov_b32 v{vEX}, v{vEX+1}\nv_mov_b32 v{vEX+2}, v{vEX+1}\nv_mov_b32 v{vEX+3}, v{vEX+1}")
    q.e(f"v_mul_f32 v{vC2}, v{vC2}, v{vC2}")
    return a, q.items

def ffn_epi(acc, pos, imm):
    p = Prog(); tmp = TMP
    for r in range(8): p.e(f"v_mul_f32 v{tmp+r}, v{vC1}, v{acc+r}")
    for r in range(8): p.e(f"v_exp_f32 v{tmp+r}, v{tmp+r}\nv_mul_f32 v{acc+r}, v{acc+r}, v{acc+8+r}")
    for r in range(8): p.e(f"v_fma_f32 v{tmp+r}, v{tmp+r}, v{vC2}, v{vC2}")
    for r in range(8): p.e(f"v_rcp_f32 v{tmp+r}, v{tmp+r}")
    p.e(f"s_add_u32 s{sT2}, s{sH}, {pos*4096}")
    for r in range(8): p.e(f"v_mul_f32 v{acc+r}, v{acc+r}, v{tmp+r}")
    for r in range(4): p.e(f"v_cvt_pk_bf16_f32 v{acc+8+r}, v{acc+2*r}, v{acc+2*r+1}")
    p.e(f"buffer_store_dwordx4 {V(acc+8,4)}, v{vH}, {S(S_WS)}, s{sT2} offen offset:{imm} sc1", tag='h')
    if OPT.get('dual'): p.e(f"buffer_store_dwordx4 {V(acc+8,4)}, v{vH}, {S(S_WS)}, s{sT2} offen offset:{imm}", tag='h')
    return p.items

class Ring:
    def __init__(self, reg, n, cur): self.reg = reg; self.n = n; self.cur = cur
    def off(self, base, span, out):
        if base < self.cur or base + span - self.cur > 65536:
            out += code("\n".join(f"v_add_u32 v{self.reg+i}, {(base - self.cur) & 0xffffffff}, v{self.reg+i}" for i in range(self.n)))
            self.cur = base
        return base - self.cur

def build_steps(c, kinds, slot_base, dma, NS, rT, rB, pre_extra, late):
    steps = []
    TMB = OPT.get('tmb', 3); TM0 = 80 - 4 * TMB
    reads = []
    for n in range(80):
        j, s = divmod(n, 4); buf = BF + (n % 3) * 20 if kinds[j] == 'S' else (160, 180, 196)[n % 3]
        base = slot_base(j)
        rd = []
        if kinds[j] == 'F':
            acc = ACC1 if (j < 10) else ACC2
            mf = []
            for e in range(4):
                tau, jj, ss = e, j, s
                if n >= TM0: tau, jj, ss = (n - TM0) // TMB, 20 - TMB + (n - TM0) % TMB, e
                o = []
                off = rT.off(slot_base(jj), 16384, o)
                o += code("\n".join(f"ds_read_b64_tr_b16 {A(buf+4*e+2*t,2)}, v{vT+tau} offset:{off + ss*4096 + t*512}" for t in range(2)), ('rd', n))
                rd.append(o)
                cc = "0" if n % 40 == 0 else V(acc + 16 * tau, 16)
                mf += code(f"v_mfma_f32_32x32x16_bf16 {V(acc+16*tau,16)}, {A(buf+4*e,4)}, {A(XF+4*((4*jj+ss)%40),4)}, {cc}")
        else:
            mf = []
            for t in range(5):
                o = []
                off = rB.off(base, 20480, o)
                o += code(f"ds_read_b128 {A(buf+4*t,4)}, v{vBR+s} offset:{off + 1024*t}", ('rd', n))
                rd.append(o)
                cc = "0" if n == 0 else V(ACC1 + 16 * t, 16)
                mf += code(f"v_mfma_f32_32x32x16_bf16 {V(ACC1+16*t,16)}, {A(XF+4*n,4)}, {A(buf+4*t,4)}, {cc}")
        reads.append(rd)
        steps.append(dict(pre=[], mf=mf, rd=[[] for _ in mf]))
    for n in range(80):
        st = steps[n]; j, s = divmod(n, 4)
        if c.opt.get('st0') is not None: st['pre'] += code(f'.set STEPMARK{c.typ}{n}, 0')
        if c.opt.get('ts') == 2 and s == 0: st['pre'] += [LazyStamp(c.ts)]
        st['pre'] += [Marker('lgkm', ('rd', n))]
        syncs = [j + 1] if (s == 2 and j + 1 <= 20 - TMB) else []
        if n == TM0 - 1: syncs = list(range(21 - TMB, 20))
        if syncs:
            sy = [x for k in syncs for x in pre_extra.get(('sync', k), []) + [Marker('vm', ('slot', k))]] + [Marker('lgkm', ['ext', 'agw'])] + ([] if OPT.get('nobar') else code("s_barrier")) + [x for k in syncs for x in pre_extra.get(('post', k), [])]
            st['rd'][0] += sy
        if n + 2 < 80:
            src = reads[n + 2]; g = len(st['mf'])
            st['rd'][min(len(src), g) - 1] += [Marker('lgkm', ('rd', n + 1))]
            for i, o in enumerate(src): st['rd'][min(i, g - 1)] += o
        if s == 1 and j + 1 < 10:
            st['rd'][0] += x_read(j + 1)
    for tau in range(4):
        st = steps[TM0 + TMB * tau + TMB - 1]
        st['mf'] += code(f"v_mfma_f32_32x32x16_bf16 {V(ACC2+16*tau,16)}, {A(EXTW+4*tau,4)}, {V(vEX,4)}, {V(ACC2+16*tau,16)}"); st['rd'] += [[]]
    c.TM0, c.TMB = TM0, TMB
    va = VmAlloc(steps); c.va = va
    LR, LX = OPT.get('leadr', 7), OPT.get('leadx', 5)
    E1 = OPT.get('e1', 1)
    va.place(0, x_dma(2), stride=E1); va.place(0, dma(2), stride=E1)
    for its in late.get(0, []): va.place(0, its, stride=E1)
    va.place(1, x_dma(3), by=9 - LX); va.place(0, dma(3), by=10 - LR)
    va.place(3, x_dma(4), by=13 - LX); va.place(3, dma(4), by=14 - LR)
    for j in range(1, 20):
        if j - 1 + NS < 20: va.place(4 * j + 2, dma(j - 1 + NS), by=4 * (j - 2 + NS) + 2 - LR)
        if j + 4 < 10: va.place(4 * j + 3, x_dma(j + 4), by=4 * (j + 3) + 1 - LX)
        for its in late.get(j, []): va.place(4 * j + 3, its)
    if OPT.get('vlog'): print(va.log, file=sys.stderr)
    return steps, reads[0], reads[1]

class VmAlloc:
    def __init__(self, steps):
        self.steps = steps; self.used = set(); self.dma_next = 0; self.log = []; self.b_next = 0; self.iv = []
        self.gaps = [(n, g) for n, st in enumerate(steps) for g in range(len(st['mf']))]
        self.first = {}
        for i, (n, g) in enumerate(self.gaps): self.first.setdefault(n, i)
    def light(self, n, its):
        i = self.first[n]
        for it in its:
            while i in self.used: i += 1
            a, b = self.gaps[i]
            self.steps[a]['rd'][b] += it.its if isinstance(it, Group) else [it]; self.used.add(i)
        return self.gaps[i]
    def place(self, n, its, dma=True, stride=None, by=None):
        stride = stride or OPT.get('vstride', 2)
        groups, cur = [], []
        for it in its:
            cur.append(it)
            if isinstance(it, I) and it.kind == 'vm': groups.append(cur); cur = []
        if cur: groups[-1] += cur
        i0 = self.first[n]
        if dma == 'b': i0 = max(i0, self.b_next)
        elif dma is True: i0 = max(i0, self.dma_next)
        inside = (lambda i: any(a < i < b for a, b in self.iv)) if dma == 'l' else (lambda i: False)
        if dma == 'l': i0 = max(i0, self.b_next)
        for st_ in range(stride, 0, -1):
            i = i0; pos = []; used = set(self.used)
            for grp in groups:
                while inside(i) or any((i + d) in used for d in range(-st_ + 1, st_)): i += 1
                pos.append(i); used.add(i)
            if by is None or i < self.first[max(by, 0)] or st_ == 1: break
        if i >= len(self.gaps): return False
        for grp, k in zip(groups, pos):
            a, b = self.gaps[k]
            self.steps[a]['rd'][b] += grp; self.used.add(k)
        self.log.append((n, by, self.gaps[pos[0]], self.gaps[pos[-1]]))
        if dma in ('b', 'l'): self.b_next = i + 1
        elif dma: self.dma_next = i + 1; self.iv.append((pos[0], pos[-1]))
        return True

def flat(rd): return [x for o in rd for x in o]

sJW, sJ0, sJ1, sJ2, sJ3, sJ4 = 16, 17, 18, 19, sLBS, sBT
def lam_consts(q, L, pows, coef):
    lr, li, ld, a2, rev, O, u = L + 1, L + 2, L + 3, L + 4, L + 5, L + 8, L + 16
    q.e(f"v_lshlrev_b32 v{lr}, 16, v{lr}\nv_lshlrev_b32 v{li}, 16, v{li}\nv_lshlrev_b32 v{ld}, 16, v{ld}")
    q.e(f"v_mul_f32 v{ld}, {LOG2E}, v{ld}\nv_exp_f32 v{ld}, v{ld}")
    bf16r(q, ld)
    q.e(f"v_mul_f32 v{a2}, v{ld}, v{lr}\nv_mul_f32 v{rev}, v{ld}, v{li}\nv_mul_f32 v{a2}, {LOG2E}, v{a2}\nv_mul_f32 v{rev}, {INV2PI}, v{rev}")
    for n, k in enumerate(pows):
        if k != 1: q.e(f"v_mul_f32 v{u}, {f2u(float(k))}, v{a2}\nv_mul_f32 v{u+1}, {f2u(float(k))}, v{rev}\nv_exp_f32 v{u}, v{u}\nv_fract_f32 v{u+1}, v{u+1}")
        else: q.e(f"v_exp_f32 v{u}, v{a2}\nv_fract_f32 v{u+1}, v{rev}")
        q.e(f"v_cos_f32 v{u+2}, v{u+1}\nv_sin_f32 v{u+3}, v{u+1}\nv_mul_f32 v{O+2*n}, v{u}, v{u+2}\nv_mul_f32 v{O+2*n+1}, v{u}, v{u+3}")
    if coef:
        q.e(f"v_add_f32 v{u}, -1.0, v{O}\nv_mul_f32 v{u+1}, v{lr}, v{lr}\nv_fmac_f32 v{u+1}, v{li}, v{li}\nv_rcp_f32 v{u+1}, v{u+1}")
        q.e(f"v_mul_f32 v{u+2}, v{u}, v{lr}\nv_fmac_f32 v{u+2}, v{O+1}, v{li}\nv_mul_f32 v{u+3}, v{O+1}, v{lr}\nv_fma_f32 v{u+3}, -v{u}, v{li}, v{u+3}")
        q.e(f"v_add_f32 v{u+1}, v{u+1}, v{u+1}\nv_mul_f32 v{L+4}, v{u+2}, v{u+1}\nv_mul_f32 v{L+5}, v{u+3}, v{u+1}")

def jobs(c):
    JL = ACC2 + 32
    q = Prog()
    q.e(f"s_lshl_b32 s{sT0}, s{sI}, 4\ns_add_u32 s{sT0}, s{sT0}, s{sMT}\ns_lshl_b32 s{sT0}, s{sT0}, 2\ns_add_u32 s{sJW}, s{sT0}, s{sW}\ns_lshl_b32 s{sJ3}, s{sW}, 13")
    q.e(f"s_min_u32 s{sT0}, s{sJW}, 479\ns_mul_i32 s{sJ1}, s{sT0}, 6554\ns_lshr_b32 s{sJ1}, s{sJ1}, 16\ns_mul_i32 s{sT2}, s{sJ1}, 10\ns_sub_u32 s{sJ0}, s{sT0}, s{sT2}")
    srd(q, S_J0, P_W2, 1536 * 1280)
    q.e(f"v_lshrrev_b32 v{t0}, 3, v{vL}\nv_and_b32 v{t1}, 7, v{vL}\nv_lshrrev_b32 v{t2}, 4, v{vL}\nv_lshlrev_b32 v{t2}, 1, v{t2}\nv_xor_b32 v{t2}, v{t1}, v{t2}\nv_lshlrev_b32 v{t2}, 4, v{t2}")
    q.e(f"v_mul_u32_u24 v{t3}, 1280, v{t0}\nv_add_u32 v{vBR}, v{t2}, v{t3}")
    q.e(f"s_mul_i32 s{sBT+1}, s{sJ1}, {32*1280}\ns_lshl_b32 s{sT3}, s{sJ0}, 7\ns_add_u32 s{sBT+1}, s{sBT+1}, s{sT3}")
    q.e(f"s_min_u32 s{sT0}, s{sJW}, 399\ns_mul_i32 s{sJ2}, s{sT0}, 6554\ns_lshr_b32 s{sJ2}, s{sJ2}, 16\ns_mul_i32 s{sT2}, s{sJ2}, 10\ns_sub_u32 s{sJW}, s{sT0}, s{sT2}")
    srd(q, S_J1, P_CRE, 640 * 1280)
    srd(q, S_AG, P_CIM, 640 * 1280 + 2048, -2048)
    q.e(f"s_mul_i32 s{sBT+2}, s{sJ2}, {16*1280}\ns_lshl_b32 s{sT3}, s{sJW}, 7\ns_add_u32 s{sBT+2}, s{sBT+2}, s{sT3}\ns_add_u32 s{sBT+3}, s{sBT+2}, {8*1280-1024}")
    q.e(f"v_lshlrev_b32 v{JL}, 1, v{vL}\nv_add_u32 v{JL}, s{sT3}, v{JL}")
    for k, ptr in enumerate((P_LRE, P_LIM, P_LDT)):
        q.e(f"global_load_ushort v{JL+1+k}, v{JL}, s[{ptr}:{ptr+1}]", tag='tbl')
    a = q.items
    q = Prog()
    q.e(f"s_add_u32 m0, s{sJ3}, {X_JOB}")
    for i in range(4):
        q.e(f"buffer_load_dwordx4 v{vBR}, {S(S_J0)}, s{sBT+1} offen offset:{1024*i}{NT('ntj')} lds", tag='jobA')
        if i < 3: q.e(f"s_add_u32 s{sBT+1}, s{sBT+1}, {8*1280-1024}")
    da = q.items
    q = Prog()
    q.e(f"s_add_u32 m0, s{sJ3}, {X_JOB + 4096}")
    for i, (sr, so) in enumerate(((S_J1, sBT + 2), (S_J1, sBT + 3), (S_AG, sBT + 2), (S_AG, sBT + 3))):
        q.e(f"buffer_load_dwordx4 v{vXD+(i&1)}, {S(sr)}, s{so} offen offset:{1024*i}{NT('ntj')} lds", tag='jobB')
    db = q.items
    q = Prog()
    q.e(f"v_bfe_u32 v{t0}, v{vL}, 2, 3\nv_lshrrev_b32 v{t1}, 5, v{vL}\nv_lshl_add_u32 v{t1}, v{t1}, 4, v{t0}")
    q.e(f"v_lshrrev_b32 v{t0}, 1, v{t0}\nv_lshlrev_b32 v{t0}, 5, v{t0}\nv_lshl_add_u32 v{t0}, v{t1}, 7, v{t0}\nv_and_b32 v{t1}, 3, v{vL}")
    q.e(f"v_lshl_add_u32 v{t0}, v{t1}, 3, v{t0}\nv_add_u32 v{vBR}, s{sJ3}, v{t0}")
    for tau in range(1, 4): q.e(f"v_xor_b32 v{vBR+tau}, {32*tau}, v{vBR}")
    q.e(f"s_mul_i32 s{sT0}, s{sJ1}, 43\ns_lshr_b32 s{sT0}, s{sT0}, 8\ns_mul_i32 s{sT0}, s{sT0}, 5\ns_add_u32 s{sT0}, s{sT0}, s{sJ1}\ns_mul_i32 s{sJ1}, s{sT0}, 5")
    q.wait_vm('jobA')
    for tau in range(4):
        for t in range(2): q.e(f"ds_read_b64_tr_b16 {V(CSA+4*tau+2*t,2)}, v{vBR+tau} offset:{X_JOB + 1024*t}")
    for tau in range(4):
        q.e(f"s_lshl_b32 s{sT0}, s{sJ0}, 2\ns_add_u32 s{sT0}, s{sT0}, {tau}\ns_mul_i32 s{sT1}, s{sT0}, 52\ns_lshr_b32 s{sT1}, s{sT1}, 8")
        q.e(f"s_mul_i32 s{sT2}, s{sT1}, 435\ns_add_u32 s{sT0}, s{sT0}, s{sT2}\ns_add_u32 s{sT0}, s{sT0}, s{sJ1}")
        q.e(f"s_lshl_b32 s{sT0}, s{sT0}, 10\ns_add_u32 s{sT0}, s{sT0}, {W2S_OFF}")
        q.e(f"buffer_store_dwordx4 {V(CSA+4*tau,4)}, v{vL16}, {S(S_WS)}, s{sT0} offen sc1", tag='pub')
    pa = q.items
    q = Prog()
    lam_consts(q, JL, [1], True)
    q.e(f"v_sub_f32 v{JL+5}, 0, v{JL+5}\nv_sub_f32 v{JL+6}, 0, v{JL+4}\nv_lshlrev_b32 v{t0}, 2, v{vL}\nv_add_u32 v{t0}, s{sJ3}, v{t0}")
    for k in range(3): q.e(f"ds_write_b32 v{t0}, v{JL+4+k} offset:{X_JOB + 256*k}")
    q.e(f"v_bfe_u32 v{t0}, v{vL}, 1, 3\nv_bfe_u32 v{t1}, v{vL}, 4, 1\nv_xor_b32 v{t0}, v{t0}, v{t1}\nv_lshlrev_b32 v{t0}, 4, v{t0}")
    q.e(f"v_and_b32 v{t2}, 15, v{vL}\nv_lshl_add_u32 v{t0}, v{t2}, 7, v{t0}\nv_add_u32 v{vBR}, s{sJ3}, v{t0}")
    for s in range(1, 4): q.e(f"v_xor_b32 v{vBR+s}, {32*s}, v{vBR}")
    q.e(f"v_lshrrev_b32 v{t2}, 5, v{vL}\nv_lshlrev_b32 v{t2}, 8, v{t2}\nv_lshl_add_u32 v{t2}, v{t1}, 5, v{t2}\nv_add_u32 v{vTW}, s{sJ3}, v{t2}")
    q.e(f"s_mul_i32 s{sT1}, s{sJ2}, 52\ns_lshr_b32 s{sT1}, s{sT1}, 8\ns_mul_i32 s{sT1}, s{sT1}, 435\ns_add_u32 s{sJ2}, s{sT1}, s{sJ2}")
    q.wait_vm('jobB')
    CR, CI, AL, BE, U = ACC2 + 16, ACC2 + 20, ACC2 + 32, ACC2 + 40, ACC2 + 24
    def rd(s):
        o = 24 * (s & 1) if False else 0
        q.e(f"ds_read_b128 {V(CR,4)}, v{vBR+s} offset:{X_JOB + 4096}\nds_read_b128 {V(CI,4)}, v{vBR+s} offset:{X_JOB + 4096 + 2048}")
        for h in range(2):
            q.e(f"ds_read_b128 {V(AL+4*h,4)}, v{vTW} offset:{X_JOB + 64*s + 16*h}\nds_read_b128 {V(BE+4*h,4)}, v{vTW} offset:{X_JOB + 256 + 64*s + 16*h}")
    for s in range(4):
        rd(s)
        q.e(f"s_lshl_b32 s{sT0}, s{sJW}, 2\ns_add_u32 s{sT0}, s{sT0}, {s}\ns_mul_i32 s{sT1}, s{sT0}, 52\ns_lshr_b32 s{sT1}, s{sT1}, 8\ns_mul_i32 s{sT1}, s{sT1}, 6")
        q.e(f"s_add_u32 s{sT0}, s{sT0}, s{sT1}\ns_mul_i32 s{sT0}, s{sT0}, 5\ns_add_u32 s{sT0}, s{sT0}, s{sJ2}\ns_lshl_b32 s{sT0}, s{sT0}, 10\ns_add_u32 s{sT0}, s{sT0}, {W2S_OFF + 30*1024}")
        for d in range(4):
            q.e(f"v_lshlrev_b32 v{U}, 16, v{CR+d}\nv_and_b32 v{U+1}, s{sMASK}, v{CR+d}\nv_lshlrev_b32 v{U+2}, 16, v{CI+d}\nv_and_b32 v{U+3}, s{sMASK}, v{CI+d}")
            q.e(f"v_mul_f32 v{U}, v{AL+2*d}, v{U}\nv_mul_f32 v{U+1}, v{AL+2*d+1}, v{U+1}\nv_fmac_f32 v{U}, v{BE+2*d}, v{U+2}\nv_fmac_f32 v{U+1}, v{BE+2*d+1}, v{U+3}")
            q.e(f"v_cvt_pk_bf16_f32 v{CSA+4*s+d}, v{U}, v{U+1}")
        q.e(f"buffer_store_dwordx4 {V(CSA+4*s,4)}, v{vL16}, {S(S_WS)}, s{sT0} offen sc1", tag='pub')
    q.e(f"s_lshl_b32 s{sT0}, s{sMT}, 7\ns_lshl_b32 s{sT1}, s{sI}, 11\ns_add_u32 s{sT0}, s{sT0}, s{sT1}\ns_add_u32 s{sBT+3}, s{sT0}, {WF_OFF}")
    return a, da, db, pa, q.items

def ext_mfma(acc, n, ffn):
    if ffn: return code("\n".join(f"v_mfma_f32_32x32x16_bf16 {V(acc+16*t,16)}, {A(EXTW+4*t,4)}, {V(vEX,4)}, {V(acc+16*t,16)}" for t in range(n)))
    return code("\n".join(f"v_mfma_f32_32x32x16_bf16 {V(acc+16*t,16)}, {V(vEX,4)}, {A(EXTW+4*t,4)}, {V(acc+16*t,16)}" for t in range(n)))

sBQ, sAO, sAP, sBC, sBD = 66, 67, 68, 64, 65
TAB = [70, 71, 72, 73, 74, 75, 76, 77, 78, 79, 84]
def k2_setup(c):
    q = Prog()
    ld = f"buffer_load_dword v249, v248, {S(S_WS)}, s69 offen sc1"
    a_, b_, c_ = 248, 249, 250
    q.e(f"s_lshr_b32 s86, s{sSL}, 3\ns_lshl_b32 s85, s86, 2\ns_add_u32 s85, s85, s{sW}\ns_and_b32 s87, s{sSL}, 7\ns_mul_i32 s87, s87, 5\ns_mov_b32 s69, {WF_OFF}")
    q.e(f"s_mul_i32 s88, s85, 6\ns_mul_i32 s85, s85, 5\ns_sub_u32 s84, s87, 6")
    q.e(f"v_min_u32 v{c_}, 21, v{vL}\nv_cmp_gt_u32 s[64:65], 12, v{c_}\nv_mov_b32 v{a_}, s84\nv_mov_b32 v{b_}, s88\nv_cndmask_b32 v{a_}, v{a_}, v{b_}, s[64:65]")
    q.e(f"v_mov_b32 v{b_}, s85\nv_mov_b32 v243, s87\nv_cndmask_b32 v{b_}, v{b_}, v243, s[64:65]\nv_lshrrev_b32 v243, 1, v{c_}\nv_add_u32 v{a_}, v{a_}, v243")
    q.e(f"v_and_b32 v{c_}, 1, v{c_}\nv_lshl_add_u32 v{b_}, v{c_}, 2, v{b_}\nv_lshrrev_b32 v{b_}, 2, v{b_}\nv_mad_u32_u24 v{a_}, v{a_}, 10, v{b_}\nv_lshrrev_b32 v{a_}, 2, v{a_}\nv_lshlrev_b32 v{a_}, 7, v{a_}")
    q.e(f"s_lshr_b32 s86, s{sSL}, 3\ns_lshl_b32 s85, s86, 2\ns_add_u32 s85, s85, s{sW}\ns_mul_i32 s85, s85, 11")
    q.e(f"s_and_b32 s87, s{sSL}, 7\ns_mul_i32 s87, s87, 88\ns_add_u32 s87, s87, s85\ns_mul_i32 s{sBQ}, s87, 5120\ns_add_u32 s{sBQ}, s{sBQ}, {W2S_OFF}")
    q.e(f"s_lshl_b32 s87, s{sMT}, 1\ns_add_u32 s88, s87, s86\ns_mul_i32 s88, s88, 88\ns_add_u32 s88, s88, s85\ns_lshl_b32 s{sAO}, s88, 12")
    q.e(f"s_xor_b32 s86, s86, 1\ns_add_u32 s88, s87, s86\ns_mul_i32 s88, s88, 88\ns_add_u32 s88, s88, s85\ns_lshl_b32 s{sAP}, s88, 12")
    q.e(f"s_and_b32 s85, s{sMT}, {3 if OPT.get('rot', 1) else 0}\ns_mov_b32 s{TAB[0]}, 0\ns_lshl_b32 s85, s85, 13\ns_add_u32 s{TAB[4]}, s85, {4*4096}")
    for i in range(1, 4): q.e(f"s_add_u32 s{TAB[i]}, s{TAB[i-1]}, 4096\ns_and_b32 s{TAB[i]}, s{TAB[i]}, {3*4096}")
    for i in range(5, 11): q.e(f"s_add_u32 s{TAB[i]}, s{TAB[i-1]}, 4096\ns_cmp_eq_u32 s{TAB[i]}, {11*4096}\ns_cselect_b32 s{TAB[i]}, {4*4096}, s{TAB[i]}")
    q.e(f"s_mov_b32 s85, s{sBQ}\ns_lshl_b32 s88, s{sW}, 10")
    return q.items, code(ld), retry2(c, ld, [249], 250, 86)
BH = [4 * f for f in range(28)] + [176, 212, 216] + [240, 244, 248, 252] + [112 + 4 * k for k in range(12)] + [160, 164, 168, 172, 180, 184, 188, 192]
def baddr(f):
    i, ct = divmod(f, 5)
    t = ""
    if ct == 0: t += f"s_lshr_b32 s{sBC}, s{TAB[i]}, 2\ns_add_u32 s{sBC}, s{sBC}, s{TAB[i]}\ns_add_u32 s{sBC}, s{sBC}, s{sBQ}\n"
    else: t += f"s_add_u32 s{sBC}, s{sBC}, 1024\n"
    return t
def bpre(f):
    return code(baddr(f) + f"buffer_load_dwordx4 {A(BH[f],4)}, v{vL16}, {S(S_WS)}, s{sBC} offen sc1", 'bpre')
def bstage(f, lds):
    return code(f"s_add_u32 m0, s88, {lds}\n" + baddr(f) + f"buffer_load_dwordx4 v{vL16}, {S(S_WS)}, s{sBC} offen sc1 lds", 'bst')
def add_bpre(c, first, stage):
    free = lambda f: 41 + f if f < 28 else 46
    f = 0
    order = list(range(35))
    while f < 35:
        if not c.va.place(max(first, free(f)), bpre(f), dma='b'): return f
        f += 1
    return f
def add_stage(c, first, stage):
    c.staged = []
    for k, (lds, e) in enumerate(stage):
        f = 35 + k
        if f >= 55: break
        i, ct = divmod(f, 5)
        t = f"s_add_u32 m0, s88, {lds}\ns_lshr_b32 s{sBD}, s{TAB[i]}, 2\ns_add_u32 s{sBD}, s{sBD}, s{TAB[i]}\ns_add_u32 s{sBD}, s{sBD}, s85\n"
        if ct: t += f"s_add_u32 s{sBD}, s{sBD}, {1024*ct}\n"
        t += f"buffer_load_dwordx4 v{vL16}, {S(S_WS)}, s{sBD} offen sc1 lds"
        if not c.va.place(max(first, e), code(t, 'bst'), dma='l'): break
        c.staged.append((f, lds))
    c.va.b_next = 0
def unstage(c):
    q = Prog()
    q.e(f"v_add_u32 v{vPA}, s88, v{vL16}\nv_add_u32 v{vTW}, 65536, v{vPA}\nv_add_u32 v{vEX}, 131072, v{vPA}")
    q.wait_vm('bst')
    for f, lds in c.staged:
        q.e(f"ds_read_b128 {A(BH[f],4)}, v{(vPA, vTW, vEX)[lds >> 16]} offset:{lds & 65535}")
    return q.items
def brest(c):
    out = []
    done = set(range(c.nb)) | {f for f, _ in c.staged}
    for f in range(55):
        if f in done: continue
        i, ct = divmod(f, 5)
        t = f"s_lshr_b32 s{sBC}, s{TAB[i]}, 2\ns_add_u32 s{sBC}, s{sBC}, s{TAB[i]}\ns_add_u32 s{sBC}, s{sBC}, s{sBQ}\n"
        if ct: t += f"s_add_u32 s{sBC}, s{sBC}, {1024*ct}\n"
        out.append(Group(code(t + f"buffer_load_dwordx4 {A(BH[f],4)}, v{vL16}, {S(S_WS)}, s{sBC} offen sc1", 'bpre')))
    if OPT.get('vlog'): print(c.typ, "direct", c.nb, "staged", len(c.staged), "rest", len(out), file=sys.stderr)
    return out

def k1_X(p, c):
    ts = c.ts; o = c.opt
    sb = lambda j: X_RING + (j % X_NS) * X_SLOT
    def dma(j):
        pre = code(f"s_add_u32 s{sDB}, s{sDB}, 128") if j == 10 else []
        return pre + ffn_dma(sb(j), j)
    JP = 0
    ja, jda, jdb, jpa, jpb = jobs(c)
    ffn_dma_addr(p)
    p.e(f"s_mul_i32 s{sDB}, s{sW}, {16*3072}\ns_mul_i32 s{sT0}, s{sI}, 384\ns_add_u32 s{sDB}, s{sDB}, s{sT0}")
    c.save_id(p)
    p.e("s_waitcnt lgkmcnt(0)")
    srd(p, S_X, P_X, 2048 * 1280); ffn_srd(p)
    first_loads(p, dma(0))
    c.start(p)
    early_loads(p, 'X')
    common_addr(p)
    tr_addrs(p, X_RING)
    code_prefetch(p, 'X')
    p.extend(ja)
    p.extend(x_dma(1)); p.extend(dma(1))
    p.e(NONCE_LD())
    ts(p)
    rT = Ring(vT, 4, X_RING)
    WS_ = o.get('wsync', 7)
    F1 = o.get('f1', 16)
    pre_extra = {('sync', WS_): [Marker('vm', 'pub')], ('post', WS_): flag(f"s{sBT+3}"), ('sync', F1): [Marker('vm', 'h')],
                 ('post', F1): code(f"buffer_store_dword v{vPT}, v{vFZ}, {S(S_WS)}, s{sFL} offen offset:4 sc1", 'flag')}
    JA = o.get('ja', 1); JB = o.get('jb', 1)
    steps, r0, r1 = build_steps(c, 'F' * 20, sb, dma, X_NS, rT, None, pre_extra, {} if o.get('nojob') else {o.get('jblk', 0): [jda, jdb]})
    p.extend(x_read(0))
    p.wait_vm(('slot', 0)); p.e("s_barrier")
    p.extend(flat(r0)); p.extend(flat(r1))
    ts(p)
    cs1, cs1s = cs_produce_ffn(ACC2, f"s_mul_i32 s{sT0}, s{sI}, 3")
    sl, su = stats_consume(c); cl, cu = cs_consume(c, 4, ACC2)
    ks_, kl, kc = k2_setup(c)
    CD = o.get('cd', 9); BF0 = o.get('bf0', 45)
    side = cs1[:10] + [Deadline(5)] + items(stats_job) + nonce_get(c) + stats_store() + cs1[10:] + [Deadline(CD), Gate(CD)] + cs1s + [Deadline(CD + 1)]
    if not JP: side += [Gate(o.get('jga', 10))] + jpa + [Gate(o.get('jgb', 12))] + jpb + [Deadline(o.get('jd', 22))]
    G1_ = o.get('g1', 22)
    ex1 = ([Gate(o.get('tg', 12))] + touch() + [Deadline(o.get('tg', 12) + 2)] if o.get('touch', 0) else []) + [Gate(14)] + ks_ + [Deadline(G1_), Gate(G1_)] + sl + cl[0] + [Deadline(G1_ + 1)]
    c.lights = [(G1_ + 1, cl[1])]
    ex1 += [Gate(o.get('gu', 31))] + su + cu + [Deadline(38), Gate(38)] + ext_read(4) + [Deadline(39)]
    assert BF0 - 7 >= 38
    steps[39]['mf'] += ext_mfma(ACC1, 4, True); steps[39]['rd'] += [[], [], [], []]
    steps[40]['pre'] = ([] if o.get('ts') == 2 else [LazyStamp(ts)]) + steps[40]['pre']
    cs2, cs2s = cs_produce_ffn(CSA, f"s_mul_i32 s{sT0}, s{sI}, 3\ns_add_u32 s{sT0}, s{sT0}, 1")
    cl, cu = cs_consume(c, 4, CSA)
    side += [Gate(40)] + cs2 + [Deadline(45), Gate(45)] + cs2s + ffn_epi(ACC1, 0, 0)
    for tau in range(1, 3): side += ffn_epi(ACC1 + 16 * tau, tau >> 1, (tau & 1) * 512)
    TM0, TMB = c.TM0, c.TMB
    G2L = max(o.get('g2l', 53), BF0 + 1)
    ex2 = [Gate(G2L - 1)] + cl[0] + [Deadline(G2L)]
    c.lights.append((G2L, cl[1]))
    side += ffn_epi(ACC1 + 48, 1, 512) + [Deadline(o.get('e1d', 57)), Gate(61)] + cu + [Deadline(TM0 - 2), Gate(TM0 - 2)] + ext_read(4) + k2_flags(c) + [Deadline(TM0 + 1)]
    for tau in range(3): side += [Gate(TM0 + TMB * (tau + 1))] + code("s_nop 1") + ffn_epi(ACC2 + 16 * tau, 2 + (tau >> 1), (tau & 1) * 512) + [Deadline(TM0 + TMB * (tau + 2))]
    add_stage(c, BF0, [(4096 * k, 42) for k in range(4)] + [(32768 + 4096 * k, 42) for k in range(12)])
    c.nb = add_bpre(c, BF0, None)
    for n_ in (24, 44, 62)[:o.get('nca', 0)]: c.lights.append((n_, code_ahead(c.typ, 214, 214, 0, lines=o.get('cal', 16))))
    for n_, its in c.lights:
        e = c.va.light(n_, its)
        if o.get('vlog'): print('light', n_, e, file=sys.stderr)
    resolve(steps)
    if o.get('noside'): side = nonce_get(c) + [Deadline(9)]
    weave(p, steps, side, base_rate=o.get('xrate', 2), extra=[ex1 + [Gate(BF0 - 7)] + kl + [Deadline(BF0 - 6), Gate(BF0 - 1)] + kc + [Deadline(BF0)] + ex2])
    ts(p)
    p.extend(mk(c, 80) + ffn_epi(ACC2 + 48, 3, 512) + mk(c, 81) + unstage(c))
    ts(p)

def k1_Y(p, c):
    ts = c.ts; o = c.opt
    sb = lambda j: Y_RING + (j % Y_NS) * Y_SLOT
    dma = lambda j: ssm_dma(sb(j), j) if j < 10 else ffn_dma(sb(j), j)
    p.e(f"s_mul_i32 s{sLBS}, s{sW}, 5120")
    p.e(f"s_and_b32 s{sT0}, s{sW}, 1\ns_lshl_b32 s{sT1}, s{sT0}, 2\ns_lshr_b32 s{sT2}, s{sW}, 1\ns_xor_b32 s{sT1}, s{sT1}, s{sT2}")
    p.e(f"s_lshl_b32 s{sT1}, s{sT1}, 4\nv_xor_b32 v{vDS}, s{sT1}, v{vXD}")
    p.e(f"s_mul_i32 s{sT1}, s{sI}, 80\ns_lshl_b32 s{sT0}, s{sT0}, 3\ns_add_u32 s{sT0}, s{sT0}, s{sT1}\ns_mul_i32 s{sBT}, s{sT0}, 1280")
    for t in range(1, 4): p.e(f"s_add_u32 s{sBT+t}, s{sBT}, {t*(20480-1024)}")
    p.e(f"s_add_u32 s{sBT+4}, s{sBT}, {4*20480}")
    c.save_id(p)
    p.e("s_waitcnt lgkmcnt(0)")
    srd(p, S_X, P_X, 2048 * 1280)
    p.e(f"s_cmp_ge_u32 s{sW}, 2\ns_cselect_b32 s{S_B}, s{P_BIM}, s{P_BRE}\ns_cselect_b32 s{S_B+1}, s{P_BIM+1}, s{P_BRE+1}")
    p.e(f"s_mov_b32 s{S_B+2}, {640*1280}\ns_mov_b32 s{S_B+3}, 0x20000")
    first_loads(p, dma(0))
    p.e("s_branch K_Y\n.set SPLIT, 0\nK_Y:")
    c.start(p)
    early_loads(p, 'Y')
    L = ACC2 + 16
    p.e(f"v_lshrrev_b32 v{L}, 5, v0\nv_lshlrev_b32 v{L}, 4, v{L}\nv_bfe_u32 v{L+1}, v0, 1, 4\nv_add_u32 v{L}, v{L}, v{L+1}")
    p.e(f"v_add_u32 v{L}, s{sT1}, v{L}\nv_min_u32 v{L}, 639, v{L}\nv_lshlrev_b32 v{L}, 1, v{L}")
    for k, ptr in enumerate((P_LRE, P_LIM, P_LDT)):
        p.e(f"global_load_ushort v{L+1+k}, v{L}, s[{ptr}:{ptr+1}]", tag='tbl')
    ffn_dma_addr(p); ffn_srd(p)
    p.e(f"s_mul_i32 s{sDB}, s{sW}, {16*3072}\ns_mul_i32 s{sT0}, s{sI}, 384\ns_add_u32 s{sDB}, s{sDB}, s{sT0}\ns_add_u32 s{sDB}, s{sDB}, 256")
    common_addr(p)
    p.e(f"v_and_b32 v{t0}, 1, v{vL}\nv_bfe_u32 v{t1}, v{vL}, 1, 4\nv_lshl_add_u32 v{t1}, v{t0}, 4, v{t1}")
    p.e(f"v_bfe_u32 v{t2}, v{t1}, 1, 3\nv_xor_b32 v{t2}, v{t2}, v{t0}\nv_lshrrev_b32 v{t3}, 5, v{vL}\nv_xor_b32 v{t2}, v{t2}, v{t3}\nv_lshlrev_b32 v{t2}, 4, v{t2}")
    p.e(f"v_and_b32 v{t3}, 7, v{t1}\nv_lshl_add_u32 v{t2}, v{t3}, 7, v{t2}\nv_lshrrev_b32 v{t3}, 3, v{t1}\nv_mul_u32_u24 v{t3}, 5120, v{t3}")
    p.e(f"v_add_u32 v{t2}, v{t2}, v{t3}\nv_add_u32 v{vBR}, {Y_RING}, v{t2}")
    for s in range(1, 4): p.e(f"v_xor_b32 v{vBR+s}, {32*s}, v{vBR}")
    tr_addrs(p, sb(10))
    code_prefetch(p, 'Y')
    vE, vAG, vFL, vSTW, vSTR, vE2 = 252, 253, 254, vXD, vXD + 1, 242
    p.e(f"v_lshlrev_b32 v{vE}, 5, v0\nv_mul_u32_u24 v{vE2}, 48, v0")
    srd(p, S_AG, P_WS, 32 * 1280, AGG_OFF)
    p.e(f"s_mul_i32 s{sT0}, s{sI}, {32*1280}\ns_add_u32 s{S_AG}, s{S_AG}, s{sT0}\ns_addc_u32 s{S_AG+1}, s{S_AG+1}, 0")
    p.e(f"v_subrev_u32 v{t0}, 160, v0\nv_min_u32 v{t0}, v{t0}, v0\nv_lshlrev_b32 v{vFL}, 3, v{t0}\nv_mov_b32 v{t1}, {OOB}\nv_cmp_gt_u32 vcc, 160, v0\nv_cndmask_b32 v255, v{t1}, v{vFL}, vcc")
    ts(p)
    q = Prog()
    lam_consts(q, L, [1, 16, 128], False)
    O = L + 8
    q.e(f"v_and_b32 v{L}, 1, v0\nv_lshlrev_b32 v{L}, 31, v{L}\nv_xor_b32 v{L}, 0x80000000, v{L}")
    for n in range(3): q.e(f"v_xor_b32 v{O+2*n+1}, v{L}, v{O+2*n+1}")
    q.e(f"ds_write_b64 v{vE}, {V(O,2)} offset:{Y_TBL}\nds_write_b128 v{vE}, {V(O+2,4)} offset:{Y_TBL+16}")
    table = q.items
    p.extend(x_dma(1)); p.extend(dma(1))
    p.e(NONCE_LD())
    rT = Ring(vT, 4, sb(10)); rB = Ring(vBR, 4, Y_RING)
    steps, r0, r1 = build_steps(c, 'S' * 10 + 'F' * 10, sb, dma, Y_NS, rT, rB, {}, {})
    p.extend(x_read(0))
    p.wait_vm(('slot', 0)); p.e("s_barrier")
    p.extend(flat(r0)); p.extend(flat(r1))
    ts(p)
    q = Prog()
    q.e(f"s_lshl_b32 s{sT0}, s{sW}, 10")
    for s in range(4): q.e(f"v_add_u32 v{t0+s}, s{sT0}, v{vBR+s}\nds_read_b128 {A(CSF+4*s,4)}, v{t0+s}")
    for s in range(4): q.e(f"ds_read_b128 {A(EXTW+4*s,4)}, v{vBR+s} offset:4096")
    cs_store_addr(q, f"s_add_u32 s{sT0}, s{sI}, 24")
    CB = ACC2 + 48
    for s in range(4): q.e(f"v_mfma_f32_32x32x16_bf16 {V(CB,16)}, {V(vONE,4)}, {A(CSF+4*s,4)}, {'0' if s == 0 else V(CB,16)}")
    for s in range(4): q.e(f"v_mfma_f32_32x32x16_bf16 {V(ACC2,16)}, {V(vONE,4)}, {A(EXTW+4*s,4)}, {'0' if s == 0 else V(ACC2,16)}")
    cs1 = q.items
    cs1s = code(f"v_mov_b32 v{CB+1}, s{sN}\nv_mov_b32 v{ACC2+1}, s{sN}\nbuffer_store_dwordx2 {V(CB,2)}, v{t4}, {S(S_WS)}, s{sU2} offen sc1\ns_lshl_b32 s{sT0}, s{sW}, 8\ns_sub_u32 s{sT0}, s{sU2}, s{sT0}\n"
                f"buffer_store_dwordx2 {V(ACC2,2)}, v{t4}, {S(S_WS)}, s{sT0} offen offset:1024 sc1\n"
                f"s_add_u32 s{sT0}, s{sMT}, 16\ns_mul_i32 s{sT0}, s{sT0}, 1280\n"
                f"buffer_store_dwordx2 {V(vZ,2)}, v255, {S(S_AG)}, s{sT0} offen sc1", 'pub')
    sl, su = stats_consume(c); cl, cu = cs_consume(c, 5, ACC2)
    ks_, kl, kc = k2_setup(c)
    side = cs1[:13] + [Deadline(5)] + items(stats_job) + nonce_get(c) + stats_store() + cs1[13:] + [Deadline(10), Gate(10)] + cs1s + table + [Deadline(18)]
    G1_ = o.get('g1', 22)
    ex1 = ([Gate(o.get('tg', 12))] + touch() + [Deadline(o.get('tg', 12) + 2)] if o.get('touch', 0) else []) + [Gate(14)] + ks_ + [Deadline(G1_), Gate(G1_)] + sl + cl[0] + [Deadline(G1_ + 1)]
    c.lights = [(G1_ + 1, cl[1])]
    side += [Gate(o.get('gu', 31))] + su + cu + [Deadline(38), Gate(38)] + ext_read(5) + [Deadline(39)]
    q = Prog()
    q.e(f"v_and_b32 v{t0}, 31, v{vL}\nv_mul_u32_u24 v{t2}, 48, v{t0}\nv_lshlrev_b32 v{t0}, 5, v{t0}\nv_lshrrev_b32 v{t1}, 5, v0\nv_lshl_add_u32 v{vAG}, v{t1}, 2, v{t2}")
    for t in range(5): q.e(f"ds_read_b64 {V(C0+2*t,2)}, v{t0} offset:{Y_TBL + 1024*t}")
    side += q.items + [Deadline(40)]
    steps[39]['mf'] += ext_mfma(ACC1, 5, False); steps[39]['rd'] += [[], [], [], [], []]
    steps[40]['pre'] = ([] if o.get('ts') == 2 else [LazyStamp(ts)]) + steps[40]['pre']
    AS = o.get('async', 12)
    BF0 = o.get('bf0y', 46)
    cs2, cs2s = cs_produce_ffn(CSA, f"s_mul_i32 s{sT0}, s{sI}, 3\ns_add_u32 s{sT0}, s{sT0}, 2")
    side += [Gate(40)] + cs2[:10]
    LM, E0, GA, G1 = 244, RT + 4, RT + 12, TMP - 2
    q = Prog()
    def scale(tt):
        for t in range(5): q.e(f"v_mul_f32 v{ACC1+16*t+tt}, v{RT+tt}, v{ACC1+16*t+tt}")
    q.extend(cs2[10:])
    q.add(Deadline(45))
    scale(0); scale(1)
    q.extend(cs2s)
    q.e(f"ds_read_b128 {V(LM,4)}, v{vE} offset:{Y_TBL+16}")
    for tt in range(1, 16):
        for t in range(5):
            g = (ACC1 + 16 * t) if tt == 1 else (G1 + 2 * t + (tt & 1))
            q.e(f"v_fma_f32 v{G1+2*t+((tt+1)&1)}, v{C0+2*t}, v{g}, v{ACC1+16*t+tt}")
        if tt < 15: scale(tt + 1)
        for t in range(5):
            g = (ACC1 + 16 * t) if tt == 1 else (G1 + 2 * t + (tt & 1))
            q.e(f"v_fmac_f32_dpp v{G1+2*t+((tt+1)&1)}, v{g}, v{C0+2*t+1} {QP}")
    for t in range(5): q.e(f"ds_write_b32 v{vAG}, v{G1+2*t} offset:{AG_L + 16 + 1536*t}", tag='agw')
    side += q.items + [Deadline(4 * (AS - 1) + 2), Gate(4 * (AS - 1) + 2)]
    q = Prog()
    q.e(f"ds_read_b128 {V(E0,4)}, v{vE2} offset:{AG_L+16}\nds_read_b128 {V(E0+4,4)}, v{vE2} offset:{AG_L+32}")
    q.e(f"s_sub_u32 s{sBT}, 15, s{sMT}\ns_mul_i32 s{sBT}, s{sBT}, 1280")
    fill = code("\n".join(f"s_add_u32 s{S_J0+i}, s{sBT}, {1280 + 3840*i}" for i in range(5)) + f"\ns_add_u32 s{sBT+4}, s{sH}, {6*4096}\ns_nop 0")
    for k in range(1, 8):
        g = E0 if k == 1 else (GA + (k & 1))
        q.e(f"v_fma_f32 v{GA+((k+1)&1)}, v{LM}, v{g}, v{E0+k}"); q.add(fill[k - 1])
        q.e(f"v_fmac_f32_dpp v{GA+((k+1)&1)}, v{g}, v{LM+1} {QP}")
    q.e(f"v_mov_b32 v{GA+1}, s{sN}\nbuffer_store_dwordx2 {V(GA,2)}, v255, {S(S_AG)}, s{sBT} offen sc1", tag='pub')
    side += q.items + [Deadline(4 * (AS - 1) + 4)]
    q = Prog()
    q.e(f"v_and_b32 v{t0}, 1, v{vL}\nv_bfe_u32 v{t1}, v{vL}, 1, 4\nv_lshl_add_u32 v{t1}, v{t0}, 4, v{t1}\nv_bfe_u32 v{t2}, v{vL}, 4, 1\nv_xor_b32 v{t0}, v{t0}, v{t2}")
    q.e(f"v_lshrrev_b32 v{t2}, 5, v{vL}\nv_xor_b32 v{t0}, v{t0}, v{t2}\nv_bfe_u32 v{t2}, v{vL}, 2, 1\nv_lshl_add_u32 v{t0}, v{t0}, 1, v{t2}\nv_lshlrev_b32 v{t0}, 4, v{t0}")
    q.e(f"v_lshl_add_u32 v{t1}, v{t1}, 6, v{t0}\ns_mul_i32 s{sT0}, s{sW}, 10240\ns_add_u32 s{sT0}, s{sT0}, 98304\nv_add_u32 v{vSTW}, s{sT0}, v{t1}\nv_xor_b32 v229, 16, v{vSTW}")
    q.e(f"v_lshrrev_b32 v{t0}, 4, v{vL}\nv_lshlrev_b32 v{t1}, 9, v{t0}\nv_bfe_u32 v{t2}, v{vL}, 2, 2\nv_lshl_add_u32 v{t1}, v{t2}, 6, v{t1}\nv_lshrrev_b32 v{t2}, 1, v{t0}\nv_xor_b32 v{t0}, v{t0}, v{t2}")
    q.e(f"v_and_b32 v{t0}, 1, v{t0}\nv_bfe_u32 v{t2}, v{vL}, 3, 1\nv_lshl_add_u32 v{t0}, v{t0}, 1, v{t2}\nv_bfe_u32 v{t2}, v{vL}, 1, 1\nv_xor_b32 v{t0}, v{t0}, v{t2}\nv_lshl_add_u32 v{t1}, v{t0}, 4, v{t1}")
    q.e(f"v_and_b32 v{t0}, 1, v{vL}\nv_lshl_add_u32 v{t1}, v{t0}, 3, v{t1}\nv_add_u32 v{vSTR}, s{sT0}, v{t1}\nv_xor_b32 v230, 32, v{vSTR}")
    cl, cu = cs_consume(c, 4, CSA)
    TM0, TMB = c.TM0, c.TMB
    G2L = max(o.get('g2l', 53), BF0 + 1)
    ex2 = [Gate(G2L - 1)] + cl[0] + [Deadline(G2L)]
    c.lights.append((G2L, cl[1]))
    side += q.items + [Gate(o.get('g2', 61))] + cu
    LP = [CSA + 2 * i for i in range(8)] + [4, 6, 8, 10, 12, 14, 16]
    ldl = "\n".join(f"buffer_load_dwordx2 {V(LP[i],2)}, v{vFL}, {S(S_AG)}, s{S_J0+i//3} offen offset:{(i%3)*1280} sc1" for i in range(15))
    side += [Deadline(TM0 - 2), Gate(TM0 - 2)] + ext_read(4) + k2_flags(c) + [Deadline(TM0 + TMB)]
    c.lights.append((o.get('g3', TM0), code(ldl)))
    c.lights.append((o.get('gx1', 76), code(c.ldx1)))
    for tau in range(3): side += [Gate(TM0 + TMB * (tau + 1))] + code("s_nop 1") + ffn_epi(ACC2 + 16 * tau, 4 + (tau >> 1), (tau & 1) * 512) + [Deadline(TM0 + TMB * (tau + 2))]
    q = Prog()
    q.extend(retry(c, ldl, tagcheck([r + 1 for r in LP])))
    for i in range(13, -1, -1):
        q.e(f"v_fmac_f32 v{LP[i]}, v{LM+2}, v{LP[i+1]}\nv_fmac_f32_dpp v{LP[i]}, v{LP[i+1]}, v{LM+3} {QP}")
    q.e(f"ds_write_b32 v{vE2}, v{LP[0]} offset:{AG_L+12}", tag='pw')
    for k in range(7):
        g = LP[0] if k == 0 else E0 + k - 1
        q.e(f"v_fmac_f32 v{E0+k}, v{LM}, v{g}\nv_fmac_f32_dpp v{E0+k}, v{g}, v{LM+1} {QP}")
    q.e(f"ds_write_b128 v{vE2}, {V(E0,4)} offset:{AG_L+16}\nds_write_b128 v{vE2}, {V(E0+4,4)} offset:{AG_L+32}", tag='pw')
    gch = q.items
    q = Prog()
    CY = [216, 217, 218, 219, 228]
    for t in range(5): q.e(f"ds_read_b32 v{CY[t]}, v{vAG} offset:{AG_L + 12 + 1536*t}")
    cy = q.items
    def scan(tiles):
        q = Prog()
        for tt in range(16):
            for t in tiles:
                g = CY[t] if tt == 0 else (ACC1 + 16 * t + tt - 1)
                q.e(f"v_fmac_f32 v{ACC1+16*t+tt}, v{C0+2*t}, v{g}")
            for t in tiles:
                g = CY[t] if tt == 0 else (ACC1 + 16 * t + tt - 1)
                q.e(f"v_fmac_f32_dpp v{ACC1+16*t+tt}, v{g}, v{C0+2*t+1} {QP}")
            for k in ([tt // 2 - 1] if (tt >= 2 and tt % 2 == 0) else []) + ([7] if tt == 15 else []):
                for t in tiles: q.e(f"v_cvt_pk_bf16_f32 v{ACC1+16*t+k}, v{ACC1+16*t+2*k}, v{ACC1+16*t+2*k+1}")
            if tt == 10:
                for t in tiles: q.e(f"ds_write_b128 v{vSTW}, {V(ACC1+16*t,4)} offset:{HT2_L + t*2048}")
        return q.items
    def outp(tiles):
        q = Prog()
        for t in tiles:
            R = ACC1 + 16 * t
            q.e(f"ds_write_b128 v229, {V(R+4,4)} offset:{HT2_L + t*2048}")
            for rt in range(2):
                for tq in range(2): q.e(f"ds_read_b64_tr_b16 {V(R+8+4*rt+2*tq,2)}, v{(vSTR, 230)[rt]} offset:{HT2_L + t*2048 + tq*256}")
        for t in tiles:
            R = ACC1 + 16 * t
            q.e(f"s_add_u32 s{sT2}, s85, {t*4096}")
            for rt in range(2): q.e(f"buffer_store_dwordx4 {V(R+8+4*rt,4)}, v{vL16}, {S(S_WS)}, s{sT2} offen offset:{rt*1024} sc1", tag='h')
        return q.items
    add_stage(c, BF0, [(24576 + 4096 * k, 46) for k in range(8)] + [(12288, 46), (159744, 46)] + [(Y_RING + 20480 * k + 16384, 46) for k in range(5)])
    c.nb = add_bpre(c, BF0, None)
    for n_ in (24, 44, 62)[:o.get('nca', 0)]: c.lights.append((n_, code_ahead(c.typ, 214, 214, 0, lines=o.get('cal', 16))))
    for n_, its in c.lights:
        e = c.va.light(n_, its)
        if o.get('vlog'): print('light', n_, e, file=sys.stderr)
    resolve(steps)
    if o.get('noside'): side = nonce_get(c) + [Deadline(9)]
    weave(p, steps, side, base_rate=o.get('yrate', 3),
                 extra=[ex1 + [Gate(BF0 - 7)] + kl + [Deadline(BF0 - 6), Gate(BF0 - 1)] + kc + [Deadline(BF0)] + ex2])
    ts(p)
    p.e(f"s_mov_b32 s85, s{sBT+4}")
    p.extend(unstage(c))
    tail = mk(c, 80) + c.chkx1 + merge(c.aload(0) + c.aload(1), merge(autogroup(gch), ffn_epi(ACC2 + 48, 5, 512), keep=True), 1.0) + mk(c, 81) + [Marker('lgkm', 'pw')] + code("s_barrier")
    tail += cy + merge(brest(c), scan([0, 1])) + mk(c, 82) + merge(outp([0, 1]), scan([2, 3]), 1.0) + mk(c, 83)
    tail += merge(outp([2, 3]), scan([4]) + outp([4])[:5], 1.0) + code(c.ldx) + outp([4])[5:]
    p.extend(tail)
    ts(p)

def mk(c, n): return code(f'.set STEPMARK{c.typ}{n}, 0') if c.opt.get('st0') is not None else []
def merge(a, b, f=1.15, keep=False):
    out = []; k = 0
    for i, it in enumerate(b):
        out.append(it)
        while k < len(a) and k * len(b) <= i * len(a) * f:
            out.append(a[k]); k += 1
    out += a[k:]
    if keep: return out
    return [y for x in out for y in (x.its if isinstance(x, Group) else [x])]

vKW, vKF, vKN = 36, 37, 35
HOMES = [(A, 220), (A, 196), (V, 200), (V, 18)]
def plan_homes(c):
    KF = OPT.get('kf', 4)
    front = [('o', 0), ('o', 1), ('p', 0), ('p', 1), ('o', 2), ('o', 3), ('p', 2), ('p', 3)]
    moved = {4: [], 2: [('o', 2), ('o', 3)], 3: [('o', 3)]}[KF]
    front = [x for x in front if x not in moved]
    c.seq = front + [('p', i) for i in range(4, 11)] + moved + [('o', i) for i in range(4, 11)]
    c.NF = len(front); c.PL = c.NF + 6
    lastB = {i: max(u for u, (k, j) in enumerate(c.seq) if j == i) for i in range(11)}
    pool = [[A, 220, -9], [A, 196, -9], [V, 200, -9], [V, 18, -9]] + [[A, 16 * k, max(lastB[(16 * k) // 20], lastB[(16 * k + 15) // 20]) + 1] for k in range(5)]
    c.home = []; c.earliest = []
    for v in range(22):
        h = min(pool, key=lambda x: x[2])
        c.home.append((h[0], h[1])); c.earliest.append(h[2])
        h[2] = v + 1 + (1 if v in (c.PL - 1, 20) else 0)
def k2_flags(c):
    q = Prog()
    q.e(f"s_and_b32 s87, s{sSL}, 8\ns_lshl_b32 s86, s{sW}, 1\ns_add_u32 s87, s87, s86\ns_lshl_b32 s86, s{sMT}, 4\ns_add_u32 s87, s87, s86")
    q.e(f"s_lshl_b32 s87, s87, 7\ns_add_u32 s87, s87, {HF_OFF}\nv_mov_b32 v248, 0")
    c.ldx = f"buffer_load_dword v249, v248, {S(S_WS)}, s87 offen sc1"
    c.ldy = f"buffer_load_dword v250, v248, {S(S_WS)}, s87 offen offset:128 sc1"
    c.chkx = retry(c, c.ldx, tagcheck([249]))
    c.ldx1 = f"buffer_load_dword v250, v248, {S(S_WS)}, s87 offen offset:4 sc1"
    if c.typ == 'Y': c.chkx1 = retry(c, c.ldx1, tagcheck([250]))
    plan_homes(c)
    def aload(u):
        kind, i = c.seq[u]; R, b = c.home[u]; s_ = sAP if kind == 'p' else sAO
        return code(f"s_add_u32 s{sBD}, s{s_}, s{TAB[i]}\n" + "\n".join(f"buffer_load_dwordx4 {R(b+4*rt,4)}, v{vL16}, {S(S_WS)}, s{sBD} offen offset:{1024*rt} sc1" for rt in range(4)))
    c.aload = aload
    return q.items

def k2(p, c):
    ts = c.ts; o = c.opt
    AP, AO = 40, 120
    seq = c.seq; aload = c.aload; ldy = c.ldy
    isY = c.typ == 'Y'
    mark = lambda n: p.e(f'.set STEPMARK{c.typ}{n}, 0') if o.get('st0') is not None else None
    fl = code(f"buffer_store_dword v{vKN}, v{vKF}, {S(S_WS)}, s{sFL} offen sc1", 'flag')
    p.e(f"v_mov_b32 v{vKN}, v{vPT}\nv_mov_b32 v{vKF}, v{vFZ}")
    q = Prog()
    srd(q, S_W1, P_D, 1280)
    srd(q, S_W3, P_OUT, 2048 * 2560)
    q.e(f"s_and_b32 s{sU0}, s{sSL}, 7\ns_lshr_b32 s{sU1}, s{sSL}, 3\ns_lshl_b32 s{sT1}, s{sMT}, 1\ns_add_u32 s{sU1}, s{sU1}, s{sT1}")
    q.e(f"s_mov_b32 s48, 3277\ns_lshl_b32 s49, s{sU1}, 6\ns_mul_i32 s50, s{sU0}, 160")
    q.e(f"s_mul_i32 s51, s49, 1280\ns_add_u32 s51, s51, s50\ns_lshl_b32 s59, s49, 4\ns_add_u32 s59, s59, {ST_OFF}\ns_lshl_b32 s61, s51, 1")
    q.e(f"s_lshl_b32 s{sT0}, s{sU1}, 3\ns_add_u32 s{sT0}, s{sT0}, s{sU0}\ns_mul_i32 s62, s{sT0}, 28672\ns_add_u32 s62, s62, {PX_OFF}")
    q.e(f"s_xor_b32 s{sT0}, s{sT0}, 8\ns_mul_i32 s63, s{sT0}, 28672\ns_add_u32 s63, s63, {PX_OFF}")
    q.e(f"v_lshlrev_b32 v17, 4, v0")
    q.e(f"v_and_b32 v4, 15, v1\nv_mul_u32_u24 v4, 336, v4\nv_lshrrev_b32 v5, 4, v1\nv_lshl_add_u32 v4, v5, 4, v4\ns_mul_i32 s44, s{sW}, 21504\nv_add_u32 v{vKW}, s44, v4")
    EL, EO = 6, 11
    EX, ED, ES = 216, 226, 236
    for u in range(5):
        q.e(f"v_add_u32 v4, {256*u}, v0\nv_mul_lo_u32 v5, v4, s48\nv_lshrrev_b32 v5, 16, v5\nv_lshlrev_b32 v4, 4, v4\nv_lshl_add_u32 v{EL+u}, v5, 4, v4")
        q.e(f"v_mul_u32_u24 v2, 320, v5\nv_sub_u32 v4, v4, v2\nv_lshrrev_b32 v4, 1, v4\nv_lshl_add_u32 v2, v2, 2, v4\nv_lshlrev_b32 v5, 4, v5")
        q.e(f"buffer_load_dwordx2 {V(EX+2*u,2)}, v2, {S(S_X)}, s51 offen\nbuffer_load_dwordx2 {V(ED+2*u,2)}, v4, {S(S_W1)}, s50 offen\nbuffer_load_dwordx2 {V(ES+2*u,2)}, v5, {S(S_WS)}, s59 offen sc1")
        q.e(f"v_lshlrev_b32 v{EO+u}, 1, v2")
    ksetup = q.items
    if not isY:
        p.extend(ksetup)
        p.extend(mk(c, 82))
        p.wait_vm('h'); p.e("s_barrier"); p.extend(fl)
        p.extend(merge(brest(c), []))
        p.e(c.ldx)
        p.extend(mk(c, 83))
        ts(p)
        p.extend(c.chkx)
        for u in range(3): p.extend(aload(u))
    else:
        p.extend(aload(2))
    ts(p)
    steps = []
    for u, (kind, i) in enumerate(seq):
        R, a = c.home[u]; acc = AP if kind == 'p' else AO
        mf = []
        for rt in range(4):
            for ct in range(5):
                d = acc + 4 * (5 * rt + ct)
                mf += code(f"v_mfma_f32_16x16x32_bf16 {V(d,4)}, {A(BH[5*i+ct],4)}, {R(a+4*rt,4)}, {'0' if i == 0 else V(d,4)}")
        steps.append(dict(pre=[], mf=mf, rd=[[] for _ in mf]))
    NF, PL = c.NF, c.PL
    CU = NF - (o.get('cuy', 2) if isY else o.get('cux', 3))
    C2 = o.get('c2', 2)
    if isY: steps[C2]['pre'] += c.chkx
    steps[CU]['pre'] += retry(c, ldy, tagcheck([250])) + [LazyStamp(ts)]
    steps[CU - 1]['rd'][o.get('lyg', 10)] += code(ldy)
    g = 0; AS_ = o.get('as', 4)
    for v in range(3, 22):
        e = max(c.earliest[v], v - o.get('ad', 6), 0)
        if isY and v >= 4: e = max(e, C2)
        if v >= NF: e = max(e, CU)
        g = max(g, 20 * e)
        its = aload(v)
        st_ = AS_ if g < 20 * (v - 2) else 2
        steps[g // 20]['rd'][g % 20] += [its[0]]
        for k in range(4): steps[g // 20]['rd'][g % 20] += [its[k + 1]]; g += st_
        assert g <= 20 * v, (v, g)
        if o.get('vlog'): print(c.typ, v, c.home[v][1], g, file=sys.stderr)
    def wr(acc, rt):
        return code("\n".join(f"ds_write_b128 v{vKW}, {V(acc+4*(5*rt+ct),4)} offset:{rt*16*336 + ct*64}" for ct in range(5)), 'pw')
    side = []
    if isY:
        side += ksetup + [Deadline(5)]
        steps[o.get('fu', 3)]['rd'][o.get('fg', 4)] += [Marker('vm', 'h')] + code("s_barrier") + fl
    M = f"s{sMASK}"
    q = Prog()
    PT = [r for u in range(5) for r in (EX + 2 * u, EX + 2 * u + 1, ED + 2 * u, ED + 2 * u + 1)]
    Xr = [2, 3, 4, 5]; Dr = [246, 247, 252, 253]; Yr = [254, 255, 16, 34]
    for u in range(5):
        q.e(f"v_lshlrev_b32 v{Xr[0]}, 16, v{EX+2*u}\nv_and_b32 v{Xr[1]}, {M}, v{EX+2*u}\nv_lshlrev_b32 v{Xr[2]}, 16, v{EX+2*u+1}\nv_and_b32 v{Xr[3]}, {M}, v{EX+2*u+1}")
        q.e(f"v_lshlrev_b32 v{Dr[0]}, 16, v{ED+2*u}\nv_and_b32 v{Dr[1]}, {M}, v{ED+2*u}\nv_lshlrev_b32 v{Dr[2]}, 16, v{ED+2*u+1}\nv_and_b32 v{Dr[3]}, {M}, v{ED+2*u+1}")
        q.e(f"v_and_b32 v{ES+2*u+1}, {M}, v{ES+2*u+1}\nv_mul_f32 v{ES+2*u+1}, v{ES+2*u+1}, v{ES+2*u}")
        for i in range(4): q.e(f"v_fma_f32 v{Yr[i]}, v{Xr[i]}, v{ES+2*u}, v{ES+2*u+1}")
        rnd = (f"v_cvt_pk_bf16_f32 v{Yr[0]}, v{Yr[0]}, v{Yr[1]}\nv_cvt_pk_bf16_f32 v{Yr[2]}, v{Yr[2]}, v{Yr[3]}\n"
               f"v_and_b32 v{Yr[1]}, {M}, v{Yr[0]}\nv_lshlrev_b32 v{Yr[0]}, 16, v{Yr[0]}\nv_and_b32 v{Yr[3]}, {M}, v{Yr[2]}\nv_lshlrev_b32 v{Yr[2]}, 16, v{Yr[2]}")
        q.e(rnd)
        for i in range(4): q.e(f"v_mul_f32 v{Yr[i]}, v{Yr[i]}, v{Dr[i]}")
        q.e(rnd)
        for i in range(4): q.e(f"v_add_f32 v{PT[4*u+i]}, v{Xr[i]}, v{Yr[i]}")
    pre = q.items
    def fuse(u, acc):
        a, b = steps[u], steps[u + 1]
        mf = []; rd = []
        for rt in range(4):
            mf += a['mf'][5 * rt:5 * rt + 5] + b['mf'][5 * rt:5 * rt + 5]
        rd = a['rd'] + b['rd']
        for rt in range(3):
            w = wr(acc, rt)
            for k in range(5): rd[10 * (rt + 1) + 3 + k] += [w[k]]
        a['mf'], a['rd'] = mf[:20], rd[:20]; b['mf'], b['rd'] = mf[20:], rd[20:]
    fuse(PL - 1, AP); fuse(20, AO)
    w = wr(AP, 3)
    for k in range(5): steps[PL + 1]['rd'][3 + k] += [w[k]]
    steps[PL + 1]['rd'][12] += [Marker('lgkm', 'pw')] + code("s_barrier")
    q = Prog()
    GR = AP + 48
    gi = lambda f: GR + 4 * (f // 3) + f % 3
    sent = [0]
    def send(upto):
        while sent[0] < 7 and 3 * sent[0] + 2 < upto or (upto == 20 and sent[0] < 7):
            g = sent[0]; sent[0] += 1
            q.e(f"v_mov_b32 v{GR+4*g+3}, s{sN}\nbuffer_store_dwordx4 {V(GR+4*g,4)}, v17, {S(S_WS)}, s63 offen sc1\ns_add_u32 s63, s63, 4096")
    def red(u):
        T = AP + 16 * (u % 3)
        for i in range(4): q.e(f"v_add_f32 v{T+i}, v{T+i}, v{T+4+i}\nv_add_f32 v{T+8+i}, v{T+8+i}, v{T+12+i}")
        for i in range(4): q.e(f"v_add_f32 v{gi(4*u+i)}, v{T+i}, v{T+8+i}")
        send(4 * u + 4)
    for u in range(5):
        T = AP + 16 * (u % 3)
        for w in range(4): q.e(f"ds_read_b128 {V(T+4*w,4)}, v{EL+u} offset:{w*21504}")
        if u >= 2: red(u - 2)
    red(3); red(4)
    RG = AP
    ldp = "\n".join(f"buffer_load_dwordx4 {V(RG+4*g,4)}, v17, {S(S_WS)}, s{70+g} offen sc1" for g in range(7))
    if o.get('cp2', 1):
        L = f"{c.typ}_cp2"
        steps[max(CU, 5)]['rd'][19] += code(f"s_getpc_b64 s[90:91]\n{L}:\nv_lshlrev_b32 v4, 7, v0\nv_min_u32 v4, {c.typ}_end-{L}, v4\nglobal_load_dword v250, v4, s[90:91]")
    side += [Gate(max(CU + 1, 6))] + pre + [Deadline(PL - 1), Gate(PL + 2)] + q.items + [Deadline(PL + 4)] + code("\n".join(f"s_add_u32 s{70+g}, s62, {4096*g}" for g in range(7))) + [Deadline(20)]
    side += [Gate(o.get('lpu', 21))] + code(ldp)
    steps[20]['rd'][0] += code("s_barrier")
    if o.get('st0') is not None:
        for u, st in enumerate(steps): st['pre'] = code(f'.set STEPMARK{c.typ}{84+u}, 0') + st['pre']
    resolve(steps)
    weave(p, steps, side, base_rate=1)
    ts(p); mark(106)
    p.extend(wr(AO, 3))
    p.wait_lgkm('pw')
    p.e("s_barrier")
    mark(107)
    for u in range(5):
        for w in range(4): p.e(f"ds_read_b128 {V(AO+16*u+4*w,4)}, v{EL+u} offset:{w*21504}")
        if u == 2:
            p.extend(retry(c, ldp, tagcheck([RG + 4 * g + 3 for g in range(7)])))
            for f in range(20): p.e(f"v_add_f32 v{PT[f]}, v{PT[f]}, v{RG + 4*(f//3) + f%3}")
    mark(108)
    for u in range(5):
        R = AO + 16 * u
        for i in range(4): p.e(f"v_add_f32 v{R+i}, v{R+i}, v{R+4+i}\nv_add_f32 v{R+8+i}, v{R+8+i}, v{R+12+i}")
        for i in range(4): p.e(f"v_add_f32 v{R+i}, v{R+i}, v{PT[4*u+i]}")
        for i in range(4): p.e(f"v_add_f32 v{R+i}, v{R+i}, v{R+8+i}")
        p.e(f"buffer_store_dwordx4 {V(R,4)}, v{EO+u}, {S(S_W3)}, s61 offen{NT('nto')}{' sc1' if OPT.get('osc') else ''}{' sc0' if OPT.get('osc') == 2 else ''}")
    mark(109)
    if o.get('st0') is not None: p.e("s_waitcnt vmcnt(0)"); mark(110); p.e("s_nop 15\ns_nop 15\ns_nop 15"); mark(111)
    ts(p)

HEADER = open('parallel_sum__ssm_conv_s5__glu_gated_swiglu__prompt.s.ref').read().split('; Override launch')[0]

def profile(txt, typ):
    out = []; k = 2; sites = []; nm = 0
    lo = OPT.get('prof0', 0)
    for l in txt.split('\n'):
        if 'mfma' in l: nm += 1
        if 's_memrealtime' in l and k > 2: k = 100
        hit = ('vmcnt' in l or 's_barrier' in l or 's_cbranch_vccnz' in l or '_slow' in l) and nm >= lo and k < 62
        if OPT['prof'] == 2: hit = ('buffer_' in l or 'global_' in l) and nm >= lo and k < 62
        if hit and '_slow' in l:
            out.append("  s_memtime s[0:1]"); out.append(l); pend = True; sites.append((k, nm, l.strip())); continue
        if OPT['prof'] == 1 and l.endswith('_ret:') and out[-2].startswith("  s_memtime s[0:1]"):
            out.append(l); out.append(f"  s_memtime s[2:3]\n  s_waitcnt lgkmcnt(0)\n  s_sub_u32 s2, s2, s0\n  s_or_b32 s2, s2, 1\n  v_writelane_b32 v251, s2, {k}"); k += 1; continue
        if hit:
            out.append(f"  s_memtime s[0:1]\n{l}\n  s_memtime s[2:3]\n  s_waitcnt lgkmcnt(0)\n  s_sub_u32 s2, s2, s0\n  s_or_b32 s2, s2, 1\n  v_writelane_b32 v251, s2, {k}")
            sites.append((k, nm, l.strip())); k += 1
        else: out.append(l)
    print(typ, "sites:", [(b, ('D' if ' lds' in c else 'S' if 'store' in c else 'L') if 'buffer' in c or 'global' in c else c.replace('s_waitcnt ', '').replace('s_cbranch_', '')) for a, b, c in sites], file=sys.stderr)
    return '\n'.join(out)

def build(opt):
    OPT.update(opt)
    ph = Prog(); setup(ph, opt)
    ph.e(f"s_bitcmp1_b32 s{sSL}, 0\ns_cbranch_scc0 K_X")
    body = ph.finalize() + "\n"
    sx = [it for it in ph.items if isinstance(it, I) and it.tag == 'cpf' and it.kind == 'vm']
    parts = {}
    for typ, fn in (('X', k1_X), ('Y', k1_Y)):
        c = Ctx(typ, opt)
        p = Prog()
        if typ == 'X': p.e("K_X:")
        p.add(Marker('assume_vm', sx))
        def save_id(p):
            if opt.get('ts'): p.e('v_mov_b32 v251, 0')
            p.e("s_memrealtime s[2:3]")
        def start(p, c=c):
            c.ts(p, True); c.ts(p)
            if opt.get('prof') or opt.get('st0') is not None: c.ts.on = False
        c.save_id = save_id; c.start = start
        fn(p, c)
        k2(p, c)
        if opt.get('prof') or opt.get('st0') is not None: c.ts.on = True; c.ts.n = 63
        if c.ts.on:
            p.wait_all(); c.ts(p, True); c.ts.dump(p)
        p.e(f"{typ}_end:\ns_endpgm")
        st = {}
        txt = p.finalize(st)
        if opt.get('prof'): txt = profile(txt, typ)
        if opt.get('st0') is not None:
            out = []
            for l in txt.split('\n'):
                if 'STEPMARK' in l:
                    k = int(l.split(',')[0].split(typ)[-1]) - opt['st0']
                    if 0 <= k <= 60:
                        a = 2 * (k & 1)
                        if k > 0: out.append(f"  v_writelane_b32 v251, s{2-a}, {k}")
                        if k < 60: out.append(f"  s_memtime s[{a}:{a+1}]")
                else: out.append(l)
            txt = '\n'.join(out)
        import re as _re
        slow = [q for q in c.slow if _re.search(r'(\w+)_slow:', q).group(1) + '_ret:' in txt]
        if opt.get('nodma'): txt = '\n'.join(l for l in txt.split('\n') if not (' lds' in l and 'buffer_load' in l))
        if opt.get('nomfma'): txt = '\n'.join(l for l in txt.split('\n') if not ('32x32x16' in l))
        if opt.get('nowait'): txt = '\n'.join(l for l in txt.split('\n') if not ('vmcnt' in l and 'vmcnt(0)' not in l))
        if opt.get('nolds'): txt = '\n'.join(l for l in txt.split('\n') if not ('ds_read' in l))
        parts[typ] = txt + "\n" + "\n".join(slow) + "\n"
        print(typ, st, file=sys.stderr)
    y0, y1 = parts['Y'].split("  .set SPLIT, 0\n")
    body += y0 + parts['X'] + y1
    body += "K_end:\n  s_endpgm\n"
    k = NAME + "_kernel"
    if opt.get('plain'): body = body.replace(' sc1', '')
    if opt.get('plainst'): body = '\n'.join(l.replace(' sc1', '') if 'buffer_store' in l else l for l in body.split('\n'))
    s = HEADER + "; @launch grid=(256,1,1) block=(256,1,1) lds=163840\n"
    s += f'.amdgcn_target "amdgcn-amd-amdhsa--gfx950"\n.text\n.globl {k}\n.p2align 8\n.type {k},@function\n{k}:\n{body}'
    s += '.section .rodata,"a"\n' + kd(k, 512, 102, 256)
    return s

if __name__ == '__main__':
    opt = {}
    for a in sys.argv[2:]:
        k, v = a.split('='); opt[k] = int(v)
    open(sys.argv[1], 'w').write(build(opt))
```

```python
import sys, struct
from asmgen import Prog, I, Marker
from sched import weave, Gate, Deadline, Group, autogroup
from common import kd

NAME = "parallel_sum__ssm_conv_s5__glu_gated_swiglu__prompt"
H_OFF = 0
W2S_OFF = 32 * 88 * 4096
ST_OFF = W2S_OFF + 8 * 88 * 5120
AGG_OFF = ST_OFF + 32768
CS_OFF = AGG_OFF + 8 * 32 * 1280
HF_OFF = CS_OFF + 32 * 12800
WF_OFF = HF_OFF + 256 * 128
PX_OFF = WF_OFF + 128 * 128
WS_USED = PX_OFF + 256 * 7 * 4096
TS_OFF = 24 << 20
LOG2E, NLOG2E, INV2PI, OOB = 0x3fb8aa3b, 0xbfb8aa3b, 0x3e22f983, 0x7f000000
def f2u(x): return struct.unpack('<I', struct.pack('<f', x))[0]

S_X, S_W1, S_W3, S_B, S_WS, S_J0, S_J1, S_DBG, S_AG = 4, 8, 12, 16, 20, 24, 28, 32, 36
sMT, sSL, sW, sI, sT0, sT1, sT2, sT3 = 40, 41, 42, 43, 44, 45, 46, 47
sXR = 48
sMASK, sFL, sLB, sD0, sD1, sH, sLBS, sBT = 52, 53, 54, 55, 56, 57, 58, 59
P_X, P_LRE, P_LIM, P_BRE, P_BIM, P_CRE, P_CIM, P_LDT, P_D, P_BX, P_W1, P_W3, P_W2, P_OUT, P_DBG, P_WS = [64 + 2 * i for i in range(16)]
sKX, sKB, sDB, sROT, sU0, sU1 = 96, 97, 98, 99, 100, 101
sSP = 89
sU2, sU3 = 82, 83
sN = 92

OPT = {}
def NT(k): return ' nt' if OPT.get(k) else ''
def S(d): return f"s[{d}:{d+3}]"
def V(a, n=1): return f"v[{a}:{a+n-1}]" if n > 1 else f"v{a}"
def A(a, n=1): return f"a[{a}:{a+n-1}]" if n > 1 else f"a{a}"
QP = "quad_perm:[1,0,3,2] row_mask:0xf bank_mask:0xf"
def items(f, *a):
    q = Prog(); f(q, *a); return q.items
def code(text, tag=None):
    q = Prog(); q.e(text, tag); return q.items

def srd(p, d, ptr, nrec, add=0):
    if add == 0: p.e(f"s_mov_b32 s{d}, s{ptr}\ns_mov_b32 s{d+1}, s{ptr+1}")
    elif add > 0: p.e(f"s_add_u32 s{d}, s{ptr}, {add}\ns_addc_u32 s{d+1}, s{ptr+1}, 0")
    else: p.e(f"s_sub_u32 s{d}, s{ptr}, {-add}\ns_subb_u32 s{d+1}, s{ptr+1}, 0")
    p.e(f"s_mov_b32 s{d+2}, {nrec}\ns_mov_b32 s{d+3}, 0x20000")

class Stamper:
    def __init__(self, on): self.on = on; self.n = 0
    def it(self, real=False):
        if not self.on: return []
        if OPT.get('rt') == 1: real = True
        if OPT.get('rt') == 2:
            n = self.n; self.n += 2
            return code(f"s_memrealtime s[0:1]\ns_memtime s[2:3]\ns_waitcnt lgkmcnt(0)\nv_writelane_b32 v251, s0, {n}\nv_writelane_b32 v251, s2, {n+1}")
        n = self.n; self.n += 1
        return code(f"{'s_memrealtime' if real else 's_memtime'} s[0:1]\ns_waitcnt lgkmcnt(0)\nv_writelane_b32 v251, s0, {n}")
    def __call__(self, p, real=False): p.extend(self.it(real))
    def dump(self, p):
        if not self.on: return
        p.wait_all()
        p.e(f"s_lshr_b32 s93, s{sMT}, 2\ns_lshr_b32 s3, s{sSL}, 3\ns_lshl_b32 s3, s3, 2\ns_add_u32 s93, s93, s3\ns_and_b32 s3, s{sMT}, 3\ns_lshl_b32 s3, s3, 3\ns_add_u32 s93, s93, s3\ns_and_b32 s3, s{sSL}, 7\ns_lshl_b32 s3, s3, 5\ns_add_u32 s93, s93, s3")
        if OPT.get('dbgout'):
            p.e(f"s_lshl_b32 s3, s93, 2\ns_add_u32 s3, s3, s{sW}\ns_cmp_eq_u32 s3, {4*OPT['dbgout']}\ns_cselect_b32 s3, 4, {OOB}")
            p.e(f"v_readlane_b32 s0, v251, 0\nv_subrev_u32 v251, s0, v251\nv_lshlrev_b32 v3, 2, v1\nv_add_u32 v3, s3, v3\nbuffer_store_dword v251, v3, {S(S_DBG)}, 0 offen")
            return
        srd(p, 4, P_WS, TS_OFF + (1 << 20))
        p.e(f"v_lshlrev_b32 v3, 2, v1\ns_lshl_b32 s3, s93, 2\ns_add_u32 s3, s3, s{sW}\ns_lshl_b32 s3, s3, 8\ns_add_u32 s3, s3, {TS_OFF}")
        p.e("buffer_store_dword v251, v3, s[4:7], s3 offen")

class LazyStamp:
    def __init__(self, ts): self.ts = ts
def resolve(steps):
    for st in steps:
        out = []
        for it in st['pre']:
            out += it.ts.it() if isinstance(it, LazyStamp) else [it]
        st['pre'] = out
vL = 1
vXD, vXC = 2, 4
vSR = 6
vD, vDS, vDC = 10, 12, 13
vBR, vT, vTW, vH = 14, 18, 22, 23
vONE, vEX = 24, 28
vTMP = 32
ACC1, ACC2, CSA, TMP = 40, 120, 184, 200
vFZ, vPA, vPV, vPT, vC1, vC2, vL16, vZ = 208, 209, 39, 211, 212, 213, 38, 210
RT = 216
C0 = 232
XF, BF, EXTW, CSF = 0, 160, 220, 240
t0, t1, t2, t3, t4, t5 = range(vTMP, vTMP + 6)

XS = 0
X_JOB, X_RING, X_NS, X_SLOT = 49152, 81920, 5, 16384
Y_TBL, Y_RING, Y_NS, Y_SLOT = 49152, 57344, 5, 20480
EXT_L = XS + 16384
AG_L = XS
HT2_L = 0

class Ctx:
    def __init__(self, typ, opt):
        self.typ = typ; self.opt = opt; self.slow = []; self.npoll = 0
        self.ts = Stamper(opt.get('ts'))

def bf16r(p, v): p.e(f"v_cvt_pk_bf16_f32 v{v}, v{v}, v{v}\nv_and_b32 v{v}, s{sMASK}, v{v}")

def retry(c, loads, check):
    k = c.npoll; c.npoll += 1
    L = f"{c.typ}_poll{k}"
    q = Prog()
    q.e(f"{L}_slow:\ns_mov_b32 s{sSP}, 0x40000\n{L}_lp:\ns_sleep {OPT.get('sleep', 1)}")
    q.e(loads + "\ns_waitcnt vmcnt(0)\n" + check)
    q.e(f"s_cbranch_vccz {L}_ret\ns_sub_u32 s{sSP}, s{sSP}, 1\ns_cmp_lg_u32 s{sSP}, 0\ns_cbranch_scc1 {L}_lp\ns_branch {L}_ret")
    c.slow.append(q.finalize())
    if OPT.get('nospin') and 'v211' not in check: return code(check + f"\n{L}_ret:")
    return code(check + f"\ns_cbranch_vccnz {L}_slow\n{L}_ret:")
def retry2(c, loads, regs, tmp, sp):
    k = c.npoll; c.npoll += 1
    L = f"{c.typ}_poll{k}"
    chk = f"v_xor_b32 v{tmp}, s{sN}, v{regs[0]}\n" + "".join(f"v_bitop3_b32 v{tmp}, v{tmp}, v{r}, s{sN} bitop3:0xf6\n" for r in regs[1:]) + f"v_cmp_ne_u32 s[{sp}:{sp+1}], 0, v{tmp}\ns_cmp_lg_u64 s[{sp}:{sp+1}], 0"
    q = Prog()
    q.e(f"{L}_slow:\ns_mov_b32 s{sSP}, 0x40000\n{L}_lp:\ns_sleep {OPT.get('sleep', 1)}")
    q.e(loads + "\ns_waitcnt vmcnt(0)\n" + chk)
    q.e(f"s_cbranch_scc0 {L}_ret\ns_sub_u32 s{sSP}, s{sSP}, 1\ns_cmp_lg_u32 s{sSP}, 0\ns_cbranch_scc1 {L}_lp\ns_branch {L}_ret")
    c.slow.append(q.finalize())
    if OPT.get('nospin'): return code(chk + f"\n{L}_ret:")
    return code(chk + f"\ns_cbranch_scc1 {L}_slow\n{L}_ret:")
def tagcheck(regs):
    t = f"v_xor_b32 v{vPV}, s{sN}, v{regs[0]}\n"
    for r in regs[1:]: t += f"v_bitop3_b32 v{vPV}, v{vPV}, v{r}, s{sN} bitop3:0xf6\n"
    return t + f"v_cmp_ne_u32 vcc, 0, v{vPV}"
NONCE_LD = lambda: f"buffer_load_dword v{vPT}, v{vZ}, {S(S_DBG)}, 0 offen sc1"
def nonce_get(c):
    return retry(c, NONCE_LD(), f"v_cmp_eq_u32 vcc, 0, v{vPT}") + code(f"v_readfirstlane_b32 s{sN}, v{vPT}")
def flag(soff):
    return code(f"buffer_store_dword v{vPT}, v{vFZ}, {S(S_WS)}, {soff} offen sc1", 'flag')

def nextkb(s, unit):
    return f"s_add_u32 s{s}, s{s}, {unit}\ns_cmp_eq_u32 s{s}, {10*unit}\ns_cselect_b32 s{s}, 0, s{s}"

def setup(p, opt):
    p.e("s_cmp_ge_u32 s2, 256\ns_cbranch_scc1 K_end")
    p.e("s_load_dwordx16 s[64:79], s[0:1], 0\ns_load_dwordx16 s[80:95], s[0:1], 64")
    p.e(f"v_and_b32 v{vL}, 63, v0\nv_lshrrev_b32 v{t0}, 6, v0\nv_lshlrev_b32 v{vL16}, 4, v{vL}")
    p.e(f"v_readfirstlane_b32 s{sW}, v{t0}")
    p.e(f"s_and_b32 s{sMT}, s2, 3\ns_lshl_b32 s{sMT}, s{sMT}, 2\ns_bfe_u32 s{sT0}, s2, 0x20003\ns_add_u32 s{sMT}, s{sMT}, s{sT0}")
    p.e(f"s_and_b32 s{sSL}, s2, 4\ns_lshl_b32 s{sSL}, s{sSL}, 1\ns_lshr_b32 s{sT0}, s2, 5\ns_add_u32 s{sSL}, s{sSL}, s{sT0}\ns_lshr_b32 s{sI}, s{sSL}, 1")
    if opt.get('cpf', 1):
        p.e(f"s_getpc_b64 s[4:5]\nK_pc:\ns_mov_b32 s6, K_X-K_pc\ns_bitcmp1_b32 s{sSL}, 0\ns_cselect_b32 s6, K_Y-K_pc, s6\ns_and_b32 s7, s{sI}, 3\ns_lshl_b32 s7, s7, 2\ns_and_b32 s8, s{sMT}, 3\ns_add_u32 s7, s7, s8")
        p.e(f"s_lshl_b32 s7, s7, 11\ns_add_u32 s6, s6, s7\nv_lshrrev_b32 v{t5}, 4, v0\nv_lshlrev_b32 v{t5}, 7, v{t5}\nv_add_u32 v{t5}, s6, v{t5}\nv_min_u32 v{t5}, K_end-K_pc, v{t5}\nglobal_load_dword v250, v{t5}, s[4:5]", tag='cpf')
    p.e(f"s_mul_i32 s{sROT}, s{sMT}, {opt.get('rm', 3)}\ns_mul_i32 s{sT0}, s{sT0}, {opt.get('rs', 1)}\ns_add_u32 s{sROT}, s{sROT}, s{sT0}\ns_mul_i32 s{sT1}, s{sROT}, 205\ns_lshr_b32 s{sT1}, s{sT1}, 11\ns_mul_i32 s{sT1}, s{sT1}, 10\ns_sub_u32 s{sROT}, s{sROT}, s{sT1}")
    p.e(f"s_lshl_b32 s{sKX}, s{sROT}, 7\ns_mov_b32 s{sKB}, s{sROT}\ns_mov_b32 s{sMASK}, 0xffff0000")
    p.e(f"s_lshl_b32 s{sFL}, s{sMT}, 4\ns_add_u32 s{sFL}, s{sFL}, s{sSL}\ns_lshl_b32 s{sFL}, s{sFL}, 7\ns_add_u32 s{sFL}, s{sFL}, {HF_OFF}")
    p.e(f"s_lshl_b32 s{sT0}, s{sMT}, 7\ns_lshl_b32 s{sT1}, s{sW}, 5\ns_add_u32 s{sT1}, s{sT0}, s{sT1}\ns_mul_i32 s{sXR}, s{sT1}, 1280")
    for i in range(1, 4): p.e(f"s_add_u32 s{sXR+i}, s{sXR}, {(8*1280-1024)*i}")
    p.e(f"s_lshl_b32 s{sLB}, s{sW}, 12")
    p.e(f"s_lshl_b32 s{sT1}, s{sSL}, 3\ns_add_u32 s{sT0}, s{sT0}, s{sT1}\ns_lshl_b32 s{sT1}, s{sW}, 1\ns_add_u32 s{sT0}, s{sT0}, s{sT1}")
    p.e(f"s_mul_i32 s{sU0}, s{sT0}, 1280\ns_lshl_b32 s{sU1}, s{sT0}, 4\ns_add_u32 s{sU1}, s{sU1}, {ST_OFF}")
    p.e(f"v_lshrrev_b32 v{t0}, 3, v{vL}\nv_and_b32 v{t1}, 7, v{vL}")
    p.e(f"v_lshrrev_b32 v{t2}, 5, v{vL}\nv_mul_u32_u24 v{t2}, 1280, v{t2}\nv_and_b32 v{t3}, 31, v{vL}\nv_lshl_add_u32 v{t4}, v{t3}, 3, v{t2}")
    p.e(f"v_lshrrev_b32 v{t2}, 4, v{vL}\nv_xor_b32 v{t2}, v{t1}, v{t2}\nv_lshlrev_b32 v{t2}, 4, v{t2}\nv_mul_u32_u24 v{t3}, 1280, v{t0}")
    p.e(f"v_add_u32 v{vXD}, v{t2}, v{t3}\nv_xor_b32 v{vXD+1}, 64, v{vXD}")
    p.e(f"v_mov_b32 v{vZ}, 0\nv_mov_b32 v{t2}, {OOB}\nv_cmp_eq_u32 vcc, 0, v0\nv_cndmask_b32 v{vFZ}, v{t2}, v0, vcc")
    p.e(f"s_cmp_eq_u32 s2, 0\ns_cselect_b32 s{sT0}, 0, {OOB}\nv_or_b32 v{vPA}, s{sT0}, v{vFZ}")

def first_loads(p, b0):
    x0 = x_dma(0)
    k1 = [i for i, it in enumerate(x0) if isinstance(it, I) and it.kind == 'vm']
    k2 = [i for i, it in enumerate(b0) if isinstance(it, I) and it.kind == 'vm']
    m0x = [it for it in x0 if isinstance(it, I) and ('x', 'm0') in it.defs][0]
    m0b = [it for it in b0 if isinstance(it, I) and ('x', 'm0') in it.defs][0]
    p.extend(x0[:k1[0] + 1]); p.extend(b0[:k2[1] + 1])
    p.add(I(m0x.text)); p.extend(x0[k1[0] + 1:])
    p.add(I(m0b.text)); p.extend(b0[k2[1] + 1:])
    srd(p, S_DBG, P_DBG, 256)
    p.e(f"s_or_b32 s{sT3}, s2, 1\nv_mov_b32 v{vPT}, s{sT3}\nbuffer_store_dword v{vPT}, v{vPA}, {S(S_DBG)}, 0 offen sc1")
    if OPT.get('stouch'):
        G = OPT['stouch']
        n = (WS_USED >> G) // 64 + 1
        p.e(f"s_and_b32 s28, s{sSL}, 7\ns_lshl_b32 s28, s28, 1\ns_and_b32 s29, s{sMT}, 1\ns_add_u32 s28, s28, s29\ns_lshl_b32 s28, s28, 2\ns_add_u32 s28, s28, s{sW}\ns_lshl_b32 s28, s28, {G}")
        for i in range(n):
            p.e(f"s_min_u32 s29, s28, {WS_USED - 4 & ~3}\ns_load_dword s30, s[{P_WS}:{P_WS+1}], s29\ns_min_u32 s29, s28, {2048*2560 - 4}\ns_load_dword s31, s[{P_OUT}:{P_OUT+1}], s29\ns_add_u32 s28, s28, {64 << G}")

def early_loads(p, typ):
    for i in range(5):
        p.e(f"buffer_load_dwordx2 {V(RT+2*i,2)}, v{t4}, {S(S_X)}, s{sU0} offen offset:{256*i}", tag='sx')
def code_prefetch(p, typ):
    if OPT.get('cpf', 1) == 2:
        p.e(f"s_getpc_b64 s[24:25]\n{typ}_pc:\nv_lshlrev_b32 v{t5}, 7, v0\nv_min_u32 v{t5}, {typ}_end-{typ}_pc, v{t5}\nglobal_load_dword v250, v{t5}, s[24:25]")

CPN = [0]
def code_ahead(typ, dst, tmp, sp, skip=2048, lines=32):
    L = f"{typ}_ca{CPN[0]}"; CPN[0] += 1
    return [Group(code(f"s_getpc_b64 s[{sp}:{sp+1}]\n{L}:\nv_lshrrev_b32 v{tmp}, {6 - (lines.bit_length() - 1)}, v0\nv_lshlrev_b32 v{tmp}, 7, v{tmp}\nv_add_u32 v{tmp}, {skip}, v{tmp}\n"
                f"v_min_u32 v{tmp}, {typ}_end-{L}, v{tmp}\nglobal_load_dword v{dst}, v{tmp}, s[{sp}:{sp+1}]"))]

def x_dma(j):
    q = Prog()
    q.wait_lgkm(('xr', j - 3))
    q.e(f"v_add_u32 v{vXC}, s{sKX}, v{vXD}\nv_add_u32 v{vXC+1}, s{sKX}, v{vXD+1}\ns_add_u32 m0, s{sLB}, {XS + (j % 3) * 16384}")
    for i in range(4):
        q.e(f"buffer_load_dwordx4 v{vXC+(i&1)}, {S(S_X)}, s{sXR+i} offen offset:{1024*i}{NT('ntx')} lds", tag=('x', j))
    q.e(nextkb(sKX, 128))
    return q.items
def x_read(j):
    q = Prog(); q.wait_vm(('x', j))
    for s in range(4): q.e(f"ds_read_b128 {A(XF+16*j+4*s,4)}, v{vSR+s} offset:{(j % 3) * 16384}", ('xr', j))
    return q.items

def ffn_dma(base, j):
    q = Prog()
    q.e(f"s_mul_i32 s{sD0}, s{sKB}, {64*3072}\ns_add_u32 s{sD0}, s{sD0}, s{sDB}\ns_add_u32 s{sD1}, s{sD0}, {8*3072-2048}\ns_add_u32 m0, s{sLB}, {base}")
    q.e(f"buffer_load_dwordx4 v{vD}, {S(S_W1)}, s{sD0} offen{NT('ntw')} lds", tag=('slot', j))
    q.e(f"buffer_load_dwordx4 v{vD+1}, {S(S_W3)}, s{sD0} offen offset:1024{NT('ntw')} lds", tag=('slot', j))
    q.e(f"buffer_load_dwordx4 v{vD}, {S(S_W1)}, s{sD1} offen offset:2048{NT('ntw')} lds", tag=('slot', j))
    q.e(f"buffer_load_dwordx4 v{vD+1}, {S(S_W3)}, s{sD1} offen offset:3072{NT('ntw')} lds", tag=('slot', j))
    q.e(nextkb(sKB, 1))
    return q.items
def ssm_dma(base, j):
    q = Prog()
    q.e(f"s_lshl_b32 s{sD0}, s{sKB}, 7\nv_add_u32 v{vDC}, s{sD0}, v{vDS}\ns_add_u32 m0, s{sLBS}, {base}")
    for t in range(4):
        q.e(f"buffer_load_dwordx4 v{vDC}, {S(S_B)}, s{sBT+t} offen offset:{1024*t}{NT('ntw')} lds", tag=('slot', j))
    q.e(f"s_add_u32 m0, s{sLBS}, {base + 4096}")
    q.e(f"buffer_load_dwordx4 v{vDC}, {S(S_B)}, s{sBT+4} offen{NT('ntw')} lds", tag=('slot', j))
    q.e(nextkb(sKB, 1))
    return q.items

def ffn_dma_addr(p):
    p.e(f"v_bfe_u32 v{t2}, v{vL}, 4, 1\nv_lshlrev_b32 v{t2}, 1, v{t2}\nv_xor_b32 v{t2}, v{t1}, v{t2}\nv_lshlrev_b32 v{t2}, 4, v{t2}")
    p.e(f"v_mul_u32_u24 v{t3}, 3072, v{t0}\nv_add_u32 v{vD}, v{t2}, v{t3}\nv_xor_b32 v{vD+1}, 64, v{vD}")
def ffn_srd(p):
    srd(p, S_W1, P_W1, 640 * 3072)
    srd(p, S_W3, P_W3, 640 * 3072 + 1024, -1024)

def common_addr(p):
    p.e(f"v_bfe_u32 v{t2}, v{vL}, 2, 1\nv_lshlrev_b32 v{t2}, 4, v{t2}\nv_bfe_u32 v{t3}, v{vL}, 3, 2\nv_lshl_add_u32 v{t2}, v{t3}, 2, v{t2}")
    p.e(f"v_and_b32 v{t3}, 3, v{vL}\nv_add_u32 v{t2}, v{t2}, v{t3}\nv_lshlrev_b32 v{vC1}, 4, v{t2}")
    p.e(f"v_bfe_u32 v{t3}, v{t2}, 1, 3\nv_lshrrev_b32 v{vSR}, 5, v{vL}\nv_xor_b32 v{t3}, v{t3}, v{vSR}\nv_lshlrev_b32 v{t3}, 4, v{t3}")
    p.e(f"v_lshl_add_u32 v{t3}, v{t2}, 7, v{t3}\nv_add_u32 v{vSR}, s{sLB}, v{t3}")
    for s in range(1, 4): p.e(f"v_xor_b32 v{vSR+s}, {32*s}, v{vSR}")
    p.e(f"v_bfe_u32 v{t2}, v{vL}, 2, 1\nv_lshlrev_b32 v{t2}, 10, v{t2}\nv_bfe_u32 v{t3}, v{vL}, 3, 3\nv_lshl_add_u32 v{t2}, v{t3}, 6, v{t2}")
    p.e(f"v_and_b32 v{t3}, 3, v{vL}\nv_lshl_add_u32 v{vH}, v{t3}, 4, v{t2}")
    for i in range(4): p.e(f"v_mov_b32 v{vONE+i}, 0x3f803f80")
    srd(p, S_WS, P_WS, WS_USED)
    p.e(f"s_lshl_b32 s{sT0}, s{sMT}, 1\ns_lshr_b32 s{sT1}, s{sW}, 1\ns_add_u32 s{sT0}, s{sT0}, s{sT1}\ns_mul_i32 s{sT0}, s{sT0}, 88")
    p.e(f"s_mul_i32 s{sT1}, s{sI}, 11\ns_add_u32 s{sT0}, s{sT0}, s{sT1}\ns_lshl_b32 s{sH}, s{sT0}, 12")
    p.e(f"s_and_b32 s{sT1}, s{sW}, 1\ns_lshl_b32 s{sT1}, s{sT1}, 11\ns_add_u32 s{sH}, s{sH}, s{sT1}")

def tr_addrs(p, base):
    p.e(f"v_bfe_u32 v{t0}, v{vL}, 4, 1\nv_lshrrev_b32 v{t1}, 5, v{vL}\nv_lshlrev_b32 v{t1}, 11, v{t1}\nv_lshl_add_u32 v{t1}, v{t0}, 10, v{t1}")
    p.e(f"v_bfe_u32 v{t2}, v{vL}, 2, 2\nv_lshl_add_u32 v{t1}, v{t2}, 7, v{t1}\nv_and_b32 v{t3}, 3, v{vL}\nv_lshl_add_u32 v{t1}, v{t3}, 3, v{t1}")
    p.e(f"v_bfe_u32 v{t2}, v{vL}, 3, 1\nv_lshl_add_u32 v{t2}, v{t0}, 1, v{t2}\nv_lshl_add_u32 v{t1}, v{t2}, 5, v{t1}")
    p.e(f"v_add_u32 v{vT}, {base}, v{t1}")
    for tau in range(1, 4): p.e(f"v_xor_b32 v{vT+tau}, {32*tau}, v{vT}")

def touch():
    q = Prog()
    q.e(f"v_lshlrev_b32 v{vPA}, 19, v{vL}\nv_min_u32 v{vPA}, {WS_USED - 4}, v{vPA}\nbuffer_load_dword v250, v{vPA}, {S(S_WS)}, 0 offen")
    q.e(f"v_min_u32 v{vPA}, {2048*2560 - 4}, v{vPA}\nglobal_load_dword v250, v{vPA}, s[{P_OUT}:{P_OUT+1}]")
    return q.items

def stats_job(p):
    R = RT; aQ, aS = TMP, TMP + 1
    p.e(f"v_mov_b32 v{aS}, 0\nv_mov_b32 v{aQ}, 0")
    for d in range(10):
        p.e(f"v_dot2c_f32_bf16 v{aS}, v{vONE}, v{R+d}\nv_dot2c_f32_bf16 v{aQ}, v{R+d}, v{R+d}")
    p.e("s_nop 2")
    for perm in ("quad_perm:[1,0,3,2] row_mask:0xf", "quad_perm:[2,3,0,1] row_mask:0xf", "row_half_mirror row_mask:0xf", "row_mirror row_mask:0xf", "row_bcast:15 row_mask:0xa"):
        for r in (aS, aQ): p.e(f"v_add_f32_dpp v{r}, v{r}, v{r} {perm} bank_mask:0xf")
    inv = f2u(1.0 / 640)
    p.e(f"v_mul_f32 v{aS}, {inv}, v{aS}\nv_mul_f32 v{aQ}, {inv}, v{aQ}\nv_fma_f32 v{aQ}, -v{aS}, v{aS}, v{aQ}\nv_max_f32 v{aQ}, 0, v{aQ}")
    p.e(f"v_sub_f32 v{aS}, 0, v{aS}\nv_cvt_pk_bf16_f32 v{aS}, v{aS}, v{aS}")
    bf16r(p, aQ)
    p.e(f"v_add_f32 v{aQ}, {f2u(1e-5)}, v{aQ}")
    bf16r(p, aQ)
    p.e(f"v_sqrt_f32 v{aQ}, v{aQ}")
    bf16r(p, aQ)
    p.e(f"v_rcp_f32 v{aQ}, v{aQ}")
    p.e(f"v_and_b32 v{R}, 31, v{vL}\nv_cmp_eq_u32 vcc, 16, v{R}\nv_lshrrev_b32 v{R}, 1, v{vL}\nv_and_b32 v{R}, 16, v{R}\nv_mov_b32 v{R+1}, {OOB}\nv_cndmask_b32 v{R}, v{R+1}, v{R}, vcc")
def stats_store():
    return code(f"v_mov_b32 v{TMP+2}, s{sN}\nv_mov_b32 v{TMP+3}, s{sN}\nbuffer_store_dwordx4 {V(TMP,4)}, v{RT}, {S(S_WS)}, s{sU1} offen sc1", 'pub')

def cs_store_addr(q, gidexpr):
    q.e(gidexpr)
    q.e(f"s_mul_i32 s{sU3}, s{sT0}, 12800\ns_add_u32 s{sU3}, s{sU3}, {CS_OFF}\ns_mul_i32 s{sT0}, s{sROT}, 1280\ns_add_u32 s{sU2}, s{sU3}, s{sT0}")
    q.e(f"s_lshl_b32 s{sT0}, s{sW}, 8\ns_add_u32 s{sU2}, s{sU2}, s{sT0}\ns_add_u32 s{sU3}, s{sU3}, s{sT0}")
    q.e(f"s_cmp_lt_u32 s{sMT}, 10\ns_cselect_b32 s{sT0}, 32, 0\nv_cmp_gt_u32 vcc, s{sT0}, v{vL}\nv_lshlrev_b32 v{t4}, 3, v{vL}\nv_mov_b32 v{t5}, {OOB}\nv_cndmask_b32 v{t4}, v{t5}, v{t4}, vcc")

def cs_produce_ffn(acc, gidexpr):
    q = Prog()
    q.e(f"s_lshl_b32 s{sT0}, s{sW}, 5\nv_xor_b32 v{vTW}, s{sT0}, v{vT}")
    for s in range(4):
        for t in range(2):
            q.e(f"ds_read_b64_tr_b16 {A(CSF+4*s+2*t,2)}, v{vTW} offset:{s*4096 + t*512}")
    cs_store_addr(q, gidexpr)
    for s in range(4):
        q.e(f"v_mfma_f32_32x32x16_bf16 {V(acc,16)}, {V(vONE,4)}, {A(CSF+4*s,4)}, {'0' if s == 0 else V(acc,16)}")
    st = code(f"v_mov_b32 v{acc+1}, s{sN}\nbuffer_store_dwordx2 {V(acc,2)}, v{t4}, {S(S_WS)}, s{sU2} offen sc1", 'pub')
    return q.items, st

def cs_consume(c, ntile, R0):
    q = Prog()
    q.e(f"v_lshrrev_b32 v{vPA}, 5, v{vL}\nv_mul_u32_u24 v{vPA}, 6400, v{vPA}\nv_and_b32 v{t5}, 31, v{vL}\nv_lshl_add_u32 v{vPA}, v{t5}, 3, v{vPA}")
    q.e(f"s_add_u32 s{sU2}, s{sU3}, 3840")
    rounds = [(R0, 0)]
    ld = ""
    for i in range(5): ld += f"buffer_load_dwordx2 {V(R0+2*i,2)}, v{vPA}, {S(S_WS)}, s{sU3 if i < 3 else sU2} offen offset:{1280*(i%3)} sc1\n"
    if ntile == 5:
        q.e(f"s_lshl_b32 s86, s{sW}, 8\ns_sub_u32 s86, 1024, s86\nv_add_u32 v{vTW}, s86, v{vPA}")
        for i in range(5): ld += f"buffer_load_dwordx2 {V(R0+10+2*i,2)}, v{vTW}, {S(S_WS)}, s{sU3 if i < 3 else sU2} offen offset:{1280*(i%3)} sc1\n"
        rounds.append((R0 + 10, 1))
    a = (q.items, code(ld))
    q = Prog()
    q.extend(retry(c, ld, tagcheck([R0 + 1 + 2 * i for i in range(5 * len(rounds))])))
    q.e(f"v_cmp_gt_u32 vcc, 32, v{vL}")
    for (R, which) in rounds:
        q.e(f"v_add_f32 v{R}, v{R}, v{R+2}\nv_add_f32 v{R+4}, v{R+4}, v{R+6}\nv_add_f32 v{R}, v{R}, v{R+8}\nv_add_f32 v{R}, v{R}, v{R+4}")
        q.e(f"v_mov_b32 v{R+1}, v{R}\nv_mov_b32 v{R+6}, 0\nv_mov_b32 v{R+7}, 0\nv_permlane32_swap_b32 v{R}, v{R+1}\nv_add_f32 v{R}, v{R}, v{R+1}\nv_cndmask_b32 v{R}, 0, v{R}, vcc")
        q.e(f"v_cvt_pk_bf16_f32 v{R+1}, v{R}, v{R}\nv_and_b32 v{R+1}, s{sMASK}, v{R+1}\nv_sub_f32 v{R}, v{R}, v{R+1}")
        q.e(f"v_cvt_pk_bf16_f32 v{R+4}, v{R+1}, v{R}\nv_and_b32 v{R+2}, s{sMASK}, v{R+4}\nv_sub_f32 v{R}, v{R}, v{R+2}")
        q.e(f"v_cvt_pk_bf16_f32 v{R+5}, v{R}, 0")
        if which == 0:
            q.e(f"s_lshr_b32 s86, s{sLB}, 2\nv_add_u32 v{t5}, s86, v{vL16}")
            q.e(f"ds_write_b128 v{t5}, {V(R+4,4)} offset:{EXT_L}", tag='ext')
        else:
            q.e(f"ds_write_b128 v{vL16}, {V(R+4,4)} offset:{EXT_L + 4096}", tag='ext')
    return a, q.items
def ext_read(ntile):
    return code("\n".join(f"ds_read_b128 {A(EXTW+4*t,4)}, v{vL16} offset:{EXT_L + 1024*t}" for t in range(ntile)))

def stats_consume(c):
    q = Prog()
    q.e(f"s_lshl_b32 s87, s{sMT}, 11\ns_lshl_b32 s86, s{sW}, 9\ns_add_u32 s87, s87, s86\ns_add_u32 s{sU0}, s87, {ST_OFF}")
    ld = f"buffer_load_dwordx4 {V(vEX,4)}, v{vC1}, {S(S_WS)}, s{sU0} offen sc1"
    q.e(ld)
    a = q.items
    q = Prog()
    q.extend(retry(c, ld, tagcheck([vEX + 2, vEX + 3])))
    if c.typ == 'Y':
        q.e(f"s_lshl_b32 s{sT0}, s{sW}, 7\ns_add_u32 s{sT0}, s{sT0}, 159744")
        q.e(f"v_lshrrev_b32 v{t3}, 2, v{vC1}\nv_add_u32 v{t3}, s{sT0}, v{t3}\nds_write_b32 v{t3}, v{vEX}")
        q.e(f"v_lshrrev_b32 v{t2}, 5, v{vL}\nv_lshlrev_b32 v{t2}, 6, v{t2}\nv_add_u32 v{t2}, s{sT0}, v{t2}")
        for i in range(4): q.e(f"ds_read_b128 {V(RT+4*i,4)}, v{t2} offset:{16*i}")
    q.e(f"v_mul_f32 v{vC1}, {NLOG2E}, v{vEX}\nv_rcp_f32 v{vC2}, v{vEX}\nv_mov_b32 v{vEX}, v{vEX+1}\nv_mov_b32 v{vEX+2}, v{vEX+1}\nv_mov_b32 v{vEX+3}, v{vEX+1}")
    q.e(f"v_mul_f32 v{vC2}, v{vC2}, v{vC2}")
    return a, q.items

def ffn_epi(acc, pos, imm):
    p = Prog(); tmp = TMP
    for r in range(8): p.e(f"v_mul_f32 v{tmp+r}, v{vC1}, v{acc+r}")
    for r in range(8): p.e(f"v_exp_f32 v{tmp+r}, v{tmp+r}\nv_mul_f32 v{acc+r}, v{acc+r}, v{acc+8+r}")
    for r in range(8): p.e(f"v_fma_f32 v{tmp+r}, v{tmp+r}, v{vC2}, v{vC2}")
    for r in range(8): p.e(f"v_rcp_f32 v{tmp+r}, v{tmp+r}")
    p.e(f"s_add_u32 s{sT2}, s{sH}, {pos*4096}")
    for r in range(8): p.e(f"v_mul_f32 v{acc+r}, v{acc+r}, v{tmp+r}")
    for r in range(4): p.e(f"v_cvt_pk_bf16_f32 v{acc+8+r}, v{acc+2*r}, v{acc+2*r+1}")
    p.e(f"buffer_store_dwordx4 {V(acc+8,4)}, v{vH}, {S(S_WS)}, s{sT2} offen offset:{imm} sc1", tag='h')
    if OPT.get('dual'): p.e(f"buffer_store_dwordx4 {V(acc+8,4)}, v{vH}, {S(S_WS)}, s{sT2} offen offset:{imm}", tag='h')
    return p.items

class Ring:
    def __init__(self, reg, n, cur): self.reg = reg; self.n = n; self.cur = cur
    def off(self, base, span, out):
        if base < self.cur or base + span - self.cur > 65536:
            out += code("\n".join(f"v_add_u32 v{self.reg+i}, {(base - self.cur) & 0xffffffff}, v{self.reg+i}" for i in range(self.n)))
            self.cur = base
        return base - self.cur

def build_steps(c, kinds, slot_base, dma, NS, rT, rB, pre_extra, late):
    steps = []
    TMB = OPT.get('tmb', 3); TM0 = 80 - 4 * TMB
    reads = []
    for n in range(80):
        j, s = divmod(n, 4); buf = BF + (n % 3) * 20 if kinds[j] == 'S' else (160, 180, 196)[n % 3]
        base = slot_base(j)
        rd = []
        if kinds[j] == 'F':
            acc = ACC1 if (j < 10) else ACC2
            mf = []
            for e in range(4):
                tau, jj, ss = e, j, s
                if n >= TM0: tau, jj, ss = (n - TM0) // TMB, 20 - TMB + (n - TM0) % TMB, e
                o = []
                off = rT.off(slot_base(jj), 16384, o)
                o += code("\n".join(f"ds_read_b64_tr_b16 {A(buf+4*e+2*t,2)}, v{vT+tau} offset:{off + ss*4096 + t*512}" for t in range(2)), ('rd', n))
                rd.append(o)
                cc = "0" if n % 40 == 0 else V(acc + 16 * tau, 16)
                mf += code(f"v_mfma_f32_32x32x16_bf16 {V(acc+16*tau,16)}, {A(buf+4*e,4)}, {A(XF+4*((4*jj+ss)%40),4)}, {cc}")
        else:
            mf = []
            for t in range(5):
                o = []
                off = rB.off(base, 20480, o)
                o += code(f"ds_read_b128 {A(buf+4*t,4)}, v{vBR+s} offset:{off + 1024*t}", ('rd', n))
                rd.append(o)
                cc = "0" if n == 0 else V(ACC1 + 16 * t, 16)
                mf += code(f"v_mfma_f32_32x32x16_bf16 {V(ACC1+16*t,16)}, {A(XF+4*n,4)}, {A(buf+4*t,4)}, {cc}")
        reads.append(rd)
        steps.append(dict(pre=[], mf=mf, rd=[[] for _ in mf]))
    for n in range(80):
        st = steps[n]; j, s = divmod(n, 4)
        if c.opt.get('st0') is not None: st['pre'] += code(f'.set STEPMARK{c.typ}{n}, 0')
        if c.opt.get('ts') == 2 and s == 0: st['pre'] += [LazyStamp(c.ts)]
        st['pre'] += [Marker('lgkm', ('rd', n))]
        syncs = [j + 1] if (s == 2 and j + 1 <= 20 - TMB) else []
        if n == TM0 - 1: syncs = list(range(21 - TMB, 20))
        if syncs:
            sy = [x for k in syncs for x in pre_extra.get(('sync', k), []) + [Marker('vm', ('slot', k))]] + [Marker('lgkm', ['ext', 'agw'])] + ([] if OPT.get('nobar') else code("s_barrier")) + [x for k in syncs for x in pre_extra.get(('post', k), [])]
            st['rd'][0] += sy
        if n + 2 < 80:
            src = reads[n + 2]; g = len(st['mf'])
            st['rd'][min(len(src), g) - 1] += [Marker('lgkm', ('rd', n + 1))]
            for i, o in enumerate(src): st['rd'][min(i, g - 1)] += o
        if s == 1 and j + 1 < 10:
            st['rd'][0] += x_read(j + 1)
    for tau in range(4):
        st = steps[TM0 + TMB * tau + TMB - 1]
        st['mf'] += code(f"v_mfma_f32_32x32x16_bf16 {V(ACC2+16*tau,16)}, {A(EXTW+4*tau,4)}, {V(vEX,4)}, {V(ACC2+16*tau,16)}"); st['rd'] += [[]]
    c.TM0, c.TMB = TM0, TMB
    va = VmAlloc(steps); c.va = va
    LR, LX = OPT.get('leadr', 7), OPT.get('leadx', 5)
    E1 = OPT.get('e1', 1)
    va.place(0, x_dma(2), stride=E1); va.place(0, dma(2), stride=E1)
    for its in late.get(0, []): va.place(0, its, stride=E1)
    va.place(1, x_dma(3), by=9 - LX); va.place(0, dma(3), by=10 - LR)
    va.place(3, x_dma(4), by=13 - LX); va.place(3, dma(4), by=14 - LR)
    for j in range(1, 20):
        if j - 1 + NS < 20: va.place(4 * j + 2, dma(j - 1 + NS), by=4 * (j - 2 + NS) + 2 - LR)
        if j + 4 < 10: va.place(4 * j + 3, x_dma(j + 4), by=4 * (j + 3) + 1 - LX)
        for its in late.get(j, []): va.place(4 * j + 3, its)
    if OPT.get('vlog'): print(va.log, file=sys.stderr)
    return steps, reads[0], reads[1]

class VmAlloc:
    def __init__(self, steps):
        self.steps = steps; self.used = set(); self.dma_next = 0; self.log = []; self.b_next = 0; self.iv = []
        self.gaps = [(n, g) for n, st in enumerate(steps) for g in range(len(st['mf']))]
        self.first = {}
        for i, (n, g) in enumerate(self.gaps): self.first.setdefault(n, i)
    def light(self, n, its):
        i = self.first[n]
        for it in its:
            while i in self.used: i += 1
            a, b = self.gaps[i]
            self.steps[a]['rd'][b] += it.its if isinstance(it, Group) else [it]; self.used.add(i)
        return self.gaps[i]
    def place(self, n, its, dma=True, stride=None, by=None):
        stride = stride or OPT.get('vstride', 2)
        groups, cur = [], []
        for it in its:
            cur.append(it)
            if isinstance(it, I) and it.kind == 'vm': groups.append(cur); cur = []
        if cur: groups[-1] += cur
        i0 = self.first[n]
        if dma == 'b': i0 = max(i0, self.b_next)
        elif dma is True: i0 = max(i0, self.dma_next)
        inside = (lambda i: any(a < i < b for a, b in self.iv)) if dma == 'l' else (lambda i: False)
        if dma == 'l': i0 = max(i0, self.b_next)
        for st_ in range(stride, 0, -1):
            i = i0; pos = []; used = set(self.used)
            for grp in groups:
                while inside(i) or any((i + d) in used for d in range(-st_ + 1, st_)): i += 1
                pos.append(i); used.add(i)
            if by is None or i < self.first[max(by, 0)] or st_ == 1: break
        if i >= len(self.gaps): return False
        for grp, k in zip(groups, pos):
            a, b = self.gaps[k]
            self.steps[a]['rd'][b] += grp; self.used.add(k)
        self.log.append((n, by, self.gaps[pos[0]], self.gaps[pos[-1]]))
        if dma in ('b', 'l'): self.b_next = i + 1
        elif dma: self.dma_next = i + 1; self.iv.append((pos[0], pos[-1]))
        return True

def flat(rd): return [x for o in rd for x in o]

sJW, sJ0, sJ1, sJ2, sJ3, sJ4 = 16, 17, 18, 19, sLBS, sBT
def lam_consts(q, L, pows, coef):
    lr, li, ld, a2, rev, O, u = L + 1, L + 2, L + 3, L + 4, L + 5, L + 8, L + 16
    q.e(f"v_lshlrev_b32 v{lr}, 16, v{lr}\nv_lshlrev_b32 v{li}, 16, v{li}\nv_lshlrev_b32 v{ld}, 16, v{ld}")
    q.e(f"v_mul_f32 v{ld}, {LOG2E}, v{ld}\nv_exp_f32 v{ld}, v{ld}")
    bf16r(q, ld)
    q.e(f"v_mul_f32 v{a2}, v{ld}, v{lr}\nv_mul_f32 v{rev}, v{ld}, v{li}\nv_mul_f32 v{a2}, {LOG2E}, v{a2}\nv_mul_f32 v{rev}, {INV2PI}, v{rev}")
    for n, k in enumerate(pows):
        if k != 1: q.e(f"v_mul_f32 v{u}, {f2u(float(k))}, v{a2}\nv_mul_f32 v{u+1}, {f2u(float(k))}, v{rev}\nv_exp_f32 v{u}, v{u}\nv_fract_f32 v{u+1}, v{u+1}")
        else: q.e(f"v_exp_f32 v{u}, v{a2}\nv_fract_f32 v{u+1}, v{rev}")
        q.e(f"v_cos_f32 v{u+2}, v{u+1}\nv_sin_f32 v{u+3}, v{u+1}\nv_mul_f32 v{O+2*n}, v{u}, v{u+2}\nv_mul_f32 v{O+2*n+1}, v{u}, v{u+3}")
    if coef:
        q.e(f"v_add_f32 v{u}, -1.0, v{O}\nv_mul_f32 v{u+1}, v{lr}, v{lr}\nv_fmac_f32 v{u+1}, v{li}, v{li}\nv_rcp_f32 v{u+1}, v{u+1}")
        q.e(f"v_mul_f32 v{u+2}, v{u}, v{lr}\nv_fmac_f32 v{u+2}, v{O+1}, v{li}\nv_mul_f32 v{u+3}, v{O+1}, v{lr}\nv_fma_f32 v{u+3}, -v{u}, v{li}, v{u+3}")
        q.e(f"v_add_f32 v{u+1}, v{u+1}, v{u+1}\nv_mul_f32 v{L+4}, v{u+2}, v{u+1}\nv_mul_f32 v{L+5}, v{u+3}, v{u+1}")

def jobs(c):
    JL = ACC2 + 32
    q = Prog()
    q.e(f"s_lshl_b32 s{sT0}, s{sI}, 4\ns_add_u32 s{sT0}, s{sT0}, s{sMT}\ns_lshl_b32 s{sT0}, s{sT0}, 2\ns_add_u32 s{sJW}, s{sT0}, s{sW}\ns_lshl_b32 s{sJ3}, s{sW}, 13")
    q.e(f"s_min_u32 s{sT0}, s{sJW}, 479\ns_mul_i32 s{sJ1}, s{sT0}, 6554\ns_lshr_b32 s{sJ1}, s{sJ1}, 16\ns_mul_i32 s{sT2}, s{sJ1}, 10\ns_sub_u32 s{sJ0}, s{sT0}, s{sT2}")
    srd(q, S_J0, P_W2, 1536 * 1280)
    q.e(f"v_lshrrev_b32 v{t0}, 3, v{vL}\nv_and_b32 v{t1}, 7, v{vL}\nv_lshrrev_b32 v{t2}, 4, v{vL}\nv_lshlrev_b32 v{t2}, 1, v{t2}\nv_xor_b32 v{t2}, v{t1}, v{t2}\nv_lshlrev_b32 v{t2}, 4, v{t2}")
    q.e(f"v_mul_u32_u24 v{t3}, 1280, v{t0}\nv_add_u32 v{vBR}, v{t2}, v{t3}")
    q.e(f"s_mul_i32 s{sBT+1}, s{sJ1}, {32*1280}\ns_lshl_b32 s{sT3}, s{sJ0}, 7\ns_add_u32 s{sBT+1}, s{sBT+1}, s{sT3}")
    q.e(f"s_min_u32 s{sT0}, s{sJW}, 399\ns_mul_i32 s{sJ2}, s{sT0}, 6554\ns_lshr_b32 s{sJ2}, s{sJ2}, 16\ns_mul_i32 s{sT2}, s{sJ2}, 10\ns_sub_u32 s{sJW}, s{sT0}, s{sT2}")
    srd(q, S_J1, P_CRE, 640 * 1280)
    srd(q, S_AG, P_CIM, 640 * 1280 + 2048, -2048)
    q.e(f"s_mul_i32 s{sBT+2}, s{sJ2}, {16*1280}\ns_lshl_b32 s{sT3}, s{sJW}, 7\ns_add_u32 s{sBT+2}, s{sBT+2}, s{sT3}\ns_add_u32 s{sBT+3}, s{sBT+2}, {8*1280-1024}")
    q.e(f"v_lshlrev_b32 v{JL}, 1, v{vL}\nv_add_u32 v{JL}, s{sT3}, v{JL}")
    for k, ptr in enumerate((P_LRE, P_LIM, P_LDT)):
        q.e(f"global_load_ushort v{JL+1+k}, v{JL}, s[{ptr}:{ptr+1}]", tag='tbl')
    a = q.items
    q = Prog()
    q.e(f"s_add_u32 m0, s{sJ3}, {X_JOB}")
    for i in range(4):
        q.e(f"buffer_load_dwordx4 v{vBR}, {S(S_J0)}, s{sBT+1} offen offset:{1024*i}{NT('ntj')} lds", tag='jobA')
        if i < 3: q.e(f"s_add_u32 s{sBT+1}, s{sBT+1}, {8*1280-1024}")
    da = q.items
    q = Prog()
    q.e(f"s_add_u32 m0, s{sJ3}, {X_JOB + 4096}")
    for i, (sr, so) in enumerate(((S_J1, sBT + 2), (S_J1, sBT + 3), (S_AG, sBT + 2), (S_AG, sBT + 3))):
        q.e(f"buffer_load_dwordx4 v{vXD+(i&1)}, {S(sr)}, s{so} offen offset:{1024*i}{NT('ntj')} lds", tag='jobB')
    db = q.items
    q = Prog()
    q.e(f"v_bfe_u32 v{t0}, v{vL}, 2, 3\nv_lshrrev_b32 v{t1}, 5, v{vL}\nv_lshl_add_u32 v{t1}, v{t1}, 4, v{t0}")
    q.e(f"v_lshrrev_b32 v{t0}, 1, v{t0}\nv_lshlrev_b32 v{t0}, 5, v{t0}\nv_lshl_add_u32 v{t0}, v{t1}, 7, v{t0}\nv_and_b32 v{t1}, 3, v{vL}")
    q.e(f"v_lshl_add_u32 v{t0}, v{t1}, 3, v{t0}\nv_add_u32 v{vBR}, s{sJ3}, v{t0}")
    for tau in range(1, 4): q.e(f"v_xor_b32 v{vBR+tau}, {32*tau}, v{vBR}")
    q.e(f"s_mul_i32 s{sT0}, s{sJ1}, 43\ns_lshr_b32 s{sT0}, s{sT0}, 8\ns_mul_i32 s{sT0}, s{sT0}, 5\ns_add_u32 s{sT0}, s{sT0}, s{sJ1}\ns_mul_i32 s{sJ1}, s{sT0}, 5")
    q.wait_vm('jobA')
    for tau in range(4):
        for t in range(2): q.e(f"ds_read_b64_tr_b16 {V(CSA+4*tau+2*t,2)}, v{vBR+tau} offset:{X_JOB + 1024*t}")
    for tau in range(4):
        q.e(f"s_lshl_b32 s{sT0}, s{sJ0}, 2\ns_add_u32 s{sT0}, s{sT0}, {tau}\ns_mul_i32 s{sT1}, s{sT0}, 52\ns_lshr_b32 s{sT1}, s{sT1}, 8")
        q.e(f"s_mul_i32 s{sT2}, s{sT1}, 435\ns_add_u32 s{sT0}, s{sT0}, s{sT2}\ns_add_u32 s{sT0}, s{sT0}, s{sJ1}")
        q.e(f"s_lshl_b32 s{sT0}, s{sT0}, 10\ns_add_u32 s{sT0}, s{sT0}, {W2S_OFF}")
        q.e(f"buffer_store_dwordx4 {V(CSA+4*tau,4)}, v{vL16}, {S(S_WS)}, s{sT0} offen sc1", tag='pub')
    pa = q.items
    q = Prog()
    lam_consts(q, JL, [1], True)
    q.e(f"v_sub_f32 v{JL+5}, 0, v{JL+5}\nv_sub_f32 v{JL+6}, 0, v{JL+4}\nv_lshlrev_b32 v{t0}, 2, v{vL}\nv_add_u32 v{t0}, s{sJ3}, v{t0}")
    for k in range(3): q.e(f"ds_write_b32 v{t0}, v{JL+4+k} offset:{X_JOB + 256*k}")
    q.e(f"v_bfe_u32 v{t0}, v{vL}, 1, 3\nv_bfe_u32 v{t1}, v{vL}, 4, 1\nv_xor_b32 v{t0}, v{t0}, v{t1}\nv_lshlrev_b32 v{t0}, 4, v{t0}")
    q.e(f"v_and_b32 v{t2}, 15, v{vL}\nv_lshl_add_u32 v{t0}, v{t2}, 7, v{t0}\nv_add_u32 v{vBR}, s{sJ3}, v{t0}")
    for s in range(1, 4): q.e(f"v_xor_b32 v{vBR+s}, {32*s}, v{vBR}")
    q.e(f"v_lshrrev_b32 v{t2}, 5, v{vL}\nv_lshlrev_b32 v{t2}, 8, v{t2}\nv_lshl_add_u32 v{t2}, v{t1}, 5, v{t2}\nv_add_u32 v{vTW}, s{sJ3}, v{t2}")
    q.e(f"s_mul_i32 s{sT1}, s{sJ2}, 52\ns_lshr_b32 s{sT1}, s{sT1}, 8\ns_mul_i32 s{sT1}, s{sT1}, 435\ns_add_u32 s{sJ2}, s{sT1}, s{sJ2}")
    q.wait_vm('jobB')
    CR, CI, AL, BE, U = ACC2 + 16, ACC2 + 20, ACC2 + 32, ACC2 + 40, ACC2 + 24
    def rd(s):
        o = 24 * (s & 1) if False else 0
        q.e(f"ds_read_b128 {V(CR,4)}, v{vBR+s} offset:{X_JOB + 4096}\nds_read_b128 {V(CI,4)}, v{vBR+s} offset:{X_JOB + 4096 + 2048}")
        for h in range(2):
            q.e(f"ds_read_b128 {V(AL+4*h,4)}, v{vTW} offset:{X_JOB + 64*s + 16*h}\nds_read_b128 {V(BE+4*h,4)}, v{vTW} offset:{X_JOB + 256 + 64*s + 16*h}")
    for s in range(4):
        rd(s)
        q.e(f"s_lshl_b32 s{sT0}, s{sJW}, 2\ns_add_u32 s{sT0}, s{sT0}, {s}\ns_mul_i32 s{sT1}, s{sT0}, 52\ns_lshr_b32 s{sT1}, s{sT1}, 8\ns_mul_i32 s{sT1}, s{sT1}, 6")
        q.e(f"s_add_u32 s{sT0}, s{sT0}, s{sT1}\ns_mul_i32 s{sT0}, s{sT0}, 5\ns_add_u32 s{sT0}, s{sT0}, s{sJ2}\ns_lshl_b32 s{sT0}, s{sT0}, 10\ns_add_u32 s{sT0}, s{sT0}, {W2S_OFF + 30*1024}")
        for d in range(4):
            q.e(f"v_lshlrev_b32 v{U}, 16, v{CR+d}\nv_and_b32 v{U+1}, s{sMASK}, v{CR+d}\nv_lshlrev_b32 v{U+2}, 16, v{CI+d}\nv_and_b32 v{U+3}, s{sMASK}, v{CI+d}")
            q.e(f"v_mul_f32 v{U}, v{AL+2*d}, v{U}\nv_mul_f32 v{U+1}, v{AL+2*d+1}, v{U+1}\nv_fmac_f32 v{U}, v{BE+2*d}, v{U+2}\nv_fmac_f32 v{U+1}, v{BE+2*d+1}, v{U+3}")
            q.e(f"v_cvt_pk_bf16_f32 v{CSA+4*s+d}, v{U}, v{U+1}")
        q.e(f"buffer_store_dwordx4 {V(CSA+4*s,4)}, v{vL16}, {S(S_WS)}, s{sT0} offen sc1", tag='pub')
    q.e(f"s_lshl_b32 s{sT0}, s{sMT}, 7\ns_lshl_b32 s{sT1}, s{sI}, 11\ns_add_u32 s{sT0}, s{sT0}, s{sT1}\ns_add_u32 s{sBT+3}, s{sT0}, {WF_OFF}")
    return a, da, db, pa, q.items

def ext_mfma(acc, n, ffn):
    if ffn: return code("\n".join(f"v_mfma_f32_32x32x16_bf16 {V(acc+16*t,16)}, {A(EXTW+4*t,4)}, {V(vEX,4)}, {V(acc+16*t,16)}" for t in range(n)))
    return code("\n".join(f"v_mfma_f32_32x32x16_bf16 {V(acc+16*t,16)}, {V(vEX,4)}, {A(EXTW+4*t,4)}, {V(acc+16*t,16)}" for t in range(n)))

sBQ, sAO, sAP, sBC, sBD = 66, 67, 68, 64, 65
TAB = [70, 71, 72, 73, 74, 75, 76, 77, 78, 79, 84]
def k2_setup(c):
    q = Prog()
    ld = f"buffer_load_dword v249, v248, {S(S_WS)}, s69 offen sc1"
    a_, b_, c_ = 248, 249, 250
    q.e(f"s_lshr_b32 s86, s{sSL}, 3\ns_lshl_b32 s85, s86, 2\ns_add_u32 s85, s85, s{sW}\ns_and_b32 s87, s{sSL}, 7\ns_mul_i32 s87, s87, 5\ns_mov_b32 s69, {WF_OFF}")
    q.e(f"s_mul_i32 s88, s85, 6\ns_mul_i32 s85, s85, 5\ns_sub_u32 s84, s87, 6")
    q.e(f"v_min_u32 v{c_}, 21, v{vL}\nv_cmp_gt_u32 s[64:65], 12, v{c_}\nv_mov_b32 v{a_}, s84\nv_mov_b32 v{b_}, s88\nv_cndmask_b32 v{a_}, v{a_}, v{b_}, s[64:65]")
    q.e(f"v_mov_b32 v{b_}, s85\nv_mov_b32 v243, s87\nv_cndmask_b32 v{b_}, v{b_}, v243, s[64:65]\nv_lshrrev_b32 v243, 1, v{c_}\nv_add_u32 v{a_}, v{a_}, v243")
    q.e(f"v_and_b32 v{c_}, 1, v{c_}\nv_lshl_add_u32 v{b_}, v{c_}, 2, v{b_}\nv_lshrrev_b32 v{b_}, 2, v{b_}\nv_mad_u32_u24 v{a_}, v{a_}, 10, v{b_}\nv_lshrrev_b32 v{a_}, 2, v{a_}\nv_lshlrev_b32 v{a_}, 7, v{a_}")
    q.e(f"s_lshr_b32 s86, s{sSL}, 3\ns_lshl_b32 s85, s86, 2\ns_add_u32 s85, s85, s{sW}\ns_mul_i32 s85, s85, 11")
    q.e(f"s_and_b32 s87, s{sSL}, 7\ns_mul_i32 s87, s87, 88\ns_add_u32 s87, s87, s85\ns_mul_i32 s{sBQ}, s87, 5120\ns_add_u32 s{sBQ}, s{sBQ}, {W2S_OFF}")
    q.e(f"s_lshl_b32 s87, s{sMT}, 1\ns_add_u32 s88, s87, s86\ns_mul_i32 s88, s88, 88\ns_add_u32 s88, s88, s85\ns_lshl_b32 s{sAO}, s88, 12")
    q.e(f"s_xor_b32 s86, s86, 1\ns_add_u32 s88, s87, s86\ns_mul_i32 s88, s88, 88\ns_add_u32 s88, s88, s85\ns_lshl_b32 s{sAP}, s88, 12")
    q.e(f"s_and_b32 s85, s{sMT}, {3 if OPT.get('rot', 1) else 0}\ns_mov_b32 s{TAB[0]}, 0\ns_lshl_b32 s85, s85, 13\ns_add_u32 s{TAB[4]}, s85, {4*4096}")
    for i in range(1, 4): q.e(f"s_add_u32 s{TAB[i]}, s{TAB[i-1]}, 4096\ns_and_b32 s{TAB[i]}, s{TAB[i]}, {3*4096}")
    for i in range(5, 11): q.e(f"s_add_u32 s{TAB[i]}, s{TAB[i-1]}, 4096\ns_cmp_eq_u32 s{TAB[i]}, {11*4096}\ns_cselect_b32 s{TAB[i]}, {4*4096}, s{TAB[i]}")
    q.e(f"s_mov_b32 s85, s{sBQ}\ns_lshl_b32 s88, s{sW}, 10")
    return q.items, code(ld), retry2(c, ld, [249], 250, 86)
BH = [4 * f for f in range(28)] + [176, 212, 216] + [240, 244, 248, 252] + [112 + 4 * k for k in range(12)] + [160, 164, 168, 172, 180, 184, 188, 192]
def baddr(f):
    i, ct = divmod(f, 5)
    t = ""
    if ct == 0: t += f"s_lshr_b32 s{sBC}, s{TAB[i]}, 2\ns_add_u32 s{sBC}, s{sBC}, s{TAB[i]}\ns_add_u32 s{sBC}, s{sBC}, s{sBQ}\n"
    else: t += f"s_add_u32 s{sBC}, s{sBC}, 1024\n"
    return t
def bpre(f):
    return code(baddr(f) + f"buffer_load_dwordx4 {A(BH[f],4)}, v{vL16}, {S(S_WS)}, s{sBC} offen sc1", 'bpre')
def bstage(f, lds):
    return code(f"s_add_u32 m0, s88, {lds}\n" + baddr(f) + f"buffer_load_dwordx4 v{vL16}, {S(S_WS)}, s{sBC} offen sc1 lds", 'bst')
def add_bpre(c, first, stage):
    free = lambda f: 41 + f if f < 28 else 46
    f = 0
    order = list(range(35))
    while f < 35:
        if not c.va.place(max(first, free(f)), bpre(f), dma='b'): return f
        f += 1
    return f
def add_stage(c, first, stage):
    c.staged = []
    for k, (lds, e) in enumerate(stage):
        f = 35 + k
        if f >= 55: break
        i, ct = divmod(f, 5)
        t = f"s_add_u32 m0, s88, {lds}\ns_lshr_b32 s{sBD}, s{TAB[i]}, 2\ns_add_u32 s{sBD}, s{sBD}, s{TAB[i]}\ns_add_u32 s{sBD}, s{sBD}, s85\n"
        if ct: t += f"s_add_u32 s{sBD}, s{sBD}, {1024*ct}\n"
        t += f"buffer_load_dwordx4 v{vL16}, {S(S_WS)}, s{sBD} offen sc1 lds"
        if not c.va.place(max(first, e), code(t, 'bst'), dma='l'): break
        c.staged.append((f, lds))
    c.va.b_next = 0
def unstage(c):
    q = Prog()
    q.e(f"v_add_u32 v{vPA}, s88, v{vL16}\nv_add_u32 v{vTW}, 65536, v{vPA}\nv_add_u32 v{vEX}, 131072, v{vPA}")
    q.wait_vm('bst')
    for f, lds in c.staged:
        q.e(f"ds_read_b128 {A(BH[f],4)}, v{(vPA, vTW, vEX)[lds >> 16]} offset:{lds & 65535}")
    return q.items
def brest(c):
    out = []
    done = set(range(c.nb)) | {f for f, _ in c.staged}
    for f in range(55):
        if f in done: continue
        i, ct = divmod(f, 5)
        t = f"s_lshr_b32 s{sBC}, s{TAB[i]}, 2\ns_add_u32 s{sBC}, s{sBC}, s{TAB[i]}\ns_add_u32 s{sBC}, s{sBC}, s{sBQ}\n"
        if ct: t += f"s_add_u32 s{sBC}, s{sBC}, {1024*ct}\n"
        out.append(Group(code(t + f"buffer_load_dwordx4 {A(BH[f],4)}, v{vL16}, {S(S_WS)}, s{sBC} offen sc1", 'bpre')))
    if OPT.get('vlog'): print(c.typ, "direct", c.nb, "staged", len(c.staged), "rest", len(out), file=sys.stderr)
    return out

def k1_X(p, c):
    ts = c.ts; o = c.opt
    sb = lambda j: X_RING + (j % X_NS) * X_SLOT
    def dma(j):
        pre = code(f"s_add_u32 s{sDB}, s{sDB}, 128") if j == 10 else []
        return pre + ffn_dma(sb(j), j)
    JP = 0
    ja, jda, jdb, jpa, jpb = jobs(c)
    ffn_dma_addr(p)
    p.e(f"s_mul_i32 s{sDB}, s{sW}, {16*3072}\ns_mul_i32 s{sT0}, s{sI}, 384\ns_add_u32 s{sDB}, s{sDB}, s{sT0}")
    c.save_id(p)
    p.e("s_waitcnt lgkmcnt(0)")
    srd(p, S_X, P_X, 2048 * 1280); ffn_srd(p)
    first_loads(p, dma(0))
    c.start(p)
    early_loads(p, 'X')
    common_addr(p)
    tr_addrs(p, X_RING)
    code_prefetch(p, 'X')
    p.extend(ja)
    p.extend(x_dma(1)); p.extend(dma(1))
    p.e(NONCE_LD())
    ts(p)
    rT = Ring(vT, 4, X_RING)
    WS_ = o.get('wsync', 7)
    F1 = o.get('f1', 16)
    pre_extra = {('sync', WS_): [Marker('vm', 'pub')], ('post', WS_): flag(f"s{sBT+3}"), ('sync', F1): [Marker('vm', 'h')],
                 ('post', F1): code(f"buffer_store_dword v{vPT}, v{vFZ}, {S(S_WS)}, s{sFL} offen offset:4 sc1", 'flag')}
    JA = o.get('ja', 1); JB = o.get('jb', 1)
    steps, r0, r1 = build_steps(c, 'F' * 20, sb, dma, X_NS, rT, None, pre_extra, {} if o.get('nojob') else {o.get('jblk', 0): [jda, jdb]})
    p.extend(x_read(0))
    p.wait_vm(('slot', 0)); p.e("s_barrier")
    p.extend(flat(r0)); p.extend(flat(r1))
    ts(p)
    cs1, cs1s = cs_produce_ffn(ACC2, f"s_mul_i32 s{sT0}, s{sI}, 3")
    sl, su = stats_consume(c); cl, cu = cs_consume(c, 4, ACC2)
    ks_, kl, kc = k2_setup(c)
    CD = o.get('cd', 9); BF0 = o.get('bf0', 45)
    side = cs1[:10] + [Deadline(5)] + items(stats_job) + nonce_get(c) + stats_store() + cs1[10:] + [Deadline(CD), Gate(CD)] + cs1s + [Deadline(CD + 1)]
    if not JP: side += [Gate(o.get('jga', 10))] + jpa + [Gate(o.get('jgb', 12))] + jpb + [Deadline(o.get('jd', 22))]
    G1_ = o.get('g1', 22)
    ex1 = ([Gate(o.get('tg', 12))] + touch() + [Deadline(o.get('tg', 12) + 2)] if o.get('touch', 0) else []) + [Gate(14)] + ks_ + [Deadline(G1_), Gate(G1_)] + sl + cl[0] + [Deadline(G1_ + 1)]
    c.lights = [(G1_ + 1, cl[1])]
    ex1 += [Gate(o.get('gu', 31))] + su + cu + [Deadline(38), Gate(38)] + ext_read(4) + [Deadline(39)]
    assert BF0 - 7 >= 38
    steps[39]['mf'] += ext_mfma(ACC1, 4, True); steps[39]['rd'] += [[], [], [], []]
    steps[40]['pre'] = ([] if o.get('ts') == 2 else [LazyStamp(ts)]) + steps[40]['pre']
    cs2, cs2s = cs_produce_ffn(CSA, f"s_mul_i32 s{sT0}, s{sI}, 3\ns_add_u32 s{sT0}, s{sT0}, 1")
    cl, cu = cs_consume(c, 4, CSA)
    side += [Gate(40)] + cs2 + [Deadline(45), Gate(45)] + cs2s + ffn_epi(ACC1, 0, 0)
    for tau in range(1, 3): side += ffn_epi(ACC1 + 16 * tau, tau >> 1, (tau & 1) * 512)
    TM0, TMB = c.TM0, c.TMB
    G2L = max(o.get('g2l', 53), BF0 + 1)
    ex2 = [Gate(G2L - 1)] + cl[0] + [Deadline(G2L)]
    c.lights.append((G2L, cl[1]))
    side += ffn_epi(ACC1 + 48, 1, 512) + [Deadline(o.get('e1d', 57)), Gate(61)] + cu + [Deadline(TM0 - 2), Gate(TM0 - 2)] + ext_read(4) + k2_flags(c) + [Deadline(TM0 + 1)]
    for tau in range(3): side += [Gate(TM0 + TMB * (tau + 1))] + code("s_nop 1") + ffn_epi(ACC2 + 16 * tau, 2 + (tau >> 1), (tau & 1) * 512) + [Deadline(TM0 + TMB * (tau + 2))]
    add_stage(c, BF0, [(4096 * k, 42) for k in range(4)] + [(32768 + 4096 * k, 42) for k in range(12)])
    c.nb = add_bpre(c, BF0, None)
    for n_ in (24, 44, 62)[:o.get('nca', 0)]: c.lights.append((n_, code_ahead(c.typ, 214, 214, 0, lines=o.get('cal', 16))))
    for n_, its in c.lights:
        e = c.va.light(n_, its)
        if o.get('vlog'): print('light', n_, e, file=sys.stderr)
    resolve(steps)
    if o.get('noside'): side = nonce_get(c) + [Deadline(9)]
    weave(p, steps, side, base_rate=o.get('xrate', 2), extra=[ex1 + [Gate(BF0 - 7)] + kl + [Deadline(BF0 - 6), Gate(BF0 - 1)] + kc + [Deadline(BF0)] + ex2])
    ts(p)
    p.extend(mk(c, 80) + ffn_epi(ACC2 + 48, 3, 512) + mk(c, 81) + unstage(c))
    ts(p)

def k1_Y(p, c):
    ts = c.ts; o = c.opt
    sb = lambda j: Y_RING + (j % Y_NS) * Y_SLOT
    dma = lambda j: ssm_dma(sb(j), j) if j < 10 else ffn_dma(sb(j), j)
    p.e(f"s_mul_i32 s{sLBS}, s{sW}, 5120")
    p.e(f"s_and_b32 s{sT0}, s{sW}, 1\ns_lshl_b32 s{sT1}, s{sT0}, 2\ns_lshr_b32 s{sT2}, s{sW}, 1\ns_xor_b32 s{sT1}, s{sT1}, s{sT2}")
    p.e(f"s_lshl_b32 s{sT1}, s{sT1}, 4\nv_xor_b32 v{vDS}, s{sT1}, v{vXD}")
    p.e(f"s_mul_i32 s{sT1}, s{sI}, 80\ns_lshl_b32 s{sT0}, s{sT0}, 3\ns_add_u32 s{sT0}, s{sT0}, s{sT1}\ns_mul_i32 s{sBT}, s{sT0}, 1280")
    for t in range(1, 4): p.e(f"s_add_u32 s{sBT+t}, s{sBT}, {t*(20480-1024)}")
    p.e(f"s_add_u32 s{sBT+4}, s{sBT}, {4*20480}")
    c.save_id(p)
    p.e("s_waitcnt lgkmcnt(0)")
    srd(p, S_X, P_X, 2048 * 1280)
    p.e(f"s_cmp_ge_u32 s{sW}, 2\ns_cselect_b32 s{S_B}, s{P_BIM}, s{P_BRE}\ns_cselect_b32 s{S_B+1}, s{P_BIM+1}, s{P_BRE+1}")
    p.e(f"s_mov_b32 s{S_B+2}, {640*1280}\ns_mov_b32 s{S_B+3}, 0x20000")
    first_loads(p, dma(0))
    p.e("s_branch K_Y\n.set SPLIT, 0\nK_Y:")
    c.start(p)
    early_loads(p, 'Y')
    L = ACC2 + 16
    p.e(f"v_lshrrev_b32 v{L}, 5, v0\nv_lshlrev_b32 v{L}, 4, v{L}\nv_bfe_u32 v{L+1}, v0, 1, 4\nv_add_u32 v{L}, v{L}, v{L+1}")
    p.e(f"v_add_u32 v{L}, s{sT1}, v{L}\nv_min_u32 v{L}, 639, v{L}\nv_lshlrev_b32 v{L}, 1, v{L}")
    for k, ptr in enumerate((P_LRE, P_LIM, P_LDT)):
        p.e(f"global_load_ushort v{L+1+k}, v{L}, s[{ptr}:{ptr+1}]", tag='tbl')
    ffn_dma_addr(p); ffn_srd(p)
    p.e(f"s_mul_i32 s{sDB}, s{sW}, {16*3072}\ns_mul_i32 s{sT0}, s{sI}, 384\ns_add_u32 s{sDB}, s{sDB}, s{sT0}\ns_add_u32 s{sDB}, s{sDB}, 256")
    common_addr(p)
    p.e(f"v_and_b32 v{t0}, 1, v{vL}\nv_bfe_u32 v{t1}, v{vL}, 1, 4\nv_lshl_add_u32 v{t1}, v{t0}, 4, v{t1}")
    p.e(f"v_bfe_u32 v{t2}, v{t1}, 1, 3\nv_xor_b32 v{t2}, v{t2}, v{t0}\nv_lshrrev_b32 v{t3}, 5, v{vL}\nv_xor_b32 v{t2}, v{t2}, v{t3}\nv_lshlrev_b32 v{t2}, 4, v{t2}")
    p.e(f"v_and_b32 v{t3}, 7, v{t1}\nv_lshl_add_u32 v{t2}, v{t3}, 7, v{t2}\nv_lshrrev_b32 v{t3}, 3, v{t1}\nv_mul_u32_u24 v{t3}, 5120, v{t3}")
    p.e(f"v_add_u32 v{t2}, v{t2}, v{t3}\nv_add_u32 v{vBR}, {Y_RING}, v{t2}")
    for s in range(1, 4): p.e(f"v_xor_b32 v{vBR+s}, {32*s}, v{vBR}")
    tr_addrs(p, sb(10))
    code_prefetch(p, 'Y')
    vE, vAG, vFL, vSTW, vSTR, vE2 = 252, 253, 254, vXD, vXD + 1, 242
    p.e(f"v_lshlrev_b32 v{vE}, 5, v0\nv_mul_u32_u24 v{vE2}, 48, v0")
    srd(p, S_AG, P_WS, 32 * 1280, AGG_OFF)
    p.e(f"s_mul_i32 s{sT0}, s{sI}, {32*1280}\ns_add_u32 s{S_AG}, s{S_AG}, s{sT0}\ns_addc_u32 s{S_AG+1}, s{S_AG+1}, 0")
    p.e(f"v_subrev_u32 v{t0}, 160, v0\nv_min_u32 v{t0}, v{t0}, v0\nv_lshlrev_b32 v{vFL}, 3, v{t0}\nv_mov_b32 v{t1}, {OOB}\nv_cmp_gt_u32 vcc, 160, v0\nv_cndmask_b32 v255, v{t1}, v{vFL}, vcc")
    ts(p)
    q = Prog()
    lam_consts(q, L, [1, 16, 128], False)
    O = L + 8
    q.e(f"v_and_b32 v{L}, 1, v0\nv_lshlrev_b32 v{L}, 31, v{L}\nv_xor_b32 v{L}, 0x80000000, v{L}")
    for n in range(3): q.e(f"v_xor_b32 v{O+2*n+1}, v{L}, v{O+2*n+1}")
    q.e(f"ds_write_b64 v{vE}, {V(O,2)} offset:{Y_TBL}\nds_write_b128 v{vE}, {V(O+2,4)} offset:{Y_TBL+16}")
    table = q.items
    p.extend(x_dma(1)); p.extend(dma(1))
    p.e(NONCE_LD())
    rT = Ring(vT, 4, sb(10)); rB = Ring(vBR, 4, Y_RING)
    steps, r0, r1 = build_steps(c, 'S' * 10 + 'F' * 10, sb, dma, Y_NS, rT, rB, {}, {})
    p.extend(x_read(0))
    p.wait_vm(('slot', 0)); p.e("s_barrier")
    p.extend(flat(r0)); p.extend(flat(r1))
    ts(p)
    q = Prog()
    q.e(f"s_lshl_b32 s{sT0}, s{sW}, 10")
    for s in range(4): q.e(f"v_add_u32 v{t0+s}, s{sT0}, v{vBR+s}\nds_read_b128 {A(CSF+4*s,4)}, v{t0+s}")
    for s in range(4): q.e(f"ds_read_b128 {A(EXTW+4*s,4)}, v{vBR+s} offset:4096")
    cs_store_addr(q, f"s_add_u32 s{sT0}, s{sI}, 24")
    CB = ACC2 + 48
    for s in range(4): q.e(f"v_mfma_f32_32x32x16_bf16 {V(CB,16)}, {V(vONE,4)}, {A(CSF+4*s,4)}, {'0' if s == 0 else V(CB,16)}")
    for s in range(4): q.e(f"v_mfma_f32_32x32x16_bf16 {V(ACC2,16)}, {V(vONE,4)}, {A(EXTW+4*s,4)}, {'0' if s == 0 else V(ACC2,16)}")
    cs1 = q.items
    cs1s = code(f"v_mov_b32 v{CB+1}, s{sN}\nv_mov_b32 v{ACC2+1}, s{sN}\nbuffer_store_dwordx2 {V(CB,2)}, v{t4}, {S(S_WS)}, s{sU2} offen sc1\ns_lshl_b32 s{sT0}, s{sW}, 8\ns_sub_u32 s{sT0}, s{sU2}, s{sT0}\n"
                f"buffer_store_dwordx2 {V(ACC2,2)}, v{t4}, {S(S_WS)}, s{sT0} offen offset:1024 sc1\n"
                f"s_add_u32 s{sT0}, s{sMT}, 16\ns_mul_i32 s{sT0}, s{sT0}, 1280\n"
                f"buffer_store_dwordx2 {V(vZ,2)}, v255, {S(S_AG)}, s{sT0} offen sc1", 'pub')
    sl, su = stats_consume(c); cl, cu = cs_consume(c, 5, ACC2)
    ks_, kl, kc = k2_setup(c)
    side = cs1[:13] + [Deadline(5)] + items(stats_job) + nonce_get(c) + stats_store() + cs1[13:] + [Deadline(10), Gate(10)] + cs1s + table + [Deadline(18)]
    G1_ = o.get('g1', 22)
    ex1 = ([Gate(o.get('tg', 12))] + touch() + [Deadline(o.get('tg', 12) + 2)] if o.get('touch', 0) else []) + [Gate(14)] + ks_ + [Deadline(G1_), Gate(G1_)] + sl + cl[0] + [Deadline(G1_ + 1)]
    c.lights = [(G1_ + 1, cl[1])]
    side += [Gate(o.get('gu', 31))] + su + cu + [Deadline(38), Gate(38)] + ext_read(5) + [Deadline(39)]
    q = Prog()
    q.e(f"v_and_b32 v{t0}, 31, v{vL}\nv_mul_u32_u24 v{t2}, 48, v{t0}\nv_lshlrev_b32 v{t0}, 5, v{t0}\nv_lshrrev_b32 v{t1}, 5, v0\nv_lshl_add_u32 v{vAG}, v{t1}, 2, v{t2}")
    for t in range(5): q.e(f"ds_read_b64 {V(C0+2*t,2)}, v{t0} offset:{Y_TBL + 1024*t}")
    side += q.items + [Deadline(40)]
    steps[39]['mf'] += ext_mfma(ACC1, 5, False); steps[39]['rd'] += [[], [], [], [], []]
    steps[40]['pre'] = ([] if o.get('ts') == 2 else [LazyStamp(ts)]) + steps[40]['pre']
    AS = o.get('async', 12)
    BF0 = o.get('bf0y', 46)
    cs2, cs2s = cs_produce_ffn(CSA, f"s_mul_i32 s{sT0}, s{sI}, 3\ns_add_u32 s{sT0}, s{sT0}, 2")
    side += [Gate(40)] + cs2[:10]
    LM, E0, GA, G1 = 244, RT + 4, RT + 12, TMP - 2
    q = Prog()
    def scale(tt):
        for t in range(5): q.e(f"v_mul_f32 v{ACC1+16*t+tt}, v{RT+tt}, v{ACC1+16*t+tt}")
    q.extend(cs2[10:])
    q.add(Deadline(45))
    scale(0); scale(1)
    q.extend(cs2s)
    q.e(f"ds_read_b128 {V(LM,4)}, v{vE} offset:{Y_TBL+16}")
    for tt in range(1, 16):
        for t in range(5):
            g = (ACC1 + 16 * t) if tt == 1 else (G1 + 2 * t + (tt & 1))
            q.e(f"v_fma_f32 v{G1+2*t+((tt+1)&1)}, v{C0+2*t}, v{g}, v{ACC1+16*t+tt}")
        if tt < 15: scale(tt + 1)
        for t in range(5):
            g = (ACC1 + 16 * t) if tt == 1 else (G1 + 2 * t + (tt & 1))
            q.e(f"v_fmac_f32_dpp v{G1+2*t+((tt+1)&1)}, v{g}, v{C0+2*t+1} {QP}")
    for t in range(5): q.e(f"ds_write_b32 v{vAG}, v{G1+2*t} offset:{AG_L + 16 + 1536*t}", tag='agw')
    side += q.items + [Deadline(4 * (AS - 1) + 2), Gate(4 * (AS - 1) + 2)]
    q = Prog()
    q.e(f"ds_read_b128 {V(E0,4)}, v{vE2} offset:{AG_L+16}\nds_read_b128 {V(E0+4,4)}, v{vE2} offset:{AG_L+32}")
    q.e(f"s_sub_u32 s{sBT}, 15, s{sMT}\ns_mul_i32 s{sBT}, s{sBT}, 1280")
    fill = code("\n".join(f"s_add_u32 s{S_J0+i}, s{sBT}, {1280 + 3840*i}" for i in range(5)) + f"\ns_add_u32 s{sBT+4}, s{sH}, {6*4096}\ns_nop 0")
    for k in range(1, 8):
        g = E0 if k == 1 else (GA + (k & 1))
        q.e(f"v_fma_f32 v{GA+((k+1)&1)}, v{LM}, v{g}, v{E0+k}"); q.add(fill[k - 1])
        q.e(f"v_fmac_f32_dpp v{GA+((k+1)&1)}, v{g}, v{LM+1} {QP}")
    q.e(f"v_mov_b32 v{GA+1}, s{sN}\nbuffer_store_dwordx2 {V(GA,2)}, v255, {S(S_AG)}, s{sBT} offen sc1", tag='pub')
    side += q.items + [Deadline(4 * (AS - 1) + 4)]
    q = Prog()
    q.e(f"v_and_b32 v{t0}, 1, v{vL}\nv_bfe_u32 v{t1}, v{vL}, 1, 4\nv_lshl_add_u32 v{t1}, v{t0}, 4, v{t1}\nv_bfe_u32 v{t2}, v{vL}, 4, 1\nv_xor_b32 v{t0}, v{t0}, v{t2}")
    q.e(f"v_lshrrev_b32 v{t2}, 5, v{vL}\nv_xor_b32 v{t0}, v{t0}, v{t2}\nv_bfe_u32 v{t2}, v{vL}, 2, 1\nv_lshl_add_u32 v{t0}, v{t0}, 1, v{t2}\nv_lshlrev_b32 v{t0}, 4, v{t0}")
    q.e(f"v_lshl_add_u32 v{t1}, v{t1}, 6, v{t0}\ns_mul_i32 s{sT0}, s{sW}, 10240\ns_add_u32 s{sT0}, s{sT0}, 98304\nv_add_u32 v{vSTW}, s{sT0}, v{t1}\nv_xor_b32 v229, 16, v{vSTW}")
    q.e(f"v_lshrrev_b32 v{t0}, 4, v{vL}\nv_lshlrev_b32 v{t1}, 9, v{t0}\nv_bfe_u32 v{t2}, v{vL}, 2, 2\nv_lshl_add_u32 v{t1}, v{t2}, 6, v{t1}\nv_lshrrev_b32 v{t2}, 1, v{t0}\nv_xor_b32 v{t0}, v{t0}, v{t2}")
    q.e(f"v_and_b32 v{t0}, 1, v{t0}\nv_bfe_u32 v{t2}, v{vL}, 3, 1\nv_lshl_add_u32 v{t0}, v{t0}, 1, v{t2}\nv_bfe_u32 v{t2}, v{vL}, 1, 1\nv_xor_b32 v{t0}, v{t0}, v{t2}\nv_lshl_add_u32 v{t1}, v{t0}, 4, v{t1}")
    q.e(f"v_and_b32 v{t0}, 1, v{vL}\nv_lshl_add_u32 v{t1}, v{t0}, 3, v{t1}\nv_add_u32 v{vSTR}, s{sT0}, v{t1}\nv_xor_b32 v230, 32, v{vSTR}")
    cl, cu = cs_consume(c, 4, CSA)
    TM0, TMB = c.TM0, c.TMB
    G2L = max(o.get('g2l', 53), BF0 + 1)
    ex2 = [Gate(G2L - 1)] + cl[0] + [Deadline(G2L)]
    c.lights.append((G2L, cl[1]))
    side += q.items + [Gate(o.get('g2', 61))] + cu
    LP = [CSA + 2 * i for i in range(8)] + [4, 6, 8, 10, 12, 14, 16]
    ldl = "\n".join(f"buffer_load_dwordx2 {V(LP[i],2)}, v{vFL}, {S(S_AG)}, s{S_J0+i//3} offen offset:{(i%3)*1280} sc1" for i in range(15))
    side += [Deadline(TM0 - 2), Gate(TM0 - 2)] + ext_read(4) + k2_flags(c) + [Deadline(TM0 + TMB)]
    c.lights.append((o.get('g3', TM0), code(ldl)))
    c.lights.append((o.get('gx1', 76), code(c.ldx1)))
    for tau in range(3): side += [Gate(TM0 + TMB * (tau + 1))] + code("s_nop 1") + ffn_epi(ACC2 + 16 * tau, 4 + (tau >> 1), (tau & 1) * 512) + [Deadline(TM0 + TMB * (tau + 2))]
    q = Prog()
    q.extend(retry(c, ldl, tagcheck([r + 1 for r in LP])))
    for i in range(13, -1, -1):
        q.e(f"v_fmac_f32 v{LP[i]}, v{LM+2}, v{LP[i+1]}\nv_fmac_f32_dpp v{LP[i]}, v{LP[i+1]}, v{LM+3} {QP}")
    q.e(f"ds_write_b32 v{vE2}, v{LP[0]} offset:{AG_L+12}", tag='pw')
    for k in range(7):
        g = LP[0] if k == 0 else E0 + k - 1
        q.e(f"v_fmac_f32 v{E0+k}, v{LM}, v{g}\nv_fmac_f32_dpp v{E0+k}, v{g}, v{LM+1} {QP}")
    q.e(f"ds_write_b128 v{vE2}, {V(E0,4)} offset:{AG_L+16}\nds_write_b128 v{vE2}, {V(E0+4,4)} offset:{AG_L+32}", tag='pw')
    gch = q.items
    q = Prog()
    CY = [216, 217, 218, 219, 228]
    for t in range(5): q.e(f"ds_read_b32 v{CY[t]}, v{vAG} offset:{AG_L + 12 + 1536*t}")
    cy = q.items
    def scan(tiles):
        q = Prog()
        for tt in range(16):
            for t in tiles:
                g = CY[t] if tt == 0 else (ACC1 + 16 * t + tt - 1)
                q.e(f"v_fmac_f32 v{ACC1+16*t+tt}, v{C0+2*t}, v{g}")
            for t in tiles:
                g = CY[t] if tt == 0 else (ACC1 + 16 * t + tt - 1)
                q.e(f"v_fmac_f32_dpp v{ACC1+16*t+tt}, v{g}, v{C0+2*t+1} {QP}")
            for k in ([tt // 2 - 1] if (tt >= 2 and tt % 2 == 0) else []) + ([7] if tt == 15 else []):
                for t in tiles: q.e(f"v_cvt_pk_bf16_f32 v{ACC1+16*t+k}, v{ACC1+16*t+2*k}, v{ACC1+16*t+2*k+1}")
            if tt == 10:
                for t in tiles: q.e(f"ds_write_b128 v{vSTW}, {V(ACC1+16*t,4)} offset:{HT2_L + t*2048}")
        return q.items
    def outp(tiles):
        q = Prog()
        for t in tiles:
            R = ACC1 + 16 * t
            q.e(f"ds_write_b128 v229, {V(R+4,4)} offset:{HT2_L + t*2048}")
            for rt in range(2):
                for tq in range(2): q.e(f"ds_read_b64_tr_b16 {V(R+8+4*rt+2*tq,2)}, v{(vSTR, 230)[rt]} offset:{HT2_L + t*2048 + tq*256}")
        for t in tiles:
            R = ACC1 + 16 * t
            q.e(f"s_add_u32 s{sT2}, s85, {t*4096}")
            for rt in range(2): q.e(f"buffer_store_dwordx4 {V(R+8+4*rt,4)}, v{vL16}, {S(S_WS)}, s{sT2} offen offset:{rt*1024} sc1", tag='h')
        return q.items
    add_stage(c, BF0, [(24576 + 4096 * k, 46) for k in range(8)] + [(12288, 46), (159744, 46)] + [(Y_RING + 20480 * k + 16384, 46) for k in range(5)])
    c.nb = add_bpre(c, BF0, None)
    for n_ in (24, 44, 62)[:o.get('nca', 0)]: c.lights.append((n_, code_ahead(c.typ, 214, 214, 0, lines=o.get('cal', 16))))
    for n_, its in c.lights:
        e = c.va.light(n_, its)
        if o.get('vlog'): print('light', n_, e, file=sys.stderr)
    resolve(steps)
    if o.get('noside'): side = nonce_get(c) + [Deadline(9)]
    weave(p, steps, side, base_rate=o.get('yrate', 3),
                 extra=[ex1 + [Gate(BF0 - 7)] + kl + [Deadline(BF0 - 6), Gate(BF0 - 1)] + kc + [Deadline(BF0)] + ex2])
    ts(p)
    p.e(f"s_mov_b32 s85, s{sBT+4}")
    p.extend(unstage(c))
    tail = mk(c, 80) + c.chkx1 + merge(c.aload(0) + c.aload(1), merge(autogroup(gch), ffn_epi(ACC2 + 48, 5, 512), keep=True), 1.0) + mk(c, 81) + [Marker('lgkm', 'pw')] + code("s_barrier")
    tail += cy + merge(brest(c), scan([0, 1])) + mk(c, 82) + merge(outp([0, 1]), scan([2, 3]), 1.0) + mk(c, 83)
    tail += merge(outp([2, 3]), scan([4]) + outp([4])[:5], 1.0) + code(c.ldx) + outp([4])[5:]
    p.extend(tail)
    ts(p)

def mk(c, n): return code(f'.set STEPMARK{c.typ}{n}, 0') if c.opt.get('st0') is not None else []
def merge(a, b, f=1.15, keep=False):
    out = []; k = 0
    for i, it in enumerate(b):
        out.append(it)
        while k < len(a) and k * len(b) <= i * len(a) * f:
            out.append(a[k]); k += 1
    out += a[k:]
    if keep: return out
    return [y for x in out for y in (x.its if isinstance(x, Group) else [x])]

vKW, vKF, vKN = 36, 37, 35
HOMES = [(A, 220), (A, 196), (V, 200), (V, 18)]
def plan_homes(c):
    KF = OPT.get('kf', 3)
    front = [('o', 0), ('o', 1), ('p', 0), ('p', 1), ('o', 2), ('o', 3), ('p', 2), ('p', 3)]
    moved = {4: [], 2: [('o', 2), ('o', 3)], 3: [('o', 3)]}[KF]
    front = [x for x in front if x not in moved]
    c.seq = front + [('p', i) for i in range(4, 11)] + moved + [('o', i) for i in range(4, 11)]
    c.NF = len(front); c.PL = c.NF + 6
    lastB = {i: max(u for u, (k, j) in enumerate(c.seq) if j == i) for i in range(11)}
    pool = [[A, 220, -9], [A, 196, -9], [V, 200, -9], [V, 18, -9]] + [[A, 16 * k, max(lastB[(16 * k) // 20], lastB[(16 * k + 15) // 20]) + 1] for k in range(5)]
    c.home = []; c.earliest = []
    for v in range(22):
        h = min(pool, key=lambda x: x[2])
        c.home.append((h[0], h[1])); c.earliest.append(h[2])
        h[2] = v + 1 + (1 if v in (c.PL - 1, 20) else 0)
def k2_flags(c):
    q = Prog()
    q.e(f"s_and_b32 s87, s{sSL}, 8\ns_lshl_b32 s86, s{sW}, 1\ns_add_u32 s87, s87, s86\ns_lshl_b32 s86, s{sMT}, 4\ns_add_u32 s87, s87, s86")
    q.e(f"s_lshl_b32 s87, s87, 7\ns_add_u32 s87, s87, {HF_OFF}\nv_mov_b32 v248, 0")
    c.ldx = f"buffer_load_dword v249, v248, {S(S_WS)}, s87 offen sc1"
    c.ldy = f"buffer_load_dword v250, v248, {S(S_WS)}, s87 offen offset:128 sc1"
    c.chkx = retry(c, c.ldx, tagcheck([249]))
    c.ldx1 = f"buffer_load_dword v250, v248, {S(S_WS)}, s87 offen offset:4 sc1"
    if c.typ == 'Y': c.chkx1 = retry(c, c.ldx1, tagcheck([250]))
    plan_homes(c)
    def aload(u):
        kind, i = c.seq[u]; R, b = c.home[u]; s_ = sAP if kind == 'p' else sAO
        return code(f"s_add_u32 s{sBD}, s{s_}, s{TAB[i]}\n" + "\n".join(f"buffer_load_dwordx4 {R(b+4*rt,4)}, v{vL16}, {S(S_WS)}, s{sBD} offen offset:{1024*rt} sc1" for rt in range(4)))
    c.aload = aload
    return q.items

def k2(p, c):
    ts = c.ts; o = c.opt
    AP, AO = 40, 120
    seq = c.seq; aload = c.aload; ldy = c.ldy
    isY = c.typ == 'Y'
    mark = lambda n: p.e(f'.set STEPMARK{c.typ}{n}, 0') if o.get('st0') is not None else None
    fl = code(f"buffer_store_dword v{vKN}, v{vKF}, {S(S_WS)}, s{sFL} offen sc1", 'flag')
    p.e(f"v_mov_b32 v{vKN}, v{vPT}\nv_mov_b32 v{vKF}, v{vFZ}")
    q = Prog()
    srd(q, S_W1, P_D, 1280)
    srd(q, S_W3, P_OUT, 2048 * 2560)
    q.e(f"s_and_b32 s{sU0}, s{sSL}, 7\ns_lshr_b32 s{sU1}, s{sSL}, 3\ns_lshl_b32 s{sT1}, s{sMT}, 1\ns_add_u32 s{sU1}, s{sU1}, s{sT1}")
    q.e(f"s_mov_b32 s48, 3277\ns_lshl_b32 s49, s{sU1}, 6\ns_mul_i32 s50, s{sU0}, 160")
    q.e(f"s_mul_i32 s51, s49, 1280\ns_add_u32 s51, s51, s50\ns_lshl_b32 s59, s49, 4\ns_add_u32 s59, s59, {ST_OFF}\ns_lshl_b32 s61, s51, 1")
    q.e(f"s_lshl_b32 s{sT0}, s{sU1}, 3\ns_add_u32 s{sT0}, s{sT0}, s{sU0}\ns_mul_i32 s62, s{sT0}, 28672\ns_add_u32 s62, s62, {PX_OFF}")
    q.e(f"s_xor_b32 s{sT0}, s{sT0}, 8\ns_mul_i32 s63, s{sT0}, 28672\ns_add_u32 s63, s63, {PX_OFF}")
    q.e(f"v_lshlrev_b32 v17, 4, v0")
    q.e(f"v_and_b32 v4, 15, v1\nv_mul_u32_u24 v4, 336, v4\nv_lshrrev_b32 v5, 4, v1\nv_lshl_add_u32 v4, v5, 4, v4\ns_mul_i32 s44, s{sW}, 21504\nv_add_u32 v{vKW}, s44, v4")
    EL, EO = 6, 11
    EX, ED, ES = 216, 226, 236
    for u in range(5):
        q.e(f"v_add_u32 v4, {256*u}, v0\nv_mul_lo_u32 v5, v4, s48\nv_lshrrev_b32 v5, 16, v5\nv_lshlrev_b32 v4, 4, v4\nv_lshl_add_u32 v{EL+u}, v5, 4, v4")
        q.e(f"v_mul_u32_u24 v2, 320, v5\nv_sub_u32 v4, v4, v2\nv_lshrrev_b32 v4, 1, v4\nv_lshl_add_u32 v2, v2, 2, v4\nv_lshlrev_b32 v5, 4, v5")
        q.e(f"buffer_load_dwordx2 {V(EX+2*u,2)}, v2, {S(S_X)}, s51 offen\nbuffer_load_dwordx2 {V(ED+2*u,2)}, v4, {S(S_W1)}, s50 offen\nbuffer_load_dwordx2 {V(ES+2*u,2)}, v5, {S(S_WS)}, s59 offen sc1")
        q.e(f"v_lshlrev_b32 v{EO+u}, 1, v2")
    ksetup = q.items
    if not isY:
        p.extend(ksetup)
        p.extend(mk(c, 82))
        p.wait_vm('h'); p.e("s_barrier"); p.extend(fl)
        p.extend(merge(brest(c), []))
        p.e(c.ldx)
        p.extend(mk(c, 83))
        ts(p)
        p.extend(c.chkx)
        for u in range(3): p.extend(aload(u))
    else:
        p.extend(aload(2))
    ts(p)
    steps = []
    for u, (kind, i) in enumerate(seq):
        R, a = c.home[u]; acc = AP if kind == 'p' else AO
        mf = []
        for rt in range(4):
            for ct in range(5):
                d = acc + 4 * (5 * rt + ct)
                mf += code(f"v_mfma_f32_16x16x32_bf16 {V(d,4)}, {A(BH[5*i+ct],4)}, {R(a+4*rt,4)}, {'0' if i == 0 else V(d,4)}")
        steps.append(dict(pre=[], mf=mf, rd=[[] for _ in mf]))
    NF, PL = c.NF, c.PL
    CU = NF - (o.get('cuy', 2) if isY else o.get('cux', 3))
    C2 = o.get('c2', 2)
    if isY: steps[C2]['pre'] += c.chkx
    steps[CU]['pre'] += retry(c, ldy, tagcheck([250])) + [LazyStamp(ts)]
    steps[CU - 1]['rd'][o.get('lyg', 10)] += code(ldy)
    g = 0; AS_ = o.get('as', 4)
    for v in range(3, 22):
        e = max(c.earliest[v], v - o.get('ad', 6), 0)
        if isY and v >= 4: e = max(e, C2)
        if v >= NF: e = max(e, CU)
        g = max(g, 20 * e)
        its = aload(v)
        st_ = AS_ if g < 20 * (v - 2) else 2
        steps[g // 20]['rd'][g % 20] += [its[0]]
        for k in range(4): steps[g // 20]['rd'][g % 20] += [its[k + 1]]; g += st_
        assert g <= 20 * v, (v, g)
        if o.get('vlog'): print(c.typ, v, c.home[v][1], g, file=sys.stderr)
    def wr(acc, rt):
        return code("\n".join(f"ds_write_b128 v{vKW}, {V(acc+4*(5*rt+ct),4)} offset:{rt*16*336 + ct*64}" for ct in range(5)), 'pw')
    side = []
    if isY:
        side += ksetup + [Deadline(5)]
        steps[o.get('fu', 3)]['rd'][o.get('fg', 4)] += [Marker('vm', 'h')] + code("s_barrier") + fl
    M = f"s{sMASK}"
    q = Prog()
    PT = [r for u in range(5) for r in (EX + 2 * u, EX + 2 * u + 1, ED + 2 * u, ED + 2 * u + 1)]
    Xr = [2, 3, 4, 5]; Dr = [246, 247, 252, 253]; Yr = [254, 255, 16, 34]
    for u in range(5):
        q.e(f"v_lshlrev_b32 v{Xr[0]}, 16, v{EX+2*u}\nv_and_b32 v{Xr[1]}, {M}, v{EX+2*u}\nv_lshlrev_b32 v{Xr[2]}, 16, v{EX+2*u+1}\nv_and_b32 v{Xr[3]}, {M}, v{EX+2*u+1}")
        q.e(f"v_lshlrev_b32 v{Dr[0]}, 16, v{ED+2*u}\nv_and_b32 v{Dr[1]}, {M}, v{ED+2*u}\nv_lshlrev_b32 v{Dr[2]}, 16, v{ED+2*u+1}\nv_and_b32 v{Dr[3]}, {M}, v{ED+2*u+1}")
        q.e(f"v_and_b32 v{ES+2*u+1}, {M}, v{ES+2*u+1}\nv_mul_f32 v{ES+2*u+1}, v{ES+2*u+1}, v{ES+2*u}")
        for i in range(4): q.e(f"v_fma_f32 v{Yr[i]}, v{Xr[i]}, v{ES+2*u}, v{ES+2*u+1}")
        rnd = (f"v_cvt_pk_bf16_f32 v{Yr[0]}, v{Yr[0]}, v{Yr[1]}\nv_cvt_pk_bf16_f32 v{Yr[2]}, v{Yr[2]}, v{Yr[3]}\n"
               f"v_and_b32 v{Yr[1]}, {M}, v{Yr[0]}\nv_lshlrev_b32 v{Yr[0]}, 16, v{Yr[0]}\nv_and_b32 v{Yr[3]}, {M}, v{Yr[2]}\nv_lshlrev_b32 v{Yr[2]}, 16, v{Yr[2]}")
        q.e(rnd)
        for i in range(4): q.e(f"v_mul_f32 v{Yr[i]}, v{Yr[i]}, v{Dr[i]}")
        q.e(rnd)
        for i in range(4): q.e(f"v_add_f32 v{PT[4*u+i]}, v{Xr[i]}, v{Yr[i]}")
    pre = q.items
    def fuse(u, acc):
        a, b = steps[u], steps[u + 1]
        mf = []; rd = []
        for rt in range(4):
            mf += a['mf'][5 * rt:5 * rt + 5] + b['mf'][5 * rt:5 * rt + 5]
        rd = a['rd'] + b['rd']
        for rt in range(3):
            w = wr(acc, rt)
            for k in range(5): rd[10 * (rt + 1) + 3 + k] += [w[k]]
        a['mf'], a['rd'] = mf[:20], rd[:20]; b['mf'], b['rd'] = mf[20:], rd[20:]
    fuse(PL - 1, AP); fuse(20, AO)
    w = wr(AP, 3)
    for k in range(5): steps[PL + 1]['rd'][3 + k] += [w[k]]
    steps[PL + 1]['rd'][12] += [Marker('lgkm', 'pw')] + code("s_barrier")
    q = Prog()
    GR = AP + 48
    gi = lambda f: GR + 4 * (f // 3) + f % 3
    sent = [0]
    def send(upto):
        while sent[0] < 7 and 3 * sent[0] + 2 < upto or (upto == 20 and sent[0] < 7):
            g = sent[0]; sent[0] += 1
            q.e(f"v_mov_b32 v{GR+4*g+3}, s{sN}\nbuffer_store_dwordx4 {V(GR+4*g,4)}, v17, {S(S_WS)}, s63 offen sc1\ns_add_u32 s63, s63, 4096")
    def red(u):
        T = AP + 16 * (u % 3)
        for i in range(4): q.e(f"v_add_f32 v{T+i}, v{T+i}, v{T+4+i}\nv_add_f32 v{T+8+i}, v{T+8+i}, v{T+12+i}")
        for i in range(4): q.e(f"v_add_f32 v{gi(4*u+i)}, v{T+i}, v{T+8+i}")
        send(4 * u + 4)
    for u in range(5):
        T = AP + 16 * (u % 3)
        for w in range(4): q.e(f"ds_read_b128 {V(T+4*w,4)}, v{EL+u} offset:{w*21504}")
        if u >= 2: red(u - 2)
    red(3); red(4)
    RG = AP
    ldp = "\n".join(f"buffer_load_dwordx4 {V(RG+4*g,4)}, v17, {S(S_WS)}, s{70+g} offen sc1" for g in range(7))
    if o.get('cp2', 1):
        L = f"{c.typ}_cp2"
        steps[max(CU, 5)]['rd'][19] += code(f"s_getpc_b64 s[90:91]\n{L}:\nv_lshlrev_b32 v4, 7, v0\nv_min_u32 v4, {c.typ}_end-{L}, v4\nglobal_load_dword v250, v4, s[90:91]")
    side += [Gate(max(CU + 1, 6))] + pre + [Deadline(PL - 1), Gate(PL + 2)] + q.items + [Deadline(PL + 4)] + code("\n".join(f"s_add_u32 s{70+g}, s62, {4096*g}" for g in range(7))) + [Deadline(20)]
    side += [Gate(o.get('lpu', 21))] + code(ldp)
    steps[20]['rd'][0] += code("s_barrier")
    if o.get('st0') is not None:
        for u, st in enumerate(steps): st['pre'] = code(f'.set STEPMARK{c.typ}{84+u}, 0') + st['pre']
    resolve(steps)
    weave(p, steps, side, base_rate=1)
    ts(p); mark(106)
    p.extend(wr(AO, 3))
    p.wait_lgkm('pw')
    p.e("s_barrier")
    mark(107)
    for u in range(5):
        for w in range(4): p.e(f"ds_read_b128 {V(AO+16*u+4*w,4)}, v{EL+u} offset:{w*21504}")
        if u == 2:
            p.extend(retry(c, ldp, tagcheck([RG + 4 * g + 3 for g in range(7)])))
            for f in range(20): p.e(f"v_add_f32 v{PT[f]}, v{PT[f]}, v{RG + 4*(f//3) + f%3}")
    mark(108)
    for u in range(5):
        R = AO + 16 * u
        for i in range(4): p.e(f"v_add_f32 v{R+i}, v{R+i}, v{R+4+i}\nv_add_f32 v{R+8+i}, v{R+8+i}, v{R+12+i}")
        for i in range(4): p.e(f"v_add_f32 v{R+i}, v{R+i}, v{PT[4*u+i]}")
        for i in range(4): p.e(f"v_add_f32 v{R+i}, v{R+i}, v{R+8+i}")
        p.e(f"buffer_store_dwordx4 {V(R,4)}, v{EO+u}, {S(S_W3)}, s61 offen{NT('nto')}{' sc1' if OPT.get('osc') else ''}{' sc0' if OPT.get('osc') == 2 else ''}")
    mark(109)
    if o.get('st0') is not None: p.e("s_waitcnt vmcnt(0)"); mark(110); p.e("s_nop 15\ns_nop 15\ns_nop 15"); mark(111)
    ts(p)

HEADER = open('parallel_sum__ssm_conv_s5__glu_gated_swiglu__prompt.s.ref').read().split('; Override launch')[0]

def profile(txt, typ):
    out = []; k = 2; sites = []; nm = 0
    lo = OPT.get('prof0', 0)
    for l in txt.split('\n'):
        if 'mfma' in l: nm += 1
        if 's_memrealtime' in l and k > 2: k = 100
        hit = ('vmcnt' in l or 's_barrier' in l or 's_cbranch_vccnz' in l or '_slow' in l) and nm >= lo and k < 62
        if OPT['prof'] == 2: hit = ('buffer_' in l or 'global_' in l) and nm >= lo and k < 62
        if hit and '_slow' in l:
            out.append("  s_memtime s[0:1]"); out.append(l); pend = True; sites.append((k, nm, l.strip())); continue
        if OPT['prof'] == 1 and l.endswith('_ret:') and out[-2].startswith("  s_memtime s[0:1]"):
            out.append(l); out.append(f"  s_memtime s[2:3]\n  s_waitcnt lgkmcnt(0)\n  s_sub_u32 s2, s2, s0\n  s_or_b32 s2, s2, 1\n  v_writelane_b32 v251, s2, {k}"); k += 1; continue
        if hit:
            out.append(f"  s_memtime s[0:1]\n{l}\n  s_memtime s[2:3]\n  s_waitcnt lgkmcnt(0)\n  s_sub_u32 s2, s2, s0\n  s_or_b32 s2, s2, 1\n  v_writelane_b32 v251, s2, {k}")
            sites.append((k, nm, l.strip())); k += 1
        else: out.append(l)
    print(typ, "sites:", [(b, ('D' if ' lds' in c else 'S' if 'store' in c else 'L') if 'buffer' in c or 'global' in c else c.replace('s_waitcnt ', '').replace('s_cbranch_', '')) for a, b, c in sites], file=sys.stderr)
    return '\n'.join(out)

def build(opt):
    OPT.update(opt)
    ph = Prog(); setup(ph, opt)
    ph.e(f"s_bitcmp1_b32 s{sSL}, 0\ns_cbranch_scc0 K_X")
    body = ph.finalize() + "\n"
    sx = [it for it in ph.items if isinstance(it, I) and it.tag == 'cpf' and it.kind == 'vm']
    parts = {}
    for typ, fn in (('X', k1_X), ('Y', k1_Y)):
        c = Ctx(typ, opt)
        p = Prog()
        if typ == 'X': p.e("K_X:")
        p.add(Marker('assume_vm', sx))
        def save_id(p):
            if opt.get('ts'): p.e('v_mov_b32 v251, 0')
            p.e("s_memrealtime s[2:3]")
        def start(p, c=c):
            c.ts(p, True); c.ts(p)
            if opt.get('prof') or opt.get('st0') is not None: c.ts.on = False
        c.save_id = save_id; c.start = start
        fn(p, c)
        k2(p, c)
        if opt.get('prof') or opt.get('st0') is not None: c.ts.on = True; c.ts.n = 63
        if c.ts.on:
            p.wait_all(); c.ts(p, True); c.ts.dump(p)
        p.e(f"{typ}_end:\ns_endpgm")
        st = {}
        txt = p.finalize(st)
        if opt.get('prof'): txt = profile(txt, typ)
        if opt.get('st0') is not None:
            out = []
            for l in txt.split('\n'):
                if 'STEPMARK' in l:
                    k = int(l.split(',')[0].split(typ)[-1]) - opt['st0']
                    if 0 <= k <= 60:
                        a = 2 * (k & 1)
                        if k > 0: out.append(f"  v_writelane_b32 v251, s{2-a}, {k}")
                        if k < 60: out.append(f"  s_memtime s[{a}:{a+1}]")
                else: out.append(l)
            txt = '\n'.join(out)
        import re as _re
        slow = [q for q in c.slow if _re.search(r'(\w+)_slow:', q).group(1) + '_ret:' in txt]
        if opt.get('nodma'): txt = '\n'.join(l for l in txt.split('\n') if not (' lds' in l and 'buffer_load' in l))
        if opt.get('nomfma'): txt = '\n'.join(l for l in txt.split('\n') if not ('32x32x16' in l))
        if opt.get('nowait'): txt = '\n'.join(l for l in txt.split('\n') if not ('vmcnt' in l and 'vmcnt(0)' not in l))
        if opt.get('nolds'): txt = '\n'.join(l for l in txt.split('\n') if not ('ds_read' in l))
        parts[typ] = txt + "\n" + "\n".join(slow) + "\n"
        print(typ, st, file=sys.stderr)
    y0, y1 = parts['Y'].split("  .set SPLIT, 0\n")
    body += y0 + parts['X'] + y1
    body += "K_end:\n  s_endpgm\n"
    k = NAME + "_kernel"
    if opt.get('plain'): body = body.replace(' sc1', '')
    if opt.get('plainst'): body = '\n'.join(l.replace(' sc1', '') if 'buffer_store' in l else l for l in body.split('\n'))
    s = HEADER + "; @launch grid=(256,1,1) block=(256,1,1) lds=163840\n"
    s += f'.amdgcn_target "amdgcn-amd-amdhsa--gfx950"\n.text\n.globl {k}\n.p2align 8\n.type {k},@function\n{k}:\n{body}'
    s += '.section .rodata,"a"\n' + kd(k, 512, 102, 256)
    return s

if __name__ == '__main__':
    opt = {}
    for a in sys.argv[2:]:
        k, v = a.split('='); opt[k] = int(v)
    open(sys.argv[1], 'w').write(build(opt))
```

```python
import sys, struct
from asmgen import Prog, I, Marker
from sched import weave, Gate, Deadline, Group, autogroup
from common import kd

NAME = "parallel_sum__ssm_conv_s5__glu_gated_swiglu__prompt"
H_OFF = 0
W2S_OFF = 32 * 88 * 4096
ST_OFF = W2S_OFF + 8 * 88 * 5120
AGG_OFF = ST_OFF + 32768
CS_OFF = AGG_OFF + 8 * 32 * 1280
HF_OFF = CS_OFF + 32 * 12800
WF_OFF = HF_OFF + 256 * 128
PX_OFF = WF_OFF + 128 * 128
WS_USED = PX_OFF + 256 * 7 * 4096
TS_OFF = 24 << 20
LOG2E, NLOG2E, INV2PI, OOB = 0x3fb8aa3b, 0xbfb8aa3b, 0x3e22f983, 0x7f000000
def f2u(x): return struct.unpack('<I', struct.pack('<f', x))[0]

S_X, S_W1, S_W3, S_B, S_WS, S_J0, S_J1, S_DBG, S_AG = 4, 8, 12, 16, 20, 24, 28, 32, 36
sMT, sSL, sW, sI, sT0, sT1, sT2, sT3 = 40, 41, 42, 43, 44, 45, 46, 47
sXR = 48
sMASK, sFL, sLB, sD0, sD1, sH, sLBS, sBT = 52, 53, 54, 55, 56, 57, 58, 59
P_X, P_LRE, P_LIM, P_BRE, P_BIM, P_CRE, P_CIM, P_LDT, P_D, P_BX, P_W1, P_W3, P_W2, P_OUT, P_DBG, P_WS = [64 + 2 * i for i in range(16)]
sKX, sKB, sDB, sROT, sU0, sU1 = 96, 97, 98, 99, 100, 101
sSP = 89
sU2, sU3 = 82, 83
sN = 92

OPT = {}
def NT(k): return ' nt' if OPT.get(k) else ''
def S(d): return f"s[{d}:{d+3}]"
def V(a, n=1): return f"v[{a}:{a+n-1}]" if n > 1 else f"v{a}"
def A(a, n=1): return f"a[{a}:{a+n-1}]" if n > 1 else f"a{a}"
QP = "quad_perm:[1,0,3,2] row_mask:0xf bank_mask:0xf"
def items(f, *a):
    q = Prog(); f(q, *a); return q.items
def code(text, tag=None):
    q = Prog(); q.e(text, tag); return q.items

def srd(p, d, ptr, nrec, add=0):
    if add == 0: p.e(f"s_mov_b32 s{d}, s{ptr}\ns_mov_b32 s{d+1}, s{ptr+1}")
    elif add > 0: p.e(f"s_add_u32 s{d}, s{ptr}, {add}\ns_addc_u32 s{d+1}, s{ptr+1}, 0")
    else: p.e(f"s_sub_u32 s{d}, s{ptr}, {-add}\ns_subb_u32 s{d+1}, s{ptr+1}, 0")
    p.e(f"s_mov_b32 s{d+2}, {nrec}\ns_mov_b32 s{d+3}, 0x20000")

class Stamper:
    def __init__(self, on): self.on = on; self.n = 0
    def it(self, real=False):
        if not self.on: return []
        if OPT.get('rt') == 1: real = True
        if OPT.get('rt') == 2:
            n = self.n; self.n += 2
            return code(f"s_memrealtime s[0:1]\ns_memtime s[2:3]\ns_waitcnt lgkmcnt(0)\nv_writelane_b32 v251, s0, {n}\nv_writelane_b32 v251, s2, {n+1}")
        n = self.n; self.n += 1
        return code(f"{'s_memrealtime' if real else 's_memtime'} s[0:1]\ns_waitcnt lgkmcnt(0)\nv_writelane_b32 v251, s0, {n}")
    def __call__(self, p, real=False): p.extend(self.it(real))
    def dump(self, p):
        if not self.on: return
        p.wait_all()
        p.e(f"s_lshr_b32 s93, s{sMT}, 2\ns_lshr_b32 s3, s{sSL}, 3\ns_lshl_b32 s3, s3, 2\ns_add_u32 s93, s93, s3\ns_and_b32 s3, s{sMT}, 3\ns_lshl_b32 s3, s3, 3\ns_add_u32 s93, s93, s3\ns_and_b32 s3, s{sSL}, 7\ns_lshl_b32 s3, s3, 5\ns_add_u32 s93, s93, s3")
        if OPT.get('dbgout'):
            p.e(f"s_lshl_b32 s3, s93, 2\ns_add_u32 s3, s3, s{sW}\ns_cmp_eq_u32 s3, {4*OPT['dbgout']}\ns_cselect_b32 s3, 4, {OOB}")
            p.e(f"v_readlane_b32 s0, v251, 0\nv_subrev_u32 v251, s0, v251\nv_lshlrev_b32 v3, 2, v1\nv_add_u32 v3, s3, v3\nbuffer_store_dword v251, v3, {S(S_DBG)}, 0 offen")
            return
        srd(p, 4, P_WS, TS_OFF + (1 << 20))
        p.e(f"v_lshlrev_b32 v3, 2, v1\ns_lshl_b32 s3, s93, 2\ns_add_u32 s3, s3, s{sW}\ns_lshl_b32 s3, s3, 8\ns_add_u32 s3, s3, {TS_OFF}")
        p.e("buffer_store_dword v251, v3, s[4:7], s3 offen")

class LazyStamp:
    def __init__(self, ts): self.ts = ts
def resolve(steps):
    for st in steps:
        out = []
        for it in st['pre']:
            out += it.ts.it() if isinstance(it, LazyStamp) else [it]
        st['pre'] = out
vL = 1
vXD, vXC = 2, 4
vSR = 6
vD, vDS, vDC = 10, 12, 13
vBR, vT, vTW, vH = 14, 18, 22, 23
vONE, vEX = 24, 28
vTMP = 32
ACC1, ACC2, CSA, TMP = 40, 120, 184, 200
vFZ, vPA, vPV, vPT, vC1, vC2, vL16, vZ = 208, 209, 39, 211, 212, 213, 38, 210
RT = 216
C0 = 232
XF, BF, EXTW, CSF = 0, 160, 220, 240
t0, t1, t2, t3, t4, t5 = range(vTMP, vTMP + 6)

XS = 0
X_JOB, X_RING, X_NS, X_SLOT = 49152, 81920, 5, 16384
Y_TBL, Y_RING, Y_NS, Y_SLOT = 49152, 57344, 5, 20480
EXT_L = XS + 16384
AG_L = XS
HT2_L = 0

class Ctx:
    def __init__(self, typ, opt):
        self.typ = typ; self.opt = opt; self.slow = []; self.npoll = 0
        self.ts = Stamper(opt.get('ts'))

def bf16r(p, v): p.e(f"v_cvt_pk_bf16_f32 v{v}, v{v}, v{v}\nv_and_b32 v{v}, s{sMASK}, v{v}")

def retry(c, loads, check):
    k = c.npoll; c.npoll += 1
    L = f"{c.typ}_poll{k}"
    q = Prog()
    q.e(f"{L}_slow:\ns_mov_b32 s{sSP}, 0x40000\n{L}_lp:\ns_sleep {OPT.get('sleep', 1)}")
    q.e(loads + "\ns_waitcnt vmcnt(0)\n" + check)
    q.e(f"s_cbranch_vccz {L}_ret\ns_sub_u32 s{sSP}, s{sSP}, 1\ns_cmp_lg_u32 s{sSP}, 0\ns_cbranch_scc1 {L}_lp\ns_branch {L}_ret")
    c.slow.append(q.finalize())
    if OPT.get('nospin') and 'v211' not in check: return code(check + f"\n{L}_ret:")
    return code(check + f"\ns_cbranch_vccnz {L}_slow\n{L}_ret:")
def retry2(c, loads, regs, tmp, sp):
    k = c.npoll; c.npoll += 1
    L = f"{c.typ}_poll{k}"
    chk = f"v_xor_b32 v{tmp}, s{sN}, v{regs[0]}\n" + "".join(f"v_bitop3_b32 v{tmp}, v{tmp}, v{r}, s{sN} bitop3:0xf6\n" for r in regs[1:]) + f"v_cmp_ne_u32 s[{sp}:{sp+1}], 0, v{tmp}\ns_cmp_lg_u64 s[{sp}:{sp+1}], 0"
    q = Prog()
    q.e(f"{L}_slow:\ns_mov_b32 s{sSP}, 0x40000\n{L}_lp:\ns_sleep {OPT.get('sleep', 1)}")
    q.e(loads + "\ns_waitcnt vmcnt(0)\n" + chk)
    q.e(f"s_cbranch_scc0 {L}_ret\ns_sub_u32 s{sSP}, s{sSP}, 1\ns_cmp_lg_u32 s{sSP}, 0\ns_cbranch_scc1 {L}_lp\ns_branch {L}_ret")
    c.slow.append(q.finalize())
    if OPT.get('nospin'): return code(chk + f"\n{L}_ret:")
    return code(chk + f"\ns_cbranch_scc1 {L}_slow\n{L}_ret:")
def tagcheck(regs):
    t = f"v_xor_b32 v{vPV}, s{sN}, v{regs[0]}\n"
    for r in regs[1:]: t += f"v_bitop3_b32 v{vPV}, v{vPV}, v{r}, s{sN} bitop3:0xf6\n"
    return t + f"v_cmp_ne_u32 vcc, 0, v{vPV}"
NONCE_LD = lambda: f"buffer_load_dword v{vPT}, v{vZ}, {S(S_DBG)}, 0 offen sc1"
def nonce_get(c):
    return retry(c, NONCE_LD(), f"v_cmp_eq_u32 vcc, 0, v{vPT}") + code(f"v_readfirstlane_b32 s{sN}, v{vPT}")
def flag(soff):
    return code(f"buffer_store_dword v{vPT}, v{vFZ}, {S(S_WS)}, {soff} offen sc1", 'flag')

def nextkb(s, unit):
    return f"s_add_u32 s{s}, s{s}, {unit}\ns_cmp_eq_u32 s{s}, {10*unit}\ns_cselect_b32 s{s}, 0, s{s}"

def setup(p, opt):
    p.e("s_cmp_ge_u32 s2, 256\ns_cbranch_scc1 K_end")
    p.e("s_load_dwordx16 s[64:79], s[0:1], 0\ns_load_dwordx16 s[80:95], s[0:1], 64")
    p.e(f"v_and_b32 v{vL}, 63, v0\nv_lshrrev_b32 v{t0}, 6, v0\nv_lshlrev_b32 v{vL16}, 4, v{vL}")
    p.e(f"v_readfirstlane_b32 s{sW}, v{t0}")
    for i in range(opt.get('d0', 0)): p.e('s_sleep 36')
    for i in range(opt.get('pad', 0)): p.e(f"s_mov_b32 s{sT3}, 0x12345")
    p.e(f"s_and_b32 s{sMT}, s2, 3\ns_lshl_b32 s{sMT}, s{sMT}, 2\ns_bfe_u32 s{sT0}, s2, 0x20003\ns_add_u32 s{sMT}, s{sMT}, s{sT0}")
    p.e(f"s_and_b32 s{sSL}, s2, 4\ns_lshl_b32 s{sSL}, s{sSL}, 1\ns_lshr_b32 s{sT0}, s2, 5\ns_add_u32 s{sSL}, s{sSL}, s{sT0}\ns_lshr_b32 s{sI}, s{sSL}, 1")
    if opt.get('cpf', 1):
        p.e(f"s_getpc_b64 s[4:5]\nK_pc:\ns_mov_b32 s6, K_X-K_pc\ns_bitcmp1_b32 s{sSL}, 0\ns_cselect_b32 s6, K_Y-K_pc, s6\ns_and_b32 s7, s{sI}, 3\ns_lshl_b32 s7, s7, 2\ns_and_b32 s8, s{sMT}, 3\ns_add_u32 s7, s7, s8")
        p.e(f"s_lshl_b32 s7, s7, 11\ns_add_u32 s6, s6, s7\nv_lshrrev_b32 v{t5}, 4, v0\nv_lshlrev_b32 v{t5}, 7, v{t5}\nv_add_u32 v{t5}, s6, v{t5}\nv_min_u32 v{t5}, K_end-K_pc, v{t5}\nglobal_load_dword v250, v{t5}, s[4:5]", tag='cpf')
    p.e(f"s_mul_i32 s{sROT}, s{sMT}, {opt.get('rm', 3)}\ns_mul_i32 s{sT0}, s{sT0}, {opt.get('rs', 1)}\ns_add_u32 s{sROT}, s{sROT}, s{sT0}\ns_mul_i32 s{sT1}, s{sROT}, 205\ns_lshr_b32 s{sT1}, s{sT1}, 11\ns_mul_i32 s{sT1}, s{sT1}, 10\ns_sub_u32 s{sROT}, s{sROT}, s{sT1}")
    p.e(f"s_lshl_b32 s{sKX}, s{sROT}, 7\ns_mov_b32 s{sKB}, s{sROT}\ns_mov_b32 s{sMASK}, 0xffff0000")
    p.e(f"s_lshl_b32 s{sFL}, s{sMT}, 4\ns_add_u32 s{sFL}, s{sFL}, s{sSL}\ns_lshl_b32 s{sFL}, s{sFL}, 7\ns_add_u32 s{sFL}, s{sFL}, {HF_OFF}")
    p.e(f"s_lshl_b32 s{sT0}, s{sMT}, 7\ns_lshl_b32 s{sT1}, s{sW}, 5\ns_add_u32 s{sT1}, s{sT0}, s{sT1}\ns_mul_i32 s{sXR}, s{sT1}, 1280")
    for i in range(1, 4): p.e(f"s_add_u32 s{sXR+i}, s{sXR}, {(8*1280-1024)*i}")
    p.e(f"s_lshl_b32 s{sLB}, s{sW}, 12")
    p.e(f"s_lshl_b32 s{sT1}, s{sSL}, 3\ns_add_u32 s{sT0}, s{sT0}, s{sT1}\ns_lshl_b32 s{sT1}, s{sW}, 1\ns_add_u32 s{sT0}, s{sT0}, s{sT1}")
    p.e(f"s_mul_i32 s{sU0}, s{sT0}, 1280\ns_lshl_b32 s{sU1}, s{sT0}, 4\ns_add_u32 s{sU1}, s{sU1}, {ST_OFF}")
    p.e(f"v_lshrrev_b32 v{t0}, 3, v{vL}\nv_and_b32 v{t1}, 7, v{vL}")
    p.e(f"v_lshrrev_b32 v{t2}, 5, v{vL}\nv_mul_u32_u24 v{t2}, 1280, v{t2}\nv_and_b32 v{t3}, 31, v{vL}\nv_lshl_add_u32 v{t4}, v{t3}, 3, v{t2}")
    p.e(f"v_lshrrev_b32 v{t2}, 4, v{vL}\nv_xor_b32 v{t2}, v{t1}, v{t2}\nv_lshlrev_b32 v{t2}, 4, v{t2}\nv_mul_u32_u24 v{t3}, 1280, v{t0}")
    p.e(f"v_add_u32 v{vXD}, v{t2}, v{t3}\nv_xor_b32 v{vXD+1}, 64, v{vXD}")
    p.e(f"v_mov_b32 v{vZ}, 0\nv_mov_b32 v{t2}, {OOB}\nv_cmp_eq_u32 vcc, 0, v0\nv_cndmask_b32 v{vFZ}, v{t2}, v0, vcc")
    p.e(f"s_cmp_eq_u32 s2, 0\ns_cselect_b32 s{sT0}, 0, {OOB}\nv_or_b32 v{vPA}, s{sT0}, v{vFZ}")

def first_loads(p, b0):
    x0 = x_dma(0)
    k1 = [i for i, it in enumerate(x0) if isinstance(it, I) and it.kind == 'vm']
    k2 = [i for i, it in enumerate(b0) if isinstance(it, I) and it.kind == 'vm']
    m0x = [it for it in x0 if isinstance(it, I) and ('x', 'm0') in it.defs][0]
    m0b = [it for it in b0 if isinstance(it, I) and ('x', 'm0') in it.defs][0]
    p.extend(x0[:k1[0] + 1]); p.extend(b0[:k2[1] + 1])
    p.add(I(m0x.text)); p.extend(x0[k1[0] + 1:])
    p.add(I(m0b.text)); p.extend(b0[k2[1] + 1:])
    srd(p, S_DBG, P_DBG, 256)
    p.e(f"s_or_b32 s{sT3}, s2, 1\nv_mov_b32 v{vPT}, s{sT3}\nbuffer_store_dword v{vPT}, v{vPA}, {S(S_DBG)}, 0 offen sc1")
    if OPT.get('stouch', 21):
        G = OPT.get('stouch', 21)
        n = (WS_USED >> G) // 64 + 1
        p.e(f"s_and_b32 s28, s{sSL}, 7\ns_lshl_b32 s28, s28, 1\ns_and_b32 s29, s{sMT}, 1\ns_add_u32 s28, s28, s29\ns_lshl_b32 s28, s28, 2\ns_add_u32 s28, s28, s{sW}\ns_lshl_b32 s28, s28, {G}")
        for i in range(n):
            p.e(f"s_min_u32 s29, s28, {WS_USED - 4 & ~3}\ns_load_dword s30, s[{P_WS}:{P_WS+1}], s29\ns_min_u32 s29, s28, {2048*2560 - 4}\ns_load_dword s31, s[{P_OUT}:{P_OUT+1}], s29\ns_add_u32 s28, s28, {64 << G}")

def early_loads(p, typ):
    for i in range(5):
        p.e(f"buffer_load_dwordx2 {V(RT+2*i,2)}, v{t4}, {S(S_X)}, s{sU0} offen offset:{256*i}", tag='sx')
def code_prefetch(p, typ):
    if OPT.get('cpf', 1) == 2:
        p.e(f"s_getpc_b64 s[24:25]\n{typ}_pc:\nv_lshlrev_b32 v{t5}, 7, v0\nv_min_u32 v{t5}, {typ}_end-{typ}_pc, v{t5}\nglobal_load_dword v250, v{t5}, s[24:25]")

CPN = [0]
def code_ahead(typ, dst, tmp, sp, skip=2048, lines=32):
    L = f"{typ}_ca{CPN[0]}"; CPN[0] += 1
    return [Group(code(f"s_getpc_b64 s[{sp}:{sp+1}]\n{L}:\nv_lshrrev_b32 v{tmp}, {6 - (lines.bit_length() - 1)}, v0\nv_lshlrev_b32 v{tmp}, 7, v{tmp}\nv_add_u32 v{tmp}, {skip}, v{tmp}\n"
                f"v_min_u32 v{tmp}, {typ}_end-{L}, v{tmp}\nglobal_load_dword v{dst}, v{tmp}, s[{sp}:{sp+1}]"))]

def x_dma(j):
    q = Prog()
    q.wait_lgkm(('xr', j - 3))
    q.e(f"v_add_u32 v{vXC}, s{sKX}, v{vXD}\nv_add_u32 v{vXC+1}, s{sKX}, v{vXD+1}\ns_add_u32 m0, s{sLB}, {XS + (j % 3) * 16384}")
    for i in range(4):
        q.e(f"buffer_load_dwordx4 v{vXC+(i&1)}, {S(S_X)}, s{sXR+i} offen offset:{1024*i}{NT('ntx')} lds", tag=('x', j))
    q.e(nextkb(sKX, 128))
    return q.items
def x_read(j):
    q = Prog(); q.wait_vm(('x', j))
    for s in range(4): q.e(f"ds_read_b128 {A(XF+16*j+4*s,4)}, v{vSR+s} offset:{(j % 3) * 16384}", ('xr', j))
    return q.items

def ffn_dma(base, j):
    q = Prog()
    q.e(f"s_mul_i32 s{sD0}, s{sKB}, {64*3072}\ns_add_u32 s{sD0}, s{sD0}, s{sDB}\ns_add_u32 s{sD1}, s{sD0}, {8*3072-2048}\ns_add_u32 m0, s{sLB}, {base}")
    q.e(f"buffer_load_dwordx4 v{vD}, {S(S_W1)}, s{sD0} offen{NT('ntw')} lds", tag=('slot', j))
    q.e(f"buffer_load_dwordx4 v{vD+1}, {S(S_W3)}, s{sD0} offen offset:1024{NT('ntw')} lds", tag=('slot', j))
    q.e(f"buffer_load_dwordx4 v{vD}, {S(S_W1)}, s{sD1} offen offset:2048{NT('ntw')} lds", tag=('slot', j))
    q.e(f"buffer_load_dwordx4 v{vD+1}, {S(S_W3)}, s{sD1} offen offset:3072{NT('ntw')} lds", tag=('slot', j))
    q.e(nextkb(sKB, 1))
    return q.items
def ssm_dma(base, j):
    q = Prog()
    q.e(f"s_lshl_b32 s{sD0}, s{sKB}, 7\nv_add_u32 v{vDC}, s{sD0}, v{vDS}\ns_add_u32 m0, s{sLBS}, {base}")
    for t in range(4):
        q.e(f"buffer_load_dwordx4 v{vDC}, {S(S_B)}, s{sBT+t} offen offset:{1024*t}{NT('ntw')} lds", tag=('slot', j))
    q.e(f"s_add_u32 m0, s{sLBS}, {base + 4096}")
    q.e(f"buffer_load_dwordx4 v{vDC}, {S(S_B)}, s{sBT+4} offen{NT('ntw')} lds", tag=('slot', j))
    q.e(nextkb(sKB, 1))
    return q.items

def ffn_dma_addr(p):
    p.e(f"v_bfe_u32 v{t2}, v{vL}, 4, 1\nv_lshlrev_b32 v{t2}, 1, v{t2}\nv_xor_b32 v{t2}, v{t1}, v{t2}\nv_lshlrev_b32 v{t2}, 4, v{t2}")
    p.e(f"v_mul_u32_u24 v{t3}, 3072, v{t0}\nv_add_u32 v{vD}, v{t2}, v{t3}\nv_xor_b32 v{vD+1}, 64, v{vD}")
def ffn_srd(p):
    srd(p, S_W1, P_W1, 640 * 3072)
    srd(p, S_W3, P_W3, 640 * 3072 + 1024, -1024)

def common_addr(p):
    p.e(f"v_bfe_u32 v{t2}, v{vL}, 2, 1\nv_lshlrev_b32 v{t2}, 4, v{t2}\nv_bfe_u32 v{t3}, v{vL}, 3, 2\nv_lshl_add_u32 v{t2}, v{t3}, 2, v{t2}")
    p.e(f"v_and_b32 v{t3}, 3, v{vL}\nv_add_u32 v{t2}, v{t2}, v{t3}\nv_lshlrev_b32 v{vC1}, 4, v{t2}")
    p.e(f"v_bfe_u32 v{t3}, v{t2}, 1, 3\nv_lshrrev_b32 v{vSR}, 5, v{vL}\nv_xor_b32 v{t3}, v{t3}, v{vSR}\nv_lshlrev_b32 v{t3}, 4, v{t3}")
    p.e(f"v_lshl_add_u32 v{t3}, v{t2}, 7, v{t3}\nv_add_u32 v{vSR}, s{sLB}, v{t3}")
    for s in range(1, 4): p.e(f"v_xor_b32 v{vSR+s}, {32*s}, v{vSR}")
    p.e(f"v_bfe_u32 v{t2}, v{vL}, 2, 1\nv_lshlrev_b32 v{t2}, 10, v{t2}\nv_bfe_u32 v{t3}, v{vL}, 3, 3\nv_lshl_add_u32 v{t2}, v{t3}, 6, v{t2}")
    p.e(f"v_and_b32 v{t3}, 3, v{vL}\nv_lshl_add_u32 v{vH}, v{t3}, 4, v{t2}")
    for i in range(4): p.e(f"v_mov_b32 v{vONE+i}, 0x3f803f80")
    srd(p, S_WS, P_WS, WS_USED)
    p.e(f"s_lshl_b32 s{sT0}, s{sMT}, 1\ns_lshr_b32 s{sT1}, s{sW}, 1\ns_add_u32 s{sT0}, s{sT0}, s{sT1}\ns_mul_i32 s{sT0}, s{sT0}, 88")
    p.e(f"s_mul_i32 s{sT1}, s{sI}, 11\ns_add_u32 s{sT0}, s{sT0}, s{sT1}\ns_lshl_b32 s{sH}, s{sT0}, 12")
    p.e(f"s_and_b32 s{sT1}, s{sW}, 1\ns_lshl_b32 s{sT1}, s{sT1}, 11\ns_add_u32 s{sH}, s{sH}, s{sT1}")

def tr_addrs(p, base):
    p.e(f"v_bfe_u32 v{t0}, v{vL}, 4, 1\nv_lshrrev_b32 v{t1}, 5, v{vL}\nv_lshlrev_b32 v{t1}, 11, v{t1}\nv_lshl_add_u32 v{t1}, v{t0}, 10, v{t1}")
    p.e(f"v_bfe_u32 v{t2}, v{vL}, 2, 2\nv_lshl_add_u32 v{t1}, v{t2}, 7, v{t1}\nv_and_b32 v{t3}, 3, v{vL}\nv_lshl_add_u32 v{t1}, v{t3}, 3, v{t1}")
    p.e(f"v_bfe_u32 v{t2}, v{vL}, 3, 1\nv_lshl_add_u32 v{t2}, v{t0}, 1, v{t2}\nv_lshl_add_u32 v{t1}, v{t2}, 5, v{t1}")
    p.e(f"v_add_u32 v{vT}, {base}, v{t1}")
    for tau in range(1, 4): p.e(f"v_xor_b32 v{vT+tau}, {32*tau}, v{vT}")

def touch():
    q = Prog()
    q.e(f"v_lshlrev_b32 v{vPA}, 19, v{vL}\nv_min_u32 v{vPA}, {WS_USED - 4}, v{vPA}\nbuffer_load_dword v250, v{vPA}, {S(S_WS)}, 0 offen")
    q.e(f"v_min_u32 v{vPA}, {2048*2560 - 4}, v{vPA}\nglobal_load_dword v250, v{vPA}, s[{P_OUT}:{P_OUT+1}]")
    return q.items

def stats_job(p):
    R = RT; aQ, aS = TMP, TMP + 1
    p.e(f"v_mov_b32 v{aS}, 0\nv_mov_b32 v{aQ}, 0")
    for d in range(10):
        p.e(f"v_dot2c_f32_bf16 v{aS}, v{vONE}, v{R+d}\nv_dot2c_f32_bf16 v{aQ}, v{R+d}, v{R+d}")
    p.e("s_nop 2")
    for perm in ("quad_perm:[1,0,3,2] row_mask:0xf", "quad_perm:[2,3,0,1] row_mask:0xf", "row_half_mirror row_mask:0xf", "row_mirror row_mask:0xf", "row_bcast:15 row_mask:0xa"):
        for r in (aS, aQ): p.e(f"v_add_f32_dpp v{r}, v{r}, v{r} {perm} bank_mask:0xf")
    inv = f2u(1.0 / 640)
    p.e(f"v_mul_f32 v{aS}, {inv}, v{aS}\nv_mul_f32 v{aQ}, {inv}, v{aQ}\nv_fma_f32 v{aQ}, -v{aS}, v{aS}, v{aQ}\nv_max_f32 v{aQ}, 0, v{aQ}")
    p.e(f"v_sub_f32 v{aS}, 0, v{aS}\nv_cvt_pk_bf16_f32 v{aS}, v{aS}, v{aS}")
    bf16r(p, aQ)
    p.e(f"v_add_f32 v{aQ}, {f2u(1e-5)}, v{aQ}")
    bf16r(p, aQ)
    p.e(f"v_sqrt_f32 v{aQ}, v{aQ}")
    bf16r(p, aQ)
    p.e(f"v_rcp_f32 v{aQ}, v{aQ}")
    p.e(f"v_and_b32 v{R}, 31, v{vL}\nv_cmp_eq_u32 vcc, 16, v{R}\nv_lshrrev_b32 v{R}, 1, v{vL}\nv_and_b32 v{R}, 16, v{R}\nv_mov_b32 v{R+1}, {OOB}\nv_cndmask_b32 v{R}, v{R+1}, v{R}, vcc")
def stats_store():
    return code(f"v_mov_b32 v{TMP+2}, s{sN}\nv_mov_b32 v{TMP+3}, s{sN}\nbuffer_store_dwordx4 {V(TMP,4)}, v{RT}, {S(S_WS)}, s{sU1} offen sc1", 'pub')

def cs_store_addr(q, gidexpr):
    q.e(gidexpr)
    q.e(f"s_mul_i32 s{sU3}, s{sT0}, 12800\ns_add_u32 s{sU3}, s{sU3}, {CS_OFF}\ns_mul_i32 s{sT0}, s{sROT}, 1280\ns_add_u32 s{sU2}, s{sU3}, s{sT0}")
    q.e(f"s_lshl_b32 s{sT0}, s{sW}, 8\ns_add_u32 s{sU2}, s{sU2}, s{sT0}\ns_add_u32 s{sU3}, s{sU3}, s{sT0}")
    q.e(f"s_cmp_lt_u32 s{sMT}, 10\ns_cselect_b32 s{sT0}, 32, 0\nv_cmp_gt_u32 vcc, s{sT0}, v{vL}\nv_lshlrev_b32 v{t4}, 3, v{vL}\nv_mov_b32 v{t5}, {OOB}\nv_cndmask_b32 v{t4}, v{t5}, v{t4}, vcc")

def cs_produce_ffn(acc, gidexpr):
    q = Prog()
    q.e(f"s_lshl_b32 s{sT0}, s{sW}, 5\nv_xor_b32 v{vTW}, s{sT0}, v{vT}")
    for s in range(4):
        for t in range(2):
            q.e(f"ds_read_b64_tr_b16 {A(CSF+4*s+2*t,2)}, v{vTW} offset:{s*4096 + t*512}")
    cs_store_addr(q, gidexpr)
    for s in range(4):
        q.e(f"v_mfma_f32_32x32x16_bf16 {V(acc,16)}, {V(vONE,4)}, {A(CSF+4*s,4)}, {'0' if s == 0 else V(acc,16)}")
    st = code(f"v_mov_b32 v{acc+1}, s{sN}\nbuffer_store_dwordx2 {V(acc,2)}, v{t4}, {S(S_WS)}, s{sU2} offen sc1", 'pub')
    return q.items, st

def cs_consume(c, ntile, R0):
    q = Prog()
    q.e(f"v_lshrrev_b32 v{vPA}, 5, v{vL}\nv_mul_u32_u24 v{vPA}, 6400, v{vPA}\nv_and_b32 v{t5}, 31, v{vL}\nv_lshl_add_u32 v{vPA}, v{t5}, 3, v{vPA}")
    q.e(f"s_add_u32 s{sU2}, s{sU3}, 3840")
    rounds = [(R0, 0)]
    ld = ""
    for i in range(5): ld += f"buffer_load_dwordx2 {V(R0+2*i,2)}, v{vPA}, {S(S_WS)}, s{sU3 if i < 3 else sU2} offen offset:{1280*(i%3)} sc1\n"
    if ntile == 5:
        q.e(f"s_lshl_b32 s86, s{sW}, 8\ns_sub_u32 s86, 1024, s86\nv_add_u32 v{vTW}, s86, v{vPA}")
        for i in range(5): ld += f"buffer_load_dwordx2 {V(R0+10+2*i,2)}, v{vTW}, {S(S_WS)}, s{sU3 if i < 3 else sU2} offen offset:{1280*(i%3)} sc1\n"
        rounds.append((R0 + 10, 1))
    a = (q.items, code(ld))
    q = Prog()
    q.extend(retry(c, ld, tagcheck([R0 + 1 + 2 * i for i in range(5 * len(rounds))])))
    q.e(f"v_cmp_gt_u32 vcc, 32, v{vL}")
    for (R, which) in rounds:
        q.e(f"v_add_f32 v{R}, v{R}, v{R+2}\nv_add_f32 v{R+4}, v{R+4}, v{R+6}\nv_add_f32 v{R}, v{R}, v{R+8}\nv_add_f32 v{R}, v{R}, v{R+4}")
        q.e(f"v_mov_b32 v{R+1}, v{R}\nv_mov_b32 v{R+6}, 0\nv_mov_b32 v{R+7}, 0\nv_permlane32_swap_b32 v{R}, v{R+1}\nv_add_f32 v{R}, v{R}, v{R+1}\nv_cndmask_b32 v{R}, 0, v{R}, vcc")
        q.e(f"v_cvt_pk_bf16_f32 v{R+1}, v{R}, v{R}\nv_and_b32 v{R+1}, s{sMASK}, v{R+1}\nv_sub_f32 v{R}, v{R}, v{R+1}")
        q.e(f"v_cvt_pk_bf16_f32 v{R+4}, v{R+1}, v{R}\nv_and_b32 v{R+2}, s{sMASK}, v{R+4}\nv_sub_f32 v{R}, v{R}, v{R+2}")
        q.e(f"v_cvt_pk_bf16_f32 v{R+5}, v{R}, 0")
        if which == 0:
            q.e(f"s_lshr_b32 s86, s{sLB}, 2\nv_add_u32 v{t5}, s86, v{vL16}")
            q.e(f"ds_write_b128 v{t5}, {V(R+4,4)} offset:{EXT_L}", tag='ext')
        else:
            q.e(f"ds_write_b128 v{vL16}, {V(R+4,4)} offset:{EXT_L + 4096}", tag='ext')
    return a, q.items
def ext_read(ntile):
    return code("\n".join(f"ds_read_b128 {A(EXTW+4*t,4)}, v{vL16} offset:{EXT_L + 1024*t}" for t in range(ntile)))

def stats_consume(c):
    q = Prog()
    q.e(f"s_lshl_b32 s87, s{sMT}, 11\ns_lshl_b32 s86, s{sW}, 9\ns_add_u32 s87, s87, s86\ns_add_u32 s{sU0}, s87, {ST_OFF}")
    ld = f"buffer_load_dwordx4 {V(vEX,4)}, v{vC1}, {S(S_WS)}, s{sU0} offen sc1"
    q.e(ld)
    a = q.items
    q = Prog()
    q.extend(retry(c, ld, tagcheck([vEX + 2, vEX + 3])))
    if c.typ == 'Y':
        q.e(f"s_lshl_b32 s{sT0}, s{sW}, 7\ns_add_u32 s{sT0}, s{sT0}, 159744")
        q.e(f"v_lshrrev_b32 v{t3}, 2, v{vC1}\nv_add_u32 v{t3}, s{sT0}, v{t3}\nds_write_b32 v{t3}, v{vEX}")
        q.e(f"v_lshrrev_b32 v{t2}, 5, v{vL}\nv_lshlrev_b32 v{t2}, 6, v{t2}\nv_add_u32 v{t2}, s{sT0}, v{t2}")
        for i in range(4): q.e(f"ds_read_b128 {V(RT+4*i,4)}, v{t2} offset:{16*i}")
    q.e(f"v_mul_f32 v{vC1}, {NLOG2E}, v{vEX}\nv_rcp_f32 v{vC2}, v{vEX}\nv_mov_b32 v{vEX}, v{vEX+1}\nv_mov_b32 v{vEX+2}, v{vEX+1}\nv_mov_b32 v{vEX+3}, v{vEX+1}")
    q.e(f"v_mul_f32 v{vC2}, v{vC2}, v{vC2}")
    return a, q.items

def ffn_epi(acc, pos, imm):
    p = Prog(); tmp = TMP
    for r in range(8): p.e(f"v_mul_f32 v{tmp+r}, v{vC1}, v{acc+r}")
    for r in range(8): p.e(f"v_exp_f32 v{tmp+r}, v{tmp+r}\nv_mul_f32 v{acc+r}, v{acc+r}, v{acc+8+r}")
    for r in range(8): p.e(f"v_fma_f32 v{tmp+r}, v{tmp+r}, v{vC2}, v{vC2}")
    for r in range(8): p.e(f"v_rcp_f32 v{tmp+r}, v{tmp+r}")
    p.e(f"s_add_u32 s{sT2}, s{sH}, {pos*4096}")
    for r in range(8): p.e(f"v_mul_f32 v{acc+r}, v{acc+r}, v{tmp+r}")
    for r in range(4): p.e(f"v_cvt_pk_bf16_f32 v{acc+8+r}, v{acc+2*r}, v{acc+2*r+1}")
    p.e(f"buffer_store_dwordx4 {V(acc+8,4)}, v{vH}, {S(S_WS)}, s{sT2} offen offset:{imm} sc1", tag='h')
    if OPT.get('dual'): p.e(f"buffer_store_dwordx4 {V(acc+8,4)}, v{vH}, {S(S_WS)}, s{sT2} offen offset:{imm}", tag='h')
    return p.items

class Ring:
    def __init__(self, reg, n, cur): self.reg = reg; self.n = n; self.cur = cur
    def off(self, base, span, out):
        if base < self.cur or base + span - self.cur > 65536:
            out += code("\n".join(f"v_add_u32 v{self.reg+i}, {(base - self.cur) & 0xffffffff}, v{self.reg+i}" for i in range(self.n)))
            self.cur = base
        return base - self.cur

def build_steps(c, kinds, slot_base, dma, NS, rT, rB, pre_extra, late):
    steps = []
    TMB = OPT.get('tmb', 3); TM0 = 80 - 4 * TMB
    reads = []
    for n in range(80):
        j, s = divmod(n, 4); buf = BF + (n % 3) * 20 if kinds[j] == 'S' else (160, 180, 196)[n % 3]
        base = slot_base(j)
        rd = []
        if kinds[j] == 'F':
            acc = ACC1 if (j < 10) else ACC2
            mf = []
            for e in range(4):
                tau, jj, ss = e, j, s
                if n >= TM0: tau, jj, ss = (n - TM0) // TMB, 20 - TMB + (n - TM0) % TMB, e
                o = []
                off = rT.off(slot_base(jj), 16384, o)
                o += code("\n".join(f"ds_read_b64_tr_b16 {A(buf+4*e+2*t,2)}, v{vT+tau} offset:{off + ss*4096 + t*512}" for t in range(2)), ('rd', n))
                rd.append(o)
                cc = "0" if n % 40 == 0 else V(acc + 16 * tau, 16)
                mf += code(f"v_mfma_f32_32x32x16_bf16 {V(acc+16*tau,16)}, {A(buf+4*e,4)}, {A(XF+4*((4*jj+ss)%40),4)}, {cc}")
        else:
            mf = []
            for t in range(5):
                o = []
                off = rB.off(base, 20480, o)
                o += code(f"ds_read_b128 {A(buf+4*t,4)}, v{vBR+s} offset:{off + 1024*t}", ('rd', n))
                rd.append(o)
                cc = "0" if n == 0 else V(ACC1 + 16 * t, 16)
                mf += code(f"v_mfma_f32_32x32x16_bf16 {V(ACC1+16*t,16)}, {A(XF+4*n,4)}, {A(buf+4*t,4)}, {cc}")
        reads.append(rd)
        steps.append(dict(pre=[], mf=mf, rd=[[] for _ in mf]))
    for n in range(80):
        st = steps[n]; j, s = divmod(n, 4)
        if c.opt.get('st0') is not None: st['pre'] += code(f'.set STEPMARK{c.typ}{n}, 0')
        if c.opt.get('ts') == 2 and s == 0: st['pre'] += [LazyStamp(c.ts)]
        if OPT.get('dstep') == n: st['pre'] += code('s_sleep 36')
        st['pre'] += [Marker('lgkm', ('rd', n))]
        syncs = [j + 1] if (s == 2 and j + 1 <= 20 - TMB) else []
        if n == TM0 - 1: syncs = list(range(21 - TMB, 20))
        if syncs:
            sy = [x for k in syncs for x in pre_extra.get(('sync', k), []) + [Marker('vm', ('slot', k))]] + [Marker('lgkm', ['ext', 'agw'])] + ([] if OPT.get('nobar') else code("s_barrier")) + [x for k in syncs for x in pre_extra.get(('post', k), [])]
            st['rd'][0] += sy
        if n + 2 < 80:
            src = reads[n + 2]; g = len(st['mf'])
            st['rd'][min(len(src), g) - 1] += [Marker('lgkm', ('rd', n + 1))]
            for i, o in enumerate(src): st['rd'][min(i, g - 1)] += o
        if s == 1 and j + 1 < 10:
            st['rd'][0] += x_read(j + 1)
    for tau in range(4):
        st = steps[TM0 + TMB * tau + TMB - 1]
        st['mf'] += code(f"v_mfma_f32_32x32x16_bf16 {V(ACC2+16*tau,16)}, {A(EXTW+4*tau,4)}, {V(vEX,4)}, {V(ACC2+16*tau,16)}"); st['rd'] += [[]]
    c.TM0, c.TMB = TM0, TMB
    va = VmAlloc(steps); c.va = va
    LR, LX = OPT.get('leadr', 7), OPT.get('leadx', 5)
    E1 = OPT.get('e1', 1)
    va.place(0, x_dma(2), stride=E1); va.place(0, dma(2), stride=E1)
    for its in late.get(0, []): va.place(0, its, stride=E1)
    va.place(1, x_dma(3), by=9 - LX); va.place(0, dma(3), by=10 - LR)
    va.place(3, x_dma(4), by=13 - LX); va.place(3, dma(4), by=14 - LR)
    for j in range(1, 20):
        if j - 1 + NS < 20: va.place(4 * j + 2, dma(j - 1 + NS), by=4 * (j - 2 + NS) + 2 - LR)
        if j + 4 < 10: va.place(4 * j + 3, x_dma(j + 4), by=4 * (j + 3) + 1 - LX)
        for its in late.get(j, []): va.place(4 * j + 3, its)
    c.joblast = max([e[3][0] for e in va.log if e[1] is None] + [0])
    if OPT.get('vlog'): print(va.log, file=sys.stderr)
    return steps, reads[0], reads[1]

class VmAlloc:
    def __init__(self, steps):
        self.steps = steps; self.used = set(); self.dma_next = 0; self.log = []; self.b_next = 0; self.iv = []
        self.gaps = [(n, g) for n, st in enumerate(steps) for g in range(len(st['mf']))]
        self.first = {}
        for i, (n, g) in enumerate(self.gaps): self.first.setdefault(n, i)
    def light(self, n, its):
        i = self.first[n]
        for it in its:
            while i in self.used: i += 1
            a, b = self.gaps[i]
            self.steps[a]['rd'][b] += it.its if isinstance(it, Group) else [it]; self.used.add(i)
        return self.gaps[i]
    def place(self, n, its, dma=True, stride=None, by=None):
        stride = stride or OPT.get('vstride', 2)
        groups, cur = [], []
        for it in its:
            cur.append(it)
            if isinstance(it, I) and it.kind == 'vm': groups.append(cur); cur = []
        if cur: groups[-1] += cur
        i0 = self.first[n]
        if dma == 'b': i0 = max(i0, self.b_next)
        elif dma is True: i0 = max(i0, self.dma_next)
        inside = (lambda i: any(a < i < b for a, b in self.iv)) if dma == 'l' else (lambda i: False)
        if dma == 'l': i0 = max(i0, self.b_next)
        for st_ in range(stride, 0, -1):
            i = i0; pos = []; used = set(self.used)
            for grp in groups:
                while inside(i) or any((i + d) in used for d in range(-st_ + 1, st_)): i += 1
                pos.append(i); used.add(i)
            if by is None or i < self.first[max(by, 0)] or st_ == 1: break
        if i >= len(self.gaps): return False
        for grp, k in zip(groups, pos):
            a, b = self.gaps[k]
            self.steps[a]['rd'][b] += grp; self.used.add(k)
        self.log.append((n, by, self.gaps[pos[0]], self.gaps[pos[-1]]))
        if dma in ('b', 'l'): self.b_next = i + 1
        elif dma: self.dma_next = i + 1; self.iv.append((pos[0], pos[-1]))
        return True

def flat(rd): return [x for o in rd for x in o]

sJW, sJ0, sJ1, sJ2, sJ3, sJ4 = 16, 17, 18, 19, sLBS, sBT
def lam_consts(q, L, pows, coef):
    lr, li, ld, a2, rev, O, u = L + 1, L + 2, L + 3, L + 4, L + 5, L + 8, L + 16
    q.e(f"v_lshlrev_b32 v{lr}, 16, v{lr}\nv_lshlrev_b32 v{li}, 16, v{li}\nv_lshlrev_b32 v{ld}, 16, v{ld}")
    q.e(f"v_mul_f32 v{ld}, {LOG2E}, v{ld}\nv_exp_f32 v{ld}, v{ld}")
    bf16r(q, ld)
    q.e(f"v_mul_f32 v{a2}, v{ld}, v{lr}\nv_mul_f32 v{rev}, v{ld}, v{li}\nv_mul_f32 v{a2}, {LOG2E}, v{a2}\nv_mul_f32 v{rev}, {INV2PI}, v{rev}")
    for n, k in enumerate(pows):
        if k != 1: q.e(f"v_mul_f32 v{u}, {f2u(float(k))}, v{a2}\nv_mul_f32 v{u+1}, {f2u(float(k))}, v{rev}\nv_exp_f32 v{u}, v{u}\nv_fract_f32 v{u+1}, v{u+1}")
        else: q.e(f"v_exp_f32 v{u}, v{a2}\nv_fract_f32 v{u+1}, v{rev}")
        q.e(f"v_cos_f32 v{u+2}, v{u+1}\nv_sin_f32 v{u+3}, v{u+1}\nv_mul_f32 v{O+2*n}, v{u}, v{u+2}\nv_mul_f32 v{O+2*n+1}, v{u}, v{u+3}")
    if coef:
        q.e(f"v_add_f32 v{u}, -1.0, v{O}\nv_mul_f32 v{u+1}, v{lr}, v{lr}\nv_fmac_f32 v{u+1}, v{li}, v{li}\nv_rcp_f32 v{u+1}, v{u+1}")
        q.e(f"v_mul_f32 v{u+2}, v{u}, v{lr}\nv_fmac_f32 v{u+2}, v{O+1}, v{li}\nv_mul_f32 v{u+3}, v{O+1}, v{lr}\nv_fma_f32 v{u+3}, -v{u}, v{li}, v{u+3}")
        q.e(f"v_add_f32 v{u+1}, v{u+1}, v{u+1}\nv_mul_f32 v{L+4}, v{u+2}, v{u+1}\nv_mul_f32 v{L+5}, v{u+3}, v{u+1}")

def jobs(c):
    JL = ACC2 + 32
    q = Prog()
    q.e(f"s_lshl_b32 s{sT0}, s{sI}, 4\ns_add_u32 s{sT0}, s{sT0}, s{sMT}\ns_lshl_b32 s{sT0}, s{sT0}, 2\ns_add_u32 s{sJW}, s{sT0}, s{sW}\ns_lshl_b32 s{sJ3}, s{sW}, 13")
    q.e(f"s_min_u32 s{sT0}, s{sJW}, 479\ns_mul_i32 s{sJ1}, s{sT0}, 6554\ns_lshr_b32 s{sJ1}, s{sJ1}, 16\ns_mul_i32 s{sT2}, s{sJ1}, 10\ns_sub_u32 s{sJ0}, s{sT0}, s{sT2}")
    srd(q, S_J0, P_W2, 1536 * 1280)
    q.e(f"v_lshrrev_b32 v{t0}, 3, v{vL}\nv_and_b32 v{t1}, 7, v{vL}\nv_lshrrev_b32 v{t2}, 4, v{vL}\nv_lshlrev_b32 v{t2}, 1, v{t2}\nv_xor_b32 v{t2}, v{t1}, v{t2}\nv_lshlrev_b32 v{t2}, 4, v{t2}")
    q.e(f"v_mul_u32_u24 v{t3}, 1280, v{t0}\nv_add_u32 v{vBR}, v{t2}, v{t3}")
    q.e(f"s_mul_i32 s{sBT+1}, s{sJ1}, {32*1280}\ns_lshl_b32 s{sT3}, s{sJ0}, 7\ns_add_u32 s{sBT+1}, s{sBT+1}, s{sT3}")
    q.e(f"s_min_u32 s{sT0}, s{sJW}, 399\ns_mul_i32 s{sJ2}, s{sT0}, 6554\ns_lshr_b32 s{sJ2}, s{sJ2}, 16\ns_mul_i32 s{sT2}, s{sJ2}, 10\ns_sub_u32 s{sJW}, s{sT0}, s{sT2}")
    srd(q, S_J1, P_CRE, 640 * 1280)
    srd(q, S_AG, P_CIM, 640 * 1280 + 2048, -2048)
    q.e(f"s_mul_i32 s{sBT+2}, s{sJ2}, {16*1280}\ns_lshl_b32 s{sT3}, s{sJW}, 7\ns_add_u32 s{sBT+2}, s{sBT+2}, s{sT3}\ns_add_u32 s{sBT+3}, s{sBT+2}, {8*1280-1024}")
    q.e(f"v_lshlrev_b32 v{JL}, 1, v{vL}\nv_add_u32 v{JL}, s{sT3}, v{JL}")
    for k, ptr in enumerate((P_LRE, P_LIM, P_LDT)):
        q.e(f"global_load_ushort v{JL+1+k}, v{JL}, s[{ptr}:{ptr+1}]", tag='tbl')
    a = q.items
    q = Prog()
    q.e(f"s_add_u32 m0, s{sJ3}, {X_JOB}")
    for i in range(4):
        q.e(f"buffer_load_dwordx4 v{vBR}, {S(S_J0)}, s{sBT+1} offen offset:{1024*i}{NT('ntj')} lds", tag='jobA')
        if i < 3: q.e(f"s_add_u32 s{sBT+1}, s{sBT+1}, {8*1280-1024}")
    da = q.items
    q = Prog()
    q.e(f"s_add_u32 m0, s{sJ3}, {X_JOB + 4096}")
    for i, (sr, so) in enumerate(((S_J1, sBT + 2), (S_J1, sBT + 3), (S_AG, sBT + 2), (S_AG, sBT + 3))):
        q.e(f"buffer_load_dwordx4 v{vXD+(i&1)}, {S(sr)}, s{so} offen offset:{1024*i}{NT('ntj')} lds", tag='jobB')
    db = q.items
    q = Prog()
    q.e(f"v_bfe_u32 v{t0}, v{vL}, 2, 3\nv_lshrrev_b32 v{t1}, 5, v{vL}\nv_lshl_add_u32 v{t1}, v{t1}, 4, v{t0}")
    q.e(f"v_lshrrev_b32 v{t0}, 1, v{t0}\nv_lshlrev_b32 v{t0}, 5, v{t0}\nv_lshl_add_u32 v{t0}, v{t1}, 7, v{t0}\nv_and_b32 v{t1}, 3, v{vL}")
    q.e(f"v_lshl_add_u32 v{t0}, v{t1}, 3, v{t0}\nv_add_u32 v{vBR}, s{sJ3}, v{t0}")
    for tau in range(1, 4): q.e(f"v_xor_b32 v{vBR+tau}, {32*tau}, v{vBR}")
    q.e(f"s_mul_i32 s{sT0}, s{sJ1}, 43\ns_lshr_b32 s{sT0}, s{sT0}, 8\ns_mul_i32 s{sT0}, s{sT0}, 5\ns_add_u32 s{sT0}, s{sT0}, s{sJ1}\ns_mul_i32 s{sJ1}, s{sT0}, 5")
    q.wait_vm('jobA')
    for tau in range(4):
        for t in range(2): q.e(f"ds_read_b64_tr_b16 {V(CSA+4*tau+2*t,2)}, v{vBR+tau} offset:{X_JOB + 1024*t}")
    for tau in range(4):
        q.e(f"s_lshl_b32 s{sT0}, s{sJ0}, 2\ns_add_u32 s{sT0}, s{sT0}, {tau}\ns_mul_i32 s{sT1}, s{sT0}, 52\ns_lshr_b32 s{sT1}, s{sT1}, 8")
        q.e(f"s_mul_i32 s{sT2}, s{sT1}, 435\ns_add_u32 s{sT0}, s{sT0}, s{sT2}\ns_add_u32 s{sT0}, s{sT0}, s{sJ1}")
        q.e(f"s_lshl_b32 s{sT0}, s{sT0}, 10\ns_add_u32 s{sT0}, s{sT0}, {W2S_OFF}")
        q.e(f"buffer_store_dwordx4 {V(CSA+4*tau,4)}, v{vL16}, {S(S_WS)}, s{sT0} offen sc1", tag='pub')
    pa = q.items
    q = Prog()
    lam_consts(q, JL, [1], True)
    q.e(f"v_sub_f32 v{JL+5}, 0, v{JL+5}\nv_sub_f32 v{JL+6}, 0, v{JL+4}\nv_lshlrev_b32 v{t0}, 2, v{vL}\nv_add_u32 v{t0}, s{sJ3}, v{t0}")
    for k in range(3): q.e(f"ds_write_b32 v{t0}, v{JL+4+k} offset:{X_JOB + 256*k}")
    q.e(f"v_bfe_u32 v{t0}, v{vL}, 1, 3\nv_bfe_u32 v{t1}, v{vL}, 4, 1\nv_xor_b32 v{t0}, v{t0}, v{t1}\nv_lshlrev_b32 v{t0}, 4, v{t0}")
    q.e(f"v_and_b32 v{t2}, 15, v{vL}\nv_lshl_add_u32 v{t0}, v{t2}, 7, v{t0}\nv_add_u32 v{vBR}, s{sJ3}, v{t0}")
    for s in range(1, 4): q.e(f"v_xor_b32 v{vBR+s}, {32*s}, v{vBR}")
    q.e(f"v_lshrrev_b32 v{t2}, 5, v{vL}\nv_lshlrev_b32 v{t2}, 8, v{t2}\nv_lshl_add_u32 v{t2}, v{t1}, 5, v{t2}\nv_add_u32 v{vTW}, s{sJ3}, v{t2}")
    q.e(f"s_mul_i32 s{sT1}, s{sJ2}, 52\ns_lshr_b32 s{sT1}, s{sT1}, 8\ns_mul_i32 s{sT1}, s{sT1}, 435\ns_add_u32 s{sJ2}, s{sT1}, s{sJ2}")
    q.wait_vm('jobB')
    CR, CI, AL, BE, U = ACC2 + 16, ACC2 + 20, ACC2 + 32, ACC2 + 40, ACC2 + 24
    def rd(s):
        o = 24 * (s & 1) if False else 0
        q.e(f"ds_read_b128 {V(CR,4)}, v{vBR+s} offset:{X_JOB + 4096}\nds_read_b128 {V(CI,4)}, v{vBR+s} offset:{X_JOB + 4096 + 2048}")
        for h in range(2):
            q.e(f"ds_read_b128 {V(AL+4*h,4)}, v{vTW} offset:{X_JOB + 64*s + 16*h}\nds_read_b128 {V(BE+4*h,4)}, v{vTW} offset:{X_JOB + 256 + 64*s + 16*h}")
    for s in range(4):
        rd(s)
        q.e(f"s_lshl_b32 s{sT0}, s{sJW}, 2\ns_add_u32 s{sT0}, s{sT0}, {s}\ns_mul_i32 s{sT1}, s{sT0}, 52\ns_lshr_b32 s{sT1}, s{sT1}, 8\ns_mul_i32 s{sT1}, s{sT1}, 6")
        q.e(f"s_add_u32 s{sT0}, s{sT0}, s{sT1}\ns_mul_i32 s{sT0}, s{sT0}, 5\ns_add_u32 s{sT0}, s{sT0}, s{sJ2}\ns_lshl_b32 s{sT0}, s{sT0}, 10\ns_add_u32 s{sT0}, s{sT0}, {W2S_OFF + 30*1024}")
        for d in range(4):
            q.e(f"v_lshlrev_b32 v{U}, 16, v{CR+d}\nv_and_b32 v{U+1}, s{sMASK}, v{CR+d}\nv_lshlrev_b32 v{U+2}, 16, v{CI+d}\nv_and_b32 v{U+3}, s{sMASK}, v{CI+d}")
            q.e(f"v_mul_f32 v{U}, v{AL+2*d}, v{U}\nv_mul_f32 v{U+1}, v{AL+2*d+1}, v{U+1}\nv_fmac_f32 v{U}, v{BE+2*d}, v{U+2}\nv_fmac_f32 v{U+1}, v{BE+2*d+1}, v{U+3}")
            q.e(f"v_cvt_pk_bf16_f32 v{CSA+4*s+d}, v{U}, v{U+1}")
        q.e(f"buffer_store_dwordx4 {V(CSA+4*s,4)}, v{vL16}, {S(S_WS)}, s{sT0} offen sc1", tag='pub')
    q.e(f"s_lshl_b32 s{sT0}, s{sMT}, 7\ns_lshl_b32 s{sT1}, s{sI}, 11\ns_add_u32 s{sT0}, s{sT0}, s{sT1}\ns_add_u32 s{sBT+3}, s{sT0}, {WF_OFF}")
    return a, da, db, pa, q.items

def ext_mfma(acc, n, ffn):
    if ffn: return code("\n".join(f"v_mfma_f32_32x32x16_bf16 {V(acc+16*t,16)}, {A(EXTW+4*t,4)}, {V(vEX,4)}, {V(acc+16*t,16)}" for t in range(n)))
    return code("\n".join(f"v_mfma_f32_32x32x16_bf16 {V(acc+16*t,16)}, {V(vEX,4)}, {A(EXTW+4*t,4)}, {V(acc+16*t,16)}" for t in range(n)))

sBQ, sAO, sAP, sBC, sBD = 66, 67, 68, 64, 65
TAB = [70, 71, 72, 73, 74, 75, 76, 77, 78, 79, 84]
def k2_setup(c):
    q = Prog()
    ld = f"buffer_load_dword v249, v248, {S(S_WS)}, s69 offen sc1"
    a_, b_, c_ = 248, 249, 250
    q.e(f"s_lshr_b32 s86, s{sSL}, 3\ns_lshl_b32 s85, s86, 2\ns_add_u32 s85, s85, s{sW}\ns_and_b32 s87, s{sSL}, 7\ns_mul_i32 s87, s87, 5\ns_mov_b32 s69, {WF_OFF}")
    q.e(f"s_mul_i32 s88, s85, 6\ns_mul_i32 s85, s85, 5\ns_sub_u32 s84, s87, 6")
    q.e(f"v_min_u32 v{c_}, 21, v{vL}\nv_cmp_gt_u32 s[64:65], 12, v{c_}\nv_mov_b32 v{a_}, s84\nv_mov_b32 v{b_}, s88\nv_cndmask_b32 v{a_}, v{a_}, v{b_}, s[64:65]")
    q.e(f"v_mov_b32 v{b_}, s85\nv_mov_b32 v243, s87\nv_cndmask_b32 v{b_}, v{b_}, v243, s[64:65]\nv_lshrrev_b32 v243, 1, v{c_}\nv_add_u32 v{a_}, v{a_}, v243")
    q.e(f"v_and_b32 v{c_}, 1, v{c_}\nv_lshl_add_u32 v{b_}, v{c_}, 2, v{b_}\nv_lshrrev_b32 v{b_}, 2, v{b_}\nv_mad_u32_u24 v{a_}, v{a_}, 10, v{b_}\nv_lshrrev_b32 v{a_}, 2, v{a_}\nv_lshlrev_b32 v{a_}, 7, v{a_}")
    q.e(f"s_lshr_b32 s86, s{sSL}, 3\ns_lshl_b32 s85, s86, 2\ns_add_u32 s85, s85, s{sW}\ns_mul_i32 s85, s85, 11")
    q.e(f"s_and_b32 s87, s{sSL}, 7\ns_mul_i32 s87, s87, 88\ns_add_u32 s87, s87, s85\ns_mul_i32 s{sBQ}, s87, 5120\ns_add_u32 s{sBQ}, s{sBQ}, {W2S_OFF}")
    q.e(f"s_lshl_b32 s87, s{sMT}, 1\ns_add_u32 s88, s87, s86\ns_mul_i32 s88, s88, 88\ns_add_u32 s88, s88, s85\ns_lshl_b32 s{sAO}, s88, 12")
    q.e(f"s_xor_b32 s86, s86, 1\ns_add_u32 s88, s87, s86\ns_mul_i32 s88, s88, 88\ns_add_u32 s88, s88, s85\ns_lshl_b32 s{sAP}, s88, 12")
    q.e(f"s_and_b32 s85, s{sMT}, {3 if OPT.get('rot', 1) else 0}\ns_mov_b32 s{TAB[0]}, 0\ns_lshl_b32 s85, s85, 13\ns_add_u32 s{TAB[4]}, s85, {4*4096}")
    for i in range(1, 4): q.e(f"s_add_u32 s{TAB[i]}, s{TAB[i-1]}, 4096\ns_and_b32 s{TAB[i]}, s{TAB[i]}, {3*4096}")
    for i in range(5, 11): q.e(f"s_add_u32 s{TAB[i]}, s{TAB[i-1]}, 4096\ns_cmp_eq_u32 s{TAB[i]}, {11*4096}\ns_cselect_b32 s{TAB[i]}, {4*4096}, s{TAB[i]}")
    q.e(f"s_mov_b32 s85, s{sBQ}\ns_lshl_b32 s88, s{sW}, 10")
    return q.items, code(ld), retry2(c, ld, [249], 250, 86)
BH = [4 * f for f in range(28)] + [176, 212, 216] + [240, 244, 248, 252] + [112 + 4 * k for k in range(12)] + [160, 164, 168, 172, 180, 184, 188, 192]
def baddr(f):
    i, ct = divmod(f, 5)
    t = ""
    if ct == 0: t += f"s_lshr_b32 s{sBC}, s{TAB[i]}, 2\ns_add_u32 s{sBC}, s{sBC}, s{TAB[i]}\ns_add_u32 s{sBC}, s{sBC}, s{sBQ}\n"
    else: t += f"s_add_u32 s{sBC}, s{sBC}, 1024\n"
    return t
def bpre(f):
    return code(baddr(f) + f"buffer_load_dwordx4 {A(BH[f],4)}, v{vL16}, {S(S_WS)}, s{sBC} offen sc1", 'bpre')
def bstage(f, lds):
    return code(f"s_add_u32 m0, s88, {lds}\n" + baddr(f) + f"buffer_load_dwordx4 v{vL16}, {S(S_WS)}, s{sBC} offen sc1 lds", 'bst')
def add_bpre(c, first, stage):
    free = lambda f: 41 + f if f < 28 else 46
    f = 0
    order = list(range(35))
    while f < 35:
        if not c.va.place(max(first, free(f)), bpre(f), dma='b'): return f
        f += 1
    return f
def add_stage(c, first, stage):
    c.staged = []
    for k, (lds, e) in enumerate(stage):
        f = 35 + k
        if f >= 55: break
        i, ct = divmod(f, 5)
        t = f"s_add_u32 m0, s88, {lds}\ns_lshr_b32 s{sBD}, s{TAB[i]}, 2\ns_add_u32 s{sBD}, s{sBD}, s{TAB[i]}\ns_add_u32 s{sBD}, s{sBD}, s85\n"
        if ct: t += f"s_add_u32 s{sBD}, s{sBD}, {1024*ct}\n"
        t += f"buffer_load_dwordx4 v{vL16}, {S(S_WS)}, s{sBD} offen sc1 lds"
        if not c.va.place(max(first, e), code(t, 'bst'), dma='l'): break
        c.staged.append((f, lds))
    c.va.b_next = 0
def unstage(c):
    q = Prog()
    q.e(f"v_add_u32 v{vPA}, s88, v{vL16}\nv_add_u32 v{vTW}, 65536, v{vPA}\nv_add_u32 v{vEX}, 131072, v{vPA}")
    q.wait_vm('bst')
    for f, lds in c.staged:
        q.e(f"ds_read_b128 {A(BH[f],4)}, v{(vPA, vTW, vEX)[lds >> 16]} offset:{lds & 65535}")
    return q.items
def brest(c):
    out = []
    done = set(range(c.nb)) | {f for f, _ in c.staged}
    for f in range(55):
        if f in done: continue
        i, ct = divmod(f, 5)
        t = f"s_lshr_b32 s{sBC}, s{TAB[i]}, 2\ns_add_u32 s{sBC}, s{sBC}, s{TAB[i]}\ns_add_u32 s{sBC}, s{sBC}, s{sBQ}\n"
        if ct: t += f"s_add_u32 s{sBC}, s{sBC}, {1024*ct}\n"
        out.append(Group(code(t + f"buffer_load_dwordx4 {A(BH[f],4)}, v{vL16}, {S(S_WS)}, s{sBC} offen sc1", 'bpre')))
    if OPT.get('vlog'): print(c.typ, "direct", c.nb, "staged", len(c.staged), "rest", len(out), file=sys.stderr)
    return out

def k1_X(p, c):
    ts = c.ts; o = c.opt
    sb = lambda j: X_RING + (j % X_NS) * X_SLOT
    def dma(j):
        pre = code(f"s_add_u32 s{sDB}, s{sDB}, 128") if j == 10 else []
        return pre + ffn_dma(sb(j), j)
    JP = 0
    ja, jda, jdb, jpa, jpb = jobs(c)
    ffn_dma_addr(p)
    p.e(f"s_mul_i32 s{sDB}, s{sW}, {16*3072}\ns_mul_i32 s{sT0}, s{sI}, 384\ns_add_u32 s{sDB}, s{sDB}, s{sT0}")
    c.save_id(p)
    p.e("s_waitcnt lgkmcnt(0)")
    srd(p, S_X, P_X, 2048 * 1280); ffn_srd(p)
    first_loads(p, dma(0))
    c.start(p)
    early_loads(p, 'X')
    common_addr(p)
    tr_addrs(p, X_RING)
    code_prefetch(p, 'X')
    p.extend(ja)
    p.extend(x_dma(1)); p.extend(dma(1))
    p.e(NONCE_LD())
    ts(p)
    rT = Ring(vT, 4, X_RING)
    WS_ = o.get('wsync', 7)
    F1 = o.get('f1', 16)
    pre_extra = {('sync', WS_): [Marker('vm', 'pub')], ('post', WS_): flag(f"s{sBT+3}"), ('sync', F1): [Marker('vm', 'h')],
                 ('post', F1): code(f"buffer_store_dword v{vPT}, v{vFZ}, {S(S_WS)}, s{sFL} offen offset:4 sc1", 'flag')}
    JA = o.get('ja', 1); JB = o.get('jb', 1)
    steps, r0, r1 = build_steps(c, 'F' * 20, sb, dma, X_NS, rT, None, pre_extra, {} if o.get('nojob') else {o.get('jblk', 0): [jda, jdb]})
    p.extend(x_read(0))
    p.wait_vm(('slot', 0)); p.e("s_barrier")
    p.extend(flat(r0)); p.extend(flat(r1))
    ts(p)
    cs1, cs1s = cs_produce_ffn(ACC2, f"s_mul_i32 s{sT0}, s{sI}, 3")
    sl, su = stats_consume(c); cl, cu = cs_consume(c, 4, ACC2)
    ks_, kl, kc = k2_setup(c)
    CD = o.get('cd', 9); BF0 = o.get('bf0', 45)
    side = cs1[:10] + [Deadline(5)] + items(stats_job) + nonce_get(c) + stats_store() + cs1[10:] + [Deadline(CD), Gate(CD)] + cs1s + [Deadline(CD + 1)]
    assert o.get('jga', 10) > c.joblast, c.joblast
    if not JP: side += [Gate(o.get('jga', 10))] + jpa + [Gate(o.get('jgb', 12))] + jpb + [Deadline(o.get('jd', 22))]
    G1_ = o.get('g1', 22)
    ex1 = ([Gate(o.get('tg', 12))] + touch() + [Deadline(o.get('tg', 12) + 2)] if o.get('touch', 0) else []) + [Gate(14)] + ks_ + [Deadline(G1_), Gate(G1_)] + sl + cl[0] + [Deadline(G1_ + 1)]
    c.lights = [(G1_ + 1, cl[1])]
    ex1 += [Gate(o.get('gu', 31))] + su + cu + [Deadline(38), Gate(38)] + ext_read(4) + [Deadline(39)]
    assert BF0 - 7 >= 38
    steps[39]['mf'] += ext_mfma(ACC1, 4, True); steps[39]['rd'] += [[], [], [], []]
    steps[40]['pre'] = ([] if o.get('ts') == 2 else [LazyStamp(ts)]) + steps[40]['pre']
    cs2, cs2s = cs_produce_ffn(CSA, f"s_mul_i32 s{sT0}, s{sI}, 3\ns_add_u32 s{sT0}, s{sT0}, 1")
    cl, cu = cs_consume(c, 4, CSA)
    side += [Gate(40)] + cs2 + [Deadline(45), Gate(45)] + cs2s + ffn_epi(ACC1, 0, 0)
    for tau in range(1, 3): side += ffn_epi(ACC1 + 16 * tau, tau >> 1, (tau & 1) * 512)
    TM0, TMB = c.TM0, c.TMB
    G2L = max(o.get('g2l', 53), BF0 + 1)
    ex2 = [Gate(G2L - 1)] + cl[0] + [Deadline(G2L)]
    c.lights.append((G2L, cl[1]))
    side += ffn_epi(ACC1 + 48, 1, 512) + [Deadline(o.get('e1d', 57)), Gate(61)] + cu + [Deadline(TM0 - 2), Gate(TM0 - 2)] + ext_read(4) + k2_flags(c) + [Deadline(TM0 + 1)]
    for tau in range(3): side += [Gate(TM0 + TMB * (tau + 1))] + code("s_nop 1") + ffn_epi(ACC2 + 16 * tau, 2 + (tau >> 1), (tau & 1) * 512) + [Deadline(TM0 + TMB * (tau + 2))]
    add_stage(c, BF0, [(4096 * k, 42) for k in range(4)] + [(32768 + 4096 * k, 42) for k in range(12)])
    c.nb = add_bpre(c, BF0, None)
    for n_ in (24, 44, 62)[:o.get('nca', 0)]: c.lights.append((n_, code_ahead(c.typ, 214, 214, 0, lines=o.get('cal', 16))))
    for n_, its in c.lights:
        e = c.va.light(n_, its)
        if o.get('vlog'): print('light', n_, e, file=sys.stderr)
    resolve(steps)
    if o.get('noside'): side = nonce_get(c) + [Deadline(9)]
    weave(p, steps, side, base_rate=o.get('xrate', 2), extra=[ex1 + [Gate(BF0 - 7)] + kl + [Deadline(BF0 - 6), Gate(BF0 - 1)] + kc + [Deadline(BF0)] + ex2])
    ts(p)
    p.extend(mk(c, 80) + ffn_epi(ACC2 + 48, 3, 512) + mk(c, 81) + unstage(c))
    ts(p)

def k1_Y(p, c):
    ts = c.ts; o = c.opt
    sb = lambda j: Y_RING + (j % Y_NS) * Y_SLOT
    dma = lambda j: ssm_dma(sb(j), j) if j < 10 else ffn_dma(sb(j), j)
    p.e(f"s_mul_i32 s{sLBS}, s{sW}, 5120")
    p.e(f"s_and_b32 s{sT0}, s{sW}, 1\ns_lshl_b32 s{sT1}, s{sT0}, 2\ns_lshr_b32 s{sT2}, s{sW}, 1\ns_xor_b32 s{sT1}, s{sT1}, s{sT2}")
    p.e(f"s_lshl_b32 s{sT1}, s{sT1}, 4\nv_xor_b32 v{vDS}, s{sT1}, v{vXD}")
    p.e(f"s_mul_i32 s{sT1}, s{sI}, 80\ns_lshl_b32 s{sT0}, s{sT0}, 3\ns_add_u32 s{sT0}, s{sT0}, s{sT1}\ns_mul_i32 s{sBT}, s{sT0}, 1280")
    for t in range(1, 4): p.e(f"s_add_u32 s{sBT+t}, s{sBT}, {t*(20480-1024)}")
    p.e(f"s_add_u32 s{sBT+4}, s{sBT}, {4*20480}")
    c.save_id(p)
    p.e("s_waitcnt lgkmcnt(0)")
    srd(p, S_X, P_X, 2048 * 1280)
    p.e(f"s_cmp_ge_u32 s{sW}, 2\ns_cselect_b32 s{S_B}, s{P_BIM}, s{P_BRE}\ns_cselect_b32 s{S_B+1}, s{P_BIM+1}, s{P_BRE+1}")
    p.e(f"s_mov_b32 s{S_B+2}, {640*1280}\ns_mov_b32 s{S_B+3}, 0x20000")
    first_loads(p, dma(0))
    p.e("s_branch K_Y\n.set SPLIT, 0\nK_Y:")
    c.start(p)
    early_loads(p, 'Y')
    L = ACC2 + 16
    p.e(f"v_lshrrev_b32 v{L}, 5, v0\nv_lshlrev_b32 v{L}, 4, v{L}\nv_bfe_u32 v{L+1}, v0, 1, 4\nv_add_u32 v{L}, v{L}, v{L+1}")
    p.e(f"v_add_u32 v{L}, s{sT1}, v{L}\nv_min_u32 v{L}, 639, v{L}\nv_lshlrev_b32 v{L}, 1, v{L}")
    for k, ptr in enumerate((P_LRE, P_LIM, P_LDT)):
        p.e(f"global_load_ushort v{L+1+k}, v{L}, s[{ptr}:{ptr+1}]", tag='tbl')
    ffn_dma_addr(p); ffn_srd(p)
    p.e(f"s_mul_i32 s{sDB}, s{sW}, {16*3072}\ns_mul_i32 s{sT0}, s{sI}, 384\ns_add_u32 s{sDB}, s{sDB}, s{sT0}\ns_add_u32 s{sDB}, s{sDB}, 256")
    common_addr(p)
    p.e(f"v_and_b32 v{t0}, 1, v{vL}\nv_bfe_u32 v{t1}, v{vL}, 1, 4\nv_lshl_add_u32 v{t1}, v{t0}, 4, v{t1}")
    p.e(f"v_bfe_u32 v{t2}, v{t1}, 1, 3\nv_xor_b32 v{t2}, v{t2}, v{t0}\nv_lshrrev_b32 v{t3}, 5, v{vL}\nv_xor_b32 v{t2}, v{t2}, v{t3}\nv_lshlrev_b32 v{t2}, 4, v{t2}")
    p.e(f"v_and_b32 v{t3}, 7, v{t1}\nv_lshl_add_u32 v{t2}, v{t3}, 7, v{t2}\nv_lshrrev_b32 v{t3}, 3, v{t1}\nv_mul_u32_u24 v{t3}, 5120, v{t3}")
    p.e(f"v_add_u32 v{t2}, v{t2}, v{t3}\nv_add_u32 v{vBR}, {Y_RING}, v{t2}")
    for s in range(1, 4): p.e(f"v_xor_b32 v{vBR+s}, {32*s}, v{vBR}")
    tr_addrs(p, sb(10))
    code_prefetch(p, 'Y')
    vE, vAG, vFL, vSTW, vSTR, vE2 = 252, 253, 254, vXD, vXD + 1, 242
    p.e(f"v_lshlrev_b32 v{vE}, 5, v0\nv_mul_u32_u24 v{vE2}, 48, v0")
    srd(p, S_AG, P_WS, 32 * 1280, AGG_OFF)
    p.e(f"s_mul_i32 s{sT0}, s{sI}, {32*1280}\ns_add_u32 s{S_AG}, s{S_AG}, s{sT0}\ns_addc_u32 s{S_AG+1}, s{S_AG+1}, 0")
    p.e(f"v_subrev_u32 v{t0}, 160, v0\nv_min_u32 v{t0}, v{t0}, v0\nv_lshlrev_b32 v{vFL}, 3, v{t0}\nv_mov_b32 v{t1}, {OOB}\nv_cmp_gt_u32 vcc, 160, v0\nv_cndmask_b32 v255, v{t1}, v{vFL}, vcc")
    ts(p)
    q = Prog()
    lam_consts(q, L, [1, 16, 128], False)
    O = L + 8
    q.e(f"v_and_b32 v{L}, 1, v0\nv_lshlrev_b32 v{L}, 31, v{L}\nv_xor_b32 v{L}, 0x80000000, v{L}")
    for n in range(3): q.e(f"v_xor_b32 v{O+2*n+1}, v{L}, v{O+2*n+1}")
    q.e(f"ds_write_b64 v{vE}, {V(O,2)} offset:{Y_TBL}\nds_write_b128 v{vE}, {V(O+2,4)} offset:{Y_TBL+16}")
    table = q.items
    p.extend(x_dma(1)); p.extend(dma(1))
    p.e(NONCE_LD())
    rT = Ring(vT, 4, sb(10)); rB = Ring(vBR, 4, Y_RING)
    steps, r0, r1 = build_steps(c, 'S' * 10 + 'F' * 10, sb, dma, Y_NS, rT, rB, {}, {})
    p.extend(x_read(0))
    p.wait_vm(('slot', 0)); p.e("s_barrier")
    p.extend(flat(r0)); p.extend(flat(r1))
    ts(p)
    q = Prog()
    q.e(f"s_lshl_b32 s{sT0}, s{sW}, 10")
    for s in range(4): q.e(f"v_add_u32 v{t0+s}, s{sT0}, v{vBR+s}\nds_read_b128 {A(CSF+4*s,4)}, v{t0+s}")
    for s in range(4): q.e(f"ds_read_b128 {A(EXTW+4*s,4)}, v{vBR+s} offset:4096")
    cs_store_addr(q, f"s_add_u32 s{sT0}, s{sI}, 24")
    CB = ACC2 + 48
    for s in range(4): q.e(f"v_mfma_f32_32x32x16_bf16 {V(CB,16)}, {V(vONE,4)}, {A(CSF+4*s,4)}, {'0' if s == 0 else V(CB,16)}")
    for s in range(4): q.e(f"v_mfma_f32_32x32x16_bf16 {V(ACC2,16)}, {V(vONE,4)}, {A(EXTW+4*s,4)}, {'0' if s == 0 else V(ACC2,16)}")
    cs1 = q.items
    cs1s = code(f"v_mov_b32 v{CB+1}, s{sN}\nv_mov_b32 v{ACC2+1}, s{sN}\nbuffer_store_dwordx2 {V(CB,2)}, v{t4}, {S(S_WS)}, s{sU2} offen sc1\ns_lshl_b32 s{sT0}, s{sW}, 8\ns_sub_u32 s{sT0}, s{sU2}, s{sT0}\n"
                f"buffer_store_dwordx2 {V(ACC2,2)}, v{t4}, {S(S_WS)}, s{sT0} offen offset:1024 sc1\n"
                f"s_add_u32 s{sT0}, s{sMT}, 16\ns_mul_i32 s{sT0}, s{sT0}, 1280\n"
                f"buffer_store_dwordx2 {V(vZ,2)}, v255, {S(S_AG)}, s{sT0} offen sc1", 'pub')
    sl, su = stats_consume(c); cl, cu = cs_consume(c, 5, ACC2)
    ks_, kl, kc = k2_setup(c)
    side = cs1[:13] + [Deadline(5)] + items(stats_job) + nonce_get(c) + stats_store() + cs1[13:] + [Deadline(10), Gate(10)] + cs1s + table + [Deadline(18)]
    G1_ = o.get('g1', 22)
    ex1 = ([Gate(o.get('tg', 12))] + touch() + [Deadline(o.get('tg', 12) + 2)] if o.get('touch', 0) else []) + [Gate(14)] + ks_ + [Deadline(G1_), Gate(G1_)] + sl + cl[0] + [Deadline(G1_ + 1)]
    c.lights = [(G1_ + 1, cl[1])]
    side += [Gate(o.get('gu', 31))] + su + cu + [Deadline(38), Gate(38)] + ext_read(5) + [Deadline(39)]
    q = Prog()
    q.e(f"v_and_b32 v{t0}, 31, v{vL}\nv_mul_u32_u24 v{t2}, 48, v{t0}\nv_lshlrev_b32 v{t0}, 5, v{t0}\nv_lshrrev_b32 v{t1}, 5, v0\nv_lshl_add_u32 v{vAG}, v{t1}, 2, v{t2}")
    for t in range(5): q.e(f"ds_read_b64 {V(C0+2*t,2)}, v{t0} offset:{Y_TBL + 1024*t}")
    side += q.items + [Deadline(40)]
    steps[39]['mf'] += ext_mfma(ACC1, 5, False); steps[39]['rd'] += [[], [], [], [], []]
    steps[40]['pre'] = ([] if o.get('ts') == 2 else [LazyStamp(ts)]) + steps[40]['pre']
    AS = o.get('async', 12)
    BF0 = o.get('bf0y', 46)
    cs2, cs2s = cs_produce_ffn(CSA, f"s_mul_i32 s{sT0}, s{sI}, 3\ns_add_u32 s{sT0}, s{sT0}, 2")
    side += [Gate(40)] + cs2[:10]
    LM, E0, GA, G1 = 244, RT + 4, RT + 12, TMP - 2
    q = Prog()
    def scale(tt):
        for t in range(5): q.e(f"v_mul_f32 v{ACC1+16*t+tt}, v{RT+tt}, v{ACC1+16*t+tt}")
    q.extend(cs2[10:])
    q.add(Deadline(45))
    scale(0); scale(1)
    q.extend(cs2s)
    q.e(f"ds_read_b128 {V(LM,4)}, v{vE} offset:{Y_TBL+16}")
    for tt in range(1, 16):
        for t in range(5):
            g = (ACC1 + 16 * t) if tt == 1 else (G1 + 2 * t + (tt & 1))
            q.e(f"v_fma_f32 v{G1+2*t+((tt+1)&1)}, v{C0+2*t}, v{g}, v{ACC1+16*t+tt}")
        if tt < 15: scale(tt + 1)
        for t in range(5):
            g = (ACC1 + 16 * t) if tt == 1 else (G1 + 2 * t + (tt & 1))
            q.e(f"v_fmac_f32_dpp v{G1+2*t+((tt+1)&1)}, v{g}, v{C0+2*t+1} {QP}")
    for t in range(5): q.e(f"ds_write_b32 v{vAG}, v{G1+2*t} offset:{AG_L + 16 + 1536*t}", tag='agw')
    side += q.items + [Deadline(4 * (AS - 1) + 2), Gate(4 * (AS - 1) + 2)]
    q = Prog()
    q.e(f"ds_read_b128 {V(E0,4)}, v{vE2} offset:{AG_L+16}\nds_read_b128 {V(E0+4,4)}, v{vE2} offset:{AG_L+32}")
    q.e(f"s_sub_u32 s{sBT}, 15, s{sMT}\ns_mul_i32 s{sBT}, s{sBT}, 1280")
    fill = code("\n".join(f"s_add_u32 s{S_J0+i}, s{sBT}, {1280 + 3840*i}" for i in range(5)) + f"\ns_add_u32 s{sBT+4}, s{sH}, {6*4096}\ns_nop 0")
    for k in range(1, 8):
        g = E0 if k == 1 else (GA + (k & 1))
        q.e(f"v_fma_f32 v{GA+((k+1)&1)}, v{LM}, v{g}, v{E0+k}"); q.add(fill[k - 1])
        q.e(f"v_fmac_f32_dpp v{GA+((k+1)&1)}, v{g}, v{LM+1} {QP}")
    q.e(f"v_mov_b32 v{GA+1}, s{sN}\nbuffer_store_dwordx2 {V(GA,2)}, v255, {S(S_AG)}, s{sBT} offen sc1", tag='pub')
    side += q.items + [Deadline(4 * (AS - 1) + 4)]
    q = Prog()
    q.e(f"v_and_b32 v{t0}, 1, v{vL}\nv_bfe_u32 v{t1}, v{vL}, 1, 4\nv_lshl_add_u32 v{t1}, v{t0}, 4, v{t1}\nv_bfe_u32 v{t2}, v{vL}, 4, 1\nv_xor_b32 v{t0}, v{t0}, v{t2}")
    q.e(f"v_lshrrev_b32 v{t2}, 5, v{vL}\nv_xor_b32 v{t0}, v{t0}, v{t2}\nv_bfe_u32 v{t2}, v{vL}, 2, 1\nv_lshl_add_u32 v{t0}, v{t0}, 1, v{t2}\nv_lshlrev_b32 v{t0}, 4, v{t0}")
    q.e(f"v_lshl_add_u32 v{t1}, v{t1}, 6, v{t0}\ns_mul_i32 s{sT0}, s{sW}, 10240\ns_add_u32 s{sT0}, s{sT0}, 98304\nv_add_u32 v{vSTW}, s{sT0}, v{t1}\nv_xor_b32 v229, 16, v{vSTW}")
    q.e(f"v_lshrrev_b32 v{t0}, 4, v{vL}\nv_lshlrev_b32 v{t1}, 9, v{t0}\nv_bfe_u32 v{t2}, v{vL}, 2, 2\nv_lshl_add_u32 v{t1}, v{t2}, 6, v{t1}\nv_lshrrev_b32 v{t2}, 1, v{t0}\nv_xor_b32 v{t0}, v{t0}, v{t2}")
    q.e(f"v_and_b32 v{t0}, 1, v{t0}\nv_bfe_u32 v{t2}, v{vL}, 3, 1\nv_lshl_add_u32 v{t0}, v{t0}, 1, v{t2}\nv_bfe_u32 v{t2}, v{vL}, 1, 1\nv_xor_b32 v{t0}, v{t0}, v{t2}\nv_lshl_add_u32 v{t1}, v{t0}, 4, v{t1}")
    q.e(f"v_and_b32 v{t0}, 1, v{vL}\nv_lshl_add_u32 v{t1}, v{t0}, 3, v{t1}\nv_add_u32 v{vSTR}, s{sT0}, v{t1}\nv_xor_b32 v230, 32, v{vSTR}")
    cl, cu = cs_consume(c, 4, CSA)
    TM0, TMB = c.TM0, c.TMB
    G2L = max(o.get('g2l', 53), BF0 + 1)
    ex2 = [Gate(G2L - 1)] + cl[0] + [Deadline(G2L)]
    c.lights.append((G2L, cl[1]))
    side += q.items + [Gate(o.get('g2', 61))] + cu
    LP = [CSA + 2 * i for i in range(8)] + [4, 6, 8, 10, 12, 14, 16]
    ldl = "\n".join(f"buffer_load_dwordx2 {V(LP[i],2)}, v{vFL}, {S(S_AG)}, s{S_J0+i//3} offen offset:{(i%3)*1280} sc1" for i in range(15))
    side += [Deadline(TM0 - 2), Gate(TM0 - 2)] + ext_read(4) + k2_flags(c) + [Deadline(TM0 + TMB)]
    c.lights.append((o.get('g3', TM0), code(ldl)))
    c.lights.append((o.get('gx1', 76), code(c.ldx1)))
    for tau in range(3): side += [Gate(TM0 + TMB * (tau + 1))] + code("s_nop 1") + ffn_epi(ACC2 + 16 * tau, 4 + (tau >> 1), (tau & 1) * 512) + [Deadline(TM0 + TMB * (tau + 2))]
    q = Prog()
    q.extend(retry(c, ldl, tagcheck([r + 1 for r in LP])))
    for i in range(13, -1, -1):
        q.e(f"v_fmac_f32 v{LP[i]}, v{LM+2}, v{LP[i+1]}\nv_fmac_f32_dpp v{LP[i]}, v{LP[i+1]}, v{LM+3} {QP}")
    q.e(f"ds_write_b32 v{vE2}, v{LP[0]} offset:{AG_L+12}", tag='pw')
    for k in range(7):
        g = LP[0] if k == 0 else E0 + k - 1
        q.e(f"v_fmac_f32 v{E0+k}, v{LM}, v{g}\nv_fmac_f32_dpp v{E0+k}, v{g}, v{LM+1} {QP}")
    q.e(f"ds_write_b128 v{vE2}, {V(E0,4)} offset:{AG_L+16}\nds_write_b128 v{vE2}, {V(E0+4,4)} offset:{AG_L+32}", tag='pw')
    gch = q.items
    q = Prog()
    CY = [216, 217, 218, 219, 228]
    for t in range(5): q.e(f"ds_read_b32 v{CY[t]}, v{vAG} offset:{AG_L + 12 + 1536*t}")
    cy = q.items
    def scan(tiles):
        q = Prog()
        for tt in range(16):
            for t in tiles:
                g = CY[t] if tt == 0 else (ACC1 + 16 * t + tt - 1)
                q.e(f"v_fmac_f32 v{ACC1+16*t+tt}, v{C0+2*t}, v{g}")
            for t in tiles:
                g = CY[t] if tt == 0 else (ACC1 + 16 * t + tt - 1)
                q.e(f"v_fmac_f32_dpp v{ACC1+16*t+tt}, v{g}, v{C0+2*t+1} {QP}")
            for k in ([tt // 2 - 1] if (tt >= 2 and tt % 2 == 0) else []) + ([7] if tt == 15 else []):
                for t in tiles: q.e(f"v_cvt_pk_bf16_f32 v{ACC1+16*t+k}, v{ACC1+16*t+2*k}, v{ACC1+16*t+2*k+1}")
            if tt == 10:
                for t in tiles: q.e(f"ds_write_b128 v{vSTW}, {V(ACC1+16*t,4)} offset:{HT2_L + t*2048}")
        return q.items
    def outp(tiles):
        q = Prog()
        for t in tiles:
            R = ACC1 + 16 * t
            q.e(f"ds_write_b128 v229, {V(R+4,4)} offset:{HT2_L + t*2048}")
            for rt in range(2):
                for tq in range(2): q.e(f"ds_read_b64_tr_b16 {V(R+8+4*rt+2*tq,2)}, v{(vSTR, 230)[rt]} offset:{HT2_L + t*2048 + tq*256}")
        for t in tiles:
            R = ACC1 + 16 * t
            q.e(f"s_add_u32 s{sT2}, s85, {t*4096}")
            for rt in range(2): q.e(f"buffer_store_dwordx4 {V(R+8+4*rt,4)}, v{vL16}, {S(S_WS)}, s{sT2} offen offset:{rt*1024} sc1", tag='h')
        return q.items
    add_stage(c, BF0, [(24576 + 4096 * k, 46) for k in range(8)] + [(12288, 46), (159744, 46)] + [(Y_RING + 20480 * k + 16384, 46) for k in range(5)])
    c.nb = add_bpre(c, BF0, None)
    for n_ in (24, 44, 62)[:o.get('nca', 0)]: c.lights.append((n_, code_ahead(c.typ, 214, 214, 0, lines=o.get('cal', 16))))
    for n_, its in c.lights:
        e = c.va.light(n_, its)
        if o.get('vlog'): print('light', n_, e, file=sys.stderr)
    resolve(steps)
    if o.get('noside'): side = nonce_get(c) + [Deadline(9)]
    weave(p, steps, side, base_rate=o.get('yrate', 3),
                 extra=[ex1 + [Gate(BF0 - 7)] + kl + [Deadline(BF0 - 6), Gate(BF0 - 1)] + kc + [Deadline(BF0)] + ex2])
    ts(p)
    p.e(f"s_mov_b32 s85, s{sBT+4}")
    p.extend(unstage(c))
    tail = mk(c, 80) + c.chkx1 + merge(c.aload(0) + c.aload(1), merge(autogroup(gch), ffn_epi(ACC2 + 48, 5, 512), keep=True), 1.0) + mk(c, 81) + [Marker('lgkm', 'pw')] + code("s_barrier")
    tail += cy + merge(brest(c), scan([0, 1])) + mk(c, 82) + merge(outp([0, 1]), scan([2, 3]), 1.0) + mk(c, 83)
    tail += merge(outp([2, 3]), scan([4]) + outp([4])[:5], 1.0) + code(c.ldx) + outp([4])[5:]
    p.extend(tail)
    ts(p)

def mk(c, n): return code(f'.set STEPMARK{c.typ}{n}, 0') if c.opt.get('st0') is not None else []
def merge(a, b, f=1.15, keep=False):
    out = []; k = 0
    for i, it in enumerate(b):
        out.append(it)
        while k < len(a) and k * len(b) <= i * len(a) * f:
            out.append(a[k]); k += 1
    out += a[k:]
    if keep: return out
    return [y for x in out for y in (x.its if isinstance(x, Group) else [x])]

vKW, vKF, vKN = 36, 37, 35
HOMES = [(A, 220), (A, 196), (V, 200), (V, 18)]
def plan_homes(c):
    KF = OPT.get('kf', 3)
    front = [('o', 0), ('o', 1), ('p', 0), ('p', 1), ('o', 2), ('o', 3), ('p', 2), ('p', 3)]
    moved = {4: [], 2: [('o', 2), ('o', 3)], 3: [('o', 3)]}[KF]
    front = [x for x in front if x not in moved]
    c.seq = front + [('p', i) for i in range(4, 11)] + moved + [('o', i) for i in range(4, 11)]
    c.NF = len(front); c.PL = c.NF + 6
    lastB = {i: max(u for u, (k, j) in enumerate(c.seq) if j == i) for i in range(11)}
    pool = [[A, 220, -9], [A, 196, -9], [V, 200, -9], [V, 18, -9]] + [[A, 16 * k, max(lastB[(16 * k) // 20], lastB[(16 * k + 15) // 20]) + 1] for k in range(5)]
    c.home = []; c.earliest = []
    for v in range(22):
        h = min(pool, key=lambda x: x[2])
        c.home.append((h[0], h[1])); c.earliest.append(h[2])
        h[2] = v + 1 + (1 if v in (c.PL - 1, 20) else 0)
def k2_flags(c):
    q = Prog()
    q.e(f"s_and_b32 s87, s{sSL}, 8\ns_lshl_b32 s86, s{sW}, 1\ns_add_u32 s87, s87, s86\ns_lshl_b32 s86, s{sMT}, 4\ns_add_u32 s87, s87, s86")
    q.e(f"s_lshl_b32 s87, s87, 7\ns_add_u32 s87, s87, {HF_OFF}\nv_mov_b32 v248, 0")
    c.ldx = f"buffer_load_dword v249, v248, {S(S_WS)}, s87 offen sc1"
    c.ldy = f"buffer_load_dword v250, v248, {S(S_WS)}, s87 offen offset:128 sc1"
    c.chkx = retry(c, c.ldx, tagcheck([249]))
    c.ldx1 = f"buffer_load_dword v250, v248, {S(S_WS)}, s87 offen offset:4 sc1"
    if c.typ == 'Y': c.chkx1 = retry(c, c.ldx1, tagcheck([250]))
    plan_homes(c)
    def aload(u):
        kind, i = c.seq[u]; R, b = c.home[u]; s_ = sAP if kind == 'p' else sAO
        return code(f"s_add_u32 s{sBD}, s{s_}, s{TAB[i]}\n" + "\n".join(f"buffer_load_dwordx4 {R(b+4*rt,4)}, v{vL16}, {S(S_WS)}, s{sBD} offen offset:{1024*rt} sc1" for rt in range(4)))
    c.aload = aload
    return q.items

def k2(p, c):
    ts = c.ts; o = c.opt
    AP, AO = 40, 120
    seq = c.seq; aload = c.aload; ldy = c.ldy
    isY = c.typ == 'Y'
    mark = lambda n: p.e(f'.set STEPMARK{c.typ}{n}, 0') if o.get('st0') is not None else None
    fl = code(f"buffer_store_dword v{vKN}, v{vKF}, {S(S_WS)}, s{sFL} offen sc1", 'flag')
    p.e(f"v_mov_b32 v{vKN}, v{vPT}\nv_mov_b32 v{vKF}, v{vFZ}")
    q = Prog()
    srd(q, S_W1, P_D, 1280)
    srd(q, S_W3, P_OUT, 2048 * 2560)
    q.e(f"s_and_b32 s{sU0}, s{sSL}, 7\ns_lshr_b32 s{sU1}, s{sSL}, 3\ns_lshl_b32 s{sT1}, s{sMT}, 1\ns_add_u32 s{sU1}, s{sU1}, s{sT1}")
    q.e(f"s_mov_b32 s48, 3277\ns_lshl_b32 s49, s{sU1}, 6\ns_mul_i32 s50, s{sU0}, 160")
    q.e(f"s_mul_i32 s51, s49, 1280\ns_add_u32 s51, s51, s50\ns_lshl_b32 s59, s49, 4\ns_add_u32 s59, s59, {ST_OFF}\ns_lshl_b32 s61, s51, 1")
    q.e(f"s_lshl_b32 s{sT0}, s{sU1}, 3\ns_add_u32 s{sT0}, s{sT0}, s{sU0}\ns_mul_i32 s62, s{sT0}, 28672\ns_add_u32 s62, s62, {PX_OFF}")
    q.e(f"s_xor_b32 s{sT0}, s{sT0}, 8\ns_mul_i32 s63, s{sT0}, 28672\ns_add_u32 s63, s63, {PX_OFF}")
    q.e(f"v_lshlrev_b32 v17, 4, v0")
    q.e(f"v_and_b32 v4, 15, v1\nv_mul_u32_u24 v4, 336, v4\nv_lshrrev_b32 v5, 4, v1\nv_lshl_add_u32 v4, v5, 4, v4\ns_mul_i32 s44, s{sW}, 21504\nv_add_u32 v{vKW}, s44, v4")
    EL, EO = 6, 11
    EX, ED, ES = 216, 226, 236
    for u in range(5):
        q.e(f"v_add_u32 v4, {256*u}, v0\nv_mul_lo_u32 v5, v4, s48\nv_lshrrev_b32 v5, 16, v5\nv_lshlrev_b32 v4, 4, v4\nv_lshl_add_u32 v{EL+u}, v5, 4, v4")
        q.e(f"v_mul_u32_u24 v2, 320, v5\nv_sub_u32 v4, v4, v2\nv_lshrrev_b32 v4, 1, v4\nv_lshl_add_u32 v2, v2, 2, v4\nv_lshlrev_b32 v5, 4, v5")
        q.e(f"buffer_load_dwordx2 {V(EX+2*u,2)}, v2, {S(S_X)}, s51 offen\nbuffer_load_dwordx2 {V(ED+2*u,2)}, v4, {S(S_W1)}, s50 offen\nbuffer_load_dwordx2 {V(ES+2*u,2)}, v5, {S(S_WS)}, s59 offen sc1")
        q.e(f"v_lshlrev_b32 v{EO+u}, 1, v2")
    ksetup = q.items
    if not isY:
        p.extend(ksetup)
        p.extend(mk(c, 82))
        p.wait_vm('h'); p.e("s_barrier"); p.extend(fl)
        p.extend(merge(brest(c), []))
        p.e(c.ldx)
        p.extend(mk(c, 83))
        ts(p)
        p.extend(c.chkx)
        for u in range(3): p.extend(aload(u))
    else:
        p.extend(aload(2))
    ts(p)
    steps = []
    for u, (kind, i) in enumerate(seq):
        R, a = c.home[u]; acc = AP if kind == 'p' else AO
        mf = []
        for rt in range(4):
            for ct in range(5):
                d = acc + 4 * (5 * rt + ct)
                mf += code(f"v_mfma_f32_16x16x32_bf16 {V(d,4)}, {A(BH[5*i+ct],4)}, {R(a+4*rt,4)}, {'0' if i == 0 else V(d,4)}")
        steps.append(dict(pre=[], mf=mf, rd=[[] for _ in mf]))
    NF, PL = c.NF, c.PL
    CU = NF - (o.get('cuy', 2) if isY else o.get('cux', 3))
    C2 = o.get('c2', 2)
    if isY: steps[C2]['pre'] += c.chkx
    steps[CU]['pre'] += retry(c, ldy, tagcheck([250])) + [LazyStamp(ts)]
    steps[CU - 1]['rd'][o.get('lyg', 10)] += code(ldy)
    g = 0; AS_ = o.get('as', 4)
    for v in range(3, 22):
        e = max(c.earliest[v], v - o.get('ad', 6), 0)
        if isY and v >= 4: e = max(e, C2)
        if v >= NF: e = max(e, CU)
        g = max(g, 20 * e)
        its = aload(v)
        st_ = AS_ if g < 20 * (v - 2) else 2
        steps[g // 20]['rd'][g % 20] += [its[0]]
        for k in range(4): steps[g // 20]['rd'][g % 20] += [its[k + 1]]; g += st_
        assert g <= 20 * v, (v, g)
        if o.get('vlog'): print(c.typ, v, c.home[v][1], g, file=sys.stderr)
    def wr(acc, rt):
        return code("\n".join(f"ds_write_b128 v{vKW}, {V(acc+4*(5*rt+ct),4)} offset:{rt*16*336 + ct*64}" for ct in range(5)), 'pw')
    side = []
    if isY:
        side += ksetup + [Deadline(5)]
        steps[o.get('fu', 3)]['rd'][o.get('fg', 4)] += [Marker('vm', 'h')] + code("s_barrier") + fl
    M = f"s{sMASK}"
    q = Prog()
    PT = [r for u in range(5) for r in (EX + 2 * u, EX + 2 * u + 1, ED + 2 * u, ED + 2 * u + 1)]
    Xr = [2, 3, 4, 5]; Dr = [246, 247, 252, 253]; Yr = [254, 255, 16, 34]
    for u in range(5):
        q.e(f"v_lshlrev_b32 v{Xr[0]}, 16, v{EX+2*u}\nv_and_b32 v{Xr[1]}, {M}, v{EX+2*u}\nv_lshlrev_b32 v{Xr[2]}, 16, v{EX+2*u+1}\nv_and_b32 v{Xr[3]}, {M}, v{EX+2*u+1}")
        q.e(f"v_lshlrev_b32 v{Dr[0]}, 16, v{ED+2*u}\nv_and_b32 v{Dr[1]}, {M}, v{ED+2*u}\nv_lshlrev_b32 v{Dr[2]}, 16, v{ED+2*u+1}\nv_and_b32 v{Dr[3]}, {M}, v{ED+2*u+1}")
        q.e(f"v_and_b32 v{ES+2*u+1}, {M}, v{ES+2*u+1}\nv_mul_f32 v{ES+2*u+1}, v{ES+2*u+1}, v{ES+2*u}")
        for i in range(4): q.e(f"v_fma_f32 v{Yr[i]}, v{Xr[i]}, v{ES+2*u}, v{ES+2*u+1}")
        rnd = (f"v_cvt_pk_bf16_f32 v{Yr[0]}, v{Yr[0]}, v{Yr[1]}\nv_cvt_pk_bf16_f32 v{Yr[2]}, v{Yr[2]}, v{Yr[3]}\n"
               f"v_and_b32 v{Yr[1]}, {M}, v{Yr[0]}\nv_lshlrev_b32 v{Yr[0]}, 16, v{Yr[0]}\nv_and_b32 v{Yr[3]}, {M}, v{Yr[2]}\nv_lshlrev_b32 v{Yr[2]}, 16, v{Yr[2]}")
        q.e(rnd)
        for i in range(4): q.e(f"v_mul_f32 v{Yr[i]}, v{Yr[i]}, v{Dr[i]}")
        q.e(rnd)
        for i in range(4): q.e(f"v_add_f32 v{PT[4*u+i]}, v{Xr[i]}, v{Yr[i]}")
    pre = q.items
    def fuse(u, acc):
        a, b = steps[u], steps[u + 1]
        mf = []; rd = []
        for rt in range(4):
            mf += a['mf'][5 * rt:5 * rt + 5] + b['mf'][5 * rt:5 * rt + 5]
        rd = a['rd'] + b['rd']
        for rt in range(3):
            w = wr(acc, rt)
            for k in range(5): rd[10 * (rt + 1) + 3 + k] += [w[k]]
        a['mf'], a['rd'] = mf[:20], rd[:20]; b['mf'], b['rd'] = mf[20:], rd[20:]
    fuse(PL - 1, AP); fuse(20, AO)
    w = wr(AP, 3)
    for k in range(5): steps[PL + 1]['rd'][3 + k] += [w[k]]
    steps[PL + 1]['rd'][12] += [Marker('lgkm', 'pw')] + code("s_barrier")
    q = Prog()
    GR = AP + 48
    gi = lambda f: GR + 4 * (f // 3) + f % 3
    sent = [0]
    def send(upto):
        while sent[0] < 7 and 3 * sent[0] + 2 < upto or (upto == 20 and sent[0] < 7):
            g = sent[0]; sent[0] += 1
            q.e(f"v_mov_b32 v{GR+4*g+3}, s{sN}\nbuffer_store_dwordx4 {V(GR+4*g,4)}, v17, {S(S_WS)}, s63 offen sc1\ns_add_u32 s63, s63, 4096")
    def red(u):
        T = AP + 16 * (u % 3)
        for i in range(4): q.e(f"v_add_f32 v{T+i}, v{T+i}, v{T+4+i}\nv_add_f32 v{T+8+i}, v{T+8+i}, v{T+12+i}")
        for i in range(4): q.e(f"v_add_f32 v{gi(4*u+i)}, v{T+i}, v{T+8+i}")
        send(4 * u + 4)
    for u in range(5):
        T = AP + 16 * (u % 3)
        for w in range(4): q.e(f"ds_read_b128 {V(T+4*w,4)}, v{EL+u} offset:{w*21504}")
        if u >= 2: red(u - 2)
    red(3); red(4)
    RG = AP
    ldp = "\n".join(f"buffer_load_dwordx4 {V(RG+4*g,4)}, v17, {S(S_WS)}, s{70+g} offen sc1" for g in range(7))
    if o.get('cp2', 1):
        L = f"{c.typ}_cp2"
        steps[max(CU, 5)]['rd'][19] += code(f"s_getpc_b64 s[90:91]\n{L}:\nv_lshlrev_b32 v4, 7, v0\nv_min_u32 v4, {c.typ}_end-{L}, v4\nglobal_load_dword v250, v4, s[90:91]")
    side += [Gate(max(CU + 1, 6))] + pre + [Deadline(PL - 1), Gate(PL + 2)] + q.items + [Deadline(PL + 4)] + code("\n".join(f"s_add_u32 s{70+g}, s62, {4096*g}" for g in range(7))) + [Deadline(20)]
    side += [Gate(o.get('lpu', 21))] + code(ldp)
    steps[20]['rd'][0] += code("s_barrier")
    if o.get('st0') is not None:
        for u, st in enumerate(steps): st['pre'] = code(f'.set STEPMARK{c.typ}{84+u}, 0') + st['pre']
    resolve(steps)
    if o.get('dk2') is not None: steps[o['dk2']]['pre'] += code('s_sleep 36')
    weave(p, steps, side, base_rate=1)
    ts(p); mark(106)
    p.extend(wr(AO, 3))
    p.wait_lgkm('pw')
    p.e("s_barrier")
    mark(107)
    for u in range(5):
        for w in range(4): p.e(f"ds_read_b128 {V(AO+16*u+4*w,4)}, v{EL+u} offset:{w*21504}")
        if u == 2:
            p.extend(retry(c, ldp, tagcheck([RG + 4 * g + 3 for g in range(7)])))
            for f in range(20): p.e(f"v_add_f32 v{PT[f]}, v{PT[f]}, v{RG + 4*(f//3) + f%3}")
    mark(108)
    for u in range(5):
        R = AO + 16 * u
        for i in range(4): p.e(f"v_add_f32 v{R+i}, v{R+i}, v{R+4+i}\nv_add_f32 v{R+8+i}, v{R+8+i}, v{R+12+i}")
        for i in range(4): p.e(f"v_add_f32 v{R+i}, v{R+i}, v{PT[4*u+i]}")
        for i in range(4): p.e(f"v_add_f32 v{R+i}, v{R+i}, v{R+8+i}")
        p.e(f"buffer_store_dwordx4 {V(R,4)}, v{EO+u}, {S(S_W3)}, s61 offen{NT('nto')}{' sc1' if OPT.get('osc', 1) else ''}{' sc0' if OPT.get('osc', 1) == 2 else ''}")
    mark(109)
    if o.get('st0') is not None: p.e("s_waitcnt vmcnt(0)"); mark(110); p.e("s_nop 15\ns_nop 15\ns_nop 15"); mark(111)
    ts(p)

HEADER = open('parallel_sum__ssm_conv_s5__glu_gated_swiglu__prompt.s.ref').read().split('; Override launch')[0]

def profile(txt, typ):
    out = []; k = 2; sites = []; nm = 0
    lo = OPT.get('prof0', 0)
    for l in txt.split('\n'):
        if 'mfma' in l: nm += 1
        if 's_memrealtime' in l and k > 2: k = 100
        hit = ('vmcnt' in l or 's_barrier' in l or 's_cbranch_vccnz' in l or '_slow' in l) and nm >= lo and k < 62
        if OPT['prof'] == 2: hit = ('buffer_' in l or 'global_' in l) and nm >= lo and k < 62
        if hit and '_slow' in l:
            out.append("  s_memtime s[0:1]"); out.append(l); pend = True; sites.append((k, nm, l.strip())); continue
        if OPT['prof'] == 1 and l.endswith('_ret:') and out[-2].startswith("  s_memtime s[0:1]"):
            out.append(l); out.append(f"  s_memtime s[2:3]\n  s_waitcnt lgkmcnt(0)\n  s_sub_u32 s2, s2, s0\n  s_or_b32 s2, s2, 1\n  v_writelane_b32 v251, s2, {k}"); k += 1; continue
        if hit:
            out.append(f"  s_memtime s[0:1]\n{l}\n  s_memtime s[2:3]\n  s_waitcnt lgkmcnt(0)\n  s_sub_u32 s2, s2, s0\n  s_or_b32 s2, s2, 1\n  v_writelane_b32 v251, s2, {k}")
            sites.append((k, nm, l.strip())); k += 1
        else: out.append(l)
    print(typ, "sites:", [(b, ('D' if ' lds' in c else 'S' if 'store' in c else 'L') if 'buffer' in c or 'global' in c else c.replace('s_waitcnt ', '').replace('s_cbranch_', '')) for a, b, c in sites], file=sys.stderr)
    return '\n'.join(out)

def build(opt):
    OPT.update(opt)
    ph = Prog(); setup(ph, opt)
    ph.e(f"s_bitcmp1_b32 s{sSL}, 0\ns_cbranch_scc0 K_X")
    body = ph.finalize() + "\n"
    sx = [it for it in ph.items if isinstance(it, I) and it.tag == 'cpf' and it.kind == 'vm']
    parts = {}
    for typ, fn in (('X', k1_X), ('Y', k1_Y)):
        c = Ctx(typ, opt)
        p = Prog()
        if typ == 'X': p.e("K_X:")
        p.add(Marker('assume_vm', sx))
        def save_id(p):
            if opt.get('ts'): p.e('v_mov_b32 v251, 0')
            p.e("s_memrealtime s[2:3]")
        def start(p, c=c):
            c.ts(p, True); c.ts(p)
            if opt.get('prof') or opt.get('st0') is not None: c.ts.on = False
        c.save_id = save_id; c.start = start
        fn(p, c)
        k2(p, c)
        if opt.get('prof') or opt.get('st0') is not None: c.ts.on = True; c.ts.n = 63
        if c.ts.on:
            p.wait_all(); c.ts(p, True); c.ts.dump(p)
        p.e(f"{typ}_end:\ns_endpgm")
        st = {}
        txt = p.finalize(st)
        if opt.get('prof'): txt = profile(txt, typ)
        if opt.get('st0') is not None:
            out = []
            for l in txt.split('\n'):
                if 'STEPMARK' in l:
                    k = int(l.split(',')[0].split(typ)[-1]) - opt['st0']
                    if 0 <= k <= 60:
                        a = 2 * (k & 1)
                        if k > 0: out.append(f"  v_writelane_b32 v251, s{2-a}, {k}")
                        if k < 60: out.append(f"  s_memtime s[{a}:{a+1}]")
                else: out.append(l)
            txt = '\n'.join(out)
        import re as _re
        slow = [q for q in c.slow if _re.search(r'(\w+)_slow:', q).group(1) + '_ret:' in txt]
        if opt.get('nodma'): txt = '\n'.join(l for l in txt.split('\n') if not (' lds' in l and 'buffer_load' in l))
        if opt.get('nomfma'): txt = '\n'.join(l for l in txt.split('\n') if not ('32x32x16' in l))
        if opt.get('nowait'): txt = '\n'.join(l for l in txt.split('\n') if not ('vmcnt' in l and 'vmcnt(0)' not in l))
        if opt.get('nolds'): txt = '\n'.join(l for l in txt.split('\n') if not ('ds_read' in l))
        parts[typ] = txt + "\n" + "\n".join(slow) + "\n"
        print(typ, st, file=sys.stderr)
    y0, y1 = parts['Y'].split("  .set SPLIT, 0\n")
    body += y0 + parts['X'] + y1
    body += "K_end:\n  s_endpgm\n"
    k = NAME + "_kernel"
    if opt.get('plain'): body = body.replace(' sc1', '')
    if opt.get('plainst'): body = '\n'.join(l.replace(' sc1', '') if 'buffer_store' in l else l for l in body.split('\n'))
    s = HEADER + "; @launch grid=(256,1,1) block=(256,1,1) lds=163840\n"
    s += f'.amdgcn_target "amdgcn-amd-amdhsa--gfx950"\n.text\n.globl {k}\n.p2align 8\n.type {k},@function\n{k}:\n{body}'
    s += '.section .rodata,"a"\n' + kd(k, 512, 102, 256)
    return s

if __name__ == '__main__':
    opt = {}
    for a in sys.argv[2:]:
        k, v = a.split('='); opt[k] = int(v)
    open(sys.argv[1], 'w').write(build(opt))
```

```python
import sys, struct
from asmgen import Prog, I, Marker
from sched import weave, Gate, Deadline, Group, autogroup
from common import kd

NAME = "parallel_sum__ssm_conv_s5__glu_gated_swiglu__prompt"
H_OFF = 0
W2S_OFF = 32 * 88 * 4096
ST_OFF = W2S_OFF + 8 * 88 * 5120
AGG_OFF = ST_OFF + 32768
CS_OFF = AGG_OFF + 8 * 32 * 1280
HF_OFF = CS_OFF + 32 * 12800
WF_OFF = HF_OFF + 256 * 128
PX_OFF = WF_OFF + 128 * 128
WS_USED = PX_OFF + 256 * 7 * 4096
TS_OFF = 24 << 20
LOG2E, NLOG2E, INV2PI, OOB = 0x3fb8aa3b, 0xbfb8aa3b, 0x3e22f983, 0x7f000000
def f2u(x): return struct.unpack('<I', struct.pack('<f', x))[0]

S_X, S_W1, S_W3, S_B, S_WS, S_J0, S_J1, S_DBG, S_AG = 4, 8, 12, 16, 20, 24, 28, 32, 36
sMT, sSL, sW, sI, sT0, sT1, sT2, sT3 = 40, 41, 42, 43, 44, 45, 46, 47
sXR = 48
sMASK, sFL, sLB, sD0, sD1, sH, sLBS, sBT = 52, 53, 54, 55, 56, 57, 58, 59
P_X, P_LRE, P_LIM, P_BRE, P_BIM, P_CRE, P_CIM, P_LDT, P_D, P_BX, P_W1, P_W3, P_W2, P_OUT, P_DBG, P_WS = [64 + 2 * i for i in range(16)]
sKX, sKB, sDB, sROT, sU0, sU1 = 96, 97, 98, 99, 100, 101
sSP = 89
sU2, sU3 = 82, 83
sN = 92

OPT = {}
def NT(k): return ' nt' if OPT.get(k) else ''
def S(d): return f"s[{d}:{d+3}]"
def V(a, n=1): return f"v[{a}:{a+n-1}]" if n > 1 else f"v{a}"
def A(a, n=1): return f"a[{a}:{a+n-1}]" if n > 1 else f"a{a}"
QP = "quad_perm:[1,0,3,2] row_mask:0xf bank_mask:0xf"
def items(f, *a):
    q = Prog(); f(q, *a); return q.items
def code(text, tag=None):
    q = Prog(); q.e(text, tag); return q.items

def srd(p, d, ptr, nrec, add=0):
    if add == 0: p.e(f"s_mov_b32 s{d}, s{ptr}\ns_mov_b32 s{d+1}, s{ptr+1}")
    elif add > 0: p.e(f"s_add_u32 s{d}, s{ptr}, {add}\ns_addc_u32 s{d+1}, s{ptr+1}, 0")
    else: p.e(f"s_sub_u32 s{d}, s{ptr}, {-add}\ns_subb_u32 s{d+1}, s{ptr+1}, 0")
    p.e(f"s_mov_b32 s{d+2}, {nrec}\ns_mov_b32 s{d+3}, 0x20000")

class Stamper:
    def __init__(self, on): self.on = on; self.n = 0
    def it(self, real=False):
        if not self.on: return []
        if OPT.get('rt') == 1: real = True
        if OPT.get('rt') == 2:
            n = self.n; self.n += 2
            return code(f"s_memrealtime s[0:1]\ns_memtime s[2:3]\ns_waitcnt lgkmcnt(0)\nv_writelane_b32 v251, s0, {n}\nv_writelane_b32 v251, s2, {n+1}")
        n = self.n; self.n += 1
        return code(f"{'s_memrealtime' if real else 's_memtime'} s[0:1]\ns_waitcnt lgkmcnt(0)\nv_writelane_b32 v251, s0, {n}")
    def __call__(self, p, real=False): p.extend(self.it(real))
    def dump(self, p):
        if not self.on: return
        p.wait_all()
        p.e(f"s_lshr_b32 s93, s{sMT}, 2\ns_lshr_b32 s3, s{sSL}, 3\ns_lshl_b32 s3, s3, 2\ns_add_u32 s93, s93, s3\ns_and_b32 s3, s{sMT}, 3\ns_lshl_b32 s3, s3, 3\ns_add_u32 s93, s93, s3\ns_and_b32 s3, s{sSL}, 7\ns_lshl_b32 s3, s3, 5\ns_add_u32 s93, s93, s3")
        if OPT.get('dbgout'):
            p.e(f"s_lshl_b32 s3, s93, 2\ns_add_u32 s3, s3, s{sW}\ns_cmp_eq_u32 s3, {4*OPT['dbgout']}\ns_cselect_b32 s3, 4, {OOB}")
            p.e(f"v_readlane_b32 s0, v251, 0\nv_subrev_u32 v251, s0, v251\nv_lshlrev_b32 v3, 2, v1\nv_add_u32 v3, s3, v3\nbuffer_store_dword v251, v3, {S(S_DBG)}, 0 offen")
            return
        srd(p, 4, P_WS, TS_OFF + (1 << 20))
        p.e(f"v_lshlrev_b32 v3, 2, v1\ns_lshl_b32 s3, s93, 2\ns_add_u32 s3, s3, s{sW}\ns_lshl_b32 s3, s3, 8\ns_add_u32 s3, s3, {TS_OFF}")
        p.e("buffer_store_dword v251, v3, s[4:7], s3 offen")

class LazyStamp:
    def __init__(self, ts): self.ts = ts
def resolve(steps):
    for st in steps:
        out = []
        for it in st['pre']:
            out += it.ts.it() if isinstance(it, LazyStamp) else [it]
        st['pre'] = out
vL = 1
vXD, vXC = 2, 4
vSR = 6
vD, vDS, vDC = 10, 12, 13
vBR, vT, vTW, vH = 14, 18, 22, 23
vONE, vEX = 24, 28
vTMP = 32
ACC1, ACC2, CSA, TMP = 40, 120, 184, 200
vFZ, vPA, vPV, vPT, vC1, vC2, vL16, vZ = 208, 209, 39, 211, 212, 213, 38, 210
RT = 216
C0 = 232
XF, BF, EXTW, CSF = 0, 160, 220, 240
t0, t1, t2, t3, t4, t5 = range(vTMP, vTMP + 6)

XS = 0
X_JOB, X_RING, X_NS, X_SLOT = 49152, 81920, 5, 16384
Y_TBL, Y_RING, Y_NS, Y_SLOT = 49152, 57344, 5, 20480
EXT_L = XS + 16384
AG_L = XS
HT2_L = 0

class Ctx:
    def __init__(self, typ, opt):
        self.typ = typ; self.opt = opt; self.slow = []; self.npoll = 0
        self.ts = Stamper(opt.get('ts'))

def bf16r(p, v): p.e(f"v_cvt_pk_bf16_f32 v{v}, v{v}, v{v}\nv_and_b32 v{v}, s{sMASK}, v{v}")

def retry(c, loads, check, probe=None):
    k = c.npoll; c.npoll += 1
    L = f"{c.typ}_poll{k}"
    q = Prog()
    q.e(f"{L}_slow:\ns_mov_b32 s{sSP}, 0x40000\n{L}_lp:\ns_sleep {OPT.get('sleep', 1)}\ns_sub_u32 s{sSP}, s{sSP}, 1\ns_cmp_eq_u32 s{sSP}, 0\ns_cbranch_scc1 {L}_ret")
    if probe and OPT.get('probe', 1):
        q.e(probe[0] + "\ns_waitcnt vmcnt(0)\n" + probe[1] + f"\ns_cbranch_vccnz {L}_lp")
    q.e(loads + "\ns_waitcnt vmcnt(0)\n" + check)
    q.e(f"s_cbranch_vccnz {L}_lp\ns_branch {L}_ret")
    c.slow.append(q.finalize())
    if OPT.get('nospin') and 'v211' not in check: return code(check + f"\n{L}_ret:")
    return code(check + f"\ns_cbranch_vccnz {L}_slow\n{L}_ret:")
def retry2(c, loads, regs, tmp, sp):
    k = c.npoll; c.npoll += 1
    L = f"{c.typ}_poll{k}"
    chk = f"v_xor_b32 v{tmp}, s{sN}, v{regs[0]}\n" + "".join(f"v_bitop3_b32 v{tmp}, v{tmp}, v{r}, s{sN} bitop3:0xf6\n" for r in regs[1:]) + f"v_cmp_ne_u32 s[{sp}:{sp+1}], 0, v{tmp}\ns_cmp_lg_u64 s[{sp}:{sp+1}], 0"
    q = Prog()
    q.e(f"{L}_slow:\ns_mov_b32 s{sSP}, 0x40000\n{L}_lp:\ns_sleep {OPT.get('sleep', 1)}")
    q.e(loads + "\ns_waitcnt vmcnt(0)\n" + chk)
    q.e(f"s_cbranch_scc0 {L}_ret\ns_sub_u32 s{sSP}, s{sSP}, 1\ns_cmp_lg_u32 s{sSP}, 0\ns_cbranch_scc1 {L}_lp\ns_branch {L}_ret")
    c.slow.append(q.finalize())
    if OPT.get('nospin'): return code(chk + f"\n{L}_ret:")
    return code(chk + f"\ns_cbranch_scc1 {L}_slow\n{L}_ret:")
def tagcheck(regs):
    t = f"v_xor_b32 v{vPV}, s{sN}, v{regs[0]}\n"
    for r in regs[1:]: t += f"v_bitop3_b32 v{vPV}, v{vPV}, v{r}, s{sN} bitop3:0xf6\n"
    return t + f"v_cmp_ne_u32 vcc, 0, v{vPV}"
NONCE_LD = lambda: f"buffer_load_dword v{vPT}, v{vZ}, {S(S_DBG)}, 0 offen sc1"
def nonce_get(c):
    return retry(c, NONCE_LD(), f"v_cmp_eq_u32 vcc, 0, v{vPT}") + code(f"v_readfirstlane_b32 s{sN}, v{vPT}")
def flag(soff):
    return code(f"buffer_store_dword v{vPT}, v{vFZ}, {S(S_WS)}, {soff} offen sc1", 'flag')

def nextkb(s, unit):
    return f"s_add_u32 s{s}, s{s}, {unit}\ns_cmp_eq_u32 s{s}, {10*unit}\ns_cselect_b32 s{s}, 0, s{s}"

def setup(p, opt):
    p.e("s_cmp_ge_u32 s2, 256\ns_cbranch_scc1 K_end")
    p.e("s_load_dwordx16 s[64:79], s[0:1], 0\ns_load_dwordx16 s[80:95], s[0:1], 64")
    p.e(f"v_and_b32 v{vL}, 63, v0\nv_lshrrev_b32 v{t0}, 6, v0\nv_lshlrev_b32 v{vL16}, 4, v{vL}")
    p.e(f"v_readfirstlane_b32 s{sW}, v{t0}")
    for i in range(opt.get('d0', 0)): p.e('s_sleep 36')
    for i in range(opt.get('pad', 0)): p.e(f"s_mov_b32 s{sT3}, 0x12345")
    p.e(f"s_and_b32 s{sMT}, s2, 3\ns_lshl_b32 s{sMT}, s{sMT}, 2\ns_bfe_u32 s{sT0}, s2, 0x20003\ns_add_u32 s{sMT}, s{sMT}, s{sT0}")
    p.e(f"s_and_b32 s{sSL}, s2, 4\ns_lshl_b32 s{sSL}, s{sSL}, 1\ns_lshr_b32 s{sT0}, s2, 5\ns_add_u32 s{sSL}, s{sSL}, s{sT0}\ns_lshr_b32 s{sI}, s{sSL}, 1")
    if opt.get('cpf', 1):
        p.e(f"s_getpc_b64 s[4:5]\nK_pc:\ns_mov_b32 s6, K_X-K_pc\ns_bitcmp1_b32 s{sSL}, 0\ns_cselect_b32 s6, K_Y-K_pc, s6\ns_and_b32 s7, s{sI}, 3\ns_lshl_b32 s7, s7, 2\ns_and_b32 s8, s{sMT}, 3\ns_add_u32 s7, s7, s8")
        p.e(f"s_lshl_b32 s7, s7, 11\ns_add_u32 s6, s6, s7\nv_lshrrev_b32 v{t5}, 4, v0\nv_lshlrev_b32 v{t5}, 7, v{t5}\nv_add_u32 v{t5}, s6, v{t5}\nv_min_u32 v{t5}, K_end-K_pc, v{t5}\nglobal_load_dword v250, v{t5}, s[4:5]", tag='cpf')
    p.e(f"s_mul_i32 s{sROT}, s{sMT}, {opt.get('rm', 3)}\ns_mul_i32 s{sT0}, s{sT0}, {opt.get('rs', 1)}\ns_add_u32 s{sROT}, s{sROT}, s{sT0}\ns_mul_i32 s{sT1}, s{sROT}, 205\ns_lshr_b32 s{sT1}, s{sT1}, 11\ns_mul_i32 s{sT1}, s{sT1}, 10\ns_sub_u32 s{sROT}, s{sROT}, s{sT1}")
    p.e(f"s_lshl_b32 s{sKX}, s{sROT}, 7\ns_mov_b32 s{sKB}, s{sROT}\ns_mov_b32 s{sMASK}, 0xffff0000")
    p.e(f"s_lshl_b32 s{sFL}, s{sMT}, 4\ns_add_u32 s{sFL}, s{sFL}, s{sSL}\ns_lshl_b32 s{sFL}, s{sFL}, 7\ns_add_u32 s{sFL}, s{sFL}, {HF_OFF}")
    p.e(f"s_lshl_b32 s{sT0}, s{sMT}, 7\ns_lshl_b32 s{sT1}, s{sW}, 5\ns_add_u32 s{sT1}, s{sT0}, s{sT1}\ns_mul_i32 s{sXR}, s{sT1}, 1280")
    for i in range(1, 4): p.e(f"s_add_u32 s{sXR+i}, s{sXR}, {(8*1280-1024)*i}")
    p.e(f"s_lshl_b32 s{sLB}, s{sW}, 12")
    p.e(f"s_lshl_b32 s{sT1}, s{sSL}, 3\ns_add_u32 s{sT0}, s{sT0}, s{sT1}\ns_lshl_b32 s{sT1}, s{sW}, 1\ns_add_u32 s{sT0}, s{sT0}, s{sT1}")
    p.e(f"s_mul_i32 s{sU0}, s{sT0}, 1280\ns_lshl_b32 s{sU1}, s{sT0}, 4\ns_add_u32 s{sU1}, s{sU1}, {ST_OFF}")
    p.e(f"v_lshrrev_b32 v{t0}, 3, v{vL}\nv_and_b32 v{t1}, 7, v{vL}")
    p.e(f"v_lshrrev_b32 v{t2}, 5, v{vL}\nv_mul_u32_u24 v{t2}, 1280, v{t2}\nv_and_b32 v{t3}, 31, v{vL}\nv_lshl_add_u32 v{t4}, v{t3}, 3, v{t2}")
    p.e(f"v_lshrrev_b32 v{t2}, 4, v{vL}\nv_xor_b32 v{t2}, v{t1}, v{t2}\nv_lshlrev_b32 v{t2}, 4, v{t2}\nv_mul_u32_u24 v{t3}, 1280, v{t0}")
    p.e(f"v_add_u32 v{vXD}, v{t2}, v{t3}\nv_xor_b32 v{vXD+1}, 64, v{vXD}")
    p.e(f"v_mov_b32 v{vZ}, 0\nv_mov_b32 v{t2}, {OOB}\nv_cmp_eq_u32 vcc, 0, v0\nv_cndmask_b32 v{vFZ}, v{t2}, v0, vcc")
    p.e(f"s_cmp_eq_u32 s2, 0\ns_cselect_b32 s{sT0}, 0, {OOB}\nv_or_b32 v{vPA}, s{sT0}, v{vFZ}")

def first_loads(p, b0):
    x0 = x_dma(0)
    k1 = [i for i, it in enumerate(x0) if isinstance(it, I) and it.kind == 'vm']
    k2 = [i for i, it in enumerate(b0) if isinstance(it, I) and it.kind == 'vm']
    m0x = [it for it in x0 if isinstance(it, I) and ('x', 'm0') in it.defs][0]
    m0b = [it for it in b0 if isinstance(it, I) and ('x', 'm0') in it.defs][0]
    p.extend(x0[:k1[0] + 1]); p.extend(b0[:k2[1] + 1])
    p.add(I(m0x.text)); p.extend(x0[k1[0] + 1:])
    p.add(I(m0b.text)); p.extend(b0[k2[1] + 1:])
    srd(p, S_DBG, P_DBG, 256)
    p.e(f"s_or_b32 s{sT3}, s2, 1\nv_mov_b32 v{vPT}, s{sT3}\nbuffer_store_dword v{vPT}, v{vPA}, {S(S_DBG)}, 0 offen sc1")
    if OPT.get('stouch', 21):
        G = OPT.get('stouch', 21)
        n = (WS_USED >> G) // 64 + 1
        p.e(f"s_and_b32 s28, s{sSL}, 7\ns_lshl_b32 s28, s28, 1\ns_and_b32 s29, s{sMT}, 1\ns_add_u32 s28, s28, s29\ns_lshl_b32 s28, s28, 2\ns_add_u32 s28, s28, s{sW}\ns_lshl_b32 s28, s28, {G}")
        for i in range(n):
            p.e(f"s_min_u32 s29, s28, {WS_USED - 4 & ~3}\ns_load_dword s30, s[{P_WS}:{P_WS+1}], s29\ns_min_u32 s29, s28, {2048*2560 - 4}\ns_load_dword s31, s[{P_OUT}:{P_OUT+1}], s29\ns_add_u32 s28, s28, {64 << G}")

def early_loads(p, typ):
    for i in range(5):
        p.e(f"buffer_load_dwordx2 {V(RT+2*i,2)}, v{t4}, {S(S_X)}, s{sU0} offen offset:{256*i}", tag='sx')
def code_prefetch(p, typ):
    if OPT.get('cpf', 1) == 2:
        p.e(f"s_getpc_b64 s[24:25]\n{typ}_pc:\nv_lshlrev_b32 v{t5}, 7, v0\nv_min_u32 v{t5}, {typ}_end-{typ}_pc, v{t5}\nglobal_load_dword v250, v{t5}, s[24:25]")

CPN = [0]
def code_ahead(typ, dst, tmp, sp, skip=2048, lines=32):
    L = f"{typ}_ca{CPN[0]}"; CPN[0] += 1
    return [Group(code(f"s_getpc_b64 s[{sp}:{sp+1}]\n{L}:\nv_lshrrev_b32 v{tmp}, {6 - (lines.bit_length() - 1)}, v0\nv_lshlrev_b32 v{tmp}, 7, v{tmp}\nv_add_u32 v{tmp}, {skip}, v{tmp}\n"
                f"v_min_u32 v{tmp}, {typ}_end-{L}, v{tmp}\nglobal_load_dword v{dst}, v{tmp}, s[{sp}:{sp+1}]"))]

def x_dma(j):
    q = Prog()
    q.wait_lgkm(('xr', j - 3))
    q.e(f"v_add_u32 v{vXC}, s{sKX}, v{vXD}\nv_add_u32 v{vXC+1}, s{sKX}, v{vXD+1}\ns_add_u32 m0, s{sLB}, {XS + (j % 3) * 16384}")
    for i in range(4):
        q.e(f"buffer_load_dwordx4 v{vXC+(i&1)}, {S(S_X)}, s{sXR+i} offen offset:{1024*i}{NT('ntx')} lds", tag=('x', j))
    q.e(nextkb(sKX, 128))
    return q.items
def x_read(j):
    q = Prog(); q.wait_vm(('x', j))
    for s in range(4): q.e(f"ds_read_b128 {A(XF+16*j+4*s,4)}, v{vSR+s} offset:{(j % 3) * 16384}", ('xr', j))
    return q.items

def ffn_dma(base, j):
    q = Prog()
    q.e(f"s_mul_i32 s{sD0}, s{sKB}, {64*3072}\ns_add_u32 s{sD0}, s{sD0}, s{sDB}\ns_add_u32 s{sD1}, s{sD0}, {8*3072-2048}\ns_add_u32 m0, s{sLB}, {base}")
    q.e(f"buffer_load_dwordx4 v{vD}, {S(S_W1)}, s{sD0} offen{NT('ntw')} lds", tag=('slot', j))
    q.e(f"buffer_load_dwordx4 v{vD+1}, {S(S_W3)}, s{sD0} offen offset:1024{NT('ntw')} lds", tag=('slot', j))
    q.e(f"buffer_load_dwordx4 v{vD}, {S(S_W1)}, s{sD1} offen offset:2048{NT('ntw')} lds", tag=('slot', j))
    q.e(f"buffer_load_dwordx4 v{vD+1}, {S(S_W3)}, s{sD1} offen offset:3072{NT('ntw')} lds", tag=('slot', j))
    q.e(nextkb(sKB, 1))
    return q.items
def ssm_dma(base, j):
    q = Prog()
    q.e(f"s_lshl_b32 s{sD0}, s{sKB}, 7\nv_add_u32 v{vDC}, s{sD0}, v{vDS}\ns_add_u32 m0, s{sLBS}, {base}")
    for t in range(4):
        q.e(f"buffer_load_dwordx4 v{vDC}, {S(S_B)}, s{sBT+t} offen offset:{1024*t}{NT('ntw')} lds", tag=('slot', j))
    q.e(f"s_add_u32 m0, s{sLBS}, {base + 4096}")
    q.e(f"buffer_load_dwordx4 v{vDC}, {S(S_B)}, s{sBT+4} offen{NT('ntw')} lds", tag=('slot', j))
    q.e(nextkb(sKB, 1))
    return q.items

def ffn_dma_addr(p):
    p.e(f"v_bfe_u32 v{t2}, v{vL}, 4, 1\nv_lshlrev_b32 v{t2}, 1, v{t2}\nv_xor_b32 v{t2}, v{t1}, v{t2}\nv_lshlrev_b32 v{t2}, 4, v{t2}")
    p.e(f"v_mul_u32_u24 v{t3}, 3072, v{t0}\nv_add_u32 v{vD}, v{t2}, v{t3}\nv_xor_b32 v{vD+1}, 64, v{vD}")
def ffn_srd(p):
    srd(p, S_W1, P_W1, 640 * 3072)
    srd(p, S_W3, P_W3, 640 * 3072 + 1024, -1024)

def common_addr(p):
    p.e(f"v_bfe_u32 v{t2}, v{vL}, 2, 1\nv_lshlrev_b32 v{t2}, 4, v{t2}\nv_bfe_u32 v{t3}, v{vL}, 3, 2\nv_lshl_add_u32 v{t2}, v{t3}, 2, v{t2}")
    p.e(f"v_and_b32 v{t3}, 3, v{vL}\nv_add_u32 v{t2}, v{t2}, v{t3}\nv_lshlrev_b32 v{vC1}, 4, v{t2}")
    p.e(f"v_bfe_u32 v{t3}, v{t2}, 1, 3\nv_lshrrev_b32 v{vSR}, 5, v{vL}\nv_xor_b32 v{t3}, v{t3}, v{vSR}\nv_lshlrev_b32 v{t3}, 4, v{t3}")
    p.e(f"v_lshl_add_u32 v{t3}, v{t2}, 7, v{t3}\nv_add_u32 v{vSR}, s{sLB}, v{t3}")
    for s in range(1, 4): p.e(f"v_xor_b32 v{vSR+s}, {32*s}, v{vSR}")
    p.e(f"v_bfe_u32 v{t2}, v{vL}, 2, 1\nv_lshlrev_b32 v{t2}, 10, v{t2}\nv_bfe_u32 v{t3}, v{vL}, 3, 3\nv_lshl_add_u32 v{t2}, v{t3}, 6, v{t2}")
    p.e(f"v_and_b32 v{t3}, 3, v{vL}\nv_lshl_add_u32 v{vH}, v{t3}, 4, v{t2}")
    for i in range(4): p.e(f"v_mov_b32 v{vONE+i}, 0x3f803f80")
    srd(p, S_WS, P_WS, WS_USED)
    p.e(f"s_lshl_b32 s{sT0}, s{sMT}, 1\ns_lshr_b32 s{sT1}, s{sW}, 1\ns_add_u32 s{sT0}, s{sT0}, s{sT1}\ns_mul_i32 s{sT0}, s{sT0}, 88")
    p.e(f"s_mul_i32 s{sT1}, s{sI}, 11\ns_add_u32 s{sT0}, s{sT0}, s{sT1}\ns_lshl_b32 s{sH}, s{sT0}, 12")
    p.e(f"s_and_b32 s{sT1}, s{sW}, 1\ns_lshl_b32 s{sT1}, s{sT1}, 11\ns_add_u32 s{sH}, s{sH}, s{sT1}")

def tr_addrs(p, base):
    p.e(f"v_bfe_u32 v{t0}, v{vL}, 4, 1\nv_lshrrev_b32 v{t1}, 5, v{vL}\nv_lshlrev_b32 v{t1}, 11, v{t1}\nv_lshl_add_u32 v{t1}, v{t0}, 10, v{t1}")
    p.e(f"v_bfe_u32 v{t2}, v{vL}, 2, 2\nv_lshl_add_u32 v{t1}, v{t2}, 7, v{t1}\nv_and_b32 v{t3}, 3, v{vL}\nv_lshl_add_u32 v{t1}, v{t3}, 3, v{t1}")
    p.e(f"v_bfe_u32 v{t2}, v{vL}, 3, 1\nv_lshl_add_u32 v{t2}, v{t0}, 1, v{t2}\nv_lshl_add_u32 v{t1}, v{t2}, 5, v{t1}")
    p.e(f"v_add_u32 v{vT}, {base}, v{t1}")
    for tau in range(1, 4): p.e(f"v_xor_b32 v{vT+tau}, {32*tau}, v{vT}")

def touch():
    q = Prog()
    q.e(f"v_lshlrev_b32 v{vPA}, 19, v{vL}\nv_min_u32 v{vPA}, {WS_USED - 4}, v{vPA}\nbuffer_load_dword v250, v{vPA}, {S(S_WS)}, 0 offen")
    q.e(f"v_min_u32 v{vPA}, {2048*2560 - 4}, v{vPA}\nglobal_load_dword v250, v{vPA}, s[{P_OUT}:{P_OUT+1}]")
    return q.items

def stats_job(p):
    R = RT; aQ, aS = TMP, TMP + 1
    p.e(f"v_mov_b32 v{aS}, 0\nv_mov_b32 v{aQ}, 0")
    for d in range(10):
        p.e(f"v_dot2c_f32_bf16 v{aS}, v{vONE}, v{R+d}\nv_dot2c_f32_bf16 v{aQ}, v{R+d}, v{R+d}")
    p.e("s_nop 2")
    for perm in ("quad_perm:[1,0,3,2] row_mask:0xf", "quad_perm:[2,3,0,1] row_mask:0xf", "row_half_mirror row_mask:0xf", "row_mirror row_mask:0xf", "row_bcast:15 row_mask:0xa"):
        for r in (aS, aQ): p.e(f"v_add_f32_dpp v{r}, v{r}, v{r} {perm} bank_mask:0xf")
    inv = f2u(1.0 / 640)
    p.e(f"v_mul_f32 v{aS}, {inv}, v{aS}\nv_mul_f32 v{aQ}, {inv}, v{aQ}\nv_fma_f32 v{aQ}, -v{aS}, v{aS}, v{aQ}\nv_max_f32 v{aQ}, 0, v{aQ}")
    p.e(f"v_sub_f32 v{aS}, 0, v{aS}\nv_cvt_pk_bf16_f32 v{aS}, v{aS}, v{aS}")
    bf16r(p, aQ)
    p.e(f"v_add_f32 v{aQ}, {f2u(1e-5)}, v{aQ}")
    bf16r(p, aQ)
    p.e(f"v_sqrt_f32 v{aQ}, v{aQ}")
    bf16r(p, aQ)
    p.e(f"v_rcp_f32 v{aQ}, v{aQ}")
    p.e(f"v_and_b32 v{R}, 31, v{vL}\nv_cmp_eq_u32 vcc, 16, v{R}\nv_lshrrev_b32 v{R}, 1, v{vL}\nv_and_b32 v{R}, 16, v{R}\nv_mov_b32 v{R+1}, {OOB}\nv_cndmask_b32 v{R}, v{R+1}, v{R}, vcc")
def stats_store():
    return code(f"v_mov_b32 v{TMP+2}, s{sN}\nv_mov_b32 v{TMP+3}, s{sN}\nbuffer_store_dwordx4 {V(TMP,4)}, v{RT}, {S(S_WS)}, s{sU1} offen sc1", 'pub')

def cs_store_addr(q, gidexpr):
    q.e(gidexpr)
    q.e(f"s_mul_i32 s{sU3}, s{sT0}, 12800\ns_add_u32 s{sU3}, s{sU3}, {CS_OFF}\ns_mul_i32 s{sT0}, s{sROT}, 1280\ns_add_u32 s{sU2}, s{sU3}, s{sT0}")
    q.e(f"s_lshl_b32 s{sT0}, s{sW}, 8\ns_add_u32 s{sU2}, s{sU2}, s{sT0}\ns_add_u32 s{sU3}, s{sU3}, s{sT0}")
    q.e(f"s_cmp_lt_u32 s{sMT}, 10\ns_cselect_b32 s{sT0}, 32, 0\nv_cmp_gt_u32 vcc, s{sT0}, v{vL}\nv_lshlrev_b32 v{t4}, 3, v{vL}\nv_mov_b32 v{t5}, {OOB}\nv_cndmask_b32 v{t4}, v{t5}, v{t4}, vcc")

def cs_produce_ffn(acc, gidexpr):
    q = Prog()
    q.e(f"s_lshl_b32 s{sT0}, s{sW}, 5\nv_xor_b32 v{vTW}, s{sT0}, v{vT}")
    for s in range(4):
        for t in range(2):
            q.e(f"ds_read_b64_tr_b16 {A(CSF+4*s+2*t,2)}, v{vTW} offset:{s*4096 + t*512}")
    cs_store_addr(q, gidexpr)
    for s in range(4):
        q.e(f"v_mfma_f32_32x32x16_bf16 {V(acc,16)}, {V(vONE,4)}, {A(CSF+4*s,4)}, {'0' if s == 0 else V(acc,16)}")
    st = code(f"v_mov_b32 v{acc+1}, s{sN}\nbuffer_store_dwordx2 {V(acc,2)}, v{t4}, {S(S_WS)}, s{sU2} offen sc1", 'pub')
    return q.items, st

def cs_consume(c, ntile, R0):
    q = Prog()
    q.e(f"v_lshrrev_b32 v{vPA}, 5, v{vL}\nv_mul_u32_u24 v{vPA}, 6400, v{vPA}\nv_and_b32 v{t5}, 31, v{vL}\nv_lshl_add_u32 v{vPA}, v{t5}, 3, v{vPA}")
    q.e(f"s_add_u32 s{sU2}, s{sU3}, 3840")
    rounds = [(R0, 0)]
    ld = ""
    for i in range(5): ld += f"buffer_load_dwordx2 {V(R0+2*i,2)}, v{vPA}, {S(S_WS)}, s{sU3 if i < 3 else sU2} offen offset:{1280*(i%3)} sc1\n"
    if ntile == 5:
        q.e(f"s_lshl_b32 s86, s{sW}, 8\ns_sub_u32 s86, 1024, s86\nv_add_u32 v{vTW}, s86, v{vPA}")
        for i in range(5): ld += f"buffer_load_dwordx2 {V(R0+10+2*i,2)}, v{vTW}, {S(S_WS)}, s{sU3 if i < 3 else sU2} offen offset:{1280*(i%3)} sc1\n"
        rounds.append((R0 + 10, 1))
    a = (q.items, code(ld))
    q = Prog()
    q.extend(retry(c, ld, tagcheck([R0 + 1 + 2 * i for i in range(5 * len(rounds))])))
    q.e(f"v_cmp_gt_u32 vcc, 32, v{vL}")
    for (R, which) in rounds:
        q.e(f"v_add_f32 v{R}, v{R}, v{R+2}\nv_add_f32 v{R+4}, v{R+4}, v{R+6}\nv_add_f32 v{R}, v{R}, v{R+8}\nv_add_f32 v{R}, v{R}, v{R+4}")
        q.e(f"v_mov_b32 v{R+1}, v{R}\nv_mov_b32 v{R+6}, 0\nv_mov_b32 v{R+7}, 0\nv_permlane32_swap_b32 v{R}, v{R+1}\nv_add_f32 v{R}, v{R}, v{R+1}\nv_cndmask_b32 v{R}, 0, v{R}, vcc")
        q.e(f"v_cvt_pk_bf16_f32 v{R+1}, v{R}, v{R}\nv_and_b32 v{R+1}, s{sMASK}, v{R+1}\nv_sub_f32 v{R}, v{R}, v{R+1}")
        q.e(f"v_cvt_pk_bf16_f32 v{R+4}, v{R+1}, v{R}\nv_and_b32 v{R+2}, s{sMASK}, v{R+4}\nv_sub_f32 v{R}, v{R}, v{R+2}")
        q.e(f"v_cvt_pk_bf16_f32 v{R+5}, v{R}, 0")
        if which == 0:
            q.e(f"s_lshr_b32 s86, s{sLB}, 2\nv_add_u32 v{t5}, s86, v{vL16}")
            q.e(f"ds_write_b128 v{t5}, {V(R+4,4)} offset:{EXT_L}", tag='ext')
        else:
            q.e(f"ds_write_b128 v{vL16}, {V(R+4,4)} offset:{EXT_L + 4096}", tag='ext')
    return a, q.items
def ext_read(ntile):
    return code("\n".join(f"ds_read_b128 {A(EXTW+4*t,4)}, v{vL16} offset:{EXT_L + 1024*t}" for t in range(ntile)))

def stats_consume(c):
    q = Prog()
    q.e(f"s_lshl_b32 s87, s{sMT}, 11\ns_lshl_b32 s86, s{sW}, 9\ns_add_u32 s87, s87, s86\ns_add_u32 s{sU0}, s87, {ST_OFF}")
    ld = f"buffer_load_dwordx4 {V(vEX,4)}, v{vC1}, {S(S_WS)}, s{sU0} offen sc1"
    q.e(ld)
    a = q.items
    q = Prog()
    q.extend(retry(c, ld, tagcheck([vEX + 2, vEX + 3])))
    if c.typ == 'Y':
        q.e(f"s_lshl_b32 s{sT0}, s{sW}, 7\ns_add_u32 s{sT0}, s{sT0}, 159744")
        q.e(f"v_lshrrev_b32 v{t3}, 2, v{vC1}\nv_add_u32 v{t3}, s{sT0}, v{t3}\nds_write_b32 v{t3}, v{vEX}")
        q.e(f"v_lshrrev_b32 v{t2}, 5, v{vL}\nv_lshlrev_b32 v{t2}, 6, v{t2}\nv_add_u32 v{t2}, s{sT0}, v{t2}")
        for i in range(4): q.e(f"ds_read_b128 {V(RT+4*i,4)}, v{t2} offset:{16*i}")
    q.e(f"v_mul_f32 v{vC1}, {NLOG2E}, v{vEX}\nv_rcp_f32 v{vC2}, v{vEX}\nv_mov_b32 v{vEX}, v{vEX+1}\nv_mov_b32 v{vEX+2}, v{vEX+1}\nv_mov_b32 v{vEX+3}, v{vEX+1}")
    q.e(f"v_mul_f32 v{vC2}, v{vC2}, v{vC2}")
    return a, q.items

def ffn_epi(acc, pos, imm):
    p = Prog(); tmp = TMP
    for r in range(8): p.e(f"v_mul_f32 v{tmp+r}, v{vC1}, v{acc+r}")
    for r in range(8): p.e(f"v_exp_f32 v{tmp+r}, v{tmp+r}\nv_mul_f32 v{acc+r}, v{acc+r}, v{acc+8+r}")
    for r in range(8): p.e(f"v_fma_f32 v{tmp+r}, v{tmp+r}, v{vC2}, v{vC2}")
    for r in range(8): p.e(f"v_rcp_f32 v{tmp+r}, v{tmp+r}")
    p.e(f"s_add_u32 s{sT2}, s{sH}, {pos*4096}")
    for r in range(8): p.e(f"v_mul_f32 v{acc+r}, v{acc+r}, v{tmp+r}")
    for r in range(4): p.e(f"v_cvt_pk_bf16_f32 v{acc+8+r}, v{acc+2*r}, v{acc+2*r+1}")
    p.e(f"buffer_store_dwordx4 {V(acc+8,4)}, v{vH}, {S(S_WS)}, s{sT2} offen offset:{imm} sc1", tag='h')
    if OPT.get('dual'): p.e(f"buffer_store_dwordx4 {V(acc+8,4)}, v{vH}, {S(S_WS)}, s{sT2} offen offset:{imm}", tag='h')
    return p.items

class Ring:
    def __init__(self, reg, n, cur): self.reg = reg; self.n = n; self.cur = cur
    def off(self, base, span, out):
        if base < self.cur or base + span - self.cur > 65536:
            out += code("\n".join(f"v_add_u32 v{self.reg+i}, {(base - self.cur) & 0xffffffff}, v{self.reg+i}" for i in range(self.n)))
            self.cur = base
        return base - self.cur

def build_steps(c, kinds, slot_base, dma, NS, rT, rB, pre_extra, late):
    steps = []
    TMB = OPT.get('tmb', 3); TM0 = 80 - 4 * TMB
    reads = []
    for n in range(80):
        j, s = divmod(n, 4); buf = BF + (n % 3) * 20 if kinds[j] == 'S' else (160, 180, 196)[n % 3]
        base = slot_base(j)
        rd = []
        if kinds[j] == 'F':
            acc = ACC1 if (j < 10) else ACC2
            mf = []
            for e in range(4):
                tau, jj, ss = e, j, s
                if n >= TM0: tau, jj, ss = (n - TM0) // TMB, 20 - TMB + (n - TM0) % TMB, e
                o = []
                off = rT.off(slot_base(jj), 16384, o)
                o += code("\n".join(f"ds_read_b64_tr_b16 {A(buf+4*e+2*t,2)}, v{vT+tau} offset:{off + ss*4096 + t*512}" for t in range(2)), ('rd', n))
                rd.append(o)
                cc = "0" if n % 40 == 0 else V(acc + 16 * tau, 16)
                mf += code(f"v_mfma_f32_32x32x16_bf16 {V(acc+16*tau,16)}, {A(buf+4*e,4)}, {A(XF+4*((4*jj+ss)%40),4)}, {cc}")
        else:
            mf = []
            for t in range(5):
                o = []
                off = rB.off(base, 20480, o)
                o += code(f"ds_read_b128 {A(buf+4*t,4)}, v{vBR+s} offset:{off + 1024*t}", ('rd', n))
                rd.append(o)
                cc = "0" if n == 0 else V(ACC1 + 16 * t, 16)
                mf += code(f"v_mfma_f32_32x32x16_bf16 {V(ACC1+16*t,16)}, {A(XF+4*n,4)}, {A(buf+4*t,4)}, {cc}")
        reads.append(rd)
        steps.append(dict(pre=[], mf=mf, rd=[[] for _ in mf]))
    for n in range(80):
        st = steps[n]; j, s = divmod(n, 4)
        if c.opt.get('st0') is not None: st['pre'] += code(f'.set STEPMARK{c.typ}{n}, 0')
        if c.opt.get('ts') == 2 and s == 0: st['pre'] += [LazyStamp(c.ts)]
        if OPT.get('dstep') == n: st['pre'] += code('s_sleep 36')
        st['pre'] += [Marker('lgkm', ('rd', n))]
        syncs = [j + 1] if (s == 2 and j + 1 <= 20 - TMB) else []
        if n == TM0 - 1: syncs = list(range(21 - TMB, 20))
        if syncs:
            sy = [x for k in syncs for x in pre_extra.get(('sync', k), []) + [Marker('vm', ('slot', k))]] + [Marker('lgkm', ['ext', 'agw'])] + ([] if OPT.get('nobar') else code("s_barrier")) + [x for k in syncs for x in pre_extra.get(('post', k), [])]
            st['rd'][0] += sy
        if n + 2 < 80:
            src = reads[n + 2]; g = len(st['mf'])
            st['rd'][min(len(src), g) - 1] += [Marker('lgkm', ('rd', n + 1))]
            for i, o in enumerate(src): st['rd'][min(i, g - 1)] += o
        if s == 1 and j + 1 < 10:
            st['rd'][0] += x_read(j + 1)
    for tau in range(4):
        st = steps[TM0 + TMB * tau + TMB - 1]
        st['mf'] += code(f"v_mfma_f32_32x32x16_bf16 {V(ACC2+16*tau,16)}, {A(EXTW+4*tau,4)}, {V(vEX,4)}, {V(ACC2+16*tau,16)}"); st['rd'] += [[]]
    c.TM0, c.TMB = TM0, TMB
    va = VmAlloc(steps); c.va = va
    LR, LX = OPT.get('leadr', 7), OPT.get('leadx', 5)
    E1 = OPT.get('e1', 1)
    va.place(0, x_dma(2), stride=E1); va.place(0, dma(2), stride=E1)
    for its in late.get(0, []): va.place(0, its, stride=E1)
    va.place(1, x_dma(3), by=9 - LX); va.place(0, dma(3), by=10 - LR)
    va.place(3, x_dma(4), by=13 - LX); va.place(3, dma(4), by=14 - LR)
    for j in range(1, 20):
        if j - 1 + NS < 20: va.place(4 * j + 2, dma(j - 1 + NS), by=4 * (j - 2 + NS) + 2 - LR)
        if j + 4 < 10: va.place(4 * j + 3, x_dma(j + 4), by=4 * (j + 3) + 1 - LX)
        for its in late.get(j, []): va.place(4 * j + 3, its)
    c.joblast = max([e[3][0] for e in va.log if e[1] is None] + [0])
    if OPT.get('vlog'): print(va.log, file=sys.stderr)
    return steps, reads[0], reads[1]

class VmAlloc:
    def __init__(self, steps):
        self.steps = steps; self.used = set(); self.dma_next = 0; self.log = []; self.b_next = 0; self.iv = []
        self.gaps = [(n, g) for n, st in enumerate(steps) for g in range(len(st['mf']))]
        self.first = {}
        for i, (n, g) in enumerate(self.gaps): self.first.setdefault(n, i)
    def light(self, n, its):
        i = self.first[n]
        for it in its:
            while i in self.used: i += 1
            a, b = self.gaps[i]
            self.steps[a]['rd'][b] += it.its if isinstance(it, Group) else [it]; self.used.add(i)
        return self.gaps[i]
    def place(self, n, its, dma=True, stride=None, by=None):
        stride = stride or OPT.get('vstride', 2)
        groups, cur = [], []
        for it in its:
            cur.append(it)
            if isinstance(it, I) and it.kind == 'vm': groups.append(cur); cur = []
        if cur: groups[-1] += cur
        i0 = self.first[n]
        if dma == 'b': i0 = max(i0, self.b_next)
        elif dma is True: i0 = max(i0, self.dma_next)
        inside = (lambda i: any(a < i < b for a, b in self.iv)) if dma == 'l' else (lambda i: False)
        if dma == 'l': i0 = max(i0, self.b_next)
        for st_ in range(stride, 0, -1):
            i = i0; pos = []; used = set(self.used)
            for grp in groups:
                while inside(i) or any((i + d) in used for d in range(-st_ + 1, st_)): i += 1
                pos.append(i); used.add(i)
            if by is None or i < self.first[max(by, 0)] or st_ == 1: break
        if i >= len(self.gaps): return False
        for grp, k in zip(groups, pos):
            a, b = self.gaps[k]
            self.steps[a]['rd'][b] += grp; self.used.add(k)
        self.log.append((n, by, self.gaps[pos[0]], self.gaps[pos[-1]]))
        if dma in ('b', 'l'): self.b_next = i + 1
        elif dma: self.dma_next = i + 1; self.iv.append((pos[0], pos[-1]))
        return True

def flat(rd): return [x for o in rd for x in o]

sJW, sJ0, sJ1, sJ2, sJ3, sJ4 = 16, 17, 18, 19, sLBS, sBT
def lam_consts(q, L, pows, coef):
    lr, li, ld, a2, rev, O, u = L + 1, L + 2, L + 3, L + 4, L + 5, L + 8, L + 16
    q.e(f"v_lshlrev_b32 v{lr}, 16, v{lr}\nv_lshlrev_b32 v{li}, 16, v{li}\nv_lshlrev_b32 v{ld}, 16, v{ld}")
    q.e(f"v_mul_f32 v{ld}, {LOG2E}, v{ld}\nv_exp_f32 v{ld}, v{ld}")
    bf16r(q, ld)
    q.e(f"v_mul_f32 v{a2}, v{ld}, v{lr}\nv_mul_f32 v{rev}, v{ld}, v{li}\nv_mul_f32 v{a2}, {LOG2E}, v{a2}\nv_mul_f32 v{rev}, {INV2PI}, v{rev}")
    for n, k in enumerate(pows):
        if k != 1: q.e(f"v_mul_f32 v{u}, {f2u(float(k))}, v{a2}\nv_mul_f32 v{u+1}, {f2u(float(k))}, v{rev}\nv_exp_f32 v{u}, v{u}\nv_fract_f32 v{u+1}, v{u+1}")
        else: q.e(f"v_exp_f32 v{u}, v{a2}\nv_fract_f32 v{u+1}, v{rev}")
        q.e(f"v_cos_f32 v{u+2}, v{u+1}\nv_sin_f32 v{u+3}, v{u+1}\nv_mul_f32 v{O+2*n}, v{u}, v{u+2}\nv_mul_f32 v{O+2*n+1}, v{u}, v{u+3}")
    if coef:
        q.e(f"v_add_f32 v{u}, -1.0, v{O}\nv_mul_f32 v{u+1}, v{lr}, v{lr}\nv_fmac_f32 v{u+1}, v{li}, v{li}\nv_rcp_f32 v{u+1}, v{u+1}")
        q.e(f"v_mul_f32 v{u+2}, v{u}, v{lr}\nv_fmac_f32 v{u+2}, v{O+1}, v{li}\nv_mul_f32 v{u+3}, v{O+1}, v{lr}\nv_fma_f32 v{u+3}, -v{u}, v{li}, v{u+3}")
        q.e(f"v_add_f32 v{u+1}, v{u+1}, v{u+1}\nv_mul_f32 v{L+4}, v{u+2}, v{u+1}\nv_mul_f32 v{L+5}, v{u+3}, v{u+1}")

def jobs(c):
    JL = ACC2 + 32
    q = Prog()
    q.e(f"s_lshl_b32 s{sT0}, s{sI}, 4\ns_add_u32 s{sT0}, s{sT0}, s{sMT}\ns_lshl_b32 s{sT0}, s{sT0}, 2\ns_add_u32 s{sJW}, s{sT0}, s{sW}\ns_lshl_b32 s{sJ3}, s{sW}, 13")
    q.e(f"s_min_u32 s{sT0}, s{sJW}, 479\ns_mul_i32 s{sJ1}, s{sT0}, 6554\ns_lshr_b32 s{sJ1}, s{sJ1}, 16\ns_mul_i32 s{sT2}, s{sJ1}, 10\ns_sub_u32 s{sJ0}, s{sT0}, s{sT2}")
    srd(q, S_J0, P_W2, 1536 * 1280)
    q.e(f"v_lshrrev_b32 v{t0}, 3, v{vL}\nv_and_b32 v{t1}, 7, v{vL}\nv_lshrrev_b32 v{t2}, 4, v{vL}\nv_lshlrev_b32 v{t2}, 1, v{t2}\nv_xor_b32 v{t2}, v{t1}, v{t2}\nv_lshlrev_b32 v{t2}, 4, v{t2}")
    q.e(f"v_mul_u32_u24 v{t3}, 1280, v{t0}\nv_add_u32 v{vBR}, v{t2}, v{t3}")
    q.e(f"s_mul_i32 s{sBT+1}, s{sJ1}, {32*1280}\ns_lshl_b32 s{sT3}, s{sJ0}, 7\ns_add_u32 s{sBT+1}, s{sBT+1}, s{sT3}")
    q.e(f"s_min_u32 s{sT0}, s{sJW}, 399\ns_mul_i32 s{sJ2}, s{sT0}, 6554\ns_lshr_b32 s{sJ2}, s{sJ2}, 16\ns_mul_i32 s{sT2}, s{sJ2}, 10\ns_sub_u32 s{sJW}, s{sT0}, s{sT2}")
    srd(q, S_J1, P_CRE, 640 * 1280)
    srd(q, S_AG, P_CIM, 640 * 1280 + 2048, -2048)
    q.e(f"s_mul_i32 s{sBT+2}, s{sJ2}, {16*1280}\ns_lshl_b32 s{sT3}, s{sJW}, 7\ns_add_u32 s{sBT+2}, s{sBT+2}, s{sT3}\ns_add_u32 s{sBT+3}, s{sBT+2}, {8*1280-1024}")
    q.e(f"v_lshlrev_b32 v{JL}, 1, v{vL}\nv_add_u32 v{JL}, s{sT3}, v{JL}")
    for k, ptr in enumerate((P_LRE, P_LIM, P_LDT)):
        q.e(f"global_load_ushort v{JL+1+k}, v{JL}, s[{ptr}:{ptr+1}]", tag='tbl')
    a = q.items
    q = Prog()
    q.e(f"s_add_u32 m0, s{sJ3}, {X_JOB}")
    for i in range(4):
        q.e(f"buffer_load_dwordx4 v{vBR}, {S(S_J0)}, s{sBT+1} offen offset:{1024*i}{NT('ntj')} lds", tag='jobA')
        if i < 3: q.e(f"s_add_u32 s{sBT+1}, s{sBT+1}, {8*1280-1024}")
    da = q.items
    q = Prog()
    q.e(f"s_add_u32 m0, s{sJ3}, {X_JOB + 4096}")
    for i, (sr, so) in enumerate(((S_J1, sBT + 2), (S_J1, sBT + 3), (S_AG, sBT + 2), (S_AG, sBT + 3))):
        q.e(f"buffer_load_dwordx4 v{vXD+(i&1)}, {S(sr)}, s{so} offen offset:{1024*i}{NT('ntj')} lds", tag='jobB')
    db = q.items
    q = Prog()
    q.e(f"v_bfe_u32 v{t0}, v{vL}, 2, 3\nv_lshrrev_b32 v{t1}, 5, v{vL}\nv_lshl_add_u32 v{t1}, v{t1}, 4, v{t0}")
    q.e(f"v_lshrrev_b32 v{t0}, 1, v{t0}\nv_lshlrev_b32 v{t0}, 5, v{t0}\nv_lshl_add_u32 v{t0}, v{t1}, 7, v{t0}\nv_and_b32 v{t1}, 3, v{vL}")
    q.e(f"v_lshl_add_u32 v{t0}, v{t1}, 3, v{t0}\nv_add_u32 v{vBR}, s{sJ3}, v{t0}")
    for tau in range(1, 4): q.e(f"v_xor_b32 v{vBR+tau}, {32*tau}, v{vBR}")
    q.e(f"s_mul_i32 s{sT0}, s{sJ1}, 43\ns_lshr_b32 s{sT0}, s{sT0}, 8\ns_mul_i32 s{sT0}, s{sT0}, 5\ns_add_u32 s{sT0}, s{sT0}, s{sJ1}\ns_mul_i32 s{sJ1}, s{sT0}, 5")
    q.wait_vm('jobA')
    for tau in range(4):
        for t in range(2): q.e(f"ds_read_b64_tr_b16 {V(CSA+4*tau+2*t,2)}, v{vBR+tau} offset:{X_JOB + 1024*t}")
    for tau in range(4):
        q.e(f"s_lshl_b32 s{sT0}, s{sJ0}, 2\ns_add_u32 s{sT0}, s{sT0}, {tau}\ns_mul_i32 s{sT1}, s{sT0}, 52\ns_lshr_b32 s{sT1}, s{sT1}, 8")
        q.e(f"s_mul_i32 s{sT2}, s{sT1}, 435\ns_add_u32 s{sT0}, s{sT0}, s{sT2}\ns_add_u32 s{sT0}, s{sT0}, s{sJ1}")
        q.e(f"s_lshl_b32 s{sT0}, s{sT0}, 10\ns_add_u32 s{sT0}, s{sT0}, {W2S_OFF}")
        q.e(f"buffer_store_dwordx4 {V(CSA+4*tau,4)}, v{vL16}, {S(S_WS)}, s{sT0} offen sc1", tag='pub')
    pa = q.items
    q = Prog()
    lam_consts(q, JL, [1], True)
    q.e(f"v_sub_f32 v{JL+5}, 0, v{JL+5}\nv_sub_f32 v{JL+6}, 0, v{JL+4}\nv_lshlrev_b32 v{t0}, 2, v{vL}\nv_add_u32 v{t0}, s{sJ3}, v{t0}")
    for k in range(3): q.e(f"ds_write_b32 v{t0}, v{JL+4+k} offset:{X_JOB + 256*k}")
    q.e(f"v_bfe_u32 v{t0}, v{vL}, 1, 3\nv_bfe_u32 v{t1}, v{vL}, 4, 1\nv_xor_b32 v{t0}, v{t0}, v{t1}\nv_lshlrev_b32 v{t0}, 4, v{t0}")
    q.e(f"v_and_b32 v{t2}, 15, v{vL}\nv_lshl_add_u32 v{t0}, v{t2}, 7, v{t0}\nv_add_u32 v{vBR}, s{sJ3}, v{t0}")
    for s in range(1, 4): q.e(f"v_xor_b32 v{vBR+s}, {32*s}, v{vBR}")
    q.e(f"v_lshrrev_b32 v{t2}, 5, v{vL}\nv_lshlrev_b32 v{t2}, 8, v{t2}\nv_lshl_add_u32 v{t2}, v{t1}, 5, v{t2}\nv_add_u32 v{vTW}, s{sJ3}, v{t2}")
    q.e(f"s_mul_i32 s{sT1}, s{sJ2}, 52\ns_lshr_b32 s{sT1}, s{sT1}, 8\ns_mul_i32 s{sT1}, s{sT1}, 435\ns_add_u32 s{sJ2}, s{sT1}, s{sJ2}")
    q.wait_vm('jobB')
    CR, CI, AL, BE, U = ACC2 + 16, ACC2 + 20, ACC2 + 32, ACC2 + 40, ACC2 + 24
    def rd(s):
        o = 24 * (s & 1) if False else 0
        q.e(f"ds_read_b128 {V(CR,4)}, v{vBR+s} offset:{X_JOB + 4096}\nds_read_b128 {V(CI,4)}, v{vBR+s} offset:{X_JOB + 4096 + 2048}")
        for h in range(2):
            q.e(f"ds_read_b128 {V(AL+4*h,4)}, v{vTW} offset:{X_JOB + 64*s + 16*h}\nds_read_b128 {V(BE+4*h,4)}, v{vTW} offset:{X_JOB + 256 + 64*s + 16*h}")
    for s in range(4):
        rd(s)
        q.e(f"s_lshl_b32 s{sT0}, s{sJW}, 2\ns_add_u32 s{sT0}, s{sT0}, {s}\ns_mul_i32 s{sT1}, s{sT0}, 52\ns_lshr_b32 s{sT1}, s{sT1}, 8\ns_mul_i32 s{sT1}, s{sT1}, 6")
        q.e(f"s_add_u32 s{sT0}, s{sT0}, s{sT1}\ns_mul_i32 s{sT0}, s{sT0}, 5\ns_add_u32 s{sT0}, s{sT0}, s{sJ2}\ns_lshl_b32 s{sT0}, s{sT0}, 10\ns_add_u32 s{sT0}, s{sT0}, {W2S_OFF + 30*1024}")
        for d in range(4):
            q.e(f"v_lshlrev_b32 v{U}, 16, v{CR+d}\nv_and_b32 v{U+1}, s{sMASK}, v{CR+d}\nv_lshlrev_b32 v{U+2}, 16, v{CI+d}\nv_and_b32 v{U+3}, s{sMASK}, v{CI+d}")
            q.e(f"v_mul_f32 v{U}, v{AL+2*d}, v{U}\nv_mul_f32 v{U+1}, v{AL+2*d+1}, v{U+1}\nv_fmac_f32 v{U}, v{BE+2*d}, v{U+2}\nv_fmac_f32 v{U+1}, v{BE+2*d+1}, v{U+3}")
            q.e(f"v_cvt_pk_bf16_f32 v{CSA+4*s+d}, v{U}, v{U+1}")
        q.e(f"buffer_store_dwordx4 {V(CSA+4*s,4)}, v{vL16}, {S(S_WS)}, s{sT0} offen sc1", tag='pub')
    q.e(f"s_lshl_b32 s{sT0}, s{sMT}, 7\ns_lshl_b32 s{sT1}, s{sI}, 11\ns_add_u32 s{sT0}, s{sT0}, s{sT1}\ns_add_u32 s{sBT+3}, s{sT0}, {WF_OFF}")
    return a, da, db, pa, q.items

def ext_mfma(acc, n, ffn):
    if ffn: return code("\n".join(f"v_mfma_f32_32x32x16_bf16 {V(acc+16*t,16)}, {A(EXTW+4*t,4)}, {V(vEX,4)}, {V(acc+16*t,16)}" for t in range(n)))
    return code("\n".join(f"v_mfma_f32_32x32x16_bf16 {V(acc+16*t,16)}, {V(vEX,4)}, {A(EXTW+4*t,4)}, {V(acc+16*t,16)}" for t in range(n)))

sBQ, sAO, sAP, sBC, sBD = 66, 67, 68, 64, 65
TAB = [70, 71, 72, 73, 74, 75, 76, 77, 78, 79, 84]
def k2_setup(c):
    q = Prog()
    ld = f"buffer_load_dword v249, v248, {S(S_WS)}, s69 offen sc1"
    a_, b_, c_ = 248, 249, 250
    q.e(f"s_lshr_b32 s86, s{sSL}, 3\ns_lshl_b32 s85, s86, 2\ns_add_u32 s85, s85, s{sW}\ns_and_b32 s87, s{sSL}, 7\ns_mul_i32 s87, s87, 5\ns_mov_b32 s69, {WF_OFF}")
    q.e(f"s_mul_i32 s88, s85, 6\ns_mul_i32 s85, s85, 5\ns_sub_u32 s84, s87, 6")
    q.e(f"v_min_u32 v{c_}, 21, v{vL}\nv_cmp_gt_u32 s[64:65], 12, v{c_}\nv_mov_b32 v{a_}, s84\nv_mov_b32 v{b_}, s88\nv_cndmask_b32 v{a_}, v{a_}, v{b_}, s[64:65]")
    q.e(f"v_mov_b32 v{b_}, s85\nv_mov_b32 v243, s87\nv_cndmask_b32 v{b_}, v{b_}, v243, s[64:65]\nv_lshrrev_b32 v243, 1, v{c_}\nv_add_u32 v{a_}, v{a_}, v243")
    q.e(f"v_and_b32 v{c_}, 1, v{c_}\nv_lshl_add_u32 v{b_}, v{c_}, 2, v{b_}\nv_lshrrev_b32 v{b_}, 2, v{b_}\nv_mad_u32_u24 v{a_}, v{a_}, 10, v{b_}\nv_lshrrev_b32 v{a_}, 2, v{a_}\nv_lshlrev_b32 v{a_}, 7, v{a_}")
    q.e(f"s_lshr_b32 s86, s{sSL}, 3\ns_lshl_b32 s85, s86, 2\ns_add_u32 s85, s85, s{sW}\ns_mul_i32 s85, s85, 11")
    q.e(f"s_and_b32 s87, s{sSL}, 7\ns_mul_i32 s87, s87, 88\ns_add_u32 s87, s87, s85\ns_mul_i32 s{sBQ}, s87, 5120\ns_add_u32 s{sBQ}, s{sBQ}, {W2S_OFF}")
    q.e(f"s_lshl_b32 s87, s{sMT}, 1\ns_add_u32 s88, s87, s86\ns_mul_i32 s88, s88, 88\ns_add_u32 s88, s88, s85\ns_lshl_b32 s{sAO}, s88, 12")
    q.e(f"s_xor_b32 s86, s86, 1\ns_add_u32 s88, s87, s86\ns_mul_i32 s88, s88, 88\ns_add_u32 s88, s88, s85\ns_lshl_b32 s{sAP}, s88, 12")
    q.e(f"s_and_b32 s85, s{sMT}, {3 if OPT.get('rot', 1) else 0}\ns_mov_b32 s{TAB[0]}, 0\ns_lshl_b32 s85, s85, 13\ns_add_u32 s{TAB[4]}, s85, {4*4096}")
    for i in range(1, 4): q.e(f"s_add_u32 s{TAB[i]}, s{TAB[i-1]}, 4096\ns_and_b32 s{TAB[i]}, s{TAB[i]}, {3*4096}")
    for i in range(5, 11): q.e(f"s_add_u32 s{TAB[i]}, s{TAB[i-1]}, 4096\ns_cmp_eq_u32 s{TAB[i]}, {11*4096}\ns_cselect_b32 s{TAB[i]}, {4*4096}, s{TAB[i]}")
    q.e(f"s_mov_b32 s85, s{sBQ}\ns_lshl_b32 s88, s{sW}, 10")
    return q.items, code(ld), retry2(c, ld, [249], 250, 86)
BH = [4 * f for f in range(28)] + [176, 212, 216] + [240, 244, 248, 252] + [112 + 4 * k for k in range(12)] + [160, 164, 168, 172, 180, 184, 188, 192]
def baddr(f):
    i, ct = divmod(f, 5)
    t = ""
    if ct == 0: t += f"s_lshr_b32 s{sBC}, s{TAB[i]}, 2\ns_add_u32 s{sBC}, s{sBC}, s{TAB[i]}\ns_add_u32 s{sBC}, s{sBC}, s{sBQ}\n"
    else: t += f"s_add_u32 s{sBC}, s{sBC}, 1024\n"
    return t
def bpre(f):
    return code(baddr(f) + f"buffer_load_dwordx4 {A(BH[f],4)}, v{vL16}, {S(S_WS)}, s{sBC} offen sc1", 'bpre')
def bstage(f, lds):
    return code(f"s_add_u32 m0, s88, {lds}\n" + baddr(f) + f"buffer_load_dwordx4 v{vL16}, {S(S_WS)}, s{sBC} offen sc1 lds", 'bst')
def add_bpre(c, first, stage):
    free = lambda f: 41 + f if f < 28 else 46
    f = 0
    order = list(range(35))
    while f < 35:
        if not c.va.place(max(first, free(f)), bpre(f), dma='b'): return f
        f += 1
    return f
def add_stage(c, first, stage):
    c.staged = []
    for k, (lds, e) in enumerate(stage):
        f = 35 + k
        if f >= 55: break
        i, ct = divmod(f, 5)
        t = f"s_add_u32 m0, s88, {lds}\ns_lshr_b32 s{sBD}, s{TAB[i]}, 2\ns_add_u32 s{sBD}, s{sBD}, s{TAB[i]}\ns_add_u32 s{sBD}, s{sBD}, s85\n"
        if ct: t += f"s_add_u32 s{sBD}, s{sBD}, {1024*ct}\n"
        t += f"buffer_load_dwordx4 v{vL16}, {S(S_WS)}, s{sBD} offen sc1 lds"
        if not c.va.place(max(first, e), code(t, 'bst'), dma='l'): break
        c.staged.append((f, lds))
    c.va.b_next = 0
def unstage(c):
    q = Prog()
    q.e(f"v_add_u32 v{vPA}, s88, v{vL16}\nv_add_u32 v{vTW}, 65536, v{vPA}\nv_add_u32 v{vEX}, 131072, v{vPA}")
    q.wait_vm('bst')
    for f, lds in c.staged:
        q.e(f"ds_read_b128 {A(BH[f],4)}, v{(vPA, vTW, vEX)[lds >> 16]} offset:{lds & 65535}")
    return q.items
def brest(c):
    out = []
    done = set(range(c.nb)) | {f for f, _ in c.staged}
    for f in range(55):
        if f in done: continue
        i, ct = divmod(f, 5)
        t = f"s_lshr_b32 s{sBC}, s{TAB[i]}, 2\ns_add_u32 s{sBC}, s{sBC}, s{TAB[i]}\ns_add_u32 s{sBC}, s{sBC}, s{sBQ}\n"
        if ct: t += f"s_add_u32 s{sBC}, s{sBC}, {1024*ct}\n"
        out.append(Group(code(t + f"buffer_load_dwordx4 {A(BH[f],4)}, v{vL16}, {S(S_WS)}, s{sBC} offen sc1", 'bpre')))
    if OPT.get('vlog'): print(c.typ, "direct", c.nb, "staged", len(c.staged), "rest", len(out), file=sys.stderr)
    return out

def k1_X(p, c):
    ts = c.ts; o = c.opt
    sb = lambda j: X_RING + (j % X_NS) * X_SLOT
    def dma(j):
        pre = code(f"s_add_u32 s{sDB}, s{sDB}, 128") if j == 10 else []
        return pre + ffn_dma(sb(j), j)
    JP = 0
    ja, jda, jdb, jpa, jpb = jobs(c)
    ffn_dma_addr(p)
    p.e(f"s_mul_i32 s{sDB}, s{sW}, {16*3072}\ns_mul_i32 s{sT0}, s{sI}, 384\ns_add_u32 s{sDB}, s{sDB}, s{sT0}")
    c.save_id(p)
    p.e("s_waitcnt lgkmcnt(0)")
    srd(p, S_X, P_X, 2048 * 1280); ffn_srd(p)
    first_loads(p, dma(0))
    c.start(p)
    early_loads(p, 'X')
    common_addr(p)
    tr_addrs(p, X_RING)
    code_prefetch(p, 'X')
    p.extend(ja)
    p.extend(x_dma(1)); p.extend(dma(1))
    p.e(NONCE_LD())
    ts(p)
    rT = Ring(vT, 4, X_RING)
    WS_ = o.get('wsync', 7)
    F1 = o.get('f1', 16)
    pre_extra = {('sync', WS_): [Marker('vm', 'pub')], ('post', WS_): flag(f"s{sBT+3}"), ('sync', F1): [Marker('vm', 'h')],
                 ('post', F1): code(f"buffer_store_dword v{vPT}, v{vFZ}, {S(S_WS)}, s{sFL} offen offset:4 sc1", 'flag')}
    JA = o.get('ja', 1); JB = o.get('jb', 1)
    steps, r0, r1 = build_steps(c, 'F' * 20, sb, dma, X_NS, rT, None, pre_extra, {} if o.get('nojob') else {o.get('jblk', 0): [jda, jdb]})
    p.extend(x_read(0))
    p.wait_vm(('slot', 0)); p.e("s_barrier")
    p.extend(flat(r0)); p.extend(flat(r1))
    ts(p)
    cs1, cs1s = cs_produce_ffn(ACC2, f"s_mul_i32 s{sT0}, s{sI}, 3")
    sl, su = stats_consume(c); cl, cu = cs_consume(c, 4, ACC2)
    ks_, kl, kc = k2_setup(c)
    CD = o.get('cd', 9); BF0 = o.get('bf0', 45)
    side = cs1[:10] + [Deadline(5)] + items(stats_job) + nonce_get(c) + stats_store() + cs1[10:] + [Deadline(CD), Gate(CD)] + cs1s + [Deadline(CD + 1)]
    assert o.get('jga', 10) > c.joblast, c.joblast
    if not JP: side += [Gate(o.get('jga', 10))] + jpa + [Gate(o.get('jgb', 12))] + jpb + [Deadline(o.get('jd', 22))]
    G1_ = o.get('g1', 22)
    ex1 = ([Gate(o.get('tg', 12))] + touch() + [Deadline(o.get('tg', 12) + 2)] if o.get('touch', 0) else []) + [Gate(14)] + ks_ + [Deadline(G1_), Gate(G1_)] + sl + cl[0] + [Deadline(G1_ + 1)]
    c.lights = [(G1_ + 1, cl[1])]
    ex1 += [Gate(o.get('gu', 31))] + su + cu + [Deadline(38), Gate(38)] + ext_read(4) + [Deadline(39)]
    assert BF0 - 7 >= 38
    steps[39]['mf'] += ext_mfma(ACC1, 4, True); steps[39]['rd'] += [[], [], [], []]
    steps[40]['pre'] = ([] if o.get('ts') == 2 else [LazyStamp(ts)]) + steps[40]['pre']
    cs2, cs2s = cs_produce_ffn(CSA, f"s_mul_i32 s{sT0}, s{sI}, 3\ns_add_u32 s{sT0}, s{sT0}, 1")
    cl, cu = cs_consume(c, 4, CSA)
    side += [Gate(40)] + cs2 + [Deadline(45), Gate(45)] + cs2s + ffn_epi(ACC1, 0, 0)
    for tau in range(1, 3): side += ffn_epi(ACC1 + 16 * tau, tau >> 1, (tau & 1) * 512)
    TM0, TMB = c.TM0, c.TMB
    G2L = max(o.get('g2l', 53), BF0 + 1)
    ex2 = [Gate(G2L - 1)] + cl[0] + [Deadline(G2L)]
    c.lights.append((G2L, cl[1]))
    side += ffn_epi(ACC1 + 48, 1, 512) + [Deadline(o.get('e1d', 57)), Gate(61)] + cu + [Deadline(TM0 - 2), Gate(TM0 - 2)] + ext_read(4) + k2_flags(c) + [Deadline(TM0 + 1)]
    for tau in range(3): side += [Gate(TM0 + TMB * (tau + 1))] + code("s_nop 1") + ffn_epi(ACC2 + 16 * tau, 2 + (tau >> 1), (tau & 1) * 512) + [Deadline(TM0 + TMB * (tau + 2))]
    add_stage(c, BF0, [(4096 * k, 42) for k in range(4)] + [(32768 + 4096 * k, 42) for k in range(12)])
    c.nb = add_bpre(c, BF0, None)
    for n_ in (24, 44, 62)[:o.get('nca', 0)]: c.lights.append((n_, code_ahead(c.typ, 214, 214, 0, lines=o.get('cal', 16))))
    for n_, its in c.lights:
        e = c.va.light(n_, its)
        if o.get('vlog'): print('light', n_, e, file=sys.stderr)
    resolve(steps)
    if o.get('noside'): side = nonce_get(c) + [Deadline(9)]
    weave(p, steps, side, base_rate=o.get('xrate', 2), extra=[ex1 + [Gate(BF0 - 7)] + kl + [Deadline(BF0 - 6), Gate(BF0 - 1)] + kc + [Deadline(BF0)] + ex2])
    ts(p)
    p.extend(mk(c, 80) + ffn_epi(ACC2 + 48, 3, 512) + mk(c, 81) + unstage(c))
    ts(p)

def k1_Y(p, c):
    ts = c.ts; o = c.opt
    sb = lambda j: Y_RING + (j % Y_NS) * Y_SLOT
    dma = lambda j: ssm_dma(sb(j), j) if j < 10 else ffn_dma(sb(j), j)
    p.e(f"s_mul_i32 s{sLBS}, s{sW}, 5120")
    p.e(f"s_and_b32 s{sT0}, s{sW}, 1\ns_lshl_b32 s{sT1}, s{sT0}, 2\ns_lshr_b32 s{sT2}, s{sW}, 1\ns_xor_b32 s{sT1}, s{sT1}, s{sT2}")
    p.e(f"s_lshl_b32 s{sT1}, s{sT1}, 4\nv_xor_b32 v{vDS}, s{sT1}, v{vXD}")
    p.e(f"s_mul_i32 s{sT1}, s{sI}, 80\ns_lshl_b32 s{sT0}, s{sT0}, 3\ns_add_u32 s{sT0}, s{sT0}, s{sT1}\ns_mul_i32 s{sBT}, s{sT0}, 1280")
    for t in range(1, 4): p.e(f"s_add_u32 s{sBT+t}, s{sBT}, {t*(20480-1024)}")
    p.e(f"s_add_u32 s{sBT+4}, s{sBT}, {4*20480}")
    c.save_id(p)
    p.e("s_waitcnt lgkmcnt(0)")
    srd(p, S_X, P_X, 2048 * 1280)
    p.e(f"s_cmp_ge_u32 s{sW}, 2\ns_cselect_b32 s{S_B}, s{P_BIM}, s{P_BRE}\ns_cselect_b32 s{S_B+1}, s{P_BIM+1}, s{P_BRE+1}")
    p.e(f"s_mov_b32 s{S_B+2}, {640*1280}\ns_mov_b32 s{S_B+3}, 0x20000")
    first_loads(p, dma(0))
    p.e("s_branch K_Y\n.set SPLIT, 0\nK_Y:")
    c.start(p)
    early_loads(p, 'Y')
    L = ACC2 + 16
    p.e(f"v_lshrrev_b32 v{L}, 5, v0\nv_lshlrev_b32 v{L}, 4, v{L}\nv_bfe_u32 v{L+1}, v0, 1, 4\nv_add_u32 v{L}, v{L}, v{L+1}")
    p.e(f"v_add_u32 v{L}, s{sT1}, v{L}\nv_min_u32 v{L}, 639, v{L}\nv_lshlrev_b32 v{L}, 1, v{L}")
    for k, ptr in enumerate((P_LRE, P_LIM, P_LDT)):
        p.e(f"global_load_ushort v{L+1+k}, v{L}, s[{ptr}:{ptr+1}]", tag='tbl')
    ffn_dma_addr(p); ffn_srd(p)
    p.e(f"s_mul_i32 s{sDB}, s{sW}, {16*3072}\ns_mul_i32 s{sT0}, s{sI}, 384\ns_add_u32 s{sDB}, s{sDB}, s{sT0}\ns_add_u32 s{sDB}, s{sDB}, 256")
    common_addr(p)
    p.e(f"v_and_b32 v{t0}, 1, v{vL}\nv_bfe_u32 v{t1}, v{vL}, 1, 4\nv_lshl_add_u32 v{t1}, v{t0}, 4, v{t1}")
    p.e(f"v_bfe_u32 v{t2}, v{t1}, 1, 3\nv_xor_b32 v{t2}, v{t2}, v{t0}\nv_lshrrev_b32 v{t3}, 5, v{vL}\nv_xor_b32 v{t2}, v{t2}, v{t3}\nv_lshlrev_b32 v{t2}, 4, v{t2}")
    p.e(f"v_and_b32 v{t3}, 7, v{t1}\nv_lshl_add_u32 v{t2}, v{t3}, 7, v{t2}\nv_lshrrev_b32 v{t3}, 3, v{t1}\nv_mul_u32_u24 v{t3}, 5120, v{t3}")
    p.e(f"v_add_u32 v{t2}, v{t2}, v{t3}\nv_add_u32 v{vBR}, {Y_RING}, v{t2}")
    for s in range(1, 4): p.e(f"v_xor_b32 v{vBR+s}, {32*s}, v{vBR}")
    tr_addrs(p, sb(10))
    code_prefetch(p, 'Y')
    vE, vAG, vFL, vSTW, vSTR, vE2 = 252, 253, 254, vXD, vXD + 1, 242
    p.e(f"v_lshlrev_b32 v{vE}, 5, v0\nv_mul_u32_u24 v{vE2}, 48, v0")
    srd(p, S_AG, P_WS, 32 * 1280, AGG_OFF)
    p.e(f"s_mul_i32 s{sT0}, s{sI}, {32*1280}\ns_add_u32 s{S_AG}, s{S_AG}, s{sT0}\ns_addc_u32 s{S_AG+1}, s{S_AG+1}, 0")
    p.e(f"v_subrev_u32 v{t0}, 160, v0\nv_min_u32 v{t0}, v{t0}, v0\nv_lshlrev_b32 v{vFL}, 3, v{t0}\nv_mov_b32 v{t1}, {OOB}\nv_cmp_gt_u32 vcc, 160, v0\nv_cndmask_b32 v255, v{t1}, v{vFL}, vcc")
    ts(p)
    q = Prog()
    lam_consts(q, L, [1, 16, 128], False)
    O = L + 8
    q.e(f"v_and_b32 v{L}, 1, v0\nv_lshlrev_b32 v{L}, 31, v{L}\nv_xor_b32 v{L}, 0x80000000, v{L}")
    for n in range(3): q.e(f"v_xor_b32 v{O+2*n+1}, v{L}, v{O+2*n+1}")
    q.e(f"ds_write_b64 v{vE}, {V(O,2)} offset:{Y_TBL}\nds_write_b128 v{vE}, {V(O+2,4)} offset:{Y_TBL+16}")
    table = q.items
    p.extend(x_dma(1)); p.extend(dma(1))
    p.e(NONCE_LD())
    rT = Ring(vT, 4, sb(10)); rB = Ring(vBR, 4, Y_RING)
    steps, r0, r1 = build_steps(c, 'S' * 10 + 'F' * 10, sb, dma, Y_NS, rT, rB, {}, {})
    p.extend(x_read(0))
    p.wait_vm(('slot', 0)); p.e("s_barrier")
    p.extend(flat(r0)); p.extend(flat(r1))
    ts(p)
    q = Prog()
    q.e(f"s_lshl_b32 s{sT0}, s{sW}, 10")
    for s in range(4): q.e(f"v_add_u32 v{t0+s}, s{sT0}, v{vBR+s}\nds_read_b128 {A(CSF+4*s,4)}, v{t0+s}")
    for s in range(4): q.e(f"ds_read_b128 {A(EXTW+4*s,4)}, v{vBR+s} offset:4096")
    cs_store_addr(q, f"s_add_u32 s{sT0}, s{sI}, 24")
    CB = ACC2 + 48
    for s in range(4): q.e(f"v_mfma_f32_32x32x16_bf16 {V(CB,16)}, {V(vONE,4)}, {A(CSF+4*s,4)}, {'0' if s == 0 else V(CB,16)}")
    for s in range(4): q.e(f"v_mfma_f32_32x32x16_bf16 {V(ACC2,16)}, {V(vONE,4)}, {A(EXTW+4*s,4)}, {'0' if s == 0 else V(ACC2,16)}")
    cs1 = q.items
    cs1s = code(f"v_mov_b32 v{CB+1}, s{sN}\nv_mov_b32 v{ACC2+1}, s{sN}\nbuffer_store_dwordx2 {V(CB,2)}, v{t4}, {S(S_WS)}, s{sU2} offen sc1\ns_lshl_b32 s{sT0}, s{sW}, 8\ns_sub_u32 s{sT0}, s{sU2}, s{sT0}\n"
                f"buffer_store_dwordx2 {V(ACC2,2)}, v{t4}, {S(S_WS)}, s{sT0} offen offset:1024 sc1\n"
                f"s_add_u32 s{sT0}, s{sMT}, 16\ns_mul_i32 s{sT0}, s{sT0}, 1280\n"
                f"buffer_store_dwordx2 {V(vZ,2)}, v255, {S(S_AG)}, s{sT0} offen sc1", 'pub')
    sl, su = stats_consume(c); cl, cu = cs_consume(c, 5, ACC2)
    ks_, kl, kc = k2_setup(c)
    side = cs1[:13] + [Deadline(5)] + items(stats_job) + nonce_get(c) + stats_store() + cs1[13:] + [Deadline(10), Gate(10)] + cs1s + table + [Deadline(18)]
    G1_ = o.get('g1', 22)
    ex1 = ([Gate(o.get('tg', 12))] + touch() + [Deadline(o.get('tg', 12) + 2)] if o.get('touch', 0) else []) + [Gate(14)] + ks_ + [Deadline(G1_), Gate(G1_)] + sl + cl[0] + [Deadline(G1_ + 1)]
    c.lights = [(G1_ + 1, cl[1])]
    side += [Gate(o.get('gu', 31))] + su + cu + [Deadline(38), Gate(38)] + ext_read(5) + [Deadline(39)]
    q = Prog()
    q.e(f"v_and_b32 v{t0}, 31, v{vL}\nv_mul_u32_u24 v{t2}, 48, v{t0}\nv_lshlrev_b32 v{t0}, 5, v{t0}\nv_lshrrev_b32 v{t1}, 5, v0\nv_lshl_add_u32 v{vAG}, v{t1}, 2, v{t2}")
    for t in range(5): q.e(f"ds_read_b64 {V(C0+2*t,2)}, v{t0} offset:{Y_TBL + 1024*t}")
    side += q.items + [Deadline(40)]
    steps[39]['mf'] += ext_mfma(ACC1, 5, False); steps[39]['rd'] += [[], [], [], [], []]
    steps[40]['pre'] = ([] if o.get('ts') == 2 else [LazyStamp(ts)]) + steps[40]['pre']
    AS = o.get('async', 12)
    BF0 = o.get('bf0y', 46)
    cs2, cs2s = cs_produce_ffn(CSA, f"s_mul_i32 s{sT0}, s{sI}, 3\ns_add_u32 s{sT0}, s{sT0}, 2")
    side += [Gate(40)] + cs2[:10]
    LM, E0, GA, G1 = 244, RT + 4, RT + 12, TMP - 2
    q = Prog()
    def scale(tt):
        for t in range(5): q.e(f"v_mul_f32 v{ACC1+16*t+tt}, v{RT+tt}, v{ACC1+16*t+tt}")
    q.extend(cs2[10:])
    q.add(Deadline(45))
    scale(0); scale(1)
    q.extend(cs2s)
    q.e(f"ds_read_b128 {V(LM,4)}, v{vE} offset:{Y_TBL+16}")
    for tt in range(1, 16):
        for t in range(5):
            g = (ACC1 + 16 * t) if tt == 1 else (G1 + 2 * t + (tt & 1))
            q.e(f"v_fma_f32 v{G1+2*t+((tt+1)&1)}, v{C0+2*t}, v{g}, v{ACC1+16*t+tt}")
        if tt < 15: scale(tt + 1)
        for t in range(5):
            g = (ACC1 + 16 * t) if tt == 1 else (G1 + 2 * t + (tt & 1))
            q.e(f"v_fmac_f32_dpp v{G1+2*t+((tt+1)&1)}, v{g}, v{C0+2*t+1} {QP}")
    for t in range(5): q.e(f"ds_write_b32 v{vAG}, v{G1+2*t} offset:{AG_L + 16 + 1536*t}", tag='agw')
    side += q.items + [Deadline(4 * (AS - 1) + 2), Gate(4 * (AS - 1) + 2)]
    q = Prog()
    q.e(f"ds_read_b128 {V(E0,4)}, v{vE2} offset:{AG_L+16}\nds_read_b128 {V(E0+4,4)}, v{vE2} offset:{AG_L+32}")
    q.e(f"s_sub_u32 s{sBT}, 15, s{sMT}\ns_mul_i32 s{sBT}, s{sBT}, 1280")
    fill = code("\n".join(f"s_add_u32 s{S_J0+i}, s{sBT}, {1280 + 3840*i}" for i in range(5)) + f"\ns_add_u32 s{sBT+4}, s{sH}, {6*4096}\ns_nop 0")
    for k in range(1, 8):
        g = E0 if k == 1 else (GA + (k & 1))
        q.e(f"v_fma_f32 v{GA+((k+1)&1)}, v{LM}, v{g}, v{E0+k}"); q.add(fill[k - 1])
        q.e(f"v_fmac_f32_dpp v{GA+((k+1)&1)}, v{g}, v{LM+1} {QP}")
    q.e(f"v_mov_b32 v{GA+1}, s{sN}\nbuffer_store_dwordx2 {V(GA,2)}, v255, {S(S_AG)}, s{sBT} offen sc1", tag='pub')
    side += q.items + [Deadline(4 * (AS - 1) + 4)]
    q = Prog()
    q.e(f"v_and_b32 v{t0}, 1, v{vL}\nv_bfe_u32 v{t1}, v{vL}, 1, 4\nv_lshl_add_u32 v{t1}, v{t0}, 4, v{t1}\nv_bfe_u32 v{t2}, v{vL}, 4, 1\nv_xor_b32 v{t0}, v{t0}, v{t2}")
    q.e(f"v_lshrrev_b32 v{t2}, 5, v{vL}\nv_xor_b32 v{t0}, v{t0}, v{t2}\nv_bfe_u32 v{t2}, v{vL}, 2, 1\nv_lshl_add_u32 v{t0}, v{t0}, 1, v{t2}\nv_lshlrev_b32 v{t0}, 4, v{t0}")
    q.e(f"v_lshl_add_u32 v{t1}, v{t1}, 6, v{t0}\ns_mul_i32 s{sT0}, s{sW}, 10240\ns_add_u32 s{sT0}, s{sT0}, 98304\nv_add_u32 v{vSTW}, s{sT0}, v{t1}\nv_xor_b32 v229, 16, v{vSTW}")
    q.e(f"v_lshrrev_b32 v{t0}, 4, v{vL}\nv_lshlrev_b32 v{t1}, 9, v{t0}\nv_bfe_u32 v{t2}, v{vL}, 2, 2\nv_lshl_add_u32 v{t1}, v{t2}, 6, v{t1}\nv_lshrrev_b32 v{t2}, 1, v{t0}\nv_xor_b32 v{t0}, v{t0}, v{t2}")
    q.e(f"v_and_b32 v{t0}, 1, v{t0}\nv_bfe_u32 v{t2}, v{vL}, 3, 1\nv_lshl_add_u32 v{t0}, v{t0}, 1, v{t2}\nv_bfe_u32 v{t2}, v{vL}, 1, 1\nv_xor_b32 v{t0}, v{t0}, v{t2}\nv_lshl_add_u32 v{t1}, v{t0}, 4, v{t1}")
    q.e(f"v_and_b32 v{t0}, 1, v{vL}\nv_lshl_add_u32 v{t1}, v{t0}, 3, v{t1}\nv_add_u32 v{vSTR}, s{sT0}, v{t1}\nv_xor_b32 v230, 32, v{vSTR}")
    cl, cu = cs_consume(c, 4, CSA)
    TM0, TMB = c.TM0, c.TMB
    G2L = max(o.get('g2l', 53), BF0 + 1)
    ex2 = [Gate(G2L - 1)] + cl[0] + [Deadline(G2L)]
    c.lights.append((G2L, cl[1]))
    side += q.items + [Gate(o.get('g2', 61))] + cu
    LP = [CSA + 2 * i for i in range(8)] + [4, 6, 8, 10, 12, 14, 16]
    ldl = "\n".join(f"buffer_load_dwordx2 {V(LP[i],2)}, v{vFL}, {S(S_AG)}, s{S_J0+i//3} offen offset:{(i%3)*1280} sc1" for i in range(15))
    side += [Deadline(TM0 - 2), Gate(TM0 - 2)] + ext_read(4) + k2_flags(c) + [Deadline(TM0 + TMB)]
    c.lights.append((o.get('g3', TM0), code(ldl)))
    c.lights.append((o.get('gx1', 76), code(c.ldx1)))
    for tau in range(3): side += [Gate(TM0 + TMB * (tau + 1))] + code("s_nop 1") + ffn_epi(ACC2 + 16 * tau, 4 + (tau >> 1), (tau & 1) * 512) + [Deadline(TM0 + TMB * (tau + 2))]
    q = Prog()
    q.extend(retry(c, ldl, tagcheck([r + 1 for r in LP]), (ldl.split('\n')[0], tagcheck([LP[0] + 1]))))
    for i in range(13, -1, -1):
        q.e(f"v_fmac_f32 v{LP[i]}, v{LM+2}, v{LP[i+1]}\nv_fmac_f32_dpp v{LP[i]}, v{LP[i+1]}, v{LM+3} {QP}")
    q.e(f"ds_write_b32 v{vE2}, v{LP[0]} offset:{AG_L+12}", tag='pw')
    for k in range(7):
        g = LP[0] if k == 0 else E0 + k - 1
        q.e(f"v_fmac_f32 v{E0+k}, v{LM}, v{g}\nv_fmac_f32_dpp v{E0+k}, v{g}, v{LM+1} {QP}")
    q.e(f"ds_write_b128 v{vE2}, {V(E0,4)} offset:{AG_L+16}\nds_write_b128 v{vE2}, {V(E0+4,4)} offset:{AG_L+32}", tag='pw')
    gch = q.items
    q = Prog()
    CY = [216, 217, 218, 219, 228]
    for t in range(5): q.e(f"ds_read_b32 v{CY[t]}, v{vAG} offset:{AG_L + 12 + 1536*t}")
    cy = q.items
    def scan(tiles):
        q = Prog()
        for tt in range(16):
            for t in tiles:
                g = CY[t] if tt == 0 else (ACC1 + 16 * t + tt - 1)
                q.e(f"v_fmac_f32 v{ACC1+16*t+tt}, v{C0+2*t}, v{g}")
            for t in tiles:
                g = CY[t] if tt == 0 else (ACC1 + 16 * t + tt - 1)
                q.e(f"v_fmac_f32_dpp v{ACC1+16*t+tt}, v{g}, v{C0+2*t+1} {QP}")
            for k in ([tt // 2 - 1] if (tt >= 2 and tt % 2 == 0) else []) + ([7] if tt == 15 else []):
                for t in tiles: q.e(f"v_cvt_pk_bf16_f32 v{ACC1+16*t+k}, v{ACC1+16*t+2*k}, v{ACC1+16*t+2*k+1}")
            if tt == 10:
                for t in tiles: q.e(f"ds_write_b128 v{vSTW}, {V(ACC1+16*t,4)} offset:{HT2_L + t*2048}")
        return q.items
    def outp(tiles):
        q = Prog()
        for t in tiles:
            R = ACC1 + 16 * t
            q.e(f"ds_write_b128 v229, {V(R+4,4)} offset:{HT2_L + t*2048}")
            for rt in range(2):
                for tq in range(2): q.e(f"ds_read_b64_tr_b16 {V(R+8+4*rt+2*tq,2)}, v{(vSTR, 230)[rt]} offset:{HT2_L + t*2048 + tq*256}")
        for t in tiles:
            R = ACC1 + 16 * t
            q.e(f"s_add_u32 s{sT2}, s85, {t*4096}")
            for rt in range(2): q.e(f"buffer_store_dwordx4 {V(R+8+4*rt,4)}, v{vL16}, {S(S_WS)}, s{sT2} offen offset:{rt*1024} sc1", tag='h')
        return q.items
    add_stage(c, BF0, [(24576 + 4096 * k, 46) for k in range(8)] + [(12288, 46), (159744, 46)] + [(Y_RING + 20480 * k + 16384, 46) for k in range(5)])
    c.nb = add_bpre(c, BF0, None)
    for n_ in (24, 44, 62)[:o.get('nca', 0)]: c.lights.append((n_, code_ahead(c.typ, 214, 214, 0, lines=o.get('cal', 16))))
    for n_, its in c.lights:
        e = c.va.light(n_, its)
        if o.get('vlog'): print('light', n_, e, file=sys.stderr)
    resolve(steps)
    if o.get('noside'): side = nonce_get(c) + [Deadline(9)]
    weave(p, steps, side, base_rate=o.get('yrate', 3),
                 extra=[ex1 + [Gate(BF0 - 7)] + kl + [Deadline(BF0 - 6), Gate(BF0 - 1)] + kc + [Deadline(BF0)] + ex2])
    ts(p)
    p.e(f"s_mov_b32 s85, s{sBT+4}")
    p.extend(unstage(c))
    tail = mk(c, 80) + c.chkx1 + merge(c.aload(0) + c.aload(1), merge(autogroup(gch), ffn_epi(ACC2 + 48, 5, 512), keep=True), 1.0) + mk(c, 81) + [Marker('lgkm', 'pw')] + code("s_barrier")
    tail += cy + merge(brest(c), scan([0, 1])) + mk(c, 82) + merge(outp([0, 1]), scan([2, 3]), 1.0) + mk(c, 83)
    tail += merge(outp([2, 3]), scan([4]) + outp([4])[:5], 1.0) + code(c.ldx) + outp([4])[5:]
    p.extend(tail)
    ts(p)

def mk(c, n): return code(f'.set STEPMARK{c.typ}{n}, 0') if c.opt.get('st0') is not None else []
def merge(a, b, f=1.15, keep=False):
    out = []; k = 0
    for i, it in enumerate(b):
        out.append(it)
        while k < len(a) and k * len(b) <= i * len(a) * f:
            out.append(a[k]); k += 1
    out += a[k:]
    if keep: return out
    return [y for x in out for y in (x.its if isinstance(x, Group) else [x])]

vKW, vKF, vKN = 36, 37, 35
HOMES = [(A, 220), (A, 196), (V, 200), (V, 18)]
def plan_homes(c):
    KF = OPT.get('kf', 3)
    front = [('o', 0), ('o', 1), ('p', 0), ('p', 1), ('o', 2), ('o', 3), ('p', 2), ('p', 3)]
    moved = {4: [], 2: [('o', 2), ('o', 3)], 3: [('o', 3)]}[KF]
    front = [x for x in front if x not in moved]
    c.seq = front + [('p', i) for i in range(4, 11)] + moved + [('o', i) for i in range(4, 11)]
    c.NF = len(front); c.PL = c.NF + 6
    lastB = {i: max(u for u, (k, j) in enumerate(c.seq) if j == i) for i in range(11)}
    pool = [[A, 220, -9], [A, 196, -9], [V, 200, -9], [V, 18, -9]] + [[A, 16 * k, max(lastB[(16 * k) // 20], lastB[(16 * k + 15) // 20]) + 1] for k in range(5)]
    c.home = []; c.earliest = []
    for v in range(22):
        h = min(pool, key=lambda x: x[2])
        c.home.append((h[0], h[1])); c.earliest.append(h[2])
        h[2] = v + 1 + (1 if v in (c.PL - 1, 20) else 0)
def k2_flags(c):
    q = Prog()
    q.e(f"s_and_b32 s87, s{sSL}, 8\ns_lshl_b32 s86, s{sW}, 1\ns_add_u32 s87, s87, s86\ns_lshl_b32 s86, s{sMT}, 4\ns_add_u32 s87, s87, s86")
    q.e(f"s_lshl_b32 s87, s87, 7\ns_add_u32 s87, s87, {HF_OFF}\nv_mov_b32 v248, 0")
    c.ldx = f"buffer_load_dword v249, v248, {S(S_WS)}, s87 offen sc1"
    c.ldy = f"buffer_load_dword v250, v248, {S(S_WS)}, s87 offen offset:128 sc1"
    c.chkx = retry(c, c.ldx, tagcheck([249]))
    c.ldx1 = f"buffer_load_dword v250, v248, {S(S_WS)}, s87 offen offset:4 sc1"
    if c.typ == 'Y': c.chkx1 = retry(c, c.ldx1, tagcheck([250]))
    plan_homes(c)
    def aload(u):
        kind, i = c.seq[u]; R, b = c.home[u]; s_ = sAP if kind == 'p' else sAO
        return code(f"s_add_u32 s{sBD}, s{s_}, s{TAB[i]}\n" + "\n".join(f"buffer_load_dwordx4 {R(b+4*rt,4)}, v{vL16}, {S(S_WS)}, s{sBD} offen offset:{1024*rt} sc1" for rt in range(4)))
    c.aload = aload
    return q.items

def k2(p, c):
    ts = c.ts; o = c.opt
    AP, AO = 40, 120
    seq = c.seq; aload = c.aload; ldy = c.ldy
    isY = c.typ == 'Y'
    mark = lambda n: p.e(f'.set STEPMARK{c.typ}{n}, 0') if o.get('st0') is not None else None
    fl = code(f"buffer_store_dword v{vKN}, v{vKF}, {S(S_WS)}, s{sFL} offen sc1", 'flag')
    p.e(f"v_mov_b32 v{vKN}, v{vPT}\nv_mov_b32 v{vKF}, v{vFZ}")
    q = Prog()
    srd(q, S_W1, P_D, 1280)
    srd(q, S_W3, P_OUT, 2048 * 2560)
    q.e(f"s_and_b32 s{sU0}, s{sSL}, 7\ns_lshr_b32 s{sU1}, s{sSL}, 3\ns_lshl_b32 s{sT1}, s{sMT}, 1\ns_add_u32 s{sU1}, s{sU1}, s{sT1}")
    q.e(f"s_mov_b32 s48, 3277\ns_lshl_b32 s49, s{sU1}, 6\ns_mul_i32 s50, s{sU0}, 160")
    q.e(f"s_mul_i32 s51, s49, 1280\ns_add_u32 s51, s51, s50\ns_lshl_b32 s59, s49, 4\ns_add_u32 s59, s59, {ST_OFF}\ns_lshl_b32 s61, s51, 1")
    q.e(f"s_lshl_b32 s{sT0}, s{sU1}, 3\ns_add_u32 s{sT0}, s{sT0}, s{sU0}\ns_mul_i32 s62, s{sT0}, 28672\ns_add_u32 s62, s62, {PX_OFF}")
    q.e(f"s_xor_b32 s{sT0}, s{sT0}, 8\ns_mul_i32 s63, s{sT0}, 28672\ns_add_u32 s63, s63, {PX_OFF}")
    q.e(f"v_lshlrev_b32 v17, 4, v0")
    q.e(f"v_and_b32 v4, 15, v1\nv_mul_u32_u24 v4, 336, v4\nv_lshrrev_b32 v5, 4, v1\nv_lshl_add_u32 v4, v5, 4, v4\ns_mul_i32 s44, s{sW}, 21504\nv_add_u32 v{vKW}, s44, v4")
    EL, EO = 6, 11
    EX, ED, ES = 216, 226, 236
    for u in range(5):
        q.e(f"v_add_u32 v4, {256*u}, v0\nv_mul_lo_u32 v5, v4, s48\nv_lshrrev_b32 v5, 16, v5\nv_lshlrev_b32 v4, 4, v4\nv_lshl_add_u32 v{EL+u}, v5, 4, v4")
        q.e(f"v_mul_u32_u24 v2, 320, v5\nv_sub_u32 v4, v4, v2\nv_lshrrev_b32 v4, 1, v4\nv_lshl_add_u32 v2, v2, 2, v4\nv_lshlrev_b32 v5, 4, v5")
        q.e(f"buffer_load_dwordx2 {V(EX+2*u,2)}, v2, {S(S_X)}, s51 offen\nbuffer_load_dwordx2 {V(ED+2*u,2)}, v4, {S(S_W1)}, s50 offen\nbuffer_load_dwordx2 {V(ES+2*u,2)}, v5, {S(S_WS)}, s59 offen sc1")
        q.e(f"v_lshlrev_b32 v{EO+u}, 1, v2")
    ksetup = q.items
    if not isY:
        p.extend(ksetup)
        p.extend(mk(c, 82))
        p.wait_vm('h'); p.e("s_barrier"); p.extend(fl)
        p.extend(merge(brest(c), []))
        p.e(c.ldx)
        p.extend(mk(c, 83))
        ts(p)
        p.extend(c.chkx)
        for u in range(3): p.extend(aload(u))
    else:
        p.extend(aload(2))
    ts(p)
    steps = []
    for u, (kind, i) in enumerate(seq):
        R, a = c.home[u]; acc = AP if kind == 'p' else AO
        mf = []
        for rt in range(4):
            for ct in range(5):
                d = acc + 4 * (5 * rt + ct)
                mf += code(f"v_mfma_f32_16x16x32_bf16 {V(d,4)}, {A(BH[5*i+ct],4)}, {R(a+4*rt,4)}, {'0' if i == 0 else V(d,4)}")
        steps.append(dict(pre=[], mf=mf, rd=[[] for _ in mf]))
    NF, PL = c.NF, c.PL
    CU = NF - (o.get('cuy', 2) if isY else o.get('cux', 3))
    C2 = o.get('c2', 2)
    if isY: steps[C2]['pre'] += c.chkx
    steps[CU]['pre'] += retry(c, ldy, tagcheck([250])) + [LazyStamp(ts)]
    steps[CU - 1]['rd'][o.get('lyg', 10)] += code(ldy)
    g = 0; AS_ = o.get('as', 4)
    for v in range(3, 22):
        e = max(c.earliest[v], v - o.get('ad', 6), 0)
        if isY and v >= 4: e = max(e, C2)
        if v >= NF: e = max(e, CU)
        g = max(g, 20 * e)
        its = aload(v)
        st_ = AS_ if g < 20 * (v - 2) else 2
        steps[g // 20]['rd'][g % 20] += [its[0]]
        for k in range(4): steps[g // 20]['rd'][g % 20] += [its[k + 1]]; g += st_
        assert g <= 20 * v, (v, g)
        if o.get('vlog'): print(c.typ, v, c.home[v][1], g, file=sys.stderr)
    def wr(acc, rt):
        return code("\n".join(f"ds_write_b128 v{vKW}, {V(acc+4*(5*rt+ct),4)} offset:{rt*16*336 + ct*64}" for ct in range(5)), 'pw')
    side = []
    if isY:
        side += ksetup + [Deadline(5)]
        steps[o.get('fu', 3)]['rd'][o.get('fg', 4)] += [Marker('vm', 'h')] + code("s_barrier") + fl
    M = f"s{sMASK}"
    q = Prog()
    PT = [r for u in range(5) for r in (EX + 2 * u, EX + 2 * u + 1, ED + 2 * u, ED + 2 * u + 1)]
    Xr = [2, 3, 4, 5]; Dr = [246, 247, 252, 253]; Yr = [254, 255, 16, 34]
    for u in range(5):
        q.e(f"v_lshlrev_b32 v{Xr[0]}, 16, v{EX+2*u}\nv_and_b32 v{Xr[1]}, {M}, v{EX+2*u}\nv_lshlrev_b32 v{Xr[2]}, 16, v{EX+2*u+1}\nv_and_b32 v{Xr[3]}, {M}, v{EX+2*u+1}")
        q.e(f"v_lshlrev_b32 v{Dr[0]}, 16, v{ED+2*u}\nv_and_b32 v{Dr[1]}, {M}, v{ED+2*u}\nv_lshlrev_b32 v{Dr[2]}, 16, v{ED+2*u+1}\nv_and_b32 v{Dr[3]}, {M}, v{ED+2*u+1}")
        q.e(f"v_and_b32 v{ES+2*u+1}, {M}, v{ES+2*u+1}\nv_mul_f32 v{ES+2*u+1}, v{ES+2*u+1}, v{ES+2*u}")
        for i in range(4): q.e(f"v_fma_f32 v{Yr[i]}, v{Xr[i]}, v{ES+2*u}, v{ES+2*u+1}")
        rnd = (f"v_cvt_pk_bf16_f32 v{Yr[0]}, v{Yr[0]}, v{Yr[1]}\nv_cvt_pk_bf16_f32 v{Yr[2]}, v{Yr[2]}, v{Yr[3]}\n"
               f"v_and_b32 v{Yr[1]}, {M}, v{Yr[0]}\nv_lshlrev_b32 v{Yr[0]}, 16, v{Yr[0]}\nv_and_b32 v{Yr[3]}, {M}, v{Yr[2]}\nv_lshlrev_b32 v{Yr[2]}, 16, v{Yr[2]}")
        q.e(rnd)
        for i in range(4): q.e(f"v_mul_f32 v{Yr[i]}, v{Yr[i]}, v{Dr[i]}")
        q.e(rnd)
        for i in range(4): q.e(f"v_add_f32 v{PT[4*u+i]}, v{Xr[i]}, v{Yr[i]}")
    pre = q.items
    def fuse(u, acc):
        a, b = steps[u], steps[u + 1]
        mf = []; rd = []
        for rt in range(4):
            mf += a['mf'][5 * rt:5 * rt + 5] + b['mf'][5 * rt:5 * rt + 5]
        rd = a['rd'] + b['rd']
        for rt in range(3):
            w = wr(acc, rt)
            for k in range(5): rd[10 * (rt + 1) + 3 + k] += [w[k]]
        a['mf'], a['rd'] = mf[:20], rd[:20]; b['mf'], b['rd'] = mf[20:], rd[20:]
    fuse(PL - 1, AP); fuse(20, AO)
    w = wr(AP, 3)
    for k in range(5): steps[PL + 1]['rd'][3 + k] += [w[k]]
    steps[PL + 1]['rd'][12] += [Marker('lgkm', 'pw')] + code("s_barrier")
    q = Prog()
    GR = AP + 48
    gi = lambda f: GR + 4 * (f // 3) + f % 3
    sent = [0]
    def send(upto):
        while sent[0] < 7 and 3 * sent[0] + 2 < upto or (upto == 20 and sent[0] < 7):
            g = sent[0]; sent[0] += 1
            q.e(f"v_mov_b32 v{GR+4*g+3}, s{sN}\nbuffer_store_dwordx4 {V(GR+4*g,4)}, v17, {S(S_WS)}, s63 offen sc1\ns_add_u32 s63, s63, 4096")
    def red(u):
        T = AP + 16 * (u % 3)
        for i in range(4): q.e(f"v_add_f32 v{T+i}, v{T+i}, v{T+4+i}\nv_add_f32 v{T+8+i}, v{T+8+i}, v{T+12+i}")
        for i in range(4): q.e(f"v_add_f32 v{gi(4*u+i)}, v{T+i}, v{T+8+i}")
        send(4 * u + 4)
    for u in range(5):
        T = AP + 16 * (u % 3)
        for w in range(4): q.e(f"ds_read_b128 {V(T+4*w,4)}, v{EL+u} offset:{w*21504}")
        if u >= 2: red(u - 2)
    red(3); red(4)
    RG = AP
    ldp = "\n".join(f"buffer_load_dwordx4 {V(RG+4*g,4)}, v17, {S(S_WS)}, s{70+g} offen sc1" for g in range(7))
    if o.get('cp2', 1):
        L = f"{c.typ}_cp2"
        steps[max(CU, 5)]['rd'][19] += code(f"s_getpc_b64 s[90:91]\n{L}:\nv_lshlrev_b32 v4, 7, v0\nv_min_u32 v4, {c.typ}_end-{L}, v4\nglobal_load_dword v250, v4, s[90:91]")
    side += [Gate(max(CU + 1, 6))] + pre + [Deadline(PL - 1), Gate(PL + 2)] + q.items + [Deadline(PL + 4)] + code("\n".join(f"s_add_u32 s{70+g}, s62, {4096*g}" for g in range(7))) + [Deadline(20)]
    side += [Gate(o.get('lpu', 21))] + code(ldp)
    steps[20]['rd'][0] += code("s_barrier")
    if o.get('st0') is not None:
        for u, st in enumerate(steps): st['pre'] = code(f'.set STEPMARK{c.typ}{84+u}, 0') + st['pre']
    resolve(steps)
    if o.get('dk2') is not None: steps[o['dk2']]['pre'] += code('s_sleep 36')
    weave(p, steps, side, base_rate=1)
    ts(p); mark(106)
    p.extend(wr(AO, 3))
    p.wait_lgkm('pw')
    p.e("s_barrier")
    mark(107)
    for u in range(5):
        for w in range(4): p.e(f"ds_read_b128 {V(AO+16*u+4*w,4)}, v{EL+u} offset:{w*21504}")
        if u == 2:
            p.extend(retry(c, ldp, tagcheck([RG + 4 * g + 3 for g in range(7)]), (f"buffer_load_dword v{RG+27}, v17, {S(S_WS)}, s76 offen offset:12 sc1", tagcheck([RG + 27]))))
            for f in range(20): p.e(f"v_add_f32 v{PT[f]}, v{PT[f]}, v{RG + 4*(f//3) + f%3}")
    mark(108)
    for u in range(5):
        R = AO + 16 * u
        for i in range(4): p.e(f"v_add_f32 v{R+i}, v{R+i}, v{R+4+i}\nv_add_f32 v{R+8+i}, v{R+8+i}, v{R+12+i}")
        for i in range(4): p.e(f"v_add_f32 v{R+i}, v{R+i}, v{PT[4*u+i]}")
        for i in range(4): p.e(f"v_add_f32 v{R+i}, v{R+i}, v{R+8+i}")
        p.e(f"buffer_store_dwordx4 {V(R,4)}, v{EO+u}, {S(S_W3)}, s61 offen{NT('nto')}{' sc1' if OPT.get('osc', 1) else ''}{' sc0' if OPT.get('osc', 1) == 2 else ''}")
    mark(109)
    if o.get('st0') is not None: p.e("s_waitcnt vmcnt(0)"); mark(110); p.e("s_nop 15\ns_nop 15\ns_nop 15"); mark(111)
    ts(p)

HEADER = open('parallel_sum__ssm_conv_s5__glu_gated_swiglu__prompt.s.ref').read().split('; Override launch')[0]

def profile(txt, typ):
    out = []; k = 2; sites = []; nm = 0
    lo = OPT.get('prof0', 0)
    for l in txt.split('\n'):
        if 'mfma' in l: nm += 1
        if 's_memrealtime' in l and k > 2: k = 100
        hit = ('vmcnt' in l or 's_barrier' in l or 's_cbranch_vccnz' in l or '_slow' in l) and nm >= lo and k < 62
        if OPT['prof'] == 2: hit = ('buffer_' in l or 'global_' in l) and nm >= lo and k < 62
        if hit and '_slow' in l:
            out.append("  s_memtime s[0:1]"); out.append(l); pend = True; sites.append((k, nm, l.strip())); continue
        if OPT['prof'] == 1 and l.endswith('_ret:') and out[-2].startswith("  s_memtime s[0:1]"):
            out.append(l); out.append(f"  s_memtime s[2:3]\n  s_waitcnt lgkmcnt(0)\n  s_sub_u32 s2, s2, s0\n  s_or_b32 s2, s2, 1\n  v_writelane_b32 v251, s2, {k}"); k += 1; continue
        if hit:
            out.append(f"  s_memtime s[0:1]\n{l}\n  s_memtime s[2:3]\n  s_waitcnt lgkmcnt(0)\n  s_sub_u32 s2, s2, s0\n  s_or_b32 s2, s2, 1\n  v_writelane_b32 v251, s2, {k}")
            sites.append((k, nm, l.strip())); k += 1
        else: out.append(l)
    print(typ, "sites:", [(b, ('D' if ' lds' in c else 'S' if 'store' in c else 'L') if 'buffer' in c or 'global' in c else c.replace('s_waitcnt ', '').replace('s_cbranch_', '')) for a, b, c in sites], file=sys.stderr)
    return '\n'.join(out)

def build(opt):
    OPT.update(opt)
    ph = Prog(); setup(ph, opt)
    ph.e(f"s_bitcmp1_b32 s{sSL}, 0\ns_cbranch_scc0 K_X")
    body = ph.finalize() + "\n"
    sx = [it for it in ph.items if isinstance(it, I) and it.tag == 'cpf' and it.kind == 'vm']
    parts = {}
    for typ, fn in (('X', k1_X), ('Y', k1_Y)):
        c = Ctx(typ, opt)
        p = Prog()
        if typ == 'X': p.e("K_X:")
        p.add(Marker('assume_vm', sx))
        def save_id(p):
            if opt.get('ts'): p.e('v_mov_b32 v251, 0')
            p.e("s_memrealtime s[2:3]")
        def start(p, c=c):
            c.ts(p, True); c.ts(p)
            if opt.get('prof') or opt.get('st0') is not None: c.ts.on = False
        c.save_id = save_id; c.start = start
        fn(p, c)
        k2(p, c)
        if opt.get('prof') or opt.get('st0') is not None: c.ts.on = True; c.ts.n = 63
        if c.ts.on:
            p.wait_all(); c.ts(p, True); c.ts.dump(p)
        p.e(f"{typ}_end:\ns_endpgm")
        st = {}
        txt = p.finalize(st)
        if opt.get('prof'): txt = profile(txt, typ)
        if opt.get('st0') is not None:
            out = []
            for l in txt.split('\n'):
                if 'STEPMARK' in l:
                    k = int(l.split(',')[0].split(typ)[-1]) - opt['st0']
                    if 0 <= k <= 60:
                        a = 2 * (k & 1)
                        if k > 0: out.append(f"  v_writelane_b32 v251, s{2-a}, {k}")
                        if k < 60: out.append(f"  s_memtime s[{a}:{a+1}]")
                else: out.append(l)
            txt = '\n'.join(out)
        import re as _re
        slow = [q for q in c.slow if _re.search(r'(\w+)_slow:', q).group(1) + '_ret:' in txt]
        if opt.get('nodma'): txt = '\n'.join(l for l in txt.split('\n') if not (' lds' in l and 'buffer_load' in l))
        if opt.get('nomfma'): txt = '\n'.join(l for l in txt.split('\n') if not ('32x32x16' in l))
        if opt.get('nowait'): txt = '\n'.join(l for l in txt.split('\n') if not ('vmcnt' in l and 'vmcnt(0)' not in l))
        if opt.get('nolds'): txt = '\n'.join(l for l in txt.split('\n') if not ('ds_read' in l))
        parts[typ] = txt + "\n" + "\n".join(slow) + "\n"
        print(typ, st, file=sys.stderr)
    y0, y1 = parts['Y'].split("  .set SPLIT, 0\n")
    body += y0 + parts['X'] + y1
    body += "K_end:\n  s_endpgm\n"
    k = NAME + "_kernel"
    if opt.get('plain'): body = body.replace(' sc1', '')
    if opt.get('plainst'): body = '\n'.join(l.replace(' sc1', '') if 'buffer_store' in l else l for l in body.split('\n'))
    s = HEADER + "; @launch grid=(256,1,1) block=(256,1,1) lds=163840\n"
    s += f'.amdgcn_target "amdgcn-amd-amdhsa--gfx950"\n.text\n.globl {k}\n.p2align 8\n.type {k},@function\n{k}:\n{body}'
    s += '.section .rodata,"a"\n' + kd(k, 512, 102, 256)
    return s

if __name__ == '__main__':
    opt = {}
    for a in sys.argv[2:]:
        k, v = a.split('='); opt[k] = int(v)
    open(sys.argv[1], 'w').write(build(opt))
```

```python
import sys, struct
from asmgen import Prog, I, Marker
from sched import weave, Gate, Deadline, Group, autogroup
from common import kd

NAME = "parallel_sum__ssm_conv_s5__glu_gated_swiglu__prompt"
H_OFF = 0
W2S_OFF = 32 * 88 * 4096
ST_OFF = W2S_OFF + 8 * 88 * 5120
AGG_OFF = ST_OFF + 32768
CS_OFF = AGG_OFF + 8 * 32 * 1280
HF_OFF = CS_OFF + 32 * 12800
WF_OFF = HF_OFF + 256 * 128
PX_OFF = WF_OFF + 128 * 128
WS_USED = PX_OFF + 256 * 7 * 4096
TS_OFF = 24 << 20
LOG2E, NLOG2E, INV2PI, OOB = 0x3fb8aa3b, 0xbfb8aa3b, 0x3e22f983, 0x7f000000
def f2u(x): return struct.unpack('<I', struct.pack('<f', x))[0]

S_X, S_W1, S_W3, S_B, S_WS, S_J0, S_J1, S_DBG, S_AG = 4, 8, 12, 16, 20, 24, 28, 32, 36
sMT, sSL, sW, sI, sT0, sT1, sT2, sT3 = 40, 41, 42, 43, 44, 45, 46, 47
sXR = 48
sMASK, sFL, sLB, sD0, sD1, sH, sLBS, sBT = 52, 53, 54, 55, 56, 57, 58, 59
P_X, P_LRE, P_LIM, P_BRE, P_BIM, P_CRE, P_CIM, P_LDT, P_D, P_BX, P_W1, P_W3, P_W2, P_OUT, P_DBG, P_WS = [64 + 2 * i for i in range(16)]
sKX, sKB, sDB, sROT, sU0, sU1 = 96, 97, 98, 99, 100, 101
sSP = 89
sU2, sU3 = 82, 83
sN = 92

OPT = {}
def NT(k): return ' nt' if OPT.get(k) else ''
def S(d): return f"s[{d}:{d+3}]"
def V(a, n=1): return f"v[{a}:{a+n-1}]" if n > 1 else f"v{a}"
def A(a, n=1): return f"a[{a}:{a+n-1}]" if n > 1 else f"a{a}"
QP = "quad_perm:[1,0,3,2] row_mask:0xf bank_mask:0xf"
def items(f, *a):
    q = Prog(); f(q, *a); return q.items
def code(text, tag=None):
    q = Prog(); q.e(text, tag); return q.items

def srd(p, d, ptr, nrec, add=0):
    if add == 0: p.e(f"s_mov_b32 s{d}, s{ptr}\ns_mov_b32 s{d+1}, s{ptr+1}")
    elif add > 0: p.e(f"s_add_u32 s{d}, s{ptr}, {add}\ns_addc_u32 s{d+1}, s{ptr+1}, 0")
    else: p.e(f"s_sub_u32 s{d}, s{ptr}, {-add}\ns_subb_u32 s{d+1}, s{ptr+1}, 0")
    p.e(f"s_mov_b32 s{d+2}, {nrec}\ns_mov_b32 s{d+3}, 0x20000")

class Stamper:
    def __init__(self, on): self.on = on; self.n = 0
    def it(self, real=False):
        if not self.on: return []
        if OPT.get('rt') == 1: real = True
        if OPT.get('rt') == 2:
            n = self.n; self.n += 2
            return code(f"s_memrealtime s[0:1]\ns_memtime s[2:3]\ns_waitcnt lgkmcnt(0)\nv_writelane_b32 v251, s0, {n}\nv_writelane_b32 v251, s2, {n+1}")
        n = self.n; self.n += 1
        return code(f"{'s_memrealtime' if real else 's_memtime'} s[0:1]\ns_waitcnt lgkmcnt(0)\nv_writelane_b32 v251, s0, {n}")
    def __call__(self, p, real=False): p.extend(self.it(real))
    def dump(self, p):
        if not self.on: return
        p.wait_all()
        p.e(f"s_lshr_b32 s93, s{sMT}, 2\ns_lshr_b32 s3, s{sSL}, 3\ns_lshl_b32 s3, s3, 2\ns_add_u32 s93, s93, s3\ns_and_b32 s3, s{sMT}, 3\ns_lshl_b32 s3, s3, 3\ns_add_u32 s93, s93, s3\ns_and_b32 s3, s{sSL}, 7\ns_lshl_b32 s3, s3, 5\ns_add_u32 s93, s93, s3")
        if OPT.get('dbgout'):
            p.e(f"s_lshl_b32 s3, s93, 2\ns_add_u32 s3, s3, s{sW}\ns_cmp_eq_u32 s3, {4*OPT['dbgout']}\ns_cselect_b32 s3, 4, {OOB}")
            p.e(f"v_readlane_b32 s0, v251, 0\nv_subrev_u32 v251, s0, v251\nv_lshlrev_b32 v3, 2, v1\nv_add_u32 v3, s3, v3\nbuffer_store_dword v251, v3, {S(S_DBG)}, 0 offen")
            return
        srd(p, 4, P_WS, TS_OFF + (1 << 20))
        p.e(f"v_lshlrev_b32 v3, 2, v1\ns_lshl_b32 s3, s93, 2\ns_add_u32 s3, s3, s{sW}\ns_lshl_b32 s3, s3, 8\ns_add_u32 s3, s3, {TS_OFF}")
        p.e("buffer_store_dword v251, v3, s[4:7], s3 offen")

class LazyStamp:
    def __init__(self, ts): self.ts = ts
def resolve(steps):
    for st in steps:
        out = []
        for it in st['pre']:
            out += it.ts.it() if isinstance(it, LazyStamp) else [it]
        st['pre'] = out
vL = 1
vXD, vXC = 2, 4
vSR = 6
vD, vDS, vDC = 10, 12, 13
vBR, vT, vTW, vH = 14, 18, 22, 23
vONE, vEX = 24, 28
vTMP = 32
ACC1, ACC2, CSA, TMP = 40, 120, 184, 200
vFZ, vPA, vPV, vPT, vC1, vC2, vL16, vZ = 208, 209, 39, 211, 212, 213, 38, 210
RT = 216
C0 = 232
XF, BF, EXTW, CSF = 0, 160, 220, 240
t0, t1, t2, t3, t4, t5 = range(vTMP, vTMP + 6)

XS = 0
X_JOB, X_RING, X_NS, X_SLOT = 49152, 81920, 5, 16384
Y_TBL, Y_RING, Y_NS, Y_SLOT = 49152, 57344, 5, 20480
EXT_L = XS + 16384
AG_L = XS
HT2_L = 0

class Ctx:
    def __init__(self, typ, opt):
        self.typ = typ; self.opt = opt; self.slow = []; self.npoll = 0
        self.ts = Stamper(opt.get('ts'))

def bf16r(p, v): p.e(f"v_cvt_pk_bf16_f32 v{v}, v{v}, v{v}\nv_and_b32 v{v}, s{sMASK}, v{v}")

def retry(c, loads, check, probe=None):
    k = c.npoll; c.npoll += 1
    L = f"{c.typ}_poll{k}"
    q = Prog()
    q.e(f"{L}_slow:\ns_mov_b32 s{sSP}, 0x40000\n{L}_lp:\ns_sleep {OPT.get('sleep', 1)}\ns_sub_u32 s{sSP}, s{sSP}, 1\ns_cmp_eq_u32 s{sSP}, 0\ns_cbranch_scc1 {L}_ret")
    if probe and OPT.get('probe', 0):
        q.e(probe[0] + "\ns_waitcnt vmcnt(0)\n" + probe[1] + f"\ns_cbranch_vccnz {L}_lp")
    q.e(loads + "\ns_waitcnt vmcnt(0)\n" + check)
    q.e(f"s_cbranch_vccnz {L}_lp\ns_branch {L}_ret")
    c.slow.append(q.finalize())
    if OPT.get('nospin') and 'v211' not in check: return code(check + f"\n{L}_ret:")
    return code(check + f"\ns_cbranch_vccnz {L}_slow\n{L}_ret:")
def retry2(c, loads, regs, tmp, sp):
    k = c.npoll; c.npoll += 1
    L = f"{c.typ}_poll{k}"
    chk = f"v_xor_b32 v{tmp}, s{sN}, v{regs[0]}\n" + "".join(f"v_bitop3_b32 v{tmp}, v{tmp}, v{r}, s{sN} bitop3:0xf6\n" for r in regs[1:]) + f"v_cmp_ne_u32 s[{sp}:{sp+1}], 0, v{tmp}\ns_cmp_lg_u64 s[{sp}:{sp+1}], 0"
    q = Prog()
    q.e(f"{L}_slow:\ns_mov_b32 s{sSP}, 0x40000\n{L}_lp:\ns_sleep {OPT.get('sleep', 1)}")
    q.e(loads + "\ns_waitcnt vmcnt(0)\n" + chk)
    q.e(f"s_cbranch_scc0 {L}_ret\ns_sub_u32 s{sSP}, s{sSP}, 1\ns_cmp_lg_u32 s{sSP}, 0\ns_cbranch_scc1 {L}_lp\ns_branch {L}_ret")
    c.slow.append(q.finalize())
    if OPT.get('nospin'): return code(chk + f"\n{L}_ret:")
    return code(chk + f"\ns_cbranch_scc1 {L}_slow\n{L}_ret:")
def tagcheck(regs):
    regs = regs[::-1]
    t = f"v_xor_b32 v{vPV}, s{sN}, v{regs[0]}\n"
    for r in regs[1:]: t += f"v_bitop3_b32 v{vPV}, v{vPV}, v{r}, s{sN} bitop3:0xf6\n"
    return t + f"v_cmp_ne_u32 vcc, 0, v{vPV}"
NONCE_LD = lambda: f"buffer_load_dword v{vPT}, v{vZ}, {S(S_DBG)}, 0 offen sc1"
def nonce_get(c):
    return retry(c, NONCE_LD(), f"v_cmp_eq_u32 vcc, 0, v{vPT}") + code(f"v_readfirstlane_b32 s{sN}, v{vPT}")
def flag(soff):
    return code(f"buffer_store_dword v{vPT}, v{vFZ}, {S(S_WS)}, {soff} offen sc1", 'flag')

def nextkb(s, unit):
    return f"s_add_u32 s{s}, s{s}, {unit}\ns_cmp_eq_u32 s{s}, {10*unit}\ns_cselect_b32 s{s}, 0, s{s}"

def setup(p, opt):
    p.e("s_cmp_ge_u32 s2, 256\ns_cbranch_scc1 K_end")
    p.e("s_load_dwordx16 s[64:79], s[0:1], 0\ns_load_dwordx16 s[80:95], s[0:1], 64")
    p.e(f"v_and_b32 v{vL}, 63, v0\nv_lshrrev_b32 v{t0}, 6, v0\nv_lshlrev_b32 v{vL16}, 4, v{vL}")
    p.e(f"v_readfirstlane_b32 s{sW}, v{t0}")
    for i in range(opt.get('d0', 0)): p.e('s_sleep 36')
    for i in range(opt.get('pad', 0)): p.e(f"s_mov_b32 s{sT3}, 0x12345")
    p.e(f"s_and_b32 s{sMT}, s2, 3\ns_lshl_b32 s{sMT}, s{sMT}, 2\ns_bfe_u32 s{sT0}, s2, 0x20003\ns_add_u32 s{sMT}, s{sMT}, s{sT0}")
    p.e(f"s_and_b32 s{sSL}, s2, 4\ns_lshl_b32 s{sSL}, s{sSL}, 1\ns_lshr_b32 s{sT0}, s2, 5\ns_add_u32 s{sSL}, s{sSL}, s{sT0}\ns_lshr_b32 s{sI}, s{sSL}, 1")
    if opt.get('cpf', 1):
        p.e(f"s_getpc_b64 s[4:5]\nK_pc:\ns_mov_b32 s6, K_X-K_pc\ns_bitcmp1_b32 s{sSL}, 0\ns_cselect_b32 s6, K_Y-K_pc, s6\ns_and_b32 s7, s{sI}, 3\ns_lshl_b32 s7, s7, 2\ns_and_b32 s8, s{sMT}, 3\ns_add_u32 s7, s7, s8")
        p.e(f"s_lshl_b32 s7, s7, 11\ns_add_u32 s6, s6, s7\nv_lshrrev_b32 v{t5}, 4, v0\nv_lshlrev_b32 v{t5}, 7, v{t5}\nv_add_u32 v{t5}, s6, v{t5}\nv_min_u32 v{t5}, K_end-K_pc, v{t5}\nglobal_load_dword v250, v{t5}, s[4:5]", tag='cpf')
    p.e(f"s_mul_i32 s{sROT}, s{sMT}, {opt.get('rm', 3)}\ns_mul_i32 s{sT0}, s{sT0}, {opt.get('rs', 1)}\ns_add_u32 s{sROT}, s{sROT}, s{sT0}\ns_mul_i32 s{sT1}, s{sROT}, 205\ns_lshr_b32 s{sT1}, s{sT1}, 11\ns_mul_i32 s{sT1}, s{sT1}, 10\ns_sub_u32 s{sROT}, s{sROT}, s{sT1}")
    p.e(f"s_lshl_b32 s{sKX}, s{sROT}, 7\ns_mov_b32 s{sKB}, s{sROT}\ns_mov_b32 s{sMASK}, 0xffff0000")
    p.e(f"s_lshl_b32 s{sFL}, s{sMT}, 4\ns_add_u32 s{sFL}, s{sFL}, s{sSL}\ns_lshl_b32 s{sFL}, s{sFL}, 7\ns_add_u32 s{sFL}, s{sFL}, {HF_OFF}")
    p.e(f"s_lshl_b32 s{sT0}, s{sMT}, 7\ns_lshl_b32 s{sT1}, s{sW}, 5\ns_add_u32 s{sT1}, s{sT0}, s{sT1}\ns_mul_i32 s{sXR}, s{sT1}, 1280")
    for i in range(1, 4): p.e(f"s_add_u32 s{sXR+i}, s{sXR}, {(8*1280-1024)*i}")
    p.e(f"s_lshl_b32 s{sLB}, s{sW}, 12")
    p.e(f"s_lshl_b32 s{sT1}, s{sSL}, 3\ns_add_u32 s{sT0}, s{sT0}, s{sT1}\ns_lshl_b32 s{sT1}, s{sW}, 1\ns_add_u32 s{sT0}, s{sT0}, s{sT1}")
    p.e(f"s_mul_i32 s{sU0}, s{sT0}, 1280\ns_lshl_b32 s{sU1}, s{sT0}, 4\ns_add_u32 s{sU1}, s{sU1}, {ST_OFF}")
    p.e(f"v_lshrrev_b32 v{t0}, 3, v{vL}\nv_and_b32 v{t1}, 7, v{vL}")
    p.e(f"v_lshrrev_b32 v{t2}, 5, v{vL}\nv_mul_u32_u24 v{t2}, 1280, v{t2}\nv_and_b32 v{t3}, 31, v{vL}\nv_lshl_add_u32 v{t4}, v{t3}, 3, v{t2}")
    p.e(f"v_lshrrev_b32 v{t2}, 4, v{vL}\nv_xor_b32 v{t2}, v{t1}, v{t2}\nv_lshlrev_b32 v{t2}, 4, v{t2}\nv_mul_u32_u24 v{t3}, 1280, v{t0}")
    p.e(f"v_add_u32 v{vXD}, v{t2}, v{t3}\nv_xor_b32 v{vXD+1}, 64, v{vXD}")
    p.e(f"v_mov_b32 v{vZ}, 0\nv_mov_b32 v{t2}, {OOB}\nv_cmp_eq_u32 vcc, 0, v0\nv_cndmask_b32 v{vFZ}, v{t2}, v0, vcc")
    p.e(f"s_cmp_eq_u32 s2, 0\ns_cselect_b32 s{sT0}, 0, {OOB}\nv_or_b32 v{vPA}, s{sT0}, v{vFZ}")

def first_loads(p, b0):
    x0 = x_dma(0)
    k1 = [i for i, it in enumerate(x0) if isinstance(it, I) and it.kind == 'vm']
    k2 = [i for i, it in enumerate(b0) if isinstance(it, I) and it.kind == 'vm']
    m0x = [it for it in x0 if isinstance(it, I) and ('x', 'm0') in it.defs][0]
    m0b = [it for it in b0 if isinstance(it, I) and ('x', 'm0') in it.defs][0]
    p.extend(x0[:k1[0] + 1]); p.extend(b0[:k2[1] + 1])
    p.add(I(m0x.text)); p.extend(x0[k1[0] + 1:])
    p.add(I(m0b.text)); p.extend(b0[k2[1] + 1:])
    srd(p, S_DBG, P_DBG, 256)
    p.e(f"s_or_b32 s{sT3}, s2, 1\nv_mov_b32 v{vPT}, s{sT3}\nbuffer_store_dword v{vPT}, v{vPA}, {S(S_DBG)}, 0 offen sc1")
    if OPT.get('stouch', 21):
        G = OPT.get('stouch', 21)
        n = (WS_USED >> G) // 64 + 1
        p.e(f"s_and_b32 s28, s{sSL}, 7\ns_lshl_b32 s28, s28, 1\ns_and_b32 s29, s{sMT}, 1\ns_add_u32 s28, s28, s29\ns_lshl_b32 s28, s28, 2\ns_add_u32 s28, s28, s{sW}\ns_lshl_b32 s28, s28, {G}")
        for i in range(n):
            p.e(f"s_min_u32 s29, s28, {WS_USED - 4 & ~3}\ns_load_dword s30, s[{P_WS}:{P_WS+1}], s29\ns_min_u32 s29, s28, {2048*2560 - 4}\ns_load_dword s31, s[{P_OUT}:{P_OUT+1}], s29\ns_add_u32 s28, s28, {64 << G}")

def early_loads(p, typ):
    for i in range(5):
        p.e(f"buffer_load_dwordx2 {V(RT+2*i,2)}, v{t4}, {S(S_X)}, s{sU0} offen offset:{256*i}", tag='sx')
def code_prefetch(p, typ):
    if OPT.get('cpf', 1) == 2:
        p.e(f"s_getpc_b64 s[24:25]\n{typ}_pc:\nv_lshlrev_b32 v{t5}, 7, v0\nv_min_u32 v{t5}, {typ}_end-{typ}_pc, v{t5}\nglobal_load_dword v250, v{t5}, s[24:25]")

CPN = [0]
def code_ahead(typ, dst, tmp, sp, skip=2048, lines=32):
    L = f"{typ}_ca{CPN[0]}"; CPN[0] += 1
    return [Group(code(f"s_getpc_b64 s[{sp}:{sp+1}]\n{L}:\nv_lshrrev_b32 v{tmp}, {6 - (lines.bit_length() - 1)}, v0\nv_lshlrev_b32 v{tmp}, 7, v{tmp}\nv_add_u32 v{tmp}, {skip}, v{tmp}\n"
                f"v_min_u32 v{tmp}, {typ}_end-{L}, v{tmp}\nglobal_load_dword v{dst}, v{tmp}, s[{sp}:{sp+1}]"))]

def x_dma(j):
    q = Prog()
    q.wait_lgkm(('xr', j - 3))
    q.e(f"v_add_u32 v{vXC}, s{sKX}, v{vXD}\nv_add_u32 v{vXC+1}, s{sKX}, v{vXD+1}\ns_add_u32 m0, s{sLB}, {XS + (j % 3) * 16384}")
    for i in range(4):
        q.e(f"buffer_load_dwordx4 v{vXC+(i&1)}, {S(S_X)}, s{sXR+i} offen offset:{1024*i}{NT('ntx')} lds", tag=('x', j))
    q.e(nextkb(sKX, 128))
    return q.items
def x_read(j):
    q = Prog(); q.wait_vm(('x', j))
    for s in range(4): q.e(f"ds_read_b128 {A(XF+16*j+4*s,4)}, v{vSR+s} offset:{(j % 3) * 16384}", ('xr', j))
    return q.items

def ffn_dma(base, j):
    q = Prog()
    q.e(f"s_mul_i32 s{sD0}, s{sKB}, {64*3072}\ns_add_u32 s{sD0}, s{sD0}, s{sDB}\ns_add_u32 s{sD1}, s{sD0}, {8*3072-2048}\ns_add_u32 m0, s{sLB}, {base}")
    q.e(f"buffer_load_dwordx4 v{vD}, {S(S_W1)}, s{sD0} offen{NT('ntw')} lds", tag=('slot', j))
    q.e(f"buffer_load_dwordx4 v{vD+1}, {S(S_W3)}, s{sD0} offen offset:1024{NT('ntw')} lds", tag=('slot', j))
    q.e(f"buffer_load_dwordx4 v{vD}, {S(S_W1)}, s{sD1} offen offset:2048{NT('ntw')} lds", tag=('slot', j))
    q.e(f"buffer_load_dwordx4 v{vD+1}, {S(S_W3)}, s{sD1} offen offset:3072{NT('ntw')} lds", tag=('slot', j))
    q.e(nextkb(sKB, 1))
    return q.items
def ssm_dma(base, j):
    q = Prog()
    q.e(f"s_lshl_b32 s{sD0}, s{sKB}, 7\nv_add_u32 v{vDC}, s{sD0}, v{vDS}\ns_add_u32 m0, s{sLBS}, {base}")
    for t in range(4):
        q.e(f"buffer_load_dwordx4 v{vDC}, {S(S_B)}, s{sBT+t} offen offset:{1024*t}{NT('ntw')} lds", tag=('slot', j))
    q.e(f"s_add_u32 m0, s{sLBS}, {base + 4096}")
    q.e(f"buffer_load_dwordx4 v{vDC}, {S(S_B)}, s{sBT+4} offen{NT('ntw')} lds", tag=('slot', j))
    q.e(nextkb(sKB, 1))
    return q.items

def ffn_dma_addr(p):
    p.e(f"v_bfe_u32 v{t2}, v{vL}, 4, 1\nv_lshlrev_b32 v{t2}, 1, v{t2}\nv_xor_b32 v{t2}, v{t1}, v{t2}\nv_lshlrev_b32 v{t2}, 4, v{t2}")
    p.e(f"v_mul_u32_u24 v{t3}, 3072, v{t0}\nv_add_u32 v{vD}, v{t2}, v{t3}\nv_xor_b32 v{vD+1}, 64, v{vD}")
def ffn_srd(p):
    srd(p, S_W1, P_W1, 640 * 3072)
    srd(p, S_W3, P_W3, 640 * 3072 + 1024, -1024)

def common_addr(p):
    p.e(f"v_bfe_u32 v{t2}, v{vL}, 2, 1\nv_lshlrev_b32 v{t2}, 4, v{t2}\nv_bfe_u32 v{t3}, v{vL}, 3, 2\nv_lshl_add_u32 v{t2}, v{t3}, 2, v{t2}")
    p.e(f"v_and_b32 v{t3}, 3, v{vL}\nv_add_u32 v{t2}, v{t2}, v{t3}\nv_lshlrev_b32 v{vC1}, 4, v{t2}")
    p.e(f"v_bfe_u32 v{t3}, v{t2}, 1, 3\nv_lshrrev_b32 v{vSR}, 5, v{vL}\nv_xor_b32 v{t3}, v{t3}, v{vSR}\nv_lshlrev_b32 v{t3}, 4, v{t3}")
    p.e(f"v_lshl_add_u32 v{t3}, v{t2}, 7, v{t3}\nv_add_u32 v{vSR}, s{sLB}, v{t3}")
    for s in range(1, 4): p.e(f"v_xor_b32 v{vSR+s}, {32*s}, v{vSR}")
    p.e(f"v_bfe_u32 v{t2}, v{vL}, 2, 1\nv_lshlrev_b32 v{t2}, 10, v{t2}\nv_bfe_u32 v{t3}, v{vL}, 3, 3\nv_lshl_add_u32 v{t2}, v{t3}, 6, v{t2}")
    p.e(f"v_and_b32 v{t3}, 3, v{vL}\nv_lshl_add_u32 v{vH}, v{t3}, 4, v{t2}")
    for i in range(4): p.e(f"v_mov_b32 v{vONE+i}, 0x3f803f80")
    srd(p, S_WS, P_WS, WS_USED)
    p.e(f"s_lshl_b32 s{sT0}, s{sMT}, 1\ns_lshr_b32 s{sT1}, s{sW}, 1\ns_add_u32 s{sT0}, s{sT0}, s{sT1}\ns_mul_i32 s{sT0}, s{sT0}, 88")
    p.e(f"s_mul_i32 s{sT1}, s{sI}, 11\ns_add_u32 s{sT0}, s{sT0}, s{sT1}\ns_lshl_b32 s{sH}, s{sT0}, 12")
    p.e(f"s_and_b32 s{sT1}, s{sW}, 1\ns_lshl_b32 s{sT1}, s{sT1}, 11\ns_add_u32 s{sH}, s{sH}, s{sT1}")

def tr_addrs(p, base):
    p.e(f"v_bfe_u32 v{t0}, v{vL}, 4, 1\nv_lshrrev_b32 v{t1}, 5, v{vL}\nv_lshlrev_b32 v{t1}, 11, v{t1}\nv_lshl_add_u32 v{t1}, v{t0}, 10, v{t1}")
    p.e(f"v_bfe_u32 v{t2}, v{vL}, 2, 2\nv_lshl_add_u32 v{t1}, v{t2}, 7, v{t1}\nv_and_b32 v{t3}, 3, v{vL}\nv_lshl_add_u32 v{t1}, v{t3}, 3, v{t1}")
    p.e(f"v_bfe_u32 v{t2}, v{vL}, 3, 1\nv_lshl_add_u32 v{t2}, v{t0}, 1, v{t2}\nv_lshl_add_u32 v{t1}, v{t2}, 5, v{t1}")
    p.e(f"v_add_u32 v{vT}, {base}, v{t1}")
    for tau in range(1, 4): p.e(f"v_xor_b32 v{vT+tau}, {32*tau}, v{vT}")

def touch():
    q = Prog()
    q.e(f"v_lshlrev_b32 v{vPA}, 19, v{vL}\nv_min_u32 v{vPA}, {WS_USED - 4}, v{vPA}\nbuffer_load_dword v250, v{vPA}, {S(S_WS)}, 0 offen")
    q.e(f"v_min_u32 v{vPA}, {2048*2560 - 4}, v{vPA}\nglobal_load_dword v250, v{vPA}, s[{P_OUT}:{P_OUT+1}]")
    return q.items

def stats_job(p):
    R = RT; aQ, aS = TMP, TMP + 1
    p.e(f"v_mov_b32 v{aS}, 0\nv_mov_b32 v{aQ}, 0")
    for d in range(10):
        p.e(f"v_dot2c_f32_bf16 v{aS}, v{vONE}, v{R+d}\nv_dot2c_f32_bf16 v{aQ}, v{R+d}, v{R+d}")
    p.e("s_nop 2")
    for perm in ("quad_perm:[1,0,3,2] row_mask:0xf", "quad_perm:[2,3,0,1] row_mask:0xf", "row_half_mirror row_mask:0xf", "row_mirror row_mask:0xf", "row_bcast:15 row_mask:0xa"):
        for r in (aS, aQ): p.e(f"v_add_f32_dpp v{r}, v{r}, v{r} {perm} bank_mask:0xf")
    inv = f2u(1.0 / 640)
    p.e(f"v_mul_f32 v{aS}, {inv}, v{aS}\nv_mul_f32 v{aQ}, {inv}, v{aQ}\nv_fma_f32 v{aQ}, -v{aS}, v{aS}, v{aQ}\nv_max_f32 v{aQ}, 0, v{aQ}")
    p.e(f"v_sub_f32 v{aS}, 0, v{aS}\nv_cvt_pk_bf16_f32 v{aS}, v{aS}, v{aS}")
    bf16r(p, aQ)
    p.e(f"v_add_f32 v{aQ}, {f2u(1e-5)}, v{aQ}")
    bf16r(p, aQ)
    p.e(f"v_sqrt_f32 v{aQ}, v{aQ}")
    bf16r(p, aQ)
    p.e(f"v_rcp_f32 v{aQ}, v{aQ}")
    p.e(f"v_and_b32 v{R}, 31, v{vL}\nv_cmp_eq_u32 vcc, 16, v{R}\nv_lshrrev_b32 v{R}, 1, v{vL}\nv_and_b32 v{R}, 16, v{R}\nv_mov_b32 v{R+1}, {OOB}\nv_cndmask_b32 v{R}, v{R+1}, v{R}, vcc")
def stats_store():
    return code(f"v_mov_b32 v{TMP+2}, s{sN}\nv_mov_b32 v{TMP+3}, s{sN}\nbuffer_store_dwordx4 {V(TMP,4)}, v{RT}, {S(S_WS)}, s{sU1} offen sc1", 'pub')

def cs_store_addr(q, gidexpr):
    q.e(gidexpr)
    q.e(f"s_mul_i32 s{sU3}, s{sT0}, 12800\ns_add_u32 s{sU3}, s{sU3}, {CS_OFF}\ns_mul_i32 s{sT0}, s{sROT}, 1280\ns_add_u32 s{sU2}, s{sU3}, s{sT0}")
    q.e(f"s_lshl_b32 s{sT0}, s{sW}, 8\ns_add_u32 s{sU2}, s{sU2}, s{sT0}\ns_add_u32 s{sU3}, s{sU3}, s{sT0}")
    q.e(f"s_cmp_lt_u32 s{sMT}, 10\ns_cselect_b32 s{sT0}, 32, 0\nv_cmp_gt_u32 vcc, s{sT0}, v{vL}\nv_lshlrev_b32 v{t4}, 3, v{vL}\nv_mov_b32 v{t5}, {OOB}\nv_cndmask_b32 v{t4}, v{t5}, v{t4}, vcc")

def cs_produce_ffn(acc, gidexpr):
    q = Prog()
    q.e(f"s_lshl_b32 s{sT0}, s{sW}, 5\nv_xor_b32 v{vTW}, s{sT0}, v{vT}")
    for s in range(4):
        for t in range(2):
            q.e(f"ds_read_b64_tr_b16 {A(CSF+4*s+2*t,2)}, v{vTW} offset:{s*4096 + t*512}")
    cs_store_addr(q, gidexpr)
    for s in range(4):
        q.e(f"v_mfma_f32_32x32x16_bf16 {V(acc,16)}, {V(vONE,4)}, {A(CSF+4*s,4)}, {'0' if s == 0 else V(acc,16)}")
    st = code(f"v_mov_b32 v{acc+1}, s{sN}\nbuffer_store_dwordx2 {V(acc,2)}, v{t4}, {S(S_WS)}, s{sU2} offen sc1", 'pub')
    return q.items, st

def cs_consume(c, ntile, R0):
    q = Prog()
    q.e(f"v_lshrrev_b32 v{vPA}, 5, v{vL}\nv_mul_u32_u24 v{vPA}, 6400, v{vPA}\nv_and_b32 v{t5}, 31, v{vL}\nv_lshl_add_u32 v{vPA}, v{t5}, 3, v{vPA}")
    q.e(f"s_add_u32 s{sU2}, s{sU3}, 3840")
    rounds = [(R0, 0)]
    ld = ""
    for i in range(5): ld += f"buffer_load_dwordx2 {V(R0+2*i,2)}, v{vPA}, {S(S_WS)}, s{sU3 if i < 3 else sU2} offen offset:{1280*(i%3)} sc1\n"
    if ntile == 5:
        q.e(f"s_lshl_b32 s86, s{sW}, 8\ns_sub_u32 s86, 1024, s86\nv_add_u32 v{vTW}, s86, v{vPA}")
        for i in range(5): ld += f"buffer_load_dwordx2 {V(R0+10+2*i,2)}, v{vTW}, {S(S_WS)}, s{sU3 if i < 3 else sU2} offen offset:{1280*(i%3)} sc1\n"
        rounds.append((R0 + 10, 1))
    a = (q.items, code(ld))
    q = Prog()
    q.extend(retry(c, ld, tagcheck([R0 + 1 + 2 * i for i in range(5 * len(rounds))])))
    q.e(f"v_cmp_gt_u32 vcc, 32, v{vL}")
    for (R, which) in rounds:
        q.e(f"v_add_f32 v{R}, v{R}, v{R+2}\nv_add_f32 v{R+4}, v{R+4}, v{R+6}\nv_add_f32 v{R}, v{R}, v{R+8}\nv_add_f32 v{R}, v{R}, v{R+4}")
        q.e(f"v_mov_b32 v{R+1}, v{R}\nv_mov_b32 v{R+6}, 0\nv_mov_b32 v{R+7}, 0\nv_permlane32_swap_b32 v{R}, v{R+1}\nv_add_f32 v{R}, v{R}, v{R+1}\nv_cndmask_b32 v{R}, 0, v{R}, vcc")
        q.e(f"v_cvt_pk_bf16_f32 v{R+1}, v{R}, v{R}\nv_and_b32 v{R+1}, s{sMASK}, v{R+1}\nv_sub_f32 v{R}, v{R}, v{R+1}")
        q.e(f"v_cvt_pk_bf16_f32 v{R+4}, v{R+1}, v{R}\nv_and_b32 v{R+2}, s{sMASK}, v{R+4}\nv_sub_f32 v{R}, v{R}, v{R+2}")
        q.e(f"v_cvt_pk_bf16_f32 v{R+5}, v{R}, 0")
        if which == 0:
            q.e(f"s_lshr_b32 s86, s{sLB}, 2\nv_add_u32 v{t5}, s86, v{vL16}")
            q.e(f"ds_write_b128 v{t5}, {V(R+4,4)} offset:{EXT_L}", tag='ext')
        else:
            q.e(f"ds_write_b128 v{vL16}, {V(R+4,4)} offset:{EXT_L + 4096}", tag='ext')
    return a, q.items
def ext_read(ntile):
    return code("\n".join(f"ds_read_b128 {A(EXTW+4*t,4)}, v{vL16} offset:{EXT_L + 1024*t}" for t in range(ntile)))

def stats_consume(c):
    q = Prog()
    q.e(f"s_lshl_b32 s87, s{sMT}, 11\ns_lshl_b32 s86, s{sW}, 9\ns_add_u32 s87, s87, s86\ns_add_u32 s{sU0}, s87, {ST_OFF}")
    ld = f"buffer_load_dwordx4 {V(vEX,4)}, v{vC1}, {S(S_WS)}, s{sU0} offen sc1"
    q.e(ld)
    a = q.items
    q = Prog()
    q.extend(retry(c, ld, tagcheck([vEX + 2, vEX + 3])))
    if c.typ == 'Y':
        q.e(f"s_lshl_b32 s{sT0}, s{sW}, 7\ns_add_u32 s{sT0}, s{sT0}, 159744")
        q.e(f"v_lshrrev_b32 v{t3}, 2, v{vC1}\nv_add_u32 v{t3}, s{sT0}, v{t3}\nds_write_b32 v{t3}, v{vEX}")
        q.e(f"v_lshrrev_b32 v{t2}, 5, v{vL}\nv_lshlrev_b32 v{t2}, 6, v{t2}\nv_add_u32 v{t2}, s{sT0}, v{t2}")
        for i in range(4): q.e(f"ds_read_b128 {V(RT+4*i,4)}, v{t2} offset:{16*i}")
    q.e(f"v_mul_f32 v{vC1}, {NLOG2E}, v{vEX}\nv_rcp_f32 v{vC2}, v{vEX}\nv_mov_b32 v{vEX}, v{vEX+1}\nv_mov_b32 v{vEX+2}, v{vEX+1}\nv_mov_b32 v{vEX+3}, v{vEX+1}")
    q.e(f"v_mul_f32 v{vC2}, v{vC2}, v{vC2}")
    return a, q.items

def ffn_epi(acc, pos, imm):
    p = Prog(); tmp = TMP
    for r in range(8): p.e(f"v_mul_f32 v{tmp+r}, v{vC1}, v{acc+r}")
    for r in range(8): p.e(f"v_exp_f32 v{tmp+r}, v{tmp+r}\nv_mul_f32 v{acc+r}, v{acc+r}, v{acc+8+r}")
    for r in range(8): p.e(f"v_fma_f32 v{tmp+r}, v{tmp+r}, v{vC2}, v{vC2}")
    for r in range(8): p.e(f"v_rcp_f32 v{tmp+r}, v{tmp+r}")
    p.e(f"s_add_u32 s{sT2}, s{sH}, {pos*4096}")
    for r in range(8): p.e(f"v_mul_f32 v{acc+r}, v{acc+r}, v{tmp+r}")
    for r in range(4): p.e(f"v_cvt_pk_bf16_f32 v{acc+8+r}, v{acc+2*r}, v{acc+2*r+1}")
    p.e(f"buffer_store_dwordx4 {V(acc+8,4)}, v{vH}, {S(S_WS)}, s{sT2} offen offset:{imm} sc1", tag='h')
    if OPT.get('dual'): p.e(f"buffer_store_dwordx4 {V(acc+8,4)}, v{vH}, {S(S_WS)}, s{sT2} offen offset:{imm}", tag='h')
    return p.items

class Ring:
    def __init__(self, reg, n, cur): self.reg = reg; self.n = n; self.cur = cur
    def off(self, base, span, out):
        if base < self.cur or base + span - self.cur > 65536:
            out += code("\n".join(f"v_add_u32 v{self.reg+i}, {(base - self.cur) & 0xffffffff}, v{self.reg+i}" for i in range(self.n)))
            self.cur = base
        return base - self.cur

def build_steps(c, kinds, slot_base, dma, NS, rT, rB, pre_extra, late):
    steps = []
    TMB = OPT.get('tmb', 3); TM0 = 80 - 4 * TMB
    reads = []
    for n in range(80):
        j, s = divmod(n, 4); buf = BF + (n % 3) * 20 if kinds[j] == 'S' else (160, 180, 196)[n % 3]
        base = slot_base(j)
        rd = []
        if kinds[j] == 'F':
            acc = ACC1 if (j < 10) else ACC2
            mf = []
            for e in range(4):
                tau, jj, ss = e, j, s
                if n >= TM0: tau, jj, ss = (n - TM0) // TMB, 20 - TMB + (n - TM0) % TMB, e
                o = []
                off = rT.off(slot_base(jj), 16384, o)
                o += code("\n".join(f"ds_read_b64_tr_b16 {A(buf+4*e+2*t,2)}, v{vT+tau} offset:{off + ss*4096 + t*512}" for t in range(2)), ('rd', n))
                rd.append(o)
                cc = "0" if n % 40 == 0 else V(acc + 16 * tau, 16)
                mf += code(f"v_mfma_f32_32x32x16_bf16 {V(acc+16*tau,16)}, {A(buf+4*e,4)}, {A(XF+4*((4*jj+ss)%40),4)}, {cc}")
        else:
            mf = []
            for t in range(5):
                o = []
                off = rB.off(base, 20480, o)
                o += code(f"ds_read_b128 {A(buf+4*t,4)}, v{vBR+s} offset:{off + 1024*t}", ('rd', n))
                rd.append(o)
                cc = "0" if n == 0 else V(ACC1 + 16 * t, 16)
                mf += code(f"v_mfma_f32_32x32x16_bf16 {V(ACC1+16*t,16)}, {A(XF+4*n,4)}, {A(buf+4*t,4)}, {cc}")
        reads.append(rd)
        steps.append(dict(pre=[], mf=mf, rd=[[] for _ in mf]))
    for n in range(80):
        st = steps[n]; j, s = divmod(n, 4)
        if c.opt.get('st0') is not None: st['pre'] += code(f'.set STEPMARK{c.typ}{n}, 0')
        if c.opt.get('ts') == 2 and s == 0: st['pre'] += [LazyStamp(c.ts)]
        if OPT.get('dstep') == n: st['pre'] += code('s_sleep 36')
        st['pre'] += [Marker('lgkm', ('rd', n))]
        syncs = [j + 1] if (s == 2 and j + 1 <= 20 - TMB) else []
        if n == TM0 - 1: syncs = list(range(21 - TMB, 20))
        if syncs:
            sy = [x for k in syncs for x in pre_extra.get(('sync', k), []) + [Marker('vm', ('slot', k))]] + [Marker('lgkm', ['ext', 'agw'])] + ([] if OPT.get('nobar') else code("s_barrier")) + [x for k in syncs for x in pre_extra.get(('post', k), [])]
            st['rd'][0] += sy
        if n + 2 < 80:
            src = reads[n + 2]; g = len(st['mf'])
            st['rd'][min(len(src), g) - 1] += [Marker('lgkm', ('rd', n + 1))]
            for i, o in enumerate(src): st['rd'][min(i, g - 1)] += o
        if s == 1 and j + 1 < 10:
            st['rd'][0] += x_read(j + 1)
    for tau in range(4):
        st = steps[TM0 + TMB * tau + TMB - 1]
        st['mf'] += code(f"v_mfma_f32_32x32x16_bf16 {V(ACC2+16*tau,16)}, {A(EXTW+4*tau,4)}, {V(vEX,4)}, {V(ACC2+16*tau,16)}"); st['rd'] += [[]]
    c.TM0, c.TMB = TM0, TMB
    va = VmAlloc(steps); c.va = va
    LR, LX = OPT.get('leadr', 7), OPT.get('leadx', 5)
    E1 = OPT.get('e1', 1)
    va.place(0, x_dma(2), stride=E1); va.place(0, dma(2), stride=E1)
    for its in late.get(0, []): va.place(0, its, stride=E1)
    va.place(1, x_dma(3), by=9 - LX); va.place(0, dma(3), by=10 - LR)
    va.place(3, x_dma(4), by=13 - LX); va.place(3, dma(4), by=14 - LR)
    LD = OPT.get('lead', NS - 1)
    nxt = NS
    for j in range(1, 20):
        if j + 4 < 10 and LD < NS - 1: va.place(4 * j + 3, x_dma(j + 4), by=4 * (j + 3) + 1 - LX)
        while nxt < 20 and nxt <= j - 1 + NS and (nxt < 10 or nxt <= j + LD or nxt > 20 - TMB - 2):
            va.place(4 * j + 2, dma(nxt), by=4 * (nxt - 1) + 2 - LR); nxt += 1
        if j + 4 < 10 and LD == NS - 1: va.place(4 * j + 3, x_dma(j + 4), by=4 * (j + 3) + 1 - LX)
        for its in late.get(j, []): va.place(4 * j + 3, its)
    c.joblast = max([e[3][0] for e in va.log if e[1] is None] + [0])
    if OPT.get('vlog'): print(va.log, file=sys.stderr)
    return steps, reads[0], reads[1]

class VmAlloc:
    def __init__(self, steps):
        self.steps = steps; self.used = set(); self.dma_next = 0; self.log = []; self.b_next = 0; self.iv = []
        self.gaps = [(n, g) for n, st in enumerate(steps) for g in range(len(st['mf']))]
        self.first = {}
        for i, (n, g) in enumerate(self.gaps): self.first.setdefault(n, i)
    def light(self, n, its):
        i = self.first[n]
        for it in its:
            while i in self.used: i += 1
            a, b = self.gaps[i]
            self.steps[a]['rd'][b] += it.its if isinstance(it, Group) else [it]; self.used.add(i)
        return self.gaps[i]
    def place(self, n, its, dma=True, stride=None, by=None):
        stride = stride or OPT.get('vstride', 2)
        groups, cur = [], []
        for it in its:
            cur.append(it)
            if isinstance(it, I) and it.kind == 'vm': groups.append(cur); cur = []
        if cur: groups[-1] += cur
        i0 = self.first[n]
        if dma == 'b': i0 = max(i0, self.b_next)
        elif dma is True: i0 = max(i0, self.dma_next)
        inside = (lambda i: any(a < i < b for a, b in self.iv)) if dma == 'l' else (lambda i: False)
        if dma == 'l': i0 = max(i0, self.b_next)
        for st_ in range(stride, 0, -1):
            i = i0; pos = []; used = set(self.used)
            for grp in groups:
                while inside(i) or any((i + d) in used for d in range(-st_ + 1, st_)): i += 1
                pos.append(i); used.add(i)
            if by is None or i < self.first[max(by, 0)] or st_ == 1: break
        if i >= len(self.gaps): return False
        for grp, k in zip(groups, pos):
            a, b = self.gaps[k]
            self.steps[a]['rd'][b] += grp; self.used.add(k)
        self.log.append((n, by, self.gaps[pos[0]], self.gaps[pos[-1]]))
        if dma in ('b', 'l'): self.b_next = i + 1
        elif dma: self.dma_next = i + 1; self.iv.append((pos[0], pos[-1]))
        return True

def flat(rd): return [x for o in rd for x in o]

sJW, sJ0, sJ1, sJ2, sJ3, sJ4 = 16, 17, 18, 19, sLBS, sBT
def lam_consts(q, L, pows, coef):
    lr, li, ld, a2, rev, O, u = L + 1, L + 2, L + 3, L + 4, L + 5, L + 8, L + 16
    q.e(f"v_lshlrev_b32 v{lr}, 16, v{lr}\nv_lshlrev_b32 v{li}, 16, v{li}\nv_lshlrev_b32 v{ld}, 16, v{ld}")
    q.e(f"v_mul_f32 v{ld}, {LOG2E}, v{ld}\nv_exp_f32 v{ld}, v{ld}")
    bf16r(q, ld)
    q.e(f"v_mul_f32 v{a2}, v{ld}, v{lr}\nv_mul_f32 v{rev}, v{ld}, v{li}\nv_mul_f32 v{a2}, {LOG2E}, v{a2}\nv_mul_f32 v{rev}, {INV2PI}, v{rev}")
    for n, k in enumerate(pows):
        if k != 1: q.e(f"v_mul_f32 v{u}, {f2u(float(k))}, v{a2}\nv_mul_f32 v{u+1}, {f2u(float(k))}, v{rev}\nv_exp_f32 v{u}, v{u}\nv_fract_f32 v{u+1}, v{u+1}")
        else: q.e(f"v_exp_f32 v{u}, v{a2}\nv_fract_f32 v{u+1}, v{rev}")
        q.e(f"v_cos_f32 v{u+2}, v{u+1}\nv_sin_f32 v{u+3}, v{u+1}\nv_mul_f32 v{O+2*n}, v{u}, v{u+2}\nv_mul_f32 v{O+2*n+1}, v{u}, v{u+3}")
    if coef:
        q.e(f"v_add_f32 v{u}, -1.0, v{O}\nv_mul_f32 v{u+1}, v{lr}, v{lr}\nv_fmac_f32 v{u+1}, v{li}, v{li}\nv_rcp_f32 v{u+1}, v{u+1}")
        q.e(f"v_mul_f32 v{u+2}, v{u}, v{lr}\nv_fmac_f32 v{u+2}, v{O+1}, v{li}\nv_mul_f32 v{u+3}, v{O+1}, v{lr}\nv_fma_f32 v{u+3}, -v{u}, v{li}, v{u+3}")
        q.e(f"v_add_f32 v{u+1}, v{u+1}, v{u+1}\nv_mul_f32 v{L+4}, v{u+2}, v{u+1}\nv_mul_f32 v{L+5}, v{u+3}, v{u+1}")

def jobs(c):
    JL = ACC2 + 32
    q = Prog()
    q.e(f"s_lshl_b32 s{sT0}, s{sI}, 4\ns_add_u32 s{sT0}, s{sT0}, s{sMT}\ns_lshl_b32 s{sT0}, s{sT0}, 2\ns_add_u32 s{sJW}, s{sT0}, s{sW}\ns_lshl_b32 s{sJ3}, s{sW}, 13")
    q.e(f"s_min_u32 s{sT0}, s{sJW}, 479\ns_mul_i32 s{sJ1}, s{sT0}, 6554\ns_lshr_b32 s{sJ1}, s{sJ1}, 16\ns_mul_i32 s{sT2}, s{sJ1}, 10\ns_sub_u32 s{sJ0}, s{sT0}, s{sT2}")
    srd(q, S_J0, P_W2, 1536 * 1280)
    q.e(f"v_lshrrev_b32 v{t0}, 3, v{vL}\nv_and_b32 v{t1}, 7, v{vL}\nv_lshrrev_b32 v{t2}, 4, v{vL}\nv_lshlrev_b32 v{t2}, 1, v{t2}\nv_xor_b32 v{t2}, v{t1}, v{t2}\nv_lshlrev_b32 v{t2}, 4, v{t2}")
    q.e(f"v_mul_u32_u24 v{t3}, 1280, v{t0}\nv_add_u32 v{vBR}, v{t2}, v{t3}")
    q.e(f"s_mul_i32 s{sBT+1}, s{sJ1}, {32*1280}\ns_lshl_b32 s{sT3}, s{sJ0}, 7\ns_add_u32 s{sBT+1}, s{sBT+1}, s{sT3}")
    q.e(f"s_min_u32 s{sT0}, s{sJW}, 399\ns_mul_i32 s{sJ2}, s{sT0}, 6554\ns_lshr_b32 s{sJ2}, s{sJ2}, 16\ns_mul_i32 s{sT2}, s{sJ2}, 10\ns_sub_u32 s{sJW}, s{sT0}, s{sT2}")
    srd(q, S_J1, P_CRE, 640 * 1280)
    srd(q, S_AG, P_CIM, 640 * 1280 + 2048, -2048)
    q.e(f"s_mul_i32 s{sBT+2}, s{sJ2}, {16*1280}\ns_lshl_b32 s{sT3}, s{sJW}, 7\ns_add_u32 s{sBT+2}, s{sBT+2}, s{sT3}\ns_add_u32 s{sBT+3}, s{sBT+2}, {8*1280-1024}")
    q.e(f"v_lshlrev_b32 v{JL}, 1, v{vL}\nv_add_u32 v{JL}, s{sT3}, v{JL}")
    for k, ptr in enumerate((P_LRE, P_LIM, P_LDT)):
        q.e(f"global_load_ushort v{JL+1+k}, v{JL}, s[{ptr}:{ptr+1}]", tag='tbl')
    a = q.items
    q = Prog()
    q.e(f"s_add_u32 m0, s{sJ3}, {X_JOB}")
    for i in range(4):
        q.e(f"buffer_load_dwordx4 v{vBR}, {S(S_J0)}, s{sBT+1} offen offset:{1024*i}{NT('ntj')} lds", tag='jobA')
        if i < 3: q.e(f"s_add_u32 s{sBT+1}, s{sBT+1}, {8*1280-1024}")
    da = q.items
    q = Prog()
    q.e(f"s_add_u32 m0, s{sJ3}, {X_JOB + 4096}")
    for i, (sr, so) in enumerate(((S_J1, sBT + 2), (S_J1, sBT + 3), (S_AG, sBT + 2), (S_AG, sBT + 3))):
        q.e(f"buffer_load_dwordx4 v{vXD+(i&1)}, {S(sr)}, s{so} offen offset:{1024*i}{NT('ntj')} lds", tag='jobB')
    db = q.items
    q = Prog()
    q.e(f"v_bfe_u32 v{t0}, v{vL}, 2, 3\nv_lshrrev_b32 v{t1}, 5, v{vL}\nv_lshl_add_u32 v{t1}, v{t1}, 4, v{t0}")
    q.e(f"v_lshrrev_b32 v{t0}, 1, v{t0}\nv_lshlrev_b32 v{t0}, 5, v{t0}\nv_lshl_add_u32 v{t0}, v{t1}, 7, v{t0}\nv_and_b32 v{t1}, 3, v{vL}")
    q.e(f"v_lshl_add_u32 v{t0}, v{t1}, 3, v{t0}\nv_add_u32 v{vBR}, s{sJ3}, v{t0}")
    for tau in range(1, 4): q.e(f"v_xor_b32 v{vBR+tau}, {32*tau}, v{vBR}")
    q.e(f"s_mul_i32 s{sT0}, s{sJ1}, 43\ns_lshr_b32 s{sT0}, s{sT0}, 8\ns_mul_i32 s{sT0}, s{sT0}, 5\ns_add_u32 s{sT0}, s{sT0}, s{sJ1}\ns_mul_i32 s{sJ1}, s{sT0}, 5")
    q.wait_vm('jobA')
    for tau in range(4):
        for t in range(2): q.e(f"ds_read_b64_tr_b16 {V(CSA+4*tau+2*t,2)}, v{vBR+tau} offset:{X_JOB + 1024*t}")
    q.e(f"s_lshl_b32 s{sT0}, s{sJ0}, 2\ns_mul_i32 s{sT1}, s{sT0}, 52\ns_lshr_b32 s{sT1}, s{sT1}, 8\ns_mul_i32 s{sT2}, s{sT1}, 5\ns_sub_u32 s{sT3}, s{sT0}, s{sT2}")
    q.e(f"s_mul_i32 s{sT2}, s{sT1}, 435\ns_add_u32 s{sT0}, s{sT0}, s{sT2}\ns_add_u32 s{sT0}, s{sT0}, s{sJ1}\ns_lshl_b32 s{sT0}, s{sT0}, 10\ns_add_u32 s{sT0}, s{sT0}, {W2S_OFF}")
    for tau in range(4):
        if tau: q.e(f"s_cmp_eq_u32 s{sT3}, {5 - tau}\ns_cselect_b32 s{sT2}, {436*1024}, s{sJ4}\ns_add_u32 s{sT0}, s{sT0}, s{sT2}")
        else: q.e(f"s_movk_i32 s{sJ4}, 1024")
        q.e(f"buffer_store_dwordx4 {V(CSA+4*tau,4)}, v{vL16}, {S(S_WS)}, s{sT0} offen sc1", tag='pub')
    pa = q.items
    q = Prog()
    lam_consts(q, JL, [1], True)
    q.e(f"v_sub_f32 v{JL+5}, 0, v{JL+5}\nv_sub_f32 v{JL+6}, 0, v{JL+4}\nv_lshlrev_b32 v{t0}, 2, v{vL}\nv_add_u32 v{t0}, s{sJ3}, v{t0}")
    for k in range(3): q.e(f"ds_write_b32 v{t0}, v{JL+4+k} offset:{X_JOB + 256*k}")
    q.e(f"v_bfe_u32 v{t0}, v{vL}, 1, 3\nv_bfe_u32 v{t1}, v{vL}, 4, 1\nv_xor_b32 v{t0}, v{t0}, v{t1}\nv_lshlrev_b32 v{t0}, 4, v{t0}")
    q.e(f"v_and_b32 v{t2}, 15, v{vL}\nv_lshl_add_u32 v{t0}, v{t2}, 7, v{t0}\nv_add_u32 v{vBR}, s{sJ3}, v{t0}")
    for s in range(1, 4): q.e(f"v_xor_b32 v{vBR+s}, {32*s}, v{vBR}")
    q.e(f"v_lshrrev_b32 v{t2}, 5, v{vL}\nv_lshlrev_b32 v{t2}, 8, v{t2}\nv_lshl_add_u32 v{t2}, v{t1}, 5, v{t2}\nv_add_u32 v{vTW}, s{sJ3}, v{t2}")
    q.e(f"s_mul_i32 s{sT1}, s{sJ2}, 52\ns_lshr_b32 s{sT1}, s{sT1}, 8\ns_mul_i32 s{sT1}, s{sT1}, 435\ns_add_u32 s{sJ2}, s{sT1}, s{sJ2}")
    q.wait_vm('jobB')
    CR, CI, AL, BE, U = ACC2 + 16, ACC2 + 20, ACC2 + 32, ACC2 + 40, ACC2 + 24
    def rd(s):
        o = 24 * (s & 1) if False else 0
        q.e(f"ds_read_b128 {V(CR,4)}, v{vBR+s} offset:{X_JOB + 4096}\nds_read_b128 {V(CI,4)}, v{vBR+s} offset:{X_JOB + 4096 + 2048}")
        for h in range(2):
            q.e(f"ds_read_b128 {V(AL+4*h,4)}, v{vTW} offset:{X_JOB + 64*s + 16*h}\nds_read_b128 {V(BE+4*h,4)}, v{vTW} offset:{X_JOB + 256 + 64*s + 16*h}")
    for s in range(4):
        rd(s)
        if s == 0:
            q.e(f"s_lshl_b32 s{sT0}, s{sJW}, 2\ns_mul_i32 s{sT1}, s{sT0}, 52\ns_lshr_b32 s{sT1}, s{sT1}, 8\ns_mul_i32 s{sT2}, s{sT1}, 5\ns_sub_u32 s{sT3}, s{sT0}, s{sT2}\ns_mul_i32 s{sT1}, s{sT1}, 6")
            q.e(f"s_add_u32 s{sT0}, s{sT0}, s{sT1}\ns_mul_i32 s{sT0}, s{sT0}, 5\ns_add_u32 s{sT0}, s{sT0}, s{sJ2}\ns_lshl_b32 s{sT0}, s{sT0}, 10\ns_add_u32 s{sT0}, s{sT0}, {W2S_OFF + 30*1024}\ns_movk_i32 s{sJ4}, 5120")
        else:
            q.e(f"s_cmp_eq_u32 s{sT3}, {5 - s}\ns_cselect_b32 s{sT2}, {35*1024}, s{sJ4}\ns_add_u32 s{sT0}, s{sT0}, s{sT2}")
        for d in range(4):
            q.e(f"v_lshlrev_b32 v{U}, 16, v{CR+d}\nv_and_b32 v{U+1}, s{sMASK}, v{CR+d}\nv_lshlrev_b32 v{U+2}, 16, v{CI+d}\nv_and_b32 v{U+3}, s{sMASK}, v{CI+d}")
            q.e(f"v_mul_f32 v{U}, v{AL+2*d}, v{U}\nv_mul_f32 v{U+1}, v{AL+2*d+1}, v{U+1}\nv_fmac_f32 v{U}, v{BE+2*d}, v{U+2}\nv_fmac_f32 v{U+1}, v{BE+2*d+1}, v{U+3}")
            q.e(f"v_cvt_pk_bf16_f32 v{CSA+4*s+d}, v{U}, v{U+1}")
        q.e(f"buffer_store_dwordx4 {V(CSA+4*s,4)}, v{vL16}, {S(S_WS)}, s{sT0} offen sc1", tag='pub')
    q.e(f"s_lshl_b32 s{sT0}, s{sMT}, 7\ns_lshl_b32 s{sT1}, s{sI}, 11\ns_add_u32 s{sT0}, s{sT0}, s{sT1}\ns_add_u32 s{sBT+3}, s{sT0}, {WF_OFF}")
    return a, da, db, pa, q.items

def ext_mfma(acc, n, ffn):
    if ffn: return code("\n".join(f"v_mfma_f32_32x32x16_bf16 {V(acc+16*t,16)}, {A(EXTW+4*t,4)}, {V(vEX,4)}, {V(acc+16*t,16)}" for t in range(n)))
    return code("\n".join(f"v_mfma_f32_32x32x16_bf16 {V(acc+16*t,16)}, {V(vEX,4)}, {A(EXTW+4*t,4)}, {V(acc+16*t,16)}" for t in range(n)))

sBQ, sAO, sAP, sBC, sBD = 66, 67, 68, 64, 65
TAB = [70, 71, 72, 73, 74, 75, 76, 77, 78, 79, 84]
def k2_setup(c):
    q = Prog()
    ld = f"buffer_load_dword v249, v248, {S(S_WS)}, s69 offen sc1"
    a_, b_, c_ = 248, 249, 250
    q.e(f"s_lshr_b32 s86, s{sSL}, 3\ns_lshl_b32 s85, s86, 2\ns_add_u32 s85, s85, s{sW}\ns_and_b32 s87, s{sSL}, 7\ns_mul_i32 s87, s87, 5\ns_mov_b32 s69, {WF_OFF}")
    q.e(f"s_mul_i32 s88, s85, 6\ns_mul_i32 s85, s85, 5\ns_sub_u32 s84, s87, 6")
    q.e(f"v_min_u32 v{c_}, 21, v{vL}\nv_cmp_gt_u32 s[64:65], 12, v{c_}\nv_mov_b32 v{a_}, s84\nv_mov_b32 v{b_}, s88\nv_cndmask_b32 v{a_}, v{a_}, v{b_}, s[64:65]")
    q.e(f"v_mov_b32 v{b_}, s85\nv_mov_b32 v243, s87\nv_cndmask_b32 v{b_}, v{b_}, v243, s[64:65]\nv_lshrrev_b32 v243, 1, v{c_}\nv_add_u32 v{a_}, v{a_}, v243")
    q.e(f"v_and_b32 v{c_}, 1, v{c_}\nv_lshl_add_u32 v{b_}, v{c_}, 2, v{b_}\nv_lshrrev_b32 v{b_}, 2, v{b_}\nv_mad_u32_u24 v{a_}, v{a_}, 10, v{b_}\nv_lshrrev_b32 v{a_}, 2, v{a_}\nv_lshlrev_b32 v{a_}, 7, v{a_}")
    q.e(f"s_lshr_b32 s86, s{sSL}, 3\ns_lshl_b32 s85, s86, 2\ns_add_u32 s85, s85, s{sW}\ns_mul_i32 s85, s85, 11")
    q.e(f"s_and_b32 s87, s{sSL}, 7\ns_mul_i32 s87, s87, 88\ns_add_u32 s87, s87, s85\ns_mul_i32 s{sBQ}, s87, 5120\ns_add_u32 s{sBQ}, s{sBQ}, {W2S_OFF}")
    q.e(f"s_lshl_b32 s87, s{sMT}, 1\ns_add_u32 s88, s87, s86\ns_mul_i32 s88, s88, 88\ns_add_u32 s88, s88, s85\ns_lshl_b32 s{sAO}, s88, 12")
    q.e(f"s_xor_b32 s86, s86, 1\ns_add_u32 s88, s87, s86\ns_mul_i32 s88, s88, 88\ns_add_u32 s88, s88, s85\ns_lshl_b32 s{sAP}, s88, 12")
    q.e(f"s_and_b32 s85, s{sMT}, {3 if OPT.get('rot', 1) else 0}\ns_mov_b32 s{TAB[0]}, 0\ns_lshl_b32 s85, s85, 13\ns_add_u32 s{TAB[4]}, s85, {4*4096}")
    for i in range(1, 4): q.e(f"s_add_u32 s{TAB[i]}, s{TAB[i-1]}, 4096\ns_and_b32 s{TAB[i]}, s{TAB[i]}, {3*4096}")
    for i in range(5, 11): q.e(f"s_add_u32 s{TAB[i]}, s{TAB[i-1]}, 4096\ns_cmp_eq_u32 s{TAB[i]}, {11*4096}\ns_cselect_b32 s{TAB[i]}, {4*4096}, s{TAB[i]}")
    q.e(f"s_mov_b32 s85, s{sBQ}\ns_lshl_b32 s88, s{sW}, 10")
    return q.items, code(ld), retry2(c, ld, [249], 250, 86)
BH = [4 * f for f in range(28)] + [176, 212, 216] + [240, 244, 248, 252] + [112 + 4 * k for k in range(12)] + [160, 164, 168, 172, 180, 184, 188, 192]
def baddr(f):
    i, ct = divmod(f, 5)
    t = ""
    if ct == 0: t += f"s_lshr_b32 s{sBC}, s{TAB[i]}, 2\ns_add_u32 s{sBC}, s{sBC}, s{TAB[i]}\ns_add_u32 s{sBC}, s{sBC}, s{sBQ}\n"
    else: t += f"s_add_u32 s{sBC}, s{sBC}, 1024\n"
    return t
def bpre(f):
    return code(baddr(f) + f"buffer_load_dwordx4 {A(BH[f],4)}, v{vL16}, {S(S_WS)}, s{sBC} offen sc1", 'bpre')
def bstage(f, lds):
    return code(f"s_add_u32 m0, s88, {lds}\n" + baddr(f) + f"buffer_load_dwordx4 v{vL16}, {S(S_WS)}, s{sBC} offen sc1 lds", 'bst')
def add_bpre(c, first, stage):
    free = lambda f: 41 + f if f < 28 else 46
    f = 0
    order = list(range(35))
    while f < 35:
        if not c.va.place(max(first, free(f)), bpre(f), dma='b'): return f
        f += 1
    return f
def add_stage(c, first, stage):
    c.staged = []
    for k, (lds, e) in enumerate(stage):
        f = 35 + k
        if f >= 55: break
        i, ct = divmod(f, 5)
        t = f"s_add_u32 m0, s88, {lds}\ns_lshr_b32 s{sBD}, s{TAB[i]}, 2\ns_add_u32 s{sBD}, s{sBD}, s{TAB[i]}\ns_add_u32 s{sBD}, s{sBD}, s85\n"
        if ct: t += f"s_add_u32 s{sBD}, s{sBD}, {1024*ct}\n"
        t += f"buffer_load_dwordx4 v{vL16}, {S(S_WS)}, s{sBD} offen sc1 lds"
        if not c.va.place(max(first, e), code(t, 'bst'), dma='l'): break
        c.staged.append((f, lds))
    c.va.b_next = 0
def unstage(c):
    q = Prog()
    q.e(f"v_add_u32 v{vPA}, s88, v{vL16}\nv_add_u32 v{vTW}, 65536, v{vPA}\nv_add_u32 v{vEX}, 131072, v{vPA}")
    q.wait_vm('bst')
    for f, lds in c.staged:
        q.e(f"ds_read_b128 {A(BH[f],4)}, v{(vPA, vTW, vEX)[lds >> 16]} offset:{lds & 65535}")
    return q.items
def brest(c):
    out = []
    done = set(range(c.nb)) | {f for f, _ in c.staged}
    for f in range(55):
        if f in done: continue
        i, ct = divmod(f, 5)
        t = f"s_lshr_b32 s{sBC}, s{TAB[i]}, 2\ns_add_u32 s{sBC}, s{sBC}, s{TAB[i]}\ns_add_u32 s{sBC}, s{sBC}, s{sBQ}\n"
        if ct: t += f"s_add_u32 s{sBC}, s{sBC}, {1024*ct}\n"
        out.append(Group(code(t + f"buffer_load_dwordx4 {A(BH[f],4)}, v{vL16}, {S(S_WS)}, s{sBC} offen sc1", 'bpre')))
    if OPT.get('vlog'): print(c.typ, "direct", c.nb, "staged", len(c.staged), "rest", len(out), file=sys.stderr)
    return out

def k1_X(p, c):
    ts = c.ts; o = c.opt
    sb = lambda j: X_RING + (j % X_NS) * X_SLOT
    def dma(j):
        pre = code(f"s_add_u32 s{sDB}, s{sDB}, 128") if j == 10 else []
        return pre + ffn_dma(sb(j), j)
    JP = 0
    ja, jda, jdb, jpa, jpb = jobs(c)
    ffn_dma_addr(p)
    p.e(f"s_mul_i32 s{sDB}, s{sW}, {16*3072}\ns_mul_i32 s{sT0}, s{sI}, 384\ns_add_u32 s{sDB}, s{sDB}, s{sT0}")
    c.save_id(p)
    p.e("s_waitcnt lgkmcnt(0)")
    srd(p, S_X, P_X, 2048 * 1280); ffn_srd(p)
    first_loads(p, dma(0))
    c.start(p)
    early_loads(p, 'X')
    common_addr(p)
    tr_addrs(p, X_RING)
    code_prefetch(p, 'X')
    p.extend(ja)
    p.extend(x_dma(1)); p.extend(dma(1))
    p.e(NONCE_LD())
    ts(p)
    rT = Ring(vT, 4, X_RING)
    WS_ = o.get('wsync', 7)
    F1 = o.get('f1', 16)
    pre_extra = {('sync', WS_): [Marker('vm', 'pub')], ('post', WS_): flag(f"s{sBT+3}"), ('sync', F1): [Marker('vm', 'h')],
                 ('post', F1): code(f"buffer_store_dword v{vPT}, v{vFZ}, {S(S_WS)}, s{sFL} offen offset:4 sc1", 'flag')}
    JA = o.get('ja', 1); JB = o.get('jb', 1)
    steps, r0, r1 = build_steps(c, 'F' * 20, sb, dma, X_NS, rT, None, pre_extra, {} if o.get('nojob') else {o.get('jblk', 0): [jda, jdb]})
    p.extend(x_read(0))
    p.wait_vm(('slot', 0)); p.e("s_barrier")
    p.extend(flat(r0)); p.extend(flat(r1))
    ts(p)
    cs1, cs1s = cs_produce_ffn(ACC2, f"s_mul_i32 s{sT0}, s{sI}, 3")
    sl, su = stats_consume(c); cl, cu = cs_consume(c, 4, ACC2)
    ks_, kl, kc = k2_setup(c)
    CD = o.get('cd', 9); BF0 = o.get('bf0', 45)
    side = cs1[:10] + [Deadline(5)] + items(stats_job) + nonce_get(c) + stats_store() + cs1[10:] + [Deadline(CD), Gate(CD)] + cs1s + [Deadline(CD + 1)]
    assert o.get('jga', 10) > c.joblast, c.joblast
    if not JP: side += [Gate(o.get('jga', 10))] + jpa + [Gate(o.get('jgb', 12))] + jpb + [Deadline(o.get('jd', 22))]
    G1_ = o.get('g1', 22)
    ex1 = ([Gate(o.get('tg', 12))] + touch() + [Deadline(o.get('tg', 12) + 2)] if o.get('touch', 0) else []) + [Gate(14)] + ks_ + [Deadline(G1_), Gate(G1_)] + sl + cl[0] + [Deadline(G1_ + 1)]
    c.lights = [(G1_ + 1, cl[1])]
    ex1 += [Gate(o.get('gu', 31))] + su + cu + [Deadline(38), Gate(38)] + ext_read(4) + [Deadline(39)]
    assert BF0 - o.get('kld', 5) >= 38
    steps[39]['mf'] += ext_mfma(ACC1, 4, True); steps[39]['rd'] += [[], [], [], []]
    steps[40]['pre'] = ([] if o.get('ts') == 2 else [LazyStamp(ts)]) + steps[40]['pre']
    cs2, cs2s = cs_produce_ffn(CSA, f"s_mul_i32 s{sT0}, s{sI}, 3\ns_add_u32 s{sT0}, s{sT0}, 1")
    cl, cu = cs_consume(c, 4, CSA)
    side += [Gate(40)] + cs2 + [Deadline(45), Gate(45)] + cs2s + ffn_epi(ACC1, 0, 0)
    for tau in range(1, 3): side += ffn_epi(ACC1 + 16 * tau, tau >> 1, (tau & 1) * 512)
    TM0, TMB = c.TM0, c.TMB
    G2L = max(o.get('g2l', 53), BF0 + 1)
    ex2 = [Gate(G2L - 1)] + cl[0] + [Deadline(G2L)]
    c.lights.append((G2L, cl[1]))
    side += ffn_epi(ACC1 + 48, 1, 512) + [Deadline(o.get('e1d', 57)), Gate(61)] + cu + [Deadline(TM0 - 2), Gate(TM0 - 2)] + ext_read(4) + k2_flags(c) + [Deadline(TM0 + 1)]
    for tau in range(3): side += [Gate(TM0 + TMB * (tau + 1))] + code("s_nop 1") + ffn_epi(ACC2 + 16 * tau, 2 + (tau >> 1), (tau & 1) * 512) + [Deadline(TM0 + TMB * (tau + 2))]
    add_stage(c, BF0, [(4096 * k, 42) for k in range(4)] + [(32768 + 4096 * k, 42) for k in range(12)] + ([(sb(15) + 4096 * k, 66) for k in range(4)] if o.get('st15', 0) else []))
    c.nb = add_bpre(c, BF0, None)
    for n_ in (24, 44, 62)[:o.get('nca', 0)]: c.lights.append((n_, code_ahead(c.typ, 214, 214, 0, lines=o.get('cal', 16))))
    for n_, its in c.lights:
        e = c.va.light(n_, its)
        if o.get('vlog'): print('light', n_, e, file=sys.stderr)
    resolve(steps)
    if o.get('noside'): side = nonce_get(c) + [Deadline(9)]
    weave(p, steps, side, base_rate=o.get('xrate', 2), extra=[ex1 + [Gate(BF0 - o.get('kld', 5))] + kl + [Deadline(BF0 - o.get('kld', 5) + 1), Gate(BF0 - 1)] + kc + [Deadline(BF0)] + ex2])
    ts(p)
    p.extend(mk(c, 80) + ffn_epi(ACC2 + 48, 3, 512) + mk(c, 81) + unstage(c))
    ts(p)

def k1_Y(p, c):
    ts = c.ts; o = c.opt
    sb = lambda j: Y_RING + (j % Y_NS) * Y_SLOT
    dma = lambda j: ssm_dma(sb(j), j) if j < 10 else ffn_dma(sb(j), j)
    p.e(f"s_mul_i32 s{sLBS}, s{sW}, 5120")
    p.e(f"s_and_b32 s{sT0}, s{sW}, 1\ns_lshl_b32 s{sT1}, s{sT0}, 2\ns_lshr_b32 s{sT2}, s{sW}, 1\ns_xor_b32 s{sT1}, s{sT1}, s{sT2}")
    p.e(f"s_lshl_b32 s{sT1}, s{sT1}, 4\nv_xor_b32 v{vDS}, s{sT1}, v{vXD}")
    p.e(f"s_mul_i32 s{sT1}, s{sI}, 80\ns_lshl_b32 s{sT0}, s{sT0}, 3\ns_add_u32 s{sT0}, s{sT0}, s{sT1}\ns_mul_i32 s{sBT}, s{sT0}, 1280")
    for t in range(1, 4): p.e(f"s_add_u32 s{sBT+t}, s{sBT}, {t*(20480-1024)}")
    p.e(f"s_add_u32 s{sBT+4}, s{sBT}, {4*20480}")
    c.save_id(p)
    p.e("s_waitcnt lgkmcnt(0)")
    srd(p, S_X, P_X, 2048 * 1280)
    p.e(f"s_cmp_ge_u32 s{sW}, 2\ns_cselect_b32 s{S_B}, s{P_BIM}, s{P_BRE}\ns_cselect_b32 s{S_B+1}, s{P_BIM+1}, s{P_BRE+1}")
    p.e(f"s_mov_b32 s{S_B+2}, {640*1280}\ns_mov_b32 s{S_B+3}, 0x20000")
    first_loads(p, dma(0))
    p.e("s_branch K_Y\n.set SPLIT, 0\nK_Y:")
    c.start(p)
    early_loads(p, 'Y')
    L = ACC2 + 16
    p.e(f"v_lshrrev_b32 v{L}, 5, v0\nv_lshlrev_b32 v{L}, 4, v{L}\nv_bfe_u32 v{L+1}, v0, 1, 4\nv_add_u32 v{L}, v{L}, v{L+1}")
    p.e(f"v_add_u32 v{L}, s{sT1}, v{L}\nv_min_u32 v{L}, 639, v{L}\nv_lshlrev_b32 v{L}, 1, v{L}")
    for k, ptr in enumerate((P_LRE, P_LIM, P_LDT)):
        p.e(f"global_load_ushort v{L+1+k}, v{L}, s[{ptr}:{ptr+1}]", tag='tbl')
    ffn_dma_addr(p); ffn_srd(p)
    p.e(f"s_mul_i32 s{sDB}, s{sW}, {16*3072}\ns_mul_i32 s{sT0}, s{sI}, 384\ns_add_u32 s{sDB}, s{sDB}, s{sT0}\ns_add_u32 s{sDB}, s{sDB}, 256")
    common_addr(p)
    p.e(f"v_and_b32 v{t0}, 1, v{vL}\nv_bfe_u32 v{t1}, v{vL}, 1, 4\nv_lshl_add_u32 v{t1}, v{t0}, 4, v{t1}")
    p.e(f"v_bfe_u32 v{t2}, v{t1}, 1, 3\nv_xor_b32 v{t2}, v{t2}, v{t0}\nv_lshrrev_b32 v{t3}, 5, v{vL}\nv_xor_b32 v{t2}, v{t2}, v{t3}\nv_lshlrev_b32 v{t2}, 4, v{t2}")
    p.e(f"v_and_b32 v{t3}, 7, v{t1}\nv_lshl_add_u32 v{t2}, v{t3}, 7, v{t2}\nv_lshrrev_b32 v{t3}, 3, v{t1}\nv_mul_u32_u24 v{t3}, 5120, v{t3}")
    p.e(f"v_add_u32 v{t2}, v{t2}, v{t3}\nv_add_u32 v{vBR}, {Y_RING}, v{t2}")
    for s in range(1, 4): p.e(f"v_xor_b32 v{vBR+s}, {32*s}, v{vBR}")
    tr_addrs(p, sb(10))
    code_prefetch(p, 'Y')
    vE, vAG, vFL, vSTW, vSTR, vE2 = 252, 253, 254, vXD, vXD + 1, 242
    p.e(f"v_lshlrev_b32 v{vE}, 5, v0\nv_mul_u32_u24 v{vE2}, 48, v0")
    srd(p, S_AG, P_WS, 32 * 1280, AGG_OFF)
    p.e(f"s_mul_i32 s{sT0}, s{sI}, {32*1280}\ns_add_u32 s{S_AG}, s{S_AG}, s{sT0}\ns_addc_u32 s{S_AG+1}, s{S_AG+1}, 0")
    p.e(f"v_subrev_u32 v{t0}, 160, v0\nv_min_u32 v{t0}, v{t0}, v0\nv_lshlrev_b32 v{vFL}, 3, v{t0}\nv_mov_b32 v{t1}, {OOB}\nv_cmp_gt_u32 vcc, 160, v0\nv_cndmask_b32 v255, v{t1}, v{vFL}, vcc")
    ts(p)
    q = Prog()
    lam_consts(q, L, [1, 16, 128], False)
    O = L + 8
    q.e(f"v_and_b32 v{L}, 1, v0\nv_lshlrev_b32 v{L}, 31, v{L}\nv_xor_b32 v{L}, 0x80000000, v{L}")
    for n in range(3): q.e(f"v_xor_b32 v{O+2*n+1}, v{L}, v{O+2*n+1}")
    q.e(f"ds_write_b64 v{vE}, {V(O,2)} offset:{Y_TBL}\nds_write_b128 v{vE}, {V(O+2,4)} offset:{Y_TBL+16}")
    table = q.items
    p.extend(x_dma(1)); p.extend(dma(1))
    p.e(NONCE_LD())
    rT = Ring(vT, 4, sb(10)); rB = Ring(vBR, 4, Y_RING)
    steps, r0, r1 = build_steps(c, 'S' * 10 + 'F' * 10, sb, dma, Y_NS, rT, rB, {}, {})
    p.extend(x_read(0))
    p.wait_vm(('slot', 0)); p.e("s_barrier")
    p.extend(flat(r0)); p.extend(flat(r1))
    ts(p)
    q = Prog()
    q.e(f"s_lshl_b32 s{sT0}, s{sW}, 10")
    for s in range(4): q.e(f"v_add_u32 v{t0+s}, s{sT0}, v{vBR+s}\nds_read_b128 {A(CSF+4*s,4)}, v{t0+s}")
    for s in range(4): q.e(f"ds_read_b128 {A(EXTW+4*s,4)}, v{vBR+s} offset:4096")
    cs_store_addr(q, f"s_add_u32 s{sT0}, s{sI}, 24")
    CB = ACC2 + 48
    for s in range(4): q.e(f"v_mfma_f32_32x32x16_bf16 {V(CB,16)}, {V(vONE,4)}, {A(CSF+4*s,4)}, {'0' if s == 0 else V(CB,16)}")
    for s in range(4): q.e(f"v_mfma_f32_32x32x16_bf16 {V(ACC2,16)}, {V(vONE,4)}, {A(EXTW+4*s,4)}, {'0' if s == 0 else V(ACC2,16)}")
    cs1 = q.items
    cs1s = code(f"v_mov_b32 v{CB+1}, s{sN}\nv_mov_b32 v{ACC2+1}, s{sN}\nbuffer_store_dwordx2 {V(CB,2)}, v{t4}, {S(S_WS)}, s{sU2} offen sc1\ns_lshl_b32 s{sT0}, s{sW}, 8\ns_sub_u32 s{sT0}, s{sU2}, s{sT0}\n"
                f"buffer_store_dwordx2 {V(ACC2,2)}, v{t4}, {S(S_WS)}, s{sT0} offen offset:1024 sc1\n"
                f"s_add_u32 s{sT0}, s{sMT}, 16\ns_mul_i32 s{sT0}, s{sT0}, 1280\n"
                f"buffer_store_dwordx2 {V(vZ,2)}, v255, {S(S_AG)}, s{sT0} offen sc1", 'pub')
    sl, su = stats_consume(c); cl, cu = cs_consume(c, 5, ACC2)
    ks_, kl, kc = k2_setup(c)
    side = cs1[:13] + [Deadline(5)] + items(stats_job) + nonce_get(c) + stats_store() + cs1[13:] + [Deadline(10), Gate(10)] + cs1s + table + [Deadline(18)]
    G1_ = o.get('g1', 22)
    ex1 = ([Gate(o.get('tg', 12))] + touch() + [Deadline(o.get('tg', 12) + 2)] if o.get('touch', 0) else []) + [Gate(14)] + ks_ + [Deadline(G1_), Gate(G1_)] + sl + cl[0] + [Deadline(G1_ + 1)]
    c.lights = [(G1_ + 1, cl[1])]
    side += [Gate(o.get('gu', 31))] + su + cu + [Deadline(38), Gate(38)] + ext_read(5) + [Deadline(39)]
    q = Prog()
    q.e(f"v_and_b32 v{t0}, 31, v{vL}\nv_mul_u32_u24 v{t2}, 48, v{t0}\nv_lshlrev_b32 v{t0}, 5, v{t0}\nv_lshrrev_b32 v{t1}, 5, v0\nv_lshl_add_u32 v{vAG}, v{t1}, 2, v{t2}")
    for t in range(5): q.e(f"ds_read_b64 {V(C0+2*t,2)}, v{t0} offset:{Y_TBL + 1024*t}")
    side += q.items + [Deadline(40)]
    steps[39]['mf'] += ext_mfma(ACC1, 5, False); steps[39]['rd'] += [[], [], [], [], []]
    steps[40]['pre'] = ([] if o.get('ts') == 2 else [LazyStamp(ts)]) + steps[40]['pre']
    AS = o.get('async', 12)
    BF0 = o.get('bf0y', 46)
    cs2, cs2s = cs_produce_ffn(CSA, f"s_mul_i32 s{sT0}, s{sI}, 3\ns_add_u32 s{sT0}, s{sT0}, 2")
    side += [Gate(40)] + cs2[:10]
    LM, E0, GA, G1 = 244, RT + 4, RT + 12, TMP - 2
    q = Prog()
    def scale(tt):
        for t in range(5): q.e(f"v_mul_f32 v{ACC1+16*t+tt}, v{RT+tt}, v{ACC1+16*t+tt}")
    q.extend(cs2[10:])
    q.add(Deadline(45))
    scale(0); scale(1)
    q.extend(cs2s)
    q.e(f"ds_read_b128 {V(LM,4)}, v{vE} offset:{Y_TBL+16}")
    for tt in range(1, 16):
        for t in range(5):
            g = (ACC1 + 16 * t) if tt == 1 else (G1 + 2 * t + (tt & 1))
            q.e(f"v_fma_f32 v{G1+2*t+((tt+1)&1)}, v{C0+2*t}, v{g}, v{ACC1+16*t+tt}")
        if tt < 15: scale(tt + 1)
        for t in range(5):
            g = (ACC1 + 16 * t) if tt == 1 else (G1 + 2 * t + (tt & 1))
            q.e(f"v_fmac_f32_dpp v{G1+2*t+((tt+1)&1)}, v{g}, v{C0+2*t+1} {QP}")
    for t in range(5): q.e(f"ds_write_b32 v{vAG}, v{G1+2*t} offset:{AG_L + 16 + 1536*t}", tag='agw')
    side += q.items + [Deadline(4 * (AS - 1) + 2), Gate(4 * (AS - 1) + 2)]
    q = Prog()
    q.e(f"ds_read_b128 {V(E0,4)}, v{vE2} offset:{AG_L+16}\nds_read_b128 {V(E0+4,4)}, v{vE2} offset:{AG_L+32}")
    q.e(f"s_sub_u32 s{sBT}, 15, s{sMT}\ns_mul_i32 s{sBT}, s{sBT}, 1280")
    fill = code("\n".join(f"s_add_u32 s{S_J0+i}, s{sBT}, {1280 + 3840*i}" for i in range(5)) + f"\ns_add_u32 s{sBT+4}, s{sH}, {6*4096}\ns_nop 0")
    for k in range(1, 8):
        g = E0 if k == 1 else (GA + (k & 1))
        q.e(f"v_fma_f32 v{GA+((k+1)&1)}, v{LM}, v{g}, v{E0+k}"); q.add(fill[k - 1])
        q.e(f"v_fmac_f32_dpp v{GA+((k+1)&1)}, v{g}, v{LM+1} {QP}")
    q.e(f"v_mov_b32 v{GA+1}, s{sN}\nbuffer_store_dwordx2 {V(GA,2)}, v255, {S(S_AG)}, s{sBT} offen sc1", tag='pub')
    side += q.items + [Deadline(4 * (AS - 1) + 4)]
    q = Prog()
    q.e(f"v_and_b32 v{t0}, 1, v{vL}\nv_bfe_u32 v{t1}, v{vL}, 1, 4\nv_lshl_add_u32 v{t1}, v{t0}, 4, v{t1}\nv_bfe_u32 v{t2}, v{vL}, 4, 1\nv_xor_b32 v{t0}, v{t0}, v{t2}")
    q.e(f"v_lshrrev_b32 v{t2}, 5, v{vL}\nv_xor_b32 v{t0}, v{t0}, v{t2}\nv_bfe_u32 v{t2}, v{vL}, 2, 1\nv_lshl_add_u32 v{t0}, v{t0}, 1, v{t2}\nv_lshlrev_b32 v{t0}, 4, v{t0}")
    q.e(f"v_lshl_add_u32 v{t1}, v{t1}, 6, v{t0}\ns_mul_i32 s{sT0}, s{sW}, 10240\ns_add_u32 s{sT0}, s{sT0}, 98304\nv_add_u32 v{vSTW}, s{sT0}, v{t1}\nv_xor_b32 v229, 16, v{vSTW}")
    q.e(f"v_lshrrev_b32 v{t0}, 4, v{vL}\nv_lshlrev_b32 v{t1}, 9, v{t0}\nv_bfe_u32 v{t2}, v{vL}, 2, 2\nv_lshl_add_u32 v{t1}, v{t2}, 6, v{t1}\nv_lshrrev_b32 v{t2}, 1, v{t0}\nv_xor_b32 v{t0}, v{t0}, v{t2}")
    q.e(f"v_and_b32 v{t0}, 1, v{t0}\nv_bfe_u32 v{t2}, v{vL}, 3, 1\nv_lshl_add_u32 v{t0}, v{t0}, 1, v{t2}\nv_bfe_u32 v{t2}, v{vL}, 1, 1\nv_xor_b32 v{t0}, v{t0}, v{t2}\nv_lshl_add_u32 v{t1}, v{t0}, 4, v{t1}")
    q.e(f"v_and_b32 v{t0}, 1, v{vL}\nv_lshl_add_u32 v{t1}, v{t0}, 3, v{t1}\nv_add_u32 v{vSTR}, s{sT0}, v{t1}\nv_xor_b32 v230, 32, v{vSTR}")
    cl, cu = cs_consume(c, 4, CSA)
    TM0, TMB = c.TM0, c.TMB
    G2L = max(o.get('g2l', 53), BF0 + 1)
    ex2 = [Gate(G2L - 1)] + cl[0] + [Deadline(G2L)]
    c.lights.append((G2L, cl[1]))
    side += q.items + [Gate(o.get('g2', 61))] + cu
    LP = [CSA + 2 * i for i in range(8)] + [4, 6, 8, 10, 12, 14, 16]
    ldl = "\n".join(f"buffer_load_dwordx2 {V(LP[i],2)}, v{vFL}, {S(S_AG)}, s{S_J0+i//3} offen offset:{(i%3)*1280} sc1" for i in range(15))
    side += [Deadline(TM0 - 2), Gate(TM0 - 2)] + ext_read(4) + k2_flags(c) + [Deadline(TM0 + TMB)]
    c.lights.append((o.get('g3', TM0), code(ldl)))
    c.lights.append((o.get('gx1', 76), code(c.ldx1)))
    for tau in range(3): side += [Gate(TM0 + TMB * (tau + 1))] + code("s_nop 1") + ffn_epi(ACC2 + 16 * tau, 4 + (tau >> 1), (tau & 1) * 512) + [Deadline(TM0 + TMB * (tau + 2))]
    q = Prog()
    q.extend(retry(c, ldl, tagcheck([r + 1 for r in LP]), (ldl.split('\n')[0], tagcheck([LP[0] + 1]))))
    for i in range(13, -1, -1):
        q.e(f"v_fmac_f32 v{LP[i]}, v{LM+2}, v{LP[i+1]}\nv_fmac_f32_dpp v{LP[i]}, v{LP[i+1]}, v{LM+3} {QP}")
    q.e(f"ds_write_b32 v{vE2}, v{LP[0]} offset:{AG_L+12}", tag='pw')
    for k in range(7):
        g = LP[0] if k == 0 else E0 + k - 1
        q.e(f"v_fmac_f32 v{E0+k}, v{LM}, v{g}\nv_fmac_f32_dpp v{E0+k}, v{g}, v{LM+1} {QP}")
    q.e(f"ds_write_b128 v{vE2}, {V(E0,4)} offset:{AG_L+16}\nds_write_b128 v{vE2}, {V(E0+4,4)} offset:{AG_L+32}", tag='pw')
    gch = q.items
    q = Prog()
    CY = [216, 217, 218, 219, 228]
    for t in range(5): q.e(f"ds_read_b32 v{CY[t]}, v{vAG} offset:{AG_L + 12 + 1536*t}")
    cy = q.items
    def scan(tiles):
        q = Prog()
        for tt in range(16):
            for t in tiles:
                g = CY[t] if tt == 0 else (ACC1 + 16 * t + tt - 1)
                q.e(f"v_fmac_f32 v{ACC1+16*t+tt}, v{C0+2*t}, v{g}")
            for t in tiles:
                g = CY[t] if tt == 0 else (ACC1 + 16 * t + tt - 1)
                q.e(f"v_fmac_f32_dpp v{ACC1+16*t+tt}, v{g}, v{C0+2*t+1} {QP}")
            for k in ([tt // 2 - 1] if (tt >= 2 and tt % 2 == 0) else []) + ([7] if tt == 15 else []):
                for t in tiles: q.e(f"v_cvt_pk_bf16_f32 v{ACC1+16*t+k}, v{ACC1+16*t+2*k}, v{ACC1+16*t+2*k+1}")
            if tt == 10:
                for t in tiles: q.e(f"ds_write_b128 v{vSTW}, {V(ACC1+16*t,4)} offset:{HT2_L + t*2048}")
        return q.items
    def outp(tiles):
        q = Prog()
        for t in tiles:
            R = ACC1 + 16 * t
            q.e(f"ds_write_b128 v229, {V(R+4,4)} offset:{HT2_L + t*2048}")
            for rt in range(2):
                for tq in range(2): q.e(f"ds_read_b64_tr_b16 {V(R+8+4*rt+2*tq,2)}, v{(vSTR, 230)[rt]} offset:{HT2_L + t*2048 + tq*256}")
        for t in tiles:
            R = ACC1 + 16 * t
            q.e(f"s_add_u32 s{sT2}, s85, {t*4096}")
            for rt in range(2): q.e(f"buffer_store_dwordx4 {V(R+8+4*rt,4)}, v{vL16}, {S(S_WS)}, s{sT2} offen offset:{rt*1024} sc1", tag='h')
        return q.items
    add_stage(c, BF0, [(24576 + 4096 * k, 46) for k in range(8)] + [(12288, 46), (159744, 46)] + [(Y_RING + 20480 * k + 16384, 46) for k in range(5)] + ([(sb(15) + 4096 * k, 66) for k in range(4)] if o.get('st15', 0) else []))
    c.nb = add_bpre(c, BF0, None)
    for n_ in (24, 44, 62)[:o.get('nca', 0)]: c.lights.append((n_, code_ahead(c.typ, 214, 214, 0, lines=o.get('cal', 16))))
    for n_, its in c.lights:
        e = c.va.light(n_, its)
        if o.get('vlog'): print('light', n_, e, file=sys.stderr)
    resolve(steps)
    if o.get('noside'): side = nonce_get(c) + [Deadline(9)]
    weave(p, steps, side, base_rate=o.get('yrate', 3),
                 extra=[ex1 + [Gate(BF0 - o.get('kld', 5))] + kl + [Deadline(BF0 - o.get('kld', 5) + 1), Gate(BF0 - 1)] + kc + [Deadline(BF0)] + ex2])
    ts(p)
    p.e(f"s_mov_b32 s85, s{sBT+4}\nv_mov_b32 v{vKN}, v{vPT}\nv_mov_b32 v{vKF}, v{vFZ}")
    p.extend(unstage(c))
    tail = mk(c, 80) + c.chkx1 + merge(c.aload(0) + c.aload(1), merge(autogroup(gch), ffn_epi(ACC2 + 48, 5, 512), keep=True), 1.0) + mk(c, 81) + [Marker('lgkm', 'pw')] + code("s_barrier")
    OV = o.get('ov', 0)
    tail += cy + merge(brest(c), scan([0, 1]), 1.0) + mk(c, 82)
    if OV == 0:
        tail += merge(outp([0, 1]), scan([2, 3]), 1.0) + mk(c, 83)
        tail += merge(outp([2, 3]), scan([4]) + outp([4])[:5], 1.0) + code(c.ldx) + outp([4])[5:]
        c.k2side = []
    elif OV == 1:
        tail += merge(outp([0, 1]) + c.aload(2), scan([2, 3, 4]), 1.0) + mk(c, 83) + code(c.ldx); c.a2 = True
        c.k2side = outp([2, 3, 4]) + [Deadline(2)]
    else:
        tail += mk(c, 83) + c.aload(2) + code(c.ldx); c.a2 = True
        c.k2side = merge(outp([0, 1]), scan([2, 3, 4]), 1.0) + outp([2, 3, 4]) + [Deadline(2)]
    p.extend(tail)
    ts(p)

def mk(c, n): return code(f'.set STEPMARK{c.typ}{n}, 0') if c.opt.get('st0') is not None else []
def merge(a, b, f=1.15, keep=False):
    out = []; k = 0
    for i, it in enumerate(b):
        out.append(it)
        while k < len(a) and k * len(b) <= i * len(a) * f:
            out.append(a[k]); k += 1
    out += a[k:]
    if keep: return out
    return [y for x in out for y in (x.its if isinstance(x, Group) else [x])]

vKW, vKF, vKN = 36, 37, 35
HOMES = [(A, 220), (A, 196), (V, 200), (V, 18)]
def plan_homes(c):
    KF = OPT.get('kf', 3)
    front = [('o', 0), ('o', 1), ('p', 0), ('p', 1), ('o', 2), ('o', 3), ('p', 2), ('p', 3)]
    moved = {4: [], 2: [('o', 2), ('o', 3)], 3: [('o', 3)]}[KF]
    front = [x for x in front if x not in moved]
    c.seq = front + [('p', i) for i in range(4, 11)] + moved + [('o', i) for i in range(4, 11)]
    c.NF = len(front); c.PL = c.NF + 6
    lastB = {i: max(u for u, (k, j) in enumerate(c.seq) if j == i) for i in range(11)}
    pool = [[A, 220, -9], [A, 196, -9], [V, 200, -9], [V, 18, -9]] + [[A, 16 * k, max(lastB[(16 * k) // 20], lastB[(16 * k + 15) // 20]) + 1] for k in range(5)]
    c.home = []; c.earliest = []
    for v in range(22):
        h = min(pool, key=lambda x: x[2])
        c.home.append((h[0], h[1])); c.earliest.append(h[2])
        h[2] = v + 1 + (1 if v in (c.PL - 1, 20) else 0)
def k2_flags(c):
    q = Prog()
    q.e(f"s_and_b32 s87, s{sSL}, 8\ns_lshl_b32 s86, s{sW}, 1\ns_add_u32 s87, s87, s86\ns_lshl_b32 s86, s{sMT}, 4\ns_add_u32 s87, s87, s86")
    q.e(f"s_lshl_b32 s87, s87, 7\ns_add_u32 s87, s87, {HF_OFF}\nv_mov_b32 v248, 0")
    c.ldx = f"buffer_load_dword v249, v248, {S(S_WS)}, s87 offen sc1"
    c.ldy = f"buffer_load_dword v250, v248, {S(S_WS)}, s87 offen offset:128 sc1"
    c.chkx = retry(c, c.ldx, tagcheck([249]))
    c.ldx1 = f"buffer_load_dword v250, v248, {S(S_WS)}, s87 offen offset:4 sc1"
    if c.typ == 'Y': c.chkx1 = retry(c, c.ldx1, tagcheck([250]))
    plan_homes(c)
    def aload(u):
        kind, i = c.seq[u]; R, b = c.home[u]; s_ = sAP if kind == 'p' else sAO
        return code(f"s_add_u32 s{sBD}, s{s_}, s{TAB[i]}\n" + "\n".join(f"buffer_load_dwordx4 {R(b+4*rt,4)}, v{vL16}, {S(S_WS)}, s{sBD} offen offset:{1024*rt} sc1" for rt in range(4)))
    c.aload = aload
    return q.items

def k2(p, c):
    ts = c.ts; o = c.opt
    AP, AO = 40, 120
    seq = c.seq; aload = c.aload; ldy = c.ldy
    isY = c.typ == 'Y'
    mark = lambda n: p.e(f'.set STEPMARK{c.typ}{n}, 0') if o.get('st0') is not None else None
    fl = code(f"buffer_store_dword v{vKN}, v{vKF}, {S(S_WS)}, s{sFL} offen sc1", 'flag')
    if not isY: p.e(f"v_mov_b32 v{vKN}, v{vPT}\nv_mov_b32 v{vKF}, v{vFZ}")
    q = Prog()
    srd(q, S_W1, P_D, 1280)
    srd(q, S_W3, P_OUT, 2048 * 2560)
    q.e(f"s_and_b32 s{sU0}, s{sSL}, 7\ns_lshr_b32 s{sU1}, s{sSL}, 3\ns_lshl_b32 s{sT1}, s{sMT}, 1\ns_add_u32 s{sU1}, s{sU1}, s{sT1}")
    q.e(f"s_mov_b32 s48, 3277\ns_lshl_b32 s49, s{sU1}, 6\ns_mul_i32 s50, s{sU0}, 160")
    q.e(f"s_mul_i32 s51, s49, 1280\ns_add_u32 s51, s51, s50\ns_lshl_b32 s59, s49, 4\ns_add_u32 s59, s59, {ST_OFF}\ns_lshl_b32 s61, s51, 1")
    q.e(f"s_lshl_b32 s{sT0}, s{sU1}, 3\ns_add_u32 s{sT0}, s{sT0}, s{sU0}\ns_mul_i32 s62, s{sT0}, 28672\ns_add_u32 s62, s62, {PX_OFF}")
    q.e(f"s_xor_b32 s{sT0}, s{sT0}, 8\ns_mul_i32 s63, s{sT0}, 28672\ns_add_u32 s63, s63, {PX_OFF}")
    q.e(f"v_lshlrev_b32 v17, 4, v0")
    q.e(f"v_and_b32 v4, 15, v1\nv_mul_u32_u24 v4, 336, v4\nv_lshrrev_b32 v5, 4, v1\nv_lshl_add_u32 v4, v5, 4, v4\ns_mul_i32 s44, s{sW}, 21504\nv_add_u32 v{vKW}, s44, v4")
    EL, EO = 6, 11
    EX, ED, ES = 216, 226, 236
    for u in range(5):
        q.e(f"v_add_u32 v4, {256*u}, v0\nv_mul_lo_u32 v5, v4, s48\nv_lshrrev_b32 v5, 16, v5\nv_lshlrev_b32 v4, 4, v4\nv_lshl_add_u32 v{EL+u}, v5, 4, v4")
        q.e(f"v_mul_u32_u24 v2, 320, v5\nv_sub_u32 v4, v4, v2\nv_lshrrev_b32 v4, 1, v4\nv_lshl_add_u32 v2, v2, 2, v4\nv_lshlrev_b32 v5, 4, v5")
        q.e(f"buffer_load_dwordx2 {V(EX+2*u,2)}, v2, {S(S_X)}, s51 offen\nbuffer_load_dwordx2 {V(ED+2*u,2)}, v4, {S(S_W1)}, s50 offen\nbuffer_load_dwordx2 {V(ES+2*u,2)}, v5, {S(S_WS)}, s59 offen sc1")
        q.e(f"v_lshlrev_b32 v{EO+u}, 1, v2")
    ksetup = q.items
    if not isY:
        p.extend(ksetup)
        p.extend(mk(c, 82))
        p.wait_vm('h'); p.e("s_barrier"); p.extend(fl)
        p.extend(merge(brest(c), []))
        p.e(c.ldx)
        p.extend(mk(c, 83))
        ts(p)
        p.extend(c.chkx)
        for u in range(3): p.extend(aload(u))
    elif not getattr(c, 'a2', False):
        p.extend(aload(2))
    ts(p)
    steps = []
    for u, (kind, i) in enumerate(seq):
        R, a = c.home[u]; acc = AP if kind == 'p' else AO
        mf = []
        for rt in range(4):
            for ct in range(5):
                d = acc + 4 * (5 * rt + ct)
                mf += code(f"v_mfma_f32_16x16x32_bf16 {V(d,4)}, {A(BH[5*i+ct],4)}, {R(a+4*rt,4)}, {'0' if i == 0 else V(d,4)}")
        steps.append(dict(pre=[], mf=mf, rd=[[] for _ in mf]))
    NF, PL = c.NF, c.PL
    CU = NF - (o.get('cuy', 2) if isY else o.get('cux', 3))
    C2 = o.get('c2', 2)
    if isY: steps[C2]['pre'] += c.chkx
    steps[CU]['pre'] += retry(c, ldy, tagcheck([250])) + [LazyStamp(ts)]
    steps[CU - 1]['rd'][o.get('lyg', 10)] += code(ldy)
    g = 0; AS_ = o.get('as', 4)
    for v in range(3, 22):
        e = max(c.earliest[v], v - o.get('ad', 6), 0)
        if isY and v >= 4: e = max(e, C2)
        if v >= NF: e = max(e, CU)
        g = max(g, 20 * e)
        its = aload(v)
        st_ = AS_ if g < 20 * (v - 2) else 2
        steps[g // 20]['rd'][g % 20] += [its[0]]
        for k in range(4): steps[g // 20]['rd'][g % 20] += [its[k + 1]]; g += st_
        assert g <= 20 * v, (v, g)
        if o.get('vlog'): print(c.typ, v, c.home[v][1], g, file=sys.stderr)
    def wr(acc, rt):
        return code("\n".join(f"ds_write_b128 v{vKW}, {V(acc+4*(5*rt+ct),4)} offset:{rt*16*336 + ct*64}" for ct in range(5)), 'pw')
    side = []
    if isY:
        side += c.k2side + ksetup + [Deadline(5)]
        steps[o.get('fu', 3)]['rd'][o.get('fg', 4)] += [Marker('vm', 'h')] + code("s_barrier") + fl
    M = f"s{sMASK}"
    q = Prog()
    PT = [r for u in range(5) for r in (EX + 2 * u, EX + 2 * u + 1, ED + 2 * u, ED + 2 * u + 1)]
    Xr = [2, 3, 4, 5]; Dr = [246, 247, 252, 253]; Yr = [254, 255, 16, 34]
    for u in range(5):
        q.e(f"v_lshlrev_b32 v{Xr[0]}, 16, v{EX+2*u}\nv_and_b32 v{Xr[1]}, {M}, v{EX+2*u}\nv_lshlrev_b32 v{Xr[2]}, 16, v{EX+2*u+1}\nv_and_b32 v{Xr[3]}, {M}, v{EX+2*u+1}")
        q.e(f"v_lshlrev_b32 v{Dr[0]}, 16, v{ED+2*u}\nv_and_b32 v{Dr[1]}, {M}, v{ED+2*u}\nv_lshlrev_b32 v{Dr[2]}, 16, v{ED+2*u+1}\nv_and_b32 v{Dr[3]}, {M}, v{ED+2*u+1}")
        q.e(f"v_and_b32 v{ES+2*u+1}, {M}, v{ES+2*u+1}\nv_mul_f32 v{ES+2*u+1}, v{ES+2*u+1}, v{ES+2*u}")
        for i in range(4): q.e(f"v_fma_f32 v{Yr[i]}, v{Xr[i]}, v{ES+2*u}, v{ES+2*u+1}")
        rnd = (f"v_cvt_pk_bf16_f32 v{Yr[0]}, v{Yr[0]}, v{Yr[1]}\nv_cvt_pk_bf16_f32 v{Yr[2]}, v{Yr[2]}, v{Yr[3]}\n"
               f"v_and_b32 v{Yr[1]}, {M}, v{Yr[0]}\nv_lshlrev_b32 v{Yr[0]}, 16, v{Yr[0]}\nv_and_b32 v{Yr[3]}, {M}, v{Yr[2]}\nv_lshlrev_b32 v{Yr[2]}, 16, v{Yr[2]}")
        q.e(rnd)
        for i in range(4): q.e(f"v_mul_f32 v{Yr[i]}, v{Yr[i]}, v{Dr[i]}")
        q.e(rnd)
        for i in range(4): q.e(f"v_add_f32 v{PT[4*u+i]}, v{Xr[i]}, v{Yr[i]}")
    pre = q.items
    def fuse(u, acc):
        a, b = steps[u], steps[u + 1]
        mf = []; rd = []
        for rt in range(4):
            mf += a['mf'][5 * rt:5 * rt + 5] + b['mf'][5 * rt:5 * rt + 5]
        rd = a['rd'] + b['rd']
        for rt in range(3):
            w = wr(acc, rt)
            for k in range(5): rd[10 * (rt + 1) + 3 + k] += [w[k]]
        a['mf'], a['rd'] = mf[:20], rd[:20]; b['mf'], b['rd'] = mf[20:], rd[20:]
    fuse(PL - 1, AP); fuse(20, AO)
    w = wr(AP, 3)
    for k in range(5): steps[PL + 1]['rd'][3 + k] += [w[k]]
    steps[PL + 1]['rd'][12] += [Marker('lgkm', 'pw')] + code("s_barrier")
    q = Prog()
    GR = AP + 48
    gi = lambda f: GR + 4 * (f // 3) + f % 3
    sent = [0]
    PXB = o.get('pxb', 1); NG, NV = (4, 10) if PXB else (7, 20)
    def send(upto):
        while sent[0] < NG and (3 * sent[0] + 2 < upto or upto == NV):
            g = sent[0]; sent[0] += 1
            q.e(f"v_mov_b32 v{GR+4*g+3}, s{sN}\nbuffer_store_dwordx4 {V(GR+4*g,4)}, v17, {S(S_WS)}, s63 offen sc1\ns_add_u32 s63, s63, 4096")
    def red(u):
        T = AP + 16 * (u % 3)
        for i in range(4): q.e(f"v_add_f32 v{T+i}, v{T+i}, v{T+4+i}\nv_add_f32 v{T+8+i}, v{T+8+i}, v{T+12+i}")
        if PXB:
            for i in range(4): q.e(f"v_add_f32 v{T+i}, v{T+i}, v{T+8+i}")
            for i in range(2): q.e(f"v_cvt_pk_bf16_f32 v{gi(2*u+i)}, v{T+2*i}, v{T+2*i+1}")
            send(2 * u + 2)
        else:
            for i in range(4): q.e(f"v_add_f32 v{gi(4*u+i)}, v{T+i}, v{T+8+i}")
            send(4 * u + 4)
    for u in range(5):
        T = AP + 16 * (u % 3)
        for w in range(4): q.e(f"ds_read_b128 {V(T+4*w,4)}, v{EL+u} offset:{w*21504}")
        if u >= 2: red(u - 2)
    red(3); red(4)
    RG = AP
    ldp = "\n".join(f"buffer_load_dwordx4 {V(RG+4*g,4)}, v17, {S(S_WS)}, s{70+g} offen sc1" for g in range(NG))
    if o.get('cp2', 1):
        L = f"{c.typ}_cp2"
        steps[max(CU, 5)]['rd'][19] += code(f"s_getpc_b64 s[90:91]\n{L}:\nv_lshlrev_b32 v4, 7, v0\nv_min_u32 v4, {c.typ}_end-{L}, v4\nglobal_load_dword v250, v4, s[90:91]")
    side += [Gate(max(CU + 1, 6))] + pre + [Deadline(PL - 1), Gate(PL + 2)] + q.items + [Deadline(PL + 4)] + code("\n".join(f"s_add_u32 s{70+g}, s62, {4096*g}" for g in range(NG))) + [Deadline(20)]
    side += [Gate(o.get('lpu', 20))] + code(ldp)
    steps[20]['rd'][0] += code("s_barrier")
    if o.get('st0') is not None:
        for u, st in enumerate(steps): st['pre'] = code(f'.set STEPMARK{c.typ}{84+u}, 0') + st['pre']
    resolve(steps)
    if o.get('dk2') is not None: steps[o['dk2']]['pre'] += code('s_sleep 36')
    weave(p, steps, side, base_rate=1)
    ts(p); mark(106)
    p.extend(wr(AO, 3))
    p.wait_lgkm('pw')
    p.e("s_barrier")
    mark(107)
    for u in range(5):
        for w in range(4): p.e(f"ds_read_b128 {V(AO+16*u+4*w,4)}, v{EL+u} offset:{w*21504}")
        if u == 2:
            p.extend(retry(c, ldp, tagcheck([RG + 4 * g + 3 for g in range(NG)])))
            if PXB:
                for d in range(10):
                    r = RG + 4 * (d // 3) + d % 3
                    p.e(f"v_lshlrev_b32 v{RG+16+d}, 16, v{r}\nv_and_b32 v{r}, {M}, v{r}")
                for d in range(10):
                    r = RG + 4 * (d // 3) + d % 3
                    p.e(f"v_add_f32 v{PT[2*d]}, v{PT[2*d]}, v{RG+16+d}\nv_add_f32 v{PT[2*d+1]}, v{PT[2*d+1]}, v{r}")
            else:
                for f in range(20): p.e(f"v_add_f32 v{PT[f]}, v{PT[f]}, v{RG + 4*(f//3) + f%3}")
    mark(108)
    for u in range(5):
        R = AO + 16 * u
        for i in range(4): p.e(f"v_add_f32 v{R+i}, v{R+i}, v{R+4+i}\nv_add_f32 v{R+8+i}, v{R+8+i}, v{R+12+i}")
        for i in range(4): p.e(f"v_add_f32 v{R+i}, v{R+i}, v{PT[4*u+i]}")
        for i in range(4): p.e(f"v_add_f32 v{R+i}, v{R+i}, v{R+8+i}")
        p.e(f"buffer_store_dwordx4 {V(R,4)}, v{EO+u}, {S(S_W3)}, s61 offen{NT('nto')}{' sc1' if OPT.get('osc', 1) else ''}{' sc0' if OPT.get('osc', 1) == 2 else ''}")
    mark(109)
    if o.get('st0') is not None: p.e("s_waitcnt vmcnt(0)"); mark(110); p.e("s_nop 15\ns_nop 15\ns_nop 15"); mark(111)
    ts(p)

HEADER = open('parallel_sum__ssm_conv_s5__glu_gated_swiglu__prompt.s.ref').read().split('; Override launch')[0]

def profile(txt, typ):
    out = []; k = 2; sites = []; nm = 0
    lo = OPT.get('prof0', 0)
    for l in txt.split('\n'):
        if 'mfma' in l: nm += 1
        if 's_memrealtime' in l and k > 2: k = 100
        hit = ('vmcnt' in l or 's_barrier' in l or 's_cbranch_vccnz' in l or '_slow' in l) and nm >= lo and k < 62
        if OPT['prof'] == 2: hit = ('buffer_' in l or 'global_' in l) and nm >= lo and k < 62
        if hit and '_slow' in l:
            out.append("  s_memtime s[0:1]"); out.append(l); pend = True; sites.append((k, nm, l.strip())); continue
        if OPT['prof'] == 1 and l.endswith('_ret:') and out[-2].startswith("  s_memtime s[0:1]"):
            out.append(l); out.append(f"  s_memtime s[2:3]\n  s_waitcnt lgkmcnt(0)\n  s_sub_u32 s2, s2, s0\n  s_or_b32 s2, s2, 1\n  v_writelane_b32 v251, s2, {k}"); k += 1; continue
        if hit:
            out.append(f"  s_memtime s[0:1]\n{l}\n  s_memtime s[2:3]\n  s_waitcnt lgkmcnt(0)\n  s_sub_u32 s2, s2, s0\n  s_or_b32 s2, s2, 1\n  v_writelane_b32 v251, s2, {k}")
            sites.append((k, nm, l.strip())); k += 1
        else: out.append(l)
    print(typ, "sites:", [(b, ('D' if ' lds' in c else 'S' if 'store' in c else 'L') if 'buffer' in c or 'global' in c else c.replace('s_waitcnt ', '').replace('s_cbranch_', '')) for a, b, c in sites], file=sys.stderr)
    return '\n'.join(out)

def build(opt):
    OPT.update(opt)
    ph = Prog(); setup(ph, opt)
    ph.e(f"s_bitcmp1_b32 s{sSL}, 0\ns_cbranch_scc0 K_X")
    body = ph.finalize() + "\n"
    sx = [it for it in ph.items if isinstance(it, I) and it.tag == 'cpf' and it.kind == 'vm']
    parts = {}
    for typ, fn in (('X', k1_X), ('Y', k1_Y)):
        c = Ctx(typ, opt)
        p = Prog()
        if typ == 'X': p.e("K_X:")
        p.add(Marker('assume_vm', sx))
        def save_id(p):
            if opt.get('ts'): p.e('v_mov_b32 v251, 0')
            p.e("s_memrealtime s[2:3]")
        def start(p, c=c):
            c.ts(p, True); c.ts(p)
            if opt.get('prof') or opt.get('st0') is not None: c.ts.on = False
        c.save_id = save_id; c.start = start
        fn(p, c)
        k2(p, c)
        if opt.get('prof') or opt.get('st0') is not None: c.ts.on = True; c.ts.n = 63
        if c.ts.on:
            p.wait_all(); c.ts(p, True); c.ts.dump(p)
        p.e(f"{typ}_end:\ns_endpgm")
        st = {}
        txt = p.finalize(st)
        if opt.get('prof'): txt = profile(txt, typ)
        if opt.get('st0') is not None:
            out = []
            for l in txt.split('\n'):
                if 'STEPMARK' in l:
                    k = int(l.split(',')[0].split(typ)[-1]) - opt['st0']
                    if 0 <= k <= 60:
                        a = 2 * (k & 1)
                        if k > 0: out.append(f"  v_writelane_b32 v251, s{2-a}, {k}")
                        if k < 60: out.append(f"  s_memtime s[{a}:{a+1}]")
                else: out.append(l)
            txt = '\n'.join(out)
        import re as _re
        slow = [q for q in c.slow if _re.search(r'(\w+)_slow:', q).group(1) + '_ret:' in txt]
        if opt.get('nodma'): txt = '\n'.join(l for l in txt.split('\n') if not (' lds' in l and 'buffer_load' in l))
        if opt.get('nomfma'): txt = '\n'.join(l for l in txt.split('\n') if not ('32x32x16' in l))
        if opt.get('nowait'): txt = '\n'.join(l for l in txt.split('\n') if not ('vmcnt' in l and 'vmcnt(0)' not in l))
        if opt.get('nolds'): txt = '\n'.join(l for l in txt.split('\n') if not ('ds_read' in l))
        parts[typ] = txt + "\n" + "\n".join(slow) + "\n"
        print(typ, st, file=sys.stderr)
    y0, y1 = parts['Y'].split("  .set SPLIT, 0\n")
    body += y0 + parts['X'] + y1
    body += "K_end:\n  s_endpgm\n"
    k = NAME + "_kernel"
    if opt.get('plain'): body = body.replace(' sc1', '')
    if opt.get('plainst'): body = '\n'.join(l.replace(' sc1', '') if 'buffer_store' in l else l for l in body.split('\n'))
    s = HEADER + "; @launch grid=(256,1,1) block=(256,1,1) lds=163840\n"
    s += f'.amdgcn_target "amdgcn-amd-amdhsa--gfx950"\n.text\n.globl {k}\n.p2align 8\n.type {k},@function\n{k}:\n{body}'
    s += '.section .rodata,"a"\n' + kd(k, 512, 102, 256)
    return s

if __name__ == '__main__':
    opt = {}
    for a in sys.argv[2:]:
        k, v = a.split('='); opt[k] = int(v)
    open(sys.argv[1], 'w').write(build(opt))
```

```python
import sys, struct
from asmgen import Prog, I, Marker
from sched import weave, Gate, Deadline, Group, autogroup
from common import kd

NAME = "parallel_sum__ssm_conv_s5__glu_gated_swiglu__prompt"
H_OFF = 0
W2S_OFF = 32 * 88 * 4096
ST_OFF = W2S_OFF + 8 * 88 * 5120
AGG_OFF = ST_OFF + 32768
CS_OFF = AGG_OFF + 8 * 32 * 1280
HF_OFF = CS_OFF + 32 * 12800
WF_OFF = HF_OFF + 256 * 128
PX_OFF = WF_OFF + 128 * 128
WS_USED = PX_OFF + 256 * 7 * 4096
TS_OFF = 24 << 20
LOG2E, NLOG2E, INV2PI, OOB = 0x3fb8aa3b, 0xbfb8aa3b, 0x3e22f983, 0x7f000000
def f2u(x): return struct.unpack('<I', struct.pack('<f', x))[0]

S_X, S_W1, S_W3, S_B, S_WS, S_J0, S_J1, S_DBG, S_AG = 4, 8, 12, 16, 20, 24, 28, 32, 36
sMT, sSL, sW, sI, sT0, sT1, sT2, sT3 = 40, 41, 42, 43, 44, 45, 46, 47
sXR = 48
sMASK, sFL, sLB, sD0, sD1, sH, sLBS, sBT = 52, 53, 54, 55, 56, 57, 58, 59
P_X, P_LRE, P_LIM, P_BRE, P_BIM, P_CRE, P_CIM, P_LDT, P_D, P_BX, P_W1, P_W3, P_W2, P_OUT, P_DBG, P_WS = [64 + 2 * i for i in range(16)]
sKX, sKB, sDB, sROT, sU0, sU1 = 96, 97, 98, 99, 100, 101
sSP = 89
sU2, sU3 = 82, 83
sN = 92

OPT = {}
def NT(k): return ' nt' if OPT.get(k) else ''
def S(d): return f"s[{d}:{d+3}]"
def V(a, n=1): return f"v[{a}:{a+n-1}]" if n > 1 else f"v{a}"
def A(a, n=1): return f"a[{a}:{a+n-1}]" if n > 1 else f"a{a}"
QP = "quad_perm:[1,0,3,2] row_mask:0xf bank_mask:0xf"
def items(f, *a):
    q = Prog(); f(q, *a); return q.items
def code(text, tag=None):
    q = Prog(); q.e(text, tag); return q.items

def srd(p, d, ptr, nrec, add=0):
    if add == 0: p.e(f"s_mov_b32 s{d}, s{ptr}\ns_mov_b32 s{d+1}, s{ptr+1}")
    elif add > 0: p.e(f"s_add_u32 s{d}, s{ptr}, {add}\ns_addc_u32 s{d+1}, s{ptr+1}, 0")
    else: p.e(f"s_sub_u32 s{d}, s{ptr}, {-add}\ns_subb_u32 s{d+1}, s{ptr+1}, 0")
    p.e(f"s_mov_b32 s{d+2}, {nrec}\ns_mov_b32 s{d+3}, 0x20000")

class Stamper:
    def __init__(self, on): self.on = on; self.n = 0
    def it(self, real=False):
        if not self.on: return []
        if OPT.get('rt') == 1: real = True
        if OPT.get('rt') == 2:
            n = self.n; self.n += 2
            return code(f"s_memrealtime s[0:1]\ns_memtime s[2:3]\ns_waitcnt lgkmcnt(0)\nv_writelane_b32 v251, s0, {n}\nv_writelane_b32 v251, s2, {n+1}")
        n = self.n; self.n += 1
        return code(f"{'s_memrealtime' if real else 's_memtime'} s[0:1]\ns_waitcnt lgkmcnt(0)\nv_writelane_b32 v251, s0, {n}")
    def __call__(self, p, real=False): p.extend(self.it(real))
    def dump(self, p):
        if not self.on: return
        p.wait_all()
        p.e(f"s_lshr_b32 s93, s{sMT}, 2\ns_lshr_b32 s3, s{sSL}, 3\ns_lshl_b32 s3, s3, 2\ns_add_u32 s93, s93, s3\ns_and_b32 s3, s{sMT}, 3\ns_lshl_b32 s3, s3, 3\ns_add_u32 s93, s93, s3\ns_and_b32 s3, s{sSL}, 7\ns_lshl_b32 s3, s3, 5\ns_add_u32 s93, s93, s3")
        if OPT.get('dbgout'):
            p.e(f"s_lshl_b32 s3, s93, 2\ns_add_u32 s3, s3, s{sW}\ns_cmp_eq_u32 s3, {4*OPT['dbgout']}\ns_cselect_b32 s3, 4, {OOB}")
            p.e(f"v_readlane_b32 s0, v251, 0\nv_subrev_u32 v251, s0, v251\nv_lshlrev_b32 v3, 2, v1\nv_add_u32 v3, s3, v3\nbuffer_store_dword v251, v3, {S(S_DBG)}, 0 offen")
            return
        srd(p, 4, P_WS, TS_OFF + (1 << 20))
        p.e(f"v_lshlrev_b32 v3, 2, v1\ns_lshl_b32 s3, s93, 2\ns_add_u32 s3, s3, s{sW}\ns_lshl_b32 s3, s3, 8\ns_add_u32 s3, s3, {TS_OFF}")
        p.e("buffer_store_dword v251, v3, s[4:7], s3 offen")

class LazyStamp:
    def __init__(self, ts): self.ts = ts
def resolve(steps):
    for st in steps:
        out = []
        for it in st['pre']:
            out += it.ts.it() if isinstance(it, LazyStamp) else [it]
        st['pre'] = out
vL = 1
vXD, vXC = 2, 4
vSR = 6
vD, vDS, vDC = 10, 12, 13
vBR, vT, vTW, vH = 14, 18, 22, 23
vONE, vEX = 24, 28
vTMP = 32
ACC1, ACC2, CSA, TMP = 40, 120, 184, 200
vFZ, vPA, vPV, vPT, vC1, vC2, vL16, vZ = 208, 209, 39, 211, 212, 213, 38, 210
RT = 216
C0 = 232
XF, BF, EXTW, CSF = 0, 160, 220, 240
t0, t1, t2, t3, t4, t5 = range(vTMP, vTMP + 6)

XS = 0
X_JOB, X_RING, X_NS, X_SLOT = 49152, 81920, 5, 16384
Y_TBL, Y_RING, Y_NS, Y_SLOT = 49152, 57344, 5, 20480
EXT_L = XS + 16384
AG_L = XS
HT2_L = 0

class Ctx:
    def __init__(self, typ, opt):
        self.typ = typ; self.opt = opt; self.slow = []; self.npoll = 0
        self.ts = Stamper(opt.get('ts'))

def bf16r(p, v): p.e(f"v_cvt_pk_bf16_f32 v{v}, v{v}, v{v}\nv_and_b32 v{v}, s{sMASK}, v{v}")

def retry(c, loads, check, probe=None):
    k = c.npoll; c.npoll += 1
    L = f"{c.typ}_poll{k}"
    q = Prog()
    q.e(f"{L}_slow:\ns_mov_b32 s{sSP}, 0x40000\n{L}_lp:\ns_sleep {OPT.get('sleep', 1)}\ns_sub_u32 s{sSP}, s{sSP}, 1\ns_cmp_eq_u32 s{sSP}, 0\ns_cbranch_scc1 {L}_ret")
    if probe and OPT.get('probe', 0):
        q.e(probe[0] + "\ns_waitcnt vmcnt(0)\n" + probe[1] + f"\ns_cbranch_vccnz {L}_lp")
    q.e(loads + "\ns_waitcnt vmcnt(0)\n" + check)
    q.e(f"s_cbranch_vccnz {L}_lp\ns_branch {L}_ret")
    c.slow.append(q.finalize())
    if OPT.get('nospin') and 'v211' not in check: return code(check + f"\n{L}_ret:")
    return code(check + f"\ns_cbranch_vccnz {L}_slow\n{L}_ret:")
def retry2(c, loads, regs, tmp, sp):
    k = c.npoll; c.npoll += 1
    L = f"{c.typ}_poll{k}"
    chk = f"v_xor_b32 v{tmp}, s{sN}, v{regs[0]}\n" + "".join(f"v_bitop3_b32 v{tmp}, v{tmp}, v{r}, s{sN} bitop3:0xf6\n" for r in regs[1:]) + f"v_cmp_ne_u32 s[{sp}:{sp+1}], 0, v{tmp}\ns_cmp_lg_u64 s[{sp}:{sp+1}], 0"
    q = Prog()
    q.e(f"{L}_slow:\ns_mov_b32 s{sSP}, 0x40000\n{L}_lp:\ns_sleep {OPT.get('sleep', 1)}")
    q.e(loads + "\ns_waitcnt vmcnt(0)\n" + chk)
    q.e(f"s_cbranch_scc0 {L}_ret\ns_sub_u32 s{sSP}, s{sSP}, 1\ns_cmp_lg_u32 s{sSP}, 0\ns_cbranch_scc1 {L}_lp\ns_branch {L}_ret")
    c.slow.append(q.finalize())
    if OPT.get('nospin'): return code(chk + f"\n{L}_ret:")
    return code(chk + f"\ns_cbranch_scc1 {L}_slow\n{L}_ret:")
def tagcheck(regs):
    regs = regs[::-1]
    t = f"v_xor_b32 v{vPV}, s{sN}, v{regs[0]}\n"
    for r in regs[1:]: t += f"v_bitop3_b32 v{vPV}, v{vPV}, v{r}, s{sN} bitop3:0xf6\n"
    return t + f"v_cmp_ne_u32 vcc, 0, v{vPV}"
NONCE_LD = lambda: f"buffer_load_dword v{vPT}, v{vZ}, {S(S_DBG)}, 0 offen sc1"
def nonce_get(c):
    return retry(c, NONCE_LD(), f"v_cmp_eq_u32 vcc, 0, v{vPT}") + code(f"v_readfirstlane_b32 s{sN}, v{vPT}")
def flag(soff):
    return code(f"buffer_store_dword v{vPT}, v{vFZ}, {S(S_WS)}, {soff} offen sc1", 'flag')

def nextkb(s, unit):
    return f"s_add_u32 s{s}, s{s}, {unit}\ns_cmp_eq_u32 s{s}, {10*unit}\ns_cselect_b32 s{s}, 0, s{s}"

def setup(p, opt):
    p.e("s_cmp_ge_u32 s2, 256\ns_cbranch_scc1 K_end")
    p.e("s_load_dwordx16 s[64:79], s[0:1], 0\ns_load_dwordx16 s[80:95], s[0:1], 64")
    p.e(f"v_and_b32 v{vL}, 63, v0\nv_lshrrev_b32 v{t0}, 6, v0\nv_lshlrev_b32 v{vL16}, 4, v{vL}")
    p.e(f"v_readfirstlane_b32 s{sW}, v{t0}")
    for i in range(opt.get('d0', 0)): p.e('s_sleep 36')
    for i in range(opt.get('pad', 0)): p.e(f"s_mov_b32 s{sT3}, 0x12345")
    p.e(f"s_and_b32 s{sMT}, s2, 3\ns_lshl_b32 s{sMT}, s{sMT}, 2\ns_bfe_u32 s{sT0}, s2, 0x20003\ns_add_u32 s{sMT}, s{sMT}, s{sT0}")
    p.e(f"s_and_b32 s{sSL}, s2, 4\ns_lshl_b32 s{sSL}, s{sSL}, 1\ns_lshr_b32 s{sT0}, s2, 5\ns_add_u32 s{sSL}, s{sSL}, s{sT0}\ns_lshr_b32 s{sI}, s{sSL}, 1")
    if opt.get('cpf', 1):
        p.e(f"s_getpc_b64 s[4:5]\nK_pc:\ns_mov_b32 s6, K_X-K_pc\ns_bitcmp1_b32 s{sSL}, 0\ns_cselect_b32 s6, K_Y-K_pc, s6\ns_and_b32 s7, s{sI}, 3\ns_lshl_b32 s7, s7, 2\ns_and_b32 s8, s{sMT}, 3\ns_add_u32 s7, s7, s8")
        p.e(f"s_lshl_b32 s7, s7, 11\ns_add_u32 s6, s6, s7\nv_lshrrev_b32 v{t5}, 4, v0\nv_lshlrev_b32 v{t5}, 7, v{t5}\nv_add_u32 v{t5}, s6, v{t5}\nv_min_u32 v{t5}, K_end-K_pc, v{t5}\nglobal_load_dword v250, v{t5}, s[4:5]", tag='cpf')
    p.e(f"s_mul_i32 s{sROT}, s{sMT}, {opt.get('rm', 3)}\ns_mul_i32 s{sT0}, s{sT0}, {opt.get('rs', 1)}\ns_add_u32 s{sROT}, s{sROT}, s{sT0}\ns_mul_i32 s{sT1}, s{sROT}, 205\ns_lshr_b32 s{sT1}, s{sT1}, 11\ns_mul_i32 s{sT1}, s{sT1}, 10\ns_sub_u32 s{sROT}, s{sROT}, s{sT1}")
    p.e(f"s_lshl_b32 s{sKX}, s{sROT}, 7\ns_mov_b32 s{sKB}, s{sROT}\ns_mov_b32 s{sMASK}, 0xffff0000")
    p.e(f"s_lshl_b32 s{sFL}, s{sMT}, 4\ns_add_u32 s{sFL}, s{sFL}, s{sSL}\ns_lshl_b32 s{sFL}, s{sFL}, 7\ns_add_u32 s{sFL}, s{sFL}, {HF_OFF}")
    p.e(f"s_lshl_b32 s{sT0}, s{sMT}, 7\ns_lshl_b32 s{sT1}, s{sW}, 5\ns_add_u32 s{sT1}, s{sT0}, s{sT1}\ns_mul_i32 s{sXR}, s{sT1}, 1280")
    for i in range(1, 4): p.e(f"s_add_u32 s{sXR+i}, s{sXR}, {(8*1280-1024)*i}")
    p.e(f"s_lshl_b32 s{sLB}, s{sW}, 12")
    p.e(f"s_lshl_b32 s{sT1}, s{sSL}, 3\ns_add_u32 s{sT0}, s{sT0}, s{sT1}\ns_lshl_b32 s{sT1}, s{sW}, 1\ns_add_u32 s{sT0}, s{sT0}, s{sT1}")
    p.e(f"s_mul_i32 s{sU0}, s{sT0}, 1280\ns_lshl_b32 s{sU1}, s{sT0}, 4\ns_add_u32 s{sU1}, s{sU1}, {ST_OFF}")
    p.e(f"v_lshrrev_b32 v{t0}, 3, v{vL}\nv_and_b32 v{t1}, 7, v{vL}")
    p.e(f"v_lshrrev_b32 v{t2}, 5, v{vL}\nv_mul_u32_u24 v{t2}, 1280, v{t2}\nv_and_b32 v{t3}, 31, v{vL}\nv_lshl_add_u32 v{t4}, v{t3}, 3, v{t2}")
    p.e(f"v_lshrrev_b32 v{t2}, 4, v{vL}\nv_xor_b32 v{t2}, v{t1}, v{t2}\nv_lshlrev_b32 v{t2}, 4, v{t2}\nv_mul_u32_u24 v{t3}, 1280, v{t0}")
    p.e(f"v_add_u32 v{vXD}, v{t2}, v{t3}\nv_xor_b32 v{vXD+1}, 64, v{vXD}")
    p.e(f"v_mov_b32 v{vZ}, 0\nv_mov_b32 v{t2}, {OOB}\nv_cmp_eq_u32 vcc, 0, v0\nv_cndmask_b32 v{vFZ}, v{t2}, v0, vcc")
    p.e(f"s_cmp_eq_u32 s2, 0\ns_cselect_b32 s{sT0}, 0, {OOB}\nv_or_b32 v{vPA}, s{sT0}, v{vFZ}")

def first_loads(p, b0):
    x0 = x_dma(0)
    k1 = [i for i, it in enumerate(x0) if isinstance(it, I) and it.kind == 'vm']
    k2 = [i for i, it in enumerate(b0) if isinstance(it, I) and it.kind == 'vm']
    m0x = [it for it in x0 if isinstance(it, I) and ('x', 'm0') in it.defs][0]
    m0b = [it for it in b0 if isinstance(it, I) and ('x', 'm0') in it.defs][0]
    p.extend(x0[:k1[0] + 1]); p.extend(b0[:k2[1] + 1])
    p.add(I(m0x.text)); p.extend(x0[k1[0] + 1:])
    p.add(I(m0b.text)); p.extend(b0[k2[1] + 1:])
    srd(p, S_DBG, P_DBG, 256)
    p.e(f"s_or_b32 s{sT3}, s2, 1\nv_mov_b32 v{vPT}, s{sT3}\nbuffer_store_dword v{vPT}, v{vPA}, {S(S_DBG)}, 0 offen sc1")
    if OPT.get('stouch', 21):
        G = OPT.get('stouch', 21)
        n = (WS_USED >> G) // 64 + 1
        p.e(f"s_and_b32 s28, s{sSL}, 7\ns_lshl_b32 s28, s28, 1\ns_and_b32 s29, s{sMT}, 1\ns_add_u32 s28, s28, s29\ns_lshl_b32 s28, s28, 2\ns_add_u32 s28, s28, s{sW}\ns_lshl_b32 s28, s28, {G}")
        for i in range(n):
            p.e(f"s_min_u32 s29, s28, {WS_USED - 4 & ~3}\ns_load_dword s30, s[{P_WS}:{P_WS+1}], s29\ns_min_u32 s29, s28, {2048*2560 - 4}\ns_load_dword s31, s[{P_OUT}:{P_OUT+1}], s29\ns_add_u32 s28, s28, {64 << G}")

def early_loads(p, typ):
    for i in range(5):
        p.e(f"buffer_load_dwordx2 {V(RT+2*i,2)}, v{t4}, {S(S_X)}, s{sU0} offen offset:{256*i}", tag='sx')
def code_prefetch(p, typ):
    if OPT.get('cpf', 1) == 2:
        p.e(f"s_getpc_b64 s[24:25]\n{typ}_pc:\nv_lshlrev_b32 v{t5}, 7, v0\nv_min_u32 v{t5}, {typ}_end-{typ}_pc, v{t5}\nglobal_load_dword v250, v{t5}, s[24:25]")

CPN = [0]
def code_ahead(typ, dst, tmp, sp, skip=2048, lines=32):
    L = f"{typ}_ca{CPN[0]}"; CPN[0] += 1
    return [Group(code(f"s_getpc_b64 s[{sp}:{sp+1}]\n{L}:\nv_lshrrev_b32 v{tmp}, {6 - (lines.bit_length() - 1)}, v0\nv_lshlrev_b32 v{tmp}, 7, v{tmp}\nv_add_u32 v{tmp}, {skip}, v{tmp}\n"
                f"v_min_u32 v{tmp}, {typ}_end-{L}, v{tmp}\nglobal_load_dword v{dst}, v{tmp}, s[{sp}:{sp+1}]"))]

def x_dma(j):
    q = Prog()
    q.wait_lgkm(('xr', j - 3))
    q.e(f"v_add_u32 v{vXC}, s{sKX}, v{vXD}\nv_add_u32 v{vXC+1}, s{sKX}, v{vXD+1}\ns_add_u32 m0, s{sLB}, {XS + (j % 3) * 16384}")
    for i in range(4):
        q.e(f"buffer_load_dwordx4 v{vXC+(i&1)}, {S(S_X)}, s{sXR+i} offen offset:{1024*i}{NT('ntx')} lds", tag=('x', j))
    q.e(nextkb(sKX, 128))
    return q.items
def x_read(j):
    q = Prog(); q.wait_vm(('x', j))
    for s in range(4): q.e(f"ds_read_b128 {A(XF+16*j+4*s,4)}, v{vSR+s} offset:{(j % 3) * 16384}", ('xr', j))
    return q.items

def ffn_dma(base, j):
    q = Prog()
    q.e(f"s_mul_i32 s{sD0}, s{sKB}, {64*3072}\ns_add_u32 s{sD0}, s{sD0}, s{sDB}\ns_add_u32 s{sD1}, s{sD0}, {8*3072-2048}\ns_add_u32 m0, s{sLB}, {base}")
    q.e(f"buffer_load_dwordx4 v{vD}, {S(S_W1)}, s{sD0} offen{NT('ntw')} lds", tag=('slot', j))
    q.e(f"buffer_load_dwordx4 v{vD+1}, {S(S_W3)}, s{sD0} offen offset:1024{NT('ntw')} lds", tag=('slot', j))
    q.e(f"buffer_load_dwordx4 v{vD}, {S(S_W1)}, s{sD1} offen offset:2048{NT('ntw')} lds", tag=('slot', j))
    q.e(f"buffer_load_dwordx4 v{vD+1}, {S(S_W3)}, s{sD1} offen offset:3072{NT('ntw')} lds", tag=('slot', j))
    q.e(nextkb(sKB, 1))
    return q.items
def ssm_dma(base, j):
    q = Prog()
    q.e(f"s_lshl_b32 s{sD0}, s{sKB}, 7\nv_add_u32 v{vDC}, s{sD0}, v{vDS}\ns_add_u32 m0, s{sLBS}, {base}")
    for t in range(4):
        q.e(f"buffer_load_dwordx4 v{vDC}, {S(S_B)}, s{sBT+t} offen offset:{1024*t}{NT('ntw')} lds", tag=('slot', j))
    q.e(f"s_add_u32 m0, s{sLBS}, {base + 4096}")
    q.e(f"buffer_load_dwordx4 v{vDC}, {S(S_B)}, s{sBT+4} offen{NT('ntw')} lds", tag=('slot', j))
    q.e(nextkb(sKB, 1))
    return q.items

def ffn_dma_addr(p):
    p.e(f"v_bfe_u32 v{t2}, v{vL}, 4, 1\nv_lshlrev_b32 v{t2}, 1, v{t2}\nv_xor_b32 v{t2}, v{t1}, v{t2}\nv_lshlrev_b32 v{t2}, 4, v{t2}")
    p.e(f"v_mul_u32_u24 v{t3}, 3072, v{t0}\nv_add_u32 v{vD}, v{t2}, v{t3}\nv_xor_b32 v{vD+1}, 64, v{vD}")
def ffn_srd(p):
    srd(p, S_W1, P_W1, 640 * 3072)
    srd(p, S_W3, P_W3, 640 * 3072 + 1024, -1024)

def common_addr(p):
    p.e(f"v_bfe_u32 v{t2}, v{vL}, 2, 1\nv_lshlrev_b32 v{t2}, 4, v{t2}\nv_bfe_u32 v{t3}, v{vL}, 3, 2\nv_lshl_add_u32 v{t2}, v{t3}, 2, v{t2}")
    p.e(f"v_and_b32 v{t3}, 3, v{vL}\nv_add_u32 v{t2}, v{t2}, v{t3}\nv_lshlrev_b32 v{vC1}, 4, v{t2}")
    p.e(f"v_bfe_u32 v{t3}, v{t2}, 1, 3\nv_lshrrev_b32 v{vSR}, 5, v{vL}\nv_xor_b32 v{t3}, v{t3}, v{vSR}\nv_lshlrev_b32 v{t3}, 4, v{t3}")
    p.e(f"v_lshl_add_u32 v{t3}, v{t2}, 7, v{t3}\nv_add_u32 v{vSR}, s{sLB}, v{t3}")
    for s in range(1, 4): p.e(f"v_xor_b32 v{vSR+s}, {32*s}, v{vSR}")
    p.e(f"v_bfe_u32 v{t2}, v{vL}, 2, 1\nv_lshlrev_b32 v{t2}, 10, v{t2}\nv_bfe_u32 v{t3}, v{vL}, 3, 3\nv_lshl_add_u32 v{t2}, v{t3}, 6, v{t2}")
    p.e(f"v_and_b32 v{t3}, 3, v{vL}\nv_lshl_add_u32 v{vH}, v{t3}, 4, v{t2}")
    for i in range(4): p.e(f"v_mov_b32 v{vONE+i}, 0x3f803f80")
    srd(p, S_WS, P_WS, WS_USED)
    p.e(f"s_lshl_b32 s{sT0}, s{sMT}, 1\ns_lshr_b32 s{sT1}, s{sW}, 1\ns_add_u32 s{sT0}, s{sT0}, s{sT1}\ns_mul_i32 s{sT0}, s{sT0}, 88")
    p.e(f"s_mul_i32 s{sT1}, s{sI}, 11\ns_add_u32 s{sT0}, s{sT0}, s{sT1}\ns_lshl_b32 s{sH}, s{sT0}, 12")
    p.e(f"s_and_b32 s{sT1}, s{sW}, 1\ns_lshl_b32 s{sT1}, s{sT1}, 11\ns_add_u32 s{sH}, s{sH}, s{sT1}")

def tr_addrs(p, base):
    p.e(f"v_bfe_u32 v{t0}, v{vL}, 4, 1\nv_lshrrev_b32 v{t1}, 5, v{vL}\nv_lshlrev_b32 v{t1}, 11, v{t1}\nv_lshl_add_u32 v{t1}, v{t0}, 10, v{t1}")
    p.e(f"v_bfe_u32 v{t2}, v{vL}, 2, 2\nv_lshl_add_u32 v{t1}, v{t2}, 7, v{t1}\nv_and_b32 v{t3}, 3, v{vL}\nv_lshl_add_u32 v{t1}, v{t3}, 3, v{t1}")
    p.e(f"v_bfe_u32 v{t2}, v{vL}, 3, 1\nv_lshl_add_u32 v{t2}, v{t0}, 1, v{t2}\nv_lshl_add_u32 v{t1}, v{t2}, 5, v{t1}")
    p.e(f"v_add_u32 v{vT}, {base}, v{t1}")
    for tau in range(1, 4): p.e(f"v_xor_b32 v{vT+tau}, {32*tau}, v{vT}")

def touch():
    q = Prog()
    q.e(f"v_lshlrev_b32 v{vPA}, 19, v{vL}\nv_min_u32 v{vPA}, {WS_USED - 4}, v{vPA}\nbuffer_load_dword v250, v{vPA}, {S(S_WS)}, 0 offen")
    q.e(f"v_min_u32 v{vPA}, {2048*2560 - 4}, v{vPA}\nglobal_load_dword v250, v{vPA}, s[{P_OUT}:{P_OUT+1}]")
    return q.items

def vtouch(p):
    if not OPT.get('vt'): return
    G = OPT['vt']
    p.e(f"v_and_b32 v{vPA}, 15, v{vL}\nv_lshlrev_b32 v{vPA}, {G}, v{vPA}\nv_add_u32 v{vPA}, {W2S_OFF}, v{vPA}\nv_min_u32 v{vPA}, {WS_USED - 4}, v{vPA}")
    p.e(f"v_cmp_gt_u32 vcc, 32, v{vL}\nv_mov_b32 v{vTW}, s{sH}\nv_cndmask_b32 v{vPA}, v{vTW}, v{vPA}, vcc\nbuffer_load_dword v249, v{vPA}, {S(S_WS)}, 0 offen")

def stats_job(p):
    R = RT; aQ, aS = TMP, TMP + 1
    p.e(f"v_mov_b32 v{aS}, 0\nv_mov_b32 v{aQ}, 0")
    for d in range(10):
        p.e(f"v_dot2c_f32_bf16 v{aS}, v{vONE}, v{R+d}\nv_dot2c_f32_bf16 v{aQ}, v{R+d}, v{R+d}")
    p.e("s_nop 2")
    for perm in ("quad_perm:[1,0,3,2] row_mask:0xf", "quad_perm:[2,3,0,1] row_mask:0xf", "row_half_mirror row_mask:0xf", "row_mirror row_mask:0xf", "row_bcast:15 row_mask:0xa"):
        for r in (aS, aQ): p.e(f"v_add_f32_dpp v{r}, v{r}, v{r} {perm} bank_mask:0xf")
    inv = f2u(1.0 / 640)
    p.e(f"v_mul_f32 v{aS}, {inv}, v{aS}\nv_mul_f32 v{aQ}, {inv}, v{aQ}\nv_fma_f32 v{aQ}, -v{aS}, v{aS}, v{aQ}\nv_max_f32 v{aQ}, 0, v{aQ}")
    p.e(f"v_sub_f32 v{aS}, 0, v{aS}\nv_cvt_pk_bf16_f32 v{aS}, v{aS}, v{aS}")
    bf16r(p, aQ)
    p.e(f"v_add_f32 v{aQ}, {f2u(1e-5)}, v{aQ}")
    bf16r(p, aQ)
    p.e(f"v_sqrt_f32 v{aQ}, v{aQ}")
    bf16r(p, aQ)
    p.e(f"v_rcp_f32 v{aQ}, v{aQ}")
    p.e(f"v_and_b32 v{R}, 31, v{vL}\nv_cmp_eq_u32 vcc, 16, v{R}\nv_lshrrev_b32 v{R}, 1, v{vL}\nv_and_b32 v{R}, 16, v{R}\nv_mov_b32 v{R+1}, {OOB}\nv_cndmask_b32 v{R}, v{R+1}, v{R}, vcc")
def stats_store():
    return code(f"v_mov_b32 v{TMP+2}, s{sN}\nv_mov_b32 v{TMP+3}, s{sN}\nbuffer_store_dwordx4 {V(TMP,4)}, v{RT}, {S(S_WS)}, s{sU1} offen sc1", 'pub')

def cs_store_addr(q, gidexpr):
    q.e(gidexpr)
    q.e(f"s_mul_i32 s{sU3}, s{sT0}, 12800\ns_add_u32 s{sU3}, s{sU3}, {CS_OFF}\ns_mul_i32 s{sT0}, s{sROT}, 1280\ns_add_u32 s{sU2}, s{sU3}, s{sT0}")
    q.e(f"s_lshl_b32 s{sT0}, s{sW}, 8\ns_add_u32 s{sU2}, s{sU2}, s{sT0}\ns_add_u32 s{sU3}, s{sU3}, s{sT0}")
    q.e(f"s_cmp_lt_u32 s{sMT}, 10\ns_cselect_b32 s{sT0}, 32, 0\nv_cmp_gt_u32 vcc, s{sT0}, v{vL}\nv_lshlrev_b32 v{t4}, 3, v{vL}\nv_mov_b32 v{t5}, {OOB}\nv_cndmask_b32 v{t4}, v{t5}, v{t4}, vcc")

def cs_produce_ffn(acc, gidexpr):
    q = Prog()
    q.e(f"s_lshl_b32 s{sT0}, s{sW}, 5\nv_xor_b32 v{vTW}, s{sT0}, v{vT}")
    for s in range(4):
        for t in range(2):
            q.e(f"ds_read_b64_tr_b16 {A(CSF+4*s+2*t,2)}, v{vTW} offset:{s*4096 + t*512}")
    cs_store_addr(q, gidexpr)
    for s in range(4):
        q.e(f"v_mfma_f32_32x32x16_bf16 {V(acc,16)}, {V(vONE,4)}, {A(CSF+4*s,4)}, {'0' if s == 0 else V(acc,16)}")
    st = code(f"v_mov_b32 v{acc+1}, s{sN}\nbuffer_store_dwordx2 {V(acc,2)}, v{t4}, {S(S_WS)}, s{sU2} offen sc1", 'pub')
    return q.items, st

def cs_consume(c, ntile, R0, d5=1024):
    q = Prog()
    q.e(f"v_lshrrev_b32 v{vPA}, 5, v{vL}\nv_mul_u32_u24 v{vPA}, 6400, v{vPA}\nv_and_b32 v{t5}, 31, v{vL}\nv_lshl_add_u32 v{vPA}, v{t5}, 3, v{vPA}")
    q.e(f"s_add_u32 s{sU2}, s{sU3}, 3840")
    rounds = [(R0, 0)]
    ld = ""
    for i in range(5): ld += f"buffer_load_dwordx2 {V(R0+2*i,2)}, v{vPA}, {S(S_WS)}, s{sU3 if i < 3 else sU2} offen offset:{1280*(i%3)} sc1\n"
    if ntile == 5:
        q.e(f"s_lshl_b32 s86, s{sW}, 8\ns_sub_u32 s86, {d5}, s86\nv_add_u32 v{vTW}, s86, v{vPA}")
        for i in range(5): ld += f"buffer_load_dwordx2 {V(R0+10+2*i,2)}, v{vTW}, {S(S_WS)}, s{sU3 if i < 3 else sU2} offen offset:{1280*(i%3)} sc1\n"
        rounds.append((R0 + 10, 1))
    a = (q.items, code(ld))
    q = Prog()
    q.extend(retry(c, ld, tagcheck([R0 + 1 + 2 * i for i in range(5 * len(rounds))])))
    q.e(f"v_cmp_gt_u32 vcc, 32, v{vL}")
    for (R, which) in rounds:
        q.e(f"v_add_f32 v{R}, v{R}, v{R+2}\nv_add_f32 v{R+4}, v{R+4}, v{R+6}\nv_add_f32 v{R}, v{R}, v{R+8}\nv_add_f32 v{R}, v{R}, v{R+4}")
        q.e(f"v_mov_b32 v{R+1}, v{R}\nv_mov_b32 v{R+6}, 0\nv_mov_b32 v{R+7}, 0\nv_permlane32_swap_b32 v{R}, v{R+1}\nv_add_f32 v{R}, v{R}, v{R+1}\nv_cndmask_b32 v{R}, 0, v{R}, vcc")
        q.e(f"v_cvt_pk_bf16_f32 v{R+1}, v{R}, v{R}\nv_and_b32 v{R+1}, s{sMASK}, v{R+1}\nv_sub_f32 v{R}, v{R}, v{R+1}")
        q.e(f"v_cvt_pk_bf16_f32 v{R+4}, v{R+1}, v{R}\nv_and_b32 v{R+2}, s{sMASK}, v{R+4}\nv_sub_f32 v{R}, v{R}, v{R+2}")
        q.e(f"v_cvt_pk_bf16_f32 v{R+5}, v{R}, 0")
        if which == 0:
            q.e(f"s_lshr_b32 s86, s{sLB}, 2\nv_add_u32 v{t5}, s86, v{vL16}")
            q.e(f"ds_write_b128 v{t5}, {V(R+4,4)} offset:{EXT_L}", tag='ext')
        else:
            q.e(f"ds_write_b128 v{vL16}, {V(R+4,4)} offset:{EXT_L + 4096}", tag='ext')
    return a, q.items
def ext_read(ntile):
    return code("\n".join(f"ds_read_b128 {A(EXTW+4*t,4)}, v{vL16} offset:{EXT_L + 1024*t}" for t in range(ntile)))

def stats_consume(c):
    q = Prog()
    q.e(f"s_lshl_b32 s87, s{sMT}, 11\ns_lshl_b32 s86, s{sW}, 9\ns_add_u32 s87, s87, s86\ns_add_u32 s{sU0}, s87, {ST_OFF}")
    ld = f"buffer_load_dwordx4 {V(vEX,4)}, v{vC1}, {S(S_WS)}, s{sU0} offen sc1"
    q.e(ld)
    a = q.items
    q = Prog()
    q.extend(retry(c, ld, tagcheck([vEX + 2, vEX + 3])))
    if c.typ == 'Y':
        q.e(f"s_lshl_b32 s{sT0}, s{sW}, 7\ns_add_u32 s{sT0}, s{sT0}, 159744")
        q.e(f"v_lshrrev_b32 v{t3}, 2, v{vC1}\nv_add_u32 v{t3}, s{sT0}, v{t3}\nds_write_b32 v{t3}, v{vEX}")
        q.e(f"v_lshrrev_b32 v{t2}, 5, v{vL}\nv_lshlrev_b32 v{t2}, 6, v{t2}\nv_add_u32 v{t2}, s{sT0}, v{t2}")
        for i in range(4): q.e(f"ds_read_b128 {V(RT+4*i,4)}, v{t2} offset:{16*i}")
    q.e(f"v_mul_f32 v{vC1}, {NLOG2E}, v{vEX}\nv_rcp_f32 v{vC2}, v{vEX}\nv_mov_b32 v{vEX}, v{vEX+1}\nv_mov_b32 v{vEX+2}, v{vEX+1}\nv_mov_b32 v{vEX+3}, v{vEX+1}")
    q.e(f"v_mul_f32 v{vC2}, v{vC2}, v{vC2}")
    return a, q.items

def ffn_epi(acc, pos, imm):
    p = Prog(); tmp = TMP
    for r in range(8): p.e(f"v_mul_f32 v{tmp+r}, v{vC1}, v{acc+r}")
    for r in range(8): p.e(f"v_exp_f32 v{tmp+r}, v{tmp+r}\nv_mul_f32 v{acc+r}, v{acc+r}, v{acc+8+r}")
    for r in range(8): p.e(f"v_fma_f32 v{tmp+r}, v{tmp+r}, v{vC2}, v{vC2}")
    for r in range(8): p.e(f"v_rcp_f32 v{tmp+r}, v{tmp+r}")
    p.e(f"s_add_u32 s{sT2}, s{sH}, {pos*4096}")
    for r in range(8): p.e(f"v_mul_f32 v{acc+r}, v{acc+r}, v{tmp+r}")
    for r in range(4): p.e(f"v_cvt_pk_bf16_f32 v{acc+8+r}, v{acc+2*r}, v{acc+2*r+1}")
    p.e(f"buffer_store_dwordx4 {V(acc+8,4)}, v{vH}, {S(S_WS)}, s{sT2} offen offset:{imm} sc1", tag='h')
    if OPT.get('dual'): p.e(f"buffer_store_dwordx4 {V(acc+8,4)}, v{vH}, {S(S_WS)}, s{sT2} offen offset:{imm}", tag='h')
    return p.items

class Ring:
    def __init__(self, reg, n, cur): self.reg = reg; self.n = n; self.cur = cur
    def off(self, base, span, out):
        if base < self.cur or base + span - self.cur > 65536:
            out += code("\n".join(f"v_add_u32 v{self.reg+i}, {(base - self.cur) & 0xffffffff}, v{self.reg+i}" for i in range(self.n)))
            self.cur = base
        return base - self.cur

def build_steps(c, kinds, slot_base, dma, NS, rT, rB, pre_extra, late):
    steps = []
    TMB = OPT.get('tmb', 3); TM0 = 80 - 4 * TMB
    T2 = c.t2; NST = TM0 + TMB * len(T2); c.NST = NST
    reads = []
    for n in range(NST):
        j, s = divmod(min(n, 79), 4)
        buf = BF + (n % 3) * 20 if (kinds[j] == 'S' or 4 in T2) else (160, 180, 196)[n % 3]
        base = slot_base(j)
        rd = []
        if kinds[j] == 'F':
            acc = ACC1 if (j < 10) else ACC2
            mf = []
            ents = [(tau, j, s) for tau in (range(4) if j < 10 else T2)]
            if n >= TM0: ents = [(T2[(n - TM0) // TMB], 20 - TMB + (n - TM0) % TMB, e) for e in range(4)]
            for e, (tau, jj, ss) in enumerate(ents):
                o = []
                if tau < 4:
                    off = rT.off(slot_base(jj), 16384, o)
                    o += code("\n".join(f"ds_read_b64_tr_b16 {A(buf+4*e+2*t,2)}, v{vT+tau} offset:{off + ss*4096 + t*512}" for t in range(2)), ('rd', n))
                else:
                    o += code("\n".join(f"ds_read_b64_tr_b16 {A(buf+4*e+2*t,2)}, v{vBR+t} offset:{(jj % 5)*4096 + (ss>>1)*2048 + (ss&1)*512}" for t in range(2)), ('rd', n))
                rd.append(o)
                cc = "0" if n % 40 == 0 and n < 80 else V(acc + 16 * tau, 16)
                mf += code(f"v_mfma_f32_32x32x16_bf16 {V(acc+16*tau,16)}, {A(buf+4*e,4)}, {A(XF+4*((4*jj+ss)%40),4)}, {cc}")
        else:
            mf = []
            for t in range(5):
                o = []
                off = rB.off(base, 20480, o)
                o += code(f"ds_read_b128 {A(buf+4*t,4)}, v{vBR+s} offset:{off + 1024*t}", ('rd', n))
                rd.append(o)
                cc = "0" if n == 0 else V(ACC1 + 16 * t, 16)
                mf += code(f"v_mfma_f32_32x32x16_bf16 {V(ACC1+16*t,16)}, {A(XF+4*n,4)}, {A(buf+4*t,4)}, {cc}")
        reads.append(rd)
        steps.append(dict(pre=[], mf=mf, rd=[[] for _ in mf]))
    for n in range(NST):
        st = steps[n]; j, s = divmod(n, 4)
        if c.opt.get('st0') is not None and n < 80: st['pre'] += code(f'.set STEPMARK{c.typ}{n}, 0')
        if c.opt.get('st0') is not None and n == NST - 1:
            for k in range(NST, 80): st['rd'][-1] += code(f'.set STEPMARK{c.typ}{k}, 0')
        if c.opt.get('ts') == 2 and s == 0: st['pre'] += [LazyStamp(c.ts)]
        if OPT.get('dstep') == n: st['pre'] += code('s_sleep 36')
        st['pre'] += [Marker('lgkm', ('rd', n))]
        syncs = [j + 1] if (s == 2 and j + 1 <= 20 - TMB) else []
        if n == TM0 - 1: syncs = list(range(21 - TMB, 20))
        if syncs:
            sy = [x for k in syncs for x in pre_extra.get(('sync', k), []) + [Marker('vm', ('slot', k))]] + [Marker('lgkm', ['ext', 'agw'])] + ([] if OPT.get('nobar') else code("s_barrier")) + [x for k in syncs for x in pre_extra.get(('post', k), [])]
            st['rd'][0] += sy
        if n + 2 < NST:
            src = reads[n + 2]; g = len(st['mf'])
            st['rd'][min(len(src), g) - 1] += [Marker('lgkm', ('rd', n + 1))]
            for i, o in enumerate(src): st['rd'][min(i, g - 1)] += o
        if s == 1 and j + 1 < 10:
            st['rd'][0] += x_read(j + 1)
    for k, tau in enumerate(T2):
        st = steps[TM0 + TMB * k + TMB - 1]
        st['mf'] += code(f"v_mfma_f32_32x32x16_bf16 {V(ACC2+16*tau,16)}, {A(EXTW+4*tau,4)}, {V(vEX,4)}, {V(ACC2+16*tau,16)}"); st['rd'] += [[]]
    c.TM0, c.TMB = TM0, TMB
    va = VmAlloc(steps); c.va = va
    LR, LX = OPT.get('leadr', 7), OPT.get('leadx', 5)
    E1 = OPT.get('e1', 1)
    va.place(0, x_dma(2), stride=E1); va.place(0, dma(2), stride=E1)
    for its in late.get(0, []): va.place(0, its, stride=E1)
    va.place(1, x_dma(3), by=9 - LX); va.place(0, dma(3), by=10 - LR)
    va.place(3, x_dma(4), by=13 - LX); va.place(3, dma(4), by=14 - LR)
    LD = OPT.get('lead', NS - 1)
    nxt = NS
    for j in range(1, 20):
        if j + 4 < 10 and LD < NS - 1: va.place(4 * j + 3, x_dma(j + 4), by=4 * (j + 3) + 1 - LX)
        while nxt < 20 and nxt <= j - 1 + NS and (nxt < 10 or nxt <= j + LD or nxt > 20 - TMB - 2):
            va.place(4 * j + 2, dma(nxt), by=4 * (nxt - 1) + 2 - LR); nxt += 1
        if j + 4 < 10 and LD == NS - 1: va.place(4 * j + 3, x_dma(j + 4), by=4 * (j + 3) + 1 - LX)
        for its in late.get(j, []): va.place(4 * j + 3, its)
    c.joblast = max([e[3][0] for e in va.log if e[1] is None] + [0])
    if OPT.get('vlog'): print(va.log, file=sys.stderr)
    return steps, reads[0], reads[1]

class VmAlloc:
    def __init__(self, steps):
        self.steps = steps; self.used = set(); self.dma_next = 0; self.log = []; self.b_next = 0; self.iv = []; self.lused = set(); self.quiet = 0
        self.gaps = [(n, g) for n, st in enumerate(steps) for g in range(len(st['mf']))]
        self.first = {}
        for i, (n, g) in enumerate(self.gaps): self.first.setdefault(n, i)
    def light(self, n, its):
        i = self.first[n]
        for it in its:
            while i in self.used or i in self.lused: i += 1
            a, b = self.gaps[i]
            self.steps[a]['rd'][b] += it.its if isinstance(it, Group) else [it]; self.lused.add(i)
        return self.gaps[i]
    def place(self, n, its, dma=True, stride=None, by=None):
        stride = stride or OPT.get('vstride', 2)
        groups, cur = [], []
        for it in its:
            cur.append(it)
            if isinstance(it, I) and it.kind == 'vm': groups.append(cur); cur = []
        if cur: groups[-1] += cur
        i0 = self.first[n]
        if dma == 'b': i0 = max(i0, self.b_next)
        elif dma is True: i0 = max(i0, self.dma_next)
        inside = (lambda i: any(a < i < b for a, b in self.iv)) if dma == 'l' else (lambda i: False)
        if dma == 'l': i0 = max(i0, self.b_next)
        for st_ in range(stride, 0, -1):
            i = i0; pos = []; used = set(self.used)
            for grp in groups:
                while inside(i) or i in self.lused or any((i + d) in used for d in range(-st_ + 1, st_)): i += 1
                pos.append(i); used.add(i)
            if by is None or i < self.first[max(by, 0)] or st_ == 1: break
        if i >= len(self.gaps) or (dma in ('b', 'l') and i >= self.first[len(self.steps) - self.quiet] if self.quiet else False): return False
        for grp, k in zip(groups, pos):
            a, b = self.gaps[k]
            self.steps[a]['rd'][b] += grp; self.used.add(k)
        self.log.append((n, by, self.gaps[pos[0]], self.gaps[pos[-1]]))
        if dma in ('b', 'l'): self.b_next = i + 1
        elif dma: self.dma_next = i + 1; self.iv.append((pos[0], pos[-1]))
        return True

def flat(rd): return [x for o in rd for x in o]

sJW, sJ0, sJ1, sJ2, sJ3, sJ4 = 16, 17, 18, 19, sLBS, sBT
def lam_consts(q, L, pows, coef):
    lr, li, ld, a2, rev, O, u = L + 1, L + 2, L + 3, L + 4, L + 5, L + 8, L + 16
    q.e(f"v_lshlrev_b32 v{lr}, 16, v{lr}\nv_lshlrev_b32 v{li}, 16, v{li}\nv_lshlrev_b32 v{ld}, 16, v{ld}")
    q.e(f"v_mul_f32 v{ld}, {LOG2E}, v{ld}\nv_exp_f32 v{ld}, v{ld}")
    bf16r(q, ld)
    q.e(f"v_mul_f32 v{a2}, v{ld}, v{lr}\nv_mul_f32 v{rev}, v{ld}, v{li}\nv_mul_f32 v{a2}, {LOG2E}, v{a2}\nv_mul_f32 v{rev}, {INV2PI}, v{rev}")
    for n, k in enumerate(pows):
        if k != 1: q.e(f"v_mul_f32 v{u}, {f2u(float(k))}, v{a2}\nv_mul_f32 v{u+1}, {f2u(float(k))}, v{rev}\nv_exp_f32 v{u}, v{u}\nv_fract_f32 v{u+1}, v{u+1}")
        else: q.e(f"v_exp_f32 v{u}, v{a2}\nv_fract_f32 v{u+1}, v{rev}")
        q.e(f"v_cos_f32 v{u+2}, v{u+1}\nv_sin_f32 v{u+3}, v{u+1}\nv_mul_f32 v{O+2*n}, v{u}, v{u+2}\nv_mul_f32 v{O+2*n+1}, v{u}, v{u+3}")
    if coef:
        q.e(f"v_add_f32 v{u}, -1.0, v{O}\nv_mul_f32 v{u+1}, v{lr}, v{lr}\nv_fmac_f32 v{u+1}, v{li}, v{li}\nv_rcp_f32 v{u+1}, v{u+1}")
        q.e(f"v_mul_f32 v{u+2}, v{u}, v{lr}\nv_fmac_f32 v{u+2}, v{O+1}, v{li}\nv_mul_f32 v{u+3}, v{O+1}, v{lr}\nv_fma_f32 v{u+3}, -v{u}, v{li}, v{u+3}")
        q.e(f"v_add_f32 v{u+1}, v{u+1}, v{u+1}\nv_mul_f32 v{L+4}, v{u+2}, v{u+1}\nv_mul_f32 v{L+5}, v{u+3}, v{u+1}")

def jobs(c):
    JL = ACC2 + 32
    q = Prog()
    q.e(f"s_lshl_b32 s{sT0}, s{sI}, 4\ns_add_u32 s{sT0}, s{sT0}, s{sMT}\ns_lshl_b32 s{sT0}, s{sT0}, 2\ns_add_u32 s{sJW}, s{sT0}, s{sW}\ns_lshl_b32 s{sJ3}, s{sW}, 13")
    q.e(f"s_min_u32 s{sT0}, s{sJW}, 479\ns_mul_i32 s{sJ1}, s{sT0}, 6554\ns_lshr_b32 s{sJ1}, s{sJ1}, 16\ns_mul_i32 s{sT2}, s{sJ1}, 10\ns_sub_u32 s{sJ0}, s{sT0}, s{sT2}")
    srd(q, S_J0, P_W2, 1536 * 1280)
    q.e(f"v_lshrrev_b32 v{t0}, 3, v{vL}\nv_and_b32 v{t1}, 7, v{vL}\nv_lshrrev_b32 v{t2}, 4, v{vL}\nv_lshlrev_b32 v{t2}, 1, v{t2}\nv_xor_b32 v{t2}, v{t1}, v{t2}\nv_lshlrev_b32 v{t2}, 4, v{t2}")
    q.e(f"v_mul_u32_u24 v{t3}, 1280, v{t0}\nv_add_u32 v{vBR}, v{t2}, v{t3}")
    q.e(f"s_mul_i32 s{sBT+1}, s{sJ1}, {32*1280}\ns_lshl_b32 s{sT3}, s{sJ0}, 7\ns_add_u32 s{sBT+1}, s{sBT+1}, s{sT3}")
    q.e(f"s_min_u32 s{sT0}, s{sJW}, 399\ns_mul_i32 s{sJ2}, s{sT0}, 6554\ns_lshr_b32 s{sJ2}, s{sJ2}, 16\ns_mul_i32 s{sT2}, s{sJ2}, 10\ns_sub_u32 s{sJW}, s{sT0}, s{sT2}")
    srd(q, S_J1, P_CRE, 640 * 1280)
    srd(q, S_AG, P_CIM, 640 * 1280 + 2048, -2048)
    q.e(f"s_mul_i32 s{sBT+2}, s{sJ2}, {16*1280}\ns_lshl_b32 s{sT3}, s{sJW}, 7\ns_add_u32 s{sBT+2}, s{sBT+2}, s{sT3}\ns_add_u32 s{sBT+3}, s{sBT+2}, {8*1280-1024}")
    q.e(f"v_lshlrev_b32 v{JL}, 1, v{vL}\nv_add_u32 v{JL}, s{sT3}, v{JL}")
    for k, ptr in enumerate((P_LRE, P_LIM, P_LDT)):
        q.e(f"global_load_ushort v{JL+1+k}, v{JL}, s[{ptr}:{ptr+1}]", tag='tbl')
    a = q.items
    q = Prog()
    q.e(f"s_add_u32 m0, s{sJ3}, {X_JOB}")
    for i in range(4):
        q.e(f"buffer_load_dwordx4 v{vBR}, {S(S_J0)}, s{sBT+1} offen offset:{1024*i}{NT('ntj')} lds", tag='jobA')
        if i < 3: q.e(f"s_add_u32 s{sBT+1}, s{sBT+1}, {8*1280-1024}")
    da = q.items
    q = Prog()
    q.e(f"s_add_u32 m0, s{sJ3}, {X_JOB + 4096}")
    for i, (sr, so) in enumerate(((S_J1, sBT + 2), (S_J1, sBT + 3), (S_AG, sBT + 2), (S_AG, sBT + 3))):
        q.e(f"buffer_load_dwordx4 v{vXD+(i&1)}, {S(sr)}, s{so} offen offset:{1024*i}{NT('ntj')} lds", tag='jobB')
    db = q.items
    q = Prog()
    q.e(f"v_bfe_u32 v{t0}, v{vL}, 2, 3\nv_lshrrev_b32 v{t1}, 5, v{vL}\nv_lshl_add_u32 v{t1}, v{t1}, 4, v{t0}")
    q.e(f"v_lshrrev_b32 v{t0}, 1, v{t0}\nv_lshlrev_b32 v{t0}, 5, v{t0}\nv_lshl_add_u32 v{t0}, v{t1}, 7, v{t0}\nv_and_b32 v{t1}, 3, v{vL}")
    q.e(f"v_lshl_add_u32 v{t0}, v{t1}, 3, v{t0}\nv_add_u32 v{vBR}, s{sJ3}, v{t0}")
    for tau in range(1, 4): q.e(f"v_xor_b32 v{vBR+tau}, {32*tau}, v{vBR}")
    q.e(f"s_mul_i32 s{sT0}, s{sJ1}, 43\ns_lshr_b32 s{sT0}, s{sT0}, 8\ns_mul_i32 s{sT0}, s{sT0}, 5\ns_add_u32 s{sT0}, s{sT0}, s{sJ1}\ns_mul_i32 s{sJ1}, s{sT0}, 5")
    q.wait_vm('jobA')
    for tau in range(4):
        for t in range(2): q.e(f"ds_read_b64_tr_b16 {V(CSA+4*tau+2*t,2)}, v{vBR+tau} offset:{X_JOB + 1024*t}")
    q.e(f"s_lshl_b32 s{sT0}, s{sJ0}, 2\ns_mul_i32 s{sT1}, s{sT0}, 52\ns_lshr_b32 s{sT1}, s{sT1}, 8\ns_mul_i32 s{sT2}, s{sT1}, 5\ns_sub_u32 s{sT3}, s{sT0}, s{sT2}")
    q.e(f"s_mul_i32 s{sT2}, s{sT1}, 435\ns_add_u32 s{sT0}, s{sT0}, s{sT2}\ns_add_u32 s{sT0}, s{sT0}, s{sJ1}\ns_lshl_b32 s{sT0}, s{sT0}, 10\ns_add_u32 s{sT0}, s{sT0}, {W2S_OFF}")
    for tau in range(4):
        if tau: q.e(f"s_cmp_eq_u32 s{sT3}, {5 - tau}\ns_cselect_b32 s{sT2}, {436*1024}, s{sJ4}\ns_add_u32 s{sT0}, s{sT0}, s{sT2}")
        else: q.e(f"s_movk_i32 s{sJ4}, 1024")
        q.e(f"buffer_store_dwordx4 {V(CSA+4*tau,4)}, v{vL16}, {S(S_WS)}, s{sT0} offen sc1", tag='pub')
    pa = q.items
    q = Prog()
    lam_consts(q, JL, [1], True)
    q.e(f"v_sub_f32 v{JL+5}, 0, v{JL+5}\nv_sub_f32 v{JL+6}, 0, v{JL+4}\nv_lshlrev_b32 v{t0}, 2, v{vL}\nv_add_u32 v{t0}, s{sJ3}, v{t0}")
    for k in range(3): q.e(f"ds_write_b32 v{t0}, v{JL+4+k} offset:{X_JOB + 256*k}")
    q.e(f"v_bfe_u32 v{t0}, v{vL}, 1, 3\nv_bfe_u32 v{t1}, v{vL}, 4, 1\nv_xor_b32 v{t0}, v{t0}, v{t1}\nv_lshlrev_b32 v{t0}, 4, v{t0}")
    q.e(f"v_and_b32 v{t2}, 15, v{vL}\nv_lshl_add_u32 v{t0}, v{t2}, 7, v{t0}\nv_add_u32 v{vBR}, s{sJ3}, v{t0}")
    for s in range(1, 4): q.e(f"v_xor_b32 v{vBR+s}, {32*s}, v{vBR}")
    q.e(f"v_lshrrev_b32 v{t2}, 5, v{vL}\nv_lshlrev_b32 v{t2}, 8, v{t2}\nv_lshl_add_u32 v{t2}, v{t1}, 5, v{t2}\nv_add_u32 v{vTW}, s{sJ3}, v{t2}")
    q.e(f"s_mul_i32 s{sT1}, s{sJ2}, 52\ns_lshr_b32 s{sT1}, s{sT1}, 8\ns_mul_i32 s{sT1}, s{sT1}, 435\ns_add_u32 s{sJ2}, s{sT1}, s{sJ2}")
    q.wait_vm('jobB')
    CR, CI, AL, BE, U = ACC2 + 16, ACC2 + 20, ACC2 + 32, ACC2 + 40, ACC2 + 24
    def rd(s):
        o = 24 * (s & 1) if False else 0
        q.e(f"ds_read_b128 {V(CR,4)}, v{vBR+s} offset:{X_JOB + 4096}\nds_read_b128 {V(CI,4)}, v{vBR+s} offset:{X_JOB + 4096 + 2048}")
        for h in range(2):
            q.e(f"ds_read_b128 {V(AL+4*h,4)}, v{vTW} offset:{X_JOB + 64*s + 16*h}\nds_read_b128 {V(BE+4*h,4)}, v{vTW} offset:{X_JOB + 256 + 64*s + 16*h}")
    for s in range(4):
        rd(s)
        if s == 0:
            q.e(f"s_lshl_b32 s{sT0}, s{sJW}, 2\ns_mul_i32 s{sT1}, s{sT0}, 52\ns_lshr_b32 s{sT1}, s{sT1}, 8\ns_mul_i32 s{sT2}, s{sT1}, 5\ns_sub_u32 s{sT3}, s{sT0}, s{sT2}\ns_mul_i32 s{sT1}, s{sT1}, 6")
            q.e(f"s_add_u32 s{sT0}, s{sT0}, s{sT1}\ns_mul_i32 s{sT0}, s{sT0}, 5\ns_add_u32 s{sT0}, s{sT0}, s{sJ2}\ns_lshl_b32 s{sT0}, s{sT0}, 10\ns_add_u32 s{sT0}, s{sT0}, {W2S_OFF + 30*1024}\ns_movk_i32 s{sJ4}, 5120")
        else:
            q.e(f"s_cmp_eq_u32 s{sT3}, {5 - s}\ns_cselect_b32 s{sT2}, {35*1024}, s{sJ4}\ns_add_u32 s{sT0}, s{sT0}, s{sT2}")
        for d in range(4):
            q.e(f"v_lshlrev_b32 v{U}, 16, v{CR+d}\nv_and_b32 v{U+1}, s{sMASK}, v{CR+d}\nv_lshlrev_b32 v{U+2}, 16, v{CI+d}\nv_and_b32 v{U+3}, s{sMASK}, v{CI+d}")
            q.e(f"v_mul_f32 v{U}, v{AL+2*d}, v{U}\nv_mul_f32 v{U+1}, v{AL+2*d+1}, v{U+1}\nv_fmac_f32 v{U}, v{BE+2*d}, v{U+2}\nv_fmac_f32 v{U+1}, v{BE+2*d+1}, v{U+3}")
            q.e(f"v_cvt_pk_bf16_f32 v{CSA+4*s+d}, v{U}, v{U+1}")
        q.e(f"buffer_store_dwordx4 {V(CSA+4*s,4)}, v{vL16}, {S(S_WS)}, s{sT0} offen sc1", tag='pub')
    q.e(f"s_lshl_b32 s{sT0}, s{sMT}, 7\ns_lshl_b32 s{sT1}, s{sI}, 11\ns_add_u32 s{sT0}, s{sT0}, s{sT1}\ns_add_u32 s{sBT+3}, s{sT0}, {WF_OFF}")
    return a, da, db, pa, q.items

def ext_mfma(acc, n, ffn):
    if ffn: return code("\n".join(f"v_mfma_f32_32x32x16_bf16 {V(acc+16*t,16)}, {A(EXTW+4*t,4)}, {V(vEX,4)}, {V(acc+16*t,16)}" for t in range(n)))
    return code("\n".join(f"v_mfma_f32_32x32x16_bf16 {V(acc+16*t,16)}, {V(vEX,4)}, {A(EXTW+4*t,4)}, {V(acc+16*t,16)}" for t in range(n)))

sBQ, sAO, sAP, sBC, sBD = 66, 67, 68, 64, 65
TAB = [70, 71, 72, 73, 74, 75, 76, 77, 78, 79, 84]
def k2_setup(c):
    q = Prog()
    ld = f"buffer_load_dword v249, v248, {S(S_WS)}, s69 offen sc1"
    a_, b_, c_ = 248, 249, 250
    q.e(f"s_lshr_b32 s86, s{sSL}, 3\ns_lshl_b32 s85, s86, 2\ns_add_u32 s85, s85, s{sW}\ns_and_b32 s87, s{sSL}, 7\ns_mul_i32 s87, s87, 5\ns_mov_b32 s69, {WF_OFF}")
    q.e(f"s_mul_i32 s88, s85, 6\ns_mul_i32 s85, s85, 5\ns_sub_u32 s84, s87, 6")
    q.e(f"v_min_u32 v{c_}, 21, v{vL}\nv_cmp_gt_u32 s[64:65], 12, v{c_}\nv_mov_b32 v{a_}, s84\nv_mov_b32 v{b_}, s88\nv_cndmask_b32 v{a_}, v{a_}, v{b_}, s[64:65]")
    q.e(f"v_mov_b32 v{b_}, s85\nv_mov_b32 v243, s87\nv_cndmask_b32 v{b_}, v{b_}, v243, s[64:65]\nv_lshrrev_b32 v243, 1, v{c_}\nv_add_u32 v{a_}, v{a_}, v243")
    q.e(f"v_and_b32 v{c_}, 1, v{c_}\nv_lshl_add_u32 v{b_}, v{c_}, 2, v{b_}\nv_lshrrev_b32 v{b_}, 2, v{b_}\nv_mad_u32_u24 v{a_}, v{a_}, 10, v{b_}\nv_lshrrev_b32 v{a_}, 2, v{a_}\nv_lshlrev_b32 v{a_}, 7, v{a_}")
    q.e(f"s_lshr_b32 s86, s{sSL}, 3\ns_lshl_b32 s85, s86, 2\ns_add_u32 s85, s85, s{sW}\ns_mul_i32 s85, s85, 11")
    q.e(f"s_and_b32 s87, s{sSL}, 7\ns_mul_i32 s87, s87, 88\ns_add_u32 s87, s87, s85\ns_mul_i32 s{sBQ}, s87, 5120\ns_add_u32 s{sBQ}, s{sBQ}, {W2S_OFF}")
    q.e(f"s_lshl_b32 s87, s{sMT}, 1\ns_add_u32 s88, s87, s86\ns_mul_i32 s88, s88, 88\ns_add_u32 s88, s88, s85\ns_lshl_b32 s{sAO}, s88, 12")
    q.e(f"s_xor_b32 s86, s86, 1\ns_add_u32 s88, s87, s86\ns_mul_i32 s88, s88, 88\ns_add_u32 s88, s88, s85\ns_lshl_b32 s{sAP}, s88, 12")
    q.e(f"s_and_b32 s85, s{sMT}, {3 if OPT.get('rot', 1) else 0}\ns_mov_b32 s{TAB[0]}, 0\ns_lshl_b32 s85, s85, 13\ns_add_u32 s{TAB[4]}, s85, {4*4096}")
    for i in range(1, 4): q.e(f"s_add_u32 s{TAB[i]}, s{TAB[i-1]}, 4096\ns_and_b32 s{TAB[i]}, s{TAB[i]}, {3*4096}")
    for i in range(5, 11): q.e(f"s_add_u32 s{TAB[i]}, s{TAB[i-1]}, 4096\ns_cmp_eq_u32 s{TAB[i]}, {11*4096}\ns_cselect_b32 s{TAB[i]}, {4*4096}, s{TAB[i]}")
    q.e(f"s_mov_b32 s85, s{sBQ}\ns_lshl_b32 s88, s{sW}, 10")
    return q.items, code(ld), retry2(c, ld, [249], 250, 86)
BH = []
NDIR = [35]
def set_bh(five):
    BH[:] = [4 * f for f in range(28)] + ([] if five else [176, 212, 216]) + [240, 244, 248, 252] + [112 + 4 * k for k in range(12)] + [160, 164, 168, 172, 180, 184, 188, 192] + ([176, 212, 216] if five else [])
    NDIR[0] = 32 if five else 35
def baddr(f):
    i, ct = divmod(f, 5)
    t = ""
    if ct == 0: t += f"s_lshr_b32 s{sBC}, s{TAB[i]}, 2\ns_add_u32 s{sBC}, s{sBC}, s{TAB[i]}\ns_add_u32 s{sBC}, s{sBC}, s{sBQ}\n"
    else: t += f"s_add_u32 s{sBC}, s{sBC}, 1024\n"
    return t
def bpre(f):
    return code(baddr(f) + f"buffer_load_dwordx4 {A(BH[f],4)}, v{vL16}, {S(S_WS)}, s{sBC} offen sc1", 'bpre')
def bstage(f, lds):
    return code(f"s_add_u32 m0, s88, {lds}\n" + baddr(f) + f"buffer_load_dwordx4 v{vL16}, {S(S_WS)}, s{sBC} offen sc1 lds", 'bst')
def add_bpre(c, first, stage):
    free = lambda f: 41 + f if f < 28 else 46
    f = 0
    while f < NDIR[0]:
        if not c.va.place(max(first, free(f)), bpre(f), dma='b', stride=OPT.get('bs' + c.typ, 2)): return f
        f += 1
    return f
def add_stage(c, first, stage):
    c.staged = []; c.lend = {}; c.va.quiet = OPT.get('q' + c.typ, {'X': 6, 'Y': 4}[c.typ])
    for n_, its in c.lights: c.lend[n_] = c.va.light(n_, its)[0]
    if OPT.get('vlog'): print('lights', c.lend, file=sys.stderr)
    for k, (lds, e) in enumerate(stage):
        f = NDIR[0] + k
        if f >= 55: break
        i, ct = divmod(f, 5)
        t = f"s_add_u32 m0, s88, {lds}\ns_lshr_b32 s{sBD}, s{TAB[i]}, 2\ns_add_u32 s{sBD}, s{sBD}, s{TAB[i]}\ns_add_u32 s{sBD}, s{sBD}, s85\n"
        if ct: t += f"s_add_u32 s{sBD}, s{sBD}, {1024*ct}\n"
        t += f"buffer_load_dwordx4 v{vL16}, {S(S_WS)}, s{sBD} offen sc1 lds"
        if not c.va.place(max(first, e), code(t, 'bst'), dma='l', stride=OPT.get('ss' + c.typ, 2)): break
        c.staged.append((f, lds))
    c.va.b_next = 0
def unstage(c):
    q = Prog()
    q.e(f"v_add_u32 v{vPA}, s88, v{vL16}\nv_add_u32 v{vTW}, 65536, v{vPA}\nv_add_u32 v{vEX}, 131072, v{vPA}")
    q.wait_vm('bst')
    for f, lds in c.staged:
        q.e(f"ds_read_b128 {A(BH[f],4)}, v{(vPA, vTW, vEX)[lds >> 16]} offset:{lds & 65535}")
    return q.items
def brest(c):
    out = []
    done = set(range(c.nb)) | {f for f, _ in c.staged}
    for f in range(55):
        if f in done: continue
        i, ct = divmod(f, 5)
        t = f"s_lshr_b32 s{sBC}, s{TAB[i]}, 2\ns_add_u32 s{sBC}, s{sBC}, s{TAB[i]}\ns_add_u32 s{sBC}, s{sBC}, s{sBQ}\n"
        if ct: t += f"s_add_u32 s{sBC}, s{sBC}, {1024*ct}\n"
        out.append(Group(code(t + f"buffer_load_dwordx4 {A(BH[f],4)}, v{vL16}, {S(S_WS)}, s{sBC} offen sc1", 'bpre')))
    if OPT.get('vlog'): print(c.typ, "direct", c.nb, "staged", len(c.staged), "rest", len(out), file=sys.stderr)
    return out

def extra_setup():
    q = Prog()
    q.e(f"s_add_u32 s{sT0}, s{S_W3}, 1024\ns_addc_u32 s{sT1}, s{S_W3+1}, 0\ns_bitcmp1_b32 s{sW}, 0\ns_cselect_b32 s{S_B}, s{sT0}, s{S_W1}\ns_cselect_b32 s{S_B+1}, s{sT1}, s{S_W1+1}\ns_cselect_b32 s{sT2}, 4, 0\ns_cselect_b32 s{sT3}, 49152, 0")
    q.e(f"s_mov_b32 s{S_B+2}, {640*3072}\ns_mov_b32 s{S_B+3}, 0x20000\ns_sub_u32 s{sLBS}, 128, s{sT3}")
    q.e(f"v_lshrrev_b32 v{t0}, 1, v{vL}\nv_xor_b32 v{t0}, s{sT2}, v{t0}\nv_mul_u32_u24 v{t0}, 3072, v{t0}\nv_and_b32 v{t1}, 1, v{vL}\nv_lshl_add_u32 v{vDS}, v{t1}, 4, v{t0}")
    q.e(f"v_bfe_u32 v{t0}, v{vL}, 4, 1\nv_lshrrev_b32 v{t1}, 5, v{vL}\nv_lshlrev_b32 v{t1}, 8, v{t1}\nv_mul_u32_u24 v{t0}, 1152, v{t0}\nv_add_u32 v{t1}, v{t1}, v{t0}")
    q.e(f"v_and_b32 v{t0}, 15, v{vL}\nv_lshl_add_u32 v{t1}, v{t0}, 3, v{t1}\nv_add_u32 v{vBR}, {X_JOB}, v{t1}\nv_xor_b32 v{vBR+1}, 128, v{vBR}")
    return q.items

def k1_X(p, c):
    ts = c.ts; o = c.opt
    sb = lambda j: X_RING + (j % X_NS) * X_SLOT
    def dma(j):
        pre = code(f"s_add_u32 s{sDB}, s{sDB}, 128") if j == 10 else []
        its = pre + ffn_dma(sb(j), j)
        if RB and j >= 10:
            its = its[:-3] + code(f"s_add_u32 m0, s88, {X_JOB + (j % 5) * 4096}\ns_add_u32 s{sD1}, s{sD0}, s{sLBS}\nbuffer_load_dwordx4 v{vDS}, {S(S_B)}, s{sD1} offen lds", ('slot', j)) + its[-3:]
        return its
    RB = o.get('rb', 0); c.t2 = [0, 1, 2, 3, 4] if RB else [0, 1, 2, 3]; set_bh(RB)
    CS2 = 216 if RB else CSA
    JP = 0
    ja, jda, jdb, jpa, jpb = jobs(c)
    ffn_dma_addr(p)
    p.e(f"s_mul_i32 s{sDB}, s{sW}, {16*3072}\ns_mul_i32 s{sT0}, s{sI}, 384\ns_add_u32 s{sDB}, s{sDB}, s{sT0}")
    c.save_id(p)
    p.e("s_waitcnt lgkmcnt(0)")
    srd(p, S_X, P_X, 2048 * 1280); ffn_srd(p)
    first_loads(p, dma(0))
    c.start(p)
    early_loads(p, 'X')
    common_addr(p)
    tr_addrs(p, X_RING)
    code_prefetch(p, 'X')
    p.extend(ja)
    p.extend(x_dma(1)); p.extend(dma(1))
    vtouch(p)
    p.e(NONCE_LD())
    ts(p)
    rT = Ring(vT, 4, X_RING)
    WS_ = o.get('wsync', 7)
    F1 = o.get('f1', 16)
    pre_extra = {('sync', WS_): [Marker('vm', 'pub')], ('post', WS_): flag(f"s{sBT+3}"), ('sync', F1): [Marker('vm', 'h')],
                 ('post', F1): code(f"buffer_store_dword v{vPT}, v{vFZ}, {S(S_WS)}, s{sFL} offen offset:4 sc1", 'flag')}
    JA = o.get('ja', 1); JB = o.get('jb', 1)
    steps, r0, r1 = build_steps(c, 'F' * 20, sb, dma, X_NS, rT, None, pre_extra, {} if o.get('nojob') else {o.get('jblk', 0): [jda, jdb]})
    p.extend(x_read(0))
    p.wait_vm(('slot', 0)); p.e("s_barrier")
    p.extend(flat(r0)); p.extend(flat(r1))
    ts(p)
    cs1, cs1s = cs_produce_ffn(ACC2, f"s_mul_i32 s{sT0}, s{sI}, 3")
    sl, su = stats_consume(c); cl, cu = cs_consume(c, 4, ACC2)
    ks_, kl, kc = k2_setup(c)
    CD = o.get('cd', 9); BF0 = o.get('bf0', 45)
    side = cs1[:10] + [Deadline(5)] + items(stats_job) + nonce_get(c) + cs1[10:] + [Deadline(CD), Gate(CD)] + stats_store() + cs1s + [Deadline(CD + 1)]
    assert o.get('jga', 10) > c.joblast, c.joblast
    if not JP: side += [Gate(o.get('jga', 10))] + jpa + [Gate(o.get('jgb', 12))] + jpb + (extra_setup() if RB else []) + [Deadline(o.get('jd', 22))]
    assert o.get('jd', 22) <= 26
    G1_ = o.get('g1', 22)
    ex1 = ([Gate(o.get('tg', 12))] + touch() + [Deadline(o.get('tg', 12) + 2)] if o.get('touch', 0) else []) + [Gate(14)] + ks_ + [Deadline(G1_), Gate(G1_)] + sl + cl[0] + [Deadline(G1_ + 1)]
    c.lights = [(G1_ + 1, cl[1])]
    ex1 += [Gate(o.get('gu', 31))] + su + cu + [Deadline(38), Gate(38)] + ext_read(4) + [Deadline(39)]
    assert BF0 - o.get('kld', 5) >= 38
    steps[39]['mf'] += ext_mfma(ACC1, 4, True); steps[39]['rd'] += [[], [], [], []]
    steps[40]['pre'] = ([] if o.get('ts') == 2 else [LazyStamp(ts)]) + steps[40]['pre']
    cs2, cs2s = cs_produce_ffn(CS2, f"s_mul_i32 s{sT0}, s{sI}, 3\ns_add_u32 s{sT0}, s{sT0}, 1")
    cl, cu = cs_consume(c, len(c.t2), CS2, 12800)
    side += [Gate(40)] + cs2 + [Deadline(45), Gate(45)] + cs2s + ffn_epi(ACC1, 0, 0)
    for tau in range(1, 3): side += ffn_epi(ACC1 + 16 * tau, tau >> 1, (tau & 1) * 512)
    TM0, TMB = c.TM0, c.TMB
    G2L = max(o.get('g2l', 53), BF0 + 1)
    ex2 = [Gate(G2L - 1)] + cl[0] + [Deadline(G2L)]
    c.lights.append((G2L, cl[1]))
    epi2 = lambda tau: ffn_epi(ACC2 + 16 * tau, 2 + (tau >> 1), (tau & 1) * 512)
    side += ffn_epi(ACC1 + 48, 1, 512) + [Deadline(o.get('e1d', 57)), Gate(61)] + cu + [Deadline(TM0 - 2), Gate(TM0 - 2)] + ext_read(len(c.t2)) + k2_flags(c) + [Deadline(TM0 + 1)]
    for k, tau in enumerate(c.t2[:-1]): side += [Gate(TM0 + TMB * (k + 1))] + code("s_nop 1") + epi2(tau) + [Deadline(TM0 + TMB * (k + 2))]
    add_stage(c, BF0, [(4096 * k, 42) for k in range(4)] + [(32768 + 4096 * k, 42) for k in range(12) if not (RB and 4 <= k < 9)])
    c.nb = add_bpre(c, BF0, None)
    assert c.lend[G1_ + 1] < o.get('gu', 31) and c.lend[G2L] < 61
    resolve(steps)
    if o.get('noside'): side = nonce_get(c) + [Deadline(9)]
    weave(p, steps, side, base_rate=o.get('xrate', 2), extra=[ex1 + [Gate(BF0 - o.get('kld', 5))] + kl + [Deadline(BF0 - o.get('kld', 5) + 1), Gate(BF0 - 1)] + kc + [Deadline(BF0)] + ex2])
    ts(p)
    p.extend(mk(c, 80) + epi2(c.t2[-1]) + mk(c, 81) + unstage(c))
    ts(p)

def k1_Y(p, c):
    ts = c.ts; o = c.opt
    sb = lambda j: Y_RING + (j % Y_NS) * Y_SLOT
    dma = lambda j: ssm_dma(sb(j), j) if j < 10 else ffn_dma(sb(j), j)
    RB = o.get('rb', 0); c.t2 = [1, 2, 3] if RB else [0, 1, 2, 3]; set_bh(False)
    p.e(f"s_mul_i32 s{sLBS}, s{sW}, 5120")
    p.e(f"s_and_b32 s{sT0}, s{sW}, 1\ns_lshl_b32 s{sT1}, s{sT0}, 2\ns_lshr_b32 s{sT2}, s{sW}, 1\ns_xor_b32 s{sT1}, s{sT1}, s{sT2}")
    p.e(f"s_lshl_b32 s{sT1}, s{sT1}, 4\nv_xor_b32 v{vDS}, s{sT1}, v{vXD}")
    p.e(f"s_mul_i32 s{sT1}, s{sI}, 80\ns_lshl_b32 s{sT0}, s{sT0}, 3\ns_add_u32 s{sT0}, s{sT0}, s{sT1}\ns_mul_i32 s{sBT}, s{sT0}, 1280")
    for t in range(1, 4): p.e(f"s_add_u32 s{sBT+t}, s{sBT}, {t*(20480-1024)}")
    p.e(f"s_add_u32 s{sBT+4}, s{sBT}, {4*20480}")
    c.save_id(p)
    p.e("s_waitcnt lgkmcnt(0)")
    srd(p, S_X, P_X, 2048 * 1280)
    p.e(f"s_cmp_ge_u32 s{sW}, 2\ns_cselect_b32 s{S_B}, s{P_BIM}, s{P_BRE}\ns_cselect_b32 s{S_B+1}, s{P_BIM+1}, s{P_BRE+1}")
    p.e(f"s_mov_b32 s{S_B+2}, {640*1280}\ns_mov_b32 s{S_B+3}, 0x20000")
    first_loads(p, dma(0))
    p.e("s_branch K_Y\n.set SPLIT, 0\nK_Y:")
    c.start(p)
    early_loads(p, 'Y')
    L = ACC2 + 16
    p.e(f"v_lshrrev_b32 v{L}, 5, v0\nv_lshlrev_b32 v{L}, 4, v{L}\nv_bfe_u32 v{L+1}, v0, 1, 4\nv_add_u32 v{L}, v{L}, v{L+1}")
    p.e(f"v_add_u32 v{L}, s{sT1}, v{L}\nv_min_u32 v{L}, 639, v{L}\nv_lshlrev_b32 v{L}, 1, v{L}")
    for k, ptr in enumerate((P_LRE, P_LIM, P_LDT)):
        p.e(f"global_load_ushort v{L+1+k}, v{L}, s[{ptr}:{ptr+1}]", tag='tbl')
    ffn_dma_addr(p); ffn_srd(p)
    p.e(f"s_mul_i32 s{sDB}, s{sW}, {16*3072}\ns_mul_i32 s{sT0}, s{sI}, 384\ns_add_u32 s{sDB}, s{sDB}, s{sT0}\ns_add_u32 s{sDB}, s{sDB}, 256")
    common_addr(p)
    p.e(f"v_and_b32 v{t0}, 1, v{vL}\nv_bfe_u32 v{t1}, v{vL}, 1, 4\nv_lshl_add_u32 v{t1}, v{t0}, 4, v{t1}")
    p.e(f"v_bfe_u32 v{t2}, v{t1}, 1, 3\nv_xor_b32 v{t2}, v{t2}, v{t0}\nv_lshrrev_b32 v{t3}, 5, v{vL}\nv_xor_b32 v{t2}, v{t2}, v{t3}\nv_lshlrev_b32 v{t2}, 4, v{t2}")
    p.e(f"v_and_b32 v{t3}, 7, v{t1}\nv_lshl_add_u32 v{t2}, v{t3}, 7, v{t2}\nv_lshrrev_b32 v{t3}, 3, v{t1}\nv_mul_u32_u24 v{t3}, 5120, v{t3}")
    p.e(f"v_add_u32 v{t2}, v{t2}, v{t3}\nv_add_u32 v{vBR}, {Y_RING}, v{t2}")
    for s in range(1, 4): p.e(f"v_xor_b32 v{vBR+s}, {32*s}, v{vBR}")
    tr_addrs(p, sb(10))
    code_prefetch(p, 'Y')
    vE, vAG, vFL, vSTW, vSTR, vE2 = 252, 253, 254, vXD, vXD + 1, 242
    p.e(f"v_lshlrev_b32 v{vE}, 5, v0\nv_mul_u32_u24 v{vE2}, 48, v0")
    srd(p, S_AG, P_WS, 32 * 1280, AGG_OFF)
    p.e(f"s_mul_i32 s{sT0}, s{sI}, {32*1280}\ns_add_u32 s{S_AG}, s{S_AG}, s{sT0}\ns_addc_u32 s{S_AG+1}, s{S_AG+1}, 0")
    p.e(f"v_subrev_u32 v{t0}, 160, v0\nv_min_u32 v{t0}, v{t0}, v0\nv_lshlrev_b32 v{vFL}, 3, v{t0}\nv_mov_b32 v{t1}, {OOB}\nv_cmp_gt_u32 vcc, 160, v0\nv_cndmask_b32 v255, v{t1}, v{vFL}, vcc")
    ts(p)
    q = Prog()
    lam_consts(q, L, [1, 16, 128], False)
    O = L + 8
    q.e(f"v_and_b32 v{L}, 1, v0\nv_lshlrev_b32 v{L}, 31, v{L}\nv_xor_b32 v{L}, 0x80000000, v{L}")
    for n in range(3): q.e(f"v_xor_b32 v{O+2*n+1}, v{L}, v{O+2*n+1}")
    q.e(f"ds_write_b64 v{vE}, {V(O,2)} offset:{Y_TBL}\nds_write_b128 v{vE}, {V(O+2,4)} offset:{Y_TBL+16}")
    table = q.items
    p.extend(x_dma(1)); p.extend(dma(1))
    vtouch(p)
    p.e(NONCE_LD())
    rT = Ring(vT, 4, sb(10)); rB = Ring(vBR, 4, Y_RING)
    steps, r0, r1 = build_steps(c, 'S' * 10 + 'F' * 10, sb, dma, Y_NS, rT, rB, {}, {})
    p.extend(x_read(0))
    p.wait_vm(('slot', 0)); p.e("s_barrier")
    p.extend(flat(r0)); p.extend(flat(r1))
    ts(p)
    q = Prog()
    q.e(f"s_lshl_b32 s{sT0}, s{sW}, 10")
    for s in range(4): q.e(f"v_add_u32 v{t0+s}, s{sT0}, v{vBR+s}\nds_read_b128 {A(CSF+4*s,4)}, v{t0+s}")
    for s in range(4): q.e(f"ds_read_b128 {A(EXTW+4*s,4)}, v{vBR+s} offset:4096")
    cs_store_addr(q, f"s_add_u32 s{sT0}, s{sI}, 24")
    CB = ACC2 + 48
    for s in range(4): q.e(f"v_mfma_f32_32x32x16_bf16 {V(CB,16)}, {V(vONE,4)}, {A(CSF+4*s,4)}, {'0' if s == 0 else V(CB,16)}")
    for s in range(4): q.e(f"v_mfma_f32_32x32x16_bf16 {V(ACC2,16)}, {V(vONE,4)}, {A(EXTW+4*s,4)}, {'0' if s == 0 else V(ACC2,16)}")
    cs1 = q.items
    cs1s = code(f"v_mov_b32 v{CB+1}, s{sN}\nv_mov_b32 v{ACC2+1}, s{sN}\nbuffer_store_dwordx2 {V(CB,2)}, v{t4}, {S(S_WS)}, s{sU2} offen sc1\ns_lshl_b32 s{sT0}, s{sW}, 8\ns_sub_u32 s{sT0}, s{sU2}, s{sT0}\n"
                f"buffer_store_dwordx2 {V(ACC2,2)}, v{t4}, {S(S_WS)}, s{sT0} offen offset:1024 sc1\n"
                f"s_add_u32 s{sT0}, s{sMT}, 16\ns_mul_i32 s{sT0}, s{sT0}, 1280\n"
                f"buffer_store_dwordx2 {V(vZ,2)}, v255, {S(S_AG)}, s{sT0} offen sc1", 'pub')
    sl, su = stats_consume(c); cl, cu = cs_consume(c, 5, ACC2)
    ks_, kl, kc = k2_setup(c)
    side = cs1[:13] + [Deadline(5)] + items(stats_job) + nonce_get(c) + cs1[13:] + [Deadline(o.get('pg', 10)), Gate(o.get('pg', 10))] + stats_store() + cs1s + table + [Deadline(18)]
    G1_ = o.get('g1', 22)
    ex1 = ([Gate(o.get('tg', 12))] + touch() + [Deadline(o.get('tg', 12) + 2)] if o.get('touch', 0) else []) + [Gate(14)] + ks_ + [Deadline(G1_), Gate(G1_)] + sl + cl[0] + [Deadline(G1_ + 1)]
    c.lights = [(G1_ + 1, cl[1])]
    side += [Gate(o.get('gu', 31))] + su + cu + [Deadline(38), Gate(38)] + ext_read(5) + [Deadline(39)]
    q = Prog()
    q.e(f"v_and_b32 v{t0}, 31, v{vL}\nv_mul_u32_u24 v{t2}, 48, v{t0}\nv_lshlrev_b32 v{t0}, 5, v{t0}\nv_lshrrev_b32 v{t1}, 5, v0\nv_lshl_add_u32 v{vAG}, v{t1}, 2, v{t2}")
    for t in range(5): q.e(f"ds_read_b64 {V(C0+2*t,2)}, v{t0} offset:{Y_TBL + 1024*t}")
    side += q.items + [Deadline(40)]
    steps[39]['mf'] += ext_mfma(ACC1, 5, False); steps[39]['rd'] += [[], [], [], [], []]
    steps[40]['pre'] = ([] if o.get('ts') == 2 else [LazyStamp(ts)]) + steps[40]['pre']
    AS = o.get('async', 12)
    BF0 = o.get('bf0y', 46)
    cs2, cs2s = cs_produce_ffn(CSA, f"s_mul_i32 s{sT0}, s{sI}, 3\ns_add_u32 s{sT0}, s{sT0}, 2")
    side += [Gate(40)] + cs2[:10]
    LM, E0, GA, G1 = 244, RT + 4, RT + 12, TMP - 2
    q = Prog()
    def scale(tt):
        for t in range(5): q.e(f"v_mul_f32 v{ACC1+16*t+tt}, v{RT+tt}, v{ACC1+16*t+tt}")
    q.extend(cs2[10:])
    q.add(Deadline(45))
    scale(0); scale(1)
    q.extend(cs2s)
    q.e(f"ds_read_b128 {V(LM,4)}, v{vE} offset:{Y_TBL+16}")
    for tt in range(1, 16):
        for t in range(5):
            g = (ACC1 + 16 * t) if tt == 1 else (G1 + 2 * t + (tt & 1))
            q.e(f"v_fma_f32 v{G1+2*t+((tt+1)&1)}, v{C0+2*t}, v{g}, v{ACC1+16*t+tt}")
        if tt < 15: scale(tt + 1)
        for t in range(5):
            g = (ACC1 + 16 * t) if tt == 1 else (G1 + 2 * t + (tt & 1))
            q.e(f"v_fmac_f32_dpp v{G1+2*t+((tt+1)&1)}, v{g}, v{C0+2*t+1} {QP}")
    for t in range(5): q.e(f"ds_write_b32 v{vAG}, v{G1+2*t} offset:{AG_L + 16 + 1536*t}", tag='agw')
    side += q.items + [Deadline(4 * (AS - 1) + 2), Gate(4 * (AS - 1) + 2)]
    q = Prog()
    q.e(f"ds_read_b128 {V(E0,4)}, v{vE2} offset:{AG_L+16}\nds_read_b128 {V(E0+4,4)}, v{vE2} offset:{AG_L+32}")
    q.e(f"s_sub_u32 s{sBT}, 15, s{sMT}\ns_mul_i32 s{sBT}, s{sBT}, 1280")
    fill = code("\n".join(f"s_add_u32 s{S_J0+i}, s{sBT}, {1280 + 3840*i}" for i in range(5)) + f"\ns_add_u32 s{sBT+4}, s{sH}, {6*4096}\ns_nop 0")
    for k in range(1, 8):
        g = E0 if k == 1 else (GA + (k & 1))
        q.e(f"v_fma_f32 v{GA+((k+1)&1)}, v{LM}, v{g}, v{E0+k}"); q.add(fill[k - 1])
        q.e(f"v_fmac_f32_dpp v{GA+((k+1)&1)}, v{g}, v{LM+1} {QP}")
    q.e(f"v_mov_b32 v{GA+1}, s{sN}\nbuffer_store_dwordx2 {V(GA,2)}, v255, {S(S_AG)}, s{sBT} offen sc1", tag='pub')
    side += q.items + [Deadline(4 * (AS - 1) + 4)]
    q = Prog()
    q.e(f"v_and_b32 v{t0}, 1, v{vL}\nv_bfe_u32 v{t1}, v{vL}, 1, 4\nv_lshl_add_u32 v{t1}, v{t0}, 4, v{t1}\nv_bfe_u32 v{t2}, v{vL}, 4, 1\nv_xor_b32 v{t0}, v{t0}, v{t2}")
    q.e(f"v_lshrrev_b32 v{t2}, 5, v{vL}\nv_xor_b32 v{t0}, v{t0}, v{t2}\nv_bfe_u32 v{t2}, v{vL}, 2, 1\nv_lshl_add_u32 v{t0}, v{t0}, 1, v{t2}\nv_lshlrev_b32 v{t0}, 4, v{t0}")
    q.e(f"v_lshl_add_u32 v{t1}, v{t1}, 6, v{t0}\ns_mul_i32 s{sT0}, s{sW}, 10240\ns_add_u32 s{sT0}, s{sT0}, 98304\nv_add_u32 v{vSTW}, s{sT0}, v{t1}\nv_xor_b32 v229, 16, v{vSTW}")
    q.e(f"v_lshrrev_b32 v{t0}, 4, v{vL}\nv_lshlrev_b32 v{t1}, 9, v{t0}\nv_bfe_u32 v{t2}, v{vL}, 2, 2\nv_lshl_add_u32 v{t1}, v{t2}, 6, v{t1}\nv_lshrrev_b32 v{t2}, 1, v{t0}\nv_xor_b32 v{t0}, v{t0}, v{t2}")
    q.e(f"v_and_b32 v{t0}, 1, v{t0}\nv_bfe_u32 v{t2}, v{vL}, 3, 1\nv_lshl_add_u32 v{t0}, v{t0}, 1, v{t2}\nv_bfe_u32 v{t2}, v{vL}, 1, 1\nv_xor_b32 v{t0}, v{t0}, v{t2}\nv_lshl_add_u32 v{t1}, v{t0}, 4, v{t1}")
    q.e(f"v_and_b32 v{t0}, 1, v{vL}\nv_lshl_add_u32 v{t1}, v{t0}, 3, v{t1}\nv_add_u32 v{vSTR}, s{sT0}, v{t1}\nv_xor_b32 v230, 32, v{vSTR}")
    cl, cu = cs_consume(c, 4, CSA)
    TM0, TMB = c.TM0, c.TMB
    G2L = max(o.get('g2l', 53), BF0 + 1)
    ex2 = [Gate(G2L - 1)] + cl[0] + [Deadline(G2L)]
    c.lights.append((G2L, cl[1]))
    side += q.items + [Gate(o.get('g2', 61))] + cu
    LP = [CSA + 2 * i for i in range(8)] + [4, 6, 8, 10, 12, 14, 16]
    ldl = "\n".join(f"buffer_load_dwordx2 {V(LP[i],2)}, v{vFL}, {S(S_AG)}, s{S_J0+i//3} offen offset:{(i%3)*1280} sc1" for i in range(15))
    side += [Deadline(TM0 - 2), Gate(TM0 - 2)] + ext_read(4) + k2_flags(c) + [Deadline(TM0 + TMB)]
    c.lights.append((max(TM0 - 2, c.NST - o.get('g3', 12)), code(ldl)))
    c.lights.append((c.NST - o.get('gx1', 4), code(c.ldx1)))
    for k, tau in enumerate(c.t2[:-1]): side += [Gate(TM0 + TMB * (k + 1))] + code("s_nop 1") + ffn_epi(ACC2 + 16 * tau, 4 + (tau >> 1), (tau & 1) * 512) + [Deadline(TM0 + TMB * (k + 2))]
    q = Prog()
    q.extend(retry(c, ldl, tagcheck([r + 1 for r in LP]), (ldl.split('\n')[0], tagcheck([LP[0] + 1]))))
    for i in range(13, -1, -1):
        q.e(f"v_fmac_f32 v{LP[i]}, v{LM+2}, v{LP[i+1]}\nv_fmac_f32_dpp v{LP[i]}, v{LP[i+1]}, v{LM+3} {QP}")
    q.e(f"ds_write_b32 v{vE2}, v{LP[0]} offset:{AG_L+12}", tag='pw')
    for k in range(7):
        g = LP[0] if k == 0 else E0 + k - 1
        q.e(f"v_fmac_f32 v{E0+k}, v{LM}, v{g}\nv_fmac_f32_dpp v{E0+k}, v{g}, v{LM+1} {QP}")
    q.e(f"ds_write_b128 v{vE2}, {V(E0,4)} offset:{AG_L+16}\nds_write_b128 v{vE2}, {V(E0+4,4)} offset:{AG_L+32}", tag='pw')
    gch = q.items
    q = Prog()
    CY = [216, 217, 218, 219, 228]
    for t in range(5): q.e(f"ds_read_b32 v{CY[t]}, v{vAG} offset:{AG_L + 12 + 1536*t}")
    cy = q.items
    def scan(tiles):
        q = Prog()
        for tt in range(16):
            for t in tiles:
                g = CY[t] if tt == 0 else (ACC1 + 16 * t + tt - 1)
                q.e(f"v_fmac_f32 v{ACC1+16*t+tt}, v{C0+2*t}, v{g}")
            for t in tiles:
                g = CY[t] if tt == 0 else (ACC1 + 16 * t + tt - 1)
                q.e(f"v_fmac_f32_dpp v{ACC1+16*t+tt}, v{g}, v{C0+2*t+1} {QP}")
            for k in ([tt // 2 - 1] if (tt >= 2 and tt % 2 == 0) else []) + ([7] if tt == 15 else []):
                for t in tiles: q.e(f"v_cvt_pk_bf16_f32 v{ACC1+16*t+k}, v{ACC1+16*t+2*k}, v{ACC1+16*t+2*k+1}")
            if tt == 10:
                for t in tiles: q.e(f"ds_write_b128 v{vSTW}, {V(ACC1+16*t,4)} offset:{HT2_L + t*2048}")
        return q.items
    def outp(tiles):
        q = Prog()
        for t in tiles:
            R = ACC1 + 16 * t
            q.e(f"ds_write_b128 v229, {V(R+4,4)} offset:{HT2_L + t*2048}")
            for rt in range(2):
                for tq in range(2): q.e(f"ds_read_b64_tr_b16 {V(R+8+4*rt+2*tq,2)}, v{(vSTR, 230)[rt]} offset:{HT2_L + t*2048 + tq*256}")
        for t in tiles:
            R = ACC1 + 16 * t
            q.e(f"s_add_u32 s{sT2}, s85, {t*4096}")
            for rt in range(2): q.e(f"buffer_store_dwordx4 {V(R+8+4*rt,4)}, v{vL16}, {S(S_WS)}, s{sT2} offen offset:{rt*1024} sc1", tag='h')
        return q.items
    add_stage(c, BF0, [(24576 + 4096 * k, 46) for k in range(8)] + [(12288, 46), (159744, 46)] + [(Y_RING + 20480 * k + 16384, 46) for k in range(5)] + ([(sb(15) + 4096 * k, 66) for k in range(4)] if o.get('st15', 0) else []))
    c.nb = add_bpre(c, BF0, None)
    assert c.lend[G1_ + 1] < o.get('gu', 31) and c.lend[G2L] < 61
    resolve(steps)
    if o.get('noside'): side = nonce_get(c) + [Deadline(9)]
    weave(p, steps, side, base_rate=o.get('yrate', 3),
                 extra=[ex1 + [Gate(BF0 - o.get('kld', 5))] + kl + [Deadline(BF0 - o.get('kld', 5) + 1), Gate(BF0 - 1)] + kc + [Deadline(BF0)] + ex2])
    ts(p)
    p.e(f"s_mov_b32 s85, s{sBT+4}\nv_mov_b32 v{vKN}, v{vPT}\nv_mov_b32 v{vKF}, v{vFZ}")
    p.extend(unstage(c))
    tail = mk(c, 80) + c.chkx1 + merge(c.aload(0) + c.aload(1), merge(autogroup(gch), ffn_epi(ACC2 + 48, 5, 512), keep=True), 1.0) + mk(c, 81) + [Marker('lgkm', 'pw')] + code("s_barrier")
    OV = o.get('ov', 0)
    tail += cy + merge(brest(c), scan([0, 1]), 1.0) + mk(c, 82)
    if OV == 0:
        tail += merge(outp([0, 1]), scan([2, 3]), 1.0) + mk(c, 83)
        tail += merge(outp([2, 3]), scan([4]) + outp([4])[:5], 1.0) + code(c.ldx) + outp([4])[5:]
        c.k2side = []
    elif OV == 1:
        tail += merge(outp([0, 1]) + c.aload(2), scan([2, 3, 4]), 1.0) + mk(c, 83) + code(c.ldx); c.a2 = True
        c.k2side = outp([2, 3, 4]) + [Deadline(2)]
    else:
        tail += mk(c, 83) + c.aload(2) + code(c.ldx); c.a2 = True
        c.k2side = merge(outp([0, 1]), scan([2, 3, 4]), 1.0) + outp([2, 3, 4]) + [Deadline(2)]
    p.extend(tail)
    ts(p)

def mk(c, n): return code(f'.set STEPMARK{c.typ}{n}, 0') if c.opt.get('st0') is not None else []
def merge(a, b, f=1.15, keep=False):
    out = []; k = 0
    for i, it in enumerate(b):
        out.append(it)
        while k < len(a) and k * len(b) <= i * len(a) * f:
            out.append(a[k]); k += 1
    out += a[k:]
    if keep: return out
    return [y for x in out for y in (x.its if isinstance(x, Group) else [x])]

vKW, vKF, vKN = 36, 37, 35
HOMES = [(A, 220), (A, 196), (V, 200), (V, 18)]
def plan_homes(c):
    KF = OPT.get('kf', 3)
    front = [('o', 0), ('o', 1), ('p', 0), ('p', 1), ('o', 2), ('o', 3), ('p', 2), ('p', 3)]
    moved = {4: [], 2: [('o', 2), ('o', 3)], 3: [('o', 3)]}[KF]
    front = [x for x in front if x not in moved]
    c.seq = front + [('p', i) for i in range(4, 11)] + moved + [('o', i) for i in range(4, 11)]
    c.NF = len(front); c.PL = c.NF + 6
    lastB = {i: max(u for u, (k, j) in enumerate(c.seq) if j == i) for i in range(11)}
    pool = [[A, 220, -9], [A, 196, -9], [V, 200, -9], [V, 18, -9]] + [[A, 16 * k, max(lastB[(16 * k) // 20], lastB[(16 * k + 15) // 20]) + 1] for k in range(5)]
    c.home = []; c.earliest = []
    for v in range(22):
        h = min(pool, key=lambda x: x[2])
        c.home.append((h[0], h[1])); c.earliest.append(h[2])
        h[2] = v + 1 + (1 if v in (c.PL - 1, 20) else 0)
def k2_flags(c):
    q = Prog()
    q.e(f"s_and_b32 s87, s{sSL}, 8\ns_lshl_b32 s86, s{sW}, 1\ns_add_u32 s87, s87, s86\ns_lshl_b32 s86, s{sMT}, 4\ns_add_u32 s87, s87, s86")
    q.e(f"s_lshl_b32 s87, s87, 7\ns_add_u32 s87, s87, {HF_OFF}\nv_mov_b32 v248, 0")
    c.ldx = f"buffer_load_dword v249, v248, {S(S_WS)}, s87 offen sc1"
    c.ldy = f"buffer_load_dword v250, v248, {S(S_WS)}, s87 offen offset:128 sc1"
    c.chkx = retry(c, c.ldx, tagcheck([249]))
    c.ldx1 = f"buffer_load_dword v250, v248, {S(S_WS)}, s87 offen offset:4 sc1"
    if c.typ == 'Y': c.chkx1 = retry(c, c.ldx1, tagcheck([250]))
    plan_homes(c)
    def aload(u):
        kind, i = c.seq[u]; R, b = c.home[u]; s_ = sAP if kind == 'p' else sAO
        return code(f"s_add_u32 s{sBD}, s{s_}, s{TAB[i]}\n" + "\n".join(f"buffer_load_dwordx4 {R(b+4*rt,4)}, v{vL16}, {S(S_WS)}, s{sBD} offen offset:{1024*rt} sc1" for rt in range(4)))
    c.aload = aload
    return q.items

def k2(p, c):
    ts = c.ts; o = c.opt
    AP, AO = 40, 120
    seq = c.seq; aload = c.aload; ldy = c.ldy
    isY = c.typ == 'Y'
    mark = lambda n: p.e(f'.set STEPMARK{c.typ}{n}, 0') if o.get('st0') is not None else None
    fl = code(f"buffer_store_dword v{vKN}, v{vKF}, {S(S_WS)}, s{sFL} offen sc1", 'flag')
    if not isY: p.e(f"v_mov_b32 v{vKN}, v{vPT}\nv_mov_b32 v{vKF}, v{vFZ}")
    q = Prog()
    srd(q, S_W1, P_D, 1280)
    srd(q, S_W3, P_OUT, 2048 * 2560)
    q.e(f"s_and_b32 s{sU0}, s{sSL}, 7\ns_lshr_b32 s{sU1}, s{sSL}, 3\ns_lshl_b32 s{sT1}, s{sMT}, 1\ns_add_u32 s{sU1}, s{sU1}, s{sT1}")
    q.e(f"s_mov_b32 s48, 3277\ns_lshl_b32 s49, s{sU1}, 6\ns_mul_i32 s50, s{sU0}, 160")
    q.e(f"s_mul_i32 s51, s49, 1280\ns_add_u32 s51, s51, s50\ns_lshl_b32 s59, s49, 4\ns_add_u32 s59, s59, {ST_OFF}\ns_lshl_b32 s61, s51, 1")
    q.e(f"s_lshl_b32 s{sT0}, s{sU1}, 3\ns_add_u32 s{sT0}, s{sT0}, s{sU0}\ns_mul_i32 s62, s{sT0}, 28672\ns_add_u32 s62, s62, {PX_OFF}")
    q.e(f"s_xor_b32 s{sT0}, s{sT0}, 8\ns_mul_i32 s63, s{sT0}, 28672\ns_add_u32 s63, s63, {PX_OFF}")
    q.e(f"v_lshlrev_b32 v17, 4, v0")
    q.e(f"v_and_b32 v4, 15, v1\nv_mul_u32_u24 v4, 336, v4\nv_lshrrev_b32 v5, 4, v1\nv_lshl_add_u32 v4, v5, 4, v4\ns_mul_i32 s44, s{sW}, 21504\nv_add_u32 v{vKW}, s44, v4")
    EL, EO = 6, 11
    EX, ED, ES = 216, 226, 236
    for u in range(5):
        q.e(f"v_add_u32 v4, {256*u}, v0\nv_mul_lo_u32 v5, v4, s48\nv_lshrrev_b32 v5, 16, v5\nv_lshlrev_b32 v4, 4, v4\nv_lshl_add_u32 v{EL+u}, v5, 4, v4")
        q.e(f"v_mul_u32_u24 v2, 320, v5\nv_sub_u32 v4, v4, v2\nv_lshrrev_b32 v4, 1, v4\nv_lshl_add_u32 v2, v2, 2, v4\nv_lshlrev_b32 v5, 4, v5")
        q.e(f"buffer_load_dwordx2 {V(EX+2*u,2)}, v2, {S(S_X)}, s51 offen\nbuffer_load_dwordx2 {V(ED+2*u,2)}, v4, {S(S_W1)}, s50 offen\nbuffer_load_dwordx2 {V(ES+2*u,2)}, v5, {S(S_WS)}, s59 offen sc1")
        q.e(f"v_lshlrev_b32 v{EO+u}, 1, v2")
    ksetup = q.items
    if not isY:
        p.extend(ksetup)
        p.extend(mk(c, 82))
        p.wait_vm('h'); p.e("s_barrier"); p.extend(fl)
        p.extend(merge(brest(c), []))
        p.e(c.ldx)
        p.extend(mk(c, 83))
        ts(p)
        p.extend(c.chkx)
        for u in range(3): p.extend(aload(u))
    elif not getattr(c, 'a2', False):
        p.extend(aload(2))
    ts(p)
    steps = []
    for u, (kind, i) in enumerate(seq):
        R, a = c.home[u]; acc = AP if kind == 'p' else AO
        mf = []
        for rt in range(4):
            for ct in range(5):
                d = acc + 4 * (5 * rt + ct)
                mf += code(f"v_mfma_f32_16x16x32_bf16 {V(d,4)}, {A(BH[5*i+ct],4)}, {R(a+4*rt,4)}, {'0' if i == 0 else V(d,4)}")
        steps.append(dict(pre=[], mf=mf, rd=[[] for _ in mf]))
    NF, PL = c.NF, c.PL
    CU = NF - (o.get('cuy', 2) if isY else o.get('cux', 3))
    C2 = o.get('c2', 2)
    if isY: steps[C2]['pre'] += c.chkx
    steps[CU]['pre'] += retry(c, ldy, tagcheck([250])) + [LazyStamp(ts)]
    steps[CU - 1]['rd'][o.get('lyg', 10)] += code(ldy)
    g = 0; AS_ = o.get('as', 4)
    for v in range(3, 22):
        e = max(c.earliest[v], v - o.get('ad', 6), 0)
        if isY and v >= 4: e = max(e, C2)
        if v >= NF: e = max(e, CU)
        g = max(g, 20 * e)
        its = aload(v)
        st_ = AS_ if g < 20 * (v - 2) else 2
        steps[g // 20]['rd'][g % 20] += [its[0]]
        for k in range(4): steps[g // 20]['rd'][g % 20] += [its[k + 1]]; g += st_
        assert g <= 20 * v, (v, g)
        if o.get('vlog'): print(c.typ, v, c.home[v][1], g, file=sys.stderr)
    def wr(acc, rt):
        return code("\n".join(f"ds_write_b128 v{vKW}, {V(acc+4*(5*rt+ct),4)} offset:{rt*16*336 + ct*64}" for ct in range(5)), 'pw')
    side = []
    if isY:
        side += c.k2side + ksetup + [Deadline(5)]
        steps[o.get('fu', 3)]['rd'][o.get('fg', 4)] += [Marker('vm', 'h')] + code("s_barrier") + fl
    M = f"s{sMASK}"
    q = Prog()
    PT = [r for u in range(5) for r in (EX + 2 * u, EX + 2 * u + 1, ED + 2 * u, ED + 2 * u + 1)]
    Xr = [2, 3, 4, 5]; Dr = [246, 247, 252, 253]; Yr = [254, 255, 16, 34]
    for u in range(5):
        q.e(f"v_lshlrev_b32 v{Xr[0]}, 16, v{EX+2*u}\nv_and_b32 v{Xr[1]}, {M}, v{EX+2*u}\nv_lshlrev_b32 v{Xr[2]}, 16, v{EX+2*u+1}\nv_and_b32 v{Xr[3]}, {M}, v{EX+2*u+1}")
        q.e(f"v_lshlrev_b32 v{Dr[0]}, 16, v{ED+2*u}\nv_and_b32 v{Dr[1]}, {M}, v{ED+2*u}\nv_lshlrev_b32 v{Dr[2]}, 16, v{ED+2*u+1}\nv_and_b32 v{Dr[3]}, {M}, v{ED+2*u+1}")
        q.e(f"v_and_b32 v{ES+2*u+1}, {M}, v{ES+2*u+1}\nv_mul_f32 v{ES+2*u+1}, v{ES+2*u+1}, v{ES+2*u}")
        for i in range(4): q.e(f"v_fma_f32 v{Yr[i]}, v{Xr[i]}, v{ES+2*u}, v{ES+2*u+1}")
        rnd = (f"v_cvt_pk_bf16_f32 v{Yr[0]}, v{Yr[0]}, v{Yr[1]}\nv_cvt_pk_bf16_f32 v{Yr[2]}, v{Yr[2]}, v{Yr[3]}\n"
               f"v_and_b32 v{Yr[1]}, {M}, v{Yr[0]}\nv_lshlrev_b32 v{Yr[0]}, 16, v{Yr[0]}\nv_and_b32 v{Yr[3]}, {M}, v{Yr[2]}\nv_lshlrev_b32 v{Yr[2]}, 16, v{Yr[2]}")
        q.e(rnd)
        for i in range(4): q.e(f"v_mul_f32 v{Yr[i]}, v{Yr[i]}, v{Dr[i]}")
        q.e(rnd)
        for i in range(4): q.e(f"v_add_f32 v{PT[4*u+i]}, v{Xr[i]}, v{Yr[i]}")
    pre = q.items
    def fuse(u, acc):
        a, b = steps[u], steps[u + 1]
        mf = []; rd = []
        for rt in range(4):
            mf += a['mf'][5 * rt:5 * rt + 5] + b['mf'][5 * rt:5 * rt + 5]
        rd = a['rd'] + b['rd']
        for rt in range(3):
            w = wr(acc, rt)
            for k in range(5): rd[10 * (rt + 1) + 3 + k] += [w[k]]
        a['mf'], a['rd'] = mf[:20], rd[:20]; b['mf'], b['rd'] = mf[20:], rd[20:]
    fuse(PL - 1, AP); fuse(20, AO)
    w = wr(AP, 3)
    for k in range(5): steps[PL + 1]['rd'][3 + k] += [w[k]]
    steps[PL + 1]['rd'][12] += [Marker('lgkm', 'pw')] + code("s_barrier")
    q = Prog()
    GR = AP + 48
    gi = lambda f: GR + 4 * (f // 3) + f % 3
    sent = [0]
    PXB = o.get('pxb', 1); NG, NV = (4, 10) if PXB else (7, 20)
    def send(upto):
        while sent[0] < NG and (3 * sent[0] + 2 < upto or upto == NV):
            g = sent[0]; sent[0] += 1
            q.e(f"v_mov_b32 v{GR+4*g+3}, s{sN}\nbuffer_store_dwordx4 {V(GR+4*g,4)}, v17, {S(S_WS)}, s63 offen sc1\ns_add_u32 s63, s63, 4096")
    def red(u):
        T = AP + 16 * (u % 3)
        for i in range(4): q.e(f"v_add_f32 v{T+i}, v{T+i}, v{T+4+i}\nv_add_f32 v{T+8+i}, v{T+8+i}, v{T+12+i}")
        if PXB:
            for i in range(4): q.e(f"v_add_f32 v{T+i}, v{T+i}, v{T+8+i}")
            for i in range(2): q.e(f"v_cvt_pk_bf16_f32 v{gi(2*u+i)}, v{T+2*i}, v{T+2*i+1}")
            send(2 * u + 2)
        else:
            for i in range(4): q.e(f"v_add_f32 v{gi(4*u+i)}, v{T+i}, v{T+8+i}")
            send(4 * u + 4)
    for u in range(5):
        T = AP + 16 * (u % 3)
        for w in range(4): q.e(f"ds_read_b128 {V(T+4*w,4)}, v{EL+u} offset:{w*21504}")
        if u >= 2: red(u - 2)
    red(3); red(4)
    RG = AP
    ldp = "\n".join(f"buffer_load_dwordx4 {V(RG+4*g,4)}, v17, {S(S_WS)}, s{70+g} offen sc1" for g in range(NG))
    if o.get('cp2', 1):
        L = f"{c.typ}_cp2"
        steps[max(CU, 5)]['rd'][19] += code(f"s_getpc_b64 s[90:91]\n{L}:\nv_lshlrev_b32 v4, 7, v0\nv_min_u32 v4, {c.typ}_end-{L}, v4\nglobal_load_dword v250, v4, s[90:91]")
    side += [Gate(max(CU + 1, 6))] + pre + [Deadline(PL - 1), Gate(PL + 2)] + q.items + [Deadline(PL + 4)] + code("\n".join(f"s_add_u32 s{70+g}, s62, {4096*g}" for g in range(NG))) + [Deadline(20)]
    side += [Gate(o.get('lpu', 20))] + code(ldp)
    steps[20]['rd'][0] += code("s_barrier")
    if o.get('st0') is not None:
        for u, st in enumerate(steps): st['pre'] = code(f'.set STEPMARK{c.typ}{84+u}, 0') + st['pre']
    resolve(steps)
    if o.get('dk2') is not None: steps[o['dk2']]['pre'] += code('s_sleep 36')
    weave(p, steps, side, base_rate=1)
    ts(p); mark(106)
    p.extend(wr(AO, 3))
    p.wait_lgkm('pw')
    p.e("s_barrier")
    mark(107)
    for u in range(5):
        for w in range(4): p.e(f"ds_read_b128 {V(AO+16*u+4*w,4)}, v{EL+u} offset:{w*21504}")
        if u == 2:
            p.extend(retry(c, ldp, tagcheck([RG + 4 * g + 3 for g in range(NG)])))
            if PXB:
                for d in range(10):
                    r = RG + 4 * (d // 3) + d % 3
                    p.e(f"v_lshlrev_b32 v{RG+16+d}, 16, v{r}\nv_and_b32 v{r}, {M}, v{r}")
                for d in range(10):
                    r = RG + 4 * (d // 3) + d % 3
                    p.e(f"v_add_f32 v{PT[2*d]}, v{PT[2*d]}, v{RG+16+d}\nv_add_f32 v{PT[2*d+1]}, v{PT[2*d+1]}, v{r}")
            else:
                for f in range(20): p.e(f"v_add_f32 v{PT[f]}, v{PT[f]}, v{RG + 4*(f//3) + f%3}")
    mark(108)
    for u in range(5):
        R = AO + 16 * u
        for i in range(4): p.e(f"v_add_f32 v{R+i}, v{R+i}, v{R+4+i}\nv_add_f32 v{R+8+i}, v{R+8+i}, v{R+12+i}")
        for i in range(4): p.e(f"v_add_f32 v{R+i}, v{R+i}, v{PT[4*u+i]}")
        for i in range(4): p.e(f"v_add_f32 v{R+i}, v{R+i}, v{R+8+i}")
        p.e(f"buffer_store_dwordx4 {V(R,4)}, v{EO+u}, {S(S_W3)}, s61 offen{NT('nto')}{' sc1' if OPT.get('osc', 1) else ''}{' sc0' if OPT.get('osc', 1) == 2 else ''}")
    mark(109)
    if o.get('st0') is not None: p.e("s_waitcnt vmcnt(0)"); mark(110); p.e("s_nop 15\ns_nop 15\ns_nop 15"); mark(111)
    ts(p)

HEADER = open('parallel_sum__ssm_conv_s5__glu_gated_swiglu__prompt.s.ref').read().split('; Override launch')[0]

def profile(txt, typ):
    out = []; k = 2; sites = []; nm = 0
    lo = OPT.get('prof0', 0)
    for l in txt.split('\n'):
        if 'mfma' in l: nm += 1
        if 's_memrealtime' in l and k > 2: k = 100
        hit = ('vmcnt' in l or 's_barrier' in l or 's_cbranch_vccnz' in l or '_slow' in l) and nm >= lo and k < 62
        if OPT['prof'] == 2: hit = ('buffer_' in l or 'global_' in l) and nm >= lo and k < 62
        if hit and '_slow' in l:
            out.append("  s_memtime s[0:1]"); out.append(l); pend = True; sites.append((k, nm, l.strip())); continue
        if OPT['prof'] == 1 and l.endswith('_ret:') and out[-2].startswith("  s_memtime s[0:1]"):
            out.append(l); out.append(f"  s_memtime s[2:3]\n  s_waitcnt lgkmcnt(0)\n  s_sub_u32 s2, s2, s0\n  s_or_b32 s2, s2, 1\n  v_writelane_b32 v251, s2, {k}"); k += 1; continue
        if hit:
            out.append(f"  s_memtime s[0:1]\n{l}\n  s_memtime s[2:3]\n  s_waitcnt lgkmcnt(0)\n  s_sub_u32 s2, s2, s0\n  s_or_b32 s2, s2, 1\n  v_writelane_b32 v251, s2, {k}")
            sites.append((k, nm, l.strip())); k += 1
        else: out.append(l)
    print(typ, "sites:", [(b, ('D' if ' lds' in c else 'S' if 'store' in c else 'L') if 'buffer' in c or 'global' in c else c.replace('s_waitcnt ', '').replace('s_cbranch_', '')) for a, b, c in sites], file=sys.stderr)
    return '\n'.join(out)

def build(opt):
    OPT.update(opt)
    ph = Prog(); setup(ph, opt)
    ph.e(f"s_bitcmp1_b32 s{sSL}, 0\ns_cbranch_scc0 K_X")
    body = ph.finalize() + "\n"
    sx = [it for it in ph.items if isinstance(it, I) and it.tag == 'cpf' and it.kind == 'vm']
    parts = {}
    for typ, fn in (('X', k1_X), ('Y', k1_Y)):
        c = Ctx(typ, opt)
        p = Prog()
        if typ == 'X': p.e("K_X:")
        p.add(Marker('assume_vm', sx))
        def save_id(p):
            if opt.get('ts'): p.e('v_mov_b32 v251, 0')
            p.e("s_memrealtime s[2:3]")
        def start(p, c=c):
            c.ts(p, True); c.ts(p)
            if opt.get('prof') or opt.get('st0') is not None: c.ts.on = False
        c.save_id = save_id; c.start = start
        fn(p, c)
        k2(p, c)
        if opt.get('prof') or opt.get('st0') is not None: c.ts.on = True; c.ts.n = 63
        if c.ts.on:
            p.wait_all(); c.ts(p, True); c.ts.dump(p)
        p.e(f"{typ}_end:\ns_endpgm")
        st = {}
        txt = p.finalize(st)
        if opt.get('prof'): txt = profile(txt, typ)
        if opt.get('st0') is not None:
            out = []
            for l in txt.split('\n'):
                if 'STEPMARK' in l:
                    k = int(l.split(',')[0].split(typ)[-1]) - opt['st0']
                    if 0 <= k <= 60:
                        a = 2 * (k & 1)
                        if k > 0: out.append(f"  v_writelane_b32 v251, s{2-a}, {k}")
                        if k < 60: out.append(f"  s_memtime s[{a}:{a+1}]")
                else: out.append(l)
            txt = '\n'.join(out)
        import re as _re
        slow = [q for q in c.slow if _re.search(r'(\w+)_slow:', q).group(1) + '_ret:' in txt]
        if opt.get('nodma'): txt = '\n'.join(l for l in txt.split('\n') if not (' lds' in l and 'buffer_load' in l))
        if opt.get('nomfma'): txt = '\n'.join(l for l in txt.split('\n') if not ('32x32x16' in l))
        if opt.get('nowait'): txt = '\n'.join(l for l in txt.split('\n') if not ('vmcnt' in l and 'vmcnt(0)' not in l))
        if opt.get('nolds'): txt = '\n'.join(l for l in txt.split('\n') if not ('ds_read' in l))
        parts[typ] = txt + "\n" + "\n".join(slow) + "\n"
        print(typ, st, file=sys.stderr)
    y0, y1 = parts['Y'].split("  .set SPLIT, 0\n")
    body += y0 + parts['X'] + y1
    body += "K_end:\n  s_endpgm\n"
    k = NAME + "_kernel"
    if opt.get('plain'): body = body.replace(' sc1', '')
    if opt.get('plainst'): body = '\n'.join(l.replace(' sc1', '') if 'buffer_store' in l else l for l in body.split('\n'))
    s = HEADER + "; @launch grid=(256,1,1) block=(256,1,1) lds=163840\n"
    s += f'.amdgcn_target "amdgcn-amd-amdhsa--gfx950"\n.text\n.globl {k}\n.p2align 8\n.type {k},@function\n{k}:\n{body}'
    s += '.section .rodata,"a"\n' + kd(k, 512, 102, 256)
    return s

if __name__ == '__main__':
    opt = {}
    for a in sys.argv[2:]:
        k, v = a.split('='); opt[k] = int(v)
    open(sys.argv[1], 'w').write(build(opt))
```

```python
import sys, struct
from asmgen import Prog, I, Marker
from sched import weave, Gate, Deadline, Group, autogroup
from common import kd

NAME = "parallel_sum__ssm_conv_s5__glu_gated_swiglu__prompt"
H_OFF = 0
W2S_OFF = 32 * 88 * 4096
ST_OFF = W2S_OFF + 8 * 88 * 5120
AGG_OFF = ST_OFF + 32768
CS_OFF = AGG_OFF + 8 * 32 * 1280
HF_OFF = CS_OFF + 32 * 12800
WF_OFF = HF_OFF + 256 * 128
PX_OFF = WF_OFF + 128 * 128
WS_USED = PX_OFF + 256 * 7 * 4096
TS_OFF = 24 << 20
LOG2E, NLOG2E, INV2PI, OOB = 0x3fb8aa3b, 0xbfb8aa3b, 0x3e22f983, 0x7f000000
def f2u(x): return struct.unpack('<I', struct.pack('<f', x))[0]

S_X, S_W1, S_W3, S_B, S_WS, S_J0, S_J1, S_DBG, S_AG = 4, 8, 12, 16, 20, 24, 28, 32, 36
sMT, sSL, sW, sI, sT0, sT1, sT2, sT3 = 40, 41, 42, 43, 44, 45, 46, 47
sXR = 48
sMASK, sFL, sLB, sD0, sD1, sH, sLBS, sBT = 52, 53, 54, 55, 56, 57, 58, 59
P_X, P_LRE, P_LIM, P_BRE, P_BIM, P_CRE, P_CIM, P_LDT, P_D, P_BX, P_W1, P_W3, P_W2, P_OUT, P_DBG, P_WS = [64 + 2 * i for i in range(16)]
sKX, sKB, sDB, sROT, sU0, sU1 = 96, 97, 98, 99, 100, 101
sSP = 89
sU2, sU3 = 82, 83
sN = 92

OPT = {}
def NT(k): return ' nt' if OPT.get(k) else ''
def S(d): return f"s[{d}:{d+3}]"
def V(a, n=1): return f"v[{a}:{a+n-1}]" if n > 1 else f"v{a}"
def A(a, n=1): return f"a[{a}:{a+n-1}]" if n > 1 else f"a{a}"
QP = "quad_perm:[1,0,3,2] row_mask:0xf bank_mask:0xf"
def items(f, *a):
    q = Prog(); f(q, *a); return q.items
def code(text, tag=None):
    q = Prog(); q.e(text, tag); return q.items

def srd(p, d, ptr, nrec, add=0):
    if add == 0: p.e(f"s_mov_b32 s{d}, s{ptr}\ns_mov_b32 s{d+1}, s{ptr+1}")
    elif add > 0: p.e(f"s_add_u32 s{d}, s{ptr}, {add}\ns_addc_u32 s{d+1}, s{ptr+1}, 0")
    else: p.e(f"s_sub_u32 s{d}, s{ptr}, {-add}\ns_subb_u32 s{d+1}, s{ptr+1}, 0")
    p.e(f"s_mov_b32 s{d+2}, {nrec}\ns_mov_b32 s{d+3}, 0x20000")

class Stamper:
    def __init__(self, on): self.on = on; self.n = 0
    def it(self, real=False):
        if not self.on: return []
        if OPT.get('rt') == 1: real = True
        if OPT.get('rt') == 2:
            n = self.n; self.n += 2
            return code(f"s_memrealtime s[0:1]\ns_memtime s[2:3]\ns_waitcnt lgkmcnt(0)\nv_writelane_b32 v251, s0, {n}\nv_writelane_b32 v251, s2, {n+1}")
        n = self.n; self.n += 1
        return code(f"{'s_memrealtime' if real else 's_memtime'} s[0:1]\ns_waitcnt lgkmcnt(0)\nv_writelane_b32 v251, s0, {n}")
    def __call__(self, p, real=False): p.extend(self.it(real))
    def dump(self, p):
        if not self.on: return
        p.wait_all()
        p.e(f"s_lshr_b32 s93, s{sMT}, 2\ns_lshr_b32 s3, s{sSL}, 3\ns_lshl_b32 s3, s3, 2\ns_add_u32 s93, s93, s3\ns_and_b32 s3, s{sMT}, 3\ns_lshl_b32 s3, s3, 3\ns_add_u32 s93, s93, s3\ns_and_b32 s3, s{sSL}, 7\ns_lshl_b32 s3, s3, 5\ns_add_u32 s93, s93, s3")
        if OPT.get('dbgout'):
            p.e(f"s_lshl_b32 s3, s93, 2\ns_add_u32 s3, s3, s{sW}\ns_cmp_eq_u32 s3, {4*OPT['dbgout']}\ns_cselect_b32 s3, 4, {OOB}")
            p.e(f"v_readlane_b32 s0, v251, 0\nv_subrev_u32 v251, s0, v251\nv_lshlrev_b32 v3, 2, v1\nv_add_u32 v3, s3, v3\nbuffer_store_dword v251, v3, {S(S_DBG)}, 0 offen")
            return
        srd(p, 4, P_WS, TS_OFF + (1 << 20))
        p.e(f"v_lshlrev_b32 v3, 2, v1\ns_lshl_b32 s3, s93, 2\ns_add_u32 s3, s3, s{sW}\ns_lshl_b32 s3, s3, 8\ns_add_u32 s3, s3, {TS_OFF}")
        p.e("buffer_store_dword v251, v3, s[4:7], s3 offen")

class LazyStamp:
    def __init__(self, ts): self.ts = ts
def resolve(steps):
    for st in steps:
        out = []
        for it in st['pre']:
            out += it.ts.it() if isinstance(it, LazyStamp) else [it]
        st['pre'] = out
vL = 1
vXD, vXC = 2, 4
vSR = 6
vD, vDS, vDC = 10, 12, 13
vBR, vT, vTW, vH = 14, 18, 22, 23
vONE, vEX = 24, 28
vTMP = 32
ACC1, ACC2, CSA, TMP = 40, 120, 184, 200
vFZ, vPA, vPV, vPT, vC1, vC2, vL16, vZ = 208, 209, 39, 211, 212, 213, 38, 210
RT = 216
C0 = 232
XF, BF, EXTW, CSF = 0, 160, 220, 240
t0, t1, t2, t3, t4, t5 = range(vTMP, vTMP + 6)

XS = 0
X_JOB, X_RING, X_NS, X_SLOT = 49152, 81920, 5, 16384
Y_TBL, Y_RING, Y_NS, Y_SLOT = 49152, 57344, 5, 20480
EXT_L = XS + 16384
STL = 21504
XE_L = 139264
AG_L = XS
HT2_L = 0

class Ctx:
    def __init__(self, typ, opt):
        self.typ = typ; self.opt = opt; self.slow = []; self.npoll = 0
        self.ts = Stamper(opt.get('ts'))

def bf16r(p, v): p.e(f"v_cvt_pk_bf16_f32 v{v}, v{v}, v{v}\nv_and_b32 v{v}, s{sMASK}, v{v}")

def retry(c, loads, check, probe=None):
    k = c.npoll; c.npoll += 1
    L = f"{c.typ}_poll{k}"
    q = Prog()
    q.e(f"{L}_slow:\ns_mov_b32 s{sSP}, 0x40000\n{L}_lp:\ns_sleep {OPT.get('sleep', 1)}\ns_sub_u32 s{sSP}, s{sSP}, 1\ns_cmp_eq_u32 s{sSP}, 0\ns_cbranch_scc1 {L}_ret")
    if probe and OPT.get('probe', 0):
        q.e(probe[0] + "\ns_waitcnt vmcnt(0)\n" + probe[1] + f"\ns_cbranch_vccnz {L}_lp")
    q.e(loads + "\ns_waitcnt vmcnt(0)\n" + check)
    q.e(f"s_cbranch_vccnz {L}_lp\ns_branch {L}_ret")
    c.slow.append(q.finalize())
    if OPT.get('nospin') and 'v211' not in check: return code(check + f"\n{L}_ret:")
    return code(check + f"\ns_cbranch_vccnz {L}_slow\n{L}_ret:")
def retry2(c, loads, regs, tmp, sp):
    k = c.npoll; c.npoll += 1
    L = f"{c.typ}_poll{k}"
    chk = f"v_xor_b32 v{tmp}, s{sN}, v{regs[0]}\n" + "".join(f"v_bitop3_b32 v{tmp}, v{tmp}, v{r}, s{sN} bitop3:0xf6\n" for r in regs[1:]) + f"v_cmp_ne_u32 s[{sp}:{sp+1}], 0, v{tmp}\ns_cmp_lg_u64 s[{sp}:{sp+1}], 0"
    q = Prog()
    q.e(f"{L}_slow:\ns_mov_b32 s{sSP}, 0x40000\n{L}_lp:\ns_sleep {OPT.get('sleep', 1)}")
    q.e(loads + "\ns_waitcnt vmcnt(0)\n" + chk)
    q.e(f"s_cbranch_scc0 {L}_ret\ns_sub_u32 s{sSP}, s{sSP}, 1\ns_cmp_lg_u32 s{sSP}, 0\ns_cbranch_scc1 {L}_lp\ns_branch {L}_ret")
    c.slow.append(q.finalize())
    if OPT.get('nospin'): return code(chk + f"\n{L}_ret:")
    return code(chk + f"\ns_cbranch_scc1 {L}_slow\n{L}_ret:")
def tagcheck(regs):
    regs = regs[::-1]
    t = f"v_xor_b32 v{vPV}, s{sN}, v{regs[0]}\n"
    for r in regs[1:]: t += f"v_bitop3_b32 v{vPV}, v{vPV}, v{r}, s{sN} bitop3:0xf6\n"
    return t + f"v_cmp_ne_u32 vcc, 0, v{vPV}"
NONCE_LD = lambda: f"buffer_load_dword v{vPT}, v{vZ}, {S(S_DBG)}, 0 offen sc1"
def nonce_get(c):
    return retry(c, NONCE_LD(), f"v_cmp_eq_u32 vcc, 0, v{vPT}") + code(f"v_readfirstlane_b32 s{sN}, v{vPT}")
def flag(soff):
    return code(f"buffer_store_dword v{vPT}, v{vFZ}, {S(S_WS)}, {soff} offen sc1", 'flag')

def nextkb(s, unit):
    return f"s_add_u32 s{s}, s{s}, {unit}\ns_cmp_eq_u32 s{s}, {10*unit}\ns_cselect_b32 s{s}, 0, s{s}"

def setup(p, opt):
    p.e("s_cmp_ge_u32 s2, 256\ns_cbranch_scc1 K_end")
    p.e("s_load_dwordx16 s[64:79], s[0:1], 0\ns_load_dwordx16 s[80:95], s[0:1], 64")
    p.e(f"v_and_b32 v{vL}, 63, v0\nv_lshrrev_b32 v{t0}, 6, v0\nv_lshlrev_b32 v{vL16}, 4, v{vL}")
    p.e(f"v_readfirstlane_b32 s{sW}, v{t0}")
    for i in range(opt.get('d0', 0)): p.e('s_sleep 36')
    for i in range(opt.get('pad', 0)): p.e(f"s_mov_b32 s{sT3}, 0x12345")
    p.e(f"s_and_b32 s{sMT}, s2, 3\ns_lshl_b32 s{sMT}, s{sMT}, 2\ns_bfe_u32 s{sT0}, s2, 0x20003\ns_add_u32 s{sMT}, s{sMT}, s{sT0}")
    p.e(f"s_and_b32 s{sSL}, s2, 4\ns_lshl_b32 s{sSL}, s{sSL}, 1\ns_lshr_b32 s{sT0}, s2, 5\ns_add_u32 s{sSL}, s{sSL}, s{sT0}\ns_lshr_b32 s{sI}, s{sSL}, 1")
    if opt.get('cpf', 1):
        p.e(f"s_getpc_b64 s[4:5]\nK_pc:\ns_mov_b32 s6, K_X-K_pc\ns_bitcmp1_b32 s{sSL}, 0\ns_cselect_b32 s6, K_Y-K_pc, s6\ns_and_b32 s7, s{sI}, 3\ns_lshl_b32 s7, s7, 2\ns_and_b32 s8, s{sMT}, 3\ns_add_u32 s7, s7, s8")
        p.e(f"s_lshl_b32 s7, s7, 11\ns_add_u32 s6, s6, s7\nv_lshrrev_b32 v{t5}, 4, v0\nv_lshlrev_b32 v{t5}, 7, v{t5}\nv_add_u32 v{t5}, s6, v{t5}\nv_min_u32 v{t5}, K_end-K_pc, v{t5}\nglobal_load_dword v250, v{t5}, s[4:5]", tag='cpf')
    p.e(f"s_mul_i32 s{sROT}, s{sMT}, {opt.get('rm', 3)}\ns_mul_i32 s{sT0}, s{sT0}, {opt.get('rs', 1)}\ns_add_u32 s{sROT}, s{sROT}, s{sT0}\ns_mul_i32 s{sT1}, s{sROT}, 205\ns_lshr_b32 s{sT1}, s{sT1}, 11\ns_mul_i32 s{sT1}, s{sT1}, 10\ns_sub_u32 s{sROT}, s{sROT}, s{sT1}")
    p.e(f"s_lshl_b32 s{sKX}, s{sROT}, 7\ns_mov_b32 s{sKB}, s{sROT}\ns_mov_b32 s{sMASK}, 0xffff0000")
    p.e(f"s_lshl_b32 s{sFL}, s{sMT}, 4\ns_add_u32 s{sFL}, s{sFL}, s{sSL}\ns_lshl_b32 s{sFL}, s{sFL}, 7\ns_add_u32 s{sFL}, s{sFL}, {HF_OFF}")
    p.e(f"s_lshl_b32 s{sT0}, s{sMT}, 7\ns_lshl_b32 s{sT1}, s{sW}, 5\ns_add_u32 s{sT1}, s{sT0}, s{sT1}\ns_mul_i32 s{sXR}, s{sT1}, 1280")
    for i in range(1, 4): p.e(f"s_add_u32 s{sXR+i}, s{sXR}, {(8*1280-1024)*i}")
    if opt.get('hotX'):
        for i in range(4): p.e(f"s_mov_b32 s{sXR+i}, {(8*1280-1024)*i}")
    p.e(f"s_lshl_b32 s{sLB}, s{sW}, 12")
    p.e(f"s_lshl_b32 s{sT1}, s{sSL}, 3\ns_add_u32 s{sT0}, s{sT0}, s{sT1}\ns_lshl_b32 s{sT1}, s{sW}, 1\ns_add_u32 s{sT0}, s{sT0}, s{sT1}")
    p.e(f"s_mul_i32 s{sU0}, s{sT0}, 1280\ns_lshl_b32 s{sU1}, s{sT0}, 4\ns_add_u32 s{sU1}, s{sU1}, {ST_OFF}")
    p.e(f"v_lshrrev_b32 v{t0}, 3, v{vL}\nv_and_b32 v{t1}, 7, v{vL}")
    p.e(f"v_lshrrev_b32 v{t2}, 5, v{vL}\nv_mul_u32_u24 v{t2}, 1280, v{t2}\nv_and_b32 v{t3}, 31, v{vL}\nv_lshl_add_u32 v{t4}, v{t3}, 3, v{t2}")
    p.e(f"v_lshrrev_b32 v{t2}, 4, v{vL}\nv_xor_b32 v{t2}, v{t1}, v{t2}\nv_lshlrev_b32 v{t2}, 4, v{t2}\nv_mul_u32_u24 v{t3}, 1280, v{t0}")
    p.e(f"v_add_u32 v{vXD}, v{t2}, v{t3}\nv_xor_b32 v{vXD+1}, 64, v{vXD}")
    p.e(f"v_mov_b32 v{vZ}, 0\nv_mov_b32 v{t2}, {OOB}\nv_cmp_eq_u32 vcc, 0, v0\nv_cndmask_b32 v{vFZ}, v{t2}, v0, vcc")
    p.e(f"s_cmp_eq_u32 s2, 0\ns_cselect_b32 s{sT0}, 0, {OOB}\nv_or_b32 v{vPA}, s{sT0}, v{vFZ}")

def first_loads(p, b0):
    x0 = x_dma(0)
    k1 = [i for i, it in enumerate(x0) if isinstance(it, I) and it.kind == 'vm']
    k2 = [i for i, it in enumerate(b0) if isinstance(it, I) and it.kind == 'vm']
    m0x = [it for it in x0 if isinstance(it, I) and ('x', 'm0') in it.defs][0]
    m0b = [it for it in b0 if isinstance(it, I) and ('x', 'm0') in it.defs][0]
    p.extend(x0[:k1[0] + 1]); p.extend(b0[:k2[1] + 1])
    p.add(I(m0x.text)); p.extend(x0[k1[0] + 1:])
    p.add(I(m0b.text)); p.extend(b0[k2[1] + 1:])
    srd(p, S_DBG, P_DBG, 256)
    p.e(f"s_or_b32 s{sT3}, s2, 1\nv_mov_b32 v{vPT}, s{sT3}\nbuffer_store_dword v{vPT}, v{vPA}, {S(S_DBG)}, 0 offen sc1")
    if OPT.get('stouch', 21):
        G = OPT.get('stouch', 21)
        n = (WS_USED >> G) // 64 + 1
        p.e(f"s_and_b32 s28, s{sSL}, 7\ns_lshl_b32 s28, s28, 1\ns_and_b32 s29, s{sMT}, 1\ns_add_u32 s28, s28, s29\ns_lshl_b32 s28, s28, 2\ns_add_u32 s28, s28, s{sW}\ns_lshl_b32 s28, s28, {G}")
        for i in range(n):
            p.e(f"s_min_u32 s29, s28, {WS_USED - 4 & ~3}\ns_load_dword s30, s[{P_WS}:{P_WS+1}], s29\ns_min_u32 s29, s28, {2048*2560 - 4}\ns_load_dword s31, s[{P_OUT}:{P_OUT+1}], s29\ns_add_u32 s28, s28, {64 << G}")

def early_loads(p, typ):
    for i in range(5):
        p.e(f"buffer_load_dwordx2 {V(RT+2*i,2)}, v{t4}, {S(S_X)}, s{sU0} offen offset:{256*i}", tag='sx')
def code_prefetch(p, typ):
    if OPT.get('cpf', 1) == 2:
        p.e(f"s_getpc_b64 s[24:25]\n{typ}_pc:\nv_lshlrev_b32 v{t5}, 7, v0\nv_min_u32 v{t5}, {typ}_end-{typ}_pc, v{t5}\nglobal_load_dword v250, v{t5}, s[24:25]")

CPN = [0]
def code_ahead(typ, dst, tmp, sp, skip=2048, lines=32):
    L = f"{typ}_ca{CPN[0]}"; CPN[0] += 1
    return [Group(code(f"s_getpc_b64 s[{sp}:{sp+1}]\n{L}:\nv_lshrrev_b32 v{tmp}, {6 - (lines.bit_length() - 1)}, v0\nv_lshlrev_b32 v{tmp}, 7, v{tmp}\nv_add_u32 v{tmp}, {skip}, v{tmp}\n"
                f"v_min_u32 v{tmp}, {typ}_end-{L}, v{tmp}\nglobal_load_dword v{dst}, v{tmp}, s[{sp}:{sp+1}]"))]

def x_dma(j):
    q = Prog()
    q.wait_lgkm(('xr', j - 3))
    q.e(f"v_add_u32 v{vXC}, s{sKX}, v{vXD}\nv_add_u32 v{vXC+1}, s{sKX}, v{vXD+1}\ns_add_u32 m0, s{sLB}, {XS + (j % 3) * 16384}")
    for i in range(4):
        q.e(f"buffer_load_dwordx4 v{vXC+(i&1)}, {S(S_X)}, s{sXR+i} offen offset:{1024*i}{NT('ntx')} lds", tag=('x', j))
    q.e(nextkb(sKX, 128))
    return q.items
def x_read(j):
    q = Prog(); q.wait_vm(('x', j))
    for s in range(4): q.e(f"ds_read_b128 {A(XF+16*j+4*s,4)}, v{vSR+s} offset:{(j % 3) * 16384}", ('xr', j))
    return q.items

def ffn_dma(base, j):
    q = Prog()
    q.e(f"s_mul_i32 s{sD0}, s{sKB}, {64*3072}\ns_add_u32 s{sD0}, s{sD0}, s{sDB}\ns_add_u32 s{sD1}, s{sD0}, {8*3072-2048}\ns_add_u32 m0, s{sLB}, {base}")
    q.e(f"buffer_load_dwordx4 v{vD}, {S(S_W1)}, s{sD0} offen{NT('ntw')} lds", tag=('slot', j))
    q.e(f"buffer_load_dwordx4 v{vD+1}, {S(S_W3)}, s{sD0} offen offset:1024{NT('ntw')} lds", tag=('slot', j))
    q.e(f"buffer_load_dwordx4 v{vD}, {S(S_W1)}, s{sD1} offen offset:2048{NT('ntw')} lds", tag=('slot', j))
    q.e(f"buffer_load_dwordx4 v{vD+1}, {S(S_W3)}, s{sD1} offen offset:3072{NT('ntw')} lds", tag=('slot', j))
    q.e(nextkb(sKB, 1))
    return q.items
def ssm_dma(base, j):
    q = Prog()
    q.e(f"s_lshl_b32 s{sD0}, s{sKB}, 7\nv_add_u32 v{vDC}, s{sD0}, v{vDS}\ns_add_u32 m0, s{sLBS}, {base}")
    for t in range(4):
        q.e(f"buffer_load_dwordx4 v{vDC}, {S(S_B)}, s{sBT+t} offen offset:{1024*t}{NT('ntw')} lds", tag=('slot', j))
    q.e(f"s_add_u32 m0, s{sLBS}, {base + 4096}")
    q.e(f"buffer_load_dwordx4 v{vDC}, {S(S_B)}, s{sBT+4} offen{NT('ntw')} lds", tag=('slot', j))
    q.e(nextkb(sKB, 1))
    return q.items

def ffn_dma_addr(p):
    p.e(f"v_bfe_u32 v{t2}, v{vL}, 4, 1\nv_lshlrev_b32 v{t2}, 1, v{t2}\nv_xor_b32 v{t2}, v{t1}, v{t2}\nv_lshlrev_b32 v{t2}, 4, v{t2}")
    p.e(f"v_mul_u32_u24 v{t3}, 3072, v{t0}\nv_add_u32 v{vD}, v{t2}, v{t3}\nv_xor_b32 v{vD+1}, 64, v{vD}")
def ffn_srd(p):
    srd(p, S_W1, P_W1, 640 * 3072)
    srd(p, S_W3, P_W3, 640 * 3072 + 1024, -1024)

def common_addr(p):
    p.e(f"v_bfe_u32 v{t2}, v{vL}, 2, 1\nv_lshlrev_b32 v{t2}, 4, v{t2}\nv_bfe_u32 v{t3}, v{vL}, 3, 2\nv_lshl_add_u32 v{t2}, v{t3}, 2, v{t2}")
    p.e(f"v_and_b32 v{t3}, 3, v{vL}\nv_add_u32 v{t2}, v{t2}, v{t3}\nv_lshlrev_b32 v{vC1}, 4, v{t2}")
    p.e(f"v_bfe_u32 v{t3}, v{t2}, 1, 3\nv_lshrrev_b32 v{vSR}, 5, v{vL}\nv_xor_b32 v{t3}, v{t3}, v{vSR}\nv_lshlrev_b32 v{t3}, 4, v{t3}")
    p.e(f"v_lshl_add_u32 v{t3}, v{t2}, 7, v{t3}\nv_add_u32 v{vSR}, s{sLB}, v{t3}")
    for s in range(1, 4): p.e(f"v_xor_b32 v{vSR+s}, {32*s}, v{vSR}")
    p.e(f"v_bfe_u32 v{t2}, v{vL}, 2, 1\nv_lshlrev_b32 v{t2}, 10, v{t2}\nv_bfe_u32 v{t3}, v{vL}, 3, 3\nv_lshl_add_u32 v{t2}, v{t3}, 6, v{t2}")
    p.e(f"v_and_b32 v{t3}, 3, v{vL}\nv_lshl_add_u32 v{vH}, v{t3}, 4, v{t2}")
    for i in range(4): p.e(f"v_mov_b32 v{vONE+i}, 0x3f803f80")
    srd(p, S_WS, P_WS, WS_USED)
    p.e(f"s_lshl_b32 s{sT0}, s{sMT}, 1\ns_lshr_b32 s{sT1}, s{sW}, 1\ns_add_u32 s{sT0}, s{sT0}, s{sT1}\ns_mul_i32 s{sT0}, s{sT0}, 88")
    p.e(f"s_mul_i32 s{sT1}, s{sI}, 11\ns_add_u32 s{sT0}, s{sT0}, s{sT1}\ns_lshl_b32 s{sH}, s{sT0}, 12")
    p.e(f"s_and_b32 s{sT1}, s{sW}, 1\ns_lshl_b32 s{sT1}, s{sT1}, 11\ns_add_u32 s{sH}, s{sH}, s{sT1}")

def tr_addrs(p, base):
    p.e(f"v_bfe_u32 v{t0}, v{vL}, 4, 1\nv_lshrrev_b32 v{t1}, 5, v{vL}\nv_lshlrev_b32 v{t1}, 11, v{t1}\nv_lshl_add_u32 v{t1}, v{t0}, 10, v{t1}")
    p.e(f"v_bfe_u32 v{t2}, v{vL}, 2, 2\nv_lshl_add_u32 v{t1}, v{t2}, 7, v{t1}\nv_and_b32 v{t3}, 3, v{vL}\nv_lshl_add_u32 v{t1}, v{t3}, 3, v{t1}")
    p.e(f"v_bfe_u32 v{t2}, v{vL}, 3, 1\nv_lshl_add_u32 v{t2}, v{t0}, 1, v{t2}\nv_lshl_add_u32 v{t1}, v{t2}, 5, v{t1}")
    p.e(f"v_add_u32 v{vT}, {base}, v{t1}")
    for tau in range(1, 4): p.e(f"v_xor_b32 v{vT+tau}, {32*tau}, v{vT}")

def touch():
    q = Prog()
    q.e(f"v_lshlrev_b32 v{vPA}, 19, v{vL}\nv_min_u32 v{vPA}, {WS_USED - 4}, v{vPA}\nbuffer_load_dword v250, v{vPA}, {S(S_WS)}, 0 offen")
    q.e(f"v_min_u32 v{vPA}, {2048*2560 - 4}, v{vPA}\nglobal_load_dword v250, v{vPA}, s[{P_OUT}:{P_OUT+1}]")
    return q.items

def vtouch(p):
    if not OPT.get('vt'): return
    G = OPT['vt']
    p.e(f"v_and_b32 v{vPA}, 15, v{vL}\nv_lshlrev_b32 v{vPA}, {G}, v{vPA}\nv_add_u32 v{vPA}, {W2S_OFF}, v{vPA}\nv_min_u32 v{vPA}, {WS_USED - 4}, v{vPA}")
    p.e(f"v_cmp_gt_u32 vcc, 32, v{vL}\nv_mov_b32 v{vTW}, s{sH}\nv_cndmask_b32 v{vPA}, v{vTW}, v{vPA}, vcc\nbuffer_load_dword v249, v{vPA}, {S(S_WS)}, 0 offen")

def stats_job(p):
    R = RT; aQ, aS = TMP, TMP + 1
    p.e(f"v_mov_b32 v{aS}, 0\nv_mov_b32 v{aQ}, 0")
    for d in range(10):
        p.e(f"v_dot2c_f32_bf16 v{aS}, v{vONE}, v{R+d}\nv_dot2c_f32_bf16 v{aQ}, v{R+d}, v{R+d}")
    p.e("s_nop 2")
    for perm in ("quad_perm:[1,0,3,2] row_mask:0xf", "quad_perm:[2,3,0,1] row_mask:0xf", "row_half_mirror row_mask:0xf", "row_mirror row_mask:0xf", "row_bcast:15 row_mask:0xa"):
        for r in (aS, aQ): p.e(f"v_add_f32_dpp v{r}, v{r}, v{r} {perm} bank_mask:0xf")
    inv = f2u(1.0 / 640)
    p.e(f"v_mul_f32 v{aS}, {inv}, v{aS}\nv_mul_f32 v{aQ}, {inv}, v{aQ}\nv_fma_f32 v{aQ}, -v{aS}, v{aS}, v{aQ}\nv_max_f32 v{aQ}, 0, v{aQ}")
    p.e(f"v_sub_f32 v{aS}, 0, v{aS}\nv_cvt_pk_bf16_f32 v{aS}, v{aS}, v{aS}")
    bf16r(p, aQ)
    p.e(f"v_add_f32 v{aQ}, {f2u(1e-5)}, v{aQ}")
    bf16r(p, aQ)
    p.e(f"v_sqrt_f32 v{aQ}, v{aQ}")
    bf16r(p, aQ)
    p.e(f"v_rcp_f32 v{aQ}, v{aQ}")
    p.e(f"v_and_b32 v{R}, 31, v{vL}\nv_cmp_eq_u32 vcc, 16, v{R}\nv_lshrrev_b32 v{R}, 1, v{vL}\nv_and_b32 v{R}, 16, v{R}\nv_mov_b32 v{R+1}, {OOB}\nv_cndmask_b32 v{R}, v{R+1}, v{R}, vcc")
def stats_store():
    return code(f"v_mov_b32 v{TMP+2}, s{sN}\nv_mov_b32 v{TMP+3}, s{sN}\nbuffer_store_dwordx4 {V(TMP,4)}, v{RT}, {S(S_WS)}, s{sU1} offen sc1", 'pub')

def cs_store_addr(q, gidexpr):
    q.e(gidexpr)
    q.e(f"s_mul_i32 s{sU3}, s{sT0}, 12800\ns_add_u32 s{sU3}, s{sU3}, {CS_OFF}\ns_mul_i32 s{sT0}, s{sROT}, 1280\ns_add_u32 s{sU2}, s{sU3}, s{sT0}")
    q.e(f"s_lshl_b32 s{sT0}, s{sW}, 8\ns_add_u32 s{sU2}, s{sU2}, s{sT0}\ns_add_u32 s{sU3}, s{sU3}, s{sT0}")
    q.e(f"s_cmp_lt_u32 s{sMT}, 10\ns_cselect_b32 s{sT0}, 32, 0\nv_cmp_gt_u32 vcc, s{sT0}, v{vL}\nv_lshlrev_b32 v{t4}, 3, v{vL}\nv_mov_b32 v{t5}, {OOB}\nv_cndmask_b32 v{t4}, v{t5}, v{t4}, vcc")

def cs_produce_ffn(acc, gidexpr):
    q = Prog()
    q.e(f"s_lshl_b32 s{sT0}, s{sW}, 5\nv_xor_b32 v{vTW}, s{sT0}, v{vT}")
    for s in range(4):
        for t in range(2):
            q.e(f"ds_read_b64_tr_b16 {A(CSF+4*s+2*t,2)}, v{vTW} offset:{s*4096 + t*512}")
    cs_store_addr(q, gidexpr)
    for s in range(4):
        q.e(f"v_mfma_f32_32x32x16_bf16 {V(acc,16)}, {V(vONE,4)}, {A(CSF+4*s,4)}, {'0' if s == 0 else V(acc,16)}")
    st = code(f"v_mov_b32 v{acc+1}, s{sN}\nbuffer_store_dwordx2 {V(acc,2)}, v{t4}, {S(S_WS)}, s{sU2} offen sc1", 'pub')
    return q.items, st

def cs_consume(c, ntile, R0, d5=1024):
    q = Prog()
    q.e(f"v_lshrrev_b32 v{vPA}, 5, v{vL}\nv_mul_u32_u24 v{vPA}, 6400, v{vPA}\nv_and_b32 v{t5}, 31, v{vL}\nv_lshl_add_u32 v{vPA}, v{t5}, 3, v{vPA}")
    q.e(f"s_add_u32 s{sU2}, s{sU3}, 3840")
    rounds = [(R0, 0)]
    ld = ""
    for i in range(5): ld += f"buffer_load_dwordx2 {V(R0+2*i,2)}, v{vPA}, {S(S_WS)}, s{sU3 if i < 3 else sU2} offen offset:{1280*(i%3)} sc1\n"
    if ntile == 5:
        q.e(f"s_lshl_b32 s86, s{sW}, 8\ns_sub_u32 s86, {d5}, s86\nv_add_u32 v{vTW}, s86, v{vPA}")
        for i in range(5): ld += f"buffer_load_dwordx2 {V(R0+10+2*i,2)}, v{vTW}, {S(S_WS)}, s{sU3 if i < 3 else sU2} offen offset:{1280*(i%3)} sc1\n"
        rounds.append((R0 + 10, 1))
    a = (q.items, code(ld))
    q = Prog()
    q.extend(retry(c, ld, tagcheck([R0 + 1 + 2 * i for i in range(5 * len(rounds))])))
    q.e(f"v_cmp_gt_u32 vcc, 32, v{vL}")
    for (R, which) in rounds:
        q.e(f"v_add_f32 v{R}, v{R}, v{R+2}\nv_add_f32 v{R+4}, v{R+4}, v{R+6}\nv_add_f32 v{R}, v{R}, v{R+8}\nv_add_f32 v{R}, v{R}, v{R+4}")
        q.e(f"v_mov_b32 v{R+1}, v{R}\nv_mov_b32 v{R+6}, 0\nv_mov_b32 v{R+7}, 0\nv_permlane32_swap_b32 v{R}, v{R+1}\nv_add_f32 v{R}, v{R}, v{R+1}\nv_cndmask_b32 v{R}, 0, v{R}, vcc")
        q.e(f"v_cvt_pk_bf16_f32 v{R+1}, v{R}, v{R}\nv_and_b32 v{R+1}, s{sMASK}, v{R+1}\nv_sub_f32 v{R}, v{R}, v{R+1}")
        q.e(f"v_cvt_pk_bf16_f32 v{R+4}, v{R+1}, v{R}\nv_and_b32 v{R+2}, s{sMASK}, v{R+4}\nv_sub_f32 v{R}, v{R}, v{R+2}")
        q.e(f"v_cvt_pk_bf16_f32 v{R+5}, v{R}, 0")
        if which == 0:
            q.e(f"s_lshr_b32 s86, s{sLB}, 2\nv_add_u32 v{t5}, s86, v{vL16}")
            q.e(f"ds_write_b128 v{t5}, {V(R+4,4)} offset:{EXT_L}", tag='ext')
        else:
            q.e(f"ds_write_b128 v{vL16}, {V(R+4,4)} offset:{EXT_L + 4096}", tag='ext')
    return a, q.items
def ext_read(ntile):
    return code("\n".join(f"ds_read_b128 {A(EXTW+4*t,4)}, v{vL16} offset:{EXT_L + 1024*t}" for t in range(ntile)))

def stats_consume(c):
    q = Prog()
    q.e(f"s_lshl_b32 s87, s{sMT}, 11\ns_lshl_b32 s86, s{sW}, 9\ns_add_u32 s87, s87, s86\ns_add_u32 s{sU0}, s87, {ST_OFF}")
    ld = f"buffer_load_dwordx4 {V(vEX,4)}, v{vC1}, {S(S_WS)}, s{sU0} offen sc1"
    q.e(ld)
    a = q.items
    q = Prog()
    q.extend(retry(c, ld, tagcheck([vEX + 2, vEX + 3])))
    q.e(f"s_lshl_b32 s86, s{sW}, 8\nv_lshrrev_b32 v{vPV}, 1, v{vC1}\nv_add_u32 v{vPV}, s86, v{vPV}\nds_write_b64 v{vPV}, {V(vEX,2)} offset:{STL}")
    if c.typ == 'Y':
        q.e(f"s_lshl_b32 s{sT0}, s{sW}, 7\ns_add_u32 s{sT0}, s{sT0}, 159744")
        q.e(f"v_lshrrev_b32 v{t3}, 2, v{vC1}\nv_add_u32 v{t3}, s{sT0}, v{t3}\nds_write_b32 v{t3}, v{vEX}")
        q.e(f"v_lshrrev_b32 v{t2}, 5, v{vL}\nv_lshlrev_b32 v{t2}, 6, v{t2}\nv_add_u32 v{t2}, s{sT0}, v{t2}")
        for i in range(4): q.e(f"ds_read_b128 {V(RT+4*i,4)}, v{t2} offset:{16*i}")
    q.e(f"v_mul_f32 v{vC1}, {NLOG2E}, v{vEX}\nv_rcp_f32 v{vC2}, v{vEX}\nv_mov_b32 v{vEX}, v{vEX+1}\nv_mov_b32 v{vEX+2}, v{vEX+1}\nv_mov_b32 v{vEX+3}, v{vEX+1}")
    q.e(f"v_mul_f32 v{vC2}, v{vC2}, v{vC2}")
    return a, q.items

def ffn_epi(acc, pos, imm):
    p = Prog(); tmp = TMP
    for r in range(8): p.e(f"v_mul_f32 v{tmp+r}, v{vC1}, v{acc+r}")
    for r in range(8): p.e(f"v_exp_f32 v{tmp+r}, v{tmp+r}\nv_mul_f32 v{acc+r}, v{acc+r}, v{acc+8+r}")
    for r in range(8): p.e(f"v_fma_f32 v{tmp+r}, v{tmp+r}, v{vC2}, v{vC2}")
    for r in range(8): p.e(f"v_rcp_f32 v{tmp+r}, v{tmp+r}")
    p.e(f"s_add_u32 s{sT2}, s{sH}, {pos*4096}")
    for r in range(8): p.e(f"v_mul_f32 v{acc+r}, v{acc+r}, v{tmp+r}")
    for r in range(4): p.e(f"v_cvt_pk_bf16_f32 v{acc+8+r}, v{acc+2*r}, v{acc+2*r+1}")
    p.e(f"buffer_store_dwordx4 {V(acc+8,4)}, v{vH}, {S(S_WS)}, s{sT2} offen offset:{imm} sc1", tag='h')
    if OPT.get('dual'): p.e(f"buffer_store_dwordx4 {V(acc+8,4)}, v{vH}, {S(S_WS)}, s{sT2} offen offset:{imm}", tag='h')
    return p.items

class Ring:
    def __init__(self, reg, n, cur): self.reg = reg; self.n = n; self.cur = cur
    def off(self, base, span, out):
        if base < self.cur or base + span - self.cur > 65536:
            out += code("\n".join(f"v_add_u32 v{self.reg+i}, {(base - self.cur) & 0xffffffff}, v{self.reg+i}" for i in range(self.n)))
            self.cur = base
        return base - self.cur

def build_steps(c, kinds, slot_base, dma, NS, rT, rB, pre_extra, late):
    steps = []
    TMB = OPT.get('tmb', 3); TM0 = 80 - 4 * TMB
    T2 = c.t2; NST = TM0 + TMB * len(T2); c.NST = NST
    reads = []
    for n in range(NST):
        j, s = divmod(min(n, 79), 4)
        buf = BF + (n % 3) * 20 if (kinds[j] == 'S' or 4 in T2) else (160, 180, 196)[n % 3]
        base = slot_base(j)
        rd = []
        if kinds[j] == 'F':
            acc = ACC1 if (j < 10) else ACC2
            mf = []
            ents = [(tau, j, s) for tau in (range(4) if j < 10 else T2)]
            if n >= TM0: ents = [(T2[(n - TM0) // TMB], 20 - TMB + (n - TM0) % TMB, e) for e in range(4)]
            for e, (tau, jj, ss) in enumerate(ents):
                o = []
                if tau < 4:
                    off = rT.off(slot_base(jj), 16384, o)
                    o += code("\n".join(f"ds_read_b64_tr_b16 {A(buf+4*e+2*t,2)}, v{vT+tau} offset:{off + ss*4096 + t*512}" for t in range(2)), ('rd', n))
                else:
                    o += code("\n".join(f"ds_read_b64_tr_b16 {A(buf+4*e+2*t,2)}, v{vBR+t} offset:{(jj % 5)*4096 + (ss>>1)*2048 + (ss&1)*512}" for t in range(2)), ('rd', n))
                rd.append(o)
                cc = "0" if n % 40 == 0 and n < 80 else V(acc + 16 * tau, 16)
                mf += code(f"v_mfma_f32_32x32x16_bf16 {V(acc+16*tau,16)}, {A(buf+4*e,4)}, {A(XF+4*((4*jj+ss)%40),4)}, {cc}")
        else:
            mf = []
            for t in range(5):
                o = []
                off = rB.off(base, 20480, o)
                o += code(f"ds_read_b128 {A(buf+4*t,4)}, v{vBR+s} offset:{off + 1024*t}", ('rd', n))
                rd.append(o)
                cc = "0" if n == 0 else V(ACC1 + 16 * t, 16)
                mf += code(f"v_mfma_f32_32x32x16_bf16 {V(ACC1+16*t,16)}, {A(XF+4*n,4)}, {A(buf+4*t,4)}, {cc}")
        reads.append(rd)
        steps.append(dict(pre=[], mf=mf, rd=[[] for _ in mf]))
    for n in range(NST):
        st = steps[n]; j, s = divmod(n, 4)
        if c.opt.get('st0') is not None and n < 80: st['pre'] += code(f'.set STEPMARK{c.typ}{n}, 0')
        if c.opt.get('st0') is not None and n == NST - 1:
            for k in range(NST, 80): st['rd'][-1] += code(f'.set STEPMARK{c.typ}{k}, 0')
        if c.opt.get('ts') == 2 and s == 0: st['pre'] += [LazyStamp(c.ts)]
        if OPT.get('dstep') == n: st['pre'] += code('s_sleep 36')
        st['pre'] += [Marker('lgkm', ('rd', n))]
        syncs = [j + 1] if (s == 2 and j + 1 <= 20 - TMB) else []
        if n == TM0 - 1: syncs = list(range(21 - TMB, 20))
        if syncs:
            sy = [x for k in syncs for x in pre_extra.get(('sync', k), []) + [Marker('vm', ('slot', k))]] + [Marker('lgkm', ['ext', 'agw'])] + ([] if OPT.get('nobar') else code("s_barrier")) + [x for k in syncs for x in pre_extra.get(('post', k), [])]
            st['rd'][0] += sy
        if n + 2 < NST:
            src = reads[n + 2]; g = len(st['mf'])
            st['rd'][min(len(src), g) - 1] += [Marker('lgkm', ('rd', n + 1))]
            for i, o in enumerate(src): st['rd'][min(i, g - 1)] += o
        if s == 1 and j + 1 < 10:
            st['rd'][0] += x_read(j + 1)
    for k, tau in enumerate(T2):
        st = steps[TM0 + TMB * k + TMB - 1]
        st['mf'] += code(f"v_mfma_f32_32x32x16_bf16 {V(ACC2+16*tau,16)}, {A(EXTW+4*tau,4)}, {V(vEX,4)}, {V(ACC2+16*tau,16)}"); st['rd'] += [[]]
    c.TM0, c.TMB = TM0, TMB
    va = VmAlloc(steps); c.va = va
    LR, LX = OPT.get('leadr', 7), OPT.get('leadx', 5)
    E1 = OPT.get('e1', 1)
    va.place(0, x_dma(2), stride=E1); va.place(0, dma(2), stride=E1)
    for its in late.get(0, []): va.place(0, its, stride=E1)
    va.place(1, x_dma(3), by=9 - LX); va.place(0, dma(3), by=10 - LR)
    va.place(3, x_dma(4), by=13 - LX); va.place(3, dma(4), by=14 - LR)
    LD = OPT.get('lead', NS - 1)
    nxt = NS
    for j in range(1, 20):
        if j + 4 < 10 and LD < NS - 1: va.place(4 * j + 3, x_dma(j + 4), by=4 * (j + 3) + 1 - LX)
        while nxt < 20 and nxt <= j - 1 + NS and (nxt < 10 or nxt <= j + LD or nxt > 20 - TMB - 2):
            va.place(4 * j + 2, dma(nxt), by=4 * (nxt - 1) + 2 - LR); nxt += 1
        if j + 4 < 10 and LD == NS - 1: va.place(4 * j + 3, x_dma(j + 4), by=4 * (j + 3) + 1 - LX)
        for its in late.get(j, []): va.place(4 * j + 3, its)
    c.joblast = max([e[3][0] for e in va.log if e[1] is None] + [0])
    if OPT.get('vlog'): print(va.log, file=sys.stderr)
    return steps, reads[0], reads[1]

class VmAlloc:
    def __init__(self, steps):
        self.steps = steps; self.used = set(); self.dma_next = 0; self.log = []; self.b_next = 0; self.iv = []; self.lused = set(); self.quiet = 0
        self.gaps = [(n, g) for n, st in enumerate(steps) for g in range(len(st['mf']))]
        self.first = {}
        for i, (n, g) in enumerate(self.gaps): self.first.setdefault(n, i)
    def light(self, n, its):
        i = self.first[n]
        for it in its:
            while i in self.used or i in self.lused: i += 1
            a, b = self.gaps[i]
            self.steps[a]['rd'][b] += it.its if isinstance(it, Group) else [it]; self.lused.add(i)
        return self.gaps[i]
    def place(self, n, its, dma=True, stride=None, by=None):
        stride = stride or OPT.get('vstride', 2)
        groups, cur = [], []
        for it in its:
            cur.append(it)
            if isinstance(it, I) and it.kind == 'vm': groups.append(cur); cur = []
        if cur: groups[-1] += cur
        i0 = self.first[n]
        if dma == 'b': i0 = max(i0, self.b_next)
        elif dma is True: i0 = max(i0, self.dma_next)
        inside = (lambda i: any(a < i < b for a, b in self.iv)) if dma == 'l' else (lambda i: False)
        if dma == 'l': i0 = max(i0, self.b_next)
        for st_ in range(stride, 0, -1):
            i = i0; pos = []; used = set(self.used)
            for grp in groups:
                while inside(i) or i in self.lused or any((i + d) in used for d in range(-st_ + 1, st_)): i += 1
                pos.append(i); used.add(i)
            if by is None or i < self.first[max(by, 0)] or st_ == 1: break
        if i >= len(self.gaps) or (dma in ('b', 'l') and i >= self.first[len(self.steps) - self.quiet] if self.quiet else False): return False
        for grp, k in zip(groups, pos):
            a, b = self.gaps[k]
            self.steps[a]['rd'][b] += grp; self.used.add(k)
        self.log.append((n, by, self.gaps[pos[0]], self.gaps[pos[-1]]))
        if dma in ('b', 'l'): self.b_next = i + 1
        elif dma: self.dma_next = i + 1; self.iv.append((pos[0], pos[-1]))
        return True

def flat(rd): return [x for o in rd for x in o]

sJW, sJ0, sJ1, sJ2, sJ3, sJ4 = 16, 17, 18, 19, sLBS, sBT
def lam_consts(q, L, pows, coef):
    lr, li, ld, a2, rev, O, u = L + 1, L + 2, L + 3, L + 4, L + 5, L + 8, L + 16
    q.e(f"v_lshlrev_b32 v{lr}, 16, v{lr}\nv_lshlrev_b32 v{li}, 16, v{li}\nv_lshlrev_b32 v{ld}, 16, v{ld}")
    q.e(f"v_mul_f32 v{ld}, {LOG2E}, v{ld}\nv_exp_f32 v{ld}, v{ld}")
    bf16r(q, ld)
    q.e(f"v_mul_f32 v{a2}, v{ld}, v{lr}\nv_mul_f32 v{rev}, v{ld}, v{li}\nv_mul_f32 v{a2}, {LOG2E}, v{a2}\nv_mul_f32 v{rev}, {INV2PI}, v{rev}")
    for n, k in enumerate(pows):
        if k != 1: q.e(f"v_mul_f32 v{u}, {f2u(float(k))}, v{a2}\nv_mul_f32 v{u+1}, {f2u(float(k))}, v{rev}\nv_exp_f32 v{u}, v{u}\nv_fract_f32 v{u+1}, v{u+1}")
        else: q.e(f"v_exp_f32 v{u}, v{a2}\nv_fract_f32 v{u+1}, v{rev}")
        q.e(f"v_cos_f32 v{u+2}, v{u+1}\nv_sin_f32 v{u+3}, v{u+1}\nv_mul_f32 v{O+2*n}, v{u}, v{u+2}\nv_mul_f32 v{O+2*n+1}, v{u}, v{u+3}")
    if coef:
        q.e(f"v_add_f32 v{u}, -1.0, v{O}\nv_mul_f32 v{u+1}, v{lr}, v{lr}\nv_fmac_f32 v{u+1}, v{li}, v{li}\nv_rcp_f32 v{u+1}, v{u+1}")
        q.e(f"v_mul_f32 v{u+2}, v{u}, v{lr}\nv_fmac_f32 v{u+2}, v{O+1}, v{li}\nv_mul_f32 v{u+3}, v{O+1}, v{lr}\nv_fma_f32 v{u+3}, -v{u}, v{li}, v{u+3}")
        q.e(f"v_add_f32 v{u+1}, v{u+1}, v{u+1}\nv_mul_f32 v{L+4}, v{u+2}, v{u+1}\nv_mul_f32 v{L+5}, v{u+3}, v{u+1}")

def jobs(c):
    JL = ACC2 + 32
    q = Prog()
    q.e(f"s_lshl_b32 s{sT0}, s{sI}, 4\ns_add_u32 s{sT0}, s{sT0}, s{sMT}\ns_lshl_b32 s{sT0}, s{sT0}, 2\ns_add_u32 s{sJW}, s{sT0}, s{sW}\ns_lshl_b32 s{sJ3}, s{sW}, 13")
    q.e(f"s_min_u32 s{sT0}, s{sJW}, 479\ns_mul_i32 s{sJ1}, s{sT0}, 6554\ns_lshr_b32 s{sJ1}, s{sJ1}, 16\ns_mul_i32 s{sT2}, s{sJ1}, 10\ns_sub_u32 s{sJ0}, s{sT0}, s{sT2}")
    srd(q, S_J0, P_W2, 1536 * 1280)
    q.e(f"v_lshrrev_b32 v{t0}, 3, v{vL}\nv_and_b32 v{t1}, 7, v{vL}\nv_lshrrev_b32 v{t2}, 4, v{vL}\nv_lshlrev_b32 v{t2}, 1, v{t2}\nv_xor_b32 v{t2}, v{t1}, v{t2}\nv_lshlrev_b32 v{t2}, 4, v{t2}")
    q.e(f"v_mul_u32_u24 v{t3}, 1280, v{t0}\nv_add_u32 v{vBR}, v{t2}, v{t3}")
    q.e(f"s_mul_i32 s{sBT+1}, s{sJ1}, {32*1280}\ns_lshl_b32 s{sT3}, s{sJ0}, 7\ns_add_u32 s{sBT+1}, s{sBT+1}, s{sT3}")
    q.e(f"s_min_u32 s{sT0}, s{sJW}, 399\ns_mul_i32 s{sJ2}, s{sT0}, 6554\ns_lshr_b32 s{sJ2}, s{sJ2}, 16\ns_mul_i32 s{sT2}, s{sJ2}, 10\ns_sub_u32 s{sJW}, s{sT0}, s{sT2}")
    srd(q, S_J1, P_CRE, 640 * 1280)
    srd(q, S_AG, P_CIM, 640 * 1280 + 2048, -2048)
    q.e(f"s_mul_i32 s{sBT+2}, s{sJ2}, {16*1280}\ns_lshl_b32 s{sT3}, s{sJW}, 7\ns_add_u32 s{sBT+2}, s{sBT+2}, s{sT3}\ns_add_u32 s{sBT+3}, s{sBT+2}, {8*1280-1024}")
    q.e(f"v_lshlrev_b32 v{JL}, 1, v{vL}\nv_add_u32 v{JL}, s{sT3}, v{JL}")
    for k, ptr in enumerate((P_LRE, P_LIM, P_LDT)):
        q.e(f"global_load_ushort v{JL+1+k}, v{JL}, s[{ptr}:{ptr+1}]", tag='tbl')
    a = q.items
    q = Prog()
    q.e(f"s_add_u32 m0, s{sJ3}, {X_JOB}")
    for i in range(4):
        q.e(f"buffer_load_dwordx4 v{vBR}, {S(S_J0)}, s{sBT+1} offen offset:{1024*i}{NT('ntj')} lds", tag='jobA')
        if i < 3: q.e(f"s_add_u32 s{sBT+1}, s{sBT+1}, {8*1280-1024}")
    da = q.items
    q = Prog()
    q.e(f"s_add_u32 m0, s{sJ3}, {X_JOB + 4096}")
    for i, (sr, so) in enumerate(((S_J1, sBT + 2), (S_J1, sBT + 3), (S_AG, sBT + 2), (S_AG, sBT + 3))):
        q.e(f"buffer_load_dwordx4 v{vXD+(i&1)}, {S(sr)}, s{so} offen offset:{1024*i}{NT('ntj')} lds", tag='jobB')
    db = q.items
    q = Prog()
    q.e(f"v_bfe_u32 v{t0}, v{vL}, 2, 3\nv_lshrrev_b32 v{t1}, 5, v{vL}\nv_lshl_add_u32 v{t1}, v{t1}, 4, v{t0}")
    q.e(f"v_lshrrev_b32 v{t0}, 1, v{t0}\nv_lshlrev_b32 v{t0}, 5, v{t0}\nv_lshl_add_u32 v{t0}, v{t1}, 7, v{t0}\nv_and_b32 v{t1}, 3, v{vL}")
    q.e(f"v_lshl_add_u32 v{t0}, v{t1}, 3, v{t0}\nv_add_u32 v{vBR}, s{sJ3}, v{t0}")
    for tau in range(1, 4): q.e(f"v_xor_b32 v{vBR+tau}, {32*tau}, v{vBR}")
    q.e(f"s_mul_i32 s{sT0}, s{sJ1}, 43\ns_lshr_b32 s{sT0}, s{sT0}, 8\ns_mul_i32 s{sT0}, s{sT0}, 5\ns_add_u32 s{sT0}, s{sT0}, s{sJ1}\ns_mul_i32 s{sJ1}, s{sT0}, 5")
    q.wait_vm('jobA')
    for tau in range(4):
        for t in range(2): q.e(f"ds_read_b64_tr_b16 {V(CSA+4*tau+2*t,2)}, v{vBR+tau} offset:{X_JOB + 1024*t}")
    q.e(f"s_lshl_b32 s{sT0}, s{sJ0}, 2\ns_mul_i32 s{sT1}, s{sT0}, 52\ns_lshr_b32 s{sT1}, s{sT1}, 8\ns_mul_i32 s{sT2}, s{sT1}, 5\ns_sub_u32 s{sT3}, s{sT0}, s{sT2}")
    q.e(f"s_mul_i32 s{sT2}, s{sT1}, 435\ns_add_u32 s{sT0}, s{sT0}, s{sT2}\ns_add_u32 s{sT0}, s{sT0}, s{sJ1}\ns_lshl_b32 s{sT0}, s{sT0}, 10\ns_add_u32 s{sT0}, s{sT0}, {W2S_OFF}")
    for tau in range(4):
        if tau: q.e(f"s_cmp_eq_u32 s{sT3}, {5 - tau}\ns_cselect_b32 s{sT2}, {436*1024}, s{sJ4}\ns_add_u32 s{sT0}, s{sT0}, s{sT2}")
        else: q.e(f"s_movk_i32 s{sJ4}, 1024")
        q.e(f"buffer_store_dwordx4 {V(CSA+4*tau,4)}, v{vL16}, {S(S_WS)}, s{sT0} offen sc1", tag='pub')
    pa = q.items
    q = Prog()
    lam_consts(q, JL, [1], True)
    q.e(f"v_sub_f32 v{JL+5}, 0, v{JL+5}\nv_sub_f32 v{JL+6}, 0, v{JL+4}\nv_lshlrev_b32 v{t0}, 2, v{vL}\nv_add_u32 v{t0}, s{sJ3}, v{t0}")
    for k in range(3): q.e(f"ds_write_b32 v{t0}, v{JL+4+k} offset:{X_JOB + 256*k}")
    q.e(f"v_bfe_u32 v{t0}, v{vL}, 1, 3\nv_bfe_u32 v{t1}, v{vL}, 4, 1\nv_xor_b32 v{t0}, v{t0}, v{t1}\nv_lshlrev_b32 v{t0}, 4, v{t0}")
    q.e(f"v_and_b32 v{t2}, 15, v{vL}\nv_lshl_add_u32 v{t0}, v{t2}, 7, v{t0}\nv_add_u32 v{vBR}, s{sJ3}, v{t0}")
    for s in range(1, 4): q.e(f"v_xor_b32 v{vBR+s}, {32*s}, v{vBR}")
    q.e(f"v_lshrrev_b32 v{t2}, 5, v{vL}\nv_lshlrev_b32 v{t2}, 8, v{t2}\nv_lshl_add_u32 v{t2}, v{t1}, 5, v{t2}\nv_add_u32 v{vTW}, s{sJ3}, v{t2}")
    q.e(f"s_mul_i32 s{sT1}, s{sJ2}, 52\ns_lshr_b32 s{sT1}, s{sT1}, 8\ns_mul_i32 s{sT1}, s{sT1}, 435\ns_add_u32 s{sJ2}, s{sT1}, s{sJ2}")
    q.wait_vm('jobB')
    CR, CI, AL, BE, U = ACC2 + 16, ACC2 + 20, ACC2 + 32, ACC2 + 40, ACC2 + 24
    def rd(s):
        o = 24 * (s & 1) if False else 0
        q.e(f"ds_read_b128 {V(CR,4)}, v{vBR+s} offset:{X_JOB + 4096}\nds_read_b128 {V(CI,4)}, v{vBR+s} offset:{X_JOB + 4096 + 2048}")
        for h in range(2):
            q.e(f"ds_read_b128 {V(AL+4*h,4)}, v{vTW} offset:{X_JOB + 64*s + 16*h}\nds_read_b128 {V(BE+4*h,4)}, v{vTW} offset:{X_JOB + 256 + 64*s + 16*h}")
    for s in range(4):
        rd(s)
        if s == 0:
            q.e(f"s_lshl_b32 s{sT0}, s{sJW}, 2\ns_mul_i32 s{sT1}, s{sT0}, 52\ns_lshr_b32 s{sT1}, s{sT1}, 8\ns_mul_i32 s{sT2}, s{sT1}, 5\ns_sub_u32 s{sT3}, s{sT0}, s{sT2}\ns_mul_i32 s{sT1}, s{sT1}, 6")
            q.e(f"s_add_u32 s{sT0}, s{sT0}, s{sT1}\ns_mul_i32 s{sT0}, s{sT0}, 5\ns_add_u32 s{sT0}, s{sT0}, s{sJ2}\ns_lshl_b32 s{sT0}, s{sT0}, 10\ns_add_u32 s{sT0}, s{sT0}, {W2S_OFF + 30*1024}\ns_movk_i32 s{sJ4}, 5120")
        else:
            q.e(f"s_cmp_eq_u32 s{sT3}, {5 - s}\ns_cselect_b32 s{sT2}, {35*1024}, s{sJ4}\ns_add_u32 s{sT0}, s{sT0}, s{sT2}")
        for d in range(4):
            q.e(f"v_lshlrev_b32 v{U}, 16, v{CR+d}\nv_and_b32 v{U+1}, s{sMASK}, v{CR+d}\nv_lshlrev_b32 v{U+2}, 16, v{CI+d}\nv_and_b32 v{U+3}, s{sMASK}, v{CI+d}")
            q.e(f"v_mul_f32 v{U}, v{AL+2*d}, v{U}\nv_mul_f32 v{U+1}, v{AL+2*d+1}, v{U+1}\nv_fmac_f32 v{U}, v{BE+2*d}, v{U+2}\nv_fmac_f32 v{U+1}, v{BE+2*d+1}, v{U+3}")
            q.e(f"v_cvt_pk_bf16_f32 v{CSA+4*s+d}, v{U}, v{U+1}")
        q.e(f"buffer_store_dwordx4 {V(CSA+4*s,4)}, v{vL16}, {S(S_WS)}, s{sT0} offen sc1", tag='pub')
    q.e(f"s_lshl_b32 s{sT0}, s{sMT}, 7\ns_lshl_b32 s{sT1}, s{sI}, 11\ns_add_u32 s{sT0}, s{sT0}, s{sT1}\ns_add_u32 s{sBT+3}, s{sT0}, {WF_OFF}")
    return a, da, db, pa, q.items

def ext_mfma(acc, n, ffn):
    if ffn: return code("\n".join(f"v_mfma_f32_32x32x16_bf16 {V(acc+16*t,16)}, {A(EXTW+4*t,4)}, {V(vEX,4)}, {V(acc+16*t,16)}" for t in range(n)))
    return code("\n".join(f"v_mfma_f32_32x32x16_bf16 {V(acc+16*t,16)}, {V(vEX,4)}, {A(EXTW+4*t,4)}, {V(acc+16*t,16)}" for t in range(n)))

sBQ, sAO, sAP, sBC, sBD = 66, 67, 68, 64, 65
TAB = [70, 71, 72, 73, 74, 75, 76, 77, 78, 79, 84]
def k2_setup(c):
    q = Prog()
    ld = f"buffer_load_dword v249, v248, {S(S_WS)}, s69 offen sc1"
    a_, b_, c_ = 248, 249, 250
    q.e(f"s_lshr_b32 s86, s{sSL}, 3\ns_lshl_b32 s85, s86, 2\ns_add_u32 s85, s85, s{sW}\ns_and_b32 s87, s{sSL}, 7\ns_mul_i32 s87, s87, 5\ns_mov_b32 s69, {WF_OFF}")
    q.e(f"s_mul_i32 s88, s85, 6\ns_mul_i32 s85, s85, 5\ns_sub_u32 s84, s87, 6")
    q.e(f"v_min_u32 v{c_}, 21, v{vL}\nv_cmp_gt_u32 s[64:65], 12, v{c_}\nv_mov_b32 v{a_}, s84\nv_mov_b32 v{b_}, s88\nv_cndmask_b32 v{a_}, v{a_}, v{b_}, s[64:65]")
    q.e(f"v_mov_b32 v{b_}, s85\nv_mov_b32 v243, s87\nv_cndmask_b32 v{b_}, v{b_}, v243, s[64:65]\nv_lshrrev_b32 v243, 1, v{c_}\nv_add_u32 v{a_}, v{a_}, v243")
    q.e(f"v_and_b32 v{c_}, 1, v{c_}\nv_lshl_add_u32 v{b_}, v{c_}, 2, v{b_}\nv_lshrrev_b32 v{b_}, 2, v{b_}\nv_mad_u32_u24 v{a_}, v{a_}, 10, v{b_}\nv_lshrrev_b32 v{a_}, 2, v{a_}\nv_lshlrev_b32 v{a_}, 7, v{a_}")
    q.e(f"s_lshr_b32 s86, s{sSL}, 3\ns_lshl_b32 s85, s86, 2\ns_add_u32 s85, s85, s{sW}\ns_mul_i32 s85, s85, 11")
    q.e(f"s_and_b32 s87, s{sSL}, 7\ns_mul_i32 s87, s87, 88\ns_add_u32 s87, s87, s85\ns_mul_i32 s{sBQ}, s87, 5120\ns_add_u32 s{sBQ}, s{sBQ}, {W2S_OFF}")
    q.e(f"s_lshl_b32 s87, s{sMT}, 1\ns_add_u32 s88, s87, s86\ns_mul_i32 s88, s88, 88\ns_add_u32 s88, s88, s85\ns_lshl_b32 s{sAO}, s88, 12")
    q.e(f"s_xor_b32 s86, s86, 1\ns_add_u32 s88, s87, s86\ns_mul_i32 s88, s88, 88\ns_add_u32 s88, s88, s85\ns_lshl_b32 s{sAP}, s88, 12")
    q.e(f"s_and_b32 s85, s{sMT}, {3 if OPT.get('rot', 1) else 0}\ns_mov_b32 s{TAB[0]}, 0\ns_lshl_b32 s85, s85, 13\ns_add_u32 s{TAB[4]}, s85, {4*4096}")
    for i in range(1, 4): q.e(f"s_add_u32 s{TAB[i]}, s{TAB[i-1]}, 4096\ns_and_b32 s{TAB[i]}, s{TAB[i]}, {3*4096}")
    for i in range(5, 11): q.e(f"s_add_u32 s{TAB[i]}, s{TAB[i-1]}, 4096\ns_cmp_eq_u32 s{TAB[i]}, {11*4096}\ns_cselect_b32 s{TAB[i]}, {4*4096}, s{TAB[i]}")
    if OPT.get('hotB'): q.e(f"s_mov_b32 s{sBQ}, {W2S_OFF}")
    if OPT.get('hotA'): q.e(f"s_mov_b32 s{sAO}, {W2S_OFF}\ns_mov_b32 s{sAP}, {W2S_OFF}")
    q.e(f"s_mov_b32 s85, s{sBQ}\ns_lshl_b32 s88, s{sW}, 10")
    return q.items, code(ld), retry2(c, ld, [249], 250, 86)
BH = []
NDIR = [35]
def set_bh(five):
    BH[:] = [4 * f for f in range(28)] + ([] if five else [176, 212, 216]) + [240, 244, 248, 252] + [112 + 4 * k for k in range(12)] + [160, 164, 168, 172, 180, 184, 188, 192] + ([176, 212, 216] if five else [])
    NDIR[0] = 32 if five else 35
def baddr(f):
    i, ct = divmod(f, 5)
    t = ""
    if ct == 0: t += f"s_lshr_b32 s{sBC}, s{TAB[i]}, 2\ns_add_u32 s{sBC}, s{sBC}, s{TAB[i]}\ns_add_u32 s{sBC}, s{sBC}, s{sBQ}\n"
    else: t += f"s_add_u32 s{sBC}, s{sBC}, 1024\n"
    return t
def bpre(f):
    return code(baddr(f) + f"buffer_load_dwordx4 {A(BH[f],4)}, v{vL16}, {S(S_WS)}, s{sBC} offen sc1", 'bpre')
def bstage(f, lds):
    return code(f"s_add_u32 m0, s88, {lds}\n" + baddr(f) + f"buffer_load_dwordx4 v{vL16}, {S(S_WS)}, s{sBC} offen sc1 lds", 'bst')
def add_bpre(c, first, stage):
    free = lambda f: 41 + f if f < 28 else 46
    f = 0
    while f < NDIR[0]:
        if not c.va.place(max(first, free(f)), bpre(f), dma='b', stride=OPT.get('bs' + c.typ, 2)): return f
        f += 1
    return f
def add_stage(c, first, stage):
    c.staged = []; c.lend = {}; c.va.quiet = OPT.get('q' + c.typ, {'X': 6, 'Y': 4}[c.typ])
    for n_, its in c.lights: c.lend[n_] = c.va.light(n_, its)[0]
    if OPT.get('vlog'): print('lights', c.lend, file=sys.stderr)
    for k, (lds, e) in enumerate(stage):
        f = NDIR[0] + k
        if f >= 55: break
        i, ct = divmod(f, 5)
        t = f"s_add_u32 m0, s88, {lds}\ns_lshr_b32 s{sBD}, s{TAB[i]}, 2\ns_add_u32 s{sBD}, s{sBD}, s{TAB[i]}\ns_add_u32 s{sBD}, s{sBD}, s85\n"
        if ct: t += f"s_add_u32 s{sBD}, s{sBD}, {1024*ct}\n"
        t += f"buffer_load_dwordx4 v{vL16}, {S(S_WS)}, s{sBD} offen sc1 lds"
        if not c.va.place(max(first, e), code(t, 'bst'), dma='l', stride=OPT.get('ss' + c.typ, 2)): break
        c.staged.append((f, lds))
    c.va.b_next = 0
def unstage(c):
    q = Prog()
    q.e(f"v_add_u32 v{vPA}, s88, v{vL16}\nv_add_u32 v{vTW}, 65536, v{vPA}\nv_add_u32 v{vEX}, 131072, v{vPA}")
    q.wait_vm('bst')
    for f, lds in c.staged:
        q.e(f"ds_read_b128 {A(BH[f],4)}, v{(vPA, vTW, vEX)[lds >> 16]} offset:{lds & 65535}")
    return q.items
def brest(c):
    out = []
    done = set(range(c.nb)) | {f for f, _ in c.staged}
    for f in range(55):
        if f in done: continue
        i, ct = divmod(f, 5)
        t = f"s_lshr_b32 s{sBC}, s{TAB[i]}, 2\ns_add_u32 s{sBC}, s{sBC}, s{TAB[i]}\ns_add_u32 s{sBC}, s{sBC}, s{sBQ}\n"
        if ct: t += f"s_add_u32 s{sBC}, s{sBC}, {1024*ct}\n"
        out.append(Group(code(t + f"buffer_load_dwordx4 {A(BH[f],4)}, v{vL16}, {S(S_WS)}, s{sBC} offen sc1", 'bpre')))
    if OPT.get('vlog'): print(c.typ, "direct", c.nb, "staged", len(c.staged), "rest", len(out), file=sys.stderr)
    return out

def extra_setup():
    q = Prog()
    q.e(f"s_add_u32 s{sT0}, s{S_W3}, 1024\ns_addc_u32 s{sT1}, s{S_W3+1}, 0\ns_bitcmp1_b32 s{sW}, 0\ns_cselect_b32 s{S_B}, s{sT0}, s{S_W1}\ns_cselect_b32 s{S_B+1}, s{sT1}, s{S_W1+1}\ns_cselect_b32 s{sT2}, 4, 0\ns_cselect_b32 s{sT3}, 49152, 0")
    q.e(f"s_mov_b32 s{S_B+2}, {640*3072}\ns_mov_b32 s{S_B+3}, 0x20000\ns_sub_u32 s{sLBS}, 128, s{sT3}")
    q.e(f"v_lshrrev_b32 v{t0}, 1, v{vL}\nv_xor_b32 v{t0}, s{sT2}, v{t0}\nv_mul_u32_u24 v{t0}, 3072, v{t0}\nv_and_b32 v{t1}, 1, v{vL}\nv_lshl_add_u32 v{vDS}, v{t1}, 4, v{t0}")
    q.e(f"v_bfe_u32 v{t0}, v{vL}, 4, 1\nv_lshrrev_b32 v{t1}, 5, v{vL}\nv_lshlrev_b32 v{t1}, 8, v{t1}\nv_mul_u32_u24 v{t0}, 1152, v{t0}\nv_add_u32 v{t1}, v{t1}, v{t0}")
    q.e(f"v_and_b32 v{t0}, 15, v{vL}\nv_lshl_add_u32 v{t1}, v{t0}, 3, v{t1}\nv_add_u32 v{vBR}, {X_JOB}, v{t1}\nv_xor_b32 v{vBR+1}, 128, v{vBR}")
    return q.items

def k1_X(p, c):
    ts = c.ts; o = c.opt
    sb = lambda j: X_RING + (j % X_NS) * X_SLOT
    def dma(j):
        pre = code(f"s_add_u32 s{sDB}, s{sDB}, 128") if j == 10 else []
        its = pre + ffn_dma(sb(j), j)
        if RB and j >= 10:
            its = its[:-3] + code(f"s_add_u32 m0, s88, {X_JOB + (j % 5) * 4096}\ns_add_u32 s{sD1}, s{sD0}, s{sLBS}\nbuffer_load_dwordx4 v{vDS}, {S(S_B)}, s{sD1} offen lds", ('slot', j)) + its[-3:]
        return its
    RB = o.get('rb', 0); c.t2 = [0, 1, 2, 3, 4] if RB else [0, 1, 2, 3]; set_bh(RB)
    CS2 = 216 if RB else CSA
    JP = 0
    ja, jda, jdb, jpa, jpb = jobs(c)
    ffn_dma_addr(p)
    p.e(f"s_mul_i32 s{sDB}, s{sW}, {16*3072}\ns_mul_i32 s{sT0}, s{sI}, {0 if OPT.get('hotW') else 384}\ns_add_u32 s{sDB}, s{sDB}, s{sT0}")
    c.save_id(p)
    p.e("s_waitcnt lgkmcnt(0)")
    srd(p, S_X, P_X, 2048 * 1280); ffn_srd(p)
    first_loads(p, dma(0))
    c.start(p)
    early_loads(p, 'X')
    common_addr(p)
    tr_addrs(p, X_RING)
    code_prefetch(p, 'X')
    p.extend(ja)
    p.extend(x_dma(1)); p.extend(dma(1))
    vtouch(p)
    p.e(NONCE_LD())
    ts(p)
    rT = Ring(vT, 4, X_RING)
    WS_ = o.get('wsync', 7)
    F1 = o.get('f1', 16)
    pre_extra = {('sync', WS_): [Marker('vm', 'pub')], ('post', WS_): flag(f"s{sBT+3}"), ('sync', F1): [Marker('vm', 'h')],
                 ('post', F1): code(f"buffer_store_dword v{vPT}, v{vFZ}, {S(S_WS)}, s{sFL} offen offset:4 sc1", 'flag')}
    JA = o.get('ja', 1); JB = o.get('jb', 1)
    steps, r0, r1 = build_steps(c, 'F' * 20, sb, dma, X_NS, rT, None, pre_extra, {} if o.get('nojob') else {o.get('jblk', 0): [jda, jdb]})
    p.extend(x_read(0))
    p.wait_vm(('slot', 0)); p.e("s_barrier")
    p.extend(flat(r0)); p.extend(flat(r1))
    ts(p)
    cs1, cs1s = cs_produce_ffn(ACC2, f"s_mul_i32 s{sT0}, s{sI}, 3")
    sl, su = stats_consume(c); cl, cu = cs_consume(c, 4, ACC2)
    ks_, kl, kc = k2_setup(c)
    CD = o.get('cd', 9); BF0 = o.get('bf0', 45)
    side = cs1[:10] + [Deadline(5)] + items(stats_job) + nonce_get(c) + cs1[10:] + [Deadline(CD), Gate(CD)] + stats_store() + cs1s + [Deadline(CD + 1)]
    assert o.get('jga', 10) > c.joblast, c.joblast
    if not JP: side += [Gate(o.get('jga', 10))] + jpa + [Gate(o.get('jgb', 12))] + jpb + (extra_setup() if RB else []) + [Deadline(o.get('jd', 22))]
    assert o.get('jd', 22) <= 26
    G1_ = o.get('g1', 22)
    ex1 = ([Gate(o.get('tg', 12))] + touch() + [Deadline(o.get('tg', 12) + 2)] if o.get('touch', 0) else []) + [Gate(14)] + ks_ + [Deadline(G1_), Gate(G1_)] + sl + cl[0] + [Deadline(G1_ + 1)]
    c.lights = [(G1_ + 1, cl[1])]
    ex1 += [Gate(o.get('gu', 31))] + su + cu + [Deadline(38), Gate(38)] + ext_read(4) + [Deadline(39)]
    assert BF0 - o.get('kld', 5) >= 38
    steps[39]['mf'] += ext_mfma(ACC1, 4, True); steps[39]['rd'] += [[], [], [], []]
    steps[40]['pre'] = ([] if o.get('ts') == 2 else [LazyStamp(ts)]) + steps[40]['pre']
    cs2, cs2s = cs_produce_ffn(CS2, f"s_mul_i32 s{sT0}, s{sI}, 3\ns_add_u32 s{sT0}, s{sT0}, 1")
    cl, cu = cs_consume(c, len(c.t2), CS2, 12800)
    side += [Gate(40)] + cs2 + [Deadline(45), Gate(45)] + cs2s + ffn_epi(ACC1, 0, 0)
    for tau in range(1, 3): side += ffn_epi(ACC1 + 16 * tau, tau >> 1, (tau & 1) * 512)
    TM0, TMB = c.TM0, c.TMB
    G2L = max(o.get('g2l', 53), BF0 + 1)
    ex2 = [Gate(G2L - 1)] + cl[0] + [Deadline(G2L)]
    c.lights.append((G2L, cl[1]))
    epi2 = lambda tau: ffn_epi(ACC2 + 16 * tau, 2 + (tau >> 1), (tau & 1) * 512)
    side += ffn_epi(ACC1 + 48, 1, 512) + [Deadline(o.get('e1d', 57)), Gate(61)] + cu + [Deadline(TM0 - 2), Gate(TM0 - 2)] + ext_read(len(c.t2)) + k2_flags(c) + [Deadline(TM0 + 1)]
    for k, tau in enumerate(c.t2[:-1]): side += [Gate(TM0 + TMB * (k + 1))] + code("s_nop 1") + epi2(tau) + [Deadline(TM0 + TMB * (k + 2))]
    add_stage(c, BF0, [(4096 * k, 42) for k in range(4)] + [(32768 + 4096 * k, 42) for k in range(12) if not (RB and 4 <= k < 9)])
    c.nb = add_bpre(c, BF0, None)
    assert c.lend[G1_ + 1] < o.get('gu', 31) and c.lend[G2L] < 61
    resolve(steps)
    if o.get('noside'): side = nonce_get(c) + [Deadline(9)]
    weave(p, steps, side, base_rate=o.get('xrate', 2), extra=[ex1 + [Gate(BF0 - o.get('kld', 5))] + kl + [Deadline(BF0 - o.get('kld', 5) + 1), Gate(BF0 - 1)] + kc + [Deadline(BF0)] + ex2])
    ts(p)
    p.extend(mk(c, 80) + epi2(c.t2[-1]) + mk(c, 81) + unstage(c))
    ts(p)

def k1_Y(p, c):
    ts = c.ts; o = c.opt
    sb = lambda j: Y_RING + (j % Y_NS) * Y_SLOT
    dma = lambda j: ssm_dma(sb(j), j) if j < 10 else ffn_dma(sb(j), j)
    RB = o.get('rb', 0); c.t2 = [1, 2, 3] if RB else [0, 1, 2, 3]; set_bh(False)
    p.e(f"s_mul_i32 s{sLBS}, s{sW}, 5120")
    p.e(f"s_and_b32 s{sT0}, s{sW}, 1\ns_lshl_b32 s{sT1}, s{sT0}, 2\ns_lshr_b32 s{sT2}, s{sW}, 1\ns_xor_b32 s{sT1}, s{sT1}, s{sT2}")
    p.e(f"s_lshl_b32 s{sT1}, s{sT1}, 4\nv_xor_b32 v{vDS}, s{sT1}, v{vXD}")
    p.e(f"s_mul_i32 s{sT1}, s{sI}, 80\ns_lshl_b32 s{sT0}, s{sT0}, 3\ns_add_u32 s{sT0}, s{sT0}, s{sT1}\ns_mul_i32 s{sBT}, s{sT0}, 1280")
    for t in range(1, 4): p.e(f"s_add_u32 s{sBT+t}, s{sBT}, {t*(20480-1024)}")
    p.e(f"s_add_u32 s{sBT+4}, s{sBT}, {4*20480}")
    c.save_id(p)
    p.e("s_waitcnt lgkmcnt(0)")
    srd(p, S_X, P_X, 2048 * 1280)
    p.e(f"s_cmp_ge_u32 s{sW}, 2\ns_cselect_b32 s{S_B}, s{P_BIM}, s{P_BRE}\ns_cselect_b32 s{S_B+1}, s{P_BIM+1}, s{P_BRE+1}")
    p.e(f"s_mov_b32 s{S_B+2}, {640*1280}\ns_mov_b32 s{S_B+3}, 0x20000")
    first_loads(p, dma(0))
    p.e("s_branch K_Y\n.set SPLIT, 0\nK_Y:")
    c.start(p)
    early_loads(p, 'Y')
    L = ACC2 + 16
    p.e(f"v_lshrrev_b32 v{L}, 5, v0\nv_lshlrev_b32 v{L}, 4, v{L}\nv_bfe_u32 v{L+1}, v0, 1, 4\nv_add_u32 v{L}, v{L}, v{L+1}")
    p.e(f"v_add_u32 v{L}, s{sT1}, v{L}\nv_min_u32 v{L}, 639, v{L}\nv_lshlrev_b32 v{L}, 1, v{L}")
    for k, ptr in enumerate((P_LRE, P_LIM, P_LDT)):
        p.e(f"global_load_ushort v{L+1+k}, v{L}, s[{ptr}:{ptr+1}]", tag='tbl')
    ffn_dma_addr(p); ffn_srd(p)
    p.e(f"s_mul_i32 s{sDB}, s{sW}, {16*3072}\ns_mul_i32 s{sT0}, s{sI}, {0 if OPT.get('hotW') else 384}\ns_add_u32 s{sDB}, s{sDB}, s{sT0}\ns_add_u32 s{sDB}, s{sDB}, 256")
    common_addr(p)
    p.e(f"v_and_b32 v{t0}, 1, v{vL}\nv_bfe_u32 v{t1}, v{vL}, 1, 4\nv_lshl_add_u32 v{t1}, v{t0}, 4, v{t1}")
    p.e(f"v_bfe_u32 v{t2}, v{t1}, 1, 3\nv_xor_b32 v{t2}, v{t2}, v{t0}\nv_lshrrev_b32 v{t3}, 5, v{vL}\nv_xor_b32 v{t2}, v{t2}, v{t3}\nv_lshlrev_b32 v{t2}, 4, v{t2}")
    p.e(f"v_and_b32 v{t3}, 7, v{t1}\nv_lshl_add_u32 v{t2}, v{t3}, 7, v{t2}\nv_lshrrev_b32 v{t3}, 3, v{t1}\nv_mul_u32_u24 v{t3}, 5120, v{t3}")
    p.e(f"v_add_u32 v{t2}, v{t2}, v{t3}\nv_add_u32 v{vBR}, {Y_RING}, v{t2}")
    for s in range(1, 4): p.e(f"v_xor_b32 v{vBR+s}, {32*s}, v{vBR}")
    tr_addrs(p, sb(10))
    code_prefetch(p, 'Y')
    vE, vAG, vFL, vSTW, vSTR, vE2 = 252, 253, 254, vXD, vXD + 1, 242
    p.e(f"v_lshlrev_b32 v{vE}, 5, v0\nv_mul_u32_u24 v{vE2}, 48, v0")
    srd(p, S_AG, P_WS, 32 * 1280, AGG_OFF)
    p.e(f"s_mul_i32 s{sT0}, s{sI}, {32*1280}\ns_add_u32 s{S_AG}, s{S_AG}, s{sT0}\ns_addc_u32 s{S_AG+1}, s{S_AG+1}, 0")
    p.e(f"v_subrev_u32 v{t0}, 160, v0\nv_min_u32 v{t0}, v{t0}, v0\nv_lshlrev_b32 v{vFL}, 3, v{t0}\nv_mov_b32 v{t1}, {OOB}\nv_cmp_gt_u32 vcc, 160, v0\nv_cndmask_b32 v255, v{t1}, v{vFL}, vcc")
    ts(p)
    q = Prog()
    lam_consts(q, L, [1, 16, 128], False)
    O = L + 8
    q.e(f"v_and_b32 v{L}, 1, v0\nv_lshlrev_b32 v{L}, 31, v{L}\nv_xor_b32 v{L}, 0x80000000, v{L}")
    for n in range(3): q.e(f"v_xor_b32 v{O+2*n+1}, v{L}, v{O+2*n+1}")
    q.e(f"ds_write_b64 v{vE}, {V(O,2)} offset:{Y_TBL}\nds_write_b128 v{vE}, {V(O+2,4)} offset:{Y_TBL+16}")
    table = q.items
    p.extend(x_dma(1)); p.extend(dma(1))
    vtouch(p)
    p.e(NONCE_LD())
    rT = Ring(vT, 4, sb(10)); rB = Ring(vBR, 4, Y_RING)
    steps, r0, r1 = build_steps(c, 'S' * 10 + 'F' * 10, sb, dma, Y_NS, rT, rB, {}, {})
    p.extend(x_read(0))
    p.wait_vm(('slot', 0)); p.e("s_barrier")
    p.extend(flat(r0)); p.extend(flat(r1))
    ts(p)
    q = Prog()
    q.e(f"s_lshl_b32 s{sT0}, s{sW}, 10")
    for s in range(4): q.e(f"v_add_u32 v{t0+s}, s{sT0}, v{vBR+s}\nds_read_b128 {A(CSF+4*s,4)}, v{t0+s}")
    for s in range(4): q.e(f"ds_read_b128 {A(EXTW+4*s,4)}, v{vBR+s} offset:4096")
    cs_store_addr(q, f"s_add_u32 s{sT0}, s{sI}, 24")
    CB = ACC2 + 48
    for s in range(4): q.e(f"v_mfma_f32_32x32x16_bf16 {V(CB,16)}, {V(vONE,4)}, {A(CSF+4*s,4)}, {'0' if s == 0 else V(CB,16)}")
    for s in range(4): q.e(f"v_mfma_f32_32x32x16_bf16 {V(ACC2,16)}, {V(vONE,4)}, {A(EXTW+4*s,4)}, {'0' if s == 0 else V(ACC2,16)}")
    cs1 = q.items
    cs1s = code(f"v_mov_b32 v{CB+1}, s{sN}\nv_mov_b32 v{ACC2+1}, s{sN}\nbuffer_store_dwordx2 {V(CB,2)}, v{t4}, {S(S_WS)}, s{sU2} offen sc1\ns_lshl_b32 s{sT0}, s{sW}, 8\ns_sub_u32 s{sT0}, s{sU2}, s{sT0}\n"
                f"buffer_store_dwordx2 {V(ACC2,2)}, v{t4}, {S(S_WS)}, s{sT0} offen offset:1024 sc1\n"
                f"s_add_u32 s{sT0}, s{sMT}, 16\ns_mul_i32 s{sT0}, s{sT0}, 1280\n"
                f"buffer_store_dwordx2 {V(vZ,2)}, v255, {S(S_AG)}, s{sT0} offen sc1", 'pub')
    sl, su = stats_consume(c); cl, cu = cs_consume(c, 5, ACC2)
    ks_, kl, kc = k2_setup(c)
    side = cs1[:13] + [Deadline(5)] + items(stats_job) + nonce_get(c) + cs1[13:] + [Deadline(o.get('pg', 10)), Gate(o.get('pg', 10))] + stats_store() + cs1s + table + [Deadline(18)]
    G1_ = o.get('g1', 22)
    ex1 = ([Gate(o.get('tg', 12))] + touch() + [Deadline(o.get('tg', 12) + 2)] if o.get('touch', 0) else []) + [Gate(14)] + ks_ + [Deadline(G1_), Gate(G1_)] + sl + cl[0] + [Deadline(G1_ + 1)]
    c.lights = [(G1_ + 1, cl[1])]
    side += [Gate(o.get('gu', 31))] + su + cu + [Deadline(38), Gate(38)] + ext_read(5) + [Deadline(39)]
    q = Prog()
    q.e(f"v_and_b32 v{t0}, 31, v{vL}\nv_mul_u32_u24 v{t2}, 48, v{t0}\nv_lshlrev_b32 v{t0}, 5, v{t0}\nv_lshrrev_b32 v{t1}, 5, v0\nv_lshl_add_u32 v{vAG}, v{t1}, 2, v{t2}")
    for t in range(5): q.e(f"ds_read_b64 {V(C0+2*t,2)}, v{t0} offset:{Y_TBL + 1024*t}")
    side += q.items + [Deadline(40)]
    steps[39]['mf'] += ext_mfma(ACC1, 5, False); steps[39]['rd'] += [[], [], [], [], []]
    steps[40]['pre'] = ([] if o.get('ts') == 2 else [LazyStamp(ts)]) + steps[40]['pre']
    AS = o.get('async', 12)
    BF0 = o.get('bf0y', 46)
    cs2, cs2s = cs_produce_ffn(CSA, f"s_mul_i32 s{sT0}, s{sI}, 3\ns_add_u32 s{sT0}, s{sT0}, 2")
    side += [Gate(40)] + cs2[:10]
    LM, E0, GA, G1 = 244, RT + 4, RT + 12, TMP - 2
    q = Prog()
    def scale(tt):
        for t in range(5): q.e(f"v_mul_f32 v{ACC1+16*t+tt}, v{RT+tt}, v{ACC1+16*t+tt}")
    q.extend(cs2[10:])
    q.add(Deadline(45))
    scale(0); scale(1)
    q.extend(cs2s)
    q.e(f"ds_read_b128 {V(LM,4)}, v{vE} offset:{Y_TBL+16}")
    for tt in range(1, 16):
        for t in range(5):
            g = (ACC1 + 16 * t) if tt == 1 else (G1 + 2 * t + (tt & 1))
            q.e(f"v_fma_f32 v{G1+2*t+((tt+1)&1)}, v{C0+2*t}, v{g}, v{ACC1+16*t+tt}")
        if tt < 15: scale(tt + 1)
        for t in range(5):
            g = (ACC1 + 16 * t) if tt == 1 else (G1 + 2 * t + (tt & 1))
            q.e(f"v_fmac_f32_dpp v{G1+2*t+((tt+1)&1)}, v{g}, v{C0+2*t+1} {QP}")
    for t in range(5): q.e(f"ds_write_b32 v{vAG}, v{G1+2*t} offset:{AG_L + 16 + 1536*t}", tag='agw')
    side += q.items + [Deadline(4 * (AS - 1) + 2), Gate(4 * (AS - 1) + 2)]
    q = Prog()
    q.e(f"ds_read_b128 {V(E0,4)}, v{vE2} offset:{AG_L+16}\nds_read_b128 {V(E0+4,4)}, v{vE2} offset:{AG_L+32}")
    q.e(f"s_sub_u32 s{sBT}, 15, s{sMT}\ns_mul_i32 s{sBT}, s{sBT}, 1280")
    fill = code("\n".join(f"s_add_u32 s{S_J0+i}, s{sBT}, {1280 + 3840*i}" for i in range(5)) + f"\ns_add_u32 s{sBT+4}, s{sH}, {6*4096}\ns_nop 0")
    for k in range(1, 8):
        g = E0 if k == 1 else (GA + (k & 1))
        q.e(f"v_fma_f32 v{GA+((k+1)&1)}, v{LM}, v{g}, v{E0+k}"); q.add(fill[k - 1])
        q.e(f"v_fmac_f32_dpp v{GA+((k+1)&1)}, v{g}, v{LM+1} {QP}")
    q.e(f"v_mov_b32 v{GA+1}, s{sN}\nbuffer_store_dwordx2 {V(GA,2)}, v255, {S(S_AG)}, s{sBT} offen sc1", tag='pub')
    side += q.items + [Deadline(4 * (AS - 1) + 4)]
    q = Prog()
    q.e(f"v_and_b32 v{t0}, 1, v{vL}\nv_bfe_u32 v{t1}, v{vL}, 1, 4\nv_lshl_add_u32 v{t1}, v{t0}, 4, v{t1}\nv_bfe_u32 v{t2}, v{vL}, 4, 1\nv_xor_b32 v{t0}, v{t0}, v{t2}")
    q.e(f"v_lshrrev_b32 v{t2}, 5, v{vL}\nv_xor_b32 v{t0}, v{t0}, v{t2}\nv_bfe_u32 v{t2}, v{vL}, 2, 1\nv_lshl_add_u32 v{t0}, v{t0}, 1, v{t2}\nv_lshlrev_b32 v{t0}, 4, v{t0}")
    q.e(f"v_lshl_add_u32 v{t1}, v{t1}, 6, v{t0}\ns_mul_i32 s{sT0}, s{sW}, 10240\ns_add_u32 s{sT0}, s{sT0}, 98304\nv_add_u32 v{vSTW}, s{sT0}, v{t1}\nv_xor_b32 v229, 16, v{vSTW}")
    q.e(f"v_lshrrev_b32 v{t0}, 4, v{vL}\nv_lshlrev_b32 v{t1}, 9, v{t0}\nv_bfe_u32 v{t2}, v{vL}, 2, 2\nv_lshl_add_u32 v{t1}, v{t2}, 6, v{t1}\nv_lshrrev_b32 v{t2}, 1, v{t0}\nv_xor_b32 v{t0}, v{t0}, v{t2}")
    q.e(f"v_and_b32 v{t0}, 1, v{t0}\nv_bfe_u32 v{t2}, v{vL}, 3, 1\nv_lshl_add_u32 v{t0}, v{t0}, 1, v{t2}\nv_bfe_u32 v{t2}, v{vL}, 1, 1\nv_xor_b32 v{t0}, v{t0}, v{t2}\nv_lshl_add_u32 v{t1}, v{t0}, 4, v{t1}")
    q.e(f"v_and_b32 v{t0}, 1, v{vL}\nv_lshl_add_u32 v{t1}, v{t0}, 3, v{t1}\nv_add_u32 v{vSTR}, s{sT0}, v{t1}\nv_xor_b32 v230, 32, v{vSTR}")
    cl, cu = cs_consume(c, 4, CSA)
    TM0, TMB = c.TM0, c.TMB
    G2L = max(o.get('g2l', 53), BF0 + 1)
    ex2 = [Gate(G2L - 1)] + cl[0] + [Deadline(G2L)]
    c.lights.append((G2L, cl[1]))
    side += q.items + [Gate(o.get('g2', 61))] + cu
    LP = [CSA + 2 * i for i in range(8)] + [4, 6, 8, 10, 12, 14, 16]
    ldl = "\n".join(f"buffer_load_dwordx2 {V(LP[i],2)}, v{vFL}, {S(S_AG)}, s{S_J0+i//3} offen offset:{(i%3)*1280} sc1" for i in range(15))
    side += [Deadline(TM0 - 2), Gate(TM0 - 2)] + ext_read(4) + k2_flags(c) + [Deadline(TM0 + TMB)]
    c.lights.append((max(TM0 - 2, c.NST - o.get('g3', 12)), code(ldl)))
    c.lights.append((c.NST - o.get('gx1', 4), code(c.ldx1)))
    for k, tau in enumerate(c.t2[:-1]): side += [Gate(TM0 + TMB * (k + 1))] + code("s_nop 1") + ffn_epi(ACC2 + 16 * tau, 4 + (tau >> 1), (tau & 1) * 512) + [Deadline(TM0 + TMB * (k + 2))]
    q = Prog()
    q.extend(retry(c, ldl, tagcheck([r + 1 for r in LP]), (ldl.split('\n')[0], tagcheck([LP[0] + 1]))))
    for i in range(13, -1, -1):
        q.e(f"v_fmac_f32 v{LP[i]}, v{LM+2}, v{LP[i+1]}\nv_fmac_f32_dpp v{LP[i]}, v{LP[i+1]}, v{LM+3} {QP}")
    q.e(f"ds_write_b32 v{vE2}, v{LP[0]} offset:{AG_L+12}", tag='pw')
    for k in range(7):
        g = LP[0] if k == 0 else E0 + k - 1
        q.e(f"v_fmac_f32 v{E0+k}, v{LM}, v{g}\nv_fmac_f32_dpp v{E0+k}, v{g}, v{LM+1} {QP}")
    q.e(f"ds_write_b128 v{vE2}, {V(E0,4)} offset:{AG_L+16}\nds_write_b128 v{vE2}, {V(E0+4,4)} offset:{AG_L+32}", tag='pw')
    gch = q.items
    q = Prog()
    CY = [216, 217, 218, 219, 228]
    for t in range(5): q.e(f"ds_read_b32 v{CY[t]}, v{vAG} offset:{AG_L + 12 + 1536*t}")
    cy = q.items
    def scan(tiles):
        q = Prog()
        for tt in range(16):
            for t in tiles:
                g = CY[t] if tt == 0 else (ACC1 + 16 * t + tt - 1)
                q.e(f"v_fmac_f32 v{ACC1+16*t+tt}, v{C0+2*t}, v{g}")
            for t in tiles:
                g = CY[t] if tt == 0 else (ACC1 + 16 * t + tt - 1)
                q.e(f"v_fmac_f32_dpp v{ACC1+16*t+tt}, v{g}, v{C0+2*t+1} {QP}")
            for k in ([tt // 2 - 1] if (tt >= 2 and tt % 2 == 0) else []) + ([7] if tt == 15 else []):
                for t in tiles: q.e(f"v_cvt_pk_bf16_f32 v{ACC1+16*t+k}, v{ACC1+16*t+2*k}, v{ACC1+16*t+2*k+1}")
            if tt == 10:
                for t in tiles: q.e(f"ds_write_b128 v{vSTW}, {V(ACC1+16*t,4)} offset:{HT2_L + t*2048}")
        return q.items
    def outp(tiles):
        q = Prog()
        for t in tiles:
            R = ACC1 + 16 * t
            q.e(f"ds_write_b128 v229, {V(R+4,4)} offset:{HT2_L + t*2048}")
            for rt in range(2):
                for tq in range(2): q.e(f"ds_read_b64_tr_b16 {V(R+8+4*rt+2*tq,2)}, v{(vSTR, 230)[rt]} offset:{HT2_L + t*2048 + tq*256}")
        for t in tiles:
            R = ACC1 + 16 * t
            q.e(f"s_add_u32 s{sT2}, s85, {t*4096}")
            for rt in range(2): q.e(f"buffer_store_dwordx4 {V(R+8+4*rt,4)}, v{vL16}, {S(S_WS)}, s{sT2} offen offset:{rt*1024} sc1", tag='h')
        return q.items
    add_stage(c, BF0, [(24576 + 4096 * k, 46) for k in range(8)] + [(12288, 46), (159744, 46)] + [(Y_RING + 20480 * k + 16384, 46) for k in range(5)] + ([(sb(15) + 4096 * k, 66) for k in range(4)] if o.get('st15', 0) else []))
    c.nb = add_bpre(c, BF0, None)
    assert c.lend[G1_ + 1] < o.get('gu', 31) and c.lend[G2L] < 61
    resolve(steps)
    if o.get('noside'): side = nonce_get(c) + [Deadline(9)]
    weave(p, steps, side, base_rate=o.get('yrate', 3),
                 extra=[ex1 + [Gate(BF0 - o.get('kld', 5))] + kl + [Deadline(BF0 - o.get('kld', 5) + 1), Gate(BF0 - 1)] + kc + [Deadline(BF0)] + ex2])
    ts(p)
    p.e(f"s_mov_b32 s85, s{sBT+4}\nv_mov_b32 v{vKN}, v{vPT}\nv_mov_b32 v{vKF}, v{vFZ}")
    p.extend(unstage(c))
    tail = mk(c, 80) + c.chkx1 + merge(c.aload(0) + c.aload(1), merge(autogroup(gch), ffn_epi(ACC2 + 48, 5, 512), keep=True), 1.0) + mk(c, 81) + [Marker('lgkm', 'pw')] + code("s_barrier")
    OV = o.get('ov', 0)
    BR = brest(c); NB = min(len(BR), o.get('nbt', 0))
    tail += cy + merge(BR[:NB], scan([0, 1]), 1.0) + mk(c, 82)
    if OV == 0:
        tail += merge(outp([0, 1]), scan([2, 3]), 1.0) + mk(c, 83)
        tail += merge(outp([2, 3]), scan([4]) + outp([4])[:5], 1.0) + code(c.ldx) + outp([4])[5:]
        c.k2side = []
    c.k2b = [x for g in BR[NB:] for x in g.its]
    if OV == 0: pass
    elif OV == 1:
        tail += merge(outp([0, 1]) + c.aload(2), scan([2, 3, 4]), 1.0) + mk(c, 83) + code(c.ldx); c.a2 = True
        c.k2side = outp([2, 3, 4]) + [Deadline(2)]
    else:
        tail += mk(c, 83) + c.aload(2) + code(c.ldx); c.a2 = True
        c.k2side = merge(outp([0, 1]), scan([2, 3, 4]), 1.0) + outp([2, 3, 4]) + [Deadline(2)]
    p.extend(tail)
    ts(p)

def mk(c, n): return code(f'.set STEPMARK{c.typ}{n}, 0') if c.opt.get('st0') is not None else []
def merge(a, b, f=1.15, keep=False):
    out = []; k = 0
    for i, it in enumerate(b):
        out.append(it)
        while k < len(a) and k * len(b) <= i * len(a) * f:
            out.append(a[k]); k += 1
    out += a[k:]
    if keep: return out
    return [y for x in out for y in (x.its if isinstance(x, Group) else [x])]

vKW, vKF, vKN = 36, 37, 35
HOMES = [(A, 220), (A, 196), (V, 200), (V, 18)]
def plan_homes(c):
    KF = OPT.get('kf', 3)
    front = [('o', 0), ('o', 1), ('p', 0), ('p', 1), ('o', 2), ('o', 3), ('p', 2), ('p', 3)]
    moved = {4: [], 2: [('o', 2), ('o', 3)], 3: [('o', 3)]}[KF]
    front = [x for x in front if x not in moved]
    c.seq = front + [('p', i) for i in range(4, 11)] + moved + [('o', i) for i in range(4, 11)]
    c.NF = len(front); c.PL = c.NF + 6
    lastB = {i: max(u for u, (k, j) in enumerate(c.seq) if j == i) for i in range(11)}
    pool = [[A, 220, -9], [A, 196, -9], [V, 200, -9], [V, 18, -9]] + [[A, 16 * k, max(lastB[(16 * k) // 20], lastB[(16 * k + 15) // 20]) + 1] for k in range(5)]
    c.home = []; c.earliest = []
    for v in range(22):
        h = min(pool, key=lambda x: x[2])
        c.home.append((h[0], h[1])); c.earliest.append(h[2])
        h[2] = v + 1 + (1 if v in (c.PL - 1, 20) else 0)
def k2_flags(c):
    q = Prog()
    q.e(f"s_and_b32 s87, s{sSL}, 8\ns_lshl_b32 s86, s{sW}, 1\ns_add_u32 s87, s87, s86\ns_lshl_b32 s86, s{sMT}, 4\ns_add_u32 s87, s87, s86")
    q.e(f"s_lshl_b32 s87, s87, 7\ns_add_u32 s87, s87, {HF_OFF}\nv_mov_b32 v248, 0")
    c.ldx = f"buffer_load_dword v249, v248, {S(S_WS)}, s87 offen sc1"
    c.ldy = f"buffer_load_dword v250, v248, {S(S_WS)}, s87 offen offset:128 sc1"
    c.chkx = retry(c, c.ldx, tagcheck([249]))
    c.ldx1 = f"buffer_load_dword v250, v248, {S(S_WS)}, s87 offen offset:4 sc1"
    if c.typ == 'Y': c.chkx1 = retry(c, c.ldx1, tagcheck([250]))
    plan_homes(c)
    def aload(u):
        kind, i = c.seq[u]; R, b = c.home[u]; s_ = sAP if kind == 'p' else sAO
        return code(f"s_add_u32 s{sBD}, s{s_}, s{TAB[i]}\n" + "\n".join(f"buffer_load_dwordx4 {R(b+4*rt,4)}, v{vL16}, {S(S_WS)}, s{sBD} offen offset:{1024*rt} sc1" for rt in range(4)))
    c.aload = aload
    return q.items

def k2(p, c):
    ts = c.ts; o = c.opt
    AP, AO = 40, 120
    seq = c.seq; aload = c.aload; ldy = c.ldy
    isY = c.typ == 'Y'
    mark = lambda n: p.e(f'.set STEPMARK{c.typ}{n}, 0') if o.get('st0') is not None else None
    fl = code(f"buffer_store_dword v{vKN}, v{vKF}, {S(S_WS)}, s{sFL} offen sc1", 'flag')
    if not isY: p.e(f"v_mov_b32 v{vKN}, v{vPT}\nv_mov_b32 v{vKF}, v{vFZ}")
    q = Prog()
    srd(q, S_W1, P_D, 1280)
    srd(q, S_W3, P_OUT, 2048 * 2560)
    q.e(f"s_and_b32 s{sU0}, s{sSL}, 7\ns_lshr_b32 s{sU1}, s{sSL}, 3\ns_lshl_b32 s{sT1}, s{sMT}, 1\ns_add_u32 s{sU1}, s{sU1}, s{sT1}")
    q.e(f"s_lshl_b32 s49, s{sU1}, 6\ns_mul_i32 s50, s{sU0}, 160")
    q.e(f"s_lshl_b32 s{sT0}, s{sW}, 4\ns_add_u32 s49, s49, s{sT0}\ns_mul_i32 s51, s49, 1280\ns_add_u32 s61, s51, s50\ns_lshl_b32 s61, s61, 1")
    q.e(f"s_and_b32 s59, s50, 127\ns_andn2_b32 s{sT1}, s50, 127\ns_add_u32 s51, s51, s{sT1}\ns_mul_i32 s60, s{sW}, 4608\ns_add_u32 s60, s60, {XE_L}")
    q.e(f"v_lshrrev_b32 v4, 4, v1\nv_mul_u32_u24 v4, 1280, v4\nv_and_b32 v5, 15, v1\nv_lshl_add_u32 v4, v5, 4, v4\nv_lshlrev_b32 v5, 2, v1")
    for i in range(4):
        q.e(f"s_mov_b32 m0, s60\nbuffer_load_dwordx4 v4, {S(S_X)}, s51 offen offset:{1024*i} lds", tag='xe')
        if i < 3: q.e(f"s_add_u32 s51, s51, {4*1280-1024}")
    q.e(f"s_add_u32 m0, s60, 4096\nbuffer_load_dword v5, {S(S_W1)}, s50 offen lds", tag='xe')
    q.e(f"s_add_u32 s59, s59, s60\ns_and_b32 s49, s49, 127\ns_lshl_b32 s49, s49, 3")
    q.e(f"s_lshl_b32 s{sT0}, s{sU1}, 3\ns_add_u32 s{sT0}, s{sT0}, s{sU0}\ns_mul_i32 s62, s{sT0}, 28672\ns_add_u32 s62, s62, {PX_OFF}")
    q.e(f"s_xor_b32 s{sT0}, s{sT0}, 8\ns_mul_i32 s63, s{sT0}, 28672\ns_add_u32 s63, s63, {PX_OFF}")
    q.e(f"v_lshlrev_b32 v17, 4, v0")
    q.e(f"v_and_b32 v4, 15, v1\nv_mul_u32_u24 v4, 336, v4\nv_lshrrev_b32 v5, 4, v1\nv_lshl_add_u32 v4, v5, 4, v4\ns_mul_i32 s44, s{sW}, 21504\nv_add_u32 v{vKW}, s44, v4")
    EL, EO = 6, 11
    EX, ED, ES = 216, 226, 236
    q.e(f"s_mul_i32 s44, s{sW}, {16*336}")
    rdl = Prog(); rdl.wait_vm('xe')
    for u in range(5):
        q.e(f"v_add_u32 v4, {64*u}, v1\nv_mul_u32_u24 v5, 3277, v4\nv_lshrrev_b32 v5, 16, v5\nv_lshlrev_b32 v4, 4, v4\nv_lshl_add_u32 v2, v5, 4, v4\nv_add_u32 v{EL+u}, s44, v2")
        q.e(f"v_mul_u32_u24 v2, 320, v5\nv_sub_u32 v4, v4, v2\nv_lshl_add_u32 v{EO+u}, v2, 3, v4\nv_lshrrev_b32 v4, 1, v4")
        q.e(f"v_lshl_add_u32 v2, v5, 8, v4\nv_add_u32 v{EX+2*u}, s59, v2\nv_add_u32 v{ED+2*u}, s60, v4\nv_lshlrev_b32 v5, 3, v5\nv_add_u32 v{ES+2*u}, s49, v5")
        rdl.e(f"ds_read_b64 {V(EX+2*u,2)}, v{EX+2*u}\nds_read_b64 {V(ED+2*u,2)}, v{ED+2*u} offset:4096\nds_read_b64 {V(ES+2*u,2)}, v{ES+2*u} offset:{STL}")
    ksetup = q.items
    if not isY:
        p.extend(merge(brest(c), []))
        p.extend(mk(c, 82))
        p.wait_vm('h'); p.e("s_barrier"); p.extend(fl)
        p.extend(ksetup)
        p.e(c.ldx)
        p.extend(mk(c, 83))
        ts(p)
        p.extend(c.chkx)
        for u in range(3): p.extend(aload(u))
    elif not getattr(c, 'a2', False):
        p.extend(aload(2))
    ts(p)
    steps = []
    for u, (kind, i) in enumerate(seq):
        R, a = c.home[u]; acc = AP if kind == 'p' else AO
        mf = []
        for rt in range(4):
            for ct in range(5):
                d = acc + 4 * (5 * rt + ct)
                mf += code(f"v_mfma_f32_16x16x32_bf16 {V(d,4)}, {A(BH[5*i+ct],4)}, {R(a+4*rt,4)}, {'0' if i == 0 else V(d,4)}")
        steps.append(dict(pre=[], mf=mf, rd=[[] for _ in mf]))
    NF, PL = c.NF, c.PL
    CU = NF - (o.get('cuy', 2) if isY else o.get('cux', 3))
    C2 = o.get('c2', 2)
    if isY: steps[C2]['pre'] += c.chkx
    steps[CU]['pre'] += retry(c, ldy, tagcheck([250])) + [LazyStamp(ts)]
    steps[CU - 1]['rd'][o.get('lyg', 10)] += code(ldy)
    g = 0; AS_ = o.get('as', 4)
    for v in range(3, 22):
        e = max(c.earliest[v], v - o.get('ad', 6), 0)
        if isY and v >= 4: e = max(e, C2)
        if v >= NF: e = max(e, CU)
        g = max(g, 20 * e)
        its = aload(v)
        st_ = AS_ if g < 20 * (v - 2) else 2
        steps[g // 20]['rd'][g % 20] += [its[0]]
        for k in range(4): steps[g // 20]['rd'][g % 20] += [its[k + 1]]; g += st_
        assert g <= 20 * v, (v, g)
        if o.get('vlog'): print(c.typ, v, c.home[v][1], g, file=sys.stderr)
    def wr(acc, rt):
        return code("\n".join(f"ds_write_b128 v{vKW}, {V(acc+4*(5*rt+ct),4)} offset:{rt*16*336 + ct*64}" for ct in range(5)), 'pw')
    side = []
    if isY:
        side += c.k2side + ksetup + [Deadline(o.get('ksd', 2))]
        steps[o.get('fu', 3)]['rd'][o.get('fg', 4)] += [Marker('vm', 'h')] + code("s_barrier") + fl
    M = f"s{sMASK}"
    q = Prog()
    PT = [r for u in range(5) for r in (EX + 2 * u, EX + 2 * u + 1, ED + 2 * u, ED + 2 * u + 1)]
    Xr = [2, 3, 4, 5]; Dr = [246, 247, 252, 253]; Yr = [254, 255, 16, 34]
    for u in range(5):
        q.e(f"v_lshlrev_b32 v{Xr[0]}, 16, v{EX+2*u}\nv_and_b32 v{Xr[1]}, {M}, v{EX+2*u}\nv_lshlrev_b32 v{Xr[2]}, 16, v{EX+2*u+1}\nv_and_b32 v{Xr[3]}, {M}, v{EX+2*u+1}")
        q.e(f"v_lshlrev_b32 v{Dr[0]}, 16, v{ED+2*u}\nv_and_b32 v{Dr[1]}, {M}, v{ED+2*u}\nv_lshlrev_b32 v{Dr[2]}, 16, v{ED+2*u+1}\nv_and_b32 v{Dr[3]}, {M}, v{ED+2*u+1}")
        q.e(f"v_and_b32 v{ES+2*u+1}, {M}, v{ES+2*u+1}\nv_mul_f32 v{ES+2*u+1}, v{ES+2*u+1}, v{ES+2*u}")
        for i in range(4): q.e(f"v_fma_f32 v{Yr[i]}, v{Xr[i]}, v{ES+2*u}, v{ES+2*u+1}")
        rnd = (f"v_cvt_pk_bf16_f32 v{Yr[0]}, v{Yr[0]}, v{Yr[1]}\nv_cvt_pk_bf16_f32 v{Yr[2]}, v{Yr[2]}, v{Yr[3]}\n"
               f"v_and_b32 v{Yr[1]}, {M}, v{Yr[0]}\nv_lshlrev_b32 v{Yr[0]}, 16, v{Yr[0]}\nv_and_b32 v{Yr[3]}, {M}, v{Yr[2]}\nv_lshlrev_b32 v{Yr[2]}, 16, v{Yr[2]}")
        q.e(rnd)
        for i in range(4): q.e(f"v_mul_f32 v{Yr[i]}, v{Yr[i]}, v{Dr[i]}")
        q.e(rnd)
        for i in range(4): q.e(f"v_add_f32 v{PT[4*u+i]}, v{Xr[i]}, v{Yr[i]}")
    pre = rdl.items + q.items
    def fuse(u, acc):
        a, b = steps[u], steps[u + 1]
        mf = []; rd = []
        for rt in range(4):
            mf += a['mf'][5 * rt:5 * rt + 5] + b['mf'][5 * rt:5 * rt + 5]
        rd = a['rd'] + b['rd']
        for rt in range(3):
            w = wr(acc, rt)
            for k in range(5): rd[10 * (rt + 1) + 3 + k] += [w[k]]
        a['mf'], a['rd'] = mf[:20], rd[:20]; b['mf'], b['rd'] = mf[20:], rd[20:]
    fuse(PL - 1, AP); fuse(20, AO)
    w = wr(AP, 3)
    for k in range(5): steps[PL + 1]['rd'][3 + k] += [w[k]]
    steps[PL + 1]['rd'][12] += [Marker('lgkm', 'pw')] + code("s_barrier")
    q = Prog()
    GR = AP + 48
    gi = lambda f: GR + 4 * (f // 3) + f % 3
    sent = [0]
    PXB = o.get('pxb', 1); NG, NV = (4, 10) if PXB else (7, 20)
    def send(upto):
        while sent[0] < NG and (3 * sent[0] + 2 < upto or upto == NV):
            g = sent[0]; sent[0] += 1
            q.e(f"v_mov_b32 v{GR+4*g+3}, s{sN}\nbuffer_store_dwordx4 {V(GR+4*g,4)}, v17, {S(S_WS)}, s63 offen sc1\ns_add_u32 s63, s63, 4096")
    def red(u):
        T = AP + 16 * (u % 3)
        for i in range(4): q.e(f"v_add_f32 v{T+i}, v{T+i}, v{T+4+i}\nv_add_f32 v{T+8+i}, v{T+8+i}, v{T+12+i}")
        if PXB:
            for i in range(4): q.e(f"v_add_f32 v{T+i}, v{T+i}, v{T+8+i}")
            for i in range(2): q.e(f"v_cvt_pk_bf16_f32 v{gi(2*u+i)}, v{T+2*i}, v{T+2*i+1}")
            send(2 * u + 2)
        else:
            for i in range(4): q.e(f"v_add_f32 v{gi(4*u+i)}, v{T+i}, v{T+8+i}")
            send(4 * u + 4)
    for u in range(5):
        T = AP + 16 * (u % 3)
        for w in range(4): q.e(f"ds_read_b128 {V(T+4*w,4)}, v{EL+u} offset:{w*21504}")
        if u >= 2: red(u - 2)
    red(3); red(4)
    RG = AP
    ldp = "\n".join(f"buffer_load_dwordx4 {V(RG+4*g,4)}, v17, {S(S_WS)}, s{70+g} offen sc1" for g in range(NG))
    if o.get('cp2', 1):
        L = f"{c.typ}_cp2"
        steps[max(CU, 5)]['rd'][19] += code(f"s_getpc_b64 s[90:91]\n{L}:\nv_lshlrev_b32 v4, 7, v0\nv_min_u32 v4, {c.typ}_end-{L}, v4\nglobal_load_dword v250, v4, s[90:91]")
    side += ([Gate(CU - 2 if isY else 1)] + pre + [Deadline(CU)] if o.get('pe', 1) else [Gate(max(CU + 1, 6))] + pre + [Deadline(PL - 1)]) + [Gate(PL + 2)] + q.items + [Deadline(PL + 4)] + code("\n".join(f"s_add_u32 s{70+g}, s62, {4096*g}" for g in range(NG))) + [Deadline(20)]
    side += [Gate(o.get('lpu', 20))] + code(ldp)
    steps[20]['rd'][0] += code("s_barrier")
    if o.get('st0') is not None:
        for u, st in enumerate(steps): st['pre'] = code(f'.set STEPMARK{c.typ}{84+u}, 0') + st['pre']
    resolve(steps)
    if o.get('dk2') is not None: steps[o['dk2']]['pre'] += code('s_sleep 36')
    weave(p, steps, side, base_rate=1, extra=[(c.k2b + [Deadline(o.get('bd', 5))]) if isY else []])
    ts(p); mark(106)
    p.extend(wr(AO, 3))
    p.wait_lgkm('pw')
    p.e("s_barrier")
    mark(107)
    for u in range(5):
        for w in range(4): p.e(f"ds_read_b128 {V(AO+16*u+4*w,4)}, v{EL+u} offset:{w*21504}")
        if u == 2:
            p.extend(retry(c, ldp, tagcheck([RG + 4 * g + 3 for g in range(NG)])))
            if PXB:
                for d in range(10):
                    r = RG + 4 * (d // 3) + d % 3
                    p.e(f"v_lshlrev_b32 v{RG+16+d}, 16, v{r}\nv_and_b32 v{r}, {M}, v{r}")
                for d in range(10):
                    r = RG + 4 * (d // 3) + d % 3
                    p.e(f"v_add_f32 v{PT[2*d]}, v{PT[2*d]}, v{RG+16+d}\nv_add_f32 v{PT[2*d+1]}, v{PT[2*d+1]}, v{r}")
            else:
                for f in range(20): p.e(f"v_add_f32 v{PT[f]}, v{PT[f]}, v{RG + 4*(f//3) + f%3}")
    mark(108)
    for u in range(5):
        R = AO + 16 * u
        for i in range(4): p.e(f"v_add_f32 v{R+i}, v{R+i}, v{R+4+i}\nv_add_f32 v{R+8+i}, v{R+8+i}, v{R+12+i}")
        for i in range(4): p.e(f"v_add_f32 v{R+i}, v{R+i}, v{PT[4*u+i]}")
        for i in range(4): p.e(f"v_add_f32 v{R+i}, v{R+i}, v{R+8+i}")
        p.e(f"buffer_store_dwordx4 {V(R,4)}, v{EO+u}, {S(S_W3)}, s61 offen{NT('nto')}{' sc1' if OPT.get('osc', 1) else ''}{' sc0' if OPT.get('osc', 1) == 2 else ''}")
    mark(109)
    if o.get('st0') is not None: p.e("s_waitcnt vmcnt(0)"); mark(110); p.e("s_nop 15\ns_nop 15\ns_nop 15"); mark(111)
    ts(p)

HEADER = open('parallel_sum__ssm_conv_s5__glu_gated_swiglu__prompt.s.ref').read().split('; Override launch')[0]

def profile(txt, typ):
    out = []; k = 2; sites = []; nm = 0
    lo = OPT.get('prof0', 0)
    for l in txt.split('\n'):
        if 'mfma' in l: nm += 1
        if 's_memrealtime' in l and k > 2: k = 100
        hit = ('vmcnt' in l or 's_barrier' in l or 's_cbranch_vccnz' in l or '_slow' in l) and nm >= lo and k < 62
        if OPT['prof'] == 2: hit = ('buffer_' in l or 'global_' in l) and nm >= lo and k < 62
        if hit and '_slow' in l:
            out.append("  s_memtime s[0:1]"); out.append(l); pend = True; sites.append((k, nm, l.strip())); continue
        if OPT['prof'] == 1 and l.endswith('_ret:') and out[-2].startswith("  s_memtime s[0:1]"):
            out.append(l); out.append(f"  s_memtime s[2:3]\n  s_waitcnt lgkmcnt(0)\n  s_sub_u32 s2, s2, s0\n  s_or_b32 s2, s2, 1\n  v_writelane_b32 v251, s2, {k}"); k += 1; continue
        if hit:
            out.append(f"  s_memtime s[0:1]\n{l}\n  s_memtime s[2:3]\n  s_waitcnt lgkmcnt(0)\n  s_sub_u32 s2, s2, s0\n  s_or_b32 s2, s2, 1\n  v_writelane_b32 v251, s2, {k}")
            sites.append((k, nm, l.strip())); k += 1
        else: out.append(l)
    print(typ, "sites:", [(b, ('D' if ' lds' in c else 'S' if 'store' in c else 'L') if 'buffer' in c or 'global' in c else c.replace('s_waitcnt ', '').replace('s_cbranch_', '')) for a, b, c in sites], file=sys.stderr)
    return '\n'.join(out)

def build(opt):
    OPT.update(opt)
    ph = Prog(); setup(ph, opt)
    ph.e(f"s_bitcmp1_b32 s{sSL}, 0\ns_cbranch_scc0 K_X")
    body = ph.finalize() + "\n"
    sx = [it for it in ph.items if isinstance(it, I) and it.tag == 'cpf' and it.kind == 'vm']
    parts = {}
    for typ, fn in (('X', k1_X), ('Y', k1_Y)):
        c = Ctx(typ, opt)
        p = Prog()
        if typ == 'X': p.e("K_X:")
        p.add(Marker('assume_vm', sx))
        def save_id(p):
            if opt.get('ts'): p.e('v_mov_b32 v251, 0')
            p.e("s_memrealtime s[2:3]")
        def start(p, c=c):
            c.ts(p, True); c.ts(p)
            if opt.get('prof') or opt.get('st0') is not None: c.ts.on = False
        c.save_id = save_id; c.start = start
        fn(p, c)
        k2(p, c)
        if opt.get('prof') or opt.get('st0') is not None: c.ts.on = True; c.ts.n = 63
        if c.ts.on:
            p.wait_all(); c.ts(p, True); c.ts.dump(p)
        p.e(f"{typ}_end:\ns_endpgm")
        st = {}
        txt = p.finalize(st)
        if opt.get('prof'): txt = profile(txt, typ)
        if opt.get('st0') is not None:
            out = []
            for l in txt.split('\n'):
                if 'STEPMARK' in l:
                    k = int(l.split(',')[0].split(typ)[-1]) - opt['st0']
                    if 0 <= k <= 60:
                        a = 2 * (k & 1)
                        if k > 0: out.append(f"  v_writelane_b32 v251, s{2-a}, {k}")
                        if k < 60: out.append(f"  s_memtime s[{a}:{a+1}]")
                else: out.append(l)
            txt = '\n'.join(out)
        import re as _re
        slow = [q for q in c.slow if _re.search(r'(\w+)_slow:', q).group(1) + '_ret:' in txt]
        if opt.get('nodma'): txt = '\n'.join(l for l in txt.split('\n') if not (' lds' in l and 'buffer_load' in l))
        if opt.get('nomfma'): txt = '\n'.join(l for l in txt.split('\n') if not ('32x32x16' in l))
        if opt.get('nowait'): txt = '\n'.join(l for l in txt.split('\n') if not ('vmcnt' in l and 'vmcnt(0)' not in l))
        if opt.get('nost'): txt = '\n'.join(l for l in txt.split('\n') if not ('buffer_store_dwordx4' in l and 's61' not in l))
        if opt.get('noA'): txt = '\n'.join(l for l in txt.split('\n') if not ('buffer_load_dwordx4' in l and 's65 offen offset' in l))
        if opt.get('noB'): txt = '\n'.join(l for l in txt.split('\n') if not ('buffer_load_dwordx4' in l and ('s64 offen' in l or 's65 offen sc1 lds' in l)))
        if opt.get('nok2'): txt = '\n'.join(l for l in txt.split('\n') if not ('16x16x32' in l))
        if opt.get('nosmall'): txt = '\n'.join(l for l in txt.split('\n') if not (('buffer_' in l or 'global_' in l) and 'dwordx4' not in l and 'v211' not in l and 'v251' not in l))
        if opt.get('nolds'): txt = '\n'.join(l for l in txt.split('\n') if not ('ds_read' in l))
        parts[typ] = txt + "\n" + "\n".join(slow) + "\n"
        print(typ, st, file=sys.stderr)
    y0, y1 = parts['Y'].split("  .set SPLIT, 0\n")
    body += y0 + parts['X'] + y1
    body += "K_end:\n  s_endpgm\n"
    k = NAME + "_kernel"
    if opt.get('plain'): body = body.replace(' sc1', '')
    if opt.get('plainst'): body = '\n'.join(l.replace(' sc1', '') if 'buffer_store' in l else l for l in body.split('\n'))
    s = HEADER + "; @launch grid=(256,1,1) block=(256,1,1) lds=163840\n"
    s += f'.amdgcn_target "amdgcn-amd-amdhsa--gfx950"\n.text\n.globl {k}\n.p2align 8\n.type {k},@function\n{k}:\n{body}'
    s += '.section .rodata,"a"\n' + kd(k, 512, 102, 256)
    return s

if __name__ == '__main__':
    opt = {}
    for a in sys.argv[2:]:
        k, v = a.split('='); opt[k] = int(v)
    open(sys.argv[1], 'w').write(build(opt))
```

```python
import sys, struct
from asmgen import Prog, I, Marker
from sched import weave, Gate, Deadline, Group, autogroup
from common import kd

NAME = "parallel_sum__ssm_conv_s5__glu_gated_swiglu__prompt"
H_OFF = 0
W2S_OFF = 32 * 88 * 4096
ST_OFF = W2S_OFF + 8 * 88 * 5120
AGG_OFF = ST_OFF + 32768
CS_OFF = AGG_OFF + 8 * 32 * 1280
HF_OFF = CS_OFF + 32 * 12800
WF_OFF = HF_OFF + 256 * 128
PX_OFF = WF_OFF + 128 * 128
WS_USED = PX_OFF + 256 * 7 * 4096
TS_OFF = 24 << 20
LOG2E, NLOG2E, INV2PI, OOB = 0x3fb8aa3b, 0xbfb8aa3b, 0x3e22f983, 0x7f000000
def f2u(x): return struct.unpack('<I', struct.pack('<f', x))[0]

S_X, S_W1, S_W3, S_B, S_WS, S_J0, S_J1, S_DBG, S_AG = 4, 8, 12, 16, 20, 24, 28, 32, 36
sMT, sSL, sW, sI, sT0, sT1, sT2, sT3 = 40, 41, 42, 43, 44, 45, 46, 47
sXR = 48
sMASK, sFL, sLB, sD0, sD1, sH, sLBS, sBT = 52, 53, 54, 55, 56, 57, 58, 59
P_X, P_LRE, P_LIM, P_BRE, P_BIM, P_CRE, P_CIM, P_LDT, P_D, P_BX, P_W1, P_W3, P_W2, P_OUT, P_DBG, P_WS = [64 + 2 * i for i in range(16)]
sKX, sKB, sDB, sROT, sU0, sU1 = 96, 97, 98, 99, 100, 101
sSP = 89
sU2, sU3 = 82, 83
sN = 92

OPT = {}
def NT(k): return ' nt' if OPT.get(k) else ''
def S(d): return f"s[{d}:{d+3}]"
def V(a, n=1): return f"v[{a}:{a+n-1}]" if n > 1 else f"v{a}"
def A(a, n=1): return f"a[{a}:{a+n-1}]" if n > 1 else f"a{a}"
QP = "quad_perm:[1,0,3,2] row_mask:0xf bank_mask:0xf"
def items(f, *a):
    q = Prog(); f(q, *a); return q.items
def code(text, tag=None):
    q = Prog(); q.e(text, tag); return q.items

def srd(p, d, ptr, nrec, add=0):
    if add == 0: p.e(f"s_mov_b32 s{d}, s{ptr}\ns_mov_b32 s{d+1}, s{ptr+1}")
    elif add > 0: p.e(f"s_add_u32 s{d}, s{ptr}, {add}\ns_addc_u32 s{d+1}, s{ptr+1}, 0")
    else: p.e(f"s_sub_u32 s{d}, s{ptr}, {-add}\ns_subb_u32 s{d+1}, s{ptr+1}, 0")
    p.e(f"s_mov_b32 s{d+2}, {nrec}\ns_mov_b32 s{d+3}, 0x20000")

class Stamper:
    def __init__(self, on): self.on = on; self.n = 0
    def it(self, real=False):
        if not self.on: return []
        if OPT.get('rt') == 1: real = True
        if OPT.get('rt') == 2:
            n = self.n; self.n += 2
            return code(f"s_memrealtime s[0:1]\ns_memtime s[2:3]\ns_waitcnt lgkmcnt(0)\nv_writelane_b32 v251, s0, {n}\nv_writelane_b32 v251, s2, {n+1}")
        n = self.n; self.n += 1
        return code(f"{'s_memrealtime' if real else 's_memtime'} s[0:1]\ns_waitcnt lgkmcnt(0)\nv_writelane_b32 v251, s0, {n}")
    def __call__(self, p, real=False): p.extend(self.it(real))
    def dump(self, p):
        if not self.on: return
        p.wait_all()
        p.e(f"s_lshr_b32 s93, s{sMT}, 2\ns_lshr_b32 s3, s{sSL}, 3\ns_lshl_b32 s3, s3, 2\ns_add_u32 s93, s93, s3\ns_and_b32 s3, s{sMT}, 3\ns_lshl_b32 s3, s3, 3\ns_add_u32 s93, s93, s3\ns_and_b32 s3, s{sSL}, 7\ns_lshl_b32 s3, s3, 5\ns_add_u32 s93, s93, s3")
        if OPT.get('dbgout'):
            p.e(f"s_lshl_b32 s3, s93, 2\ns_add_u32 s3, s3, s{sW}\ns_cmp_eq_u32 s3, {4*OPT['dbgout']}\ns_cselect_b32 s3, 4, {OOB}")
            p.e(f"v_readlane_b32 s0, v251, 0\nv_subrev_u32 v251, s0, v251\nv_lshlrev_b32 v3, 2, v1\nv_add_u32 v3, s3, v3\nbuffer_store_dword v251, v3, {S(S_DBG)}, 0 offen")
            return
        srd(p, 4, P_WS, TS_OFF + (1 << 20))
        p.e(f"v_lshlrev_b32 v3, 2, v1\ns_lshl_b32 s3, s93, 2\ns_add_u32 s3, s3, s{sW}\ns_lshl_b32 s3, s3, 8\ns_add_u32 s3, s3, {TS_OFF}")
        p.e("buffer_store_dword v251, v3, s[4:7], s3 offen")

class LazyStamp:
    def __init__(self, ts): self.ts = ts
def resolve(steps):
    for st in steps:
        out = []
        for it in st['pre']:
            out += it.ts.it() if isinstance(it, LazyStamp) else [it]
        st['pre'] = out
vL = 1
vXD, vXC = 2, 4
vSR = 6
vD, vDS, vDC = 10, 12, 13
vBR, vT, vTW, vH = 14, 18, 22, 23
vONE, vEX = 24, 28
vTMP = 32
ACC1, ACC2, CSA, TMP = 40, 120, 184, 200
vFZ, vPA, vPV, vPT, vC1, vC2, vL16, vZ = 208, 209, 39, 211, 212, 213, 38, 210
RT = 216
C0 = 232
XF, BF, EXTW, CSF = 0, 160, 220, 240
t0, t1, t2, t3, t4, t5 = range(vTMP, vTMP + 6)

XS = 0
X_JOB, X_RING, X_NS, X_SLOT = 49152, 81920, 5, 16384
Y_TBL, Y_RING, Y_NS, Y_SLOT = 49152, 57344, 5, 20480
EXT_L = XS + 16384
STL = 21504
XE_L = 32768
AG_L = XS
HT2_L = 0

class Ctx:
    def __init__(self, typ, opt):
        self.typ = typ; self.opt = opt; self.slow = []; self.npoll = 0
        self.ts = Stamper(opt.get('ts'))

def bf16r(p, v): p.e(f"v_cvt_pk_bf16_f32 v{v}, v{v}, v{v}\nv_and_b32 v{v}, s{sMASK}, v{v}")

def retry(c, loads, check, probe=None):
    k = c.npoll; c.npoll += 1
    L = f"{c.typ}_poll{k}"
    q = Prog()
    q.e(f"{L}_slow:\ns_mov_b32 s{sSP}, 0x40000\n{L}_lp:\ns_sleep {OPT.get('sleep', 1)}\ns_sub_u32 s{sSP}, s{sSP}, 1\ns_cmp_eq_u32 s{sSP}, 0\ns_cbranch_scc1 {L}_ret")
    if probe and OPT.get('probe', 0):
        q.e(probe[0] + "\ns_waitcnt vmcnt(0)\n" + probe[1] + f"\ns_cbranch_vccnz {L}_lp")
    q.e(loads + "\ns_waitcnt vmcnt(0)\n" + check)
    q.e(f"s_cbranch_vccnz {L}_lp\ns_branch {L}_ret")
    c.slow.append(q.finalize())
    if OPT.get('nospin') and 'v211' not in check: return code(check + f"\n{L}_ret:")
    return code(check + f"\ns_cbranch_vccnz {L}_slow\n{L}_ret:")
def retry2(c, loads, regs, tmp, sp):
    k = c.npoll; c.npoll += 1
    L = f"{c.typ}_poll{k}"
    chk = f"v_xor_b32 v{tmp}, s{sN}, v{regs[0]}\n" + "".join(f"v_bitop3_b32 v{tmp}, v{tmp}, v{r}, s{sN} bitop3:0xf6\n" for r in regs[1:]) + f"v_cmp_ne_u32 s[{sp}:{sp+1}], 0, v{tmp}\ns_cmp_lg_u64 s[{sp}:{sp+1}], 0"
    q = Prog()
    q.e(f"{L}_slow:\ns_mov_b32 s{sSP}, 0x40000\n{L}_lp:\ns_sleep {OPT.get('sleep', 1)}")
    q.e(loads + "\ns_waitcnt vmcnt(0)\n" + chk)
    q.e(f"s_cbranch_scc0 {L}_ret\ns_sub_u32 s{sSP}, s{sSP}, 1\ns_cmp_lg_u32 s{sSP}, 0\ns_cbranch_scc1 {L}_lp\ns_branch {L}_ret")
    c.slow.append(q.finalize())
    if OPT.get('nospin'): return code(chk + f"\n{L}_ret:")
    return code(chk + f"\ns_cbranch_scc1 {L}_slow\n{L}_ret:")
def tagcheck(regs):
    regs = regs[::-1]
    t = f"v_xor_b32 v{vPV}, s{sN}, v{regs[0]}\n"
    for r in regs[1:]: t += f"v_bitop3_b32 v{vPV}, v{vPV}, v{r}, s{sN} bitop3:0xf6\n"
    return t + f"v_cmp_ne_u32 vcc, 0, v{vPV}"
NONCE_LD = lambda: f"buffer_load_dword v{vPT}, v{vZ}, {S(S_DBG)}, 0 offen sc1"
def nonce_get(c):
    return retry(c, NONCE_LD(), f"v_cmp_eq_u32 vcc, 0, v{vPT}") + code(f"v_readfirstlane_b32 s{sN}, v{vPT}")
def flag(soff):
    return code(f"buffer_store_dword v{vPT}, v{vFZ}, {S(S_WS)}, {soff} offen sc1", 'flag')

def nextkb(s, unit):
    return f"s_add_u32 s{s}, s{s}, {unit}\ns_cmp_eq_u32 s{s}, {10*unit}\ns_cselect_b32 s{s}, 0, s{s}"

def setup(p, opt):
    p.e("s_cmp_ge_u32 s2, 256\ns_cbranch_scc1 K_end")
    p.e("s_load_dwordx16 s[64:79], s[0:1], 0\ns_load_dwordx16 s[80:95], s[0:1], 64")
    p.e(f"v_and_b32 v{vL}, 63, v0\nv_lshrrev_b32 v{t0}, 6, v0\nv_lshlrev_b32 v{vL16}, 4, v{vL}")
    p.e(f"v_readfirstlane_b32 s{sW}, v{t0}")
    for i in range(opt.get('d0', 0)): p.e('s_sleep 36')
    for i in range(opt.get('pad', 0)): p.e(f"s_mov_b32 s{sT3}, 0x12345")
    MB = opt.get('mb', 3)
    p.e(f"s_and_b32 s{sMT}, s2, {(16 >> MB) - 1}\ns_lshl_b32 s{sMT}, s{sMT}, {MB}\ns_bfe_u32 s{sT0}, s2, {(MB << 16) | 3}\ns_add_u32 s{sMT}, s{sMT}, s{sT0}")
    p.e(f"s_bfe_u32 s{sSL}, s2, {((MB - 1) << 16) | (4 - MB)}\ns_lshl_b32 s{sSL}, s{sSL}, {5 - MB}\ns_lshr_b32 s{sT0}, s2, {3 + MB}\ns_add_u32 s{sSL}, s{sSL}, s{sT0}\ns_lshr_b32 s{sI}, s{sSL}, 1")
    if opt.get('cpf', 1):
        p.e(f"s_getpc_b64 s[4:5]\nK_pc:\ns_mov_b32 s6, K_X-K_pc\ns_bitcmp1_b32 s{sSL}, 0\ns_cselect_b32 s6, K_Y-K_pc, s6\ns_and_b32 s7, s{sI}, {(16 >> MB) - 1}\ns_lshl_b32 s7, s7, {MB}\ns_and_b32 s8, s{sMT}, {(1 << MB) - 1}\ns_add_u32 s7, s7, s8")
        p.e(f"s_lshl_b32 s7, s7, 11\ns_add_u32 s6, s6, s7\nv_lshrrev_b32 v{t5}, 4, v0\nv_lshlrev_b32 v{t5}, 7, v{t5}\nv_add_u32 v{t5}, s6, v{t5}\nv_min_u32 v{t5}, K_end-K_pc, v{t5}\nglobal_load_dword v250, v{t5}, s[4:5]", tag='cpf')
    p.e(f"s_mul_i32 s{sROT}, s{sMT}, {opt.get('rm', 3)}\ns_mul_i32 s{sT0}, s{sT0}, {opt.get('rs', 1)}\ns_add_u32 s{sROT}, s{sROT}, s{sT0}\ns_mul_i32 s{sT1}, s{sROT}, 205\ns_lshr_b32 s{sT1}, s{sT1}, 11\ns_mul_i32 s{sT1}, s{sT1}, 10\ns_sub_u32 s{sROT}, s{sROT}, s{sT1}")
    p.e(f"s_lshl_b32 s{sKX}, s{sROT}, 7\ns_mov_b32 s{sKB}, s{sROT}\ns_mov_b32 s{sMASK}, 0xffff0000")
    p.e(f"s_lshl_b32 s{sFL}, s{sMT}, 4\ns_add_u32 s{sFL}, s{sFL}, s{sSL}\ns_lshl_b32 s{sFL}, s{sFL}, 7\ns_add_u32 s{sFL}, s{sFL}, {HF_OFF}")
    p.e(f"s_lshl_b32 s{sT0}, s{sMT}, 7\ns_lshl_b32 s{sT1}, s{sW}, 5\ns_add_u32 s{sT1}, s{sT0}, s{sT1}\ns_mul_i32 s{sXR}, s{sT1}, 1280")
    for i in range(1, 4): p.e(f"s_add_u32 s{sXR+i}, s{sXR}, {(8*1280-1024)*i}")
    if opt.get('hotX'):
        for i in range(4): p.e(f"s_mov_b32 s{sXR+i}, {(8*1280-1024)*i}")
    p.e(f"s_lshl_b32 s{sLB}, s{sW}, 12")
    p.e(f"s_lshl_b32 s{sT1}, s{sSL}, 3\ns_add_u32 s{sT0}, s{sT0}, s{sT1}\ns_lshl_b32 s{sT1}, s{sW}, 1\ns_add_u32 s{sT0}, s{sT0}, s{sT1}")
    p.e(f"s_mul_i32 s{sU0}, s{sT0}, 1280\ns_lshl_b32 s{sU1}, s{sT0}, 4\ns_add_u32 s{sU1}, s{sU1}, {ST_OFF}")
    p.e(f"v_lshrrev_b32 v{t0}, 3, v{vL}\nv_and_b32 v{t1}, 7, v{vL}")
    p.e(f"v_lshrrev_b32 v{t2}, 5, v{vL}\nv_mul_u32_u24 v{t2}, 1280, v{t2}\nv_and_b32 v{t3}, 31, v{vL}\nv_lshl_add_u32 v{t4}, v{t3}, 3, v{t2}")
    p.e(f"v_lshrrev_b32 v{t2}, 4, v{vL}\nv_xor_b32 v{t2}, v{t1}, v{t2}\nv_lshlrev_b32 v{t2}, 4, v{t2}\nv_mul_u32_u24 v{t3}, 1280, v{t0}")
    p.e(f"v_add_u32 v{vXD}, v{t2}, v{t3}\nv_xor_b32 v{vXD+1}, 64, v{vXD}")
    p.e(f"v_mov_b32 v{vZ}, 0\nv_mov_b32 v{t2}, {OOB}\nv_cmp_eq_u32 vcc, 0, v0\nv_cndmask_b32 v{vFZ}, v{t2}, v0, vcc")
    p.e(f"s_cmp_eq_u32 s2, 0\ns_cselect_b32 s{sT0}, 0, {OOB}\nv_or_b32 v{vPA}, s{sT0}, v{vFZ}")

def first_loads(p, b0):
    x0 = x_dma(0)
    k1 = [i for i, it in enumerate(x0) if isinstance(it, I) and it.kind == 'vm']
    k2 = [i for i, it in enumerate(b0) if isinstance(it, I) and it.kind == 'vm']
    m0x = [it for it in x0 if isinstance(it, I) and ('x', 'm0') in it.defs][0]
    m0b = [it for it in b0 if isinstance(it, I) and ('x', 'm0') in it.defs][0]
    p.extend(x0[:k1[0] + 1]); p.extend(b0[:k2[1] + 1])
    p.add(I(m0x.text)); p.extend(x0[k1[0] + 1:])
    p.add(I(m0b.text)); p.extend(b0[k2[1] + 1:])
    srd(p, S_DBG, P_DBG, 256)
    p.e(f"s_or_b32 s{sT3}, s2, 1\nv_mov_b32 v{vPT}, s{sT3}\nbuffer_store_dword v{vPT}, v{vPA}, {S(S_DBG)}, 0 offen sc1")
    if OPT.get('stouch', 21):
        G = OPT.get('stouch', 21)
        n = (WS_USED >> G) // 64 + 1
        p.e(f"s_and_b32 s28, s{sSL}, 7\ns_lshl_b32 s28, s28, 1\ns_and_b32 s29, s{sMT}, 1\ns_add_u32 s28, s28, s29\ns_lshl_b32 s28, s28, 2\ns_add_u32 s28, s28, s{sW}\ns_lshl_b32 s28, s28, {G}")
        for i in range(n):
            p.e(f"s_min_u32 s29, s28, {WS_USED - 4 & ~3}\ns_load_dword s30, s[{P_WS}:{P_WS+1}], s29\ns_min_u32 s29, s28, {2048*2560 - 4}\ns_load_dword s31, s[{P_OUT}:{P_OUT+1}], s29\ns_add_u32 s28, s28, {64 << G}")

def early_loads(p, typ):
    for i in range(5):
        p.e(f"buffer_load_dwordx2 {V(RT+2*i,2)}, v{t4}, {S(S_X)}, s{sU0} offen offset:{256*i}", tag='sx')
def code_prefetch(p, typ):
    if OPT.get('cpf', 1) == 2:
        p.e(f"s_getpc_b64 s[24:25]\n{typ}_pc:\nv_lshlrev_b32 v{t5}, 7, v0\nv_min_u32 v{t5}, {typ}_end-{typ}_pc, v{t5}\nglobal_load_dword v250, v{t5}, s[24:25]")

CPN = [0]
def code_ahead(typ, dst, tmp, sp, skip=2048, lines=32):
    L = f"{typ}_ca{CPN[0]}"; CPN[0] += 1
    return [Group(code(f"s_getpc_b64 s[{sp}:{sp+1}]\n{L}:\nv_lshrrev_b32 v{tmp}, {6 - (lines.bit_length() - 1)}, v0\nv_lshlrev_b32 v{tmp}, 7, v{tmp}\nv_add_u32 v{tmp}, {skip}, v{tmp}\n"
                f"v_min_u32 v{tmp}, {typ}_end-{L}, v{tmp}\nglobal_load_dword v{dst}, v{tmp}, s[{sp}:{sp+1}]"))]

def x_dma(j):
    q = Prog()
    q.wait_lgkm(('xr', j - 3))
    q.e(f"v_add_u32 v{vXC}, s{sKX}, v{vXD}\nv_add_u32 v{vXC+1}, s{sKX}, v{vXD+1}\ns_add_u32 m0, s{sLB}, {XS + (j % 3) * 16384}")
    for i in range(4):
        q.e(f"buffer_load_dwordx4 v{vXC+(i&1)}, {S(S_X)}, s{sXR+i} offen offset:{1024*i}{NT('ntx')} lds", tag=('x', j))
    q.e(nextkb(sKX, 128))
    return q.items
def x_read(j):
    q = Prog(); q.wait_vm(('x', j))
    for s in range(4): q.e(f"ds_read_b128 {A(XF+16*j+4*s,4)}, v{vSR+s} offset:{(j % 3) * 16384}", ('xr', j))
    return q.items

def ffn_dma(base, j):
    q = Prog()
    q.e(f"s_mul_i32 s{sD0}, s{sKB}, {64*3072}\ns_add_u32 s{sD0}, s{sD0}, s{sDB}\ns_add_u32 s{sD1}, s{sD0}, {8*3072-2048}\ns_add_u32 m0, s{sLB}, {base}")
    q.e(f"buffer_load_dwordx4 v{vD}, {S(S_W1)}, s{sD0} offen{NT('ntw')} lds", tag=('slot', j))
    q.e(f"buffer_load_dwordx4 v{vD+1}, {S(S_W3)}, s{sD0} offen offset:1024{NT('ntw')} lds", tag=('slot', j))
    q.e(f"buffer_load_dwordx4 v{vD}, {S(S_W1)}, s{sD1} offen offset:2048{NT('ntw')} lds", tag=('slot', j))
    q.e(f"buffer_load_dwordx4 v{vD+1}, {S(S_W3)}, s{sD1} offen offset:3072{NT('ntw')} lds", tag=('slot', j))
    q.e(nextkb(sKB, 1))
    return q.items
def ssm_dma(base, j):
    q = Prog()
    q.e(f"s_lshl_b32 s{sD0}, s{sKB}, 7\nv_add_u32 v{vDC}, s{sD0}, v{vDS}\ns_add_u32 m0, s{sLBS}, {base}")
    for t in range(4):
        q.e(f"buffer_load_dwordx4 v{vDC}, {S(S_B)}, s{sBT+t} offen offset:{1024*t}{NT('ntw')} lds", tag=('slot', j))
    q.e(f"s_add_u32 m0, s{sLBS}, {base + 4096}")
    q.e(f"buffer_load_dwordx4 v{vDC}, {S(S_B)}, s{sBT+4} offen{NT('ntw')} lds", tag=('slot', j))
    q.e(nextkb(sKB, 1))
    return q.items

def ffn_dma_addr(p):
    p.e(f"v_bfe_u32 v{t2}, v{vL}, 4, 1\nv_lshlrev_b32 v{t2}, 1, v{t2}\nv_xor_b32 v{t2}, v{t1}, v{t2}\nv_lshlrev_b32 v{t2}, 4, v{t2}")
    p.e(f"v_mul_u32_u24 v{t3}, 3072, v{t0}\nv_add_u32 v{vD}, v{t2}, v{t3}\nv_xor_b32 v{vD+1}, 64, v{vD}")
def ffn_srd(p):
    srd(p, S_W1, P_W1, 640 * 3072)
    srd(p, S_W3, P_W3, 640 * 3072 + 1024, -1024)

def common_addr(p):
    p.e(f"v_bfe_u32 v{t2}, v{vL}, 2, 1\nv_lshlrev_b32 v{t2}, 4, v{t2}\nv_bfe_u32 v{t3}, v{vL}, 3, 2\nv_lshl_add_u32 v{t2}, v{t3}, 2, v{t2}")
    p.e(f"v_and_b32 v{t3}, 3, v{vL}\nv_add_u32 v{t2}, v{t2}, v{t3}\nv_lshlrev_b32 v{vC1}, 4, v{t2}")
    p.e(f"v_bfe_u32 v{t3}, v{t2}, 1, 3\nv_lshrrev_b32 v{vSR}, 5, v{vL}\nv_xor_b32 v{t3}, v{t3}, v{vSR}\nv_lshlrev_b32 v{t3}, 4, v{t3}")
    p.e(f"v_lshl_add_u32 v{t3}, v{t2}, 7, v{t3}\nv_add_u32 v{vSR}, s{sLB}, v{t3}")
    for s in range(1, 4): p.e(f"v_xor_b32 v{vSR+s}, {32*s}, v{vSR}")
    p.e(f"v_bfe_u32 v{t2}, v{vL}, 2, 1\nv_lshlrev_b32 v{t2}, 10, v{t2}\nv_bfe_u32 v{t3}, v{vL}, 3, 3\nv_lshl_add_u32 v{t2}, v{t3}, 6, v{t2}")
    p.e(f"v_and_b32 v{t3}, 3, v{vL}\nv_lshl_add_u32 v{vH}, v{t3}, 4, v{t2}")
    for i in range(4): p.e(f"v_mov_b32 v{vONE+i}, 0x3f803f80")
    srd(p, S_WS, P_WS, WS_USED)
    p.e(f"s_lshl_b32 s{sT0}, s{sMT}, 1\ns_lshr_b32 s{sT1}, s{sW}, 1\ns_add_u32 s{sT0}, s{sT0}, s{sT1}\ns_mul_i32 s{sT0}, s{sT0}, 88")
    p.e(f"s_mul_i32 s{sT1}, s{sI}, 11\ns_add_u32 s{sT0}, s{sT0}, s{sT1}\ns_lshl_b32 s{sH}, s{sT0}, 12")
    p.e(f"s_and_b32 s{sT1}, s{sW}, 1\ns_lshl_b32 s{sT1}, s{sT1}, 11\ns_add_u32 s{sH}, s{sH}, s{sT1}")

def tr_addrs(p, base):
    p.e(f"v_bfe_u32 v{t0}, v{vL}, 4, 1\nv_lshrrev_b32 v{t1}, 5, v{vL}\nv_lshlrev_b32 v{t1}, 11, v{t1}\nv_lshl_add_u32 v{t1}, v{t0}, 10, v{t1}")
    p.e(f"v_bfe_u32 v{t2}, v{vL}, 2, 2\nv_lshl_add_u32 v{t1}, v{t2}, 7, v{t1}\nv_and_b32 v{t3}, 3, v{vL}\nv_lshl_add_u32 v{t1}, v{t3}, 3, v{t1}")
    p.e(f"v_bfe_u32 v{t2}, v{vL}, 3, 1\nv_lshl_add_u32 v{t2}, v{t0}, 1, v{t2}\nv_lshl_add_u32 v{t1}, v{t2}, 5, v{t1}")
    p.e(f"v_add_u32 v{vT}, {base}, v{t1}")
    for tau in range(1, 4): p.e(f"v_xor_b32 v{vT+tau}, {32*tau}, v{vT}")

def touch():
    q = Prog()
    q.e(f"v_lshlrev_b32 v{vPA}, 19, v{vL}\nv_min_u32 v{vPA}, {WS_USED - 4}, v{vPA}\nbuffer_load_dword v250, v{vPA}, {S(S_WS)}, 0 offen")
    q.e(f"v_min_u32 v{vPA}, {2048*2560 - 4}, v{vPA}\nglobal_load_dword v250, v{vPA}, s[{P_OUT}:{P_OUT+1}]")
    return q.items

def vtouch(p):
    if not OPT.get('vt'): return
    G = OPT['vt']
    p.e(f"v_and_b32 v{vPA}, 15, v{vL}\nv_lshlrev_b32 v{vPA}, {G}, v{vPA}\nv_add_u32 v{vPA}, {W2S_OFF}, v{vPA}\nv_min_u32 v{vPA}, {WS_USED - 4}, v{vPA}")
    p.e(f"v_cmp_gt_u32 vcc, 32, v{vL}\nv_mov_b32 v{vTW}, s{sH}\nv_cndmask_b32 v{vPA}, v{vTW}, v{vPA}, vcc\nbuffer_load_dword v249, v{vPA}, {S(S_WS)}, 0 offen")

def stats_job(p):
    R = RT; aQ, aS = TMP, TMP + 1
    p.e(f"v_mov_b32 v{aS}, 0\nv_mov_b32 v{aQ}, 0")
    for d in range(10):
        p.e(f"v_dot2c_f32_bf16 v{aS}, v{vONE}, v{R+d}\nv_dot2c_f32_bf16 v{aQ}, v{R+d}, v{R+d}")
    p.e("s_nop 2")
    for perm in ("quad_perm:[1,0,3,2] row_mask:0xf", "quad_perm:[2,3,0,1] row_mask:0xf", "row_half_mirror row_mask:0xf", "row_mirror row_mask:0xf", "row_bcast:15 row_mask:0xa"):
        for r in (aS, aQ): p.e(f"v_add_f32_dpp v{r}, v{r}, v{r} {perm} bank_mask:0xf")
    inv = f2u(1.0 / 640)
    p.e(f"v_mul_f32 v{aS}, {inv}, v{aS}\nv_mul_f32 v{aQ}, {inv}, v{aQ}\nv_fma_f32 v{aQ}, -v{aS}, v{aS}, v{aQ}\nv_max_f32 v{aQ}, 0, v{aQ}")
    p.e(f"v_sub_f32 v{aS}, 0, v{aS}\nv_cvt_pk_bf16_f32 v{aS}, v{aS}, v{aS}")
    bf16r(p, aQ)
    p.e(f"v_add_f32 v{aQ}, {f2u(1e-5)}, v{aQ}")
    bf16r(p, aQ)
    p.e(f"v_sqrt_f32 v{aQ}, v{aQ}")
    bf16r(p, aQ)
    p.e(f"v_rcp_f32 v{aQ}, v{aQ}")
    p.e(f"v_and_b32 v{R}, 31, v{vL}\nv_cmp_eq_u32 vcc, 16, v{R}\nv_lshrrev_b32 v{R}, 1, v{vL}\nv_and_b32 v{R}, 16, v{R}\nv_mov_b32 v{R+1}, {OOB}\nv_cndmask_b32 v{R}, v{R+1}, v{R}, vcc")
def stats_store():
    return code(f"v_mov_b32 v{TMP+2}, s{sN}\nv_mov_b32 v{TMP+3}, s{sN}\nbuffer_store_dwordx4 {V(TMP,4)}, v{RT}, {S(S_WS)}, s{sU1} offen sc1", 'pub')

def cs_store_addr(q, gidexpr):
    q.e(gidexpr)
    q.e(f"s_mul_i32 s{sU3}, s{sT0}, 12800\ns_add_u32 s{sU3}, s{sU3}, {CS_OFF}\ns_mul_i32 s{sT0}, s{sROT}, 1280\ns_add_u32 s{sU2}, s{sU3}, s{sT0}")
    q.e(f"s_lshl_b32 s{sT0}, s{sW}, 8\ns_add_u32 s{sU2}, s{sU2}, s{sT0}\ns_add_u32 s{sU3}, s{sU3}, s{sT0}")
    q.e(f"s_cmp_lt_u32 s{sMT}, 10\ns_cselect_b32 s{sT0}, 32, 0\nv_cmp_gt_u32 vcc, s{sT0}, v{vL}\nv_lshlrev_b32 v{t4}, 3, v{vL}\nv_mov_b32 v{t5}, {OOB}\nv_cndmask_b32 v{t4}, v{t5}, v{t4}, vcc")

def cs_produce_ffn(acc, gidexpr):
    q = Prog()
    q.e(f"s_lshl_b32 s{sT0}, s{sW}, 5\nv_xor_b32 v{vTW}, s{sT0}, v{vT}")
    for s in range(4):
        for t in range(2):
            q.e(f"ds_read_b64_tr_b16 {A(CSF+4*s+2*t,2)}, v{vTW} offset:{s*4096 + t*512}")
    cs_store_addr(q, gidexpr)
    for s in range(4):
        q.e(f"v_mfma_f32_32x32x16_bf16 {V(acc,16)}, {V(vONE,4)}, {A(CSF+4*s,4)}, {'0' if s == 0 else V(acc,16)}")
    st = code(f"v_mov_b32 v{acc+1}, s{sN}\nbuffer_store_dwordx2 {V(acc,2)}, v{t4}, {S(S_WS)}, s{sU2} offen sc1", 'pub')
    return q.items, st

def cs_consume(c, ntile, R0, d5=1024):
    q = Prog()
    q.e(f"v_lshrrev_b32 v{vPA}, 5, v{vL}\nv_mul_u32_u24 v{vPA}, 6400, v{vPA}\nv_and_b32 v{t5}, 31, v{vL}\nv_lshl_add_u32 v{vPA}, v{t5}, 3, v{vPA}")
    q.e(f"s_add_u32 s{sU2}, s{sU3}, 3840")
    rounds = [(R0, 0)]
    ld = ""
    for i in range(5): ld += f"buffer_load_dwordx2 {V(R0+2*i,2)}, v{vPA}, {S(S_WS)}, s{sU3 if i < 3 else sU2} offen offset:{1280*(i%3)} sc1\n"
    if ntile == 5:
        q.e(f"s_lshl_b32 s86, s{sW}, 8\ns_sub_u32 s86, {d5}, s86\nv_add_u32 v{vTW}, s86, v{vPA}")
        for i in range(5): ld += f"buffer_load_dwordx2 {V(R0+10+2*i,2)}, v{vTW}, {S(S_WS)}, s{sU3 if i < 3 else sU2} offen offset:{1280*(i%3)} sc1\n"
        rounds.append((R0 + 10, 1))
    a = (q.items, code(ld))
    q = Prog()
    q.extend(retry(c, ld, tagcheck([R0 + 1 + 2 * i for i in range(5 * len(rounds))])))
    q.e(f"v_cmp_gt_u32 vcc, 32, v{vL}")
    for (R, which) in rounds:
        q.e(f"v_add_f32 v{R}, v{R}, v{R+2}\nv_add_f32 v{R+4}, v{R+4}, v{R+6}\nv_add_f32 v{R}, v{R}, v{R+8}\nv_add_f32 v{R}, v{R}, v{R+4}")
        q.e(f"v_mov_b32 v{R+1}, v{R}\nv_mov_b32 v{R+6}, 0\nv_mov_b32 v{R+7}, 0\nv_permlane32_swap_b32 v{R}, v{R+1}\nv_add_f32 v{R}, v{R}, v{R+1}\nv_cndmask_b32 v{R}, 0, v{R}, vcc")
        q.e(f"v_cvt_pk_bf16_f32 v{R+1}, v{R}, v{R}\nv_and_b32 v{R+1}, s{sMASK}, v{R+1}\nv_sub_f32 v{R}, v{R}, v{R+1}")
        q.e(f"v_cvt_pk_bf16_f32 v{R+4}, v{R+1}, v{R}\nv_and_b32 v{R+2}, s{sMASK}, v{R+4}\nv_sub_f32 v{R}, v{R}, v{R+2}")
        q.e(f"v_cvt_pk_bf16_f32 v{R+5}, v{R}, 0")
        if which == 0:
            q.e(f"s_lshr_b32 s86, s{sLB}, 2\nv_add_u32 v{t5}, s86, v{vL16}")
            q.e(f"ds_write_b128 v{t5}, {V(R+4,4)} offset:{EXT_L}", tag='ext')
        else:
            q.e(f"ds_write_b128 v{vL16}, {V(R+4,4)} offset:{EXT_L + 4096}", tag='ext')
    return a, q.items
def ext_read(ntile):
    return code("\n".join(f"ds_read_b128 {A(EXTW+4*t,4)}, v{vL16} offset:{EXT_L + 1024*t}" for t in range(ntile)))

def stats_consume(c):
    q = Prog()
    q.e(f"s_lshl_b32 s87, s{sMT}, 11\ns_lshl_b32 s86, s{sW}, 9\ns_add_u32 s87, s87, s86\ns_add_u32 s{sU0}, s87, {ST_OFF}")
    ld = f"buffer_load_dwordx4 {V(vEX,4)}, v{vC1}, {S(S_WS)}, s{sU0} offen sc1"
    q.e(ld)
    a = q.items
    q = Prog()
    q.extend(retry(c, ld, tagcheck([vEX + 2, vEX + 3])))
    if c.typ == 'Y':
        q.e(f"s_lshl_b32 s{sT0}, s{sW}, 7\ns_add_u32 s{sT0}, s{sT0}, 159744")
        q.e(f"v_lshrrev_b32 v{t3}, 2, v{vC1}\nv_add_u32 v{t3}, s{sT0}, v{t3}\nds_write_b32 v{t3}, v{vEX}")
        q.e(f"v_lshrrev_b32 v{t2}, 5, v{vL}\nv_lshlrev_b32 v{t2}, 6, v{t2}\nv_add_u32 v{t2}, s{sT0}, v{t2}")
        for i in range(4): q.e(f"ds_read_b128 {V(RT+4*i,4)}, v{t2} offset:{16*i}")
    q.e(f"v_mul_f32 v{vC1}, {NLOG2E}, v{vEX}\nv_rcp_f32 v{vC2}, v{vEX}\nv_mov_b32 v{vEX}, v{vEX+1}\nv_mov_b32 v{vEX+2}, v{vEX+1}\nv_mov_b32 v{vEX+3}, v{vEX+1}")
    q.e(f"v_mul_f32 v{vC2}, v{vC2}, v{vC2}")
    return a, q.items

def ffn_epi(acc, pos, imm):
    p = Prog(); tmp = TMP
    for r in range(8): p.e(f"v_mul_f32 v{tmp+r}, v{vC1}, v{acc+r}")
    for r in range(8): p.e(f"v_exp_f32 v{tmp+r}, v{tmp+r}\nv_mul_f32 v{acc+r}, v{acc+r}, v{acc+8+r}")
    for r in range(8): p.e(f"v_fma_f32 v{tmp+r}, v{tmp+r}, v{vC2}, v{vC2}")
    for r in range(8): p.e(f"v_rcp_f32 v{tmp+r}, v{tmp+r}")
    p.e(f"s_add_u32 s{sT2}, s{sH}, {pos*4096}")
    for r in range(8): p.e(f"v_mul_f32 v{acc+r}, v{acc+r}, v{tmp+r}")
    for r in range(4): p.e(f"v_cvt_pk_bf16_f32 v{acc+8+r}, v{acc+2*r}, v{acc+2*r+1}")
    p.e(f"buffer_store_dwordx4 {V(acc+8,4)}, v{vH}, {S(S_WS)}, s{sT2} offen offset:{imm} sc1", tag='h')
    if OPT.get('dual'): p.e(f"buffer_store_dwordx4 {V(acc+8,4)}, v{vH}, {S(S_WS)}, s{sT2} offen offset:{imm}", tag='h')
    return p.items

class Ring:
    def __init__(self, reg, n, cur): self.reg = reg; self.n = n; self.cur = cur
    def off(self, base, span, out):
        if base < self.cur or base + span - self.cur > 65536:
            out += code("\n".join(f"v_add_u32 v{self.reg+i}, {(base - self.cur) & 0xffffffff}, v{self.reg+i}" for i in range(self.n)))
            self.cur = base
        return base - self.cur

def build_steps(c, kinds, slot_base, dma, NS, rT, rB, pre_extra, late):
    steps = []
    TMB = OPT.get('tmb', 3); TM0 = 80 - 4 * TMB
    T2 = c.t2; NST = TM0 + TMB * len(T2); c.NST = NST
    reads = []
    for n in range(NST):
        j, s = divmod(min(n, 79), 4)
        buf = BF + (n % 3) * 20 if (kinds[j] == 'S' or 4 in T2) else (160, 180, 196)[n % 3]
        base = slot_base(j)
        rd = []
        if kinds[j] == 'F':
            acc = ACC1 if (j < 10) else ACC2
            mf = []
            ents = [(tau, j, s) for tau in (range(4) if j < 10 else T2)]
            if n >= TM0: ents = [(T2[(n - TM0) // TMB], 20 - TMB + (n - TM0) % TMB, e) for e in range(4)]
            for e, (tau, jj, ss) in enumerate(ents):
                o = []
                if tau < 4:
                    off = rT.off(slot_base(jj), 16384, o)
                    o += code("\n".join(f"ds_read_b64_tr_b16 {A(buf+4*e+2*t,2)}, v{vT+tau} offset:{off + ss*4096 + t*512}" for t in range(2)), ('rd', n))
                else:
                    o += code("\n".join(f"ds_read_b64_tr_b16 {A(buf+4*e+2*t,2)}, v{vBR+t} offset:{(jj % 5)*4096 + (ss>>1)*2048 + (ss&1)*512}" for t in range(2)), ('rd', n))
                rd.append(o)
                cc = "0" if n % 40 == 0 and n < 80 else V(acc + 16 * tau, 16)
                mf += code(f"v_mfma_f32_32x32x16_bf16 {V(acc+16*tau,16)}, {A(buf+4*e,4)}, {A(XF+4*((4*jj+ss)%40),4)}, {cc}")
        else:
            mf = []
            for t in range(5):
                o = []
                off = rB.off(base, 20480, o)
                o += code(f"ds_read_b128 {A(buf+4*t,4)}, v{vBR+s} offset:{off + 1024*t}", ('rd', n))
                rd.append(o)
                cc = "0" if n == 0 else V(ACC1 + 16 * t, 16)
                mf += code(f"v_mfma_f32_32x32x16_bf16 {V(ACC1+16*t,16)}, {A(XF+4*n,4)}, {A(buf+4*t,4)}, {cc}")
        reads.append(rd)
        steps.append(dict(pre=[], mf=mf, rd=[[] for _ in mf]))
    for n in range(NST):
        st = steps[n]; j, s = divmod(n, 4)
        if c.opt.get('st0') is not None and n < 80: st['pre'] += code(f'.set STEPMARK{c.typ}{n}, 0')
        if c.opt.get('st0') is not None and n == NST - 1:
            for k in range(NST, 80): st['rd'][-1] += code(f'.set STEPMARK{c.typ}{k}, 0')
        if c.opt.get('ts') == 2 and s == 0: st['pre'] += [LazyStamp(c.ts)]
        if OPT.get('dstep') == n: st['pre'] += code('s_sleep 36')
        st['pre'] += [Marker('lgkm', ('rd', n))]
        syncs = [j + 1] if (s == 2 and j + 1 <= 20 - TMB) else []
        if n == TM0 - 1: syncs = list(range(21 - TMB, 20))
        if syncs:
            sy = [x for k in syncs for x in pre_extra.get(('sync', k), []) + [Marker('vm', ('slot', k))]] + [Marker('lgkm', ['ext', 'agw'])] + ([] if OPT.get('nobar') else code("s_barrier")) + [x for k in syncs for x in pre_extra.get(('post', k), [])]
            st['rd'][0] += sy
        if n + 2 < NST:
            src = reads[n + 2]; g = len(st['mf'])
            st['rd'][min(len(src), g) - 1] += [Marker('lgkm', ('rd', n + 1))]
            for i, o in enumerate(src): st['rd'][min(i, g - 1)] += o
        if s == 1 and j + 1 < 10:
            st['rd'][0] += x_read(j + 1)
    for k, tau in enumerate(T2):
        st = steps[TM0 + TMB * k + TMB - 1]
        st['mf'] += code(f"v_mfma_f32_32x32x16_bf16 {V(ACC2+16*tau,16)}, {A(EXTW+4*tau,4)}, {V(vEX,4)}, {V(ACC2+16*tau,16)}"); st['rd'] += [[]]
    c.TM0, c.TMB = TM0, TMB
    va = VmAlloc(steps); c.va = va
    LR, LX = OPT.get('leadr', 7), OPT.get('leadx', 5)
    E1 = OPT.get('e1', 1)
    va.place(0, x_dma(2), stride=E1); va.place(0, dma(2), stride=E1)
    for its in late.get(0, []): va.place(0, its, stride=E1)
    va.place(1, x_dma(3), by=9 - LX); va.place(0, dma(3), by=10 - LR)
    va.place(3, x_dma(4), by=13 - LX); va.place(3, dma(4), by=14 - LR)
    LD = OPT.get('lead', NS - 1)
    nxt = NS
    for j in range(1, 20):
        if j + 4 < 10 and LD < NS - 1: va.place(4 * j + 3, x_dma(j + 4), by=4 * (j + 3) + 1 - LX)
        while nxt < 20 and nxt <= j - 1 + NS and (nxt < 10 or nxt <= j + LD or nxt > 20 - TMB - 2):
            va.place(4 * j + 2, dma(nxt), by=4 * (nxt - 1) + 2 - LR); nxt += 1
        if j + 4 < 10 and LD == NS - 1: va.place(4 * j + 3, x_dma(j + 4), by=4 * (j + 3) + 1 - LX)
        for its in late.get(j, []): va.place(4 * j + 3, its)
    c.joblast = max([e[3][0] for e in va.log if e[1] is None] + [0])
    if OPT.get('vlog'): print(va.log, file=sys.stderr)
    return steps, reads[0], reads[1]

class VmAlloc:
    def __init__(self, steps):
        self.steps = steps; self.used = set(); self.dma_next = 0; self.log = []; self.b_next = 0; self.iv = []; self.lused = set(); self.quiet = 0
        self.gaps = [(n, g) for n, st in enumerate(steps) for g in range(len(st['mf']))]
        self.first = {}
        for i, (n, g) in enumerate(self.gaps): self.first.setdefault(n, i)
    def light(self, n, its):
        i = self.first[n]
        for it in its:
            while i in self.used or i in self.lused: i += 1
            a, b = self.gaps[i]
            self.steps[a]['rd'][b] += it.its if isinstance(it, Group) else [it]; self.lused.add(i)
        return self.gaps[i]
    def place(self, n, its, dma=True, stride=None, by=None):
        stride = stride or OPT.get('vstride', 2)
        groups, cur = [], []
        for it in its:
            cur.append(it)
            if isinstance(it, I) and it.kind == 'vm': groups.append(cur); cur = []
        if cur: groups[-1] += cur
        i0 = self.first[n]
        if dma == 'b': i0 = max(i0, self.b_next)
        elif dma is True: i0 = max(i0, self.dma_next)
        inside = (lambda i: any(a < i < b for a, b in self.iv)) if dma == 'l' else (lambda i: False)
        if dma == 'l': i0 = max(i0, self.b_next)
        for st_ in range(stride, 0, -1):
            i = i0; pos = []; used = set(self.used)
            for grp in groups:
                while inside(i) or i in self.lused or any((i + d) in used for d in range(-st_ + 1, st_)): i += 1
                pos.append(i); used.add(i)
            if by is None or i < self.first[max(by, 0)] or st_ == 1: break
        if i >= len(self.gaps) or (dma in ('b', 'l') and i >= self.first[len(self.steps) - self.quiet] if self.quiet else False): return False
        for grp, k in zip(groups, pos):
            a, b = self.gaps[k]
            self.steps[a]['rd'][b] += grp; self.used.add(k)
        self.log.append((n, by, self.gaps[pos[0]], self.gaps[pos[-1]]))
        if dma in ('b', 'l'): self.b_next = i + 1
        elif dma: self.dma_next = i + 1; self.iv.append((pos[0], pos[-1]))
        return True

def flat(rd): return [x for o in rd for x in o]

sJW, sJ0, sJ1, sJ2, sJ3, sJ4 = 16, 17, 18, 19, sLBS, sBT
def lam_consts(q, L, pows, coef):
    lr, li, ld, a2, rev, O, u = L + 1, L + 2, L + 3, L + 4, L + 5, L + 8, L + 16
    q.e(f"v_lshlrev_b32 v{lr}, 16, v{lr}\nv_lshlrev_b32 v{li}, 16, v{li}\nv_lshlrev_b32 v{ld}, 16, v{ld}")
    q.e(f"v_mul_f32 v{ld}, {LOG2E}, v{ld}\nv_exp_f32 v{ld}, v{ld}")
    bf16r(q, ld)
    q.e(f"v_mul_f32 v{a2}, v{ld}, v{lr}\nv_mul_f32 v{rev}, v{ld}, v{li}\nv_mul_f32 v{a2}, {LOG2E}, v{a2}\nv_mul_f32 v{rev}, {INV2PI}, v{rev}")
    for n, k in enumerate(pows):
        if k != 1: q.e(f"v_mul_f32 v{u}, {f2u(float(k))}, v{a2}\nv_mul_f32 v{u+1}, {f2u(float(k))}, v{rev}\nv_exp_f32 v{u}, v{u}\nv_fract_f32 v{u+1}, v{u+1}")
        else: q.e(f"v_exp_f32 v{u}, v{a2}\nv_fract_f32 v{u+1}, v{rev}")
        q.e(f"v_cos_f32 v{u+2}, v{u+1}\nv_sin_f32 v{u+3}, v{u+1}\nv_mul_f32 v{O+2*n}, v{u}, v{u+2}\nv_mul_f32 v{O+2*n+1}, v{u}, v{u+3}")
    if coef:
        q.e(f"v_add_f32 v{u}, -1.0, v{O}\nv_mul_f32 v{u+1}, v{lr}, v{lr}\nv_fmac_f32 v{u+1}, v{li}, v{li}\nv_rcp_f32 v{u+1}, v{u+1}")
        q.e(f"v_mul_f32 v{u+2}, v{u}, v{lr}\nv_fmac_f32 v{u+2}, v{O+1}, v{li}\nv_mul_f32 v{u+3}, v{O+1}, v{lr}\nv_fma_f32 v{u+3}, -v{u}, v{li}, v{u+3}")
        q.e(f"v_add_f32 v{u+1}, v{u+1}, v{u+1}\nv_mul_f32 v{L+4}, v{u+2}, v{u+1}\nv_mul_f32 v{L+5}, v{u+3}, v{u+1}")

def jobs(c):
    JL = ACC2 + 32
    q = Prog()
    q.e(f"s_lshl_b32 s{sT0}, s{sI}, 4\ns_add_u32 s{sT0}, s{sT0}, s{sMT}\ns_lshl_b32 s{sT0}, s{sT0}, 2\ns_add_u32 s{sJW}, s{sT0}, s{sW}\ns_lshl_b32 s{sJ3}, s{sW}, 13")
    q.e(f"s_min_u32 s{sT0}, s{sJW}, 479\ns_mul_i32 s{sJ1}, s{sT0}, 6554\ns_lshr_b32 s{sJ1}, s{sJ1}, 16\ns_mul_i32 s{sT2}, s{sJ1}, 10\ns_sub_u32 s{sJ0}, s{sT0}, s{sT2}")
    srd(q, S_J0, P_W2, 1536 * 1280)
    q.e(f"v_lshrrev_b32 v{t0}, 3, v{vL}\nv_and_b32 v{t1}, 7, v{vL}\nv_lshrrev_b32 v{t2}, 4, v{vL}\nv_lshlrev_b32 v{t2}, 1, v{t2}\nv_xor_b32 v{t2}, v{t1}, v{t2}\nv_lshlrev_b32 v{t2}, 4, v{t2}")
    q.e(f"v_mul_u32_u24 v{t3}, 1280, v{t0}\nv_add_u32 v{vBR}, v{t2}, v{t3}")
    q.e(f"s_mul_i32 s{sBT+1}, s{sJ1}, {32*1280}\ns_lshl_b32 s{sT3}, s{sJ0}, 7\ns_add_u32 s{sBT+1}, s{sBT+1}, s{sT3}")
    q.e(f"s_min_u32 s{sT0}, s{sJW}, 399\ns_mul_i32 s{sJ2}, s{sT0}, 6554\ns_lshr_b32 s{sJ2}, s{sJ2}, 16\ns_mul_i32 s{sT2}, s{sJ2}, 10\ns_sub_u32 s{sJW}, s{sT0}, s{sT2}")
    srd(q, S_J1, P_CRE, 640 * 1280)
    srd(q, S_AG, P_CIM, 640 * 1280 + 2048, -2048)
    q.e(f"s_mul_i32 s{sBT+2}, s{sJ2}, {16*1280}\ns_lshl_b32 s{sT3}, s{sJW}, 7\ns_add_u32 s{sBT+2}, s{sBT+2}, s{sT3}\ns_add_u32 s{sBT+3}, s{sBT+2}, {8*1280-1024}")
    q.e(f"v_lshlrev_b32 v{JL}, 1, v{vL}\nv_add_u32 v{JL}, s{sT3}, v{JL}")
    for k, ptr in enumerate((P_LRE, P_LIM, P_LDT)):
        q.e(f"global_load_ushort v{JL+1+k}, v{JL}, s[{ptr}:{ptr+1}]", tag='tbl')
    a = q.items
    q = Prog()
    q.e(f"s_add_u32 m0, s{sJ3}, {X_JOB}")
    for i in range(4):
        q.e(f"buffer_load_dwordx4 v{vBR}, {S(S_J0)}, s{sBT+1} offen offset:{1024*i}{NT('ntj')} lds", tag='jobA')
        if i < 3: q.e(f"s_add_u32 s{sBT+1}, s{sBT+1}, {8*1280-1024}")
    da = q.items
    q = Prog()
    q.e(f"s_add_u32 m0, s{sJ3}, {X_JOB + 4096}")
    for i, (sr, so) in enumerate(((S_J1, sBT + 2), (S_J1, sBT + 3), (S_AG, sBT + 2), (S_AG, sBT + 3))):
        q.e(f"buffer_load_dwordx4 v{vXD+(i&1)}, {S(sr)}, s{so} offen offset:{1024*i}{NT('ntj')} lds", tag='jobB')
    db = q.items
    q = Prog()
    q.e(f"v_bfe_u32 v{t0}, v{vL}, 2, 3\nv_lshrrev_b32 v{t1}, 5, v{vL}\nv_lshl_add_u32 v{t1}, v{t1}, 4, v{t0}")
    q.e(f"v_lshrrev_b32 v{t0}, 1, v{t0}\nv_lshlrev_b32 v{t0}, 5, v{t0}\nv_lshl_add_u32 v{t0}, v{t1}, 7, v{t0}\nv_and_b32 v{t1}, 3, v{vL}")
    q.e(f"v_lshl_add_u32 v{t0}, v{t1}, 3, v{t0}\nv_add_u32 v{vBR}, s{sJ3}, v{t0}")
    for tau in range(1, 4): q.e(f"v_xor_b32 v{vBR+tau}, {32*tau}, v{vBR}")
    q.e(f"s_mul_i32 s{sT0}, s{sJ1}, 43\ns_lshr_b32 s{sT0}, s{sT0}, 8\ns_mul_i32 s{sT0}, s{sT0}, 5\ns_add_u32 s{sT0}, s{sT0}, s{sJ1}\ns_mul_i32 s{sJ1}, s{sT0}, 5")
    q.wait_vm('jobA')
    for tau in range(4):
        for t in range(2): q.e(f"ds_read_b64_tr_b16 {V(CSA+4*tau+2*t,2)}, v{vBR+tau} offset:{X_JOB + 1024*t}")
    q.e(f"s_lshl_b32 s{sT0}, s{sJ0}, 2\ns_mul_i32 s{sT1}, s{sT0}, 52\ns_lshr_b32 s{sT1}, s{sT1}, 8\ns_mul_i32 s{sT2}, s{sT1}, 5\ns_sub_u32 s{sT3}, s{sT0}, s{sT2}")
    q.e(f"s_mul_i32 s{sT2}, s{sT1}, 435\ns_add_u32 s{sT0}, s{sT0}, s{sT2}\ns_add_u32 s{sT0}, s{sT0}, s{sJ1}\ns_lshl_b32 s{sT0}, s{sT0}, 10\ns_add_u32 s{sT0}, s{sT0}, {W2S_OFF}")
    for tau in range(4):
        if tau: q.e(f"s_cmp_eq_u32 s{sT3}, {5 - tau}\ns_cselect_b32 s{sT2}, {436*1024}, s{sJ4}\ns_add_u32 s{sT0}, s{sT0}, s{sT2}")
        else: q.e(f"s_movk_i32 s{sJ4}, 1024")
        q.e(f"buffer_store_dwordx4 {V(CSA+4*tau,4)}, v{vL16}, {S(S_WS)}, s{sT0} offen sc1", tag='pub')
    pa = q.items
    q = Prog()
    lam_consts(q, JL, [1], True)
    q.e(f"v_sub_f32 v{JL+5}, 0, v{JL+5}\nv_sub_f32 v{JL+6}, 0, v{JL+4}\nv_lshlrev_b32 v{t0}, 2, v{vL}\nv_add_u32 v{t0}, s{sJ3}, v{t0}")
    for k in range(3): q.e(f"ds_write_b32 v{t0}, v{JL+4+k} offset:{X_JOB + 256*k}")
    q.e(f"v_bfe_u32 v{t0}, v{vL}, 1, 3\nv_bfe_u32 v{t1}, v{vL}, 4, 1\nv_xor_b32 v{t0}, v{t0}, v{t1}\nv_lshlrev_b32 v{t0}, 4, v{t0}")
    q.e(f"v_and_b32 v{t2}, 15, v{vL}\nv_lshl_add_u32 v{t0}, v{t2}, 7, v{t0}\nv_add_u32 v{vBR}, s{sJ3}, v{t0}")
    for s in range(1, 4): q.e(f"v_xor_b32 v{vBR+s}, {32*s}, v{vBR}")
    q.e(f"v_lshrrev_b32 v{t2}, 5, v{vL}\nv_lshlrev_b32 v{t2}, 8, v{t2}\nv_lshl_add_u32 v{t2}, v{t1}, 5, v{t2}\nv_add_u32 v{vTW}, s{sJ3}, v{t2}")
    q.e(f"s_mul_i32 s{sT1}, s{sJ2}, 52\ns_lshr_b32 s{sT1}, s{sT1}, 8\ns_mul_i32 s{sT1}, s{sT1}, 435\ns_add_u32 s{sJ2}, s{sT1}, s{sJ2}")
    q.wait_vm('jobB')
    CR, CI, AL, BE, U = ACC2 + 16, ACC2 + 20, ACC2 + 32, ACC2 + 40, ACC2 + 24
    def rd(s):
        o = 24 * (s & 1) if False else 0
        q.e(f"ds_read_b128 {V(CR,4)}, v{vBR+s} offset:{X_JOB + 4096}\nds_read_b128 {V(CI,4)}, v{vBR+s} offset:{X_JOB + 4096 + 2048}")
        for h in range(2):
            q.e(f"ds_read_b128 {V(AL+4*h,4)}, v{vTW} offset:{X_JOB + 64*s + 16*h}\nds_read_b128 {V(BE+4*h,4)}, v{vTW} offset:{X_JOB + 256 + 64*s + 16*h}")
    for s in range(4):
        rd(s)
        if s == 0:
            q.e(f"s_lshl_b32 s{sT0}, s{sJW}, 2\ns_mul_i32 s{sT1}, s{sT0}, 52\ns_lshr_b32 s{sT1}, s{sT1}, 8\ns_mul_i32 s{sT2}, s{sT1}, 5\ns_sub_u32 s{sT3}, s{sT0}, s{sT2}\ns_mul_i32 s{sT1}, s{sT1}, 6")
            q.e(f"s_add_u32 s{sT0}, s{sT0}, s{sT1}\ns_mul_i32 s{sT0}, s{sT0}, 5\ns_add_u32 s{sT0}, s{sT0}, s{sJ2}\ns_lshl_b32 s{sT0}, s{sT0}, 10\ns_add_u32 s{sT0}, s{sT0}, {W2S_OFF + 30*1024}\ns_movk_i32 s{sJ4}, 5120")
        else:
            q.e(f"s_cmp_eq_u32 s{sT3}, {5 - s}\ns_cselect_b32 s{sT2}, {35*1024}, s{sJ4}\ns_add_u32 s{sT0}, s{sT0}, s{sT2}")
        for d in range(4):
            q.e(f"v_lshlrev_b32 v{U}, 16, v{CR+d}\nv_and_b32 v{U+1}, s{sMASK}, v{CR+d}\nv_lshlrev_b32 v{U+2}, 16, v{CI+d}\nv_and_b32 v{U+3}, s{sMASK}, v{CI+d}")
            q.e(f"v_mul_f32 v{U}, v{AL+2*d}, v{U}\nv_mul_f32 v{U+1}, v{AL+2*d+1}, v{U+1}\nv_fmac_f32 v{U}, v{BE+2*d}, v{U+2}\nv_fmac_f32 v{U+1}, v{BE+2*d+1}, v{U+3}")
            q.e(f"v_cvt_pk_bf16_f32 v{CSA+4*s+d}, v{U}, v{U+1}")
        q.e(f"buffer_store_dwordx4 {V(CSA+4*s,4)}, v{vL16}, {S(S_WS)}, s{sT0} offen sc1", tag='pub')
    q.e(f"s_lshl_b32 s{sT0}, s{sMT}, 7\ns_lshl_b32 s{sT1}, s{sI}, 11\ns_add_u32 s{sT0}, s{sT0}, s{sT1}\ns_add_u32 s{sBT+3}, s{sT0}, {WF_OFF}")
    return a, da, db, pa, q.items

def ext_mfma(acc, n, ffn):
    if ffn: return code("\n".join(f"v_mfma_f32_32x32x16_bf16 {V(acc+16*t,16)}, {A(EXTW+4*t,4)}, {V(vEX,4)}, {V(acc+16*t,16)}" for t in range(n)))
    return code("\n".join(f"v_mfma_f32_32x32x16_bf16 {V(acc+16*t,16)}, {V(vEX,4)}, {A(EXTW+4*t,4)}, {V(acc+16*t,16)}" for t in range(n)))

sBQ, sAO, sAP, sBC, sBD = 66, 67, 68, 64, 65
TAB = [70, 71, 72, 73, 74, 75, 76, 77, 78, 79, 84]
sMK, sSK = 78, 79
def k2_setup(c):
    q = Prog()
    if OPT.get('mb', 3) == 3:
        q.e(f"s_and_b32 s{sMK}, s{sMT}, 11\ns_and_b32 s85, s{sSL}, 4\ns_or_b32 s{sMK}, s{sMK}, s85")
        q.e(f"s_and_b32 s{sSK}, s{sSL}, 3\ns_lshl_b32 s{sSK}, s{sSK}, 1\ns_bfe_u32 s85, s{sMT}, 0x10002\ns_add_u32 s{sSK}, s{sSK}, s85\ns_and_b32 s85, s{sSL}, 8\ns_add_u32 s{sSK}, s{sSK}, s85")
    else:
        q.e(f"s_mov_b32 s{sMK}, s{sMT}\ns_mov_b32 s{sSK}, s{sSL}")
    ld = f"buffer_load_dword v249, v248, {S(S_WS)}, s69 offen sc1"
    a_, b_, c_ = 248, 249, 250
    q.e(f"s_lshr_b32 s86, s{sSK}, 3\ns_lshl_b32 s85, s86, 2\ns_add_u32 s85, s85, s{sW}\ns_and_b32 s87, s{sSK}, 7\ns_mul_i32 s87, s87, 5\ns_mov_b32 s69, {WF_OFF}")
    q.e(f"s_mul_i32 s88, s85, 6\ns_mul_i32 s85, s85, 5\ns_sub_u32 s84, s87, 6")
    q.e(f"v_min_u32 v{c_}, 21, v{vL}\nv_cmp_gt_u32 s[64:65], 12, v{c_}\nv_mov_b32 v{a_}, s84\nv_mov_b32 v{b_}, s88\nv_cndmask_b32 v{a_}, v{a_}, v{b_}, s[64:65]")
    q.e(f"v_mov_b32 v{b_}, s85\nv_mov_b32 v243, s87\nv_cndmask_b32 v{b_}, v{b_}, v243, s[64:65]\nv_lshrrev_b32 v243, 1, v{c_}\nv_add_u32 v{a_}, v{a_}, v243")
    q.e(f"v_and_b32 v{c_}, 1, v{c_}\nv_lshl_add_u32 v{b_}, v{c_}, 2, v{b_}\nv_lshrrev_b32 v{b_}, 2, v{b_}\nv_mad_u32_u24 v{a_}, v{a_}, 10, v{b_}\nv_lshrrev_b32 v{a_}, 2, v{a_}\nv_lshlrev_b32 v{a_}, 7, v{a_}")
    q.e(f"s_lshr_b32 s86, s{sSK}, 3\ns_lshl_b32 s85, s86, 2\ns_add_u32 s85, s85, s{sW}\ns_mul_i32 s85, s85, 11")
    q.e(f"s_and_b32 s87, s{sSK}, 7\ns_mul_i32 s87, s87, 88\ns_add_u32 s87, s87, s85\ns_mul_i32 s{sBQ}, s87, 5120\ns_add_u32 s{sBQ}, s{sBQ}, {W2S_OFF}")
    q.e(f"s_lshl_b32 s87, s{sMK}, 1\ns_add_u32 s88, s87, s86\ns_mul_i32 s88, s88, 88\ns_add_u32 s88, s88, s85\ns_lshl_b32 s{sAO}, s88, 12")
    q.e(f"s_xor_b32 s86, s86, 1\ns_add_u32 s88, s87, s86\ns_mul_i32 s88, s88, 88\ns_add_u32 s88, s88, s85\ns_lshl_b32 s{sAP}, s88, 12")
    if OPT.get('hotB'): q.e(f"s_mov_b32 s{sBQ}, {W2S_OFF}")
    if OPT.get('hotA'): q.e(f"s_mov_b32 s{sAO}, {W2S_OFF}\ns_mov_b32 s{sAP}, {W2S_OFF}")
    q.e(f"s_lshl_b32 s88, s{sW}, 10")
    return q.items, code(ld), retry2(c, ld, [249], 250, 86)
BH = []
NDIR = [35]
def set_bh(five):
    BH[:] = [4 * f for f in range(28)] + ([] if five else [176, 212, 216]) + [240, 244, 248, 252] + [112 + 4 * k for k in range(12)] + [160, 164, 168, 172, 180, 184, 188, 192] + ([176, 212, 216] if five else [])
    NDIR[0] = 32 if five else 35
def bpre(f):
    i, ct = divmod(f, 5)
    t = f"s_add_u32 s{sBC}, s{sBQ}, {1024*f}\n" if ct in (0, 4) else ""
    return code(t + f"buffer_load_dwordx4 {A(BH[f],4)}, v{vL16}, {S(S_WS)}, s{sBC} offen offset:{1024*(ct&3)} sc1", 'bpre')
def add_bpre(c, first, stage):
    free = lambda f: 41 + f if f < 28 else 46
    f = 0
    while f < NDIR[0]:
        if not c.va.place(max(first, free(f)), bpre(f), dma='b', stride=OPT.get('bs' + c.typ, 2)): return f
        f += 1
    return f
def add_stage(c, first, stage):
    c.staged = []; c.lend = {}; c.va.quiet = OPT.get('q' + c.typ, 0)
    for n_, its in c.lights: c.lend[n_] = c.va.light(n_, its)[0]
    if OPT.get('vlog'): print('lights', c.lend, file=sys.stderr)
    xe_place(c, 46)
    for k, (lds, e) in enumerate(stage[:OPT.get('ns' + c.typ, 99)]):
        f = NDIR[0] + k
        if f >= 55: break
        i, ct = divmod(f, 5)
        t = f"s_add_u32 m0, s88, {lds}\ns_add_u32 s{sBD}, s{sBQ}, {1024*f}\n"
        t += f"buffer_load_dwordx4 v{vL16}, {S(S_WS)}, s{sBD} offen sc1 lds"
        if not c.va.place(max(first, e), code(t, 'bst'), dma='l', stride=OPT.get('ss' + c.typ, 2)): break
        c.staged.append((f, lds))
    c.va.b_next = 0
def xe_setup():
    q = Prog()
    q.e(f"s_lshr_b32 s48, s{sSK}, 3\ns_lshl_b32 s49, s{sMK}, 1\ns_add_u32 s48, s48, s49\ns_lshl_b32 s48, s48, 2\ns_add_u32 s48, s48, s{sW}\ns_lshl_b32 s48, s48, 4")
    q.e(f"s_and_b32 s49, s{sSK}, 7\ns_mul_i32 s49, s49, 160\ns_mul_i32 s51, s48, 1280\ns_andn2_b32 s50, s49, 127\ns_add_u32 s51, s51, s50\ns_mul_i32 s50, s{sW}, 4608")
    q.e(f"s_add_u32 s50, s50, {XE_L}\nv_lshrrev_b32 v{vSR}, 4, v1\nv_mul_u32_u24 v{vSR}, 1280, v{vSR}\nv_and_b32 v{vSR+1}, 15, v1\nv_lshl_add_u32 v{vSR}, v{vSR+1}, 4, v{vSR}")
    return q.items
def xe_place(c, n):
    for i in range(4):
        assert c.va.place(n, code(f"s_add_u32 m0, s50, {1024*i}\ns_add_u32 s{sBD}, s51, {5120*i}\nbuffer_load_dwordx4 v{vSR}, {S(S_X)}, s{sBD} offen lds", 'xe'), dma='l')
def unstage(c):
    q = Prog()
    q.e(f"v_add_u32 v{vPA}, s88, v{vL16}\nv_add_u32 v{vTW}, 65536, v{vPA}\nv_add_u32 v{vEX}, 131072, v{vPA}")
    q.wait_vm('bst')
    for f, lds in c.staged:
        q.e(f"ds_read_b128 {A(BH[f],4)}, v{(vPA, vTW, vEX)[lds >> 16]} offset:{lds & 65535}")
    return q.items
def brest(c):
    out = []
    done = set(range(c.nb)) | {f for f, _ in c.staged}
    for f in range(55):
        if f in done: continue
        i, ct = divmod(f, 5)
        t = f"s_add_u32 s{sBC}, s{sBQ}, {1024*f}\n"
        out.append(Group(code(t + f"buffer_load_dwordx4 {A(BH[f],4)}, v{vL16}, {S(S_WS)}, s{sBC} offen sc1", 'bpre'))); out[-1].pos = i
    if OPT.get('vlog'): print(c.typ, "direct", c.nb, "staged", len(c.staged), "rest", len(out), file=sys.stderr)
    return out

def extra_setup():
    q = Prog()
    q.e(f"s_add_u32 s{sT0}, s{S_W3}, 1024\ns_addc_u32 s{sT1}, s{S_W3+1}, 0\ns_bitcmp1_b32 s{sW}, 0\ns_cselect_b32 s{S_B}, s{sT0}, s{S_W1}\ns_cselect_b32 s{S_B+1}, s{sT1}, s{S_W1+1}\ns_cselect_b32 s{sT2}, 4, 0\ns_cselect_b32 s{sT3}, 49152, 0")
    q.e(f"s_mov_b32 s{S_B+2}, {640*3072}\ns_mov_b32 s{S_B+3}, 0x20000\ns_sub_u32 s{sLBS}, 128, s{sT3}")
    q.e(f"v_lshrrev_b32 v{t0}, 1, v{vL}\nv_xor_b32 v{t0}, s{sT2}, v{t0}\nv_mul_u32_u24 v{t0}, 3072, v{t0}\nv_and_b32 v{t1}, 1, v{vL}\nv_lshl_add_u32 v{vDS}, v{t1}, 4, v{t0}")
    q.e(f"v_bfe_u32 v{t0}, v{vL}, 4, 1\nv_lshrrev_b32 v{t1}, 5, v{vL}\nv_lshlrev_b32 v{t1}, 8, v{t1}\nv_mul_u32_u24 v{t0}, 1152, v{t0}\nv_add_u32 v{t1}, v{t1}, v{t0}")
    q.e(f"v_and_b32 v{t0}, 15, v{vL}\nv_lshl_add_u32 v{t1}, v{t0}, 3, v{t1}\nv_add_u32 v{vBR}, {X_JOB}, v{t1}\nv_xor_b32 v{vBR+1}, 128, v{vBR}")
    return q.items

def k1_X(p, c):
    ts = c.ts; o = c.opt
    sb = lambda j: X_RING + (j % X_NS) * X_SLOT
    def dma(j):
        pre = code(f"s_add_u32 s{sDB}, s{sDB}, 128") if j == 10 else []
        its = pre + ffn_dma(sb(j), j)
        if RB and j >= 10:
            its = its[:-3] + code(f"s_add_u32 m0, s88, {X_JOB + (j % 5) * 4096}\ns_add_u32 s{sD1}, s{sD0}, s{sLBS}\nbuffer_load_dwordx4 v{vDS}, {S(S_B)}, s{sD1} offen lds", ('slot', j)) + its[-3:]
        return its
    RB = o.get('rb', 0); c.t2 = [0, 1, 2, 3, 4] if RB else [0, 1, 2, 3]; set_bh(RB)
    CS2 = 216 if RB else CSA
    JP = 0
    ja, jda, jdb, jpa, jpb = jobs(c)
    ffn_dma_addr(p)
    p.e(f"s_mul_i32 s{sDB}, s{sW}, {16*3072}\ns_mul_i32 s{sT0}, s{sI}, {0 if OPT.get('hotW') else 384}\ns_add_u32 s{sDB}, s{sDB}, s{sT0}")
    c.save_id(p)
    p.e("s_waitcnt lgkmcnt(0)")
    srd(p, S_X, P_X, 2048 * 1280); ffn_srd(p)
    first_loads(p, dma(0))
    c.start(p)
    early_loads(p, 'X')
    common_addr(p)
    tr_addrs(p, X_RING)
    code_prefetch(p, 'X')
    p.extend(ja)
    p.extend(x_dma(1)); p.extend(dma(1))
    vtouch(p)
    p.e(NONCE_LD())
    ts(p)
    rT = Ring(vT, 4, X_RING)
    WS_ = o.get('wsync', 7)
    F1 = o.get('f1', 16)
    pre_extra = {('sync', WS_): [Marker('vm', 'pub')], ('post', WS_): flag(f"s{sBT+3}"), ('sync', F1): [Marker('vm', 'h')],
                 ('post', F1): code(f"buffer_store_dword v{vPT}, v{vFZ}, {S(S_WS)}, s{sFL} offen offset:4 sc1", 'flag')}
    JA = o.get('ja', 1); JB = o.get('jb', 1)
    steps, r0, r1 = build_steps(c, 'F' * 20, sb, dma, X_NS, rT, None, pre_extra, {} if o.get('nojob') else {o.get('jblk', 0): [jda, jdb]})
    p.extend(x_read(0))
    p.wait_vm(('slot', 0)); p.e("s_barrier")
    p.extend(flat(r0)); p.extend(flat(r1))
    ts(p)
    cs1, cs1s = cs_produce_ffn(ACC2, f"s_mul_i32 s{sT0}, s{sI}, 3")
    sl, su = stats_consume(c); cl, cu = cs_consume(c, 4, ACC2)
    ks_, kl, kc = k2_setup(c)
    CD = o.get('cd', 9); BF0 = o.get('bf0', 45)
    side = cs1[:10] + [Deadline(5)] + items(stats_job) + nonce_get(c) + cs1[10:] + [Deadline(CD), Gate(CD)] + stats_store() + cs1s + [Deadline(CD + 1)]
    assert o.get('jga', 10) > c.joblast, c.joblast
    if not JP: side += [Gate(o.get('jga', 10))] + jpa + [Gate(o.get('jgb', 12))] + jpb + (extra_setup() if RB else []) + [Deadline(o.get('jd', 22))]
    assert o.get('jd', 22) <= 26
    G1_ = o.get('g1', 22)
    ex1 = ([Gate(o.get('tg', 12))] + touch() + [Deadline(o.get('tg', 12) + 2)] if o.get('touch', 0) else []) + [Gate(14)] + ks_ + [Deadline(G1_), Gate(G1_)] + sl + cl[0] + [Deadline(G1_ + 1)]
    c.lights = [(G1_ + 1, cl[1])]
    ex1 += [Gate(o.get('gu', 31))] + su + cu + [Deadline(38), Gate(38)] + ext_read(4) + [Deadline(39)]
    assert BF0 - o.get('kld', 5) >= 38
    steps[39]['mf'] += ext_mfma(ACC1, 4, True); steps[39]['rd'] += [[], [], [], []]
    steps[40]['pre'] = ([] if o.get('ts') == 2 else [LazyStamp(ts)]) + steps[40]['pre']
    cs2, cs2s = cs_produce_ffn(CS2, f"s_mul_i32 s{sT0}, s{sI}, 3\ns_add_u32 s{sT0}, s{sT0}, 1")
    cl, cu = cs_consume(c, len(c.t2), CS2, 12800)
    side += [Gate(40)] + cs2 + [Deadline(45), Gate(45)] + cs2s + ffn_epi(ACC1, 0, 0)
    for tau in range(1, 3): side += ffn_epi(ACC1 + 16 * tau, tau >> 1, (tau & 1) * 512)
    TM0, TMB = c.TM0, c.TMB
    G2L = max(o.get('g2l', 53), BF0 + 1)
    ex2 = [Gate(G2L - 1)] + cl[0] + [Deadline(G2L)]
    c.lights.append((G2L, cl[1]))
    epi2 = lambda tau: ffn_epi(ACC2 + 16 * tau, 2 + (tau >> 1), (tau & 1) * 512)
    side += ffn_epi(ACC1 + 48, 1, 512) + [Deadline(o.get('e1d', 57)), Gate(61)] + cu + [Deadline(TM0 - 2), Gate(TM0 - 2)] + ext_read(len(c.t2)) + k2_flags(c) + [Deadline(TM0 + 1)]
    for k, tau in enumerate(c.t2[:-1]): side += [Gate(TM0 + TMB * (k + 1))] + code("s_nop 1") + epi2(tau) + [Deadline(TM0 + TMB * (k + 2))]
    add_stage(c, BF0, [(4096 * k, 42) for k in range(4)] + [(32768 + 4096 * k, 42) for k in range(5, 12)])
    c.nb = add_bpre(c, BF0, None)
    assert c.lend[G1_ + 1] < o.get('gu', 31) and c.lend[G2L] < 61
    resolve(steps)
    if o.get('noside'): side = nonce_get(c) + [Deadline(9)]
    weave(p, steps, side, base_rate=o.get('xrate', 2), extra=[ex1 + [Gate(34)] + xe_setup() + [Deadline(45), Gate(BF0 - o.get('kld', 5))] + kl + [Deadline(BF0 - o.get('kld', 5) + 1), Gate(BF0 - 1)] + kc + [Deadline(BF0)] + ex2])
    ts(p)
    p.extend(mk(c, 80) + epi2(c.t2[-1]) + mk(c, 81) + unstage(c))
    ts(p)

def k1_Y(p, c):
    ts = c.ts; o = c.opt
    sb = lambda j: Y_RING + (j % Y_NS) * Y_SLOT
    dma = lambda j: ssm_dma(sb(j), j) if j < 10 else ffn_dma(sb(j), j)
    RB = o.get('rb', 0); c.t2 = [1, 2, 3] if RB else [0, 1, 2, 3]; set_bh(False)
    p.e(f"s_mul_i32 s{sLBS}, s{sW}, 5120")
    p.e(f"s_and_b32 s{sT0}, s{sW}, 1\ns_lshl_b32 s{sT1}, s{sT0}, 2\ns_lshr_b32 s{sT2}, s{sW}, 1\ns_xor_b32 s{sT1}, s{sT1}, s{sT2}")
    p.e(f"s_lshl_b32 s{sT1}, s{sT1}, 4\nv_xor_b32 v{vDS}, s{sT1}, v{vXD}")
    p.e(f"s_mul_i32 s{sT1}, s{sI}, 80\ns_lshl_b32 s{sT0}, s{sT0}, 3\ns_add_u32 s{sT0}, s{sT0}, s{sT1}\ns_mul_i32 s{sBT}, s{sT0}, 1280")
    for t in range(1, 4): p.e(f"s_add_u32 s{sBT+t}, s{sBT}, {t*(20480-1024)}")
    p.e(f"s_add_u32 s{sBT+4}, s{sBT}, {4*20480}")
    c.save_id(p)
    p.e("s_waitcnt lgkmcnt(0)")
    srd(p, S_X, P_X, 2048 * 1280)
    p.e(f"s_cmp_ge_u32 s{sW}, 2\ns_cselect_b32 s{S_B}, s{P_BIM}, s{P_BRE}\ns_cselect_b32 s{S_B+1}, s{P_BIM+1}, s{P_BRE+1}")
    p.e(f"s_mov_b32 s{S_B+2}, {640*1280}\ns_mov_b32 s{S_B+3}, 0x20000")
    first_loads(p, dma(0))
    p.e("s_branch K_Y\n.set SPLIT, 0\nK_Y:")
    c.start(p)
    early_loads(p, 'Y')
    L = ACC2 + 16
    p.e(f"v_lshrrev_b32 v{L}, 5, v0\nv_lshlrev_b32 v{L}, 4, v{L}\nv_bfe_u32 v{L+1}, v0, 1, 4\nv_add_u32 v{L}, v{L}, v{L+1}")
    p.e(f"v_add_u32 v{L}, s{sT1}, v{L}\nv_min_u32 v{L}, 639, v{L}\nv_lshlrev_b32 v{L}, 1, v{L}")
    for k, ptr in enumerate((P_LRE, P_LIM, P_LDT)):
        p.e(f"global_load_ushort v{L+1+k}, v{L}, s[{ptr}:{ptr+1}]", tag='tbl')
    ffn_dma_addr(p); ffn_srd(p)
    p.e(f"s_mul_i32 s{sDB}, s{sW}, {16*3072}\ns_mul_i32 s{sT0}, s{sI}, {0 if OPT.get('hotW') else 384}\ns_add_u32 s{sDB}, s{sDB}, s{sT0}\ns_add_u32 s{sDB}, s{sDB}, 256")
    common_addr(p)
    p.e(f"v_and_b32 v{t0}, 1, v{vL}\nv_bfe_u32 v{t1}, v{vL}, 1, 4\nv_lshl_add_u32 v{t1}, v{t0}, 4, v{t1}")
    p.e(f"v_bfe_u32 v{t2}, v{t1}, 1, 3\nv_xor_b32 v{t2}, v{t2}, v{t0}\nv_lshrrev_b32 v{t3}, 5, v{vL}\nv_xor_b32 v{t2}, v{t2}, v{t3}\nv_lshlrev_b32 v{t2}, 4, v{t2}")
    p.e(f"v_and_b32 v{t3}, 7, v{t1}\nv_lshl_add_u32 v{t2}, v{t3}, 7, v{t2}\nv_lshrrev_b32 v{t3}, 3, v{t1}\nv_mul_u32_u24 v{t3}, 5120, v{t3}")
    p.e(f"v_add_u32 v{t2}, v{t2}, v{t3}\nv_add_u32 v{vBR}, {Y_RING}, v{t2}")
    for s in range(1, 4): p.e(f"v_xor_b32 v{vBR+s}, {32*s}, v{vBR}")
    tr_addrs(p, sb(10))
    code_prefetch(p, 'Y')
    vE, vAG, vFL, vSTW, vSTR, vE2 = 252, 253, 254, vXD, vXD + 1, 242
    p.e(f"v_lshlrev_b32 v{vE}, 5, v0\nv_mul_u32_u24 v{vE2}, 48, v0")
    srd(p, S_AG, P_WS, 32 * 1280, AGG_OFF)
    p.e(f"s_mul_i32 s{sT0}, s{sI}, {32*1280}\ns_add_u32 s{S_AG}, s{S_AG}, s{sT0}\ns_addc_u32 s{S_AG+1}, s{S_AG+1}, 0")
    p.e(f"v_subrev_u32 v{t0}, 160, v0\nv_min_u32 v{t0}, v{t0}, v0\nv_lshlrev_b32 v{vFL}, 3, v{t0}\nv_mov_b32 v{t1}, {OOB}\nv_cmp_gt_u32 vcc, 160, v0\nv_cndmask_b32 v255, v{t1}, v{vFL}, vcc")
    ts(p)
    q = Prog()
    lam_consts(q, L, [1, 16, 128], False)
    O = L + 8
    q.e(f"v_and_b32 v{L}, 1, v0\nv_lshlrev_b32 v{L}, 31, v{L}\nv_xor_b32 v{L}, 0x80000000, v{L}")
    for n in range(3): q.e(f"v_xor_b32 v{O+2*n+1}, v{L}, v{O+2*n+1}")
    q.e(f"ds_write_b64 v{vE}, {V(O,2)} offset:{Y_TBL}\nds_write_b128 v{vE}, {V(O+2,4)} offset:{Y_TBL+16}")
    table = q.items
    p.extend(x_dma(1)); p.extend(dma(1))
    vtouch(p)
    p.e(NONCE_LD())
    rT = Ring(vT, 4, sb(10)); rB = Ring(vBR, 4, Y_RING)
    steps, r0, r1 = build_steps(c, 'S' * 10 + 'F' * 10, sb, dma, Y_NS, rT, rB, {}, {})
    p.extend(x_read(0))
    p.wait_vm(('slot', 0)); p.e("s_barrier")
    p.extend(flat(r0)); p.extend(flat(r1))
    ts(p)
    q = Prog()
    q.e(f"s_lshl_b32 s{sT0}, s{sW}, 10")
    for s in range(4): q.e(f"v_add_u32 v{t0+s}, s{sT0}, v{vBR+s}\nds_read_b128 {A(CSF+4*s,4)}, v{t0+s}")
    for s in range(4): q.e(f"ds_read_b128 {A(EXTW+4*s,4)}, v{vBR+s} offset:4096")
    cs_store_addr(q, f"s_add_u32 s{sT0}, s{sI}, 24")
    CB = ACC2 + 48
    for s in range(4): q.e(f"v_mfma_f32_32x32x16_bf16 {V(CB,16)}, {V(vONE,4)}, {A(CSF+4*s,4)}, {'0' if s == 0 else V(CB,16)}")
    for s in range(4): q.e(f"v_mfma_f32_32x32x16_bf16 {V(ACC2,16)}, {V(vONE,4)}, {A(EXTW+4*s,4)}, {'0' if s == 0 else V(ACC2,16)}")
    cs1 = q.items
    cs1s = code(f"v_mov_b32 v{CB+1}, s{sN}\nv_mov_b32 v{ACC2+1}, s{sN}\nbuffer_store_dwordx2 {V(CB,2)}, v{t4}, {S(S_WS)}, s{sU2} offen sc1\ns_lshl_b32 s{sT0}, s{sW}, 8\ns_sub_u32 s{sT0}, s{sU2}, s{sT0}\n"
                f"buffer_store_dwordx2 {V(ACC2,2)}, v{t4}, {S(S_WS)}, s{sT0} offen offset:1024 sc1\n"
                f"s_add_u32 s{sT0}, s{sMT}, 16\ns_mul_i32 s{sT0}, s{sT0}, 1280\n"
                f"buffer_store_dwordx2 {V(vZ,2)}, v255, {S(S_AG)}, s{sT0} offen sc1", 'pub')
    sl, su = stats_consume(c); cl, cu = cs_consume(c, 5, ACC2)
    ks_, kl, kc = k2_setup(c)
    side = cs1[:13] + [Deadline(5)] + items(stats_job) + nonce_get(c) + cs1[13:] + [Deadline(o.get('pg', 10)), Gate(o.get('pg', 10))] + stats_store() + cs1s + table + [Deadline(18)]
    G1_ = o.get('g1', 22)
    ex1 = ([Gate(o.get('tg', 12))] + touch() + [Deadline(o.get('tg', 12) + 2)] if o.get('touch', 0) else []) + [Gate(14)] + ks_ + [Deadline(G1_), Gate(G1_)] + sl + cl[0] + [Deadline(G1_ + 1)]
    c.lights = [(G1_ + 1, cl[1])]
    side += [Gate(o.get('gu', 31))] + su + cu + [Deadline(38), Gate(38)] + ext_read(5) + [Deadline(39)]
    q = Prog()
    q.e(f"v_and_b32 v{t0}, 31, v{vL}\nv_mul_u32_u24 v{t2}, 48, v{t0}\nv_lshlrev_b32 v{t0}, 5, v{t0}\nv_lshrrev_b32 v{t1}, 5, v0\nv_lshl_add_u32 v{vAG}, v{t1}, 2, v{t2}")
    for t in range(5): q.e(f"ds_read_b64 {V(C0+2*t,2)}, v{t0} offset:{Y_TBL + 1024*t}")
    side += q.items + [Deadline(40)]
    steps[39]['mf'] += ext_mfma(ACC1, 5, False); steps[39]['rd'] += [[], [], [], [], []]
    steps[40]['pre'] = ([] if o.get('ts') == 2 else [LazyStamp(ts)]) + steps[40]['pre']
    AS = o.get('async', 12)
    BF0 = o.get('bf0y', 46)
    cs2, cs2s = cs_produce_ffn(CSA, f"s_mul_i32 s{sT0}, s{sI}, 3\ns_add_u32 s{sT0}, s{sT0}, 2")
    side += [Gate(40)] + cs2[:10]
    LM, E0, GA, G1 = 244, RT + 4, RT + 12, TMP - 2
    q = Prog()
    def scale(tt):
        for t in range(5): q.e(f"v_mul_f32 v{ACC1+16*t+tt}, v{RT+tt}, v{ACC1+16*t+tt}")
    q.extend(cs2[10:])
    q.add(Deadline(45))
    scale(0); scale(1)
    q.extend(cs2s)
    q.e(f"ds_read_b128 {V(LM,4)}, v{vE} offset:{Y_TBL+16}")
    for tt in range(1, 16):
        for t in range(5):
            g = (ACC1 + 16 * t) if tt == 1 else (G1 + 2 * t + (tt & 1))
            q.e(f"v_fma_f32 v{G1+2*t+((tt+1)&1)}, v{C0+2*t}, v{g}, v{ACC1+16*t+tt}")
        if tt < 15: scale(tt + 1)
        for t in range(5):
            g = (ACC1 + 16 * t) if tt == 1 else (G1 + 2 * t + (tt & 1))
            q.e(f"v_fmac_f32_dpp v{G1+2*t+((tt+1)&1)}, v{g}, v{C0+2*t+1} {QP}")
    for t in range(5): q.e(f"ds_write_b32 v{vAG}, v{G1+2*t} offset:{AG_L + 16 + 1536*t}", tag='agw')
    side += q.items + [Deadline(4 * (AS - 1) + 2), Gate(4 * (AS - 1) + 2)]
    q = Prog()
    q.e(f"ds_read_b128 {V(E0,4)}, v{vE2} offset:{AG_L+16}\nds_read_b128 {V(E0+4,4)}, v{vE2} offset:{AG_L+32}")
    q.e(f"s_sub_u32 s{sBT}, 15, s{sMT}\ns_mul_i32 s{sBT}, s{sBT}, 1280")
    fill = code("\n".join(f"s_add_u32 s{S_J0+i}, s{sBT}, {1280 + 3840*i}" for i in range(5)) + f"\ns_add_u32 s{sBT+4}, s{sH}, {6*4096}\ns_nop 0")
    for k in range(1, 8):
        g = E0 if k == 1 else (GA + (k & 1))
        q.e(f"v_fma_f32 v{GA+((k+1)&1)}, v{LM}, v{g}, v{E0+k}"); q.add(fill[k - 1])
        q.e(f"v_fmac_f32_dpp v{GA+((k+1)&1)}, v{g}, v{LM+1} {QP}")
    q.e(f"v_mov_b32 v{GA+1}, s{sN}\nbuffer_store_dwordx2 {V(GA,2)}, v255, {S(S_AG)}, s{sBT} offen sc1", tag='pub')
    side += q.items + [Deadline(4 * (AS - 1) + 4)]
    q = Prog()
    q.e(f"v_and_b32 v{t0}, 1, v{vL}\nv_bfe_u32 v{t1}, v{vL}, 1, 4\nv_lshl_add_u32 v{t1}, v{t0}, 4, v{t1}\nv_bfe_u32 v{t2}, v{vL}, 4, 1\nv_xor_b32 v{t0}, v{t0}, v{t2}")
    q.e(f"v_lshrrev_b32 v{t2}, 5, v{vL}\nv_xor_b32 v{t0}, v{t0}, v{t2}\nv_bfe_u32 v{t2}, v{vL}, 2, 1\nv_lshl_add_u32 v{t0}, v{t0}, 1, v{t2}\nv_lshlrev_b32 v{t0}, 4, v{t0}")
    q.e(f"v_lshl_add_u32 v{t1}, v{t1}, 6, v{t0}\ns_mul_i32 s{sT0}, s{sW}, 10240\ns_add_u32 s{sT0}, s{sT0}, 98304\nv_add_u32 v{vSTW}, s{sT0}, v{t1}\nv_xor_b32 v229, 16, v{vSTW}")
    q.e(f"v_lshrrev_b32 v{t0}, 4, v{vL}\nv_lshlrev_b32 v{t1}, 9, v{t0}\nv_bfe_u32 v{t2}, v{vL}, 2, 2\nv_lshl_add_u32 v{t1}, v{t2}, 6, v{t1}\nv_lshrrev_b32 v{t2}, 1, v{t0}\nv_xor_b32 v{t0}, v{t0}, v{t2}")
    q.e(f"v_and_b32 v{t0}, 1, v{t0}\nv_bfe_u32 v{t2}, v{vL}, 3, 1\nv_lshl_add_u32 v{t0}, v{t0}, 1, v{t2}\nv_bfe_u32 v{t2}, v{vL}, 1, 1\nv_xor_b32 v{t0}, v{t0}, v{t2}\nv_lshl_add_u32 v{t1}, v{t0}, 4, v{t1}")
    q.e(f"v_and_b32 v{t0}, 1, v{vL}\nv_lshl_add_u32 v{t1}, v{t0}, 3, v{t1}\nv_add_u32 v{vSTR}, s{sT0}, v{t1}\nv_xor_b32 v230, 32, v{vSTR}")
    cl, cu = cs_consume(c, 4, CSA)
    TM0, TMB = c.TM0, c.TMB
    G2L = max(o.get('g2l', 53), BF0 + 1)
    ex2 = [Gate(G2L - 1)] + cl[0] + [Deadline(G2L)]
    c.lights.append((G2L, cl[1]))
    side += q.items + [Gate(o.get('g2', 61))] + cu
    LP = [CSA + 2 * i for i in range(8)] + [4, 6, 8, 10, 12, 14, 16]
    ldl = "\n".join(f"buffer_load_dwordx2 {V(LP[i],2)}, v{vFL}, {S(S_AG)}, s{S_J0+i//3} offen offset:{(i%3)*1280} sc1" for i in range(15))
    side += [Deadline(TM0 - 2), Gate(TM0 - 2)] + ext_read(4) + k2_flags(c) + [Deadline(TM0 + TMB)]
    c.lights.append((max(TM0 - 2, c.NST - o.get('g3', 12)), code(ldl)))
    c.lights.append((c.NST - o.get('gx1', 4), code(c.ldx1)))
    for k, tau in enumerate(c.t2[:-1]): side += [Gate(TM0 + TMB * (k + 1))] + code("s_nop 1") + ffn_epi(ACC2 + 16 * tau, 4 + (tau >> 1), (tau & 1) * 512) + [Deadline(TM0 + TMB * (k + 2))]
    q = Prog()
    q.extend(retry(c, ldl, tagcheck([r + 1 for r in LP]), (ldl.split('\n')[0], tagcheck([LP[0] + 1]))))
    for i in range(13, -1, -1):
        q.e(f"v_fmac_f32 v{LP[i]}, v{LM+2}, v{LP[i+1]}\nv_fmac_f32_dpp v{LP[i]}, v{LP[i+1]}, v{LM+3} {QP}")
    q.e(f"ds_write_b32 v{vE2}, v{LP[0]} offset:{AG_L+12}", tag='pw')
    for k in range(7):
        g = LP[0] if k == 0 else E0 + k - 1
        q.e(f"v_fmac_f32 v{E0+k}, v{LM}, v{g}\nv_fmac_f32_dpp v{E0+k}, v{g}, v{LM+1} {QP}")
    q.e(f"ds_write_b128 v{vE2}, {V(E0,4)} offset:{AG_L+16}\nds_write_b128 v{vE2}, {V(E0+4,4)} offset:{AG_L+32}", tag='pw')
    gch = q.items
    q = Prog()
    CY = [216, 217, 218, 219, 228]
    for t in range(5): q.e(f"ds_read_b32 v{CY[t]}, v{vAG} offset:{AG_L + 12 + 1536*t}")
    cy = q.items
    def scan(tiles):
        q = Prog()
        for tt in range(16):
            for t in tiles:
                g = CY[t] if tt == 0 else (ACC1 + 16 * t + tt - 1)
                q.e(f"v_fmac_f32 v{ACC1+16*t+tt}, v{C0+2*t}, v{g}")
            for t in tiles:
                g = CY[t] if tt == 0 else (ACC1 + 16 * t + tt - 1)
                q.e(f"v_fmac_f32_dpp v{ACC1+16*t+tt}, v{g}, v{C0+2*t+1} {QP}")
            for k in ([tt // 2 - 1] if (tt >= 2 and tt % 2 == 0) else []) + ([7] if tt == 15 else []):
                for t in tiles: q.e(f"v_cvt_pk_bf16_f32 v{ACC1+16*t+k}, v{ACC1+16*t+2*k}, v{ACC1+16*t+2*k+1}")
            if tt == 10:
                for t in tiles: q.e(f"ds_write_b128 v{vSTW}, {V(ACC1+16*t,4)} offset:{HT2_L + t*2048}")
        return q.items
    def outp(tiles):
        q = Prog()
        for t in tiles:
            R = ACC1 + 16 * t
            q.e(f"ds_write_b128 v229, {V(R+4,4)} offset:{HT2_L + t*2048}")
            for rt in range(2):
                for tq in range(2): q.e(f"ds_read_b64_tr_b16 {V(R+8+4*rt+2*tq,2)}, v{(vSTR, 230)[rt]} offset:{HT2_L + t*2048 + tq*256}")
        for t in tiles:
            R = ACC1 + 16 * t
            q.e(f"s_add_u32 s{sT2}, s85, {t*4096}")
            for rt in range(2): q.e(f"buffer_store_dwordx4 {V(R+8+4*rt,4)}, v{vL16}, {S(S_WS)}, s{sT2} offen offset:{rt*1024} sc1", tag='h')
        return q.items
    add_stage(c, BF0, [(24576 + 4096 * k, 46) for k in (0, 1, 7)] + [(12288, 46), (159744, 46)] + [(Y_RING + 20480 * k + 16384, 46) for k in range(5)] + ([(sb(15) + 4096 * k, 66) for k in range(4)] if o.get('st15', 0) else []))
    c.nb = add_bpre(c, BF0, None)
    assert c.lend[G1_ + 1] < o.get('gu', 31) and c.lend[G2L] < 61
    resolve(steps)
    if o.get('noside'): side = nonce_get(c) + [Deadline(9)]
    weave(p, steps, side, base_rate=o.get('yrate', 3),
                 extra=[ex1 + [Gate(34)] + xe_setup() + [Deadline(45), Gate(BF0 - o.get('kld', 5))] + kl + [Deadline(BF0 - o.get('kld', 5) + 1), Gate(BF0 - 1)] + kc + [Deadline(BF0)] + ex2])
    ts(p)
    p.e(f"s_mov_b32 s85, s{sBT+4}\nv_mov_b32 v{vKN}, v{vPT}\nv_mov_b32 v{vKF}, v{vFZ}")
    p.extend(unstage(c))
    tail = mk(c, 80) + c.chkx1 + merge(c.aload(0) + c.aload(1), merge(autogroup(gch), ffn_epi(ACC2 + 48, 5, 512), keep=True), 1.0) + mk(c, 81) + [Marker('lgkm', 'pw')] + code("s_barrier")
    OV = o.get('ov', 0)
    BR = brest(c); NB = min(len(BR), o.get('nbt', 0))
    tail += cy + merge(BR[:NB], scan([0, 1]), 1.0) + mk(c, 82)
    if OV == 0:
        tail += merge(outp([0, 1]), scan([2, 3]), 1.0) + mk(c, 83)
        tail += merge(outp([2, 3]), scan([4]) + outp([4])[:5], 1.0) + code(c.ldx) + outp([4])[5:]
        c.k2side = []
    c.k2b = BR[NB:]
    if OV == 0: pass
    elif OV == 1:
        tail += merge(outp([0, 1]) + c.aload(2), scan([2, 3, 4]), 1.0) + mk(c, 83) + code(c.ldx); c.a2 = True
        c.k2side = outp([2, 3, 4]) + [Deadline(2)]
    else:
        tail += mk(c, 83) + c.aload(2) + code(c.ldx); c.a2 = True
        c.k2side = merge(outp([0, 1]), scan([2, 3, 4]), 1.0) + outp([2, 3, 4]) + [Deadline(2)]
    p.extend(tail)
    ts(p)

def mk(c, n): return code(f'.set STEPMARK{c.typ}{n}, 0') if c.opt.get('st0') is not None else []
def merge(a, b, f=1.15, keep=False):
    out = []; k = 0
    for i, it in enumerate(b):
        out.append(it)
        while k < len(a) and k * len(b) <= i * len(a) * f:
            out.append(a[k]); k += 1
    out += a[k:]
    if keep: return out
    return [y for x in out for y in (x.its if isinstance(x, Group) else [x])]

vKW, vKF, vKN = 36, 37, 35
HOMES = [(A, 220), (A, 196), (V, 200), (V, 18)]
def plan_homes(c):
    KF = OPT.get('kf', 3)
    front = [('o', 0), ('o', 1), ('p', 0), ('p', 1), ('o', 2), ('o', 3), ('p', 2), ('p', 3)]
    moved = {4: [], 2: [('o', 2), ('o', 3)], 3: [('o', 3)]}[KF]
    front = [x for x in front if x not in moved]
    c.seq = front + [('p', i) for i in range(4, 11)] + moved + [('o', i) for i in range(4, 11)]
    c.NF = len(front); c.PL = c.NF + 6
    lastB = {i: max(u for u, (k, j) in enumerate(c.seq) if j == i) for i in range(11)}
    pool = [[A, 220, -9], [A, 196, -9], [V, 200, -9], [V, 18, -9]] + [[A, 16 * k, max(lastB[(16 * k) // 20], lastB[(16 * k + 15) // 20]) + 1] for k in range(5)]
    c.home = []; c.earliest = []
    for v in range(22):
        h = min(pool, key=lambda x: x[2])
        c.home.append((h[0], h[1])); c.earliest.append(h[2])
        h[2] = v + 1 + (1 if v in (c.PL - 1, 20) else 0)
def k2_flags(c):
    q = Prog()
    q.e(f"s_and_b32 s87, s{sSK}, 8\ns_lshl_b32 s86, s{sW}, 1\ns_add_u32 s87, s87, s86\ns_lshl_b32 s86, s{sMK}, 4\ns_add_u32 s87, s87, s86")
    q.e(f"s_lshl_b32 s87, s87, 7\ns_add_u32 s87, s87, {HF_OFF}\nv_mov_b32 v248, 0")
    c.ldx = f"buffer_load_dword v249, v248, {S(S_WS)}, s87 offen sc1"
    c.ldy = f"buffer_load_dword v250, v248, {S(S_WS)}, s87 offen offset:128 sc1"
    c.chkx = retry(c, c.ldx, tagcheck([249]))
    c.ldx1 = f"buffer_load_dword v250, v248, {S(S_WS)}, s87 offen offset:4 sc1"
    if c.typ == 'Y': c.chkx1 = retry(c, c.ldx1, tagcheck([250]))
    plan_homes(c)
    def aload(u):
        kind, i = c.seq[u]; R, b = c.home[u]; s_ = sAP if kind == 'p' else sAO
        return code(f"s_add_u32 s{sBD}, s{s_}, {4096*i}\n" + "\n".join(f"buffer_load_dwordx4 {R(b+4*rt,4)}, v{vL16}, {S(S_WS)}, s{sBD} offen offset:{1024*rt} sc1" for rt in range(4)))
    c.aload = aload
    return q.items

def k2(p, c):
    ts = c.ts; o = c.opt
    AP, AO = 40, 120
    seq = c.seq; aload = c.aload; ldy = c.ldy
    isY = c.typ == 'Y'
    mark = lambda n: p.e(f'.set STEPMARK{c.typ}{n}, 0') if o.get('st0') is not None else None
    fl = code(f"buffer_store_dword v{vKN}, v{vKF}, {S(S_WS)}, s{sFL} offen sc1", 'flag')
    if not isY: p.e(f"v_mov_b32 v{vKN}, v{vPT}\nv_mov_b32 v{vKF}, v{vFZ}")
    q = Prog()
    srd(q, S_W1, P_D, 1280)
    srd(q, S_W3, P_OUT, 2048 * 2560)
    q.e(f"s_and_b32 s{sU0}, s{sSK}, 7\ns_lshr_b32 s{sU1}, s{sSK}, 3\ns_lshl_b32 s{sT1}, s{sMK}, 1\ns_add_u32 s{sU1}, s{sU1}, s{sT1}")
    q.e(f"s_mul_i32 s61, s48, 1280\ns_add_u32 s61, s61, s49\ns_lshl_b32 s61, s61, 1\ns_and_b32 s59, s49, 127\ns_add_u32 s59, s59, s50\ns_mov_b32 s60, s50\nv_lshlrev_b32 v5, 2, v1")
    q.e(f"s_add_u32 m0, s60, 4096\nbuffer_load_dword v5, {S(S_W1)}, s49 offen lds", tag='xe')
    q.e(f"s_lshl_b32 s49, s48, 4\ns_add_u32 s49, s49, {ST_OFF}\nv_and_b32 v3, 15, v1\nv_lshlrev_b32 v3, 4, v3")
    lds_ = f"buffer_load_dwordx4 v[252:255], v3, {S(S_WS)}, s49 offen sc1"
    q.e(lds_)
    q.e(f"s_lshl_b32 s{sT0}, s{sU1}, 3\ns_add_u32 s{sT0}, s{sT0}, s{sU0}\ns_mul_i32 s62, s{sT0}, 28672\ns_add_u32 s62, s62, {PX_OFF}")
    q.e(f"s_xor_b32 s{sT0}, s{sT0}, 8\ns_mul_i32 s63, s{sT0}, 28672\ns_add_u32 s63, s63, {PX_OFF}")
    q.e(f"v_lshlrev_b32 v17, 4, v0")
    q.e(f"v_and_b32 v4, 15, v1\nv_mul_u32_u24 v4, 336, v4\nv_lshrrev_b32 v5, 4, v1\nv_lshl_add_u32 v4, v5, 4, v4\ns_mul_i32 s44, s{sW}, 21504\nv_add_u32 v{vKW}, s44, v4")
    EL, EO = 6, 11
    EX, ED, ES = 216, 226, 236
    q.e(f"s_mul_i32 s44, s{sW}, {16*336}")
    rdl = Prog()
    rdl.extend(retry(c, lds_, tagcheck([254, 255])))
    rdl.e(f"v_lshrrev_b32 v3, 1, v3\nv_add_u32 v3, s60, v3\nds_write_b64 v3, v[252:253] offset:4352")
    rdl.wait_vm('xe')
    for u in range(5):
        q.e(f"v_add_u32 v4, {64*u}, v1\nv_mul_u32_u24 v5, 3277, v4\nv_lshrrev_b32 v5, 16, v5\nv_lshlrev_b32 v4, 4, v4\nv_lshl_add_u32 v2, v5, 4, v4\nv_add_u32 v{EL+u}, s44, v2")
        q.e(f"v_mul_u32_u24 v2, 320, v5\nv_sub_u32 v4, v4, v2\nv_lshl_add_u32 v{EO+u}, v2, 3, v4\nv_lshrrev_b32 v4, 1, v4")
        q.e(f"v_lshl_add_u32 v2, v5, 8, v4\nv_add_u32 v{EX+2*u}, s59, v2\nv_add_u32 v{ED+2*u}, s60, v4\nv_lshlrev_b32 v5, 3, v5\nv_add_u32 v{ES+2*u}, s60, v5")
        rdl.e(f"ds_read_b64 {V(EX+2*u,2)}, v{EX+2*u}\nds_read_b64 {V(ED+2*u,2)}, v{ED+2*u} offset:4096\nds_read_b64 {V(ES+2*u,2)}, v{ES+2*u} offset:4352")
    ksetup = q.items
    if not isY:
        BR = brest(c); NB = min(len(BR), o.get('nbx', 99))
        p.extend(merge(BR[:NB], [])); c.k2b = BR[NB:]
        p.extend(mk(c, 82))
        p.wait_vm('h'); p.e("s_barrier"); p.extend(fl)
        p.extend(ksetup)
        p.e(c.ldx)
        p.extend(mk(c, 83))
        ts(p)
        p.extend(c.chkx)
        for u in range(3): p.extend(aload(u))
    elif not getattr(c, 'a2', False):
        p.extend(aload(2))
    ts(p)
    steps = []
    for u, (kind, i) in enumerate(seq):
        R, a = c.home[u]; acc = AP if kind == 'p' else AO
        mf = []
        for rt in range(4):
            for ct in range(5):
                d = acc + 4 * (5 * rt + ct)
                mf += code(f"v_mfma_f32_16x16x32_bf16 {V(d,4)}, {A(BH[5*i+ct],4)}, {R(a+4*rt,4)}, {'0' if i == 0 else V(d,4)}")
        steps.append(dict(pre=[], mf=mf, rd=[[] for _ in mf]))
    NF, PL = c.NF, c.PL
    CU = NF - (o.get('cuy', 2) if isY else o.get('cux', 3))
    C2 = o.get('c2', 2)
    if isY: steps[C2]['pre'] += c.chkx
    steps[CU]['pre'] += retry(c, ldy, tagcheck([250])) + [LazyStamp(ts)]
    steps[CU - 1]['rd'][o.get('lyg', 10)] += code(ldy)
    g = 0; AS_ = o.get('as', 4)
    for v in range(3, 22):
        e = max(c.earliest[v], v - o.get('ad', 6), 0)
        if isY and v >= 4: e = max(e, C2)
        if v >= NF: e = max(e, CU)
        g = max(g, 20 * e)
        its = aload(v)
        st_ = AS_ if g < 20 * (v - 2) else 2
        steps[g // 20]['rd'][g % 20] += [its[0]]
        for k in range(4): steps[g // 20]['rd'][g % 20] += [its[k + 1]]; g += st_
        assert g <= 20 * v, (v, g)
        if o.get('vlog'): print(c.typ, v, c.home[v][1], g, file=sys.stderr)
    def wr(acc, rt):
        return code("\n".join(f"ds_write_b128 v{vKW}, {V(acc+4*(5*rt+ct),4)} offset:{rt*16*336 + ct*64}" for ct in range(5)), 'pw')
    side = []
    if isY:
        side += c.k2side + ksetup + [Deadline(o.get('ksd', 2))]
        steps[o.get('fu', 3)]['rd'][o.get('fg', 4)] += [Marker('vm', 'h')] + code("s_barrier") + fl
    M = f"s{sMASK}"
    q = Prog()
    PT = [r for u in range(5) for r in (EX + 2 * u, EX + 2 * u + 1, ED + 2 * u, ED + 2 * u + 1)]
    Xr = [2, 3, 4, 5]; Dr = [246, 247, 252, 253]; Yr = [254, 255, 16, 34]
    for u in range(5):
        q.e(f"v_lshlrev_b32 v{Xr[0]}, 16, v{EX+2*u}\nv_and_b32 v{Xr[1]}, {M}, v{EX+2*u}\nv_lshlrev_b32 v{Xr[2]}, 16, v{EX+2*u+1}\nv_and_b32 v{Xr[3]}, {M}, v{EX+2*u+1}")
        q.e(f"v_lshlrev_b32 v{Dr[0]}, 16, v{ED+2*u}\nv_and_b32 v{Dr[1]}, {M}, v{ED+2*u}\nv_lshlrev_b32 v{Dr[2]}, 16, v{ED+2*u+1}\nv_and_b32 v{Dr[3]}, {M}, v{ED+2*u+1}")
        q.e(f"v_and_b32 v{ES+2*u+1}, {M}, v{ES+2*u+1}\nv_mul_f32 v{ES+2*u+1}, v{ES+2*u+1}, v{ES+2*u}")
        for i in range(4): q.e(f"v_fma_f32 v{Yr[i]}, v{Xr[i]}, v{ES+2*u}, v{ES+2*u+1}")
        rnd = (f"v_cvt_pk_bf16_f32 v{Yr[0]}, v{Yr[0]}, v{Yr[1]}\nv_cvt_pk_bf16_f32 v{Yr[2]}, v{Yr[2]}, v{Yr[3]}\n"
               f"v_and_b32 v{Yr[1]}, {M}, v{Yr[0]}\nv_lshlrev_b32 v{Yr[0]}, 16, v{Yr[0]}\nv_and_b32 v{Yr[3]}, {M}, v{Yr[2]}\nv_lshlrev_b32 v{Yr[2]}, 16, v{Yr[2]}")
        q.e(rnd)
        for i in range(4): q.e(f"v_mul_f32 v{Yr[i]}, v{Yr[i]}, v{Dr[i]}")
        q.e(rnd)
        for i in range(4): q.e(f"v_add_f32 v{PT[4*u+i]}, v{Xr[i]}, v{Yr[i]}")
    pre = rdl.items + q.items
    def fuse(u, acc):
        a, b = steps[u], steps[u + 1]
        mf = []; rd = []
        for rt in range(4):
            mf += a['mf'][5 * rt:5 * rt + 5] + b['mf'][5 * rt:5 * rt + 5]
        rd = a['rd'] + b['rd']
        for rt in range(3):
            w = wr(acc, rt)
            for k in range(5): rd[10 * (rt + 1) + 3 + k] += [w[k]]
        a['mf'], a['rd'] = mf[:20], rd[:20]; b['mf'], b['rd'] = mf[20:], rd[20:]
    fuse(PL - 1, AP); fuse(20, AO)
    w = wr(AP, 3)
    for k in range(5): steps[PL + 1]['rd'][3 + k] += [w[k]]
    steps[PL + 1]['rd'][12] += [Marker('lgkm', 'pw')] + code("s_barrier")
    q = Prog()
    GR = AP + 48
    gi = lambda f: GR + 4 * (f // 3) + f % 3
    sent = [0]
    PXB = o.get('pxb', 1); NG, NV = (4, 10) if PXB else (7, 20)
    def send(upto):
        while sent[0] < NG and (3 * sent[0] + 2 < upto or upto == NV):
            g = sent[0]; sent[0] += 1
            q.e(f"v_mov_b32 v{GR+4*g+3}, s{sN}\nbuffer_store_dwordx4 {V(GR+4*g,4)}, v17, {S(S_WS)}, s63 offen sc1\ns_add_u32 s63, s63, 4096")
    def red(u):
        T = AP + 16 * (u % 3)
        for i in range(4): q.e(f"v_add_f32 v{T+i}, v{T+i}, v{T+4+i}\nv_add_f32 v{T+8+i}, v{T+8+i}, v{T+12+i}")
        if PXB:
            for i in range(4): q.e(f"v_add_f32 v{T+i}, v{T+i}, v{T+8+i}")
            for i in range(2): q.e(f"v_cvt_pk_bf16_f32 v{gi(2*u+i)}, v{T+2*i}, v{T+2*i+1}")
            send(2 * u + 2)
        else:
            for i in range(4): q.e(f"v_add_f32 v{gi(4*u+i)}, v{T+i}, v{T+8+i}")
            send(4 * u + 4)
    for u in range(5):
        T = AP + 16 * (u % 3)
        for w in range(4): q.e(f"ds_read_b128 {V(T+4*w,4)}, v{EL+u} offset:{w*21504}")
        if u >= 2: red(u - 2)
    red(3); red(4)
    RG = AP
    ldp = "\n".join(f"buffer_load_dwordx4 {V(RG+4*g,4)}, v17, {S(S_WS)}, s{70+g} offen sc1" for g in range(NG))
    if o.get('cp2', 1):
        L = f"{c.typ}_cp2"
        steps[max(CU, 5)]['rd'][19] += code(f"s_getpc_b64 s[90:91]\n{L}:\nv_lshlrev_b32 v4, 7, v0\nv_min_u32 v4, {c.typ}_end-{L}, v4\nglobal_load_dword v250, v4, s[90:91]")
    side += ([Gate(CU - 2 if isY else 1)] + pre + [Deadline(CU)] if o.get('pe', 1) else [Gate(max(CU + 1, 6))] + pre + [Deadline(PL - 1)]) + [Gate(PL + 2)] + q.items + [Deadline(PL + 4)] + code("\n".join(f"s_add_u32 s{70+g}, s62, {4096*g}" for g in range(NG))) + [Deadline(20)]
    side += [Gate(o.get('lpu', 20))] + code(ldp)
    steps[20]['rd'][0] += code("s_barrier")
    if o.get('st0') is not None:
        for u, st in enumerate(steps): st['pre'] = code(f'.set STEPMARK{c.typ}{84+u}, 0') + st['pre']
    resolve(steps)
    if o.get('dk2') is not None: steps[o['dk2']]['pre'] += code('s_sleep 36')
    kb = []
    for g in c.k2b:
        u0 = min(u for u, x in enumerate(seq) if x[1] == g.pos)
        kb += g.its + [Deadline(max(1, min(u0 - o.get('bl', 2), o.get('bd', 5))))]
    weave(p, steps, side, base_rate=1, extra=[kb])
    ts(p); mark(106)
    p.extend(wr(AO, 3))
    p.wait_lgkm('pw')
    p.e("s_barrier")
    mark(107)
    for u in range(5):
        for w in range(4): p.e(f"ds_read_b128 {V(AO+16*u+4*w,4)}, v{EL+u} offset:{w*21504}")
        if u == 2:
            p.extend(retry(c, ldp, tagcheck([RG + 4 * g + 3 for g in range(NG)])))
            if PXB:
                for d in range(10):
                    r = RG + 4 * (d // 3) + d % 3
                    p.e(f"v_lshlrev_b32 v{RG+16+d}, 16, v{r}\nv_and_b32 v{r}, {M}, v{r}")
                for d in range(10):
                    r = RG + 4 * (d // 3) + d % 3
                    p.e(f"v_add_f32 v{PT[2*d]}, v{PT[2*d]}, v{RG+16+d}\nv_add_f32 v{PT[2*d+1]}, v{PT[2*d+1]}, v{r}")
            else:
                for f in range(20): p.e(f"v_add_f32 v{PT[f]}, v{PT[f]}, v{RG + 4*(f//3) + f%3}")
    mark(108)
    for u in range(5):
        R = AO + 16 * u
        for i in range(4): p.e(f"v_add_f32 v{R+i}, v{R+i}, v{R+4+i}\nv_add_f32 v{R+8+i}, v{R+8+i}, v{R+12+i}")
        for i in range(4): p.e(f"v_add_f32 v{R+i}, v{R+i}, v{PT[4*u+i]}")
        for i in range(4): p.e(f"v_add_f32 v{R+i}, v{R+i}, v{R+8+i}")
        p.e(f"buffer_store_dwordx4 {V(R,4)}, v{EO+u}, {S(S_W3)}, s61 offen{NT('nto')}{' sc1' if OPT.get('osc', 1) else ''}{' sc0' if OPT.get('osc', 1) == 2 else ''}")
    mark(109)
    if o.get('st0') is not None: p.e("s_waitcnt vmcnt(0)"); mark(110); p.e("s_nop 15\ns_nop 15\ns_nop 15"); mark(111)
    ts(p)

HEADER = open('parallel_sum__ssm_conv_s5__glu_gated_swiglu__prompt.s.ref').read().split('; Override launch')[0]

def profile(txt, typ):
    out = []; k = 2; sites = []; nm = 0
    lo = OPT.get('prof0', 0)
    for l in txt.split('\n'):
        if 'mfma' in l: nm += 1
        if 's_memrealtime' in l and k > 2: k = 100
        hit = ('vmcnt' in l or 's_barrier' in l or 's_cbranch_vccnz' in l or '_slow' in l) and nm >= lo and k < 62
        if OPT['prof'] == 2: hit = ('buffer_' in l or 'global_' in l) and nm >= lo and k < 62
        if hit and '_slow' in l:
            out.append("  s_memtime s[0:1]"); out.append(l); pend = True; sites.append((k, nm, l.strip())); continue
        if OPT['prof'] == 1 and l.endswith('_ret:') and out[-2].startswith("  s_memtime s[0:1]"):
            out.append(l); out.append(f"  s_memtime s[2:3]\n  s_waitcnt lgkmcnt(0)\n  s_sub_u32 s2, s2, s0\n  s_or_b32 s2, s2, 1\n  v_writelane_b32 v251, s2, {k}"); k += 1; continue
        if hit:
            out.append(f"  s_memtime s[0:1]\n{l}\n  s_memtime s[2:3]\n  s_waitcnt lgkmcnt(0)\n  s_sub_u32 s2, s2, s0\n  s_or_b32 s2, s2, 1\n  v_writelane_b32 v251, s2, {k}")
            sites.append((k, nm, l.strip())); k += 1
        else: out.append(l)
    print(typ, "sites:", [(b, ('D' if ' lds' in c else 'S' if 'store' in c else 'L') if 'buffer' in c or 'global' in c else c.replace('s_waitcnt ', '').replace('s_cbranch_', '')) for a, b, c in sites], file=sys.stderr)
    return '\n'.join(out)

def build(opt):
    OPT.update(opt)
    ph = Prog(); setup(ph, opt)
    ph.e(f"s_bitcmp1_b32 s{sSL}, 0\ns_cbranch_scc0 K_X")
    body = ph.finalize() + "\n"
    sx = [it for it in ph.items if isinstance(it, I) and it.tag == 'cpf' and it.kind == 'vm']
    parts = {}
    for typ, fn in (('X', k1_X), ('Y', k1_Y)):
        c = Ctx(typ, opt)
        p = Prog()
        if typ == 'X': p.e("K_X:")
        p.add(Marker('assume_vm', sx))
        def save_id(p):
            if opt.get('ts'): p.e('v_mov_b32 v251, 0')
            p.e("s_memrealtime s[2:3]")
        def start(p, c=c):
            c.ts(p, True); c.ts(p)
            if opt.get('prof') or opt.get('st0') is not None: c.ts.on = False
        c.save_id = save_id; c.start = start
        fn(p, c)
        k2(p, c)
        if opt.get('prof') or opt.get('st0') is not None: c.ts.on = True; c.ts.n = 63
        if c.ts.on:
            p.wait_all(); c.ts(p, True); c.ts.dump(p)
        p.e(f"{typ}_end:\ns_endpgm")
        st = {}
        txt = p.finalize(st)
        if opt.get('prof'): txt = profile(txt, typ)
        if opt.get('st0') is not None:
            out = []
            for l in txt.split('\n'):
                if 'STEPMARK' in l:
                    k = int(l.split(',')[0].split(typ)[-1]) - opt['st0']
                    if 0 <= k <= 60:
                        a = 2 * (k & 1)
                        if k > 0: out.append(f"  v_writelane_b32 v251, s{2-a}, {k}")
                        if k < 60: out.append(f"  s_memtime s[{a}:{a+1}]")
                else: out.append(l)
            txt = '\n'.join(out)
        import re as _re
        slow = [q for q in c.slow if _re.search(r'(\w+)_slow:', q).group(1) + '_ret:' in txt]
        if opt.get('nodma'): txt = '\n'.join(l for l in txt.split('\n') if not (' lds' in l and 'buffer_load' in l))
        if opt.get('nomfma'): txt = '\n'.join(l for l in txt.split('\n') if not ('32x32x16' in l))
        if opt.get('nowait'): txt = '\n'.join(l for l in txt.split('\n') if not ('vmcnt' in l and 'vmcnt(0)' not in l))
        if opt.get('nost'): txt = '\n'.join(l for l in txt.split('\n') if not ('buffer_store_dwordx4' in l and 's61' not in l))
        if opt.get('noA'): txt = '\n'.join(l for l in txt.split('\n') if not ('buffer_load_dwordx4' in l and 's65 offen offset' in l))
        if opt.get('noB'): txt = '\n'.join(l for l in txt.split('\n') if not ('buffer_load_dwordx4' in l and ('s64 offen' in l or 's65 offen sc1 lds' in l)))
        if opt.get('nok2'): txt = '\n'.join(l for l in txt.split('\n') if not ('16x16x32' in l))
        if opt.get('nosmall'): txt = '\n'.join(l for l in txt.split('\n') if not (('buffer_' in l or 'global_' in l) and 'dwordx4' not in l and 'v211' not in l and 'v251' not in l))
        if opt.get('plainH'): txt = '\n'.join(l.replace(' sc1', {1: '', 2: ' sc0', 3: ' nt'}[opt['plainH']]) if ('buffer_store_dwordx4' in l and 's46 offen' in l) else l for l in txt.split('\n'))
        if opt.get('plainA'): txt = '\n'.join(l.replace(' sc1', '') if ('buffer_load_dwordx4' in l and 's65 offen offset' in l) else l for l in txt.split('\n'))
        if opt.get('nolds'): txt = '\n'.join(l for l in txt.split('\n') if not ('ds_read' in l))
        parts[typ] = txt + "\n" + "\n".join(slow) + "\n"
        print(typ, st, file=sys.stderr)
    y0, y1 = parts['Y'].split("  .set SPLIT, 0\n")
    body += y0 + parts['X'] + y1
    body += "K_end:\n  s_endpgm\n"
    k = NAME + "_kernel"
    if opt.get('plain'): body = body.replace(' sc1', '')
    if opt.get('plainst'): body = '\n'.join(l.replace(' sc1', '') if 'buffer_store' in l else l for l in body.split('\n'))
    s = HEADER + "; @launch grid=(256,1,1) block=(256,1,1) lds=163840\n"
    s += """; One persistent launch, 256 workgroups (one per CU), 4 waves of 512 registers each.  Generated by my own script.
;  GEMM1 : x (raw bf16, fragments kept in AGPRs) times [B_re|B_im|w1|w3] staged through an LDS ring (LDS-DMA, swizzled).
;  scan  : exact chunked recurrence (16-step segments in-lane, 128-step chunks per workgroup, look-back over all earlier chunks).
;  GEMM2 : [h|hff] times [C'|w2], 128x80 tiles, K split over a workgroup pair and over the 4 waves; residual + D-skip in the epilogue.
;  Hand-offs between workgroups: write-through stores, tagged with a per-launch nonce published through d_debug.
"""
    s += f'.amdgcn_target "amdgcn-amd-amdhsa--gfx950"\n.text\n.globl {k}\n.p2align 8\n.type {k},@function\n{k}:\n{body}'
    s += '.section .rodata,"a"\n' + kd(k, 512, 102, 256)
    return s

if __name__ == '__main__':
    opt = {}
    for a in sys.argv[2:]:
        k, v = a.split('='); opt[k] = int(v)
    open(sys.argv[1], 'w').write(build(opt))
```

```python
import sys, struct
from asmgen import Prog, I, Marker
from sched import weave, Gate, Deadline, Group, autogroup
from common import kd

NAME = "parallel_sum__ssm_conv_s5__glu_gated_swiglu__prompt"
H_OFF = 0
W2S_OFF = 32 * 88 * 4096
ST_OFF = W2S_OFF + 8 * 88 * 5120
AGG_OFF = ST_OFF + 32768
CS_OFF = AGG_OFF + 8 * 32 * 1280
HF_OFF = CS_OFF + 32 * 12800
WF_OFF = HF_OFF + 256 * 128
PX_OFF = WF_OFF + 128 * 128
WS_USED = PX_OFF + 256 * 7 * 4096
TS_OFF = 24 << 20
LOG2E, NLOG2E, INV2PI, OOB = 0x3fb8aa3b, 0xbfb8aa3b, 0x3e22f983, 0x7f000000
def f2u(x): return struct.unpack('<I', struct.pack('<f', x))[0]

S_X, S_W1, S_W3, S_B, S_WS, S_J0, S_J1, S_DBG, S_AG = 4, 8, 12, 16, 20, 24, 28, 32, 36
sMT, sSL, sW, sI, sT0, sT1, sT2, sT3 = 40, 41, 42, 43, 44, 45, 46, 47
sXR = 48
sMASK, sFL, sLB, sD0, sD1, sH, sLBS, sBT = 52, 53, 54, 55, 56, 57, 58, 59
P_X, P_LRE, P_LIM, P_BRE, P_BIM, P_CRE, P_CIM, P_LDT, P_D, P_BX, P_W1, P_W3, P_W2, P_OUT, P_DBG, P_WS = [64 + 2 * i for i in range(16)]
sKX, sKB, sDB, sROT, sU0, sU1 = 96, 97, 98, 99, 100, 101
sSP = 89
sU2, sU3 = 82, 83
sN = 92

OPT = {}
def NT(k): return ' nt' if OPT.get(k) else ''
def S(d): return f"s[{d}:{d+3}]"
def V(a, n=1): return f"v[{a}:{a+n-1}]" if n > 1 else f"v{a}"
def A(a, n=1): return f"a[{a}:{a+n-1}]" if n > 1 else f"a{a}"
QP = "quad_perm:[1,0,3,2] row_mask:0xf bank_mask:0xf"
def items(f, *a):
    q = Prog(); f(q, *a); return q.items
def code(text, tag=None):
    q = Prog(); q.e(text, tag); return q.items

def srd(p, d, ptr, nrec, add=0):
    if add == 0: p.e(f"s_mov_b32 s{d}, s{ptr}\ns_mov_b32 s{d+1}, s{ptr+1}")
    elif add > 0: p.e(f"s_add_u32 s{d}, s{ptr}, {add}\ns_addc_u32 s{d+1}, s{ptr+1}, 0")
    else: p.e(f"s_sub_u32 s{d}, s{ptr}, {-add}\ns_subb_u32 s{d+1}, s{ptr+1}, 0")
    p.e(f"s_mov_b32 s{d+2}, {nrec}\ns_mov_b32 s{d+3}, 0x20000")

class Stamper:
    def __init__(self, on): self.on = on; self.n = 0
    def it(self, real=False):
        if not self.on: return []
        if OPT.get('rt') == 1: real = True
        if OPT.get('rt') == 2:
            n = self.n; self.n += 2
            return code(f"s_memrealtime s[0:1]\ns_memtime s[2:3]\ns_waitcnt lgkmcnt(0)\nv_writelane_b32 v251, s0, {n}\nv_writelane_b32 v251, s2, {n+1}")
        n = self.n; self.n += 1
        return code(f"{'s_memrealtime' if real else 's_memtime'} s[0:1]\ns_waitcnt lgkmcnt(0)\nv_writelane_b32 v251, s0, {n}")
    def __call__(self, p, real=False): p.extend(self.it(real))
    def dump(self, p):
        if not self.on: return
        p.wait_all()
        p.e(f"s_lshr_b32 s93, s{sMT}, 2\ns_lshr_b32 s3, s{sSL}, 3\ns_lshl_b32 s3, s3, 2\ns_add_u32 s93, s93, s3\ns_and_b32 s3, s{sMT}, 3\ns_lshl_b32 s3, s3, 3\ns_add_u32 s93, s93, s3\ns_and_b32 s3, s{sSL}, 7\ns_lshl_b32 s3, s3, 5\ns_add_u32 s93, s93, s3")
        if OPT.get('dbgout'):
            p.e(f"s_lshl_b32 s3, s93, 2\ns_add_u32 s3, s3, s{sW}\ns_cmp_eq_u32 s3, {4*OPT['dbgout']}\ns_cselect_b32 s3, 4, {OOB}")
            p.e(f"v_readlane_b32 s0, v251, 0\nv_subrev_u32 v251, s0, v251\nv_lshlrev_b32 v3, 2, v1\nv_add_u32 v3, s3, v3\nbuffer_store_dword v251, v3, {S(S_DBG)}, 0 offen")
            return
        srd(p, 4, P_WS, TS_OFF + (1 << 20))
        p.e(f"v_lshlrev_b32 v3, 2, v1\ns_lshl_b32 s3, s93, 2\ns_add_u32 s3, s3, s{sW}\ns_lshl_b32 s3, s3, 8\ns_add_u32 s3, s3, {TS_OFF}")
        p.e("buffer_store_dword v251, v3, s[4:7], s3 offen")

class LazyStamp:
    def __init__(self, ts): self.ts = ts
def resolve(steps):
    for st in steps:
        out = []
        for it in st['pre']:
            out += it.ts.it() if isinstance(it, LazyStamp) else [it]
        st['pre'] = out
vL = 1
vXD, vXC = 2, 4
vSR = 6
vD, vDS, vDC = 10, 12, 13
vBR, vT, vTW, vH = 14, 18, 22, 23
vONE, vEX = 24, 28
vTMP = 32
ACC1, ACC2, CSA, TMP = 40, 120, 184, 200
vFZ, vPA, vPV, vPT, vC1, vC2, vL16, vZ = 208, 209, 39, 211, 212, 213, 38, 210
RT = 216
C0 = 232
XF, BF, EXTW, CSF = 0, 160, 220, 240
t0, t1, t2, t3, t4, t5 = range(vTMP, vTMP + 6)

XS = 0
X_JOB, X_RING, X_NS, X_SLOT = 49152, 81920, 5, 16384
Y_TBL, Y_RING, Y_NS, Y_SLOT = 49152, 57344, 5, 20480
EXT_L = XS + 16384
STL = 21504
XE_L = 32768
AG_L = XS
HT2_L = 0

class Ctx:
    def __init__(self, typ, opt):
        self.typ = typ; self.opt = opt; self.slow = []; self.npoll = 0
        self.ts = Stamper(opt.get('ts'))

def bf16r(p, v): p.e(f"v_cvt_pk_bf16_f32 v{v}, v{v}, v{v}\nv_and_b32 v{v}, s{sMASK}, v{v}")

def retry(c, loads, check, probe=None):
    k = c.npoll; c.npoll += 1
    L = f"{c.typ}_poll{k}"
    q = Prog()
    q.e(f"{L}_slow:\ns_mov_b32 s{sSP}, 0x40000\n{L}_lp:\ns_sleep {OPT.get('sleep', 1)}\ns_sub_u32 s{sSP}, s{sSP}, 1\ns_cmp_eq_u32 s{sSP}, 0\ns_cbranch_scc1 {L}_ret")
    if probe and OPT.get('probe', 0):
        q.e(probe[0] + "\ns_waitcnt vmcnt(0)\n" + probe[1] + f"\ns_cbranch_vccnz {L}_lp")
    q.e(loads + "\ns_waitcnt vmcnt(0)\n" + check)
    q.e(f"s_cbranch_vccnz {L}_lp\ns_branch {L}_ret")
    c.slow.append(q.finalize())
    if OPT.get('nospin') and 'v211' not in check: return code(check + f"\n{L}_ret:")
    return code(check + f"\ns_cbranch_vccnz {L}_slow\n{L}_ret:")
def retry2(c, loads, regs, tmp, sp):
    k = c.npoll; c.npoll += 1
    L = f"{c.typ}_poll{k}"
    chk = f"v_xor_b32 v{tmp}, s{sN}, v{regs[0]}\n" + "".join(f"v_bitop3_b32 v{tmp}, v{tmp}, v{r}, s{sN} bitop3:0xf6\n" for r in regs[1:]) + f"v_cmp_ne_u32 s[{sp}:{sp+1}], 0, v{tmp}\ns_cmp_lg_u64 s[{sp}:{sp+1}], 0"
    q = Prog()
    q.e(f"{L}_slow:\ns_mov_b32 s{sSP}, 0x40000\n{L}_lp:\ns_sleep {OPT.get('sleep', 1)}")
    q.e(loads + "\ns_waitcnt vmcnt(0)\n" + chk)
    q.e(f"s_cbranch_scc0 {L}_ret\ns_sub_u32 s{sSP}, s{sSP}, 1\ns_cmp_lg_u32 s{sSP}, 0\ns_cbranch_scc1 {L}_lp\ns_branch {L}_ret")
    c.slow.append(q.finalize())
    if OPT.get('nospin'): return code(chk + f"\n{L}_ret:")
    return code(chk + f"\ns_cbranch_scc1 {L}_slow\n{L}_ret:")
def tagcheck(regs):
    regs = regs[::-1]
    t = f"v_xor_b32 v{vPV}, s{sN}, v{regs[0]}\n"
    for r in regs[1:]: t += f"v_bitop3_b32 v{vPV}, v{vPV}, v{r}, s{sN} bitop3:0xf6\n"
    return t + f"v_cmp_ne_u32 vcc, 0, v{vPV}"
NONCE_LD = lambda: f"buffer_load_dword v{vPT}, v{vZ}, {S(S_DBG)}, 0 offen sc1"
def nonce_get(c):
    return retry(c, NONCE_LD(), f"v_cmp_eq_u32 vcc, 0, v{vPT}") + code(f"v_readfirstlane_b32 s{sN}, v{vPT}")
def flag(soff):
    return code(f"buffer_store_dword v{vPT}, v{vFZ}, {S(S_WS)}, {soff} offen sc1", 'flag')

def nextkb(s, unit):
    return f"s_add_u32 s{s}, s{s}, {unit}\ns_cmp_eq_u32 s{s}, {10*unit}\ns_cselect_b32 s{s}, 0, s{s}"

def setup(p, opt):
    p.e("s_cmp_ge_u32 s2, 256\ns_cbranch_scc1 K_end")
    p.e("s_load_dwordx16 s[64:79], s[0:1], 0\ns_load_dwordx16 s[80:95], s[0:1], 64")
    p.e(f"v_and_b32 v{vL}, 63, v0\nv_lshrrev_b32 v{t0}, 6, v0\nv_lshlrev_b32 v{vL16}, 4, v{vL}")
    p.e(f"v_readfirstlane_b32 s{sW}, v{t0}")
    for i in range(opt.get('d0', 0)): p.e('s_sleep 36')
    for i in range(opt.get('pad', 0)): p.e(f"s_mov_b32 s{sT3}, 0x12345")
    MB = opt.get('mb', 3)
    p.e(f"s_and_b32 s{sMT}, s2, {(16 >> MB) - 1}\ns_lshl_b32 s{sMT}, s{sMT}, {MB}\ns_bfe_u32 s{sT0}, s2, {(MB << 16) | 3}\ns_add_u32 s{sMT}, s{sMT}, s{sT0}")
    p.e(f"s_bfe_u32 s{sSL}, s2, {((MB - 1) << 16) | (4 - MB)}\ns_lshl_b32 s{sSL}, s{sSL}, {5 - MB}\ns_lshr_b32 s{sT0}, s2, {3 + MB}\ns_add_u32 s{sSL}, s{sSL}, s{sT0}\ns_lshr_b32 s{sI}, s{sSL}, 1")
    if opt.get('cpf', 1):
        p.e(f"s_getpc_b64 s[4:5]\nK_pc:\ns_mov_b32 s6, K_X-K_pc\ns_bitcmp1_b32 s{sSL}, 0\ns_cselect_b32 s6, K_Y-K_pc, s6\ns_and_b32 s7, s{sI}, {(16 >> MB) - 1}\ns_lshl_b32 s7, s7, {MB}\ns_and_b32 s8, s{sMT}, {(1 << MB) - 1}\ns_add_u32 s7, s7, s8")
        p.e(f"s_lshl_b32 s7, s7, 11\ns_add_u32 s6, s6, s7\nv_lshrrev_b32 v{t5}, 4, v0\nv_lshlrev_b32 v{t5}, 7, v{t5}\nv_add_u32 v{t5}, s6, v{t5}\nv_min_u32 v{t5}, K_end-K_pc, v{t5}\nglobal_load_dword v250, v{t5}, s[4:5]", tag='cpf')
    p.e(f"s_mul_i32 s{sROT}, s{sMT}, {opt.get('rm', 3)}\ns_mul_i32 s{sT0}, s{sT0}, {opt.get('rs', 1)}\ns_add_u32 s{sROT}, s{sROT}, s{sT0}\ns_mul_i32 s{sT1}, s{sROT}, 205\ns_lshr_b32 s{sT1}, s{sT1}, 11\ns_mul_i32 s{sT1}, s{sT1}, 10\ns_sub_u32 s{sROT}, s{sROT}, s{sT1}")
    p.e(f"s_lshl_b32 s{sKX}, s{sROT}, 7\ns_mov_b32 s{sKB}, s{sROT}\ns_mov_b32 s{sMASK}, 0xffff0000")
    p.e(f"s_lshl_b32 s{sFL}, s{sMT}, 4\ns_add_u32 s{sFL}, s{sFL}, s{sSL}\ns_lshl_b32 s{sFL}, s{sFL}, 7\ns_add_u32 s{sFL}, s{sFL}, {HF_OFF}")
    p.e(f"s_lshl_b32 s{sT0}, s{sMT}, 7\ns_lshl_b32 s{sT1}, s{sW}, 5\ns_add_u32 s{sT1}, s{sT0}, s{sT1}\ns_mul_i32 s{sXR}, s{sT1}, 1280")
    for i in range(1, 4): p.e(f"s_add_u32 s{sXR+i}, s{sXR}, {(8*1280-1024)*i}")
    if opt.get('hotX'):
        for i in range(4): p.e(f"s_mov_b32 s{sXR+i}, {(8*1280-1024)*i}")
    p.e(f"s_lshl_b32 s{sLB}, s{sW}, 12")
    p.e(f"s_lshl_b32 s{sT1}, s{sSL}, 3\ns_add_u32 s{sT0}, s{sT0}, s{sT1}\ns_lshl_b32 s{sT1}, s{sW}, 1\ns_add_u32 s{sT0}, s{sT0}, s{sT1}")
    p.e(f"s_mul_i32 s{sU0}, s{sT0}, 1280\ns_lshl_b32 s{sU1}, s{sT0}, 4\ns_add_u32 s{sU1}, s{sU1}, {ST_OFF}")
    p.e(f"v_lshrrev_b32 v{t0}, 3, v{vL}\nv_and_b32 v{t1}, 7, v{vL}")
    p.e(f"v_lshrrev_b32 v{t2}, 5, v{vL}\nv_mul_u32_u24 v{t2}, 1280, v{t2}\nv_and_b32 v{t3}, 31, v{vL}\nv_lshl_add_u32 v{t4}, v{t3}, 3, v{t2}")
    p.e(f"v_lshrrev_b32 v{t2}, 4, v{vL}\nv_xor_b32 v{t2}, v{t1}, v{t2}\nv_lshlrev_b32 v{t2}, 4, v{t2}\nv_mul_u32_u24 v{t3}, 1280, v{t0}")
    p.e(f"v_add_u32 v{vXD}, v{t2}, v{t3}\nv_xor_b32 v{vXD+1}, 64, v{vXD}")
    p.e(f"v_mov_b32 v{vZ}, 0\nv_mov_b32 v{t2}, {OOB}\nv_cmp_eq_u32 vcc, 0, v0\nv_cndmask_b32 v{vFZ}, v{t2}, v0, vcc")
    p.e(f"s_cmp_eq_u32 s2, 0\ns_cselect_b32 s{sT0}, 0, {OOB}\nv_or_b32 v{vPA}, s{sT0}, v{vFZ}")

def first_loads(p, b0):
    x0 = x_dma(0)
    k1 = [i for i, it in enumerate(x0) if isinstance(it, I) and it.kind == 'vm']
    k2 = [i for i, it in enumerate(b0) if isinstance(it, I) and it.kind == 'vm']
    m0x = [it for it in x0 if isinstance(it, I) and ('x', 'm0') in it.defs][0]
    m0b = [it for it in b0 if isinstance(it, I) and ('x', 'm0') in it.defs][0]
    p.extend(x0[:k1[0] + 1]); p.extend(b0[:k2[1] + 1])
    p.add(I(m0x.text)); p.extend(x0[k1[0] + 1:])
    p.add(I(m0b.text)); p.extend(b0[k2[1] + 1:])
    if OPT.get('wso'): p.e(f"s_add_u32 s{P_WS}, s{P_WS}, {OPT['wso'] << 20}\ns_addc_u32 s{P_WS+1}, s{P_WS+1}, 0")
    srd(p, S_DBG, P_DBG, 256)
    p.e(f"s_or_b32 s{sT3}, s2, 1\nv_mov_b32 v{vPT}, s{sT3}\nbuffer_store_dword v{vPT}, v{vPA}, {S(S_DBG)}, 0 offen sc1")
    if OPT.get('stouch', 21):
        G = OPT.get('stouch', 21)
        n = (WS_USED >> G) // 64 + 1
        p.e(f"s_and_b32 s28, s{sSL}, 7\ns_lshl_b32 s28, s28, 1\ns_and_b32 s29, s{sMT}, 1\ns_add_u32 s28, s28, s29\ns_lshl_b32 s28, s28, 2\ns_add_u32 s28, s28, s{sW}\ns_lshl_b32 s28, s28, {G}")
        for i in range(n):
            p.e(f"s_min_u32 s29, s28, {WS_USED - 4 & ~3}\ns_load_dword s30, s[{P_WS}:{P_WS+1}], s29\ns_min_u32 s29, s28, {2048*2560 - 4}\ns_load_dword s31, s[{P_OUT}:{P_OUT+1}], s29\ns_add_u32 s28, s28, {64 << G}")

def early_loads(p, typ):
    for i in range(5):
        p.e(f"buffer_load_dwordx2 {V(RT+2*i,2)}, v{t4}, {S(S_X)}, s{sU0} offen offset:{256*i}", tag='sx')
def code_prefetch(p, typ):
    if OPT.get('cpf', 1) == 2:
        p.e(f"s_getpc_b64 s[24:25]\n{typ}_pc:\nv_lshlrev_b32 v{t5}, 7, v0\nv_min_u32 v{t5}, {typ}_end-{typ}_pc, v{t5}\nglobal_load_dword v250, v{t5}, s[24:25]")

CPN = [0]
def code_ahead(typ, dst, tmp, sp, skip=2048, lines=32):
    L = f"{typ}_ca{CPN[0]}"; CPN[0] += 1
    return [Group(code(f"s_getpc_b64 s[{sp}:{sp+1}]\n{L}:\nv_lshrrev_b32 v{tmp}, {6 - (lines.bit_length() - 1)}, v0\nv_lshlrev_b32 v{tmp}, 7, v{tmp}\nv_add_u32 v{tmp}, {skip}, v{tmp}\n"
                f"v_min_u32 v{tmp}, {typ}_end-{L}, v{tmp}\nglobal_load_dword v{dst}, v{tmp}, s[{sp}:{sp+1}]"))]

def x_dma(j):
    q = Prog()
    q.wait_lgkm(('xr', j - 3))
    q.e(f"v_add_u32 v{vXC}, s{sKX}, v{vXD}\nv_add_u32 v{vXC+1}, s{sKX}, v{vXD+1}\ns_add_u32 m0, s{sLB}, {XS + (j % 3) * 16384}")
    for i in range(4):
        q.e(f"buffer_load_dwordx4 v{vXC+(i&1)}, {S(S_X)}, s{sXR+i} offen offset:{1024*i}{NT('ntx')} lds", tag=('x', j))
    q.e(nextkb(sKX, 128))
    return q.items
def x_read(j):
    q = Prog(); q.wait_vm(('x', j))
    for s in range(4): q.e(f"ds_read_b128 {A(XF+16*j+4*s,4)}, v{vSR+s} offset:{(j % 3) * 16384}", ('xr', j))
    return q.items

def ffn_dma(base, j):
    q = Prog()
    q.e(f"s_mul_i32 s{sD0}, s{sKB}, {64*3072}\ns_add_u32 s{sD0}, s{sD0}, s{sDB}\ns_add_u32 s{sD1}, s{sD0}, {8*3072-2048}\ns_add_u32 m0, s{sLB}, {base}")
    q.e(f"buffer_load_dwordx4 v{vD}, {S(S_W1)}, s{sD0} offen{NT('ntw')} lds", tag=('slot', j))
    q.e(f"buffer_load_dwordx4 v{vD+1}, {S(S_W3)}, s{sD0} offen offset:1024{NT('ntw')} lds", tag=('slot', j))
    q.e(f"buffer_load_dwordx4 v{vD}, {S(S_W1)}, s{sD1} offen offset:2048{NT('ntw')} lds", tag=('slot', j))
    q.e(f"buffer_load_dwordx4 v{vD+1}, {S(S_W3)}, s{sD1} offen offset:3072{NT('ntw')} lds", tag=('slot', j))
    q.e(nextkb(sKB, 1))
    return q.items
def ssm_dma(base, j):
    q = Prog()
    q.e(f"s_lshl_b32 s{sD0}, s{sKB}, 7\nv_add_u32 v{vDC}, s{sD0}, v{vDS}\ns_add_u32 m0, s{sLBS}, {base}")
    for t in range(4):
        q.e(f"buffer_load_dwordx4 v{vDC}, {S(S_B)}, s{sBT+t} offen offset:{1024*t}{NT('ntw')} lds", tag=('slot', j))
    q.e(f"s_add_u32 m0, s{sLBS}, {base + 4096}")
    q.e(f"buffer_load_dwordx4 v{vDC}, {S(S_B)}, s{sBT+4} offen{NT('ntw')} lds", tag=('slot', j))
    q.e(nextkb(sKB, 1))
    return q.items

def ffn_dma_addr(p):
    p.e(f"v_bfe_u32 v{t2}, v{vL}, 4, 1\nv_lshlrev_b32 v{t2}, 1, v{t2}\nv_xor_b32 v{t2}, v{t1}, v{t2}\nv_lshlrev_b32 v{t2}, 4, v{t2}")
    p.e(f"v_mul_u32_u24 v{t3}, 3072, v{t0}\nv_add_u32 v{vD}, v{t2}, v{t3}\nv_xor_b32 v{vD+1}, 64, v{vD}")
def ffn_srd(p):
    srd(p, S_W1, P_W1, 640 * 3072)
    srd(p, S_W3, P_W3, 640 * 3072 + 1024, -1024)

def common_addr(p):
    p.e(f"v_bfe_u32 v{t2}, v{vL}, 2, 1\nv_lshlrev_b32 v{t2}, 4, v{t2}\nv_bfe_u32 v{t3}, v{vL}, 3, 2\nv_lshl_add_u32 v{t2}, v{t3}, 2, v{t2}")
    p.e(f"v_and_b32 v{t3}, 3, v{vL}\nv_add_u32 v{t2}, v{t2}, v{t3}\nv_lshlrev_b32 v{vC1}, 4, v{t2}")
    p.e(f"v_bfe_u32 v{t3}, v{t2}, 1, 3\nv_lshrrev_b32 v{vSR}, 5, v{vL}\nv_xor_b32 v{t3}, v{t3}, v{vSR}\nv_lshlrev_b32 v{t3}, 4, v{t3}")
    p.e(f"v_lshl_add_u32 v{t3}, v{t2}, 7, v{t3}\nv_add_u32 v{vSR}, s{sLB}, v{t3}")
    for s in range(1, 4): p.e(f"v_xor_b32 v{vSR+s}, {32*s}, v{vSR}")
    p.e(f"v_bfe_u32 v{t2}, v{vL}, 2, 1\nv_lshlrev_b32 v{t2}, 10, v{t2}\nv_bfe_u32 v{t3}, v{vL}, 3, 3\nv_lshl_add_u32 v{t2}, v{t3}, 6, v{t2}")
    p.e(f"v_and_b32 v{t3}, 3, v{vL}\nv_lshl_add_u32 v{vH}, v{t3}, 4, v{t2}")
    for i in range(4): p.e(f"v_mov_b32 v{vONE+i}, 0x3f803f80")
    srd(p, S_WS, P_WS, WS_USED)
    p.e(f"s_lshl_b32 s{sT0}, s{sMT}, 1\ns_lshr_b32 s{sT1}, s{sW}, 1\ns_add_u32 s{sT0}, s{sT0}, s{sT1}\ns_mul_i32 s{sT0}, s{sT0}, 88")
    p.e(f"s_mul_i32 s{sT1}, s{sI}, 11\ns_add_u32 s{sT0}, s{sT0}, s{sT1}\ns_lshl_b32 s{sH}, s{sT0}, 12")
    p.e(f"s_and_b32 s{sT1}, s{sW}, 1\ns_lshl_b32 s{sT1}, s{sT1}, 11\ns_add_u32 s{sH}, s{sH}, s{sT1}")

def tr_addrs(p, base):
    p.e(f"v_bfe_u32 v{t0}, v{vL}, 4, 1\nv_lshrrev_b32 v{t1}, 5, v{vL}\nv_lshlrev_b32 v{t1}, 11, v{t1}\nv_lshl_add_u32 v{t1}, v{t0}, 10, v{t1}")
    p.e(f"v_bfe_u32 v{t2}, v{vL}, 2, 2\nv_lshl_add_u32 v{t1}, v{t2}, 7, v{t1}\nv_and_b32 v{t3}, 3, v{vL}\nv_lshl_add_u32 v{t1}, v{t3}, 3, v{t1}")
    p.e(f"v_bfe_u32 v{t2}, v{vL}, 3, 1\nv_lshl_add_u32 v{t2}, v{t0}, 1, v{t2}\nv_lshl_add_u32 v{t1}, v{t2}, 5, v{t1}")
    p.e(f"v_add_u32 v{vT}, {base}, v{t1}")
    for tau in range(1, 4): p.e(f"v_xor_b32 v{vT+tau}, {32*tau}, v{vT}")

def touch():
    q = Prog()
    q.e(f"v_lshlrev_b32 v{vPA}, 19, v{vL}\nv_min_u32 v{vPA}, {WS_USED - 4}, v{vPA}\nbuffer_load_dword v250, v{vPA}, {S(S_WS)}, 0 offen")
    q.e(f"v_min_u32 v{vPA}, {2048*2560 - 4}, v{vPA}\nglobal_load_dword v250, v{vPA}, s[{P_OUT}:{P_OUT+1}]")
    return q.items

def vtouch(p):
    if not OPT.get('vt'): return
    G = OPT['vt']
    p.e(f"v_and_b32 v{vPA}, 15, v{vL}\nv_lshlrev_b32 v{vPA}, {G}, v{vPA}\nv_add_u32 v{vPA}, {W2S_OFF}, v{vPA}\nv_min_u32 v{vPA}, {WS_USED - 4}, v{vPA}")
    p.e(f"v_cmp_gt_u32 vcc, 32, v{vL}\nv_mov_b32 v{vTW}, s{sH}\nv_cndmask_b32 v{vPA}, v{vTW}, v{vPA}, vcc\nbuffer_load_dword v249, v{vPA}, {S(S_WS)}, 0 offen")

def stats_job(p):
    R = RT; aQ, aS = TMP, TMP + 1
    p.e(f"v_mov_b32 v{aS}, 0\nv_mov_b32 v{aQ}, 0")
    for d in range(10):
        p.e(f"v_dot2c_f32_bf16 v{aS}, v{vONE}, v{R+d}\nv_dot2c_f32_bf16 v{aQ}, v{R+d}, v{R+d}")
    p.e("s_nop 2")
    for perm in ("quad_perm:[1,0,3,2] row_mask:0xf", "quad_perm:[2,3,0,1] row_mask:0xf", "row_half_mirror row_mask:0xf", "row_mirror row_mask:0xf", "row_bcast:15 row_mask:0xa"):
        for r in (aS, aQ): p.e(f"v_add_f32_dpp v{r}, v{r}, v{r} {perm} bank_mask:0xf")
    inv = f2u(1.0 / 640)
    p.e(f"v_mul_f32 v{aS}, {inv}, v{aS}\nv_mul_f32 v{aQ}, {inv}, v{aQ}\nv_fma_f32 v{aQ}, -v{aS}, v{aS}, v{aQ}\nv_max_f32 v{aQ}, 0, v{aQ}")
    p.e(f"v_sub_f32 v{aS}, 0, v{aS}\nv_cvt_pk_bf16_f32 v{aS}, v{aS}, v{aS}")
    bf16r(p, aQ)
    p.e(f"v_add_f32 v{aQ}, {f2u(1e-5)}, v{aQ}")
    bf16r(p, aQ)
    p.e(f"v_sqrt_f32 v{aQ}, v{aQ}")
    bf16r(p, aQ)
    p.e(f"v_rcp_f32 v{aQ}, v{aQ}")
    p.e(f"v_and_b32 v{R}, 31, v{vL}\nv_cmp_eq_u32 vcc, 16, v{R}\nv_lshrrev_b32 v{R}, 1, v{vL}\nv_and_b32 v{R}, 16, v{R}\nv_mov_b32 v{R+1}, {OOB}\nv_cndmask_b32 v{R}, v{R+1}, v{R}, vcc")
def stats_store():
    return code(f"v_mov_b32 v{TMP+2}, s{sN}\nv_mov_b32 v{TMP+3}, s{sN}\nbuffer_store_dwordx4 {V(TMP,4)}, v{RT}, {S(S_WS)}, s{sU1} offen sc1", 'pub')

def cs_store_addr(q, gidexpr):
    q.e(gidexpr)
    q.e(f"s_mul_i32 s{sU3}, s{sT0}, 12800\ns_add_u32 s{sU3}, s{sU3}, {CS_OFF}\ns_mul_i32 s{sT0}, s{sROT}, 1280\ns_add_u32 s{sU2}, s{sU3}, s{sT0}")
    q.e(f"s_lshl_b32 s{sT0}, s{sW}, 8\ns_add_u32 s{sU2}, s{sU2}, s{sT0}\ns_add_u32 s{sU3}, s{sU3}, s{sT0}")
    q.e(f"s_cmp_lt_u32 s{sMT}, 10\ns_cselect_b32 s{sT0}, 32, 0\nv_cmp_gt_u32 vcc, s{sT0}, v{vL}\nv_lshlrev_b32 v{t4}, 3, v{vL}\nv_mov_b32 v{t5}, {OOB}\nv_cndmask_b32 v{t4}, v{t5}, v{t4}, vcc")

def cs_produce_ffn(acc, gidexpr):
    q = Prog()
    q.e(f"s_lshl_b32 s{sT0}, s{sW}, 5\nv_xor_b32 v{vTW}, s{sT0}, v{vT}")
    for s in range(4):
        for t in range(2):
            q.e(f"ds_read_b64_tr_b16 {A(CSF+4*s+2*t,2)}, v{vTW} offset:{s*4096 + t*512}")
    cs_store_addr(q, gidexpr)
    for s in range(4):
        q.e(f"v_mfma_f32_32x32x16_bf16 {V(acc,16)}, {V(vONE,4)}, {A(CSF+4*s,4)}, {'0' if s == 0 else V(acc,16)}")
    st = code(f"v_mov_b32 v{acc+1}, s{sN}\nbuffer_store_dwordx2 {V(acc,2)}, v{t4}, {S(S_WS)}, s{sU2} offen sc1", 'pub')
    return q.items, st

def cs_consume(c, ntile, R0, d5=1024):
    q = Prog()
    q.e(f"v_lshrrev_b32 v{vPA}, 5, v{vL}\nv_mul_u32_u24 v{vPA}, 6400, v{vPA}\nv_and_b32 v{t5}, 31, v{vL}\nv_lshl_add_u32 v{vPA}, v{t5}, 3, v{vPA}")
    q.e(f"s_add_u32 s{sU2}, s{sU3}, 3840")
    rounds = [(R0, 0)]
    ld = ""
    for i in range(5): ld += f"buffer_load_dwordx2 {V(R0+2*i,2)}, v{vPA}, {S(S_WS)}, s{sU3 if i < 3 else sU2} offen offset:{1280*(i%3)} sc1\n"
    if ntile == 5:
        q.e(f"s_lshl_b32 s86, s{sW}, 8\ns_sub_u32 s86, {d5}, s86\nv_add_u32 v{vTW}, s86, v{vPA}")
        for i in range(5): ld += f"buffer_load_dwordx2 {V(R0+10+2*i,2)}, v{vTW}, {S(S_WS)}, s{sU3 if i < 3 else sU2} offen offset:{1280*(i%3)} sc1\n"
        rounds.append((R0 + 10, 1))
    a = (q.items, code(ld))
    q = Prog()
    q.extend(retry(c, ld, tagcheck([R0 + 1 + 2 * i for i in range(5 * len(rounds))])))
    q.e(f"v_cmp_gt_u32 vcc, 32, v{vL}")
    for (R, which) in rounds:
        q.e(f"v_add_f32 v{R}, v{R}, v{R+2}\nv_add_f32 v{R+4}, v{R+4}, v{R+6}\nv_add_f32 v{R}, v{R}, v{R+8}\nv_add_f32 v{R}, v{R}, v{R+4}")
        q.e(f"v_mov_b32 v{R+1}, v{R}\nv_mov_b32 v{R+6}, 0\nv_mov_b32 v{R+7}, 0\nv_permlane32_swap_b32 v{R}, v{R+1}\nv_add_f32 v{R}, v{R}, v{R+1}\nv_cndmask_b32 v{R}, 0, v{R}, vcc")
        q.e(f"v_cvt_pk_bf16_f32 v{R+1}, v{R}, v{R}\nv_and_b32 v{R+1}, s{sMASK}, v{R+1}\nv_sub_f32 v{R}, v{R}, v{R+1}")
        q.e(f"v_cvt_pk_bf16_f32 v{R+4}, v{R+1}, v{R}\nv_and_b32 v{R+2}, s{sMASK}, v{R+4}\nv_sub_f32 v{R}, v{R}, v{R+2}")
        q.e(f"v_cvt_pk_bf16_f32 v{R+5}, v{R}, 0")
        if which == 0:
            q.e(f"s_lshr_b32 s86, s{sLB}, 2\nv_add_u32 v{t5}, s86, v{vL16}")
            q.e(f"ds_write_b128 v{t5}, {V(R+4,4)} offset:{EXT_L}", tag='ext')
        else:
            q.e(f"ds_write_b128 v{vL16}, {V(R+4,4)} offset:{EXT_L + 4096}", tag='ext')
    return a, q.items
def ext_read(ntile):
    return code("\n".join(f"ds_read_b128 {A(EXTW+4*t,4)}, v{vL16} offset:{EXT_L + 1024*t}" for t in range(ntile)))

def stats_consume(c):
    q = Prog()
    q.e(f"s_lshl_b32 s87, s{sMT}, 11\ns_lshl_b32 s86, s{sW}, 9\ns_add_u32 s87, s87, s86\ns_add_u32 s{sU0}, s87, {ST_OFF}")
    ld = f"buffer_load_dwordx4 {V(vEX,4)}, v{vC1}, {S(S_WS)}, s{sU0} offen sc1"
    q.e(ld)
    a = q.items
    q = Prog()
    q.extend(retry(c, ld, tagcheck([vEX + 2, vEX + 3])))
    if c.typ == 'Y':
        q.e(f"s_lshl_b32 s{sT0}, s{sW}, 7\ns_add_u32 s{sT0}, s{sT0}, 159744")
        q.e(f"v_lshrrev_b32 v{t3}, 2, v{vC1}\nv_add_u32 v{t3}, s{sT0}, v{t3}\nds_write_b32 v{t3}, v{vEX}")
        q.e(f"v_lshrrev_b32 v{t2}, 5, v{vL}\nv_lshlrev_b32 v{t2}, 6, v{t2}\nv_add_u32 v{t2}, s{sT0}, v{t2}")
        for i in range(4): q.e(f"ds_read_b128 {V(RT+4*i,4)}, v{t2} offset:{16*i}")
    q.e(f"v_mul_f32 v{vC1}, {NLOG2E}, v{vEX}\nv_rcp_f32 v{vC2}, v{vEX}\nv_mov_b32 v{vEX}, v{vEX+1}\nv_mov_b32 v{vEX+2}, v{vEX+1}\nv_mov_b32 v{vEX+3}, v{vEX+1}")
    q.e(f"v_mul_f32 v{vC2}, v{vC2}, v{vC2}")
    return a, q.items

def ffn_epi(acc, pos, imm):
    p = Prog(); tmp = TMP
    for r in range(8): p.e(f"v_mul_f32 v{tmp+r}, v{vC1}, v{acc+r}")
    for r in range(8): p.e(f"v_exp_f32 v{tmp+r}, v{tmp+r}\nv_mul_f32 v{acc+r}, v{acc+r}, v{acc+8+r}")
    for r in range(8): p.e(f"v_fma_f32 v{tmp+r}, v{tmp+r}, v{vC2}, v{vC2}")
    for r in range(8): p.e(f"v_rcp_f32 v{tmp+r}, v{tmp+r}")
    p.e(f"s_add_u32 s{sT2}, s{sH}, {pos*4096}")
    for r in range(8): p.e(f"v_mul_f32 v{acc+r}, v{acc+r}, v{tmp+r}")
    for r in range(4): p.e(f"v_cvt_pk_bf16_f32 v{acc+8+r}, v{acc+2*r}, v{acc+2*r+1}")
    p.e(f"buffer_store_dwordx4 {V(acc+8,4)}, v{vH}, {S(S_WS)}, s{sT2} offen offset:{imm} sc1", tag='h')
    if OPT.get('dual'): p.e(f"buffer_store_dwordx4 {V(acc+8,4)}, v{vH}, {S(S_WS)}, s{sT2} offen offset:{imm}", tag='h')
    return p.items

class Ring:
    def __init__(self, reg, n, cur): self.reg = reg; self.n = n; self.cur = cur
    def off(self, base, span, out):
        if base < self.cur or base + span - self.cur > 65536:
            out += code("\n".join(f"v_add_u32 v{self.reg+i}, {(base - self.cur) & 0xffffffff}, v{self.reg+i}" for i in range(self.n)))
            self.cur = base
        return base - self.cur

def build_steps(c, kinds, slot_base, dma, NS, rT, rB, pre_extra, late):
    steps = []
    TMB = OPT.get('tmb', 3); TM0 = 80 - 4 * TMB
    T2 = c.t2; NST = TM0 + TMB * len(T2); c.NST = NST
    reads = []
    for n in range(NST):
        j, s = divmod(min(n, 79), 4)
        buf = BF + (n % 3) * 20 if (kinds[j] == 'S' or 4 in T2) else (160, 180, 196)[n % 3]
        base = slot_base(j)
        rd = []
        if kinds[j] == 'F':
            acc = ACC1 if (j < 10) else ACC2
            mf = []
            ents = [(tau, j, s) for tau in (range(4) if j < 10 else T2)]
            if n >= TM0: ents = [(T2[(n - TM0) // TMB], 20 - TMB + (n - TM0) % TMB, e) for e in range(4)]
            for e, (tau, jj, ss) in enumerate(ents):
                o = []
                if tau < 4:
                    off = rT.off(slot_base(jj), 16384, o)
                    o += code("\n".join(f"ds_read_b64_tr_b16 {A(buf+4*e+2*t,2)}, v{vT+tau} offset:{off + ss*4096 + t*512}" for t in range(2)), ('rd', n))
                else:
                    o += code("\n".join(f"ds_read_b64_tr_b16 {A(buf+4*e+2*t,2)}, v{vBR+t} offset:{(jj % 5)*4096 + (ss>>1)*2048 + (ss&1)*512}" for t in range(2)), ('rd', n))
                rd.append(o)
                cc = "0" if n % 40 == 0 and n < 80 else V(acc + 16 * tau, 16)
                mf += code(f"v_mfma_f32_32x32x16_bf16 {V(acc+16*tau,16)}, {A(buf+4*e,4)}, {A(XF+4*((4*jj+ss)%40),4)}, {cc}")
        else:
            mf = []
            for t in range(5):
                o = []
                off = rB.off(base, 20480, o)
                o += code(f"ds_read_b128 {A(buf+4*t,4)}, v{vBR+s} offset:{off + 1024*t}", ('rd', n))
                rd.append(o)
                cc = "0" if n == 0 else V(ACC1 + 16 * t, 16)
                mf += code(f"v_mfma_f32_32x32x16_bf16 {V(ACC1+16*t,16)}, {A(XF+4*n,4)}, {A(buf+4*t,4)}, {cc}")
        reads.append(rd)
        steps.append(dict(pre=[], mf=mf, rd=[[] for _ in mf]))
    for n in range(NST):
        st = steps[n]; j, s = divmod(n, 4)
        if c.opt.get('st0') is not None and n < 80: st['pre'] += code(f'.set STEPMARK{c.typ}{n}, 0')
        if c.opt.get('st0') is not None and n == NST - 1:
            for k in range(NST, 80): st['rd'][-1] += code(f'.set STEPMARK{c.typ}{k}, 0')
        if c.opt.get('ts') == 2 and s == 0: st['pre'] += [LazyStamp(c.ts)]
        if OPT.get('dstep') == n: st['pre'] += code('s_sleep 36')
        st['pre'] += [Marker('lgkm', ('rd', n))]
        syncs = [j + 1] if (s == 2 and j + 1 <= 20 - TMB) else []
        if n == TM0 - 1: syncs = list(range(21 - TMB, 20))
        if syncs:
            sy = [x for k in syncs for x in pre_extra.get(('sync', k), []) + [Marker('vm', ('slot', k))]] + [Marker('lgkm', ['ext', 'agw'])] + ([] if OPT.get('nobar') else code("s_barrier")) + [x for k in syncs for x in pre_extra.get(('post', k), [])]
            st['rd'][0] += sy
        if n + 2 < NST:
            src = reads[n + 2]; g = len(st['mf'])
            st['rd'][min(len(src), g) - 1] += [Marker('lgkm', ('rd', n + 1))]
            for i, o in enumerate(src): st['rd'][min(i, g - 1)] += o
        if s == 1 and j + 1 < 10:
            st['rd'][0] += x_read(j + 1)
    for k, tau in enumerate(T2):
        st = steps[TM0 + TMB * k + TMB - 1]
        st['mf'] += code(f"v_mfma_f32_32x32x16_bf16 {V(ACC2+16*tau,16)}, {A(EXTW+4*tau,4)}, {V(vEX,4)}, {V(ACC2+16*tau,16)}"); st['rd'] += [[]]
    c.TM0, c.TMB = TM0, TMB
    va = VmAlloc(steps); c.va = va
    LR, LX = OPT.get('leadr', 7), OPT.get('leadx', 5)
    E1 = OPT.get('e1', 1)
    va.place(0, x_dma(2), stride=E1); va.place(0, dma(2), stride=E1)
    for its in late.get(0, []): va.place(0, its, stride=E1)
    va.place(1, x_dma(3), by=9 - LX); va.place(0, dma(3), by=10 - LR)
    va.place(3, x_dma(4), by=13 - LX); va.place(3, dma(4), by=14 - LR)
    LD = OPT.get('lead', NS - 1)
    nxt = NS
    for j in range(1, 20):
        if j + 4 < 10 and LD < NS - 1: va.place(4 * j + 3, x_dma(j + 4), by=4 * (j + 3) + 1 - LX)
        while nxt < 20 and nxt <= j - 1 + NS and (nxt < 10 or nxt <= j + LD or nxt > 20 - TMB - 2):
            va.place(4 * j + 2, dma(nxt), by=4 * (nxt - 1) + 2 - LR); nxt += 1
        if j + 4 < 10 and LD == NS - 1: va.place(4 * j + 3, x_dma(j + 4), by=4 * (j + 3) + 1 - LX)
        for its in late.get(j, []): va.place(4 * j + 3, its)
    c.joblast = max([e[3][0] for e in va.log if e[1] is None] + [0])
    if OPT.get('vlog'): print(va.log, file=sys.stderr)
    return steps, reads[0], reads[1]

class VmAlloc:
    def __init__(self, steps):
        self.steps = steps; self.used = set(); self.dma_next = 0; self.log = []; self.b_next = 0; self.iv = []; self.lused = set(); self.quiet = 0
        self.gaps = [(n, g) for n, st in enumerate(steps) for g in range(len(st['mf']))]
        self.first = {}
        for i, (n, g) in enumerate(self.gaps): self.first.setdefault(n, i)
    def light(self, n, its):
        i = self.first[n]
        for it in its:
            while i in self.used or i in self.lused: i += 1
            a, b = self.gaps[i]
            self.steps[a]['rd'][b] += it.its if isinstance(it, Group) else [it]; self.lused.add(i)
        return self.gaps[i]
    def place(self, n, its, dma=True, stride=None, by=None):
        stride = stride or OPT.get('vstride', 2)
        groups, cur = [], []
        for it in its:
            cur.append(it)
            if isinstance(it, I) and it.kind == 'vm': groups.append(cur); cur = []
        if cur: groups[-1] += cur
        i0 = self.first[n]
        if dma == 'b': i0 = max(i0, self.b_next)
        elif dma is True: i0 = max(i0, self.dma_next)
        inside = (lambda i: any(a < i < b for a, b in self.iv)) if dma == 'l' else (lambda i: False)
        if dma == 'l': i0 = max(i0, self.b_next)
        for st_ in range(stride, 0, -1):
            i = i0; pos = []; used = set(self.used)
            for grp in groups:
                while inside(i) or i in self.lused or any((i + d) in used for d in range(-st_ + 1, st_)): i += 1
                pos.append(i); used.add(i)
            if by is None or i < self.first[max(by, 0)] or st_ == 1: break
        if i >= len(self.gaps) or (dma in ('b', 'l') and i >= self.first[len(self.steps) - self.quiet] if self.quiet else False): return False
        for grp, k in zip(groups, pos):
            a, b = self.gaps[k]
            self.steps[a]['rd'][b] += grp; self.used.add(k)
        self.log.append((n, by, self.gaps[pos[0]], self.gaps[pos[-1]]))
        if dma in ('b', 'l'): self.b_next = i + 1
        elif dma: self.dma_next = i + 1; self.iv.append((pos[0], pos[-1]))
        return True

def flat(rd): return [x for o in rd for x in o]

sJW, sJ0, sJ1, sJ2, sJ3, sJ4 = 16, 17, 18, 19, sLBS, sBT
def lam_consts(q, L, pows, coef):
    lr, li, ld, a2, rev, O, u = L + 1, L + 2, L + 3, L + 4, L + 5, L + 8, L + 16
    q.e(f"v_lshlrev_b32 v{lr}, 16, v{lr}\nv_lshlrev_b32 v{li}, 16, v{li}\nv_lshlrev_b32 v{ld}, 16, v{ld}")
    q.e(f"v_mul_f32 v{ld}, {LOG2E}, v{ld}\nv_exp_f32 v{ld}, v{ld}")
    bf16r(q, ld)
    q.e(f"v_mul_f32 v{a2}, v{ld}, v{lr}\nv_mul_f32 v{rev}, v{ld}, v{li}\nv_mul_f32 v{a2}, {LOG2E}, v{a2}\nv_mul_f32 v{rev}, {INV2PI}, v{rev}")
    for n, k in enumerate(pows):
        if k != 1: q.e(f"v_mul_f32 v{u}, {f2u(float(k))}, v{a2}\nv_mul_f32 v{u+1}, {f2u(float(k))}, v{rev}\nv_exp_f32 v{u}, v{u}\nv_fract_f32 v{u+1}, v{u+1}")
        else: q.e(f"v_exp_f32 v{u}, v{a2}\nv_fract_f32 v{u+1}, v{rev}")
        q.e(f"v_cos_f32 v{u+2}, v{u+1}\nv_sin_f32 v{u+3}, v{u+1}\nv_mul_f32 v{O+2*n}, v{u}, v{u+2}\nv_mul_f32 v{O+2*n+1}, v{u}, v{u+3}")
    if coef:
        q.e(f"v_add_f32 v{u}, -1.0, v{O}\nv_mul_f32 v{u+1}, v{lr}, v{lr}\nv_fmac_f32 v{u+1}, v{li}, v{li}\nv_rcp_f32 v{u+1}, v{u+1}")
        q.e(f"v_mul_f32 v{u+2}, v{u}, v{lr}\nv_fmac_f32 v{u+2}, v{O+1}, v{li}\nv_mul_f32 v{u+3}, v{O+1}, v{lr}\nv_fma_f32 v{u+3}, -v{u}, v{li}, v{u+3}")
        q.e(f"v_add_f32 v{u+1}, v{u+1}, v{u+1}\nv_mul_f32 v{L+4}, v{u+2}, v{u+1}\nv_mul_f32 v{L+5}, v{u+3}, v{u+1}")

def jobs(c):
    JL = ACC2 + 32
    q = Prog()
    q.e(f"s_lshl_b32 s{sT0}, s{sI}, 4\ns_add_u32 s{sT0}, s{sT0}, s{sMT}\ns_lshl_b32 s{sT0}, s{sT0}, 2\ns_add_u32 s{sJW}, s{sT0}, s{sW}\ns_lshl_b32 s{sJ3}, s{sW}, 13")
    q.e(f"s_min_u32 s{sT0}, s{sJW}, 479\ns_mul_i32 s{sJ1}, s{sT0}, 6554\ns_lshr_b32 s{sJ1}, s{sJ1}, 16\ns_mul_i32 s{sT2}, s{sJ1}, 10\ns_sub_u32 s{sJ0}, s{sT0}, s{sT2}")
    srd(q, S_J0, P_W2, 1536 * 1280)
    q.e(f"v_lshrrev_b32 v{t0}, 3, v{vL}\nv_and_b32 v{t1}, 7, v{vL}\nv_lshrrev_b32 v{t2}, 4, v{vL}\nv_lshlrev_b32 v{t2}, 1, v{t2}\nv_xor_b32 v{t2}, v{t1}, v{t2}\nv_lshlrev_b32 v{t2}, 4, v{t2}")
    q.e(f"v_mul_u32_u24 v{t3}, 1280, v{t0}\nv_add_u32 v{vBR}, v{t2}, v{t3}")
    q.e(f"s_mul_i32 s{sBT+1}, s{sJ1}, {32*1280}\ns_lshl_b32 s{sT3}, s{sJ0}, 7\ns_add_u32 s{sBT+1}, s{sBT+1}, s{sT3}")
    q.e(f"s_min_u32 s{sT0}, s{sJW}, 399\ns_mul_i32 s{sJ2}, s{sT0}, 6554\ns_lshr_b32 s{sJ2}, s{sJ2}, 16\ns_mul_i32 s{sT2}, s{sJ2}, 10\ns_sub_u32 s{sJW}, s{sT0}, s{sT2}")
    srd(q, S_J1, P_CRE, 640 * 1280)
    srd(q, S_AG, P_CIM, 640 * 1280 + 2048, -2048)
    q.e(f"s_mul_i32 s{sBT+2}, s{sJ2}, {16*1280}\ns_lshl_b32 s{sT3}, s{sJW}, 7\ns_add_u32 s{sBT+2}, s{sBT+2}, s{sT3}\ns_add_u32 s{sBT+3}, s{sBT+2}, {8*1280-1024}")
    q.e(f"v_lshlrev_b32 v{JL}, 1, v{vL}\nv_add_u32 v{JL}, s{sT3}, v{JL}")
    for k, ptr in enumerate((P_LRE, P_LIM, P_LDT)):
        q.e(f"global_load_ushort v{JL+1+k}, v{JL}, s[{ptr}:{ptr+1}]", tag='tbl')
    a = q.items
    q = Prog()
    q.e(f"s_add_u32 m0, s{sJ3}, {X_JOB}")
    for i in range(4):
        q.e(f"buffer_load_dwordx4 v{vBR}, {S(S_J0)}, s{sBT+1} offen offset:{1024*i}{NT('ntj')} lds", tag='jobA')
        if i < 3: q.e(f"s_add_u32 s{sBT+1}, s{sBT+1}, {8*1280-1024}")
    da = q.items
    q = Prog()
    q.e(f"s_add_u32 m0, s{sJ3}, {X_JOB + 4096}")
    for i, (sr, so) in enumerate(((S_J1, sBT + 2), (S_J1, sBT + 3), (S_AG, sBT + 2), (S_AG, sBT + 3))):
        q.e(f"buffer_load_dwordx4 v{vXD+(i&1)}, {S(sr)}, s{so} offen offset:{1024*i}{NT('ntj')} lds", tag='jobB')
    db = q.items
    q = Prog()
    q.e(f"v_bfe_u32 v{t0}, v{vL}, 2, 3\nv_lshrrev_b32 v{t1}, 5, v{vL}\nv_lshl_add_u32 v{t1}, v{t1}, 4, v{t0}")
    q.e(f"v_lshrrev_b32 v{t0}, 1, v{t0}\nv_lshlrev_b32 v{t0}, 5, v{t0}\nv_lshl_add_u32 v{t0}, v{t1}, 7, v{t0}\nv_and_b32 v{t1}, 3, v{vL}")
    q.e(f"v_lshl_add_u32 v{t0}, v{t1}, 3, v{t0}\nv_add_u32 v{vBR}, s{sJ3}, v{t0}")
    for tau in range(1, 4): q.e(f"v_xor_b32 v{vBR+tau}, {32*tau}, v{vBR}")
    q.e(f"s_mul_i32 s{sT0}, s{sJ1}, 43\ns_lshr_b32 s{sT0}, s{sT0}, 8\ns_mul_i32 s{sT0}, s{sT0}, 5\ns_add_u32 s{sT0}, s{sT0}, s{sJ1}\ns_mul_i32 s{sJ1}, s{sT0}, 5")
    q.wait_vm('jobA')
    for tau in range(4):
        for t in range(2): q.e(f"ds_read_b64_tr_b16 {V(CSA+4*tau+2*t,2)}, v{vBR+tau} offset:{X_JOB + 1024*t}")
    q.e(f"s_lshl_b32 s{sT0}, s{sJ0}, 2\ns_mul_i32 s{sT1}, s{sT0}, 52\ns_lshr_b32 s{sT1}, s{sT1}, 8\ns_mul_i32 s{sT2}, s{sT1}, 5\ns_sub_u32 s{sT3}, s{sT0}, s{sT2}")
    q.e(f"s_mul_i32 s{sT2}, s{sT1}, 435\ns_add_u32 s{sT0}, s{sT0}, s{sT2}\ns_add_u32 s{sT0}, s{sT0}, s{sJ1}\ns_lshl_b32 s{sT0}, s{sT0}, 10\ns_add_u32 s{sT0}, s{sT0}, {W2S_OFF}")
    for tau in range(4):
        if tau: q.e(f"s_cmp_eq_u32 s{sT3}, {5 - tau}\ns_cselect_b32 s{sT2}, {436*1024}, s{sJ4}\ns_add_u32 s{sT0}, s{sT0}, s{sT2}")
        else: q.e(f"s_movk_i32 s{sJ4}, 1024")
        q.e(f"buffer_store_dwordx4 {V(CSA+4*tau,4)}, v{vL16}, {S(S_WS)}, s{sT0} offen sc1", tag='pub')
    pa = q.items
    q = Prog()
    lam_consts(q, JL, [1], True)
    q.e(f"v_sub_f32 v{JL+5}, 0, v{JL+5}\nv_sub_f32 v{JL+6}, 0, v{JL+4}\nv_lshlrev_b32 v{t0}, 2, v{vL}\nv_add_u32 v{t0}, s{sJ3}, v{t0}")
    for k in range(3): q.e(f"ds_write_b32 v{t0}, v{JL+4+k} offset:{X_JOB + 256*k}")
    q.e(f"v_bfe_u32 v{t0}, v{vL}, 1, 3\nv_bfe_u32 v{t1}, v{vL}, 4, 1\nv_xor_b32 v{t0}, v{t0}, v{t1}\nv_lshlrev_b32 v{t0}, 4, v{t0}")
    q.e(f"v_and_b32 v{t2}, 15, v{vL}\nv_lshl_add_u32 v{t0}, v{t2}, 7, v{t0}\nv_add_u32 v{vBR}, s{sJ3}, v{t0}")
    for s in range(1, 4): q.e(f"v_xor_b32 v{vBR+s}, {32*s}, v{vBR}")
    q.e(f"v_lshrrev_b32 v{t2}, 5, v{vL}\nv_lshlrev_b32 v{t2}, 8, v{t2}\nv_lshl_add_u32 v{t2}, v{t1}, 5, v{t2}\nv_add_u32 v{vTW}, s{sJ3}, v{t2}")
    q.e(f"s_mul_i32 s{sT1}, s{sJ2}, 52\ns_lshr_b32 s{sT1}, s{sT1}, 8\ns_mul_i32 s{sT1}, s{sT1}, 435\ns_add_u32 s{sJ2}, s{sT1}, s{sJ2}")
    q.wait_vm('jobB')
    CR, CI, AL, BE, U = ACC2 + 16, ACC2 + 20, ACC2 + 32, ACC2 + 40, ACC2 + 24
    def rd(s):
        o = 24 * (s & 1) if False else 0
        q.e(f"ds_read_b128 {V(CR,4)}, v{vBR+s} offset:{X_JOB + 4096}\nds_read_b128 {V(CI,4)}, v{vBR+s} offset:{X_JOB + 4096 + 2048}")
        for h in range(2):
            q.e(f"ds_read_b128 {V(AL+4*h,4)}, v{vTW} offset:{X_JOB + 64*s + 16*h}\nds_read_b128 {V(BE+4*h,4)}, v{vTW} offset:{X_JOB + 256 + 64*s + 16*h}")
    for s in range(4):
        rd(s)
        if s == 0:
            q.e(f"s_lshl_b32 s{sT0}, s{sJW}, 2\ns_mul_i32 s{sT1}, s{sT0}, 52\ns_lshr_b32 s{sT1}, s{sT1}, 8\ns_mul_i32 s{sT2}, s{sT1}, 5\ns_sub_u32 s{sT3}, s{sT0}, s{sT2}\ns_mul_i32 s{sT1}, s{sT1}, 6")
            q.e(f"s_add_u32 s{sT0}, s{sT0}, s{sT1}\ns_mul_i32 s{sT0}, s{sT0}, 5\ns_add_u32 s{sT0}, s{sT0}, s{sJ2}\ns_lshl_b32 s{sT0}, s{sT0}, 10\ns_add_u32 s{sT0}, s{sT0}, {W2S_OFF + 30*1024}\ns_movk_i32 s{sJ4}, 5120")
        else:
            q.e(f"s_cmp_eq_u32 s{sT3}, {5 - s}\ns_cselect_b32 s{sT2}, {35*1024}, s{sJ4}\ns_add_u32 s{sT0}, s{sT0}, s{sT2}")
        for d in range(4):
            q.e(f"v_lshlrev_b32 v{U}, 16, v{CR+d}\nv_and_b32 v{U+1}, s{sMASK}, v{CR+d}\nv_lshlrev_b32 v{U+2}, 16, v{CI+d}\nv_and_b32 v{U+3}, s{sMASK}, v{CI+d}")
            q.e(f"v_mul_f32 v{U}, v{AL+2*d}, v{U}\nv_mul_f32 v{U+1}, v{AL+2*d+1}, v{U+1}\nv_fmac_f32 v{U}, v{BE+2*d}, v{U+2}\nv_fmac_f32 v{U+1}, v{BE+2*d+1}, v{U+3}")
            q.e(f"v_cvt_pk_bf16_f32 v{CSA+4*s+d}, v{U}, v{U+1}")
        q.e(f"buffer_store_dwordx4 {V(CSA+4*s,4)}, v{vL16}, {S(S_WS)}, s{sT0} offen sc1", tag='pub')
    q.e(f"s_lshl_b32 s{sT0}, s{sMT}, 7\ns_lshl_b32 s{sT1}, s{sI}, 11\ns_add_u32 s{sT0}, s{sT0}, s{sT1}\ns_add_u32 s{sBT+3}, s{sT0}, {WF_OFF}")
    return a, da, db, pa, q.items

def ext_mfma(acc, n, ffn):
    if ffn: return code("\n".join(f"v_mfma_f32_32x32x16_bf16 {V(acc+16*t,16)}, {A(EXTW+4*t,4)}, {V(vEX,4)}, {V(acc+16*t,16)}" for t in range(n)))
    return code("\n".join(f"v_mfma_f32_32x32x16_bf16 {V(acc+16*t,16)}, {V(vEX,4)}, {A(EXTW+4*t,4)}, {V(acc+16*t,16)}" for t in range(n)))

sBQ, sAO, sAP, sBC, sBD = 66, 67, 68, 64, 65
TAB = [70, 71, 72, 73, 74, 75, 76, 77, 78, 79, 84]
sMK, sSK = 78, 79
def k2_setup(c):
    q = Prog()
    if OPT.get('mb', 3) == 3:
        q.e(f"s_and_b32 s{sMK}, s{sMT}, 11\ns_and_b32 s85, s{sSL}, 4\ns_or_b32 s{sMK}, s{sMK}, s85")
        q.e(f"s_and_b32 s{sSK}, s{sSL}, 3\ns_lshl_b32 s{sSK}, s{sSK}, 1\ns_bfe_u32 s85, s{sMT}, 0x10002\ns_add_u32 s{sSK}, s{sSK}, s85\ns_and_b32 s85, s{sSL}, 8\ns_add_u32 s{sSK}, s{sSK}, s85")
    else:
        q.e(f"s_mov_b32 s{sMK}, s{sMT}\ns_mov_b32 s{sSK}, s{sSL}")
    ld = f"buffer_load_dword v249, v248, {S(S_WS)}, s69 offen sc1"
    a_, b_, c_ = 248, 249, 250
    q.e(f"s_lshr_b32 s86, s{sSK}, 3\ns_lshl_b32 s85, s86, 2\ns_add_u32 s85, s85, s{sW}\ns_and_b32 s87, s{sSK}, 7\ns_mul_i32 s87, s87, 5\ns_mov_b32 s69, {WF_OFF}")
    q.e(f"s_mul_i32 s88, s85, 6\ns_mul_i32 s85, s85, 5\ns_sub_u32 s84, s87, 6")
    q.e(f"v_min_u32 v{c_}, 21, v{vL}\nv_cmp_gt_u32 s[64:65], 12, v{c_}\nv_mov_b32 v{a_}, s84\nv_mov_b32 v{b_}, s88\nv_cndmask_b32 v{a_}, v{a_}, v{b_}, s[64:65]")
    q.e(f"v_mov_b32 v{b_}, s85\nv_mov_b32 v243, s87\nv_cndmask_b32 v{b_}, v{b_}, v243, s[64:65]\nv_lshrrev_b32 v243, 1, v{c_}\nv_add_u32 v{a_}, v{a_}, v243")
    q.e(f"v_and_b32 v{c_}, 1, v{c_}\nv_lshl_add_u32 v{b_}, v{c_}, 2, v{b_}\nv_lshrrev_b32 v{b_}, 2, v{b_}\nv_mad_u32_u24 v{a_}, v{a_}, 10, v{b_}\nv_lshrrev_b32 v{a_}, 2, v{a_}\nv_lshlrev_b32 v{a_}, 7, v{a_}")
    q.e(f"s_lshr_b32 s86, s{sSK}, 3\ns_lshl_b32 s85, s86, 2\ns_add_u32 s85, s85, s{sW}\ns_mul_i32 s85, s85, 11")
    q.e(f"s_and_b32 s87, s{sSK}, 7\ns_mul_i32 s87, s87, 88\ns_add_u32 s87, s87, s85\ns_mul_i32 s{sBQ}, s87, 5120\ns_add_u32 s{sBQ}, s{sBQ}, {W2S_OFF}")
    q.e(f"s_lshl_b32 s87, s{sMK}, 1\ns_add_u32 s88, s87, s86\ns_mul_i32 s88, s88, 88\ns_add_u32 s88, s88, s85\ns_lshl_b32 s{sAO}, s88, 12")
    q.e(f"s_xor_b32 s86, s86, 1\ns_add_u32 s88, s87, s86\ns_mul_i32 s88, s88, 88\ns_add_u32 s88, s88, s85\ns_lshl_b32 s{sAP}, s88, 12")
    if OPT.get('hotB'): q.e(f"s_mov_b32 s{sBQ}, {W2S_OFF}")
    if OPT.get('hotA'): q.e(f"s_mov_b32 s{sAO}, {W2S_OFF}\ns_mov_b32 s{sAP}, {W2S_OFF}")
    q.e(f"s_lshl_b32 s88, s{sW}, 10")
    return q.items, code(ld), retry2(c, ld, [249], 250, 86)
BH = []
NDIR = [35]
def set_bh(five):
    BH[:] = [4 * f for f in range(28)] + ([] if five else [176, 212, 216]) + [240, 244, 248, 252] + [112 + 4 * k for k in range(12)] + [160, 164, 168, 172, 180, 184, 188, 192] + ([176, 212, 216] if five else [])
    NDIR[0] = 32 if five else 35
def bpre(f):
    i, ct = divmod(f, 5)
    t = f"s_add_u32 s{sBC}, s{sBQ}, {1024*f}\n" if ct in (0, 4) else ""
    return code(t + f"buffer_load_dwordx4 {A(BH[f],4)}, v{vL16}, {S(S_WS)}, s{sBC} offen offset:{1024*(ct&3)} sc1", 'bpre')
def add_bpre(c, first, stage):
    free = lambda f: 41 + f if f < 28 else 46
    f = 0
    while f < NDIR[0]:
        if not c.va.place(max(first, free(f)), bpre(f), dma='b', stride=OPT.get('bs' + c.typ, 2)): return f
        f += 1
    return f
def add_stage(c, first, stage):
    c.staged = []; c.lend = {}; c.va.quiet = OPT.get('q' + c.typ, 0)
    for n_, its in c.lights: c.lend[n_] = c.va.light(n_, its)[0]
    if OPT.get('vlog'): print('lights', c.lend, file=sys.stderr)
    xe_place(c, 46)
    for k, (lds, e) in enumerate(stage[:OPT.get('ns' + c.typ, 99)]):
        f = NDIR[0] + k
        if f >= 55: break
        i, ct = divmod(f, 5)
        t = f"s_add_u32 m0, s88, {lds}\ns_add_u32 s{sBD}, s{sBQ}, {1024*f}\n"
        t += f"buffer_load_dwordx4 v{vL16}, {S(S_WS)}, s{sBD} offen sc1 lds"
        if not c.va.place(max(first, e), code(t, 'bst'), dma='l', stride=OPT.get('ss' + c.typ, 2)): break
        c.staged.append((f, lds))
    c.va.b_next = 0
def xe_setup():
    q = Prog()
    q.e(f"s_lshr_b32 s48, s{sSK}, 3\ns_lshl_b32 s49, s{sMK}, 1\ns_add_u32 s48, s48, s49\ns_lshl_b32 s48, s48, 2\ns_add_u32 s48, s48, s{sW}\ns_lshl_b32 s48, s48, 4")
    q.e(f"s_and_b32 s49, s{sSK}, 7\ns_mul_i32 s49, s49, 160\ns_mul_i32 s51, s48, 1280\ns_andn2_b32 s50, s49, 127\ns_add_u32 s51, s51, s50\ns_mul_i32 s50, s{sW}, 4608")
    q.e(f"s_add_u32 s50, s50, {XE_L}\nv_lshrrev_b32 v{vSR}, 4, v1\nv_mul_u32_u24 v{vSR}, 1280, v{vSR}\nv_and_b32 v{vSR+1}, 15, v1\nv_lshl_add_u32 v{vSR}, v{vSR+1}, 4, v{vSR}")
    return q.items
def xe_place(c, n):
    for i in range(4):
        assert c.va.place(n, code(f"s_add_u32 m0, s50, {1024*i}\ns_add_u32 s{sBD}, s51, {5120*i}\nbuffer_load_dwordx4 v{vSR}, {S(S_X)}, s{sBD} offen lds", 'xe'), dma='l')
def unstage(c):
    q = Prog()
    q.e(f"v_add_u32 v{vPA}, s88, v{vL16}\nv_add_u32 v{vTW}, 65536, v{vPA}\nv_add_u32 v{vEX}, 131072, v{vPA}")
    q.wait_vm('bst')
    for f, lds in c.staged:
        q.e(f"ds_read_b128 {A(BH[f],4)}, v{(vPA, vTW, vEX)[lds >> 16]} offset:{lds & 65535}")
    return q.items
def brest(c):
    out = []
    done = set(range(c.nb)) | {f for f, _ in c.staged}
    for f in range(55):
        if f in done: continue
        i, ct = divmod(f, 5)
        t = f"s_add_u32 s{sBC}, s{sBQ}, {1024*f}\n"
        out.append(Group(code(t + f"buffer_load_dwordx4 {A(BH[f],4)}, v{vL16}, {S(S_WS)}, s{sBC} offen sc1", 'bpre'))); out[-1].pos = i
    if OPT.get('vlog'): print(c.typ, "direct", c.nb, "staged", len(c.staged), "rest", len(out), file=sys.stderr)
    return out

def extra_setup():
    q = Prog()
    q.e(f"s_add_u32 s{sT0}, s{S_W3}, 1024\ns_addc_u32 s{sT1}, s{S_W3+1}, 0\ns_bitcmp1_b32 s{sW}, 0\ns_cselect_b32 s{S_B}, s{sT0}, s{S_W1}\ns_cselect_b32 s{S_B+1}, s{sT1}, s{S_W1+1}\ns_cselect_b32 s{sT2}, 4, 0\ns_cselect_b32 s{sT3}, 49152, 0")
    q.e(f"s_mov_b32 s{S_B+2}, {640*3072}\ns_mov_b32 s{S_B+3}, 0x20000\ns_sub_u32 s{sLBS}, 128, s{sT3}")
    q.e(f"v_lshrrev_b32 v{t0}, 1, v{vL}\nv_xor_b32 v{t0}, s{sT2}, v{t0}\nv_mul_u32_u24 v{t0}, 3072, v{t0}\nv_and_b32 v{t1}, 1, v{vL}\nv_lshl_add_u32 v{vDS}, v{t1}, 4, v{t0}")
    q.e(f"v_bfe_u32 v{t0}, v{vL}, 4, 1\nv_lshrrev_b32 v{t1}, 5, v{vL}\nv_lshlrev_b32 v{t1}, 8, v{t1}\nv_mul_u32_u24 v{t0}, 1152, v{t0}\nv_add_u32 v{t1}, v{t1}, v{t0}")
    q.e(f"v_and_b32 v{t0}, 15, v{vL}\nv_lshl_add_u32 v{t1}, v{t0}, 3, v{t1}\nv_add_u32 v{vBR}, {X_JOB}, v{t1}\nv_xor_b32 v{vBR+1}, 128, v{vBR}")
    return q.items

def k1_X(p, c):
    ts = c.ts; o = c.opt
    sb = lambda j: X_RING + (j % X_NS) * X_SLOT
    def dma(j):
        pre = code(f"s_add_u32 s{sDB}, s{sDB}, 128") if j == 10 else []
        its = pre + ffn_dma(sb(j), j)
        if RB and j >= 10:
            its = its[:-3] + code(f"s_add_u32 m0, s88, {X_JOB + (j % 5) * 4096}\ns_add_u32 s{sD1}, s{sD0}, s{sLBS}\nbuffer_load_dwordx4 v{vDS}, {S(S_B)}, s{sD1} offen lds", ('slot', j)) + its[-3:]
        return its
    RB = o.get('rb', 0); c.t2 = [0, 1, 2, 3, 4] if RB else [0, 1, 2, 3]; set_bh(RB)
    CS2 = 216 if RB else CSA
    JP = 0
    ja, jda, jdb, jpa, jpb = jobs(c)
    ffn_dma_addr(p)
    p.e(f"s_mul_i32 s{sDB}, s{sW}, {16*3072}\ns_mul_i32 s{sT0}, s{sI}, {0 if OPT.get('hotW') else 384}\ns_add_u32 s{sDB}, s{sDB}, s{sT0}")
    c.save_id(p)
    p.e("s_waitcnt lgkmcnt(0)")
    srd(p, S_X, P_X, 2048 * 1280); ffn_srd(p)
    first_loads(p, dma(0))
    c.start(p)
    early_loads(p, 'X')
    common_addr(p)
    tr_addrs(p, X_RING)
    code_prefetch(p, 'X')
    p.extend(ja)
    p.extend(x_dma(1)); p.extend(dma(1))
    vtouch(p)
    p.e(NONCE_LD())
    ts(p)
    rT = Ring(vT, 4, X_RING)
    WS_ = o.get('wsync', 7)
    F1 = o.get('f1', 16)
    pre_extra = {('sync', WS_): [Marker('vm', 'pub')], ('post', WS_): flag(f"s{sBT+3}"), ('sync', F1): [Marker('vm', 'h')],
                 ('post', F1): code(f"buffer_store_dword v{vPT}, v{vFZ}, {S(S_WS)}, s{sFL} offen offset:4 sc1", 'flag')}
    JA = o.get('ja', 1); JB = o.get('jb', 1)
    steps, r0, r1 = build_steps(c, 'F' * 20, sb, dma, X_NS, rT, None, pre_extra, {} if o.get('nojob') else {o.get('jblk', 0): [jda, jdb]})
    p.extend(x_read(0))
    p.wait_vm(('slot', 0)); p.e("s_barrier")
    p.extend(flat(r0)); p.extend(flat(r1))
    ts(p)
    cs1, cs1s = cs_produce_ffn(ACC2, f"s_mul_i32 s{sT0}, s{sI}, 3")
    sl, su = stats_consume(c); cl, cu = cs_consume(c, 4, ACC2)
    ks_, kl, kc = k2_setup(c)
    CD = o.get('cd', 9); BF0 = o.get('bf0', 45)
    side = cs1[:10] + [Deadline(5)] + items(stats_job) + nonce_get(c) + cs1[10:] + [Deadline(CD), Gate(CD)] + stats_store() + cs1s + [Deadline(CD + 1)]
    assert o.get('jga', 10) > c.joblast, c.joblast
    if not JP: side += [Gate(o.get('jga', 10))] + jpa + [Gate(o.get('jgb', 12))] + jpb + (extra_setup() if RB else []) + [Deadline(o.get('jd', 22))]
    assert o.get('jd', 22) <= 26
    G1_ = o.get('g1', 22)
    ex1 = ([Gate(o.get('tg', 12))] + touch() + [Deadline(o.get('tg', 12) + 2)] if o.get('touch', 0) else []) + [Gate(14)] + ks_ + [Deadline(G1_), Gate(G1_)] + sl + cl[0] + [Deadline(G1_ + 1)]
    c.lights = [(G1_ + 1, cl[1])]
    ex1 += [Gate(o.get('gu', 31))] + su + cu + [Deadline(38), Gate(38)] + ext_read(4) + [Deadline(39)]
    assert BF0 - o.get('kld', 5) >= 38
    steps[39]['mf'] += ext_mfma(ACC1, 4, True); steps[39]['rd'] += [[], [], [], []]
    steps[40]['pre'] = ([] if o.get('ts') == 2 else [LazyStamp(ts)]) + steps[40]['pre']
    cs2, cs2s = cs_produce_ffn(CS2, f"s_mul_i32 s{sT0}, s{sI}, 3\ns_add_u32 s{sT0}, s{sT0}, 1")
    cl, cu = cs_consume(c, len(c.t2), CS2, 12800)
    side += [Gate(40)] + cs2 + [Deadline(45), Gate(45)] + cs2s + ffn_epi(ACC1, 0, 0)
    for tau in range(1, 3): side += ffn_epi(ACC1 + 16 * tau, tau >> 1, (tau & 1) * 512)
    TM0, TMB = c.TM0, c.TMB
    G2L = max(o.get('g2l', 53), BF0 + 1)
    ex2 = [Gate(G2L - 1)] + cl[0] + [Deadline(G2L)]
    c.lights.append((G2L, cl[1]))
    epi2 = lambda tau: ffn_epi(ACC2 + 16 * tau, 2 + (tau >> 1), (tau & 1) * 512)
    side += ffn_epi(ACC1 + 48, 1, 512) + [Deadline(o.get('e1d', 57)), Gate(61)] + cu + [Deadline(TM0 - 2), Gate(TM0 - 2)] + ext_read(len(c.t2)) + k2_flags(c) + [Deadline(TM0 + 1)]
    for k, tau in enumerate(c.t2[:-1]): side += [Gate(TM0 + TMB * (k + 1))] + code("s_nop 1") + epi2(tau) + [Deadline(TM0 + TMB * (k + 2))]
    add_stage(c, BF0, [(4096 * k, 42) for k in range(4)] + [(32768 + 4096 * k, 42) for k in range(5, 12)])
    c.nb = add_bpre(c, BF0, None)
    assert c.lend[G1_ + 1] < o.get('gu', 31) and c.lend[G2L] < 61
    resolve(steps)
    if o.get('noside'): side = nonce_get(c) + [Deadline(9)]
    weave(p, steps, side, base_rate=o.get('xrate', 2), extra=[ex1 + [Gate(34)] + xe_setup() + [Deadline(45), Gate(BF0 - o.get('kld', 5))] + kl + [Deadline(BF0 - o.get('kld', 5) + 1), Gate(BF0 - 1)] + kc + [Deadline(BF0)] + ex2])
    ts(p)
    p.extend(mk(c, 80) + epi2(c.t2[-1]) + mk(c, 81) + unstage(c))
    ts(p)

def k1_Y(p, c):
    ts = c.ts; o = c.opt
    sb = lambda j: Y_RING + (j % Y_NS) * Y_SLOT
    dma = lambda j: ssm_dma(sb(j), j) if j < 10 else ffn_dma(sb(j), j)
    RB = o.get('rb', 0); c.t2 = [1, 2, 3] if RB else [0, 1, 2, 3]; set_bh(False)
    p.e(f"s_mul_i32 s{sLBS}, s{sW}, 5120")
    p.e(f"s_and_b32 s{sT0}, s{sW}, 1\ns_lshl_b32 s{sT1}, s{sT0}, 2\ns_lshr_b32 s{sT2}, s{sW}, 1\ns_xor_b32 s{sT1}, s{sT1}, s{sT2}")
    p.e(f"s_lshl_b32 s{sT1}, s{sT1}, 4\nv_xor_b32 v{vDS}, s{sT1}, v{vXD}")
    p.e(f"s_mul_i32 s{sT1}, s{sI}, 80\ns_lshl_b32 s{sT0}, s{sT0}, 3\ns_add_u32 s{sT0}, s{sT0}, s{sT1}\ns_mul_i32 s{sBT}, s{sT0}, 1280")
    for t in range(1, 4): p.e(f"s_add_u32 s{sBT+t}, s{sBT}, {t*(20480-1024)}")
    p.e(f"s_add_u32 s{sBT+4}, s{sBT}, {4*20480}")
    c.save_id(p)
    p.e("s_waitcnt lgkmcnt(0)")
    srd(p, S_X, P_X, 2048 * 1280)
    p.e(f"s_cmp_ge_u32 s{sW}, 2\ns_cselect_b32 s{S_B}, s{P_BIM}, s{P_BRE}\ns_cselect_b32 s{S_B+1}, s{P_BIM+1}, s{P_BRE+1}")
    p.e(f"s_mov_b32 s{S_B+2}, {640*1280}\ns_mov_b32 s{S_B+3}, 0x20000")
    first_loads(p, dma(0))
    p.e("s_branch K_Y\n.set SPLIT, 0\nK_Y:")
    c.start(p)
    early_loads(p, 'Y')
    L = ACC2 + 16
    p.e(f"v_lshrrev_b32 v{L}, 5, v0\nv_lshlrev_b32 v{L}, 4, v{L}\nv_bfe_u32 v{L+1}, v0, 1, 4\nv_add_u32 v{L}, v{L}, v{L+1}")
    p.e(f"v_add_u32 v{L}, s{sT1}, v{L}\nv_min_u32 v{L}, 639, v{L}\nv_lshlrev_b32 v{L}, 1, v{L}")
    for k, ptr in enumerate((P_LRE, P_LIM, P_LDT)):
        p.e(f"global_load_ushort v{L+1+k}, v{L}, s[{ptr}:{ptr+1}]", tag='tbl')
    ffn_dma_addr(p); ffn_srd(p)
    p.e(f"s_mul_i32 s{sDB}, s{sW}, {16*3072}\ns_mul_i32 s{sT0}, s{sI}, {0 if OPT.get('hotW') else 384}\ns_add_u32 s{sDB}, s{sDB}, s{sT0}\ns_add_u32 s{sDB}, s{sDB}, 256")
    common_addr(p)
    p.e(f"v_and_b32 v{t0}, 1, v{vL}\nv_bfe_u32 v{t1}, v{vL}, 1, 4\nv_lshl_add_u32 v{t1}, v{t0}, 4, v{t1}")
    p.e(f"v_bfe_u32 v{t2}, v{t1}, 1, 3\nv_xor_b32 v{t2}, v{t2}, v{t0}\nv_lshrrev_b32 v{t3}, 5, v{vL}\nv_xor_b32 v{t2}, v{t2}, v{t3}\nv_lshlrev_b32 v{t2}, 4, v{t2}")
    p.e(f"v_and_b32 v{t3}, 7, v{t1}\nv_lshl_add_u32 v{t2}, v{t3}, 7, v{t2}\nv_lshrrev_b32 v{t3}, 3, v{t1}\nv_mul_u32_u24 v{t3}, 5120, v{t3}")
    p.e(f"v_add_u32 v{t2}, v{t2}, v{t3}\nv_add_u32 v{vBR}, {Y_RING}, v{t2}")
    for s in range(1, 4): p.e(f"v_xor_b32 v{vBR+s}, {32*s}, v{vBR}")
    tr_addrs(p, sb(10))
    code_prefetch(p, 'Y')
    vE, vAG, vFL, vSTW, vSTR, vE2 = 252, 253, 254, vXD, vXD + 1, 242
    p.e(f"v_lshlrev_b32 v{vE}, 5, v0\nv_mul_u32_u24 v{vE2}, 48, v0")
    srd(p, S_AG, P_WS, 32 * 1280, AGG_OFF)
    p.e(f"s_mul_i32 s{sT0}, s{sI}, {32*1280}\ns_add_u32 s{S_AG}, s{S_AG}, s{sT0}\ns_addc_u32 s{S_AG+1}, s{S_AG+1}, 0")
    p.e(f"v_subrev_u32 v{t0}, 160, v0\nv_min_u32 v{t0}, v{t0}, v0\nv_lshlrev_b32 v{vFL}, 3, v{t0}\nv_mov_b32 v{t1}, {OOB}\nv_cmp_gt_u32 vcc, 160, v0\nv_cndmask_b32 v255, v{t1}, v{vFL}, vcc")
    ts(p)
    q = Prog()
    lam_consts(q, L, [1, 16, 128], False)
    O = L + 8
    q.e(f"v_and_b32 v{L}, 1, v0\nv_lshlrev_b32 v{L}, 31, v{L}\nv_xor_b32 v{L}, 0x80000000, v{L}")
    for n in range(3): q.e(f"v_xor_b32 v{O+2*n+1}, v{L}, v{O+2*n+1}")
    q.e(f"ds_write_b64 v{vE}, {V(O,2)} offset:{Y_TBL}\nds_write_b128 v{vE}, {V(O+2,4)} offset:{Y_TBL+16}")
    table = q.items
    p.extend(x_dma(1)); p.extend(dma(1))
    vtouch(p)
    p.e(NONCE_LD())
    rT = Ring(vT, 4, sb(10)); rB = Ring(vBR, 4, Y_RING)
    steps, r0, r1 = build_steps(c, 'S' * 10 + 'F' * 10, sb, dma, Y_NS, rT, rB, {}, {})
    p.extend(x_read(0))
    p.wait_vm(('slot', 0)); p.e("s_barrier")
    p.extend(flat(r0)); p.extend(flat(r1))
    ts(p)
    q = Prog()
    q.e(f"s_lshl_b32 s{sT0}, s{sW}, 10")
    for s in range(4): q.e(f"v_add_u32 v{t0+s}, s{sT0}, v{vBR+s}\nds_read_b128 {A(CSF+4*s,4)}, v{t0+s}")
    for s in range(4): q.e(f"ds_read_b128 {A(EXTW+4*s,4)}, v{vBR+s} offset:4096")
    cs_store_addr(q, f"s_add_u32 s{sT0}, s{sI}, 24")
    CB = ACC2 + 48
    for s in range(4): q.e(f"v_mfma_f32_32x32x16_bf16 {V(CB,16)}, {V(vONE,4)}, {A(CSF+4*s,4)}, {'0' if s == 0 else V(CB,16)}")
    for s in range(4): q.e(f"v_mfma_f32_32x32x16_bf16 {V(ACC2,16)}, {V(vONE,4)}, {A(EXTW+4*s,4)}, {'0' if s == 0 else V(ACC2,16)}")
    cs1 = q.items
    cs1s = code(f"v_mov_b32 v{CB+1}, s{sN}\nv_mov_b32 v{ACC2+1}, s{sN}\nbuffer_store_dwordx2 {V(CB,2)}, v{t4}, {S(S_WS)}, s{sU2} offen sc1\ns_lshl_b32 s{sT0}, s{sW}, 8\ns_sub_u32 s{sT0}, s{sU2}, s{sT0}\n"
                f"buffer_store_dwordx2 {V(ACC2,2)}, v{t4}, {S(S_WS)}, s{sT0} offen offset:1024 sc1\n"
                f"s_add_u32 s{sT0}, s{sMT}, 16\ns_mul_i32 s{sT0}, s{sT0}, 1280\n"
                f"buffer_store_dwordx2 {V(vZ,2)}, v255, {S(S_AG)}, s{sT0} offen sc1", 'pub')
    sl, su = stats_consume(c); cl, cu = cs_consume(c, 5, ACC2)
    ks_, kl, kc = k2_setup(c)
    side = cs1[:13] + [Deadline(5)] + items(stats_job) + nonce_get(c) + cs1[13:] + [Deadline(o.get('pg', 10)), Gate(o.get('pg', 10))] + stats_store() + cs1s + table + [Deadline(18)]
    G1_ = o.get('g1', 22)
    ex1 = ([Gate(o.get('tg', 12))] + touch() + [Deadline(o.get('tg', 12) + 2)] if o.get('touch', 0) else []) + [Gate(14)] + ks_ + [Deadline(G1_), Gate(G1_)] + sl + cl[0] + [Deadline(G1_ + 1)]
    c.lights = [(G1_ + 1, cl[1])]
    side += [Gate(o.get('gu', 31))] + su + cu + [Deadline(38), Gate(38)] + ext_read(5) + [Deadline(39)]
    q = Prog()
    q.e(f"v_and_b32 v{t0}, 31, v{vL}\nv_mul_u32_u24 v{t2}, 48, v{t0}\nv_lshlrev_b32 v{t0}, 5, v{t0}\nv_lshrrev_b32 v{t1}, 5, v0\nv_lshl_add_u32 v{vAG}, v{t1}, 2, v{t2}")
    for t in range(5): q.e(f"ds_read_b64 {V(C0+2*t,2)}, v{t0} offset:{Y_TBL + 1024*t}")
    side += q.items + [Deadline(40)]
    steps[39]['mf'] += ext_mfma(ACC1, 5, False); steps[39]['rd'] += [[], [], [], [], []]
    steps[40]['pre'] = ([] if o.get('ts') == 2 else [LazyStamp(ts)]) + steps[40]['pre']
    AS = o.get('async', 12)
    BF0 = o.get('bf0y', 46)
    cs2, cs2s = cs_produce_ffn(CSA, f"s_mul_i32 s{sT0}, s{sI}, 3\ns_add_u32 s{sT0}, s{sT0}, 2")
    side += [Gate(40)] + cs2[:10]
    LM, E0, GA, G1 = 244, RT + 4, RT + 12, TMP - 2
    q = Prog()
    def scale(tt):
        for t in range(5): q.e(f"v_mul_f32 v{ACC1+16*t+tt}, v{RT+tt}, v{ACC1+16*t+tt}")
    q.extend(cs2[10:])
    q.add(Deadline(45))
    scale(0); scale(1)
    q.extend(cs2s)
    q.e(f"ds_read_b128 {V(LM,4)}, v{vE} offset:{Y_TBL+16}")
    for tt in range(1, 16):
        for t in range(5):
            g = (ACC1 + 16 * t) if tt == 1 else (G1 + 2 * t + (tt & 1))
            q.e(f"v_fma_f32 v{G1+2*t+((tt+1)&1)}, v{C0+2*t}, v{g}, v{ACC1+16*t+tt}")
        if tt < 15: scale(tt + 1)
        for t in range(5):
            g = (ACC1 + 16 * t) if tt == 1 else (G1 + 2 * t + (tt & 1))
            q.e(f"v_fmac_f32_dpp v{G1+2*t+((tt+1)&1)}, v{g}, v{C0+2*t+1} {QP}")
    for t in range(5): q.e(f"ds_write_b32 v{vAG}, v{G1+2*t} offset:{AG_L + 16 + 1536*t}", tag='agw')
    side += q.items + [Deadline(4 * (AS - 1) + 2), Gate(4 * (AS - 1) + 2)]
    q = Prog()
    q.e(f"ds_read_b128 {V(E0,4)}, v{vE2} offset:{AG_L+16}\nds_read_b128 {V(E0+4,4)}, v{vE2} offset:{AG_L+32}")
    q.e(f"s_sub_u32 s{sBT}, 15, s{sMT}\ns_mul_i32 s{sBT}, s{sBT}, 1280")
    fill = code("\n".join(f"s_add_u32 s{S_J0+i}, s{sBT}, {1280 + 3840*i}" for i in range(5)) + f"\ns_add_u32 s{sBT+4}, s{sH}, {6*4096}\ns_nop 0")
    for k in range(1, 8):
        g = E0 if k == 1 else (GA + (k & 1))
        q.e(f"v_fma_f32 v{GA+((k+1)&1)}, v{LM}, v{g}, v{E0+k}"); q.add(fill[k - 1])
        q.e(f"v_fmac_f32_dpp v{GA+((k+1)&1)}, v{g}, v{LM+1} {QP}")
    q.e(f"v_mov_b32 v{GA+1}, s{sN}\nbuffer_store_dwordx2 {V(GA,2)}, v255, {S(S_AG)}, s{sBT} offen sc1", tag='pub')
    side += q.items + [Deadline(4 * (AS - 1) + 4)]
    q = Prog()
    q.e(f"v_and_b32 v{t0}, 1, v{vL}\nv_bfe_u32 v{t1}, v{vL}, 1, 4\nv_lshl_add_u32 v{t1}, v{t0}, 4, v{t1}\nv_bfe_u32 v{t2}, v{vL}, 4, 1\nv_xor_b32 v{t0}, v{t0}, v{t2}")
    q.e(f"v_lshrrev_b32 v{t2}, 5, v{vL}\nv_xor_b32 v{t0}, v{t0}, v{t2}\nv_bfe_u32 v{t2}, v{vL}, 2, 1\nv_lshl_add_u32 v{t0}, v{t0}, 1, v{t2}\nv_lshlrev_b32 v{t0}, 4, v{t0}")
    q.e(f"v_lshl_add_u32 v{t1}, v{t1}, 6, v{t0}\ns_mul_i32 s{sT0}, s{sW}, 10240\ns_add_u32 s{sT0}, s{sT0}, 98304\nv_add_u32 v{vSTW}, s{sT0}, v{t1}\nv_xor_b32 v229, 16, v{vSTW}")
    q.e(f"v_lshrrev_b32 v{t0}, 4, v{vL}\nv_lshlrev_b32 v{t1}, 9, v{t0}\nv_bfe_u32 v{t2}, v{vL}, 2, 2\nv_lshl_add_u32 v{t1}, v{t2}, 6, v{t1}\nv_lshrrev_b32 v{t2}, 1, v{t0}\nv_xor_b32 v{t0}, v{t0}, v{t2}")
    q.e(f"v_and_b32 v{t0}, 1, v{t0}\nv_bfe_u32 v{t2}, v{vL}, 3, 1\nv_lshl_add_u32 v{t0}, v{t0}, 1, v{t2}\nv_bfe_u32 v{t2}, v{vL}, 1, 1\nv_xor_b32 v{t0}, v{t0}, v{t2}\nv_lshl_add_u32 v{t1}, v{t0}, 4, v{t1}")
    q.e(f"v_and_b32 v{t0}, 1, v{vL}\nv_lshl_add_u32 v{t1}, v{t0}, 3, v{t1}\nv_add_u32 v{vSTR}, s{sT0}, v{t1}\nv_xor_b32 v230, 32, v{vSTR}")
    cl, cu = cs_consume(c, 4, CSA)
    TM0, TMB = c.TM0, c.TMB
    G2L = max(o.get('g2l', 53), BF0 + 1)
    ex2 = [Gate(G2L - 1)] + cl[0] + [Deadline(G2L)]
    c.lights.append((G2L, cl[1]))
    side += q.items + [Gate(o.get('g2', 61))] + cu
    LP = [CSA + 2 * i for i in range(8)] + [4, 6, 8, 10, 12, 14, 16]
    ldl = "\n".join(f"buffer_load_dwordx2 {V(LP[i],2)}, v{vFL}, {S(S_AG)}, s{S_J0+i//3} offen offset:{(i%3)*1280} sc1" for i in range(15))
    side += [Deadline(TM0 - 2), Gate(TM0 - 2)] + ext_read(4) + k2_flags(c) + [Deadline(TM0 + TMB)]
    c.lights.append((max(TM0 - 2, c.NST - o.get('g3', 12)), code(ldl)))
    c.lights.append((c.NST - o.get('gx1', 4), code(c.ldx1)))
    for k, tau in enumerate(c.t2[:-1]): side += [Gate(TM0 + TMB * (k + 1))] + code("s_nop 1") + ffn_epi(ACC2 + 16 * tau, 4 + (tau >> 1), (tau & 1) * 512) + [Deadline(TM0 + TMB * (k + 2))]
    q = Prog()
    q.extend(retry(c, ldl, tagcheck([r + 1 for r in LP]), (ldl.split('\n')[0], tagcheck([LP[0] + 1]))))
    for i in range(13, -1, -1):
        q.e(f"v_fmac_f32 v{LP[i]}, v{LM+2}, v{LP[i+1]}\nv_fmac_f32_dpp v{LP[i]}, v{LP[i+1]}, v{LM+3} {QP}")
    q.e(f"ds_write_b32 v{vE2}, v{LP[0]} offset:{AG_L+12}", tag='pw')
    for k in range(7):
        g = LP[0] if k == 0 else E0 + k - 1
        q.e(f"v_fmac_f32 v{E0+k}, v{LM}, v{g}\nv_fmac_f32_dpp v{E0+k}, v{g}, v{LM+1} {QP}")
    q.e(f"ds_write_b128 v{vE2}, {V(E0,4)} offset:{AG_L+16}\nds_write_b128 v{vE2}, {V(E0+4,4)} offset:{AG_L+32}", tag='pw')
    gch = q.items
    q = Prog()
    CY = [216, 217, 218, 219, 228]
    for t in range(5): q.e(f"ds_read_b32 v{CY[t]}, v{vAG} offset:{AG_L + 12 + 1536*t}")
    cy = q.items
    def scan(tiles):
        q = Prog()
        for tt in range(16):
            for t in tiles:
                g = CY[t] if tt == 0 else (ACC1 + 16 * t + tt - 1)
                q.e(f"v_fmac_f32 v{ACC1+16*t+tt}, v{C0+2*t}, v{g}")
            for t in tiles:
                g = CY[t] if tt == 0 else (ACC1 + 16 * t + tt - 1)
                q.e(f"v_fmac_f32_dpp v{ACC1+16*t+tt}, v{g}, v{C0+2*t+1} {QP}")
            for k in ([tt // 2 - 1] if (tt >= 2 and tt % 2 == 0) else []) + ([7] if tt == 15 else []):
                for t in tiles: q.e(f"v_cvt_pk_bf16_f32 v{ACC1+16*t+k}, v{ACC1+16*t+2*k}, v{ACC1+16*t+2*k+1}")
            if tt == 10:
                for t in tiles: q.e(f"ds_write_b128 v{vSTW}, {V(ACC1+16*t,4)} offset:{HT2_L + t*2048}")
        return q.items
    def outp(tiles):
        q = Prog()
        for t in tiles:
            R = ACC1 + 16 * t
            q.e(f"ds_write_b128 v229, {V(R+4,4)} offset:{HT2_L + t*2048}")
            for rt in range(2):
                for tq in range(2): q.e(f"ds_read_b64_tr_b16 {V(R+8+4*rt+2*tq,2)}, v{(vSTR, 230)[rt]} offset:{HT2_L + t*2048 + tq*256}")
        for t in tiles:
            R = ACC1 + 16 * t
            q.e(f"s_add_u32 s{sT2}, s85, {t*4096}")
            for rt in range(2): q.e(f"buffer_store_dwordx4 {V(R+8+4*rt,4)}, v{vL16}, {S(S_WS)}, s{sT2} offen offset:{rt*1024} sc1", tag='h')
        return q.items
    add_stage(c, BF0, [(24576 + 4096 * k, 46) for k in (0, 1, 7)] + [(12288, 46), (159744, 46)] + [(Y_RING + 20480 * k + 16384, 46) for k in range(5)] + ([(sb(15) + 4096 * k, 66) for k in range(4)] if o.get('st15', 0) else []))
    c.nb = add_bpre(c, BF0, None)
    assert c.lend[G1_ + 1] < o.get('gu', 31) and c.lend[G2L] < 61
    resolve(steps)
    if o.get('noside'): side = nonce_get(c) + [Deadline(9)]
    weave(p, steps, side, base_rate=o.get('yrate', 3),
                 extra=[ex1 + [Gate(34)] + xe_setup() + [Deadline(45), Gate(BF0 - o.get('kld', 5))] + kl + [Deadline(BF0 - o.get('kld', 5) + 1), Gate(BF0 - 1)] + kc + [Deadline(BF0)] + ex2])
    ts(p)
    p.e(f"s_mov_b32 s85, s{sBT+4}\nv_mov_b32 v{vKN}, v{vPT}\nv_mov_b32 v{vKF}, v{vFZ}")
    p.extend(unstage(c))
    tail = mk(c, 80) + c.chkx1 + merge(c.aload(0) + c.aload(1), merge(autogroup(gch), ffn_epi(ACC2 + 48, 5, 512), keep=True), 1.0) + mk(c, 81) + [Marker('lgkm', 'pw')] + code("s_barrier")
    OV = o.get('ov', 0)
    BR = brest(c); NB = min(len(BR), o.get('nbt', 0))
    tail += cy + merge(BR[:NB], scan([0, 1]), 1.0) + mk(c, 82)
    if OV == 0:
        tail += merge(outp([0, 1]), scan([2, 3]), 1.0) + mk(c, 83)
        tail += merge(outp([2, 3]), scan([4]) + outp([4])[:5], 1.0) + code(c.ldx) + outp([4])[5:]
        c.k2side = []
    c.k2b = BR[NB:]
    if OV == 0: pass
    elif OV == 1:
        tail += merge(outp([0, 1]) + c.aload(2), scan([2, 3, 4]), 1.0) + mk(c, 83) + code(c.ldx); c.a2 = True
        c.k2side = outp([2, 3, 4]) + [Deadline(2)]
    else:
        tail += mk(c, 83) + c.aload(2) + code(c.ldx); c.a2 = True
        c.k2side = merge(outp([0, 1]), scan([2, 3, 4]), 1.0) + outp([2, 3, 4]) + [Deadline(2)]
    p.extend(tail)
    ts(p)

def mk(c, n): return code(f'.set STEPMARK{c.typ}{n}, 0') if c.opt.get('st0') is not None else []
def merge(a, b, f=1.15, keep=False):
    out = []; k = 0
    for i, it in enumerate(b):
        out.append(it)
        while k < len(a) and k * len(b) <= i * len(a) * f:
            out.append(a[k]); k += 1
    out += a[k:]
    if keep: return out
    return [y for x in out for y in (x.its if isinstance(x, Group) else [x])]

vKW, vKF, vKN = 36, 37, 35
HOMES = [(A, 220), (A, 196), (V, 200), (V, 18)]
def plan_homes(c):
    KF = OPT.get('kf', 3)
    front = [('o', 0), ('o', 1), ('p', 0), ('p', 1), ('o', 2), ('o', 3), ('p', 2), ('p', 3)]
    moved = {4: [], 2: [('o', 2), ('o', 3)], 3: [('o', 3)]}[KF]
    front = [x for x in front if x not in moved]
    c.seq = front + [('p', i) for i in range(4, 11)] + moved + [('o', i) for i in range(4, 11)]
    c.NF = len(front); c.PL = c.NF + 6
    lastB = {i: max(u for u, (k, j) in enumerate(c.seq) if j == i) for i in range(11)}
    pool = [[A, 220, -9], [A, 196, -9], [V, 200, -9], [V, 18, -9]] + [[A, 16 * k, max(lastB[(16 * k) // 20], lastB[(16 * k + 15) // 20]) + 1] for k in range(5)]
    c.home = []; c.earliest = []
    for v in range(22):
        h = min(pool, key=lambda x: x[2])
        c.home.append((h[0], h[1])); c.earliest.append(h[2])
        h[2] = v + 1 + (1 if v in (c.PL - 1, 20) else 0)
def k2_flags(c):
    q = Prog()
    q.e(f"s_and_b32 s87, s{sSK}, 8\ns_lshl_b32 s86, s{sW}, 1\ns_add_u32 s87, s87, s86\ns_lshl_b32 s86, s{sMK}, 4\ns_add_u32 s87, s87, s86")
    q.e(f"s_lshl_b32 s87, s87, 7\ns_add_u32 s87, s87, {HF_OFF}\nv_mov_b32 v248, 0")
    c.ldx = f"buffer_load_dword v249, v248, {S(S_WS)}, s87 offen sc1"
    c.ldy = f"buffer_load_dword v250, v248, {S(S_WS)}, s87 offen offset:128 sc1"
    c.chkx = retry(c, c.ldx, tagcheck([249]))
    c.ldx1 = f"buffer_load_dword v250, v248, {S(S_WS)}, s87 offen offset:4 sc1"
    if c.typ == 'Y': c.chkx1 = retry(c, c.ldx1, tagcheck([250]))
    plan_homes(c)
    def aload(u):
        kind, i = c.seq[u]; R, b = c.home[u]; s_ = sAP if kind == 'p' else sAO
        return code(f"s_add_u32 s{sBD}, s{s_}, {4096*i}\n" + "\n".join(f"buffer_load_dwordx4 {R(b+4*rt,4)}, v{vL16}, {S(S_WS)}, s{sBD} offen offset:{1024*rt} sc1" for rt in range(4)))
    c.aload = aload
    return q.items

def k2(p, c):
    ts = c.ts; o = c.opt
    AP, AO = 40, 120
    seq = c.seq; aload = c.aload; ldy = c.ldy
    isY = c.typ == 'Y'
    mark = lambda n: p.e(f'.set STEPMARK{c.typ}{n}, 0') if o.get('st0') is not None else None
    fl = code(f"buffer_store_dword v{vKN}, v{vKF}, {S(S_WS)}, s{sFL} offen sc1", 'flag')
    if not isY: p.e(f"v_mov_b32 v{vKN}, v{vPT}\nv_mov_b32 v{vKF}, v{vFZ}")
    q = Prog()
    srd(q, S_W1, P_D, 1280)
    srd(q, S_W3, P_OUT, 2048 * 2560)
    q.e(f"s_and_b32 s{sU0}, s{sSK}, 7\ns_lshr_b32 s{sU1}, s{sSK}, 3\ns_lshl_b32 s{sT1}, s{sMK}, 1\ns_add_u32 s{sU1}, s{sU1}, s{sT1}")
    q.e(f"s_mul_i32 s61, s48, 1280\ns_add_u32 s61, s61, s49\ns_lshl_b32 s61, s61, 1\ns_and_b32 s59, s49, 127\ns_add_u32 s59, s59, s50\ns_mov_b32 s60, s50\nv_lshlrev_b32 v5, 2, v1")
    q.e(f"s_add_u32 m0, s60, 4096\nbuffer_load_dword v5, {S(S_W1)}, s49 offen lds", tag='xe')
    q.e(f"s_lshl_b32 s49, s48, 4\ns_add_u32 s49, s49, {ST_OFF}\nv_and_b32 v3, 15, v1\nv_lshlrev_b32 v3, 4, v3")
    lds_ = f"buffer_load_dwordx4 v[252:255], v3, {S(S_WS)}, s49 offen sc1"
    q.e(lds_)
    q.e(f"s_lshl_b32 s{sT0}, s{sU1}, 3\ns_add_u32 s{sT0}, s{sT0}, s{sU0}\ns_mul_i32 s62, s{sT0}, 28672\ns_add_u32 s62, s62, {PX_OFF}")
    q.e(f"s_xor_b32 s{sT0}, s{sT0}, 8\ns_mul_i32 s63, s{sT0}, 28672\ns_add_u32 s63, s63, {PX_OFF}")
    q.e(f"v_lshlrev_b32 v17, 4, v0")
    q.e(f"v_and_b32 v4, 15, v1\nv_mul_u32_u24 v4, 336, v4\nv_lshrrev_b32 v5, 4, v1\nv_lshl_add_u32 v4, v5, 4, v4\ns_mul_i32 s44, s{sW}, 21504\nv_add_u32 v{vKW}, s44, v4")
    EL, EO = 6, 11
    EX, ED, ES = 216, 226, 236
    q.e(f"s_mul_i32 s44, s{sW}, {16*336}")
    rdl = Prog()
    rdl.extend(retry(c, lds_, tagcheck([254, 255])))
    rdl.e(f"v_lshrrev_b32 v3, 1, v3\nv_add_u32 v3, s60, v3\nds_write_b64 v3, v[252:253] offset:4352")
    rdl.wait_vm('xe')
    for u in range(5):
        q.e(f"v_add_u32 v4, {64*u}, v1\nv_mul_u32_u24 v5, 3277, v4\nv_lshrrev_b32 v5, 16, v5\nv_lshlrev_b32 v4, 4, v4\nv_lshl_add_u32 v2, v5, 4, v4\nv_add_u32 v{EL+u}, s44, v2")
        q.e(f"v_mul_u32_u24 v2, 320, v5\nv_sub_u32 v4, v4, v2\nv_lshl_add_u32 v{EO+u}, v2, 3, v4\nv_lshrrev_b32 v4, 1, v4")
        q.e(f"v_lshl_add_u32 v2, v5, 8, v4\nv_add_u32 v{EX+2*u}, s59, v2\nv_add_u32 v{ED+2*u}, s60, v4\nv_lshlrev_b32 v5, 3, v5\nv_add_u32 v{ES+2*u}, s60, v5")
        rdl.e(f"ds_read_b64 {V(EX+2*u,2)}, v{EX+2*u}\nds_read_b64 {V(ED+2*u,2)}, v{ED+2*u} offset:4096\nds_read_b64 {V(ES+2*u,2)}, v{ES+2*u} offset:4352")
    ksetup = q.items
    if not isY:
        BR = brest(c); NB = min(len(BR), o.get('nbx', 99))
        p.extend(merge(BR[:NB], [])); c.k2b = BR[NB:]
        p.extend(mk(c, 82))
        p.wait_vm('h'); p.e("s_barrier"); p.extend(fl)
        p.extend(ksetup)
        p.e(c.ldx)
        p.extend(mk(c, 83))
        ts(p)
        p.extend(c.chkx)
        for u in range(3): p.extend(aload(u))
    elif not getattr(c, 'a2', False):
        p.extend(aload(2))
    ts(p)
    steps = []
    for u, (kind, i) in enumerate(seq):
        R, a = c.home[u]; acc = AP if kind == 'p' else AO
        mf = []
        for rt in range(4):
            for ct in range(5):
                d = acc + 4 * (5 * rt + ct)
                mf += code(f"v_mfma_f32_16x16x32_bf16 {V(d,4)}, {A(BH[5*i+ct],4)}, {R(a+4*rt,4)}, {'0' if i == 0 else V(d,4)}")
        steps.append(dict(pre=[], mf=mf, rd=[[] for _ in mf]))
    NF, PL = c.NF, c.PL
    CU = NF - (o.get('cuy', 2) if isY else o.get('cux', 3))
    C2 = o.get('c2', 2)
    if isY: steps[C2]['pre'] += c.chkx
    steps[CU]['pre'] += retry(c, ldy, tagcheck([250])) + [LazyStamp(ts)]
    steps[CU - 1]['rd'][o.get('lyg', 10)] += code(ldy)
    g = 0; AS_ = o.get('as', 4)
    for v in range(3, 22):
        e = max(c.earliest[v], v - o.get('ad', 6), 0)
        if isY and v >= 4: e = max(e, C2)
        if v >= NF: e = max(e, CU)
        g = max(g, 20 * e)
        its = aload(v)
        st_ = AS_ if g < 20 * (v - 2) else 2
        steps[g // 20]['rd'][g % 20] += [its[0]]
        for k in range(4): steps[g // 20]['rd'][g % 20] += [its[k + 1]]; g += st_
        assert g <= 20 * v, (v, g)
        if o.get('vlog'): print(c.typ, v, c.home[v][1], g, file=sys.stderr)
    def wr(acc, rt):
        return code("\n".join(f"ds_write_b128 v{vKW}, {V(acc+4*(5*rt+ct),4)} offset:{rt*16*336 + ct*64}" for ct in range(5)), 'pw')
    side = []
    if isY:
        side += c.k2side + ksetup + [Deadline(o.get('ksd', 2))]
        steps[o.get('fu', 3)]['rd'][o.get('fg', 4)] += [Marker('vm', 'h')] + code("s_barrier") + fl
    M = f"s{sMASK}"
    q = Prog()
    PT = [r for u in range(5) for r in (EX + 2 * u, EX + 2 * u + 1, ED + 2 * u, ED + 2 * u + 1)]
    Xr = [2, 3, 4, 5]; Dr = [246, 247, 252, 253]; Yr = [254, 255, 16, 34]
    for u in range(5):
        q.e(f"v_lshlrev_b32 v{Xr[0]}, 16, v{EX+2*u}\nv_and_b32 v{Xr[1]}, {M}, v{EX+2*u}\nv_lshlrev_b32 v{Xr[2]}, 16, v{EX+2*u+1}\nv_and_b32 v{Xr[3]}, {M}, v{EX+2*u+1}")
        q.e(f"v_lshlrev_b32 v{Dr[0]}, 16, v{ED+2*u}\nv_and_b32 v{Dr[1]}, {M}, v{ED+2*u}\nv_lshlrev_b32 v{Dr[2]}, 16, v{ED+2*u+1}\nv_and_b32 v{Dr[3]}, {M}, v{ED+2*u+1}")
        q.e(f"v_and_b32 v{ES+2*u+1}, {M}, v{ES+2*u+1}\nv_mul_f32 v{ES+2*u+1}, v{ES+2*u+1}, v{ES+2*u}")
        for i in range(4): q.e(f"v_fma_f32 v{Yr[i]}, v{Xr[i]}, v{ES+2*u}, v{ES+2*u+1}")
        rnd = (f"v_cvt_pk_bf16_f32 v{Yr[0]}, v{Yr[0]}, v{Yr[1]}\nv_cvt_pk_bf16_f32 v{Yr[2]}, v{Yr[2]}, v{Yr[3]}\n"
               f"v_and_b32 v{Yr[1]}, {M}, v{Yr[0]}\nv_lshlrev_b32 v{Yr[0]}, 16, v{Yr[0]}\nv_and_b32 v{Yr[3]}, {M}, v{Yr[2]}\nv_lshlrev_b32 v{Yr[2]}, 16, v{Yr[2]}")
        q.e(rnd)
        for i in range(4): q.e(f"v_mul_f32 v{Yr[i]}, v{Yr[i]}, v{Dr[i]}")
        q.e(rnd)
        for i in range(4): q.e(f"v_add_f32 v{PT[4*u+i]}, v{Xr[i]}, v{Yr[i]}")
    pre = rdl.items + q.items
    def fuse(u, acc):
        a, b = steps[u], steps[u + 1]
        mf = []; rd = []
        for rt in range(4):
            mf += a['mf'][5 * rt:5 * rt + 5] + b['mf'][5 * rt:5 * rt + 5]
        rd = a['rd'] + b['rd']
        for rt in range(3):
            w = wr(acc, rt)
            for k in range(5): rd[10 * (rt + 1) + 3 + k] += [w[k]]
        a['mf'], a['rd'] = mf[:20], rd[:20]; b['mf'], b['rd'] = mf[20:], rd[20:]
    fuse(PL - 1, AP); fuse(20, AO)
    w = wr(AP, 3)
    for k in range(5): steps[PL + 1]['rd'][3 + k] += [w[k]]
    steps[PL + 1]['rd'][12] += [Marker('lgkm', 'pw')] + code("s_barrier")
    q = Prog()
    GR = AP + 48
    gi = lambda f: GR + 4 * (f // 3) + f % 3
    sent = [0]
    PX2 = o.get('px2', 1)
    PXB = o.get('pxb', 1); NG, NV = (4, 10) if PXB else (7, 20)
    def send(upto):
        while sent[0] < NG and (3 * sent[0] + 2 < upto or upto == NV):
            g = sent[0]; sent[0] += 1
            if PXB and g == 3 and PX2:
                q.e(f"v_mov_b32 v{GR+4*g+1}, s{sN}\nv_lshrrev_b32 v16, 1, v17\nbuffer_store_dwordx2 {V(GR+4*g,2)}, v16, {S(S_WS)}, s63 offen sc1")
            else:
                q.e(f"v_mov_b32 v{GR+4*g+3}, s{sN}\nbuffer_store_dwordx4 {V(GR+4*g,4)}, v17, {S(S_WS)}, s63 offen sc1\ns_add_u32 s63, s63, 4096")
    def red(u):
        T = AP + 16 * (u % 3)
        for i in range(4): q.e(f"v_add_f32 v{T+i}, v{T+i}, v{T+4+i}\nv_add_f32 v{T+8+i}, v{T+8+i}, v{T+12+i}")
        if PXB:
            for i in range(4): q.e(f"v_add_f32 v{T+i}, v{T+i}, v{T+8+i}")
            for i in range(2): q.e(f"v_cvt_pk_bf16_f32 v{gi(2*u+i)}, v{T+2*i}, v{T+2*i+1}")
            send(2 * u + 2)
        else:
            for i in range(4): q.e(f"v_add_f32 v{gi(4*u+i)}, v{T+i}, v{T+8+i}")
            send(4 * u + 4)
    for u in range(5):
        T = AP + 16 * (u % 3)
        for w in range(4): q.e(f"ds_read_b128 {V(T+4*w,4)}, v{EL+u} offset:{w*21504}")
        if u >= 2: red(u - 2)
    red(3); red(4)
    RG = AP
    ldp = "\n".join(f"buffer_load_dwordx4 {V(RG+4*g,4)}, v17, {S(S_WS)}, s{70+g} offen sc1" for g in range(NG))
    tags = [RG + 4 * g + 3 for g in range(NG)]
    if PXB and PX2:
        ldp = '\n'.join(ldp.split('\n')[:3]) + f"\nbuffer_load_dwordx2 {V(RG+12,2)}, v16, {S(S_WS)}, s73 offen sc1"; tags[3] = RG + 13
    if o.get('cp2', 1):
        L = f"{c.typ}_cp2"
        steps[max(CU, 5)]['rd'][19] += code(f"s_getpc_b64 s[90:91]\n{L}:\nv_lshlrev_b32 v4, 7, v0\nv_min_u32 v4, {c.typ}_end-{L}, v4\nglobal_load_dword v250, v4, s[90:91]")
    side += ([Gate(CU - 2 if isY else 1)] + pre + [Deadline(CU)] if o.get('pe', 1) else [Gate(max(CU + 1, 6))] + pre + [Deadline(PL - 1)]) + [Gate(PL + 2)] + q.items + [Deadline(PL + 4)] + code("\n".join(f"s_add_u32 s{70+g}, s62, {4096*g}" for g in range(NG))) + [Deadline(20)]
    side += [Gate(o.get('lpu', 20))] + code(ldp)
    steps[20]['rd'][0] += code("s_barrier")
    if o.get('st0') is not None:
        for u, st in enumerate(steps): st['pre'] = code(f'.set STEPMARK{c.typ}{84+u}, 0') + st['pre']
    resolve(steps)
    if o.get('dk2') is not None: steps[o['dk2']]['pre'] += code('s_sleep 36')
    kb = []
    for g in c.k2b:
        u0 = min(u for u, x in enumerate(seq) if x[1] == g.pos)
        kb += g.its + [Deadline(max(1, min(u0 - o.get('bl', 2), o.get('bd', 5))))]
    weave(p, steps, side, base_rate=1, extra=[kb])
    ts(p); mark(106)
    p.extend(wr(AO, 3))
    p.wait_lgkm('pw')
    p.e("s_barrier")
    mark(107)
    for u in range(5):
        for w in range(4): p.e(f"ds_read_b128 {V(AO+16*u+4*w,4)}, v{EL+u} offset:{w*21504}")
        if u == 2:
            p.extend(retry(c, ldp, tagcheck(tags)))
            if PXB:
                for d in range(10):
                    r = RG + 4 * (d // 3) + d % 3
                    p.e(f"v_lshlrev_b32 v{RG+16+d}, 16, v{r}\nv_and_b32 v{r}, {M}, v{r}")
                for d in range(10):
                    r = RG + 4 * (d // 3) + d % 3
                    p.e(f"v_add_f32 v{PT[2*d]}, v{PT[2*d]}, v{RG+16+d}\nv_add_f32 v{PT[2*d+1]}, v{PT[2*d+1]}, v{r}")
            else:
                for f in range(20): p.e(f"v_add_f32 v{PT[f]}, v{PT[f]}, v{RG + 4*(f//3) + f%3}")
    mark(108)
    for u in range(5):
        R = AO + 16 * u
        for i in range(4): p.e(f"v_add_f32 v{R+i}, v{R+i}, v{R+4+i}\nv_add_f32 v{R+8+i}, v{R+8+i}, v{R+12+i}")
        for i in range(4): p.e(f"v_add_f32 v{R+i}, v{R+i}, v{PT[4*u+i]}")
        for i in range(4): p.e(f"v_add_f32 v{R+i}, v{R+i}, v{R+8+i}")
        p.e(f"buffer_store_dwordx4 {V(R,4)}, v{EO+u}, {S(S_W3)}, s61 offen{NT('nto')}{' sc1' if OPT.get('osc', 1) else ''}{' sc0' if OPT.get('osc', 1) == 2 else ''}")
    mark(109)
    if o.get('st0') is not None: p.e("s_waitcnt vmcnt(0)"); mark(110); p.e("s_nop 15\ns_nop 15\ns_nop 15"); mark(111)
    ts(p)

HEADER = open('parallel_sum__ssm_conv_s5__glu_gated_swiglu__prompt.s.ref').read().split('; Override launch')[0]

def profile(txt, typ):
    out = []; k = 2; sites = []; nm = 0
    lo = OPT.get('prof0', 0)
    for l in txt.split('\n'):
        if 'mfma' in l: nm += 1
        if 's_memrealtime' in l and k > 2: k = 100
        hit = ('vmcnt' in l or 's_barrier' in l or 's_cbranch_vccnz' in l or '_slow' in l) and nm >= lo and k < 62
        if OPT['prof'] == 2: hit = ('buffer_' in l or 'global_' in l) and nm >= lo and k < 62
        if hit and '_slow' in l:
            out.append("  s_memtime s[0:1]"); out.append(l); pend = True; sites.append((k, nm, l.strip())); continue
        if OPT['prof'] == 1 and l.endswith('_ret:') and out[-2].startswith("  s_memtime s[0:1]"):
            out.append(l); out.append(f"  s_memtime s[2:3]\n  s_waitcnt lgkmcnt(0)\n  s_sub_u32 s2, s2, s0\n  s_or_b32 s2, s2, 1\n  v_writelane_b32 v251, s2, {k}"); k += 1; continue
        if hit:
            out.append(f"  s_memtime s[0:1]\n{l}\n  s_memtime s[2:3]\n  s_waitcnt lgkmcnt(0)\n  s_sub_u32 s2, s2, s0\n  s_or_b32 s2, s2, 1\n  v_writelane_b32 v251, s2, {k}")
            sites.append((k, nm, l.strip())); k += 1
        else: out.append(l)
    print(typ, "sites:", [(b, ('D' if ' lds' in c else 'S' if 'store' in c else 'L') if 'buffer' in c or 'global' in c else c.replace('s_waitcnt ', '').replace('s_cbranch_', '')) for a, b, c in sites], file=sys.stderr)
    return '\n'.join(out)

def build(opt):
    OPT.update(opt)
    ph = Prog(); setup(ph, opt)
    ph.e(f"s_bitcmp1_b32 s{sSL}, 0\ns_cbranch_scc0 K_X")
    body = ph.finalize() + "\n"
    sx = [it for it in ph.items if isinstance(it, I) and it.tag == 'cpf' and it.kind == 'vm']
    parts = {}
    for typ, fn in (('X', k1_X), ('Y', k1_Y)):
        c = Ctx(typ, opt)
        p = Prog()
        if typ == 'X': p.e("K_X:")
        p.add(Marker('assume_vm', sx))
        def save_id(p):
            if opt.get('ts'): p.e('v_mov_b32 v251, 0')
            p.e("s_memrealtime s[2:3]")
        def start(p, c=c):
            c.ts(p, True); c.ts(p)
            if opt.get('prof') or opt.get('st0') is not None: c.ts.on = False
        c.save_id = save_id; c.start = start
        fn(p, c)
        k2(p, c)
        if opt.get('prof') or opt.get('st0') is not None: c.ts.on = True; c.ts.n = 63
        if c.ts.on:
            p.wait_all(); c.ts(p, True); c.ts.dump(p)
        p.e(f"{typ}_end:\ns_endpgm")
        st = {}
        txt = p.finalize(st)
        if opt.get('prof'): txt = profile(txt, typ)
        if opt.get('st0') is not None:
            out = []
            for l in txt.split('\n'):
                if 'STEPMARK' in l:
                    k = int(l.split(',')[0].split(typ)[-1]) - opt['st0']
                    if 0 <= k <= 60:
                        a = 2 * (k & 1)
                        if k > 0: out.append(f"  v_writelane_b32 v251, s{2-a}, {k}")
                        if k < 60: out.append(f"  s_memtime s[{a}:{a+1}]")
                else: out.append(l)
            txt = '\n'.join(out)
        import re as _re
        slow = [q for q in c.slow if _re.search(r'(\w+)_slow:', q).group(1) + '_ret:' in txt]
        if opt.get('nodma'): txt = '\n'.join(l for l in txt.split('\n') if not (' lds' in l and 'buffer_load' in l))
        if opt.get('nomfma'): txt = '\n'.join(l for l in txt.split('\n') if not ('32x32x16' in l))
        if opt.get('nowait'): txt = '\n'.join(l for l in txt.split('\n') if not ('vmcnt' in l and 'vmcnt(0)' not in l))
        if opt.get('nost'): txt = '\n'.join(l for l in txt.split('\n') if not ('buffer_store_dwordx4' in l and 's61' not in l))
        if opt.get('noA'): txt = '\n'.join(l for l in txt.split('\n') if not ('buffer_load_dwordx4' in l and 's65 offen offset' in l))
        if opt.get('noB'): txt = '\n'.join(l for l in txt.split('\n') if not ('buffer_load_dwordx4' in l and ('s64 offen' in l or 's65 offen sc1 lds' in l)))
        if opt.get('nok2'): txt = '\n'.join(l for l in txt.split('\n') if not ('16x16x32' in l))
        if opt.get('nosmall'): txt = '\n'.join(l for l in txt.split('\n') if not (('buffer_' in l or 'global_' in l) and 'dwordx4' not in l and 'v211' not in l and 'v251' not in l))
        if opt.get('plainH'): txt = '\n'.join(l.replace(' sc1', {1: '', 2: ' sc0', 3: ' nt'}[opt['plainH']]) if ('buffer_store_dwordx4' in l and 's46 offen' in l) else l for l in txt.split('\n'))
        if opt.get('plainA'): txt = '\n'.join(l.replace(' sc1', '') if ('buffer_load_dwordx4' in l and 's65 offen offset' in l) else l for l in txt.split('\n'))
        if opt.get('nolds'): txt = '\n'.join(l for l in txt.split('\n') if not ('ds_read' in l))
        parts[typ] = txt + "\n" + "\n".join(slow) + "\n"
        print(typ, st, file=sys.stderr)
    y0, y1 = parts['Y'].split("  .set SPLIT, 0\n")
    body += y0 + parts['X'] + y1
    body += "K_end:\n  s_endpgm\n"
    k = NAME + "_kernel"
    if opt.get('plain'): body = body.replace(' sc1', '')
    if opt.get('plainst'): body = '\n'.join(l.replace(' sc1', '') if 'buffer_store' in l else l for l in body.split('\n'))
    s = HEADER + "; @launch grid=(256,1,1) block=(256,1,1) lds=163840\n"
    s += """; One persistent launch, 256 workgroups (one per CU), 4 waves of 512 registers each.  Generated by my own script.
;  GEMM1 : x (raw bf16, fragments kept in AGPRs) times [B_re|B_im|w1|w3] staged through an LDS ring (LDS-DMA, swizzled).
;  scan  : exact chunked recurrence (16-step segments in-lane, 128-step chunks per workgroup, look-back over all earlier chunks).
;  GEMM2 : [h|hff] times [C'|w2], 128x80 tiles, K split over a workgroup pair and over the 4 waves; residual + D-skip in the epilogue.
;  Hand-offs between workgroups: write-through stores, tagged with a per-launch nonce published through d_debug.
"""
    s += f'.amdgcn_target "amdgcn-amd-amdhsa--gfx950"\n.text\n.globl {k}\n.p2align 8\n.type {k},@function\n{k}:\n{body}'
    s += '.section .rodata,"a"\n' + kd(k, 512, 102, 256)
    return s

if __name__ == '__main__':
    opt = {}
    for a in sys.argv[2:]:
        k, v = a.split('='); opt[k] = int(v)
    open(sys.argv[1], 'w').write(build(opt))
```
